```python
import torch

def _softmax(x, axis=-1):
    return torch.softmax(x, dim=axis)
def _gelu(x):
    return torch.nn.functional.gelu(x, approximate="tanh")
def _silu(x):
    return torch.nn.functional.silu(x)
def _sigmoid(x):
    return torch.sigmoid(x)
def _layernorm(x, axis=-1, eps=1e-5):
    m = x.mean(dim=axis, keepdim=True)
    v = x.var(dim=axis, keepdim=True, unbiased=False)
    return (x - m) / torch.sqrt(v + eps)
def _scatter_add(tgt, idx, src, axis=0):
    return tgt.clone().index_add_(axis, idx, src)
def _segment_sum(src, seg, n):
    out = torch.zeros((n,) + src.shape[1:], dtype=src.dtype)
    return out.index_add_(0, seg, src)
def _pad(x, pw):
    flat = tuple(v for pair in reversed(pw) for v in pair)
    return torch.nn.functional.pad(x, flat)

kernel_name = 'gated_mix__gqa_block_cached__dense_activation_silu__decode'

def setup_inputs():

    _w = (lambda a: (lambda t: t.to(torch.bfloat16) if t.is_floating_point() else t)(torch.as_tensor(a)))
    def _A_setup():
        B, Sq, D = 2, 1, 448
        Hq, Hkv, Sk, Dh = 16, 8, 32768, 256
        assert Hq % Hkv == 0, (Hq, Hkv)
        return {
            "x": _w((lambda *s: torch.randn(*s, dtype=torch.bfloat16) * 0.05)(B, Sq, D)),
            "k_cache": _w((lambda *s: torch.randn(*s, dtype=torch.bfloat16) * 6.4)(B, Hkv, Sk, Dh)),
            "v_cache": _w((lambda *s: torch.randn(*s, dtype=torch.bfloat16) * 0.8)(B, Hkv, Sk, Dh)),
            "wq": _w((lambda *s: torch.randn(*s, dtype=torch.bfloat16) * 6.4)(D, Hq * Dh) * (D ** -0.5)),
            "wo": _w((lambda *s: torch.randn(*s, dtype=torch.bfloat16) * 0.8)(Hq * Dh, D) * ((Hq * Dh) ** -0.5)),
        }
    _A_in = _A_setup()

    def _B_setup():
        B, S, D, F = 2, 1, 448, 1792
        return {
            "x": _w((lambda *s: torch.randn(*s, dtype=torch.bfloat16) * 0.05)(B, S, D)),
            "w1": _w((lambda *s: torch.randn(*s, dtype=torch.bfloat16) * 12.8)(D, F) * (D ** -0.5)),
            "w2": _w((lambda *s: torch.randn(*s, dtype=torch.bfloat16) * 0.2)(F, D) * (F ** -0.5)),
        }
    _B_in = _B_setup()

    return {
        "A_x": _A_in["x"],
        "A_k_cache": _A_in["k_cache"],
        "A_v_cache": _A_in["v_cache"],
        "A_wq": _A_in["wq"],
        "A_wo": _A_in["wo"],
        "B_x": _B_in["x"],
        "B_w1": _B_in["w1"],
        "B_w2": _B_in["w2"],
        "gate_w": _w((lambda *s: torch.randn(*s, dtype=torch.bfloat16) * 0.2)(448) * 16.0),
    }

def reference(A_x, A_k_cache, A_v_cache, A_wq, A_wo, B_x, B_w1, B_w2, gate_w):
    def _A_ref(x, k_cache, v_cache, wq, wo):
        B, Sq, D = x.shape
        Hq, Dh = 16, 256
        Hkv = k_cache.shape[1]
        rep = Hq // Hkv
        q = (lambda x, *d: x.permute(*d))((x @ wq).reshape(B, Sq, Hq, Dh), 0, 2, 1, 3)
        k = (lambda x, n, axis: torch.repeat_interleave(x, n, dim=axis))(k_cache, rep, axis=1)
        v = (lambda x, n, axis: torch.repeat_interleave(x, n, dim=axis))(v_cache, rep, axis=1)
        scores = torch.einsum("bhqd,bhkd->bhqk", q, k) * (Dh ** -0.5)
        p = _softmax(scores, axis=-1)
        o = torch.einsum("bhqk,bhkd->bhqd", p, v)
        return (lambda x, *d: x.permute(*d))(o, 0, 2, 1, 3).reshape(B, Sq, Hq * Dh) @ wo

    def _B_ref(x, w1, w2):
        h = torch.einsum("bsd,df->bsf", x, w1)
        h = _silu(h)
        out = torch.einsum("bsf,fd->bsd", h, w2)
        return out

    x = A_x
    g = _sigmoid((x * gate_w).sum(-1, keepdims=True))
    a = _A_ref(x, A_k_cache, A_v_cache, A_wq, A_wo)
    b = _B_ref(x, B_w1, B_w2)
    return g * a + (1 - g) * b
```

```python
import sys, math

NAME = "gated_mix__gqa_block_cached__dense_activation_silu__decode"
HEADER = open("cdna_kernels/" + NAME + ".s.ref").read().split("; Override launch")[0]

QBOX = 0x0
OB1 = 0x40000
OB2 = 0x200000
STAMP = 0x20000000
L_Q = 0
L_S = 1024
L_O = L_S + 16384
L_ML = L_O + 8192
L_H = L_ML + 64
L_QP = L_H + 64
LDS_BYTES = L_QP + 512

C_SCALE = (1.0 / 16.0) * math.log2(math.e)
import struct
def f2u(x): return struct.unpack("<I", struct.pack("<f", x))[0]


def gen(prof=0, NPRE=6, PFI=1, early=1, spin_max=200000, sl1=4, sl2=2, slq=1):
    L = []
    A = lambda s: L.append("  " + s)
    LB = lambda s: L.append(s + ":")
    nstamp = [0]

    def stamp(k):
        if prof:
            A(f"s_memrealtime s[{80+2*k}:{81+2*k}]")

    def dump_stamps():
        if not prof:
            return
        A("s_waitcnt lgkmcnt(0)")
        A("s_lshl_b32 s56, s2, 3")
        A("s_add_u32 s56, s56, s3")
        A("s_lshl_b32 s56, s56, 6")
        A(f"s_add_u32 s56, s56, {STAMP}")
        A("s_mov_b64 exec, 1")
        A("v_mov_b32 v60, 0")
        for q in range(4):
            for j in range(4):
                A(f"v_mov_b32 v{56+j}, s{80+4*q+j}")
            A(f"buffer_store_dwordx4 v[56:59], v60, s[40:43], s56 offen offset:{16*q}")
            A("s_nop 1")
        A("s_mov_b64 exec, -1")

    def srd(d, lo, hi, n):
        A(f"s_mov_b32 s{d}, s{lo}")
        A(f"s_mov_b32 s{d+1}, s{hi}")
        A(f"s_mov_b32 s{d+2}, {n}")
        A(f"s_mov_b32 s{d+3}, 0x00020000")

    DPP = "row_mask:0xf bank_mask:0xf"
    ACC = 16
    XR = 32
    def matvec_pairs(npairs, wbase, xbase, tail_ops):
        for u in range(npairs):
            A(f"s_waitcnt vmcnt({2*npairs - (2*u+2) + tail_ops})")
            w0 = wbase + 8*u; w1 = w0 + 4
            for k in range(4):
                A(f"v_perm_b32 v{52+k}, v{w1+k}, v{w0+k}, s60")
                A(f"v_perm_b32 v{56+k}, v{w1+k}, v{w0+k}, s61")
            for k in range(4):
                A(f"v_dot2c_f32_bf16 v{ACC+2*k}, v{52+k}, v{xbase+u}")
                A(f"v_dot2c_f32_bf16 v{ACC+2*k+1}, v{56+k}, v{xbase+u}")
        A("s_nop 3")
        for k in range(4):
            A(f"v_permlane32_swap_b32 v{ACC+k}, v{ACC+4+k}")
        A("s_nop 1")
        for k in range(4):
            A(f"v_add_f32 v{ACC+k}, v{ACC+k}, v{ACC+4+k}")
        A("s_nop 1")
        for k in range(2):
            A(f"v_permlane16_swap_b32 v{ACC+k}, v{ACC+2+k}")
        A("s_nop 1")
        for k in range(2):
            A(f"v_add_f32 v{ACC+k}, v{ACC+k}, v{ACC+2+k}")
        for rr in (8, 4):
            A("s_nop 1")
            for k in range(2):
                A(f"v_add_f32_dpp v{ACC+k}, v{ACC+k}, v{ACC+k} row_ror:{rr} {DPP}")
    L.append(HEADER.rstrip("\n"))
    L.append(f"; @launch grid=(256,1,1) block=(320,1,1) lds={LDS_BYTES}")
    L.append('.amdgcn_target "amdgcn-amd-amdhsa--gfx950"')
    L.append(".text")
    L.append(f".globl {NAME}_kernel")
    L.append(".p2align 8")
    L.append(f".type {NAME}_kernel,@function")
    LB(f"{NAME}_kernel")
    A("s_cmp_ge_u32 s2, 256")
    A("s_cbranch_scc1 L_end")
    A("s_load_dwordx16 s[4:19], s[0:1], 0")
    A("s_load_dwordx8 s[20:27], s[0:1], 64")
    if prof:
        for k in range(8):
            A(f"s_mov_b64 s[{80+2*k}:{81+2*k}], 0")
    stamp(0)
    A("v_lshrrev_b32 v2, 6, v0")
    A("v_and_b32 v1, 63, v0")
    A("v_readfirstlane_b32 s3, v2")
    A("s_lshr_b32 s28, s2, 4")
    A("s_and_b32 s29, s2, 15")
    A("s_lshr_b32 s30, s2, 7")
    A("s_and_b32 s31, s2, 127")
    A("s_and_b32 s64, s29, 7")
    A("s_lshl_b32 s64, s64, 1")
    A("s_lshr_b32 s65, s29, 3")
    A("s_add_u32 s64, s64, s65")
    A("s_andn2_b32 s65, s31, 15")
    A("s_add_u32 s64, s64, s65")
    A("v_and_b32 v8, 15, v1")
    A("v_lshrrev_b32 v9, 4, v1")
    A("v_and_b32 v10, 1, v1")
    A("v_lshlrev_b32 v10, 4, v10")
    A("v_mov_b32 v11, 0xffff")
    A("v_lshlrev_b32 v11, v10, v11")
    A("v_bfe_u32 v10, v1, 1, 2")
    for k in range(4):
        A(f"v_cmp_eq_u32 vcc, {k}, v10")
        A("s_nop 1")
        A(f"v_cndmask_b32 v{4+k}, 0, v11, vcc")
    A("s_waitcnt lgkmcnt(0)")
    srd(40, 26, 27, "0x40000000")
    A("s_cmp_eq_u32 s3, 4")
    A("s_cbranch_scc1 L_service")

    srd(32, 6, 7, "0x10000000")
    srd(36, 8, 9, "0x10000000")
    A("s_lshl_b32 s56, s2, 20")
    A("s_lshl_b32 s57, s3, 13")
    A("s_add_u32 s56, s56, s57")
    A("v_lshrrev_b32 v2, 2, v8")
    A("v_lshlrev_b32 v2, 11, v2")
    A("v_lshl_add_u32 v2, v9, 6, v2")
    A("v_and_b32 v10, 3, v1")
    A("v_lshl_add_u32 v2, v10, 4, v2")
    A("v_lshlrev_b32 v3, 11, v9")
    A("v_lshl_add_u32 v3, v8, 4, v3")
    SLOT0 = 64
    def slot(sl, i): return SLOT0 + 32*sl + 4*i
    def issue(kind, sl, sreg):
        srdn = "s[32:35]" if kind == 'k' else "s[36:39]"
        va = "v2" if kind == 'k' else "v3"
        for i in range(8):
            b = slot(sl, i)
            A(f"buffer_load_dwordx4 v[{b}:{b+3}], {va}, {srdn}, {sreg} offen offset:{(i>>1)*512+(i&1)*256} nt")
    A("s_mul_i32 s57, s30, 896")
    A("s_add_u32 s44, s4, s57")
    A("s_addc_u32 s45, s5, 0")
    A("s_mov_b32 s46, 896")
    A("s_mov_b32 s47, 0x00020000")
    srd(48, 10, 11, 448*4096*2)
    A("v_lshrrev_b32 v12, 2, v1")
    A("s_mul_i32 s57, s3, 14")
    A("v_cmp_gt_u32 vcc, 14, v12")
    A("v_add_u32 v12, s57, v12")
    A("v_mov_b32 v13, 0x4000")
    A("v_cndmask_b32 v12, v13, v12, vcc")
    A("v_lshlrev_b32 v13, 16, v12")
    A("v_lshl_add_u32 v13, v10, 4, v13")
    A("v_lshlrev_b32 v12, 4, v12")
    A(f"buffer_load_dwordx4 v[{XR}:{XR+3}], v12, s[44:47], 0 offen")
    A("s_lshl_b32 s57, s64, 6")
    WQB = slot(NPRE-1, 0)
    for t in range(8):
        A(f"buffer_load_dwordx4 v[{WQB+4*t}:{WQB+4*t+3}], v13, s[48:51], s57 offen nt")
        A("s_add_u32 s57, s57, 0x2000")
    A("s_mov_b32 s57, s56")
    for t in range(early):
        issue('k', t, "s57")
        A("s_add_u32 s57, s57, 0x8000")
    A("s_mov_b32 s60, 0x05040100")
    A("s_mov_b32 s61, 0x07060302")
    for k in range(8):
        A(f"v_mov_b32 v{ACC+k}, 0")
    A("v_lshlrev_b32 v12, 5, v10")
    A("v_lshl_add_u32 v12, v9, 3, v12")
    A("s_lshl_b32 s58, s3, 7")
    A("v_add_u32 v12, s58, v12")
    matvec_pairs(4, WQB, XR, 8*early)
    A("s_mov_b32 s62, 0x000f000f")
    A("s_mov_b32 s63, 0x000f000f")
    A("s_mov_b64 exec, s[62:63]")
    A(f"ds_write_b64 v12, v[{ACC}:{ACC+1}] offset:{L_QP}")
    A("s_mov_b64 exec, -1")
    A("s_waitcnt lgkmcnt(0)")
    A("s_barrier")
    stamp(7)
    for t in range(early, NPRE):
        if t >= PFI:
            A(f"s_waitcnt vmcnt({8*(PFI-1)})")
        issue('k', t, "s57")
        A("s_add_u32 s57, s57, 0x8000")
        if t == early:
            A("v_bfe_u32 v12, v1, 3, 1")
            A("v_lshlrev_b32 v13, 2, v12")
            A("v_add_u32 v13, v13, v9")
            A("v_lshlrev_b32 v12, 9, v12")
            A("v_lshl_add_u32 v12, v9, 6, v12")
            A("v_lshl_add_u32 v12, v10, 4, v12")
            A("s_lshl_b32 s58, s3, 12")
            A(f"s_add_u32 s58, s58, {L_S}")
            A("v_lshlrev_b32 v13, 4, v13")
            A("v_add_u32 v13, s58, v13")
            A("v_mov_b32 v14, 0xff800000")
            A("v_mov_b32 v15, 0")
            for r in range(8):
                A(f"v_mov_b32 v{24+r}, 0")
            A(f"s_mov_b32 s59, {f2u(C_SCALE):#x}")
    stamp(1)
    A("s_barrier")
    A(f"ds_read_b128 v[16:19], v12 offset:{L_Q}")
    A(f"ds_read_b128 v[20:23], v12 offset:{L_Q+256}")
    stamp(2)
    A("s_waitcnt lgkmcnt(0)")

    def kproc(sl, soff, mid=None):
        for r in range(4):
            d = 32 + 4*r
            a0 = slot(sl, 2*r); a1 = slot(sl, 2*r+1)
            A(f"v_mfma_f32_16x16x32_bf16 v[{d}:{d+3}], v[{a0}:{a0+3}], v[16:19], 0")
            A(f"v_mfma_f32_16x16x32_bf16 v[{d}:{d+3}], v[{a1}:{a1+3}], v[20:23], v[{d}:{d+3}]")
        if mid: mid()
        else: A("s_nop 1")
        for r in range(4):
            d = 32 + 4*r
            s = 48 + r
            if r == 3: pass
            A(f"v_mov_b32_dpp v{s}, v{d} quad_perm:[0,0,0,0] {DPP}")
            A(f"v_add_f32_dpp v{s}, v{d+1}, v{s} quad_perm:[1,1,1,1] {DPP}")
            A(f"v_add_f32_dpp v{s}, v{d+2}, v{s} quad_perm:[2,2,2,2] {DPP}")
            A(f"v_add_f32_dpp v{s}, v{d+3}, v{s} quad_perm:[3,3,3,3] {DPP}")
            A(f"v_cvt_pk_bf16_f32 v{s}, 0, v{s}")
        A("v_max3_f32 v14, v14, v48, v49")
        A("v_max3_f32 v14, v14, v50, v51")
        A(f"ds_write_b128 v13, v[48:51] offset:{soff}")

    assert NPRE % 2 == 0 and NPRE >= 2
    for t in range(NPRE):
        later = (NPRE - 1 - t) + (1 if t >= 1 else 0)
        A(f"s_waitcnt vmcnt({min(63, 8*later)})")
        if t == 0:
            def mid0():
                issue('k', 0, "s57")
                A("s_add_u32 s57, s57, 0x8000")
            kproc(0, 0, mid0)
        else:
            kproc(t, t*128)
    A(f"v_add_u32 v13, {NPRE*128}, v13")
    NLOOP = (32 - NPRE - 2)//2
    A(f"s_mov_b32 s58, {NLOOP}")
    def kstep(sl, soff, nxt):
        A("s_waitcnt vmcnt(0)")
        nxt()
        kproc(sl, soff)
    def nk(sl):
        def f():
            issue('k', sl, "s57")
            A("s_add_u32 s57, s57, 0x8000")
        return f
    LB("L_kloop")
    kstep(0, 0, nk(1))
    kstep(1, 128, nk(0))
    A("v_add_u32 v13, 256, v13")
    A("s_sub_u32 s58, s58, 1")
    A("s_cmp_lg_u32 s58, 0")
    A("s_cbranch_scc1 L_kloop")
    kstep(0, 0, nk(1))
    def nv0():
        A("s_mov_b32 s57, s56")
        issue('v', 0, "s57")
        A("s_add_u32 s57, s57, 0x8000")
    kstep(1, 128, nv0)
    stamp(3)
    A(f"v_subrev_u32 v13, {30*128}, v13")
    A("v_mov_b32 v10, v14")
    A("s_nop 1")
    A("v_permlane32_swap_b32 v10, v14")
    A("s_nop 1")
    A("v_max_f32 v14, v10, v14")
    A("v_mov_b32 v10, v14")
    A("s_nop 1")
    A("v_permlane16_swap_b32 v10, v14")
    A("s_nop 1")
    A("v_max_f32 v14, v10, v14")
    A("v_mul_f32 v11, s59, v14")
    A("s_waitcnt lgkmcnt(0)")
    A("ds_read_b128 v[48:51], v13")
    def vstep(sl, snext_off, nxt):
        sc = 48 + 4*sl
        sn = 48 + 4*(1-sl)
        A("s_waitcnt lgkmcnt(0)")
        if snext_off is not None:
            A(f"ds_read_b128 v[{sn}:{sn+3}], v13 offset:{snext_off}")
        for r in range(4):
            A(f"v_fma_f32 v{sc+r}, v{sc+r}, s59, -v11")
        for r in range(4):
            A(f"v_exp_f32 v{sc+r}, v{sc+r}")
        A("s_nop 0")
        A(f"v_add_f32 v56, v{sc}, v{sc+1}")
        A(f"v_add_f32 v57, v{sc+2}, v{sc+3}")
        for r in range(4):
            A(f"v_cvt_pk_bf16_f32 v{sc+r}, v{sc+r}, v{sc+r}")
        A("v_add_f32 v56, v56, v57")
        A("v_add_f32 v15, v15, v56")
        for r in range(4):
            for k in range(4):
                A(f"v_and_b32 v{32+4*r+k}, v{sc+r}, v{4+k}")
        A("s_waitcnt vmcnt(0)")
        if nxt: nxt()
        else: A("s_nop 0")
        for r in range(4):
            a = 32 + 4*r
            b0 = slot(sl, 2*r); b1 = slot(sl, 2*r+1)
            A(f"v_mfma_f32_16x16x32_bf16 v[24:27], v[{a}:{a+3}], v[{b0}:{b0+3}], v[24:27]")
            A(f"v_mfma_f32_16x16x32_bf16 v[28:31], v[{a}:{a+3}], v[{b1}:{b1+3}], v[28:31]")
    def nv(sl):
        def f():
            issue('v', sl, "s57")
            A("s_add_u32 s57, s57, 0x8000")
        return f
    A("s_mov_b32 s58, 15")
    LB("L_vloop")
    vstep(0, 128, nv(1))
    vstep(1, 256, nv(0))
    A("v_add_u32 v13, 256, v13")
    A("s_sub_u32 s58, s58, 1")
    A("s_cmp_lg_u32 s58, 0")
    A("s_cbranch_scc1 L_vloop")
    vstep(0, 128, nv(1))
    vstep(1, None, None)
    A("v_mov_b32 v10, v15")
    A("v_lshrrev_b32 v12, 1, v9")
    A("v_lshlrev_b32 v12, 10, v12")
    A("v_permlane32_swap_b32 v10, v15")
    A("v_lshl_add_u32 v12, v8, 5, v12")
    A("v_add_f32 v15, v10, v15")
    A("v_mov_b32 v10, v15")
    A("v_and_b32 v13, 1, v9")
    A("v_lshl_add_u32 v12, v13, 4, v12")
    A("v_permlane16_swap_b32 v10, v15")
    A("s_lshl_b32 s58, s3, 11")
    A("v_add_u32 v12, s58, v12")
    A("v_add_f32 v15, v10, v15")
    A("s_lshl_b32 s58, s3, 4")
    A("v_and_b32 v13, 8, v1")
    A("v_add_u32 v13, s58, v13")
    A(f"ds_write_b128 v12, v[24:27] offset:{L_O}")
    A(f"ds_write_b128 v12, v[28:31] offset:{L_O+512}")
    A("s_mov_b64 exec, 0x101")
    A(f"ds_write_b64 v13, v[14:15] offset:{L_ML}")
    A("s_mov_b64 exec, -1")
    stamp(4)
    A("s_waitcnt lgkmcnt(0)")
    A("s_barrier")
    A("s_cmp_lg_u32 s3, 0")
    A("s_cbranch_scc1 L_fin")
    A("s_cmp_ge_u32 s31, 28")
    A("s_cbranch_scc1 L_fin")
    srd(52, 24, 25, 256)
    srd(44, 22, 23, 1792)
    A("v_and_b32 v10, 7, v1")
    A("v_lshlrev_b32 v10, 2, v10")
    A("s_lshl_b32 s58, s30, 5")
    A(f"s_mov_b32 s60, {spin_max}")
    LB("L_pollc")
    A("buffer_load_dword v11, v10, s[52:55], s58 offen sc1")
    A("s_waitcnt vmcnt(0)")
    A("v_cmp_gt_u32 vcc, 16, v11")
    A("s_cbranch_vccz L_pollc_done")
    A("s_sleep 2")
    A("s_sub_u32 s60, s60, 1")
    A("s_cmp_lg_u32 s60, 0")
    A("s_cbranch_scc1 L_pollc")
    LB("L_pollc_done")
    A("v_lshrrev_b32 v10, 2, v1")
    A("v_lshlrev_b32 v10, 11, v10")
    A("v_and_b32 v11, 3, v1")
    A("v_lshl_add_u32 v10, v11, 4, v10")
    A("s_lshl_b32 s58, s30, 18")
    A("s_lshl_b32 s61, s31, 6")
    A("s_add_u32 s58, s58, s61")
    A(f"s_add_u32 s58, s58, {OB2}")
    A(f"s_mov_b32 s60, {spin_max}")
    for t in range(8):
        A(f"s_mov_b64 s[{64+2*t}:{65+2*t}], -1")
    A("s_barrier")
    LB("L_poll2")
    for t in range(8):
        A(f"s_mov_b64 exec, s[{64+2*t}:{65+2*t}]")
        A(f"s_cbranch_execz L_p2s{t}")
        A(f"s_add_u32 s61, s58, {t*32768}")
        A(f"buffer_load_dwordx4 v[{64+4*t}:{67+4*t}], v10, s[40:43], s61 offen sc1")
        LB(f"L_p2s{t}")
    A("s_mov_b64 exec, -1")
    A("s_waitcnt vmcnt(0)")
    for t in range(8):
        A(f"v_max3_u32 v{12+(t&1)}, v{64+4*t}, v{65+4*t}, v{66+4*t}")
        A(f"v_max_u32 v{12+(t&1)}, v{12+(t&1)}, v{67+4*t}")
        A(f"v_cmp_eq_u32 s[{64+2*t}:{65+2*t}], -1, v{12+(t&1)}")
    A("s_or_b64 s[62:63], s[64:65], s[66:67]")
    for t in range(2, 8):
        A(f"s_or_b64 s[62:63], s[62:63], s[{64+2*t}:{65+2*t}]")
    A("s_cbranch_scc0 L_poll2_done")
    A(f"s_sleep {sl2}")
    A("s_sub_u32 s60, s60, 1")
    A("s_cmp_lg_u32 s60, 0")
    A("s_cbranch_scc1 L_poll2")
    LB("L_poll2_done")
    stamp(5)
    for step in (16, 8, 4):
        for k in range(step):
            A(f"v_add_f32 v{64+k}, v{64+k}, v{64+step+k}")
    A("s_nop 1")
    A("v_permlane32_swap_b32 v64, v66")
    A("v_permlane32_swap_b32 v65, v67")
    A("s_nop 1")
    A("v_add_f32 v64, v64, v66")
    A("v_add_f32 v65, v65, v67")
    A("v_mov_b32 v66, v64")
    A("v_mov_b32 v67, v65")
    A("s_nop 1")
    A("v_permlane16_swap_b32 v66, v64")
    A("v_permlane16_swap_b32 v67, v65")
    A("s_nop 1")
    A("v_add_f32 v64, v64, v66")
    A("v_add_f32 v65, v65, v67")
    A("s_nop 1")
    A(f"v_add_f32_dpp v64, v64, v64 row_ror:8 {DPP}")
    A(f"v_add_f32_dpp v65, v65, v65 row_ror:8 {DPP}")
    A("s_nop 1")
    A(f"v_add_f32_dpp v64, v64, v64 row_ror:4 {DPP}")
    A(f"v_add_f32_dpp v65, v65, v65 row_ror:4 {DPP}")
    A("v_lshrrev_b32 v12, 5, v1")
    A("v_lshlrev_b32 v12, 2, v12")
    A("v_lshl_add_u32 v12, v11, 3, v12")
    A("v_cvt_pk_bf16_f32 v64, v64, v65")
    A("s_mul_i32 s58, s30, 896")
    A("s_lshl_b32 s61, s31, 5")
    A("s_add_u32 s58, s58, s61")
    A("s_mov_b32 s60, 15")
    A("s_mov_b32 s61, 15")
    A("s_mov_b64 exec, s[60:61]")
    A("buffer_store_dword v64, v12, s[44:47], s58 offen")
    A("s_mov_b64 exec, -1")
    stamp(6)
    LB("L_fin")
    dump_stamps()
    A("s_endpgm")

    LB("L_service")
    A("v_lshlrev_b32 v10, 5, v1")
    A("s_lshl_b32 s56, s28, 11")
    A(f"buffer_load_dwordx4 v[64:67], v10, s[40:43], s56 offen offset:{QBOX} sc1")
    A(f"buffer_load_dwordx4 v[68:71], v10, s[40:43], s56 offen offset:{QBOX+16} sc1")
    A("v_and_b32 v11, 3, v1")
    A("v_lshlrev_b32 v12, 5, v11")
    A("v_lshl_add_u32 v12, v9, 3, v12")
    A("s_and_b32 s59, s64, 15")
    A("s_lshl_b32 s59, s59, 7")
    A("s_add_u32 s59, s59, s56")
    A(f"buffer_load_dwordx2 v[72:73], v12, s[40:43], s59 offen offset:{QBOX} sc1")
    A("s_mul_i32 s60, s30, 896")
    A("s_add_u32 s44, s4, s60")
    A("s_addc_u32 s45, s5, 0")
    A("s_mov_b32 s46, 896")
    A("s_mov_b32 s47, 0x00020000")
    A("s_mov_b32 s51, 0x00020000")
    srd(52, 24, 25, 256)
    for k in range(4):
        A(f"v_mov_b32 v{48+k}, -1")
    A("v_lshlrev_b32 v14, 4, v1")
    A("s_lshl_b32 s57, s2, 12")
    A(f"s_add_u32 s57, s57, {OB1}")
    A("s_lshl_b32 s58, s2, 11")
    A(f"s_add_u32 s58, s58, {OB2}")
    for k in range(3):
        A(f"buffer_store_dwordx4 v[48:51], v14, s[40:43], s57 offen offset:{1024*k} sc1")
    for k in range(2):
        A(f"buffer_store_dwordx4 v[48:51], v14, s[40:43], s58 offen offset:{1024*k} sc1")
    A("s_mov_b32 s60, 0x05040100")
    A("s_mov_b32 s61, 0x07060302")
    A("s_mov_b32 s62, 0x000f000f")
    A("s_mov_b32 s63, 0x000f000f")
    A("s_waitcnt vmcnt(0)")
    A("v_add_u32 v72, 0x10000, v72")
    A("v_add_u32 v73, 0x10000, v73")
    A("v_and_b32 v72, 0xffff0000, v72")
    A("v_and_b32 v73, 0xffff0000, v73")
    stamp(1)
    A("s_barrier")
    for w in range(4):
        A(f"ds_read_b64 v[{16+2*w}:{17+2*w}], v12 offset:{L_QP+128*w}")
    A("s_waitcnt lgkmcnt(0)")
    A("v_add_f32 v16, v16, v18")
    A("v_add_f32 v17, v17, v19")
    A("v_add_f32 v20, v20, v22")
    A("v_add_f32 v21, v21, v23")
    A("v_add_f32 v16, v16, v20")
    A("v_add_f32 v17, v17, v21")
    A("v_cvt_pk_bf16_f32 v16, v16, 0")
    A("v_cvt_pk_bf16_f32 v17, v17, 0")
    A("v_or_b32 v72, v72, v16")
    A("v_or_b32 v73, v73, v17")
    A("s_mov_b64 exec, s[62:63]")
    A(f"buffer_store_dwordx2 v[72:73], v12, s[40:43], s59 offen offset:{QBOX} sc1")
    A("s_mov_b64 exec, -1")
    stamp(2)
    A("v_mov_b32 v12, 0")
    A("v_mov_b32 v13, 1")
    A("s_lshl_b32 s65, s28, 2")
    A("s_mov_b32 s59, 0")
    A("s_mov_b32 s66, 0x10000")
    LB("L_pollq")
    A(f"buffer_load_dwordx4 v[76:79], v10, s[40:43], s56 offen offset:{QBOX} sc1")
    A(f"buffer_load_dwordx4 v[80:83], v10, s[40:43], s56 offen offset:{QBOX+16} sc1")
    A("s_waitcnt vmcnt(0)")
    A("s_cmp_lg_u32 s59, 0")
    A("s_cbranch_scc1 L_pollq_arrived")
    A("s_mov_b64 exec, 1")
    A("buffer_atomic_add v13, v12, s[52:55], s65 offen")
    A("s_mov_b64 exec, -1")
    LB("L_pollq_arrived")
    for k in range(8):
        A(f"v_xor_b32 v{84+k}, v{64+k}, v{76+k}")
    A("v_min3_u32 v84, v84, v85, v86")
    A("v_min3_u32 v87, v87, v88, v89")
    A("v_min3_u32 v84, v84, v90, v91")
    A("v_min_u32 v84, v84, v87")
    A("v_cmp_gt_u32 vcc, s66, v84")
    A("s_cbranch_vccz L_pollq_done")
    A(f"s_sleep {slq}")
    A("s_add_u32 s59, s59, 1")
    A("s_and_b32 s67, s59, 7")
    A("s_cmp_lg_u32 s67, 0")
    A("s_cbranch_scc1 L_pollq")
    A("buffer_load_dword v13, v12, s[52:55], s65 offen sc1")
    A("s_waitcnt vmcnt(0)")
    A("v_cmp_gt_u32 vcc, 16, v13")
    A("s_cbranch_vccnz L_pollq_notyet")
    A("s_mov_b32 s66, 0")
    LB("L_pollq_notyet")
    A(f"s_cmp_lt_u32 s59, {spin_max}")
    A("s_cbranch_scc1 L_pollq")
    LB("L_pollq_done")
    stamp(3)
    for k in range(4):
        A(f"v_perm_b32 v{48+k}, v{77+2*k}, v{76+2*k}, s60")
    A(f"ds_write_b128 v14, v[48:51] offset:{L_Q}")
    A("s_waitcnt lgkmcnt(0)")
    A("s_barrier")
    stamp(4)
    A("s_and_b32 s66, s31, 7")
    A("s_mul_i32 s66, s66, 14")
    A("s_lshr_b32 s67, s31, 3")
    A("s_add_u32 s66, s66, s67")
    A("s_cmp_lt_u32 s31, 112")
    A(f"s_cselect_b32 s59, {448*1792*2}, 0")
    A("s_mov_b32 s48, s16"); A("s_mov_b32 s49, s17"); A("s_mov_b32 s50, s59")
    srd(32, 18, 19, "s59")
    srd(36, 20, 21, 896)
    A("v_lshrrev_b32 v10, 1, v1")
    A("v_and_b32 v11, 1, v1")
    A("v_mul_u32_u24 v12, 28, v10")
    A(f"v_mul_u32_u24 v13, {14*3584}, v10")
    A("v_lshl_add_u32 v13, v11, 4, v13")
    A(f"buffer_load_dwordx4 v[{XR}:{XR+3}], v12, s[44:47], 0 offen")
    A(f"buffer_load_dwordx3 v[{XR+4}:{XR+6}], v12, s[44:47], 0 offen offset:16")
    A("buffer_load_dwordx4 v[40:43], v14, s[44:47], 0 offen")
    A("buffer_load_dwordx4 v[44:47], v14, s[36:39], 0 offen")
    A("s_lshl_b32 s56, s66, 5")
    for t in range(14):
        A(f"buffer_load_dwordx4 v[{64+4*t}:{67+4*t}], v13, s[48:51], s56 offen nt")
        A("s_add_u32 s56, s56, 3584")
    A("v_mul_u32_u24 v12, 3584, v9")
    A("v_lshl_add_u32 v12, v8, 4, v12")
    A(f"s_mul_i32 s56, s66, {16*896}")
    for t in range(4):
        for cb in range(4):
            b = 128 + 16*t + 4*cb
            A(f"buffer_load_dwordx4 v[{b}:{b+3}], v12, s[32:35], s56 offen offset:{t*896+cb*256} nt")
    for k in range(8):
        A(f"v_mov_b32 v{ACC+k}, 0")
    matvec_pairs(7, 64, XR, 16)
    A("s_nop 1")
    for k in range(2):
        A(f"v_add_f32_dpp v{ACC+k}, v{ACC+k}, v{ACC+k} row_ror:2 {DPP}")
    A(f"s_mov_b32 s59, {f2u(-math.log2(math.e)):#x}")
    for k in range(2):
        A(f"v_cvt_pk_bf16_f32 v{ACC+k}, 0, v{ACC+k}")
    for k in range(2):
        A(f"v_mul_f32 v{ACC+2+k}, s59, v{ACC+k}")
    for k in range(2):
        A(f"v_exp_f32 v{ACC+2+k}, v{ACC+2+k}")
    A("s_nop 0")
    for k in range(2):
        A(f"v_add_f32 v{ACC+2+k}, 1.0, v{ACC+2+k}")
    for k in range(2):
        A(f"v_rcp_f32 v{ACC+2+k}, v{ACC+2+k}")
    A("s_nop 0")
    for k in range(2):
        A(f"v_mul_f32 v{ACC+k}, v{ACC+k}, v{ACC+2+k}")
    A("v_lshlrev_b32 v12, 5, v11")
    A("v_lshl_add_u32 v12, v9, 3, v12")
    A("s_mov_b32 s62, 0x00030003")
    A("s_mov_b32 s63, 0x00030003")
    A("s_mov_b64 exec, s[62:63]")
    A(f"ds_write_b64 v12, v[{ACC}:{ACC+1}] offset:{L_H}")
    A("s_mov_b64 exec, -1")
    A("v_lshlrev_b32 v12, 4, v9")
    A("s_waitcnt lgkmcnt(0)")
    A(f"ds_read_b128 v[{ACC}:{ACC+3}], v12 offset:{L_H}")
    for k in range(4):
        A(f"v_lshlrev_b32 v52, 16, v{40+k}")
        A(f"v_lshlrev_b32 v53, 16, v{44+k}")
        A(f"v_and_b32 v54, 0xffff0000, v{40+k}")
        A(f"v_and_b32 v55, 0xffff0000, v{44+k}")
        A("v_mul_f32 v52, v52, v53")
        A("v_mul_f32 v54, v54, v55")
        A("v_cvt_pk_bf16_f32 v52, 0, v52")
        A("v_cvt_pk_bf16_f32 v54, 0, v54")
        if k == 0:
            A("v_add_f32 v56, v52, v54")
        else:
            A("v_add_f32 v56, v56, v52")
            A("v_add_f32 v56, v56, v54")
    for rr in (8, 4, 2, 1):
        A("s_nop 1")
        A(f"v_add_f32_dpp v56, v56, v56 row_ror:{rr} {DPP}")
    A("v_mov_b32 v57, v56")
    A("s_nop 1")
    A("v_permlane32_swap_b32 v57, v56")
    A("s_nop 1")
    A("v_add_f32 v56, v56, v57")
    A("v_mov_b32 v57, v56")
    A("s_nop 1")
    A("v_permlane16_swap_b32 v57, v56")
    A("s_nop 1")
    A("v_add_f32 v56, v56, v57")
    A("v_cvt_pk_bf16_f32 v56, 0, v56")
    A("v_mul_f32 v56, s59, v56")
    A("v_exp_f32 v56, v56")
    A("s_nop 0")
    A("v_add_f32 v56, 1.0, v56")
    A("v_rcp_f32 v56, v56")
    A("s_nop 0")
    A("v_cvt_pk_bf16_f32 v2, 0, v56")
    A("v_sub_f32 v3, 1.0, v2")
    A("v_cvt_pk_bf16_f32 v3, 0, v3")
    A("s_waitcnt lgkmcnt(0) vmcnt(0)")
    for t in range(4):
        A(f"v_cvt_pk_bf16_f32 v{ACC+t}, v{ACC+t}, v{ACC+t}")
    for t in range(4):
        for k in range(4):
            A(f"v_and_b32 v{24+4*t+k}, v{ACC+t}, v{4+k}")
    A("s_nop 1")
    for t in range(4):
        for cb in range(4):
            b = 128 + 16*t + 4*cb
            d = 40 + 4*cb
            c = "0" if t == 0 else f"v[{d}:{d+3}]"
            A(f"v_mfma_f32_16x16x32_bf16 v[{d}:{d+3}], v[{24+4*t}:{27+4*t}], v[{b}:{b+3}], {c}")
    srd(32, 12, 13, 4096*448*2)
    A("v_mul_u32_u24 v12, 7168, v9")
    A("v_lshl_add_u32 v12, v8, 4, v12")
    A(f"s_mul_i32 s56, s31, {32*896}")
    A("s_nop 4")
    for t in range(8):
        if t == 4:
            A(f"s_add_u32 s56, s56, {4*896}")
        for cb in range(4):
            b = 128 + 16*t + 4*cb
            A(f"buffer_load_dwordx4 v[{b}:{b+3}], v12, s[32:35], s56 offen offset:{(t&3)*896+cb*256} nt")
    for k in range(16):
        A(f"v_mul_f32 v{40+k}, v3, v{40+k}")
    A(f"s_mov_b32 s59, {f2u(C_SCALE):#x}")
    A("v_lshlrev_b32 v10, 5, v1")
    A("v_lshrrev_b32 v11, 5, v1")
    A("v_lshlrev_b32 v11, 3, v11")
    A("v_lshlrev_b32 v12, 12, v8")
    A("v_lshl_add_u32 v13, v9, 5, v12")
    A("s_lshl_b32 s60, s28, 16")
    A(f"s_add_u32 s60, s60, {OB1}")
    A("s_lshr_b32 s61, s29, 3")
    A("s_lshl_b32 s61, s61, 3")
    A("s_add_u32 s61, s61, s60")
    A("s_lshl_b32 s62, s29, 7")
    A("s_add_u32 s60, s60, s62")
    A("v_lshlrev_b32 v14, 5, v8")
    A("v_lshl_add_u32 v14, v9, 4, v14")
    A("s_waitcnt vmcnt(0)")
    A("s_barrier")
    stamp(5)
    if prof: A("s_waitcnt lgkmcnt(0)")
    for w in range(4):
        A(f"ds_read_b64 v[{56+2*w}:{57+2*w}], v11 offset:{L_ML+16*w}")
    for w in range(4):
        A(f"ds_read_b128 v[{64+8*w}:{67+8*w}], v10 offset:{L_O+2048*w}")
        A(f"ds_read_b128 v[{68+8*w}:{71+8*w}], v10 offset:{L_O+2048*w+16}")
    A("s_waitcnt lgkmcnt(8)")
    A("v_max3_f32 v16, v56, v58, v60")
    A("v_max_f32 v16, v16, v62")
    for w in range(4):
        A(f"v_sub_f32 v{56+2*w}, v{56+2*w}, v16")
    for w in range(4):
        A(f"v_mul_f32 v{56+2*w}, s59, v{56+2*w}")
    for w in range(4):
        A(f"v_exp_f32 v{56+2*w}, v{56+2*w}")
    A("s_nop 0")
    A("v_mul_f32 v17, v56, v57")
    for w in range(1, 4):
        A(f"v_fmac_f32 v17, v{56+2*w}, v{57+2*w}")
    A("s_waitcnt lgkmcnt(0)")
    for k in range(8):
        A(f"v_mul_f32 v{64+k}, v56, v{64+k}")
    for w in range(1, 4):
        for k in range(8):
            A(f"v_fmac_f32 v{64+k}, v{56+2*w}, v{64+8*w+k}")
    A("buffer_store_dwordx4 v[64:67], v10, s[40:43], s57 offen sc1")
    A("buffer_store_dwordx4 v[68:71], v10, s[40:43], s57 offen offset:16 sc1")
    A("s_mov_b32 s62, 1")
    A("s_mov_b32 s63, 1")
    A("s_mov_b64 exec, s[62:63]")
    A("buffer_store_dwordx2 v[16:17], v11, s[40:43], s57 offen offset:2048 sc1")
    A("s_mov_b64 exec, -1")
    A(f"s_mov_b32 s56, {spin_max}")
    LB("L_poll1")
    A("buffer_load_dwordx4 v[72:75], v13, s[40:43], s60 offen sc1")
    A("buffer_load_dwordx4 v[76:79], v13, s[40:43], s60 offen offset:16 sc1")
    A("buffer_load_dwordx2 v[80:81], v12, s[40:43], s61 offen offset:2048 sc1")
    A("s_waitcnt vmcnt(0)")
    A("v_max3_u32 v18, v72, v73, v74")
    A("v_max3_u32 v19, v75, v76, v77")
    A("v_max3_u32 v18, v18, v78, v79")
    A("v_max3_u32 v19, v19, v80, v81")
    A("v_max_u32 v18, v18, v19")
    A("v_cmp_eq_u32 vcc, -1, v18")
    A("s_cbranch_vccz L_poll1_done")
    A("s_mov_b64 exec, vcc")
    A(f"s_sleep {sl1}")
    A("s_sub_u32 s56, s56, 1")
    A("s_cmp_lg_u32 s56, 0")
    A("s_cbranch_scc1 L_poll1")
    LB("L_poll1_done")
    A("s_mov_b64 exec, -1")
    A("s_barrier")
    stamp(6)
    A(f"v_max_f32_dpp v18, v80, v80 row_ror:8 {DPP}")
    for rr in (4, 2, 1):
        A("s_nop 1")
        A(f"v_max_f32_dpp v18, v18, v18 row_ror:{rr} {DPP}")
    A("v_sub_f32 v18, v80, v18")
    A("v_mul_f32 v18, s59, v18")
    A("v_exp_f32 v18, v18")
    A("s_nop 0")
    A("v_mul_f32 v80, v18, v81")
    for k in range(8):
        A(f"v_mul_f32 v{72+k}, v18, v{72+k}")
    for rr in (8, 4, 2, 1):
        for k in range(9):
            A(f"v_add_f32_dpp v{72+k}, v{72+k}, v{72+k} row_ror:{rr} {DPP}")
    A("v_rcp_f32 v80, v80")
    A("s_nop 0")
    for k in range(8):
        A(f"v_mul_f32 v{72+k}, v80, v{72+k}")
    for k in range(8):
        A(f"v_cvt_pk_bf16_f32 v{72+k}, v{72+k}, v{72+k}")
    for t in range(8):
        for k in range(4):
            A(f"v_and_b32 v{88+4*t+k}, v{72+t}, v{4+k}")
        if t >= 1:
            tt = t - 1
            for cb in range(4):
                b = 128 + 16*tt + 4*cb
                d = 16 + 4*cb
                c = "0" if tt == 0 else f"v[{d}:{d+3}]"
                A(f"v_mfma_f32_16x16x32_bf16 v[{d}:{d+3}], v[{88+4*tt}:{91+4*tt}], v[{b}:{b+3}], {c}")
    tt = 7
    for cb in range(4):
        b = 128 + 16*tt + 4*cb
        d = 16 + 4*cb
        A(f"v_mfma_f32_16x16x32_bf16 v[{d}:{d+3}], v[{88+4*tt}:{91+4*tt}], v[{b}:{b+3}], v[{d}:{d+3}]")
    A("s_mov_b32 s62, -1")
    A("s_mov_b32 s63, 0")
    A("s_nop 3")
    for cb in range(4):
        for k in range(4):
            A(f"v_fmac_f32 v{40+4*cb+k}, v2, v{16+4*cb+k}")
        if cb == 0:
            A("s_mov_b64 exec, s[62:63]")
        if cb == 3:
            A("s_mov_b32 s62, 0x00ff00ff")
            A("s_mov_b64 exec, s[62:63]")
        A(f"buffer_store_dwordx4 v[{40+4*cb}:{43+4*cb}], v14, s[40:43], s58 offen offset:{512*cb} sc1")
    A("s_mov_b64 exec, -1")
    stamp(7)
    dump_stamps()
    LB("L_end")
    A("s_endpgm")
    L.append('.section .rodata,"a"')
    L.append(".p2align 6")
    L.append(f".amdhsa_kernel {NAME}_kernel")
    L.append("  .amdhsa_next_free_vgpr 256")
    L.append("  .amdhsa_next_free_sgpr 96")
    L.append("  .amdhsa_accum_offset 256")
    L.append("  .amdhsa_group_segment_fixed_size 0")
    L.append("  .amdhsa_kernarg_size 96")
    L.append("  .amdhsa_user_sgpr_count 2")
    L.append("  .amdhsa_user_sgpr_kernarg_segment_ptr 1")
    L.append("  .amdhsa_system_sgpr_workgroup_id_x 1")
    L.append(".end_amdhsa_kernel")
    return "\n".join(L) + "\n"


if __name__ == "__main__":
    out = sys.argv[1]
    kw = {}
    for a in sys.argv[2:]:
        k, v = a.split("=")
        kw[k] = int(v)
    open(out, "w").write(gen(**kw))
```

```python
import sys, math

NAME = "gated_mix__gqa_block_cached__dense_activation_silu__decode"
HEADER = open("cdna_kernels/" + NAME + ".s.ref").read().split("; Override launch")[0]

QBOX = 0x0
OB1 = 0x40000
OB2 = 0x200000
STAMP = 0x20000000
L_Q = 0
L_S = 1024
L_O = L_S + 16384
L_ML = L_O + 8192
L_H = L_ML + 64
L_QP = L_H + 64
LDS_BYTES = L_QP + 512

C_SCALE = (1.0 / 16.0) * math.log2(math.e)
import struct
def f2u(x): return struct.unpack("<I", struct.pack("<f", x))[0]


def gen(prof=0, NPRE=6, PFI=1, early=1, spin_max=200000, sl1=4, sl2=2, slq=1):
    L = []
    A = lambda s: L.append("  " + s)
    LB = lambda s: L.append(s + ":")
    nstamp = [0]

    def stamp(k):
        if prof:
            A(f"s_memrealtime s[{80+2*k}:{81+2*k}]")

    def dump_dbg(pairs):
        A("s_waitcnt lgkmcnt(0)")
        srd(52, 24, 25, 256)
        A("v_mov_b32 v56, 0")
        for (k, sp) in pairs:
            A(f"s_not_b32 s56, s{80+2*k}")
            A(f"v_writelane_b32 v56, s56, {2*sp}")
            A(f"v_writelane_b32 v56, s{80+2*k}, {2*sp+1}")
        A("v_lshlrev_b32 v57, 2, v1")
        A("s_mov_b64 exec, 0xffff")
        A("buffer_atomic_umax v56, v57, s[52:55], 0 offen")
        A("s_mov_b64 exec, -1")

    def dump_stamps(kind=None):
        if not prof:
            return
        if prof == 2:
            dump_dbg({"stream": [(0,0),(2,1),(3,2),(4,3)], "service": [(2,5),(3,6),(6,7)]}[kind])
            return
        A("s_waitcnt lgkmcnt(0)")
        A("s_lshl_b32 s56, s2, 3")
        A("s_add_u32 s56, s56, s3")
        A("s_lshl_b32 s56, s56, 6")
        A(f"s_add_u32 s56, s56, {STAMP}")
        A("s_mov_b64 exec, 1")
        A("v_mov_b32 v60, 0")
        for q in range(4):
            for j in range(4):
                A(f"v_mov_b32 v{56+j}, s{80+4*q+j}")
            A(f"buffer_store_dwordx4 v[56:59], v60, s[40:43], s56 offen offset:{16*q}")
            A("s_nop 1")
        A("s_mov_b64 exec, -1")

    def srd(d, lo, hi, n):
        A(f"s_mov_b32 s{d}, s{lo}")
        A(f"s_mov_b32 s{d+1}, s{hi}")
        A(f"s_mov_b32 s{d+2}, {n}")
        A(f"s_mov_b32 s{d+3}, 0x00020000")

    DPP = "row_mask:0xf bank_mask:0xf"
    ACC = 16
    XR = 32
    def matvec_pairs(npairs, wbase, xbase, tail_ops):
        for u in range(npairs):
            A(f"s_waitcnt vmcnt({2*npairs - (2*u+2) + tail_ops})")
            w0 = wbase + 8*u; w1 = w0 + 4
            for k in range(4):
                A(f"v_perm_b32 v{52+k}, v{w1+k}, v{w0+k}, s60")
                A(f"v_perm_b32 v{56+k}, v{w1+k}, v{w0+k}, s61")
            for k in range(4):
                A(f"v_dot2c_f32_bf16 v{ACC+2*k}, v{52+k}, v{xbase+u}")
                A(f"v_dot2c_f32_bf16 v{ACC+2*k+1}, v{56+k}, v{xbase+u}")
        A("s_nop 3")
        for k in range(4):
            A(f"v_permlane32_swap_b32 v{ACC+k}, v{ACC+4+k}")
        A("s_nop 1")
        for k in range(4):
            A(f"v_add_f32 v{ACC+k}, v{ACC+k}, v{ACC+4+k}")
        A("s_nop 1")
        for k in range(2):
            A(f"v_permlane16_swap_b32 v{ACC+k}, v{ACC+2+k}")
        A("s_nop 1")
        for k in range(2):
            A(f"v_add_f32 v{ACC+k}, v{ACC+k}, v{ACC+2+k}")
        for rr in (8, 4):
            A("s_nop 1")
            for k in range(2):
                A(f"v_add_f32_dpp v{ACC+k}, v{ACC+k}, v{ACC+k} row_ror:{rr} {DPP}")
    L.append(HEADER.rstrip("\n"))
    L.append(f"; @launch grid=(256,1,1) block=(320,1,1) lds={LDS_BYTES}")
    L.append('.amdgcn_target "amdgcn-amd-amdhsa--gfx950"')
    L.append(".text")
    L.append(f".globl {NAME}_kernel")
    L.append(".p2align 8")
    L.append(f".type {NAME}_kernel,@function")
    LB(f"{NAME}_kernel")
    A("s_cmp_ge_u32 s2, 256")
    A("s_cbranch_scc1 L_end")
    A("s_load_dwordx16 s[4:19], s[0:1], 0")
    A("s_load_dwordx8 s[20:27], s[0:1], 64")
    if prof:
        for k in range(8):
            A(f"s_mov_b64 s[{80+2*k}:{81+2*k}], 0")
    stamp(0)
    A("v_lshrrev_b32 v2, 6, v0")
    A("v_and_b32 v1, 63, v0")
    A("v_readfirstlane_b32 s3, v2")
    A("s_lshr_b32 s28, s2, 4")
    A("s_and_b32 s29, s2, 15")
    A("s_lshr_b32 s30, s2, 7")
    A("s_and_b32 s31, s2, 127")
    A("s_and_b32 s64, s29, 7")
    A("s_lshl_b32 s64, s64, 1")
    A("s_lshr_b32 s65, s29, 3")
    A("s_add_u32 s64, s64, s65")
    A("s_andn2_b32 s65, s31, 15")
    A("s_add_u32 s64, s64, s65")
    A("v_and_b32 v8, 15, v1")
    A("v_lshrrev_b32 v9, 4, v1")
    A("v_and_b32 v10, 1, v1")
    A("v_lshlrev_b32 v10, 4, v10")
    A("v_mov_b32 v11, 0xffff")
    A("v_lshlrev_b32 v11, v10, v11")
    A("v_bfe_u32 v10, v1, 1, 2")
    for k in range(4):
        A(f"v_cmp_eq_u32 vcc, {k}, v10")
        A("s_nop 1")
        A(f"v_cndmask_b32 v{4+k}, 0, v11, vcc")
    A("s_waitcnt lgkmcnt(0)")
    srd(40, 26, 27, "0x40000000")
    A("s_cmp_eq_u32 s3, 4")
    A("s_cbranch_scc1 L_service")

    srd(32, 6, 7, "0x10000000")
    srd(36, 8, 9, "0x10000000")
    A("s_lshl_b32 s56, s2, 20")
    A("s_lshl_b32 s57, s3, 13")
    A("s_add_u32 s56, s56, s57")
    A("v_lshrrev_b32 v2, 2, v8")
    A("v_lshlrev_b32 v2, 11, v2")
    A("v_lshl_add_u32 v2, v9, 6, v2")
    A("v_and_b32 v10, 3, v1")
    A("v_lshl_add_u32 v2, v10, 4, v2")
    A("v_lshlrev_b32 v3, 11, v9")
    A("v_lshl_add_u32 v3, v8, 4, v3")
    SLOT0 = 64
    def slot(sl, i): return SLOT0 + 32*sl + 4*i
    def issue(kind, sl, sreg):
        srdn = "s[32:35]" if kind == 'k' else "s[36:39]"
        va = "v2" if kind == 'k' else "v3"
        for i in range(8):
            b = slot(sl, i)
            A(f"buffer_load_dwordx4 v[{b}:{b+3}], {va}, {srdn}, {sreg} offen offset:{(i>>1)*512+(i&1)*256} nt")
    A("s_mul_i32 s57, s30, 896")
    A("s_add_u32 s44, s4, s57")
    A("s_addc_u32 s45, s5, 0")
    A("s_mov_b32 s46, 896")
    A("s_mov_b32 s47, 0x00020000")
    srd(48, 10, 11, 448*4096*2)
    A("v_lshrrev_b32 v12, 2, v1")
    A("s_mul_i32 s57, s3, 14")
    A("v_cmp_gt_u32 vcc, 14, v12")
    A("v_add_u32 v12, s57, v12")
    A("v_mov_b32 v13, 0x4000")
    A("v_cndmask_b32 v12, v13, v12, vcc")
    A("v_lshlrev_b32 v13, 16, v12")
    A("v_lshl_add_u32 v13, v10, 4, v13")
    A("v_lshlrev_b32 v12, 4, v12")
    A(f"buffer_load_dwordx4 v[{XR}:{XR+3}], v12, s[44:47], 0 offen")
    A("s_lshl_b32 s57, s64, 6")
    WQB = slot(NPRE-1, 0)
    for t in range(8):
        A(f"buffer_load_dwordx4 v[{WQB+4*t}:{WQB+4*t+3}], v13, s[48:51], s57 offen nt")
        A("s_add_u32 s57, s57, 0x2000")
    A("s_mov_b32 s57, s56")
    for t in range(early):
        issue('k', t, "s57")
        A("s_add_u32 s57, s57, 0x8000")
    A("s_mov_b32 s60, 0x05040100")
    A("s_mov_b32 s61, 0x07060302")
    for k in range(8):
        A(f"v_mov_b32 v{ACC+k}, 0")
    A("v_lshlrev_b32 v12, 5, v10")
    A("v_lshl_add_u32 v12, v9, 3, v12")
    A("s_lshl_b32 s58, s3, 7")
    A("v_add_u32 v12, s58, v12")
    matvec_pairs(4, WQB, XR, 8*early)
    A("s_mov_b32 s62, 0x000f000f")
    A("s_mov_b32 s63, 0x000f000f")
    A("s_mov_b64 exec, s[62:63]")
    A(f"ds_write_b64 v12, v[{ACC}:{ACC+1}] offset:{L_QP}")
    A("s_mov_b64 exec, -1")
    A("s_waitcnt lgkmcnt(0)")
    A("s_barrier")
    stamp(7)
    for t in range(early, NPRE):
        if t >= PFI:
            A(f"s_waitcnt vmcnt({8*(PFI-1)})")
        issue('k', t, "s57")
        A("s_add_u32 s57, s57, 0x8000")
        if t == early:
            A("v_bfe_u32 v12, v1, 3, 1")
            A("v_lshlrev_b32 v13, 2, v12")
            A("v_add_u32 v13, v13, v9")
            A("v_lshlrev_b32 v12, 9, v12")
            A("v_lshl_add_u32 v12, v9, 6, v12")
            A("v_lshl_add_u32 v12, v10, 4, v12")
            A("s_lshl_b32 s58, s3, 12")
            A(f"s_add_u32 s58, s58, {L_S}")
            A("v_lshlrev_b32 v13, 4, v13")
            A("v_add_u32 v13, s58, v13")
            A("v_mov_b32 v14, 0xff800000")
            A("v_mov_b32 v15, 0")
            for r in range(8):
                A(f"v_mov_b32 v{24+r}, 0")
            A(f"s_mov_b32 s59, {f2u(C_SCALE):#x}")
    stamp(1)
    A("s_barrier")
    A(f"ds_read_b128 v[16:19], v12 offset:{L_Q}")
    A(f"ds_read_b128 v[20:23], v12 offset:{L_Q+256}")
    stamp(2)
    A("s_waitcnt lgkmcnt(0)")

    def kproc(sl, soff, mid=None):
        for r in range(4):
            d = 32 + 4*r
            a0 = slot(sl, 2*r); a1 = slot(sl, 2*r+1)
            A(f"v_mfma_f32_16x16x32_bf16 v[{d}:{d+3}], v[{a0}:{a0+3}], v[16:19], 0")
            A(f"v_mfma_f32_16x16x32_bf16 v[{d}:{d+3}], v[{a1}:{a1+3}], v[20:23], v[{d}:{d+3}]")
        if mid: mid()
        else: A("s_nop 1")
        for r in range(4):
            d = 32 + 4*r
            s = 48 + r
            if r == 3: pass
            A(f"v_mov_b32_dpp v{s}, v{d} quad_perm:[0,0,0,0] {DPP}")
            A(f"v_add_f32_dpp v{s}, v{d+1}, v{s} quad_perm:[1,1,1,1] {DPP}")
            A(f"v_add_f32_dpp v{s}, v{d+2}, v{s} quad_perm:[2,2,2,2] {DPP}")
            A(f"v_add_f32_dpp v{s}, v{d+3}, v{s} quad_perm:[3,3,3,3] {DPP}")
            A(f"v_cvt_pk_bf16_f32 v{s}, 0, v{s}")
        A("v_max3_f32 v14, v14, v48, v49")
        A("v_max3_f32 v14, v14, v50, v51")
        A(f"ds_write_b128 v13, v[48:51] offset:{soff}")

    assert NPRE % 2 == 0 and NPRE >= 2
    for t in range(NPRE):
        later = (NPRE - 1 - t) + (1 if t >= 1 else 0)
        A(f"s_waitcnt vmcnt({min(63, 8*later)})")
        if t == 0:
            def mid0():
                issue('k', 0, "s57")
                A("s_add_u32 s57, s57, 0x8000")
            kproc(0, 0, mid0)
        else:
            kproc(t, t*128)
    A(f"v_add_u32 v13, {NPRE*128}, v13")
    NLOOP = (32 - NPRE - 2)//2
    A(f"s_mov_b32 s58, {NLOOP}")
    def kstep(sl, soff, nxt):
        A("s_waitcnt vmcnt(0)")
        nxt()
        kproc(sl, soff)
    def nk(sl):
        def f():
            issue('k', sl, "s57")
            A("s_add_u32 s57, s57, 0x8000")
        return f
    LB("L_kloop")
    kstep(0, 0, nk(1))
    kstep(1, 128, nk(0))
    A("v_add_u32 v13, 256, v13")
    A("s_sub_u32 s58, s58, 1")
    A("s_cmp_lg_u32 s58, 0")
    A("s_cbranch_scc1 L_kloop")
    kstep(0, 0, nk(1))
    def nv0():
        A("s_mov_b32 s57, s56")
        issue('v', 0, "s57")
        A("s_add_u32 s57, s57, 0x8000")
    kstep(1, 128, nv0)
    stamp(3)
    A(f"v_subrev_u32 v13, {30*128}, v13")
    A("v_mov_b32 v10, v14")
    A("s_nop 1")
    A("v_permlane32_swap_b32 v10, v14")
    A("s_nop 1")
    A("v_max_f32 v14, v10, v14")
    A("v_mov_b32 v10, v14")
    A("s_nop 1")
    A("v_permlane16_swap_b32 v10, v14")
    A("s_nop 1")
    A("v_max_f32 v14, v10, v14")
    A("v_mul_f32 v11, s59, v14")
    A("s_waitcnt lgkmcnt(0)")
    A("ds_read_b128 v[48:51], v13")
    def vstep(sl, snext_off, nxt):
        sc = 48 + 4*sl
        sn = 48 + 4*(1-sl)
        A("s_waitcnt lgkmcnt(0)")
        if snext_off is not None:
            A(f"ds_read_b128 v[{sn}:{sn+3}], v13 offset:{snext_off}")
        for r in range(4):
            A(f"v_fma_f32 v{sc+r}, v{sc+r}, s59, -v11")
        for r in range(4):
            A(f"v_exp_f32 v{sc+r}, v{sc+r}")
        A("s_nop 0")
        A(f"v_add_f32 v56, v{sc}, v{sc+1}")
        A(f"v_add_f32 v57, v{sc+2}, v{sc+3}")
        for r in range(4):
            A(f"v_cvt_pk_bf16_f32 v{sc+r}, v{sc+r}, v{sc+r}")
        A("v_add_f32 v56, v56, v57")
        A("v_add_f32 v15, v15, v56")
        for r in range(4):
            for k in range(4):
                A(f"v_and_b32 v{32+4*r+k}, v{sc+r}, v{4+k}")
        A("s_waitcnt vmcnt(0)")
        if nxt: nxt()
        else: A("s_nop 0")
        for r in range(4):
            a = 32 + 4*r
            b0 = slot(sl, 2*r); b1 = slot(sl, 2*r+1)
            A(f"v_mfma_f32_16x16x32_bf16 v[24:27], v[{a}:{a+3}], v[{b0}:{b0+3}], v[24:27]")
            A(f"v_mfma_f32_16x16x32_bf16 v[28:31], v[{a}:{a+3}], v[{b1}:{b1+3}], v[28:31]")
    def nv(sl):
        def f():
            issue('v', sl, "s57")
            A("s_add_u32 s57, s57, 0x8000")
        return f
    A("s_mov_b32 s58, 15")
    LB("L_vloop")
    vstep(0, 128, nv(1))
    vstep(1, 256, nv(0))
    A("v_add_u32 v13, 256, v13")
    A("s_sub_u32 s58, s58, 1")
    A("s_cmp_lg_u32 s58, 0")
    A("s_cbranch_scc1 L_vloop")
    vstep(0, 128, nv(1))
    vstep(1, None, None)
    A("v_mov_b32 v10, v15")
    A("v_lshrrev_b32 v12, 1, v9")
    A("v_lshlrev_b32 v12, 10, v12")
    A("v_permlane32_swap_b32 v10, v15")
    A("v_lshl_add_u32 v12, v8, 5, v12")
    A("v_add_f32 v15, v10, v15")
    A("v_mov_b32 v10, v15")
    A("v_and_b32 v13, 1, v9")
    A("v_lshl_add_u32 v12, v13, 4, v12")
    A("v_permlane16_swap_b32 v10, v15")
    A("s_lshl_b32 s58, s3, 11")
    A("v_add_u32 v12, s58, v12")
    A("v_add_f32 v15, v10, v15")
    A("s_lshl_b32 s58, s3, 4")
    A("v_and_b32 v13, 8, v1")
    A("v_add_u32 v13, s58, v13")
    A(f"ds_write_b128 v12, v[24:27] offset:{L_O}")
    A(f"ds_write_b128 v12, v[28:31] offset:{L_O+512}")
    A("s_mov_b64 exec, 0x101")
    A(f"ds_write_b64 v13, v[14:15] offset:{L_ML}")
    A("s_mov_b64 exec, -1")
    stamp(4)
    A("s_waitcnt lgkmcnt(0)")
    A("s_barrier")
    A("s_cmp_lg_u32 s3, 0")
    A("s_cbranch_scc1 L_fin")
    A("s_cmp_ge_u32 s31, 28")
    A("s_cbranch_scc1 L_fin")
    srd(52, 24, 25, 256)
    srd(44, 22, 23, 1792)
    A("v_and_b32 v10, 7, v1")
    A("v_lshlrev_b32 v10, 2, v10")
    A("s_lshl_b32 s58, s30, 5")
    A(f"s_mov_b32 s60, {spin_max}")
    LB("L_pollc")
    A("buffer_load_dword v11, v10, s[52:55], s58 offen offset:128 sc1")
    A("s_waitcnt vmcnt(0)")
    A("v_cmp_gt_u32 vcc, 16, v11")
    A("s_cbranch_vccz L_pollc_done")
    A("s_sleep 2")
    A("s_sub_u32 s60, s60, 1")
    A("s_cmp_lg_u32 s60, 0")
    A("s_cbranch_scc1 L_pollc")
    LB("L_pollc_done")
    A("v_lshrrev_b32 v10, 2, v1")
    A("v_lshlrev_b32 v10, 11, v10")
    A("v_and_b32 v11, 3, v1")
    A("v_lshl_add_u32 v10, v11, 4, v10")
    A("s_lshl_b32 s58, s30, 18")
    A("s_lshl_b32 s61, s31, 6")
    A("s_add_u32 s58, s58, s61")
    A(f"s_add_u32 s58, s58, {OB2}")
    A(f"s_mov_b32 s60, {spin_max}")
    for t in range(8):
        A(f"s_mov_b64 s[{64+2*t}:{65+2*t}], -1")
    A("s_barrier")
    LB("L_poll2")
    for t in range(8):
        A(f"s_mov_b64 exec, s[{64+2*t}:{65+2*t}]")
        A(f"s_cbranch_execz L_p2s{t}")
        A(f"s_add_u32 s61, s58, {t*32768}")
        A(f"buffer_load_dwordx4 v[{64+4*t}:{67+4*t}], v10, s[40:43], s61 offen sc1")
        LB(f"L_p2s{t}")
    A("s_mov_b64 exec, -1")
    A("s_waitcnt vmcnt(0)")
    for t in range(8):
        A(f"v_max3_u32 v{12+(t&1)}, v{64+4*t}, v{65+4*t}, v{66+4*t}")
        A(f"v_max_u32 v{12+(t&1)}, v{12+(t&1)}, v{67+4*t}")
        A(f"v_cmp_eq_u32 s[{64+2*t}:{65+2*t}], -1, v{12+(t&1)}")
    A("s_or_b64 s[62:63], s[64:65], s[66:67]")
    for t in range(2, 8):
        A(f"s_or_b64 s[62:63], s[62:63], s[{64+2*t}:{65+2*t}]")
    A("s_cbranch_scc0 L_poll2_done")
    A(f"s_sleep {sl2}")
    A("s_sub_u32 s60, s60, 1")
    A("s_cmp_lg_u32 s60, 0")
    A("s_cbranch_scc1 L_poll2")
    LB("L_poll2_done")
    stamp(5)
    for step in (16, 8, 4):
        for k in range(step):
            A(f"v_add_f32 v{64+k}, v{64+k}, v{64+step+k}")
    A("s_nop 1")
    A("v_permlane32_swap_b32 v64, v66")
    A("v_permlane32_swap_b32 v65, v67")
    A("s_nop 1")
    A("v_add_f32 v64, v64, v66")
    A("v_add_f32 v65, v65, v67")
    A("v_mov_b32 v66, v64")
    A("v_mov_b32 v67, v65")
    A("s_nop 1")
    A("v_permlane16_swap_b32 v66, v64")
    A("v_permlane16_swap_b32 v67, v65")
    A("s_nop 1")
    A("v_add_f32 v64, v64, v66")
    A("v_add_f32 v65, v65, v67")
    A("s_nop 1")
    A(f"v_add_f32_dpp v64, v64, v64 row_ror:8 {DPP}")
    A(f"v_add_f32_dpp v65, v65, v65 row_ror:8 {DPP}")
    A("s_nop 1")
    A(f"v_add_f32_dpp v64, v64, v64 row_ror:4 {DPP}")
    A(f"v_add_f32_dpp v65, v65, v65 row_ror:4 {DPP}")
    A("v_lshrrev_b32 v12, 5, v1")
    A("v_lshlrev_b32 v12, 2, v12")
    A("v_lshl_add_u32 v12, v11, 3, v12")
    A("v_cvt_pk_bf16_f32 v64, v64, v65")
    A("s_mul_i32 s58, s30, 896")
    A("s_lshl_b32 s61, s31, 5")
    A("s_add_u32 s58, s58, s61")
    A("s_mov_b32 s60, 15")
    A("s_mov_b32 s61, 15")
    A("s_mov_b64 exec, s[60:61]")
    A("buffer_store_dword v64, v12, s[44:47], s58 offen")
    A("s_mov_b64 exec, -1")
    stamp(6)
    if prof == 2: dump_dbg([(6,4)])
    LB("L_fin")
    dump_stamps("stream")
    A("s_endpgm")

    LB("L_service")
    A("v_lshlrev_b32 v10, 5, v1")
    A("s_lshl_b32 s56, s28, 11")
    A(f"buffer_load_dwordx4 v[64:67], v10, s[40:43], s56 offen offset:{QBOX} sc1")
    A(f"buffer_load_dwordx4 v[68:71], v10, s[40:43], s56 offen offset:{QBOX+16} sc1")
    A("v_and_b32 v11, 3, v1")
    A("v_lshlrev_b32 v12, 5, v11")
    A("v_lshl_add_u32 v12, v9, 3, v12")
    A("s_and_b32 s59, s64, 15")
    A("s_lshl_b32 s59, s59, 7")
    A("s_add_u32 s59, s59, s56")
    A(f"buffer_load_dwordx2 v[72:73], v12, s[40:43], s59 offen offset:{QBOX} sc1")
    A("s_mul_i32 s60, s30, 896")
    A("s_add_u32 s44, s4, s60")
    A("s_addc_u32 s45, s5, 0")
    A("s_mov_b32 s46, 896")
    A("s_mov_b32 s47, 0x00020000")
    A("s_mov_b32 s51, 0x00020000")
    srd(52, 24, 25, 256)
    for k in range(4):
        A(f"v_mov_b32 v{48+k}, -1")
    A("v_lshlrev_b32 v14, 4, v1")
    A("s_lshl_b32 s57, s2, 12")
    A(f"s_add_u32 s57, s57, {OB1}")
    A("s_lshl_b32 s58, s2, 11")
    A(f"s_add_u32 s58, s58, {OB2}")
    for k in range(3):
        A(f"buffer_store_dwordx4 v[48:51], v14, s[40:43], s57 offen offset:{1024*k} sc1")
    for k in range(2):
        A(f"buffer_store_dwordx4 v[48:51], v14, s[40:43], s58 offen offset:{1024*k} sc1")
    A("s_mov_b32 s60, 0x05040100")
    A("s_mov_b32 s61, 0x07060302")
    A("s_mov_b32 s62, 0x000f000f")
    A("s_mov_b32 s63, 0x000f000f")
    A("s_waitcnt vmcnt(0)")
    A("v_add_u32 v72, 0x10000, v72")
    A("v_add_u32 v73, 0x10000, v73")
    A("v_and_b32 v72, 0xffff0000, v72")
    A("v_and_b32 v73, 0xffff0000, v73")
    stamp(1)
    A("s_barrier")
    for w in range(4):
        A(f"ds_read_b64 v[{16+2*w}:{17+2*w}], v12 offset:{L_QP+128*w}")
    A("s_waitcnt lgkmcnt(0)")
    A("v_add_f32 v16, v16, v18")
    A("v_add_f32 v17, v17, v19")
    A("v_add_f32 v20, v20, v22")
    A("v_add_f32 v21, v21, v23")
    A("v_add_f32 v16, v16, v20")
    A("v_add_f32 v17, v17, v21")
    A("v_cvt_pk_bf16_f32 v16, v16, 0")
    A("v_cvt_pk_bf16_f32 v17, v17, 0")
    A("v_or_b32 v72, v72, v16")
    A("v_or_b32 v73, v73, v17")
    A("s_mov_b64 exec, s[62:63]")
    A(f"buffer_store_dwordx2 v[72:73], v12, s[40:43], s59 offen offset:{QBOX} sc1")
    A("s_mov_b64 exec, -1")
    stamp(2)
    A("v_mov_b32 v12, 0")
    A("v_mov_b32 v13, 1")
    A("s_lshl_b32 s65, s28, 2")
    A("s_mov_b32 s59, 0")
    A("s_mov_b32 s66, 0x10000")
    LB("L_pollq")
    A(f"buffer_load_dwordx4 v[76:79], v10, s[40:43], s56 offen offset:{QBOX} sc1")
    A(f"buffer_load_dwordx4 v[80:83], v10, s[40:43], s56 offen offset:{QBOX+16} sc1")
    A("s_waitcnt vmcnt(0)")
    A("s_cmp_lg_u32 s59, 0")
    A("s_cbranch_scc1 L_pollq_arrived")
    A("s_mov_b64 exec, 1")
    A("buffer_atomic_add v13, v12, s[52:55], s65 offen offset:128")
    A("s_mov_b64 exec, -1")
    LB("L_pollq_arrived")
    for k in range(8):
        A(f"v_xor_b32 v{84+k}, v{64+k}, v{76+k}")
    A("v_min3_u32 v84, v84, v85, v86")
    A("v_min3_u32 v87, v87, v88, v89")
    A("v_min3_u32 v84, v84, v90, v91")
    A("v_min_u32 v84, v84, v87")
    A("v_cmp_gt_u32 vcc, s66, v84")
    A("s_cbranch_vccz L_pollq_done")
    A(f"s_sleep {slq}")
    A("s_add_u32 s59, s59, 1")
    A("s_and_b32 s67, s59, 7")
    A("s_cmp_lg_u32 s67, 0")
    A("s_cbranch_scc1 L_pollq")
    A("buffer_load_dword v13, v12, s[52:55], s65 offen offset:128 sc1")
    A("s_waitcnt vmcnt(0)")
    A("v_cmp_gt_u32 vcc, 16, v13")
    A("s_cbranch_vccnz L_pollq_notyet")
    A("s_mov_b32 s66, 0")
    LB("L_pollq_notyet")
    A(f"s_cmp_lt_u32 s59, {spin_max}")
    A("s_cbranch_scc1 L_pollq")
    LB("L_pollq_done")
    stamp(3)
    for k in range(4):
        A(f"v_perm_b32 v{48+k}, v{77+2*k}, v{76+2*k}, s60")
    A(f"ds_write_b128 v14, v[48:51] offset:{L_Q}")
    A("s_waitcnt lgkmcnt(0)")
    A("s_barrier")
    stamp(4)
    A("s_and_b32 s66, s31, 7")
    A("s_mul_i32 s66, s66, 14")
    A("s_lshr_b32 s67, s31, 3")
    A("s_add_u32 s66, s66, s67")
    A("s_cmp_lt_u32 s31, 112")
    A(f"s_cselect_b32 s59, {448*1792*2}, 0")
    A("s_mov_b32 s48, s16"); A("s_mov_b32 s49, s17"); A("s_mov_b32 s50, s59")
    srd(32, 18, 19, "s59")
    srd(36, 20, 21, 896)
    A("v_lshrrev_b32 v10, 1, v1")
    A("v_and_b32 v11, 1, v1")
    A("v_mul_u32_u24 v12, 28, v10")
    A(f"v_mul_u32_u24 v13, {14*3584}, v10")
    A("v_lshl_add_u32 v13, v11, 4, v13")
    A(f"buffer_load_dwordx4 v[{XR}:{XR+3}], v12, s[44:47], 0 offen")
    A(f"buffer_load_dwordx3 v[{XR+4}:{XR+6}], v12, s[44:47], 0 offen offset:16")
    A("buffer_load_dwordx4 v[40:43], v14, s[44:47], 0 offen")
    A("buffer_load_dwordx4 v[44:47], v14, s[36:39], 0 offen")
    A("s_lshl_b32 s56, s66, 5")
    for t in range(14):
        A(f"buffer_load_dwordx4 v[{64+4*t}:{67+4*t}], v13, s[48:51], s56 offen nt")
        A("s_add_u32 s56, s56, 3584")
    A("v_mul_u32_u24 v12, 3584, v9")
    A("v_lshl_add_u32 v12, v8, 4, v12")
    A(f"s_mul_i32 s56, s66, {16*896}")
    for t in range(4):
        for cb in range(4):
            b = 128 + 16*t + 4*cb
            A(f"buffer_load_dwordx4 v[{b}:{b+3}], v12, s[32:35], s56 offen offset:{t*896+cb*256} nt")
    for k in range(8):
        A(f"v_mov_b32 v{ACC+k}, 0")
    matvec_pairs(7, 64, XR, 16)
    A("s_nop 1")
    for k in range(2):
        A(f"v_add_f32_dpp v{ACC+k}, v{ACC+k}, v{ACC+k} row_ror:2 {DPP}")
    A(f"s_mov_b32 s59, {f2u(-math.log2(math.e)):#x}")
    for k in range(2):
        A(f"v_cvt_pk_bf16_f32 v{ACC+k}, 0, v{ACC+k}")
    for k in range(2):
        A(f"v_mul_f32 v{ACC+2+k}, s59, v{ACC+k}")
    for k in range(2):
        A(f"v_exp_f32 v{ACC+2+k}, v{ACC+2+k}")
    A("s_nop 0")
    for k in range(2):
        A(f"v_add_f32 v{ACC+2+k}, 1.0, v{ACC+2+k}")
    for k in range(2):
        A(f"v_rcp_f32 v{ACC+2+k}, v{ACC+2+k}")
    A("s_nop 0")
    for k in range(2):
        A(f"v_mul_f32 v{ACC+k}, v{ACC+k}, v{ACC+2+k}")
    A("v_lshlrev_b32 v12, 5, v11")
    A("v_lshl_add_u32 v12, v9, 3, v12")
    A("s_mov_b32 s62, 0x00030003")
    A("s_mov_b32 s63, 0x00030003")
    A("s_mov_b64 exec, s[62:63]")
    A(f"ds_write_b64 v12, v[{ACC}:{ACC+1}] offset:{L_H}")
    A("s_mov_b64 exec, -1")
    A("v_lshlrev_b32 v12, 4, v9")
    A("s_waitcnt lgkmcnt(0)")
    A(f"ds_read_b128 v[{ACC}:{ACC+3}], v12 offset:{L_H}")
    for k in range(4):
        A(f"v_lshlrev_b32 v52, 16, v{40+k}")
        A(f"v_lshlrev_b32 v53, 16, v{44+k}")
        A(f"v_and_b32 v54, 0xffff0000, v{40+k}")
        A(f"v_and_b32 v55, 0xffff0000, v{44+k}")
        A("v_mul_f32 v52, v52, v53")
        A("v_mul_f32 v54, v54, v55")
        A("v_cvt_pk_bf16_f32 v52, 0, v52")
        A("v_cvt_pk_bf16_f32 v54, 0, v54")
        if k == 0:
            A("v_add_f32 v56, v52, v54")
        else:
            A("v_add_f32 v56, v56, v52")
            A("v_add_f32 v56, v56, v54")
    for rr in (8, 4, 2, 1):
        A("s_nop 1")
        A(f"v_add_f32_dpp v56, v56, v56 row_ror:{rr} {DPP}")
    A("v_mov_b32 v57, v56")
    A("s_nop 1")
    A("v_permlane32_swap_b32 v57, v56")
    A("s_nop 1")
    A("v_add_f32 v56, v56, v57")
    A("v_mov_b32 v57, v56")
    A("s_nop 1")
    A("v_permlane16_swap_b32 v57, v56")
    A("s_nop 1")
    A("v_add_f32 v56, v56, v57")
    A("v_cvt_pk_bf16_f32 v56, 0, v56")
    A("v_mul_f32 v56, s59, v56")
    A("v_exp_f32 v56, v56")
    A("s_nop 0")
    A("v_add_f32 v56, 1.0, v56")
    A("v_rcp_f32 v56, v56")
    A("s_nop 0")
    A("v_cvt_pk_bf16_f32 v2, 0, v56")
    A("v_sub_f32 v3, 1.0, v2")
    A("v_cvt_pk_bf16_f32 v3, 0, v3")
    A("s_waitcnt lgkmcnt(0) vmcnt(0)")
    for t in range(4):
        A(f"v_cvt_pk_bf16_f32 v{ACC+t}, v{ACC+t}, v{ACC+t}")
    for t in range(4):
        for k in range(4):
            A(f"v_and_b32 v{24+4*t+k}, v{ACC+t}, v{4+k}")
    A("s_nop 1")
    for t in range(4):
        for cb in range(4):
            b = 128 + 16*t + 4*cb
            d = 40 + 4*cb
            c = "0" if t == 0 else f"v[{d}:{d+3}]"
            A(f"v_mfma_f32_16x16x32_bf16 v[{d}:{d+3}], v[{24+4*t}:{27+4*t}], v[{b}:{b+3}], {c}")
    srd(32, 12, 13, 4096*448*2)
    A("v_mul_u32_u24 v12, 7168, v9")
    A("v_lshl_add_u32 v12, v8, 4, v12")
    A(f"s_mul_i32 s56, s31, {32*896}")
    A("s_nop 4")
    for t in range(8):
        if t == 4:
            A(f"s_add_u32 s56, s56, {4*896}")
        for cb in range(4):
            b = 128 + 16*t + 4*cb
            A(f"buffer_load_dwordx4 v[{b}:{b+3}], v12, s[32:35], s56 offen offset:{(t&3)*896+cb*256} nt")
    for k in range(16):
        A(f"v_mul_f32 v{40+k}, v3, v{40+k}")
    A(f"s_mov_b32 s59, {f2u(C_SCALE):#x}")
    A("v_lshlrev_b32 v10, 5, v1")
    A("v_lshrrev_b32 v11, 5, v1")
    A("v_lshlrev_b32 v11, 3, v11")
    A("v_lshlrev_b32 v12, 12, v8")
    A("v_lshl_add_u32 v13, v9, 5, v12")
    A("s_lshl_b32 s60, s28, 16")
    A(f"s_add_u32 s60, s60, {OB1}")
    A("s_lshr_b32 s61, s29, 3")
    A("s_lshl_b32 s61, s61, 3")
    A("s_add_u32 s61, s61, s60")
    A("s_lshl_b32 s62, s29, 7")
    A("s_add_u32 s60, s60, s62")
    A("v_lshlrev_b32 v14, 5, v8")
    A("v_lshl_add_u32 v14, v9, 4, v14")
    A("s_waitcnt vmcnt(0)")
    A("s_barrier")
    stamp(5)
    if prof: A("s_waitcnt lgkmcnt(0)")
    for w in range(4):
        A(f"ds_read_b64 v[{56+2*w}:{57+2*w}], v11 offset:{L_ML+16*w}")
    for w in range(4):
        A(f"ds_read_b128 v[{64+8*w}:{67+8*w}], v10 offset:{L_O+2048*w}")
        A(f"ds_read_b128 v[{68+8*w}:{71+8*w}], v10 offset:{L_O+2048*w+16}")
    A("s_waitcnt lgkmcnt(8)")
    A("v_max3_f32 v16, v56, v58, v60")
    A("v_max_f32 v16, v16, v62")
    for w in range(4):
        A(f"v_sub_f32 v{56+2*w}, v{56+2*w}, v16")
    for w in range(4):
        A(f"v_mul_f32 v{56+2*w}, s59, v{56+2*w}")
    for w in range(4):
        A(f"v_exp_f32 v{56+2*w}, v{56+2*w}")
    A("s_nop 0")
    A("v_mul_f32 v17, v56, v57")
    for w in range(1, 4):
        A(f"v_fmac_f32 v17, v{56+2*w}, v{57+2*w}")
    A("s_waitcnt lgkmcnt(0)")
    for k in range(8):
        A(f"v_mul_f32 v{64+k}, v56, v{64+k}")
    for w in range(1, 4):
        for k in range(8):
            A(f"v_fmac_f32 v{64+k}, v{56+2*w}, v{64+8*w+k}")
    A("buffer_store_dwordx4 v[64:67], v10, s[40:43], s57 offen sc1")
    A("buffer_store_dwordx4 v[68:71], v10, s[40:43], s57 offen offset:16 sc1")
    A("s_mov_b32 s62, 1")
    A("s_mov_b32 s63, 1")
    A("s_mov_b64 exec, s[62:63]")
    A("buffer_store_dwordx2 v[16:17], v11, s[40:43], s57 offen offset:2048 sc1")
    A("s_mov_b64 exec, -1")
    A(f"s_mov_b32 s56, {spin_max}")
    LB("L_poll1")
    A("buffer_load_dwordx4 v[72:75], v13, s[40:43], s60 offen sc1")
    A("buffer_load_dwordx4 v[76:79], v13, s[40:43], s60 offen offset:16 sc1")
    A("buffer_load_dwordx2 v[80:81], v12, s[40:43], s61 offen offset:2048 sc1")
    A("s_waitcnt vmcnt(0)")
    A("v_max3_u32 v18, v72, v73, v74")
    A("v_max3_u32 v19, v75, v76, v77")
    A("v_max3_u32 v18, v18, v78, v79")
    A("v_max3_u32 v19, v19, v80, v81")
    A("v_max_u32 v18, v18, v19")
    A("v_cmp_eq_u32 vcc, -1, v18")
    A("s_cbranch_vccz L_poll1_done")
    A("s_mov_b64 exec, vcc")
    A(f"s_sleep {sl1}")
    A("s_sub_u32 s56, s56, 1")
    A("s_cmp_lg_u32 s56, 0")
    A("s_cbranch_scc1 L_poll1")
    LB("L_poll1_done")
    A("s_mov_b64 exec, -1")
    A("s_barrier")
    stamp(6)
    A(f"v_max_f32_dpp v18, v80, v80 row_ror:8 {DPP}")
    for rr in (4, 2, 1):
        A("s_nop 1")
        A(f"v_max_f32_dpp v18, v18, v18 row_ror:{rr} {DPP}")
    A("v_sub_f32 v18, v80, v18")
    A("v_mul_f32 v18, s59, v18")
    A("v_exp_f32 v18, v18")
    A("s_nop 0")
    A("v_mul_f32 v80, v18, v81")
    for k in range(8):
        A(f"v_mul_f32 v{72+k}, v18, v{72+k}")
    for rr in (8, 4, 2, 1):
        for k in range(9):
            A(f"v_add_f32_dpp v{72+k}, v{72+k}, v{72+k} row_ror:{rr} {DPP}")
    A("v_rcp_f32 v80, v80")
    A("s_nop 0")
    for k in range(8):
        A(f"v_mul_f32 v{72+k}, v80, v{72+k}")
    for k in range(8):
        A(f"v_cvt_pk_bf16_f32 v{72+k}, v{72+k}, v{72+k}")
    for t in range(8):
        for k in range(4):
            A(f"v_and_b32 v{88+4*t+k}, v{72+t}, v{4+k}")
        if t >= 1:
            tt = t - 1
            for cb in range(4):
                b = 128 + 16*tt + 4*cb
                d = 16 + 4*cb
                c = "0" if tt == 0 else f"v[{d}:{d+3}]"
                A(f"v_mfma_f32_16x16x32_bf16 v[{d}:{d+3}], v[{88+4*tt}:{91+4*tt}], v[{b}:{b+3}], {c}")
    tt = 7
    for cb in range(4):
        b = 128 + 16*tt + 4*cb
        d = 16 + 4*cb
        A(f"v_mfma_f32_16x16x32_bf16 v[{d}:{d+3}], v[{88+4*tt}:{91+4*tt}], v[{b}:{b+3}], v[{d}:{d+3}]")
    A("s_mov_b32 s62, -1")
    A("s_mov_b32 s63, 0")
    A("s_nop 3")
    for cb in range(4):
        for k in range(4):
            A(f"v_fmac_f32 v{40+4*cb+k}, v2, v{16+4*cb+k}")
        if cb == 0:
            A("s_mov_b64 exec, s[62:63]")
        if cb == 3:
            A("s_mov_b32 s62, 0x00ff00ff")
            A("s_mov_b64 exec, s[62:63]")
        A(f"buffer_store_dwordx4 v[{40+4*cb}:{43+4*cb}], v14, s[40:43], s58 offen offset:{512*cb} sc1")
    A("s_mov_b64 exec, -1")
    stamp(7)
    dump_stamps("service")
    LB("L_end")
    A("s_endpgm")
    L.append('.section .rodata,"a"')
    L.append(".p2align 6")
    L.append(f".amdhsa_kernel {NAME}_kernel")
    L.append("  .amdhsa_next_free_vgpr 256")
    L.append("  .amdhsa_next_free_sgpr 96")
    L.append("  .amdhsa_accum_offset 256")
    L.append("  .amdhsa_group_segment_fixed_size 0")
    L.append("  .amdhsa_kernarg_size 96")
    L.append("  .amdhsa_user_sgpr_count 2")
    L.append("  .amdhsa_user_sgpr_kernarg_segment_ptr 1")
    L.append("  .amdhsa_system_sgpr_workgroup_id_x 1")
    L.append(".end_amdhsa_kernel")
    return "\n".join(L) + "\n"


if __name__ == "__main__":
    out = sys.argv[1]
    kw = {}
    for a in sys.argv[2:]:
        k, v = a.split("=")
        kw[k] = int(v)
    open(out, "w").write(gen(**kw))
```

```python
import sys, math

NAME = "gated_mix__gqa_block_cached__dense_activation_silu__decode"
HEADER = open("cdna_kernels/" + NAME + ".s.ref").read().split("; Override launch")[0]

QBOX = 0x0
TICK = 0x10000
OB1 = 0x40000
OB2 = 0x200000
STAMP = 0x20000000
L_Q = 0
L_S = 1024
L_O = L_S + 16384
L_ML = L_O + 8192
L_H = L_ML + 64
L_QP = L_H + 64
L_FLAG = L_QP + 512
LDS_BYTES = L_FLAG + 64

C_SCALE = (1.0 / 16.0) * math.log2(math.e)
import struct
def f2u(x): return struct.unpack("<I", struct.pack("<f", x))[0]


def gen(prof=0, NPRE=6, PFI=1, early=1, spin_max=200000, sl1=4, sl2=2, slq=1, fbk=4, late=0, NS=28):
    L = []
    A = lambda s: L.append("  " + s)
    LB = lambda s: L.append(s + ":")
    nstamp = [0]

    def stamp(k):
        if prof:
            A(f"s_memrealtime s[{80+2*k}:{81+2*k}]")

    def dump_dbg(pairs):
        A("s_waitcnt lgkmcnt(0)")
        srd(52, 24, 25, 256)
        A("v_mov_b32 v56, 0")
        for (k, sp) in pairs:
            A(f"s_not_b32 s56, s{80+2*k}")
            A(f"v_writelane_b32 v56, s56, {2*sp}")
            A(f"v_writelane_b32 v56, s{80+2*k}, {2*sp+1}")
        A("v_lshlrev_b32 v57, 2, v1")
        A("s_mov_b64 exec, 0xffff")
        A("buffer_atomic_umax v56, v57, s[52:55], 0 offen")
        A("s_mov_b64 exec, -1")

    def dump_stamps(kind=None):
        if not prof:
            return
        if prof == 2:
            dump_dbg({"stream": [(0,0),(2,1),(3,2),(4,3)], "service": [(2,5),(3,6),(6,7)]}[kind])
            return
        A("s_waitcnt lgkmcnt(0)")
        A("s_lshl_b32 s56, s2, 3")
        A("s_add_u32 s56, s56, s3")
        A("s_lshl_b32 s56, s56, 6")
        A(f"s_add_u32 s56, s56, {STAMP}")
        A("s_mov_b64 exec, 1")
        A("v_mov_b32 v60, 0")
        for q in range(4):
            for j in range(4):
                A(f"v_mov_b32 v{56+j}, s{80+4*q+j}")
            A(f"buffer_store_dwordx4 v[56:59], v60, s[40:43], s56 offen offset:{16*q}")
            A("s_nop 1")
        A("s_mov_b64 exec, -1")

    def srd(d, lo, hi, n):
        A(f"s_mov_b32 s{d}, s{lo}")
        A(f"s_mov_b32 s{d+1}, s{hi}")
        A(f"s_mov_b32 s{d+2}, {n}")
        A(f"s_mov_b32 s{d+3}, 0x00020000")

    DPP = "row_mask:0xf bank_mask:0xf"
    ACC = 16
    XR = 32
    def matvec_pairs(npairs, wbase, xbase, tail_ops):
        for u in range(npairs):
            A(f"s_waitcnt vmcnt({2*npairs - (2*u+2) + tail_ops})")
            w0 = wbase + 8*u; w1 = w0 + 4
            for k in range(4):
                A(f"v_perm_b32 v{52+k}, v{w1+k}, v{w0+k}, s60")
                A(f"v_perm_b32 v{56+k}, v{w1+k}, v{w0+k}, s61")
            for k in range(4):
                A(f"v_dot2c_f32_bf16 v{ACC+2*k}, v{52+k}, v{xbase+u}")
                A(f"v_dot2c_f32_bf16 v{ACC+2*k+1}, v{56+k}, v{xbase+u}")
        A("s_nop 3")
        for k in range(4):
            A(f"v_permlane32_swap_b32 v{ACC+k}, v{ACC+4+k}")
        A("s_nop 1")
        for k in range(4):
            A(f"v_add_f32 v{ACC+k}, v{ACC+k}, v{ACC+4+k}")
        A("s_nop 1")
        for k in range(2):
            A(f"v_permlane16_swap_b32 v{ACC+k}, v{ACC+2+k}")
        A("s_nop 1")
        for k in range(2):
            A(f"v_add_f32 v{ACC+k}, v{ACC+k}, v{ACC+2+k}")
        for rr in (8, 4):
            A("s_nop 1")
            for k in range(2):
                A(f"v_add_f32_dpp v{ACC+k}, v{ACC+k}, v{ACC+k} row_ror:{rr} {DPP}")
    def make_masks(t0, t1):
        A(f"v_and_b32 v{t0}, 1, v1")
        A(f"v_lshlrev_b32 v{t0}, 4, v{t0}")
        A(f"v_mov_b32 v{t1}, 0xffff")
        A(f"v_lshlrev_b32 v{t1}, v{t0}, v{t1}")
        A(f"v_bfe_u32 v{t0}, v1, 1, 2")
        for k in range(4):
            A(f"v_cmp_eq_u32 vcc, {k}, v{t0}")
            A("s_nop 1")
            A(f"v_cndmask_b32 v{4+k}, 0, v{t1}, vcc")
    L.append(HEADER.rstrip("\n"))
    L.append(f"; @launch grid=(256,1,1) block=(320,1,1) lds={LDS_BYTES}")
    L.append('.amdgcn_target "amdgcn-amd-amdhsa--gfx950"')
    L.append(".text")
    L.append(f".globl {NAME}_kernel")
    L.append(".p2align 8")
    L.append(f".type {NAME}_kernel,@function")
    LB(f"{NAME}_kernel")
    A("s_cmp_ge_u32 s2, 256")
    A("s_cbranch_scc1 L_end")
    A("s_load_dwordx16 s[4:19], s[0:1], 0")
    A("s_load_dwordx8 s[20:27], s[0:1], 64")
    if prof:
        for k in range(8):
            A(f"s_mov_b64 s[{80+2*k}:{81+2*k}], 0")
    stamp(0)
    A("v_lshrrev_b32 v2, 6, v0")
    A("v_and_b32 v1, 63, v0")
    A("v_readfirstlane_b32 s3, v2")
    A("s_lshr_b32 s28, s2, 4")
    A("s_and_b32 s29, s2, 15")
    A("s_lshr_b32 s30, s2, 7")
    A("s_and_b32 s31, s2, 127")
    A("s_and_b32 s64, s29, 7")
    A("s_lshl_b32 s64, s64, 1")
    A("s_lshr_b32 s65, s29, 3")
    A("s_add_u32 s64, s64, s65")
    A("s_andn2_b32 s65, s31, 15")
    A("s_add_u32 s64, s64, s65")
    A("v_and_b32 v8, 15, v1")
    A("v_lshrrev_b32 v9, 4, v1")
    A("s_waitcnt lgkmcnt(0)")
    srd(40, 26, 27, "0x40000000")
    A("s_cmp_lg_u32 s3, 4")
    A("s_cbranch_scc1 L_stream")
    A("v_lshlrev_b32 v10, 5, v1")
    A("s_lshl_b32 s56, s28, 11")
    A(f"buffer_load_dwordx4 v[64:67], v10, s[40:43], s56 offen offset:{QBOX} sc1")
    A(f"buffer_load_dwordx4 v[68:71], v10, s[40:43], s56 offen offset:{QBOX+16} sc1")
    A("v_and_b32 v11, 3, v1")
    A("v_lshlrev_b32 v12, 5, v11")
    A("v_lshl_add_u32 v12, v9, 3, v12")
    A("s_and_b32 s59, s64, 15")
    A("s_lshl_b32 s59, s59, 7")
    A("s_add_u32 s59, s59, s56")
    A(f"buffer_load_dwordx2 v[72:73], v12, s[40:43], s59 offen offset:{QBOX} sc1")
    A("s_branch L_service")
    LB("L_stream")

    srd(32, 6, 7, "0x10000000")
    srd(36, 8, 9, "0x10000000")
    A("s_lshl_b32 s56, s2, 20")
    A("s_lshl_b32 s57, s3, 13")
    A("s_add_u32 s56, s56, s57")
    A("v_lshrrev_b32 v2, 2, v8")
    A("v_lshlrev_b32 v2, 11, v2")
    A("v_lshl_add_u32 v2, v9, 6, v2")
    A("v_and_b32 v10, 3, v1")
    A("v_lshl_add_u32 v2, v10, 4, v2")
    A("v_lshlrev_b32 v3, 11, v9")
    A("v_lshl_add_u32 v3, v8, 4, v3")
    SLOT0 = 64
    def slot(sl, i): return SLOT0 + 32*sl + 4*i
    def issue(kind, sl, sreg):
        srdn = "s[32:35]" if kind == 'k' else "s[36:39]"
        va = "v2" if kind == 'k' else "v3"
        for i in range(8):
            b = slot(sl, i)
            A(f"buffer_load_dwordx4 v[{b}:{b+3}], {va}, {srdn}, {sreg} offen offset:{(i>>1)*512+(i&1)*256} nt")
    A("s_mul_i32 s57, s30, 896")
    A("s_add_u32 s44, s4, s57")
    A("s_addc_u32 s45, s5, 0")
    A("s_mov_b32 s46, 896")
    A("s_mov_b32 s47, 0x00020000")
    srd(48, 10, 11, 448*4096*2)
    A("v_lshrrev_b32 v12, 2, v1")
    A("s_mul_i32 s57, s3, 14")
    A("v_cmp_gt_u32 vcc, 14, v12")
    A("v_add_u32 v12, s57, v12")
    A("v_mov_b32 v13, 0x4000")
    A("v_cndmask_b32 v12, v13, v12, vcc")
    A("v_lshlrev_b32 v13, 16, v12")
    A("v_lshl_add_u32 v13, v10, 4, v13")
    A("v_lshlrev_b32 v12, 4, v12")
    A(f"buffer_load_dwordx4 v[{XR}:{XR+3}], v12, s[44:47], 0 offen")
    A("s_lshl_b32 s57, s64, 6")
    WQB = slot(NPRE-1, 0)
    for t in range(8):
        A(f"buffer_load_dwordx4 v[{WQB+4*t}:{WQB+4*t+3}], v13, s[48:51], s57 offen nt")
        A("s_add_u32 s57, s57, 0x2000")
    A("s_mov_b32 s57, s56")
    for t in range(early):
        issue('k', t, "s57")
        A("s_add_u32 s57, s57, 0x8000")
    A("s_mov_b32 s60, 0x05040100")
    A("s_mov_b32 s61, 0x07060302")
    for k in range(8):
        A(f"v_mov_b32 v{ACC+k}, 0")
    A("v_lshlrev_b32 v12, 5, v10")
    A("v_lshl_add_u32 v12, v9, 3, v12")
    A("s_lshl_b32 s58, s3, 7")
    A("v_add_u32 v12, s58, v12")
    matvec_pairs(4, WQB, XR, 8*early)
    A("s_mov_b32 s62, 0x000f000f")
    A("s_mov_b32 s63, 0x000f000f")
    A("s_mov_b64 exec, s[62:63]")
    A(f"ds_write_b64 v12, v[{ACC}:{ACC+1}] offset:{L_QP}")
    A("s_mov_b64 exec, -1")
    A("s_waitcnt lgkmcnt(0)")
    A("s_barrier")
    stamp(7)
    for t in range(early, NPRE):
        if t >= PFI:
            A(f"s_waitcnt vmcnt({8*(PFI-1)})")
        issue('k', t, "s57")
        A("s_add_u32 s57, s57, 0x8000")
        if t == early:
            A("v_bfe_u32 v12, v1, 3, 1")
            A("v_lshlrev_b32 v13, 2, v12")
            A("v_add_u32 v13, v13, v9")
            A("v_lshlrev_b32 v12, 9, v12")
            A("v_lshl_add_u32 v12, v9, 6, v12")
            A("v_lshl_add_u32 v12, v10, 4, v12")
            A("s_lshl_b32 s58, s3, 12")
            A(f"s_add_u32 s58, s58, {L_S}")
            A("v_lshlrev_b32 v13, 4, v13")
            A("v_add_u32 v13, s58, v13")
            make_masks(56, 57)
            A("v_mov_b32 v14, 0xff800000")
            A("v_mov_b32 v15, 0")
            for r in range(8):
                A(f"v_mov_b32 v{24+r}, 0")
            A(f"s_mov_b32 s59, {f2u(C_SCALE):#x}")
    stamp(1)
    A("s_barrier")
    A(f"ds_read_b128 v[16:19], v12 offset:{L_Q}")
    A(f"ds_read_b128 v[20:23], v12 offset:{L_Q+256}")
    stamp(2)
    A("s_waitcnt lgkmcnt(0)")

    def kproc(sl, soff, mid=None, dyn=False):
        for r in range(4):
            d = 32 + 4*r
            a0 = slot(sl, 2*r); a1 = slot(sl, 2*r+1)
            A(f"v_mfma_f32_16x16x32_bf16 v[{d}:{d+3}], v[{a0}:{a0+3}], v[16:19], 0")
            A(f"v_mfma_f32_16x16x32_bf16 v[{d}:{d+3}], v[{a1}:{a1+3}], v[20:23], v[{d}:{d+3}]")
        if mid: mid()
        else: A("s_nop 1")
        for r in range(4):
            d = 32 + 4*r
            s = 48 + r
            if r == 3: pass
            A(f"v_mov_b32_dpp v{s}, v{d} quad_perm:[0,0,0,0] {DPP}")
            A(f"v_add_f32_dpp v{s}, v{d+1}, v{s} quad_perm:[1,1,1,1] {DPP}")
            A(f"v_add_f32_dpp v{s}, v{d+2}, v{s} quad_perm:[2,2,2,2] {DPP}")
            A(f"v_add_f32_dpp v{s}, v{d+3}, v{s} quad_perm:[3,3,3,3] {DPP}")
            A(f"v_cvt_pk_bf16_f32 v{s}, 0, v{s}")
        if dyn:
            return
        A("v_max3_f32 v14, v14, v48, v49")
        A("v_max3_f32 v14, v14, v50, v51")
        A(f"ds_write_b128 v13, v[48:51] offset:{soff}")

    assert NPRE % 2 == 0 and NPRE >= 2
    for t in range(NPRE):
        later = (NPRE - 1 - t) + (1 if t >= 1 else 0)
        A(f"s_waitcnt vmcnt({min(63, 8*later)})")
        if t == 0:
            def mid0():
                issue('k', 0, "s57")
                A("s_add_u32 s57, s57, 0x8000")
            kproc(0, 0, mid0)
        else:
            kproc(t, t*128)
    A(f"v_add_u32 v13, {NPRE*128}, v13")
    NLOOP = (NS - NPRE - 2)//2
    A(f"s_mov_b32 s58, {NLOOP}")
    def kstep(sl, soff, nxt):
        A("s_waitcnt vmcnt(0)")
        if late == 0:
            nxt()
            kproc(sl, soff)
        elif late == 1:
            kproc(sl, soff, nxt)
        else:
            kproc(sl, soff)
            nxt()
    def nk(sl):
        def f():
            issue('k', sl, "s57")
            A("s_add_u32 s57, s57, 0x8000")
        return f
    LB("L_kloop")
    kstep(0, 0, nk(1))
    kstep(1, 128, nk(0))
    A("v_add_u32 v13, 256, v13")
    A("s_sub_u32 s58, s58, 1")
    A("s_cmp_lg_u32 s58, 0")
    A("s_cbranch_scc1 L_kloop")
    kstep(0, 0, nk(1))
    def nv0():
        A("s_mov_b32 s57, s56")
        issue('v', 0, "s57")
        A("s_add_u32 s57, s57, 0x8000")
    kstep(1, 128, nv0)
    stamp(3)
    A(f"v_subrev_u32 v13, {(NS-2)*128}, v13")
    A("v_mov_b32 v10, v14")
    A("s_nop 1")
    A("v_permlane32_swap_b32 v10, v14")
    A("s_nop 1")
    A("v_max_f32 v14, v10, v14")
    A("v_mov_b32 v10, v14")
    A("s_nop 1")
    A("v_permlane16_swap_b32 v10, v14")
    A("s_nop 1")
    A("v_max_f32 v14, v10, v14")
    A("v_mul_f32 v11, s59, v14")
    if NS < 32:
        A("s_lshl_b32 s74, s28, 12")
        A(f"s_add_u32 s74, s74, {TICK}")
        A("s_add_u32 s74, s26, s74")
        A("s_addc_u32 s75, s27, 0")
        A("v_mov_b32 v10, 0")
        A(f"s_mov_b32 s58, {spin_max}")
        LB("L_flag")
        A(f"ds_read_b32 v56, v10 offset:{L_FLAG}")
        A("s_waitcnt lgkmcnt(0)")
        A("v_readfirstlane_b32 s76, v56")
        A("s_cmp_lg_u32 s76, 0")
        A("s_cbranch_scc1 L_flag_done")
        A("s_sleep 8")
        A("s_sub_u32 s58, s58, 1")
        A("s_cmp_lg_u32 s58, 0")
        A("s_cbranch_scc1 L_flag")
        LB("L_flag_done")
    A("s_waitcnt lgkmcnt(0)")
    A("ds_read_b128 v[48:51], v13")
    def pprep(sc):
        for r in range(4):
            A(f"v_fma_f32 v{sc+r}, v{sc+r}, s59, -v11")
        for r in range(4):
            A(f"v_exp_f32 v{sc+r}, v{sc+r}")
        A("s_nop 0")
        A(f"v_add_f32 v56, v{sc}, v{sc+1}")
        A(f"v_add_f32 v57, v{sc+2}, v{sc+3}")
        for r in range(4):
            A(f"v_cvt_pk_bf16_f32 v{sc+r}, v{sc+r}, v{sc+r}")
        A("v_add_f32 v56, v56, v57")
        A("v_add_f32 v15, v15, v56")
        for r in range(4):
            for k in range(4):
                A(f"v_and_b32 v{32+4*r+k}, v{sc+r}, v{4+k}")
    def pv(sl):
        for r in range(4):
            a = 32 + 4*r
            b0 = slot(sl, 2*r); b1 = slot(sl, 2*r+1)
            A(f"v_mfma_f32_16x16x32_bf16 v[24:27], v[{a}:{a+3}], v[{b0}:{b0+3}], v[24:27]")
            A(f"v_mfma_f32_16x16x32_bf16 v[28:31], v[{a}:{a+3}], v[{b1}:{b1+3}], v[28:31]")
    def vstep(sl, snext_off, nxt, pre=None):
        sc = 48 + 4*sl
        sn = 48 + 4*(1-sl)
        A("s_waitcnt lgkmcnt(0)")
        if snext_off is not None:
            A(f"ds_read_b128 v[{sn}:{sn+3}], v13 offset:{snext_off}")
        if pre: pre()
        pprep(sc)
        A("s_waitcnt vmcnt(0)")
        if nxt and late == 0: nxt()
        else: A("s_nop 0")
        pv(sl)
        if nxt and late >= 1: nxt()
    def nv(sl):
        def f():
            issue('v', sl, "s57")
            A("s_add_u32 s57, s57, 0x8000")
        return f
    def req_ticket():
        A("s_mov_b32 s76, 1")
        A("s_atomic_add s76, s[74:75], 0 glc")
    nlab = [0]
    def take_ticket():
        A("s_bfe_u32 s77, s76, 0x40002")
        A("s_lshl_b32 s78, s77, 20")
        A("s_lshr_b32 s77, s76, 6")
        A("s_lshl_b32 s77, s77, 2")
        A("s_and_b32 s79, s76, 3")
        A("s_add_u32 s77, s77, s79")
        A(f"s_add_u32 s77, s77, {NS*4}")
        A("s_and_b32 s77, s77, 127")
        A("s_lshl_b32 s77, s77, 13")
        A("s_add_u32 s78, s78, s77")
        A("s_lshl_b32 s77, s28, 24")
        A("s_add_u32 s78, s78, s77")
        A(f"s_cmp_lt_u32 s76, {(32-NS)*64}")
        A("s_cselect_b32 s34, 0x10000000, 0")
        A("s_cselect_b32 s38, 0x10000000, 0")
        A("s_cselect_b32 s77, 1, 0")
        nlab[0] += 1
        A(f"s_cbranch_scc0 L_notick{nlab[0]}")
        req_ticket()
        LB(f"L_notick{nlab[0]}")
    A(f"s_mov_b32 s58, {(NS-2)//2}")
    LB("L_vloop")
    vstep(0, 128, nv(1))
    vstep(1, 256, nv(0))
    A("v_add_u32 v13, 256, v13")
    A("s_sub_u32 s58, s58, 1")
    A("s_cmp_lg_u32 s58, 0")
    A("s_cbranch_scc1 L_vloop")
    if NS == 32:
        vstep(0, 128, nv(1))
        vstep(1, None, None)
    else:
        vstep(0, 128, nv(1), req_ticket)
        def first_dyn():
            issue('k', 2, "s78")
            issue('v', 3, "s78")
        vstep(1, None, first_dyn, take_ticket)
        A("s_cmp_lg_u32 s77, 0")
        A("s_cbranch_scc0 L_dyn_done")
        LB("L_dyn")
        A("s_waitcnt vmcnt(8)")
        kproc(2, 0, None, True)
        A("v_max3_f32 v10, v48, v49, v50")
        A("v_max_f32 v10, v10, v51")
        A("v_cmp_gt_f32 vcc, v10, v14")
        A("s_cbranch_vccnz L_rare")
        LB("L_back")
        pprep(48)
        A("s_waitcnt vmcnt(0) lgkmcnt(0)")
        take_ticket()
        issue('k', 2, "s78")
        pv(3)
        issue('v', 3, "s78")
        A("s_cmp_lg_u32 s77, 0")
        A("s_cbranch_scc1 L_dyn")
        A("s_branch L_dyn_done")
        LB("L_rare")
        A("v_max_f32 v10, v10, v14")
        A("v_mov_b32 v56, v10")
        A("s_nop 1")
        A("v_permlane32_swap_b32 v56, v10")
        A("s_nop 1")
        A("v_max_f32 v10, v10, v56")
        A("v_mov_b32 v56, v10")
        A("s_nop 1")
        A("v_permlane16_swap_b32 v56, v10")
        A("s_nop 1")
        A("v_max_f32 v10, v10, v56")
        A("v_sub_f32 v56, v14, v10")
        A("v_mul_f32 v56, s59, v56")
        A("v_exp_f32 v56, v56")
        A("v_mov_b32 v14, v10")
        A("v_mul_f32 v11, s59, v10")
        A("v_mul_f32 v15, v15, v56")
        A("v_readlane_b32 s60, v56, 0")
        A("v_readlane_b32 s61, v56, 8")
        A("s_mov_b32 s62, 0")
        A("s_mov_b32 s63, -1")
        A("v_mov_b32 v57, s60")
        A("s_mov_b64 exec, s[62:63]")
        A("v_mov_b32 v57, s61")
        A("s_mov_b64 exec, -1")
        for r in range(8):
            A(f"v_mul_f32 v{24+r}, v57, v{24+r}")
        A("s_branch L_back")
        LB("L_dyn_done")
    A("v_mov_b32 v10, v15")
    A("v_lshrrev_b32 v12, 1, v9")
    A("v_lshlrev_b32 v12, 10, v12")
    A("v_permlane32_swap_b32 v10, v15")
    A("v_lshl_add_u32 v12, v8, 5, v12")
    A("v_add_f32 v15, v10, v15")
    A("v_mov_b32 v10, v15")
    A("v_and_b32 v13, 1, v9")
    A("v_lshl_add_u32 v12, v13, 4, v12")
    A("v_permlane16_swap_b32 v10, v15")
    A("s_lshl_b32 s58, s3, 11")
    A("v_add_u32 v12, s58, v12")
    A("v_add_f32 v15, v10, v15")
    A("s_lshl_b32 s58, s3, 4")
    A("v_and_b32 v13, 8, v1")
    A("v_add_u32 v13, s58, v13")
    A(f"ds_write_b128 v12, v[24:27] offset:{L_O}")
    A(f"ds_write_b128 v12, v[28:31] offset:{L_O+512}")
    A("s_mov_b64 exec, 0x101")
    A(f"ds_write_b64 v13, v[14:15] offset:{L_ML}")
    A("s_mov_b64 exec, -1")
    stamp(4)
    A("s_waitcnt lgkmcnt(0)")
    A("s_barrier")
    A("s_cmp_lg_u32 s3, 0")
    A("s_cbranch_scc1 L_fin")
    A("s_cmp_ge_u32 s31, 28")
    A("s_cbranch_scc1 L_fin")
    srd(44, 22, 23, 1792)
    A("v_lshrrev_b32 v10, 2, v1")
    A("v_lshlrev_b32 v10, 11, v10")
    A("v_and_b32 v11, 3, v1")
    A("v_lshl_add_u32 v10, v11, 4, v10")
    A("s_lshl_b32 s58, s30, 18")
    A("s_lshl_b32 s61, s31, 6")
    A("s_add_u32 s58, s58, s61")
    A(f"s_add_u32 s58, s58, {OB2}")
    A(f"s_mov_b32 s60, {spin_max}")
    for t in range(8):
        A(f"s_mov_b64 s[{64+2*t}:{65+2*t}], -1")
    A("s_barrier")
    LB("L_poll2")
    for t in range(8):
        A(f"s_mov_b64 exec, s[{64+2*t}:{65+2*t}]")
        A(f"s_cbranch_execz L_p2s{t}")
        A(f"s_add_u32 s61, s58, {t*32768}")
        A(f"buffer_load_dwordx4 v[{64+4*t}:{67+4*t}], v10, s[40:43], s61 offen sc1")
        LB(f"L_p2s{t}")
    A("s_mov_b64 exec, -1")
    A("s_waitcnt vmcnt(0)")
    for t in range(8):
        A(f"v_max3_u32 v{12+(t&1)}, v{64+4*t}, v{65+4*t}, v{66+4*t}")
        A(f"v_max_u32 v{12+(t&1)}, v{12+(t&1)}, v{67+4*t}")
        A(f"v_cmp_eq_u32 s[{64+2*t}:{65+2*t}], -1, v{12+(t&1)}")
    A("s_or_b64 s[62:63], s[64:65], s[66:67]")
    for t in range(2, 8):
        A(f"s_or_b64 s[62:63], s[62:63], s[{64+2*t}:{65+2*t}]")
    A("s_cbranch_scc0 L_poll2_done")
    A(f"s_sleep {sl2}")
    A("s_sub_u32 s60, s60, 1")
    A("s_cmp_lg_u32 s60, 0")
    A("s_cbranch_scc1 L_poll2")
    LB("L_poll2_done")
    stamp(5)
    for step in (16, 8, 4):
        for k in range(step):
            A(f"v_add_f32 v{64+k}, v{64+k}, v{64+step+k}")
    A("s_nop 1")
    A("v_permlane32_swap_b32 v64, v66")
    A("v_permlane32_swap_b32 v65, v67")
    A("s_nop 1")
    A("v_add_f32 v64, v64, v66")
    A("v_add_f32 v65, v65, v67")
    A("v_mov_b32 v66, v64")
    A("v_mov_b32 v67, v65")
    A("s_nop 1")
    A("v_permlane16_swap_b32 v66, v64")
    A("v_permlane16_swap_b32 v67, v65")
    A("s_nop 1")
    A("v_add_f32 v64, v64, v66")
    A("v_add_f32 v65, v65, v67")
    A("s_nop 1")
    A(f"v_add_f32_dpp v64, v64, v64 row_ror:8 {DPP}")
    A(f"v_add_f32_dpp v65, v65, v65 row_ror:8 {DPP}")
    A("s_nop 1")
    A(f"v_add_f32_dpp v64, v64, v64 row_ror:4 {DPP}")
    A(f"v_add_f32_dpp v65, v65, v65 row_ror:4 {DPP}")
    A("v_lshrrev_b32 v12, 5, v1")
    A("v_lshlrev_b32 v12, 2, v12")
    A("v_lshl_add_u32 v12, v11, 3, v12")
    A("v_cvt_pk_bf16_f32 v64, v64, v65")
    A("s_mul_i32 s58, s30, 896")
    A("s_lshl_b32 s61, s31, 5")
    A("s_add_u32 s58, s58, s61")
    A("s_mov_b32 s60, 15")
    A("s_mov_b32 s61, 15")
    A("s_mov_b64 exec, s[60:61]")
    A("buffer_store_dword v64, v12, s[44:47], s58 offen")
    A("s_mov_b64 exec, -1")
    stamp(6)
    if prof == 2: dump_dbg([(6,4)])
    LB("L_fin")
    dump_stamps("stream")
    A("s_endpgm")

    LB("L_service")
    A("s_mul_i32 s60, s30, 896")
    A("s_add_u32 s44, s4, s60")
    A("s_addc_u32 s45, s5, 0")
    A("s_mov_b32 s46, 896")
    A("s_mov_b32 s47, 0x00020000")
    A("s_mov_b32 s51, 0x00020000")
    for k in range(4):
        A(f"v_mov_b32 v{48+k}, -1")
    A("v_lshlrev_b32 v14, 4, v1")
    A("s_lshl_b32 s57, s2, 12")
    A(f"s_add_u32 s57, s57, {OB1}")
    A("s_lshl_b32 s58, s2, 11")
    A(f"s_add_u32 s58, s58, {OB2}")
    for k in range(3):
        A(f"buffer_store_dwordx4 v[48:51], v14, s[40:43], s57 offen offset:{1024*k} sc1")
    for k in range(2):
        A(f"buffer_store_dwordx4 v[48:51], v14, s[40:43], s58 offen offset:{1024*k} sc1")
    A("v_mov_b32 v15, 0")
    A(f"ds_write_b32 v15, v15 offset:{L_FLAG}")
    A("s_cmp_lg_u32 s29, 0")
    A("s_cbranch_scc1 L_notinit")
    A("s_lshl_b32 s60, s28, 12")
    A(f"s_add_u32 s60, s60, {TICK}")
    A("s_mov_b64 exec, 1")
    A("buffer_store_dword v15, v15, s[40:43], s60 offen sc1")
    A("s_mov_b64 exec, -1")
    LB("L_notinit")
    A("s_mov_b32 s60, 0x05040100")
    A("s_mov_b32 s61, 0x07060302")
    A("s_mov_b32 s62, 0x000f000f")
    A("s_mov_b32 s63, 0x000f000f")
    stamp(1)
    A("s_waitcnt lgkmcnt(0)")
    A("s_barrier")
    for w in range(4):
        A(f"ds_read_b64 v[{16+2*w}:{17+2*w}], v12 offset:{L_QP+128*w}")
    A("s_waitcnt vmcnt(5)")
    A("v_add_u32 v72, 0x10000, v72")
    A("v_add_u32 v73, 0x10000, v73")
    A("v_and_b32 v72, 0xffff0000, v72")
    A("v_and_b32 v73, 0xffff0000, v73")
    A("s_waitcnt lgkmcnt(0)")
    A("v_add_f32 v16, v16, v18")
    A("v_add_f32 v17, v17, v19")
    A("v_add_f32 v20, v20, v22")
    A("v_add_f32 v21, v21, v23")
    A("v_add_f32 v16, v16, v20")
    A("v_add_f32 v17, v17, v21")
    A("v_cvt_pk_bf16_f32 v16, v16, 0")
    A("v_cvt_pk_bf16_f32 v17, v17, 0")
    A("v_or_b32 v72, v72, v16")
    A("v_or_b32 v73, v73, v17")
    A("s_mov_b64 exec, s[62:63]")
    A(f"buffer_store_dwordx2 v[72:73], v12, s[40:43], s59 offen offset:{QBOX} sc1")
    A("s_mov_b64 exec, -1")
    stamp(2)
    A("s_lshl_b32 s65, s30, 6")
    A("s_add_u32 s65, s65, 128")
    A("s_and_b32 s72, s28, 7")
    A("s_lshl_b32 s72, s72, 3")
    A("s_lshl_b64 s[68:69], 1, s72")
    A("s_mov_b32 s59, 0")
    A("s_mov_b32 s66, 0x10000")
    LB("L_pollq")
    A(f"buffer_load_dwordx4 v[76:79], v10, s[40:43], s56 offen offset:{QBOX} sc1")
    A(f"buffer_load_dwordx4 v[80:83], v10, s[40:43], s56 offen offset:{QBOX+16} sc1")
    A("s_waitcnt vmcnt(0)")
    A("s_cmp_lg_u32 s59, 0")
    A("s_cbranch_scc1 L_pollq_arrived")
    A("s_atomic_add_x2 s[68:69], s[24:25], s65")
    LB("L_pollq_arrived")
    for k in range(8):
        A(f"v_xor_b32 v{84+k}, v{64+k}, v{76+k}")
    A("v_min3_u32 v84, v84, v85, v86")
    A("v_min3_u32 v87, v87, v88, v89")
    A("v_min3_u32 v84, v84, v90, v91")
    A("v_min_u32 v84, v84, v87")
    A("v_cmp_gt_u32 vcc, s66, v84")
    A("s_cbranch_vccz L_pollq_done")
    A("s_mov_b64 exec, vcc")
    A("s_add_u32 s59, s59, 1")
    A(f"s_sleep {slq}")
    A(f"s_cmp_lt_u32 s59, {fbk}")
    A("s_cbranch_scc1 L_pollq")
    A("s_mov_b64 s[70:71], 0")
    A("s_atomic_add_x2 s[70:71], s[24:25], s65 glc")
    A("s_waitcnt lgkmcnt(0)")
    A("s_lshr_b64 s[70:71], s[70:71], s72")
    A("s_and_b32 s70, s70, 0xff")
    A("s_cmp_ge_u32 s70, 16")
    A("s_cselect_b32 s66, 0, s66")
    A(f"s_cmp_lt_u32 s59, {spin_max}")
    A("s_cbranch_scc1 L_pollq")
    LB("L_pollq_done")
    A("s_mov_b64 exec, -1")
    stamp(3)
    for k in range(4):
        A(f"v_perm_b32 v{48+k}, v{77+2*k}, v{76+2*k}, s60")
    A(f"ds_write_b128 v14, v[48:51] offset:{L_Q}")
    A("s_waitcnt lgkmcnt(0)")
    A("s_barrier")
    stamp(4)
    make_masks(56, 57)
    A("s_and_b32 s66, s31, 7")
    A("s_mul_i32 s66, s66, 14")
    A("s_lshr_b32 s67, s31, 3")
    A("s_add_u32 s66, s66, s67")
    A("s_cmp_lt_u32 s31, 112")
    A(f"s_cselect_b32 s59, {448*1792*2}, 0")
    A("s_mov_b32 s48, s16"); A("s_mov_b32 s49, s17"); A("s_mov_b32 s50, s59")
    srd(32, 18, 19, "s59")
    srd(36, 20, 21, 896)
    A("v_lshrrev_b32 v10, 1, v1")
    A("v_and_b32 v11, 1, v1")
    A("v_mul_u32_u24 v12, 28, v10")
    A(f"v_mul_u32_u24 v13, {14*3584}, v10")
    A("v_lshl_add_u32 v13, v11, 4, v13")
    A(f"buffer_load_dwordx4 v[{XR}:{XR+3}], v12, s[44:47], 0 offen")
    A(f"buffer_load_dwordx3 v[{XR+4}:{XR+6}], v12, s[44:47], 0 offen offset:16")
    A("buffer_load_dwordx4 v[40:43], v14, s[44:47], 0 offen")
    A("buffer_load_dwordx4 v[44:47], v14, s[36:39], 0 offen")
    A("s_lshl_b32 s56, s66, 5")
    for t in range(14):
        A(f"buffer_load_dwordx4 v[{64+4*t}:{67+4*t}], v13, s[48:51], s56 offen nt")
        A("s_add_u32 s56, s56, 3584")
    A("v_mul_u32_u24 v12, 3584, v9")
    A("v_lshl_add_u32 v12, v8, 4, v12")
    A(f"s_mul_i32 s56, s66, {16*896}")
    for t in range(4):
        for cb in range(4):
            b = 128 + 16*t + 4*cb
            A(f"buffer_load_dwordx4 v[{b}:{b+3}], v12, s[32:35], s56 offen offset:{t*896+cb*256} nt")
    for k in range(8):
        A(f"v_mov_b32 v{ACC+k}, 0")
    matvec_pairs(7, 64, XR, 16)
    A("s_nop 1")
    for k in range(2):
        A(f"v_add_f32_dpp v{ACC+k}, v{ACC+k}, v{ACC+k} row_ror:2 {DPP}")
    A(f"s_mov_b32 s59, {f2u(-math.log2(math.e)):#x}")
    for k in range(2):
        A(f"v_cvt_pk_bf16_f32 v{ACC+k}, 0, v{ACC+k}")
    for k in range(2):
        A(f"v_mul_f32 v{ACC+2+k}, s59, v{ACC+k}")
    for k in range(2):
        A(f"v_exp_f32 v{ACC+2+k}, v{ACC+2+k}")
    A("s_nop 0")
    for k in range(2):
        A(f"v_add_f32 v{ACC+2+k}, 1.0, v{ACC+2+k}")
    for k in range(2):
        A(f"v_rcp_f32 v{ACC+2+k}, v{ACC+2+k}")
    A("s_nop 0")
    for k in range(2):
        A(f"v_mul_f32 v{ACC+k}, v{ACC+k}, v{ACC+2+k}")
    A("v_lshlrev_b32 v12, 5, v11")
    A("v_lshl_add_u32 v12, v9, 3, v12")
    A("s_mov_b32 s62, 0x00030003")
    A("s_mov_b32 s63, 0x00030003")
    A("s_mov_b64 exec, s[62:63]")
    A(f"ds_write_b64 v12, v[{ACC}:{ACC+1}] offset:{L_H}")
    A("s_mov_b64 exec, -1")
    A("v_lshlrev_b32 v12, 4, v9")
    A("s_waitcnt lgkmcnt(0)")
    A(f"ds_read_b128 v[{ACC}:{ACC+3}], v12 offset:{L_H}")
    for k in range(4):
        A(f"v_lshlrev_b32 v52, 16, v{40+k}")
        A(f"v_lshlrev_b32 v53, 16, v{44+k}")
        A(f"v_and_b32 v54, 0xffff0000, v{40+k}")
        A(f"v_and_b32 v55, 0xffff0000, v{44+k}")
        A("v_mul_f32 v52, v52, v53")
        A("v_mul_f32 v54, v54, v55")
        A("v_cvt_pk_bf16_f32 v52, 0, v52")
        A("v_cvt_pk_bf16_f32 v54, 0, v54")
        if k == 0:
            A("v_add_f32 v56, v52, v54")
        else:
            A("v_add_f32 v56, v56, v52")
            A("v_add_f32 v56, v56, v54")
    for rr in (8, 4, 2, 1):
        A("s_nop 1")
        A(f"v_add_f32_dpp v56, v56, v56 row_ror:{rr} {DPP}")
    A("v_mov_b32 v57, v56")
    A("s_nop 1")
    A("v_permlane32_swap_b32 v57, v56")
    A("s_nop 1")
    A("v_add_f32 v56, v56, v57")
    A("v_mov_b32 v57, v56")
    A("s_nop 1")
    A("v_permlane16_swap_b32 v57, v56")
    A("s_nop 1")
    A("v_add_f32 v56, v56, v57")
    A("v_cvt_pk_bf16_f32 v56, 0, v56")
    A("v_mul_f32 v56, s59, v56")
    A("v_exp_f32 v56, v56")
    A("s_nop 0")
    A("v_add_f32 v56, 1.0, v56")
    A("v_rcp_f32 v56, v56")
    A("s_nop 0")
    A("v_cvt_pk_bf16_f32 v2, 0, v56")
    A("v_sub_f32 v3, 1.0, v2")
    A("v_cvt_pk_bf16_f32 v3, 0, v3")
    A("s_waitcnt lgkmcnt(0) vmcnt(0)")
    for t in range(4):
        A(f"v_cvt_pk_bf16_f32 v{ACC+t}, v{ACC+t}, v{ACC+t}")
    for t in range(4):
        for k in range(4):
            A(f"v_and_b32 v{24+4*t+k}, v{ACC+t}, v{4+k}")
    A("s_nop 1")
    for t in range(4):
        for cb in range(4):
            b = 128 + 16*t + 4*cb
            d = 40 + 4*cb
            c = "0" if t == 0 else f"v[{d}:{d+3}]"
            A(f"v_mfma_f32_16x16x32_bf16 v[{d}:{d+3}], v[{24+4*t}:{27+4*t}], v[{b}:{b+3}], {c}")
    srd(32, 12, 13, 4096*448*2)
    A("v_mul_u32_u24 v12, 7168, v9")
    A("v_lshl_add_u32 v12, v8, 4, v12")
    A(f"s_mul_i32 s56, s31, {32*896}")
    A("s_nop 4")
    for t in range(8):
        if t == 4:
            A(f"s_add_u32 s56, s56, {4*896}")
        for cb in range(4):
            b = 128 + 16*t + 4*cb
            A(f"buffer_load_dwordx4 v[{b}:{b+3}], v12, s[32:35], s56 offen offset:{(t&3)*896+cb*256} nt")
    for k in range(16):
        A(f"v_mul_f32 v{40+k}, v3, v{40+k}")
    A(f"s_mov_b32 s59, {f2u(C_SCALE):#x}")
    A("v_lshlrev_b32 v10, 5, v1")
    A("v_lshrrev_b32 v11, 5, v1")
    A("v_lshlrev_b32 v11, 3, v11")
    A("v_lshlrev_b32 v12, 12, v8")
    A("v_lshl_add_u32 v13, v9, 5, v12")
    A("s_lshl_b32 s60, s28, 16")
    A(f"s_add_u32 s60, s60, {OB1}")
    A("s_lshr_b32 s61, s29, 3")
    A("s_lshl_b32 s61, s61, 3")
    A("s_add_u32 s61, s61, s60")
    A("s_lshl_b32 s62, s29, 7")
    A("s_add_u32 s60, s60, s62")
    A("v_lshlrev_b32 v14, 5, v8")
    A("v_lshl_add_u32 v14, v9, 4, v14")
    A(f"s_mov_b32 s56, {spin_max}")
    A("s_mov_b32 s72, 0x10101010")
    A("s_mov_b32 s73, 0x10101010")
    LB("L_pollg")
    A("s_mov_b64 s[70:71], 0")
    A("s_atomic_add_x2 s[70:71], s[24:25], s65 glc")
    A("s_waitcnt lgkmcnt(0)")
    A("s_cmp_eq_u64 s[70:71], s[72:73]")
    A("s_cbranch_scc1 L_pollg_done")
    A("s_sleep 16")
    A("s_sub_u32 s56, s56, 1")
    A("s_cmp_lg_u32 s56, 0")
    A("s_cbranch_scc1 L_pollg")
    LB("L_pollg_done")
    A("v_mov_b32 v16, 0")
    A("v_mov_b32 v17, 1")
    A(f"ds_write_b32 v16, v17 offset:{L_FLAG}")
    A("s_waitcnt vmcnt(0) lgkmcnt(0)")
    A("s_barrier")
    stamp(5)
    if prof: A("s_waitcnt lgkmcnt(0)")
    for w in range(4):
        A(f"ds_read_b64 v[{56+2*w}:{57+2*w}], v11 offset:{L_ML+16*w}")
    for w in range(4):
        A(f"ds_read_b128 v[{64+8*w}:{67+8*w}], v10 offset:{L_O+2048*w}")
        A(f"ds_read_b128 v[{68+8*w}:{71+8*w}], v10 offset:{L_O+2048*w+16}")
    A("s_waitcnt lgkmcnt(8)")
    A("v_max3_f32 v16, v56, v58, v60")
    A("v_max_f32 v16, v16, v62")
    for w in range(4):
        A(f"v_sub_f32 v{56+2*w}, v{56+2*w}, v16")
    for w in range(4):
        A(f"v_mul_f32 v{56+2*w}, s59, v{56+2*w}")
    for w in range(4):
        A(f"v_exp_f32 v{56+2*w}, v{56+2*w}")
    A("s_nop 0")
    A("v_mul_f32 v17, v56, v57")
    for w in range(1, 4):
        A(f"v_fmac_f32 v17, v{56+2*w}, v{57+2*w}")
    A("s_waitcnt lgkmcnt(0)")
    for k in range(8):
        A(f"v_mul_f32 v{64+k}, v56, v{64+k}")
    for w in range(1, 4):
        for k in range(8):
            A(f"v_fmac_f32 v{64+k}, v{56+2*w}, v{64+8*w+k}")
    A("buffer_store_dwordx4 v[64:67], v10, s[40:43], s57 offen sc1")
    A("buffer_store_dwordx4 v[68:71], v10, s[40:43], s57 offen offset:16 sc1")
    A("s_mov_b32 s62, 1")
    A("s_mov_b32 s63, 1")
    A("s_mov_b64 exec, s[62:63]")
    A("buffer_store_dwordx2 v[16:17], v11, s[40:43], s57 offen offset:2048 sc1")
    A("s_mov_b64 exec, -1")
    A(f"s_mov_b32 s56, {spin_max}")
    LB("L_poll1")
    A("buffer_load_dwordx4 v[72:75], v13, s[40:43], s60 offen sc1")
    A("buffer_load_dwordx4 v[76:79], v13, s[40:43], s60 offen offset:16 sc1")
    A("buffer_load_dwordx2 v[80:81], v12, s[40:43], s61 offen offset:2048 sc1")
    A("s_waitcnt vmcnt(0)")
    A("v_max3_u32 v18, v72, v73, v74")
    A("v_max3_u32 v19, v75, v76, v77")
    A("v_max3_u32 v18, v18, v78, v79")
    A("v_max3_u32 v19, v19, v80, v81")
    A("v_max_u32 v18, v18, v19")
    A("v_cmp_eq_u32 vcc, -1, v18")
    A("s_cbranch_vccz L_poll1_done")
    A("s_mov_b64 exec, vcc")
    A(f"s_sleep {sl1}")
    A("s_sub_u32 s56, s56, 1")
    A("s_cmp_lg_u32 s56, 0")
    A("s_cbranch_scc1 L_poll1")
    LB("L_poll1_done")
    A("s_mov_b64 exec, -1")
    A("s_barrier")
    stamp(6)
    A(f"v_max_f32_dpp v18, v80, v80 row_ror:8 {DPP}")
    for rr in (4, 2, 1):
        A("s_nop 1")
        A(f"v_max_f32_dpp v18, v18, v18 row_ror:{rr} {DPP}")
    A("v_sub_f32 v18, v80, v18")
    A("v_mul_f32 v18, s59, v18")
    A("v_exp_f32 v18, v18")
    A("s_nop 0")
    A("v_mul_f32 v80, v18, v81")
    for k in range(8):
        A(f"v_mul_f32 v{72+k}, v18, v{72+k}")
    for rr in (8, 4, 2, 1):
        for k in range(9):
            A(f"v_add_f32_dpp v{72+k}, v{72+k}, v{72+k} row_ror:{rr} {DPP}")
    A("v_rcp_f32 v80, v80")
    A("s_nop 0")
    for k in range(8):
        A(f"v_mul_f32 v{72+k}, v80, v{72+k}")
    for k in range(8):
        A(f"v_cvt_pk_bf16_f32 v{72+k}, v{72+k}, v{72+k}")
    for t in range(8):
        for k in range(4):
            A(f"v_and_b32 v{88+4*t+k}, v{72+t}, v{4+k}")
        if t >= 1:
            tt = t - 1
            for cb in range(4):
                b = 128 + 16*tt + 4*cb
                d = 16 + 4*cb
                c = "0" if tt == 0 else f"v[{d}:{d+3}]"
                A(f"v_mfma_f32_16x16x32_bf16 v[{d}:{d+3}], v[{88+4*tt}:{91+4*tt}], v[{b}:{b+3}], {c}")
    tt = 7
    for cb in range(4):
        b = 128 + 16*tt + 4*cb
        d = 16 + 4*cb
        A(f"v_mfma_f32_16x16x32_bf16 v[{d}:{d+3}], v[{88+4*tt}:{91+4*tt}], v[{b}:{b+3}], v[{d}:{d+3}]")
    A("s_mov_b32 s62, -1")
    A("s_mov_b32 s63, 0")
    A("s_nop 3")
    for cb in range(4):
        for k in range(4):
            A(f"v_fmac_f32 v{40+4*cb+k}, v2, v{16+4*cb+k}")
        if cb == 0:
            A("s_mov_b64 exec, s[62:63]")
        if cb == 3:
            A("s_mov_b32 s62, 0x00ff00ff")
            A("s_mov_b64 exec, s[62:63]")
        A(f"buffer_store_dwordx4 v[{40+4*cb}:{43+4*cb}], v14, s[40:43], s58 offen offset:{512*cb} sc1")
    A("s_mov_b64 exec, -1")
    stamp(7)
    dump_stamps("service")
    LB("L_end")
    A("s_endpgm")
    L.append('.section .rodata,"a"')
    L.append(".p2align 6")
    L.append(f".amdhsa_kernel {NAME}_kernel")
    L.append("  .amdhsa_next_free_vgpr 256")
    L.append("  .amdhsa_next_free_sgpr 96")
    L.append("  .amdhsa_accum_offset 256")
    L.append("  .amdhsa_group_segment_fixed_size 0")
    L.append("  .amdhsa_kernarg_size 96")
    L.append("  .amdhsa_user_sgpr_count 2")
    L.append("  .amdhsa_user_sgpr_kernarg_segment_ptr 1")
    L.append("  .amdhsa_system_sgpr_workgroup_id_x 1")
    L.append(".end_amdhsa_kernel")
    return "\n".join(L) + "\n"


if __name__ == "__main__":
    out = sys.argv[1]
    kw = {}
    for a in sys.argv[2:]:
        k, v = a.split("=")
        kw[k] = int(v)
    open(out, "w").write(gen(**kw))
```

```python
import sys, math

NAME = "gated_mix__gqa_block_cached__dense_activation_silu__decode"
HEADER = open("cdna_kernels/" + NAME + ".s.ref").read().split("; Override launch")[0]

QBOX = 0x0
TICK = 0x10000
OB1 = 0x40000
OB2 = 0x200000
STAMP = 0x20000000
L_Q = 0
L_S = 1024
L_O = L_S + 16384
L_ML = L_O + 8192
L_H = L_ML + 64
L_QP = L_H + 64
L_FLAG = L_QP + 512
LDS_BYTES = L_FLAG + 64

C_SCALE = (1.0 / 16.0) * math.log2(math.e)
import struct
def f2u(x): return struct.unpack("<I", struct.pack("<f", x))[0]


def gen(prof=0, NPRE=6, PFI=1, early=1, spin_max=200000, sl1=4, sl2=2, slq=1, fbk=4, late=4, NS=28, fl=0, bm='kkwwrtttttxxx', DEP=1, kw8=0, SB=64, nobg=0, nowq=0, noclr=0, ptile=0):
    L = []
    A = lambda s: L.append("  " + s)
    LB = lambda s: L.append(s + ":")
    nstamp = [0]

    def stamp(k, svc=[False]):
        if k == 'service':
            svc[0] = True
            return
        if ptile and not svc[0] and k not in (0, 7, 2):
            return
        if ptile and not svc[0] and k == 2:
            k = 6
        if prof:
            A(f"s_memrealtime s[{80+2*k}:{81+2*k}]")

    def dump_dbg(pairs):
        A("s_waitcnt lgkmcnt(0)")
        srd(52, 24, 25, 256)
        A("v_mov_b32 v56, 0")
        for (k, sp) in pairs:
            A(f"s_not_b32 s56, s{80+2*k}")
            A(f"v_writelane_b32 v56, s56, {2*sp}")
            A(f"v_writelane_b32 v56, s{80+2*k}, {2*sp+1}")
        A("v_lshlrev_b32 v57, 2, v1")
        A("s_mov_b64 exec, 0xffff")
        A("buffer_atomic_umax v56, v57, s[52:55], 0 offen")
        A("s_mov_b64 exec, -1")

    def dump_stamps(kind=None):
        if not prof:
            return
        if prof == 2:
            dump_dbg({"stream": [(0,0),(2,1),(3,2),(4,3)], "service": [(2,5),(3,6),(6,7)]}[kind])
            return
        A("s_waitcnt lgkmcnt(0)")
        A("s_lshl_b32 s56, s2, 3")
        A("s_add_u32 s56, s56, s3")
        A("s_lshl_b32 s56, s56, 6")
        A(f"s_add_u32 s56, s56, {STAMP}")
        A("s_mov_b64 exec, 1")
        A("v_mov_b32 v60, 0")
        for q in range(4):
            for j in range(4):
                A(f"v_mov_b32 v{56+j}, s{80+4*q+j}")
            A(f"buffer_store_dwordx4 v[56:59], v60, s[40:43], s56 offen offset:{16*q}")
            A("s_nop 1")
        A("s_mov_b64 exec, -1")

    def srd(d, lo, hi, n):
        A(f"s_mov_b32 s{d}, s{lo}")
        A(f"s_mov_b32 s{d+1}, s{hi}")
        A(f"s_mov_b32 s{d+2}, {n}")
        A(f"s_mov_b32 s{d+3}, 0x00020000")

    DPP = "row_mask:0xf bank_mask:0xf"
    ACC = 16
    XR = 32
    def matvec_pairs(npairs, wbase, xbase, tail_ops):
        for u in range(npairs):
            A(f"s_waitcnt vmcnt({2*npairs - (2*u+2) + tail_ops})")
            w0 = wbase + 8*u; w1 = w0 + 4
            for k in range(4):
                A(f"v_perm_b32 v{52+k}, v{w1+k}, v{w0+k}, s60")
                A(f"v_perm_b32 v{56+k}, v{w1+k}, v{w0+k}, s61")
            for k in range(4):
                A(f"v_dot2c_f32_bf16 v{ACC+2*k}, v{52+k}, v{xbase+u}")
                A(f"v_dot2c_f32_bf16 v{ACC+2*k+1}, v{56+k}, v{xbase+u}")
        A("s_nop 3")
        for k in range(4):
            A(f"v_permlane32_swap_b32 v{ACC+k}, v{ACC+4+k}")
        A("s_nop 1")
        for k in range(4):
            A(f"v_add_f32 v{ACC+k}, v{ACC+k}, v{ACC+4+k}")
        A("s_nop 1")
        for k in range(2):
            A(f"v_permlane16_swap_b32 v{ACC+k}, v{ACC+2+k}")
        A("s_nop 1")
        for k in range(2):
            A(f"v_add_f32 v{ACC+k}, v{ACC+k}, v{ACC+2+k}")
        for rr in (8, 4):
            A("s_nop 1")
            for k in range(2):
                A(f"v_add_f32_dpp v{ACC+k}, v{ACC+k}, v{ACC+k} row_ror:{rr} {DPP}")
    def make_masks(t0, t1):
        A(f"v_and_b32 v{t0}, 1, v1")
        A(f"v_lshlrev_b32 v{t0}, 4, v{t0}")
        A(f"v_mov_b32 v{t1}, 0xffff")
        A(f"v_lshlrev_b32 v{t1}, v{t0}, v{t1}")
        A(f"v_bfe_u32 v{t0}, v1, 1, 2")
        for k in range(4):
            A(f"v_cmp_eq_u32 vcc, {k}, v{t0}")
            A("s_nop 1")
            A(f"v_cndmask_b32 v{4+k}, 0, v{t1}, vcc")
    L.append(HEADER.rstrip("\n"))
    L.append(f"; @launch grid=(256,1,1) block=(320,1,1) lds={LDS_BYTES}")
    L.append('.amdgcn_target "amdgcn-amd-amdhsa--gfx950"')
    L.append(".text")
    L.append(f".globl {NAME}_kernel")
    L.append(".p2align 8")
    L.append(f".type {NAME}_kernel,@function")
    LB(f"{NAME}_kernel")
    A("s_cmp_ge_u32 s2, 256")
    A("s_cbranch_scc1 L_end")
    A("s_load_dwordx16 s[4:19], s[0:1], 0")
    A("s_load_dwordx8 s[20:27], s[0:1], 64")
    if prof:
        for k in range(8):
            A(f"s_mov_b64 s[{80+2*k}:{81+2*k}], 0")
    stamp(0)
    A("v_lshrrev_b32 v2, 6, v0")
    A("v_and_b32 v1, 63, v0")
    A("v_readfirstlane_b32 s3, v2")
    A("s_lshr_b32 s28, s2, 4")
    A("s_and_b32 s29, s2, 15")
    A("s_lshr_b32 s30, s2, 7")
    A("s_and_b32 s31, s2, 127")
    A("s_and_b32 s64, s29, 7")
    A("s_lshl_b32 s64, s64, 1")
    A("s_lshr_b32 s65, s29, 3")
    A("s_add_u32 s64, s64, s65")
    A("s_andn2_b32 s65, s31, 15")
    A("s_add_u32 s64, s64, s65")
    A("v_and_b32 v8, 15, v1")
    A("v_lshrrev_b32 v9, 4, v1")
    A("s_waitcnt lgkmcnt(0)")
    srd(40, 26, 27, "0x40000000")
    A("s_cmp_lg_u32 s3, 4")
    A("s_cbranch_scc1 L_stream")
    A("v_lshlrev_b32 v10, 5, v1")
    A("s_lshl_b32 s56, s28, 11")
    A(f"buffer_load_dwordx4 v[64:67], v10, s[40:43], s56 offen offset:{QBOX} sc1")
    A(f"buffer_load_dwordx4 v[68:71], v10, s[40:43], s56 offen offset:{QBOX+16} sc1")
    A("v_and_b32 v11, 3, v1")
    A("v_lshlrev_b32 v12, 5, v11")
    A("v_lshl_add_u32 v12, v9, 3, v12")
    A("s_and_b32 s59, s64, 15")
    A("s_lshl_b32 s59, s59, 7")
    A("s_add_u32 s59, s59, s56")
    A(f"buffer_load_dwordx2 v[72:73], v12, s[40:43], s59 offen offset:{QBOX} sc1")
    A("s_branch L_service")
    LB("L_stream")

    srd(32, 6, 7, "0x10000000")
    srd(36, 8, 9, "0x10000000")
    assert len(bm) == 13 and sorted(bm) == sorted('kkwwrtttttxxx')
    pos = {c: [11+i for i, ch in enumerate(bm) if ch == c] for c in 'kwrxt'}
    def runs(positions):
        out = []
        for i, p in enumerate(positions):
            if out and out[-1][1] + out[-1][2] == p: out[-1][2] += 1
            else: out.append([i, p, 1])
        return out
    def deposit(dst, src, srcbit0, positions, tmp):
        for (sb, db, n) in runs(positions):
            A(f"s_bfe_u32 s{tmp}, s{src}, {(n << 16) | (sb + srcbit0):#x}")
            A(f"s_lshl_b32 s{tmp}, s{tmp}, {db}")
            A(f"s_or_b32 s{dst}, s{dst}, s{tmp}")
    A("s_lshl_b32 s56, s28, 24")
    deposit(56, 3, 0, pos['w'], 57)
    deposit(56, 29, 0, pos['x'], 57)
    deposit(56, 29, 3, pos['r'], 57)
    TM = sum(1 << p for p in pos['t'])
    def tstep():
        if len(runs(pos['t'])) == 1:
            A(f"s_add_u32 s57, s57, {1 << pos['t'][0]:#x}")
        else:
            A(f"s_or_b32 s57, s57, {(~TM) & 0xffffffff:#x}")
            A(f"s_add_u32 s57, s57, {1 << pos['t'][0]:#x}")
            A(f"s_and_b32 s57, s57, {TM:#x}")
            A("s_or_b32 s57, s57, s56")
    def vdeposit(dst, src, tmp):
        if pos['k'][1] == pos['k'][0] + 1:
            A(f"v_lshlrev_b32 v{dst}, {pos['k'][0]}, v{src}")
        else:
            A(f"v_and_b32 v{tmp}, 1, v{src}")
            A(f"v_lshrrev_b32 v{dst}, 1, v{src}")
            A(f"v_lshlrev_b32 v{dst}, {pos['k'][1]}, v{dst}")
            A(f"v_lshl_add_u32 v{dst}, v{tmp}, {pos['k'][0]}, v{dst}")
    A("v_lshrrev_b32 v3, 2, v8")
    vdeposit(2, 3, 10)
    A("v_lshl_add_u32 v2, v9, 6, v2")
    vdeposit(3, 9, 10)
    A("v_lshl_add_u32 v3, v8, 4, v3")
    A("v_and_b32 v10, 3, v1")
    A("v_lshl_add_u32 v2, v10, 4, v2")
    SLOT0 = 64
    def slot(sl, i): return SLOT0 + 32*sl + 4*i
    def issue(kind, sl, sreg):
        srdn = "s[32:35]" if kind == 'k' else "s[36:39]"
        va = "v2" if kind == 'k' else "v3"
        for i in range(8):
            b = slot(sl, i)
            A(f"buffer_load_dwordx4 v[{b}:{b+3}], {va}, {srdn}, {sreg} offen offset:{(i>>1)*512+(i&1)*256} {['nt','sc1 nt','sc0 sc1 nt','sc0 nt'][fl]}")
    A("s_mul_i32 s57, s30, 896")
    A("s_add_u32 s44, s4, s57")
    A("s_addc_u32 s45, s5, 0")
    A("s_mov_b32 s46, 896")
    A("s_mov_b32 s47, 0x00020000")
    srd(48, 10, 11, 0 if nowq else 448*4096*2)
    A("v_lshrrev_b32 v12, 2, v1")
    A("s_mul_i32 s57, s3, 14")
    A("v_cmp_gt_u32 vcc, 14, v12")
    A("v_add_u32 v12, s57, v12")
    A("v_mov_b32 v13, 0x4000")
    A("v_cndmask_b32 v12, v13, v12, vcc")
    A("v_lshlrev_b32 v13, 16, v12")
    A("v_lshl_add_u32 v13, v10, 4, v13")
    A("v_lshlrev_b32 v12, 4, v12")
    A(f"buffer_load_dwordx4 v[{XR}:{XR+3}], v12, s[44:47], 0 offen")
    A("s_lshl_b32 s57, s64, 6")
    WQB = slot(NPRE-1, 0)
    for t in range(8):
        A(f"buffer_load_dwordx4 v[{WQB+4*t}:{WQB+4*t+3}], v13, s[48:51], s57 offen nt")
        A("s_add_u32 s57, s57, 0x2000")
    A("s_mov_b32 s57, s56")
    for t in range(early):
        issue('k', t, "s57")
        tstep()
    A("s_mov_b32 s60, 0x05040100")
    A("s_mov_b32 s61, 0x07060302")
    for k in range(8):
        A(f"v_mov_b32 v{ACC+k}, 0")
    A("v_lshlrev_b32 v12, 5, v10")
    A("v_lshl_add_u32 v12, v9, 3, v12")
    A("s_lshl_b32 s58, s3, 7")
    A("v_add_u32 v12, s58, v12")
    matvec_pairs(4, WQB, XR, 8*early)
    A("s_mov_b32 s62, 0x000f000f")
    A("s_mov_b32 s63, 0x000f000f")
    A("s_mov_b64 exec, s[62:63]")
    A(f"ds_write_b64 v12, v[{ACC}:{ACC+1}] offset:{L_QP}")
    A("s_mov_b64 exec, -1")
    A("s_waitcnt lgkmcnt(0)")
    A("s_barrier")
    stamp(7)
    for t in range(early, NPRE):
        if t >= PFI:
            A(f"s_waitcnt vmcnt({8*(PFI-1)})")
        if ptile: A(f"s_memrealtime s[{80+2*t}:{81+2*t}]")
        issue('k', t, "s57")
        tstep()
        if t == early:
            A("v_bfe_u32 v12, v1, 3, 1")
            A("v_lshlrev_b32 v13, 2, v12")
            A("v_add_u32 v13, v13, v9")
            A("v_lshlrev_b32 v12, 9, v12")
            A("v_lshl_add_u32 v12, v9, 6, v12")
            A("v_lshl_add_u32 v12, v10, 4, v12")
            A("s_lshl_b32 s58, s3, 12")
            A(f"s_add_u32 s58, s58, {L_S}")
            A("v_lshlrev_b32 v13, 4, v13")
            A("v_add_u32 v13, s58, v13")
            make_masks(56, 57)
            A("v_mov_b32 v14, 0xff800000")
            A("v_mov_b32 v15, 0")
            for r in range(8):
                A(f"v_mov_b32 v{24+r}, 0")
            A(f"s_mov_b32 s59, {f2u(C_SCALE):#x}")
    stamp(1)
    A("s_barrier")
    A(f"ds_read_b128 v[16:19], v12 offset:{L_Q}")
    A(f"ds_read_b128 v[20:23], v12 offset:{L_Q+256}")
    stamp(2)
    A("s_waitcnt lgkmcnt(0)")

    def kproc(sl, soff, mid=None, dyn=False):
        for r in range(4):
            d = 32 + 4*r
            a0 = slot(sl, 2*r); a1 = slot(sl, 2*r+1)
            A(f"v_mfma_f32_16x16x32_bf16 v[{d}:{d+3}], v[{a0}:{a0+3}], v[16:19], 0")
            A(f"v_mfma_f32_16x16x32_bf16 v[{d}:{d+3}], v[{a1}:{a1+3}], v[20:23], v[{d}:{d+3}]")
        if mid: mid()
        else: A("s_nop 1")
        for r in range(4):
            d = 32 + 4*r
            s = 48 + r
            if r == 3: pass
            A(f"v_mov_b32_dpp v{s}, v{d} quad_perm:[0,0,0,0] {DPP}")
            A(f"v_add_f32_dpp v{s}, v{d+1}, v{s} quad_perm:[1,1,1,1] {DPP}")
            A(f"v_add_f32_dpp v{s}, v{d+2}, v{s} quad_perm:[2,2,2,2] {DPP}")
            A(f"v_add_f32_dpp v{s}, v{d+3}, v{s} quad_perm:[3,3,3,3] {DPP}")
            A(f"v_cvt_pk_bf16_f32 v{s}, 0, v{s}")
        if dyn:
            return
        A("v_max3_f32 v14, v14, v48, v49")
        A("v_max3_f32 v14, v14, v50, v51")
        A(f"ds_write_b128 v13, v[48:51] offset:{soff}")

    assert NPRE % 2 == 0 and NPRE >= 2
    for t in range(NPRE):
        later = (NPRE - 1 - t) + min(t, DEP)
        A(f"s_waitcnt vmcnt({min(63, 8*later)})")
        if t < DEP:
            def mid0():
                issue('k', t, "s57")
                tstep()
            kproc(t, t*128, mid0)
        else:
            kproc(t, t*128)
    A(f"v_add_u32 v13, {NPRE*128}, v13")
    NLOOP = (NS - NPRE - 2)//2
    A(f"s_mov_b32 s58, {NLOOP}")
    assert DEP == 1 or late >= 1
    def kstep(sl, soff, nxt):
        A(f"s_waitcnt vmcnt({8*(DEP-1)})")
        if late == 0:
            nxt()
            kproc(sl, soff)
        elif late == 1:
            kproc(sl, soff, nxt)
        else:
            kproc(sl, soff)
            if kw8: A("s_waitcnt lgkmcnt(0)")
            nxt()
    def nk(sl):
        def f():
            issue('k', sl, "s57")
            tstep()
        return f
    LB("L_kloop")
    kstep(0, 0, nk(2-DEP))
    kstep(1, 128, nk(DEP-1))
    A("v_add_u32 v13, 256, v13")
    A("s_sub_u32 s58, s58, 1")
    A("s_cmp_lg_u32 s58, 0")
    A("s_cbranch_scc1 L_kloop")
    def nv0():
        A("s_mov_b32 s57, s56")
        issue('v', 0, "s57")
        tstep()
    def nv1():
        issue('v', 1, "s57")
        tstep()
    if DEP == 1:
        kstep(0, 0, nk(1))
        kstep(1, 128, nv0)
    else:
        kstep(0, 0, nv0)
        kstep(1, 128, nv1)
    stamp(3)
    A(f"v_subrev_u32 v13, {(NS-2)*128}, v13")
    A("v_mov_b32 v10, v14")
    A("s_nop 1")
    A("v_permlane32_swap_b32 v10, v14")
    A("s_nop 1")
    A("v_max_f32 v14, v10, v14")
    A("v_mov_b32 v10, v14")
    A("s_nop 1")
    A("v_permlane16_swap_b32 v10, v14")
    A("s_nop 1")
    A("v_max_f32 v14, v10, v14")
    A("v_mul_f32 v11, s59, v14")
    A("s_waitcnt lgkmcnt(0)")
    A("ds_read_b128 v[48:51], v13")
    def pprep(sc):
        for r in range(4):
            A(f"v_fma_f32 v{sc+r}, v{sc+r}, s59, -v11")
        for r in range(4):
            A(f"v_exp_f32 v{sc+r}, v{sc+r}")
        A("s_nop 0")
        A(f"v_add_f32 v56, v{sc}, v{sc+1}")
        A(f"v_add_f32 v57, v{sc+2}, v{sc+3}")
        for r in range(4):
            A(f"v_cvt_pk_bf16_f32 v{sc+r}, v{sc+r}, v{sc+r}")
        A("v_add_f32 v56, v56, v57")
        A("v_add_f32 v15, v15, v56")
        for r in range(4):
            for k in range(4):
                A(f"v_and_b32 v{32+4*r+k}, v{sc+r}, v{4+k}")
    def pv(sl):
        for r in range(4):
            a = 32 + 4*r
            b0 = slot(sl, 2*r); b1 = slot(sl, 2*r+1)
            A(f"v_mfma_f32_16x16x32_bf16 v[24:27], v[{a}:{a+3}], v[{b0}:{b0+3}], v[24:27]")
            A(f"v_mfma_f32_16x16x32_bf16 v[28:31], v[{a}:{a+3}], v[{b1}:{b1+3}], v[28:31]")
    def vstep(sl, snext_off, nxt, pre=None):
        sc = 48 + 4*sl
        sn = 48 + 4*(1-sl)
        if late >= 3:
            cur_off = (snext_off - 128) if snext_off is not None else 128
            A("s_waitcnt vmcnt(0)")
            if late == 3:
                A(f"ds_read_b128 v[{sc}:{sc+3}], v13 offset:{cur_off}")
            A("s_waitcnt lgkmcnt(0)")
            if late == 4 and snext_off is not None:
                A(f"ds_read_b128 v[{sn}:{sn+3}], v13 offset:{snext_off}")
            if pre: pre()
            pprep(sc)
            A("s_nop 1")
            pv(sl)
            if nxt: nxt()
            return
        A("s_waitcnt lgkmcnt(0)")
        if snext_off is not None:
            A(f"ds_read_b128 v[{sn}:{sn+3}], v13 offset:{snext_off}")
        if pre: pre()
        pprep(sc)
        A(f"s_waitcnt vmcnt({8*(DEP-1)})")
        if nxt and late == 0: nxt()
        else: A("s_nop 0")
        pv(sl)
        if nxt and late >= 1: nxt()
    def nv(sl):
        def f():
            issue('v', sl, "s57")
            tstep()
        return f
    def req_ticket():
        A("s_mov_b32 s76, 1")
        A("s_atomic_add s76, s[74:75], 0 glc")
    nlab = [0]
    def take_ticket():
        A("s_lshl_b32 s78, s28, 24")
        deposit(78, 76, 0, sorted(pos['w'] + pos['r'] + pos['x']), 77)
        A(f"s_add_u32 s79, s76, {NS*64}")
        deposit(78, 79, 6, pos['t'], 77)
        A(f"s_cmp_lt_u32 s76, {(32-NS)*64}")
        A("s_cselect_b32 s34, 0x10000000, 0")
        A("s_cselect_b32 s38, 0x10000000, 0")
        A("s_cselect_b32 s77, 1, 0")
        nlab[0] += 1
        A(f"s_cbranch_scc0 L_notick{nlab[0]}")
        req_ticket()
        LB(f"L_notick{nlab[0]}")
    A(f"s_mov_b32 s58, {(NS-2*DEP)//2}")
    LB("L_vloop")
    vstep(0, 128, nv(2-DEP))
    vstep(1, 256, nv(DEP-1))
    A("v_add_u32 v13, 256, v13")
    A("s_sub_u32 s58, s58, 1")
    A("s_cmp_lg_u32 s58, 0")
    A("s_cbranch_scc1 L_vloop")
    if NS < 32:
        A("s_lshl_b32 s74, s28, 12")
        A(f"s_add_u32 s74, s74, {TICK}")
        A("s_add_u32 s74, s26, s74")
        A("s_addc_u32 s75, s27, 0")
        A("v_mov_b32 v10, 0")
        A(f"s_mov_b32 s58, {spin_max}")
        LB("L_flag")
        A(f"ds_read_b32 v56, v10 offset:{L_FLAG}")
        A("s_waitcnt lgkmcnt(0)")
        A("v_readfirstlane_b32 s76, v56")
        A("s_cmp_lg_u32 s76, 0")
        A("s_cbranch_scc1 L_flag_done")
        A("s_sleep 8")
        A("s_sub_u32 s58, s58, 1")
        A("s_cmp_lg_u32 s58, 0")
        A("s_cbranch_scc1 L_flag")
        LB("L_flag_done")
    if NS == 32:
        assert DEP == 1
        vstep(0, 128, nv(1))
        vstep(1, None, None)
    else:
        if DEP == 1:
            vstep(0, 128, nv(1), req_ticket)
            def first_dyn():
                issue('k', 2, "s78")
                issue('v', 3, "s78")
            vstep(1, None, first_dyn, take_ticket)
        else:
            vstep(0, 128, nv(0))
            vstep(1, 256, nv(1), req_ticket)
            vstep(0, 384, lambda: issue('k', 2, "s78"), take_ticket)
            vstep(1, None, lambda: issue('v', 3, "s78"))
        A("s_cmp_lg_u32 s77, 0")
        A("s_cbranch_scc0 L_dyn_done")
        LB("L_dyn")
        A("s_waitcnt vmcnt(8)")
        kproc(2, 0, None, True)
        A("v_max3_f32 v10, v48, v49, v50")
        A("v_max_f32 v10, v10, v51")
        A("v_cmp_gt_f32 vcc, v10, v14")
        A("s_cbranch_vccnz L_rare")
        LB("L_back")
        pprep(48)
        A("s_waitcnt vmcnt(0) lgkmcnt(0)")
        take_ticket()
        issue('k', 2, "s78")
        pv(3)
        issue('v', 3, "s78")
        A("s_cmp_lg_u32 s77, 0")
        A("s_cbranch_scc1 L_dyn")
        A("s_branch L_dyn_done")
        LB("L_rare")
        A("v_max_f32 v10, v10, v14")
        A("v_mov_b32 v56, v10")
        A("s_nop 1")
        A("v_permlane32_swap_b32 v56, v10")
        A("s_nop 1")
        A("v_max_f32 v10, v10, v56")
        A("v_mov_b32 v56, v10")
        A("s_nop 1")
        A("v_permlane16_swap_b32 v56, v10")
        A("s_nop 1")
        A("v_max_f32 v10, v10, v56")
        A("v_sub_f32 v56, v14, v10")
        A("v_mul_f32 v56, s59, v56")
        A("v_exp_f32 v56, v56")
        A("v_mov_b32 v14, v10")
        A("v_mul_f32 v11, s59, v10")
        A("v_mul_f32 v15, v15, v56")
        A("v_readlane_b32 s60, v56, 0")
        A("v_readlane_b32 s61, v56, 8")
        A("s_mov_b32 s62, 0")
        A("s_mov_b32 s63, -1")
        A("v_mov_b32 v57, s60")
        A("s_mov_b64 exec, s[62:63]")
        A("v_mov_b32 v57, s61")
        A("s_mov_b64 exec, -1")
        for r in range(8):
            A(f"v_mul_f32 v{24+r}, v57, v{24+r}")
        A("s_branch L_back")
        LB("L_dyn_done")
    A("v_mov_b32 v10, v15")
    A("v_lshrrev_b32 v12, 1, v9")
    A("v_lshlrev_b32 v12, 10, v12")
    A("v_permlane32_swap_b32 v10, v15")
    A("v_lshl_add_u32 v12, v8, 5, v12")
    A("v_add_f32 v15, v10, v15")
    A("v_mov_b32 v10, v15")
    A("v_and_b32 v13, 1, v9")
    A("v_lshl_add_u32 v12, v13, 4, v12")
    A("v_permlane16_swap_b32 v10, v15")
    A("s_lshl_b32 s58, s3, 11")
    A("v_add_u32 v12, s58, v12")
    A("v_add_f32 v15, v10, v15")
    A("s_lshl_b32 s58, s3, 4")
    A("v_and_b32 v13, 8, v1")
    A("v_add_u32 v13, s58, v13")
    A(f"ds_write_b128 v12, v[24:27] offset:{L_O}")
    A(f"ds_write_b128 v12, v[28:31] offset:{L_O+512}")
    A("s_mov_b64 exec, 0x101")
    A(f"ds_write_b64 v13, v[14:15] offset:{L_ML}")
    A("s_mov_b64 exec, -1")
    stamp(4)
    A("s_waitcnt lgkmcnt(0)")
    A("s_barrier")
    A("s_cmp_lg_u32 s3, 0")
    A("s_cbranch_scc1 L_fin")
    A("s_cmp_ge_u32 s31, 28")
    A("s_cbranch_scc1 L_fin")
    srd(44, 22, 23, 1792)
    A("v_lshrrev_b32 v10, 2, v1")
    A("v_lshlrev_b32 v10, 11, v10")
    A("v_and_b32 v11, 3, v1")
    A("v_lshl_add_u32 v10, v11, 4, v10")
    A("s_lshl_b32 s58, s30, 18")
    A("s_lshl_b32 s61, s31, 6")
    A("s_add_u32 s58, s58, s61")
    A(f"s_add_u32 s58, s58, {OB2}")
    A(f"s_mov_b32 s60, {spin_max}")
    for t in range(8):
        A(f"s_mov_b64 s[{64+2*t}:{65+2*t}], -1")
    A("s_barrier")
    LB("L_poll2")
    for t in range(8):
        A(f"s_mov_b64 exec, s[{64+2*t}:{65+2*t}]")
        A(f"s_cbranch_execz L_p2s{t}")
        A(f"s_add_u32 s61, s58, {t*32768}")
        A(f"buffer_load_dwordx4 v[{64+4*t}:{67+4*t}], v10, s[40:43], s61 offen sc1")
        LB(f"L_p2s{t}")
    A("s_mov_b64 exec, -1")
    A("s_waitcnt vmcnt(0)")
    for t in range(8):
        A(f"v_max3_u32 v{12+(t&1)}, v{64+4*t}, v{65+4*t}, v{66+4*t}")
        A(f"v_max_u32 v{12+(t&1)}, v{12+(t&1)}, v{67+4*t}")
        A(f"v_cmp_eq_u32 s[{64+2*t}:{65+2*t}], -1, v{12+(t&1)}")
    A("s_or_b64 s[62:63], s[64:65], s[66:67]")
    for t in range(2, 8):
        A(f"s_or_b64 s[62:63], s[62:63], s[{64+2*t}:{65+2*t}]")
    A("s_cbranch_scc0 L_poll2_done")
    A(f"s_sleep {sl2}")
    A("s_sub_u32 s60, s60, 1")
    A("s_cmp_lg_u32 s60, 0")
    A("s_cbranch_scc1 L_poll2")
    LB("L_poll2_done")
    stamp(5)
    for step in (16, 8, 4):
        for k in range(step):
            A(f"v_add_f32 v{64+k}, v{64+k}, v{64+step+k}")
    A("s_nop 1")
    A("v_permlane32_swap_b32 v64, v66")
    A("v_permlane32_swap_b32 v65, v67")
    A("s_nop 1")
    A("v_add_f32 v64, v64, v66")
    A("v_add_f32 v65, v65, v67")
    A("v_mov_b32 v66, v64")
    A("v_mov_b32 v67, v65")
    A("s_nop 1")
    A("v_permlane16_swap_b32 v66, v64")
    A("v_permlane16_swap_b32 v67, v65")
    A("s_nop 1")
    A("v_add_f32 v64, v64, v66")
    A("v_add_f32 v65, v65, v67")
    A("s_nop 1")
    A(f"v_add_f32_dpp v64, v64, v64 row_ror:8 {DPP}")
    A(f"v_add_f32_dpp v65, v65, v65 row_ror:8 {DPP}")
    A("s_nop 1")
    A(f"v_add_f32_dpp v64, v64, v64 row_ror:4 {DPP}")
    A(f"v_add_f32_dpp v65, v65, v65 row_ror:4 {DPP}")
    A("v_lshrrev_b32 v12, 5, v1")
    A("v_lshlrev_b32 v12, 2, v12")
    A("v_lshl_add_u32 v12, v11, 3, v12")
    A("v_cvt_pk_bf16_f32 v64, v64, v65")
    A("s_mul_i32 s58, s30, 896")
    A("s_lshl_b32 s61, s31, 5")
    A("s_add_u32 s58, s58, s61")
    A("s_mov_b32 s60, 15")
    A("s_mov_b32 s61, 15")
    A("s_mov_b64 exec, s[60:61]")
    A("buffer_store_dword v64, v12, s[44:47], s58 offen")
    A("s_mov_b64 exec, -1")
    stamp(6)
    if prof == 2: dump_dbg([(6,4)])
    LB("L_fin")
    dump_stamps("stream")
    A("s_endpgm")

    LB("L_service")
    stamp('service')
    A("s_mul_i32 s60, s30, 896")
    A("s_add_u32 s44, s4, s60")
    A("s_addc_u32 s45, s5, 0")
    A("s_mov_b32 s46, 896")
    A("s_mov_b32 s47, 0x00020000")
    A("s_mov_b32 s51, 0x00020000")
    for k in range(4):
        A(f"v_mov_b32 v{48+k}, -1")
    A("v_lshlrev_b32 v14, 4, v1")
    A("s_lshl_b32 s57, s2, 12")
    A(f"s_add_u32 s57, s57, {OB1}")
    A("s_lshl_b32 s58, s2, 11")
    A(f"s_add_u32 s58, s58, {OB2}")
    if noclr: A("s_mov_b64 exec, 1")
    for k in range(3):
        A(f"buffer_store_dwordx4 v[48:51], v14, s[40:43], s57 offen offset:{1024*k} sc1")
    for k in range(2):
        A(f"buffer_store_dwordx4 v[48:51], v14, s[40:43], s58 offen offset:{1024*k} sc1")
    if noclr: A("s_mov_b64 exec, -1")
    A("v_mov_b32 v15, 0")
    A(f"ds_write_b32 v15, v15 offset:{L_FLAG}")
    A("s_cmp_lg_u32 s29, 0")
    A("s_cbranch_scc1 L_notinit")
    A("s_lshl_b32 s60, s28, 12")
    A(f"s_add_u32 s60, s60, {TICK}")
    A("s_mov_b64 exec, 1")
    A("buffer_store_dword v15, v15, s[40:43], s60 offen sc1")
    A("s_mov_b64 exec, -1")
    LB("L_notinit")
    A("s_mov_b32 s60, 0x05040100")
    A("s_mov_b32 s61, 0x07060302")
    A("s_mov_b32 s62, 0x000f000f")
    A("s_mov_b32 s63, 0x000f000f")
    stamp(1)
    A("s_waitcnt lgkmcnt(0)")
    A("s_barrier")
    for w in range(4):
        A(f"ds_read_b64 v[{16+2*w}:{17+2*w}], v12 offset:{L_QP+128*w}")
    A("s_waitcnt vmcnt(5)")
    A("v_add_u32 v72, 0x10000, v72")
    A("v_add_u32 v73, 0x10000, v73")
    A("v_and_b32 v72, 0xffff0000, v72")
    A("v_and_b32 v73, 0xffff0000, v73")
    A("s_waitcnt lgkmcnt(0)")
    A("v_add_f32 v16, v16, v18")
    A("v_add_f32 v17, v17, v19")
    A("v_add_f32 v20, v20, v22")
    A("v_add_f32 v21, v21, v23")
    A("v_add_f32 v16, v16, v20")
    A("v_add_f32 v17, v17, v21")
    A("v_cvt_pk_bf16_f32 v16, v16, 0")
    A("v_cvt_pk_bf16_f32 v17, v17, 0")
    A("v_or_b32 v72, v72, v16")
    A("v_or_b32 v73, v73, v17")
    A("s_mov_b64 exec, s[62:63]")
    A(f"buffer_store_dwordx2 v[72:73], v12, s[40:43], s59 offen offset:{QBOX} sc1")
    A("s_mov_b64 exec, -1")
    stamp(2)
    A("s_lshl_b32 s65, s30, 6")
    A("s_add_u32 s65, s65, 128")
    A("s_mov_b32 s68, 1")
    A("s_mov_b32 s59, 0")
    A("s_mov_b32 s66, 0x10000")
    LB("L_pollq")
    A(f"buffer_load_dwordx4 v[76:79], v10, s[40:43], s56 offen offset:{QBOX} sc1")
    A(f"buffer_load_dwordx4 v[80:83], v10, s[40:43], s56 offen offset:{QBOX+16} sc1")
    A("s_waitcnt vmcnt(0)")
    A("s_cmp_lg_u32 s59, 0")
    A("s_cbranch_scc1 L_pollq_arrived")
    A("s_atomic_add s68, s[24:25], s65")
    LB("L_pollq_arrived")
    for k in range(8):
        A(f"v_xor_b32 v{84+k}, v{64+k}, v{76+k}")
    A("v_min3_u32 v84, v84, v85, v86")
    A("v_min3_u32 v87, v87, v88, v89")
    A("v_min3_u32 v84, v84, v90, v91")
    A("v_min_u32 v84, v84, v87")
    A("v_cmp_gt_u32 vcc, s66, v84")
    A("s_cbranch_vccz L_pollq_done")
    A("s_mov_b64 exec, vcc")
    A("s_add_u32 s59, s59, 1")
    A(f"s_sleep {slq}")
    A(f"s_cmp_lt_u32 s59, {fbk}")
    A("s_cbranch_scc1 L_pollq")
    A("s_mov_b32 s70, 0")
    A("s_atomic_add s70, s[24:25], s65 glc")
    A("s_waitcnt lgkmcnt(0)")
    A("s_cmp_ge_u32 s70, 128")
    A("s_cselect_b32 s66, 0, s66")
    A(f"s_cmp_lt_u32 s59, {spin_max}")
    A("s_cbranch_scc1 L_pollq")
    LB("L_pollq_done")
    A("s_mov_b64 exec, -1")
    stamp(3)
    for k in range(4):
        A(f"v_perm_b32 v{48+k}, v{77+2*k}, v{76+2*k}, s60")
    A(f"ds_write_b128 v14, v[48:51] offset:{L_Q}")
    A("s_waitcnt lgkmcnt(0)")
    A("s_barrier")
    stamp(4)
    make_masks(56, 57)
    A("s_and_b32 s66, s31, 7")
    A("s_mul_i32 s66, s66, 14")
    A("s_lshr_b32 s67, s31, 3")
    A("s_add_u32 s66, s66, s67")
    A("s_cmp_lt_u32 s31, 112")
    A(f"s_cselect_b32 s59, {0 if nobg&1 else 448*1792*2}, 0")
    A("s_mov_b32 s48, s16"); A("s_mov_b32 s49, s17"); A("s_mov_b32 s50, s59")
    srd(32, 18, 19, "s59")
    srd(36, 20, 21, 896)
    A("v_lshrrev_b32 v10, 1, v1")
    A("v_and_b32 v11, 1, v1")
    A("v_mul_u32_u24 v12, 28, v10")
    A(f"v_mul_u32_u24 v13, {14*3584}, v10")
    A("v_lshl_add_u32 v13, v11, 4, v13")
    A(f"buffer_load_dwordx4 v[{XR}:{XR+3}], v12, s[44:47], 0 offen")
    A(f"buffer_load_dwordx3 v[{XR+4}:{XR+6}], v12, s[44:47], 0 offen offset:16")
    A("buffer_load_dwordx4 v[40:43], v14, s[44:47], 0 offen")
    A("buffer_load_dwordx4 v[44:47], v14, s[36:39], 0 offen")
    A("s_lshl_b32 s56, s66, 5")
    cnt = [0]
    def thr():
        cnt[0] += 1
        if cnt[0] % SB == 0: A("s_waitcnt vmcnt(0)")
    for t in range(14):
        A(f"buffer_load_dwordx4 v[{64+4*t}:{67+4*t}], v13, s[48:51], s56 offen nt")
        A("s_add_u32 s56, s56, 3584")
        thr()
    A("v_mul_u32_u24 v12, 3584, v9")
    A("v_lshl_add_u32 v12, v8, 4, v12")
    A(f"s_mul_i32 s56, s66, {16*896}")
    for t in range(4):
        for cb in range(4):
            b = 128 + 16*t + 4*cb
            A(f"buffer_load_dwordx4 v[{b}:{b+3}], v12, s[32:35], s56 offen offset:{t*896+cb*256} nt")
            thr()
    for k in range(8):
        A(f"v_mov_b32 v{ACC+k}, 0")
    matvec_pairs(7, 64, XR, 16)
    A("s_nop 1")
    for k in range(2):
        A(f"v_add_f32_dpp v{ACC+k}, v{ACC+k}, v{ACC+k} row_ror:2 {DPP}")
    A(f"s_mov_b32 s59, {f2u(-math.log2(math.e)):#x}")
    for k in range(2):
        A(f"v_cvt_pk_bf16_f32 v{ACC+k}, 0, v{ACC+k}")
    for k in range(2):
        A(f"v_mul_f32 v{ACC+2+k}, s59, v{ACC+k}")
    for k in range(2):
        A(f"v_exp_f32 v{ACC+2+k}, v{ACC+2+k}")
    A("s_nop 0")
    for k in range(2):
        A(f"v_add_f32 v{ACC+2+k}, 1.0, v{ACC+2+k}")
    for k in range(2):
        A(f"v_rcp_f32 v{ACC+2+k}, v{ACC+2+k}")
    A("s_nop 0")
    for k in range(2):
        A(f"v_mul_f32 v{ACC+k}, v{ACC+k}, v{ACC+2+k}")
    A("v_lshlrev_b32 v12, 5, v11")
    A("v_lshl_add_u32 v12, v9, 3, v12")
    A("s_mov_b32 s62, 0x00030003")
    A("s_mov_b32 s63, 0x00030003")
    A("s_mov_b64 exec, s[62:63]")
    A(f"ds_write_b64 v12, v[{ACC}:{ACC+1}] offset:{L_H}")
    A("s_mov_b64 exec, -1")
    A("v_lshlrev_b32 v12, 4, v9")
    A("s_waitcnt lgkmcnt(0)")
    A(f"ds_read_b128 v[{ACC}:{ACC+3}], v12 offset:{L_H}")
    for k in range(4):
        A(f"v_lshlrev_b32 v52, 16, v{40+k}")
        A(f"v_lshlrev_b32 v53, 16, v{44+k}")
        A(f"v_and_b32 v54, 0xffff0000, v{40+k}")
        A(f"v_and_b32 v55, 0xffff0000, v{44+k}")
        A("v_mul_f32 v52, v52, v53")
        A("v_mul_f32 v54, v54, v55")
        A("v_cvt_pk_bf16_f32 v52, 0, v52")
        A("v_cvt_pk_bf16_f32 v54, 0, v54")
        if k == 0:
            A("v_add_f32 v56, v52, v54")
        else:
            A("v_add_f32 v56, v56, v52")
            A("v_add_f32 v56, v56, v54")
    for rr in (8, 4, 2, 1):
        A("s_nop 1")
        A(f"v_add_f32_dpp v56, v56, v56 row_ror:{rr} {DPP}")
    A("v_mov_b32 v57, v56")
    A("s_nop 1")
    A("v_permlane32_swap_b32 v57, v56")
    A("s_nop 1")
    A("v_add_f32 v56, v56, v57")
    A("v_mov_b32 v57, v56")
    A("s_nop 1")
    A("v_permlane16_swap_b32 v57, v56")
    A("s_nop 1")
    A("v_add_f32 v56, v56, v57")
    A("v_cvt_pk_bf16_f32 v56, 0, v56")
    A("v_mul_f32 v56, s59, v56")
    A("v_exp_f32 v56, v56")
    A("s_nop 0")
    A("v_add_f32 v56, 1.0, v56")
    A("v_rcp_f32 v56, v56")
    A("s_nop 0")
    A("v_cvt_pk_bf16_f32 v2, 0, v56")
    A("v_sub_f32 v3, 1.0, v2")
    A("v_cvt_pk_bf16_f32 v3, 0, v3")
    A("s_waitcnt lgkmcnt(0) vmcnt(0)")
    for t in range(4):
        A(f"v_cvt_pk_bf16_f32 v{ACC+t}, v{ACC+t}, v{ACC+t}")
    for t in range(4):
        for k in range(4):
            A(f"v_and_b32 v{24+4*t+k}, v{ACC+t}, v{4+k}")
    A("s_nop 1")
    for t in range(4):
        for cb in range(4):
            b = 128 + 16*t + 4*cb
            d = 40 + 4*cb
            c = "0" if t == 0 else f"v[{d}:{d+3}]"
            A(f"v_mfma_f32_16x16x32_bf16 v[{d}:{d+3}], v[{24+4*t}:{27+4*t}], v[{b}:{b+3}], {c}")
    srd(32, 12, 13, 0 if nobg&2 else 4096*448*2)
    A("v_mul_u32_u24 v12, 7168, v9")
    A("v_lshl_add_u32 v12, v8, 4, v12")
    A(f"s_mul_i32 s56, s31, {32*896}")
    A("s_nop 4")
    for t in range(8):
        if t == 4:
            A(f"s_add_u32 s56, s56, {4*896}")
        for cb in range(4):
            b = 128 + 16*t + 4*cb
            A(f"buffer_load_dwordx4 v[{b}:{b+3}], v12, s[32:35], s56 offen offset:{(t&3)*896+cb*256} nt")
            thr()
    for k in range(16):
        A(f"v_mul_f32 v{40+k}, v3, v{40+k}")
    A(f"s_mov_b32 s59, {f2u(C_SCALE):#x}")
    A("v_lshlrev_b32 v10, 5, v1")
    A("v_lshrrev_b32 v11, 5, v1")
    A("v_lshlrev_b32 v11, 3, v11")
    A("v_lshlrev_b32 v12, 12, v8")
    A("v_lshl_add_u32 v13, v9, 5, v12")
    A("s_lshl_b32 s60, s28, 16")
    A(f"s_add_u32 s60, s60, {OB1}")
    A("s_lshr_b32 s61, s29, 3")
    A("s_lshl_b32 s61, s61, 3")
    A("s_add_u32 s61, s61, s60")
    A("s_lshl_b32 s62, s29, 7")
    A("s_add_u32 s60, s60, s62")
    A("v_lshlrev_b32 v14, 5, v8")
    A("v_lshl_add_u32 v14, v9, 4, v14")
    A(f"s_mov_b32 s56, {spin_max}")
    LB("L_pollg")
    A("s_mov_b32 s70, 0")
    A("s_atomic_add s70, s[24:25], s65 glc")
    A("s_waitcnt lgkmcnt(0)")
    A("s_cmp_ge_u32 s70, 128")
    A("s_cbranch_scc1 L_pollg_done")
    A("s_sleep 16")
    A("s_sub_u32 s56, s56, 1")
    A("s_cmp_lg_u32 s56, 0")
    A("s_cbranch_scc1 L_pollg")
    LB("L_pollg_done")
    A("v_mov_b32 v16, 0")
    A("v_mov_b32 v17, 1")
    A(f"ds_write_b32 v16, v17 offset:{L_FLAG}")
    A("s_waitcnt vmcnt(0) lgkmcnt(0)")
    A("s_barrier")
    stamp(5)
    if prof: A("s_waitcnt lgkmcnt(0)")
    for w in range(4):
        A(f"ds_read_b64 v[{56+2*w}:{57+2*w}], v11 offset:{L_ML+16*w}")
    for w in range(4):
        A(f"ds_read_b128 v[{64+8*w}:{67+8*w}], v10 offset:{L_O+2048*w}")
        A(f"ds_read_b128 v[{68+8*w}:{71+8*w}], v10 offset:{L_O+2048*w+16}")
    A("s_waitcnt lgkmcnt(8)")
    A("v_max3_f32 v16, v56, v58, v60")
    A("v_max_f32 v16, v16, v62")
    for w in range(4):
        A(f"v_sub_f32 v{56+2*w}, v{56+2*w}, v16")
    for w in range(4):
        A(f"v_mul_f32 v{56+2*w}, s59, v{56+2*w}")
    for w in range(4):
        A(f"v_exp_f32 v{56+2*w}, v{56+2*w}")
    A("s_nop 0")
    A("v_mul_f32 v17, v56, v57")
    for w in range(1, 4):
        A(f"v_fmac_f32 v17, v{56+2*w}, v{57+2*w}")
    A("s_waitcnt lgkmcnt(0)")
    for k in range(8):
        A(f"v_mul_f32 v{64+k}, v56, v{64+k}")
    for w in range(1, 4):
        for k in range(8):
            A(f"v_fmac_f32 v{64+k}, v{56+2*w}, v{64+8*w+k}")
    A("buffer_store_dwordx4 v[64:67], v10, s[40:43], s57 offen sc1")
    A("buffer_store_dwordx4 v[68:71], v10, s[40:43], s57 offen offset:16 sc1")
    A("s_mov_b32 s62, 1")
    A("s_mov_b32 s63, 1")
    A("s_mov_b64 exec, s[62:63]")
    A("buffer_store_dwordx2 v[16:17], v11, s[40:43], s57 offen offset:2048 sc1")
    A("s_mov_b64 exec, -1")
    A(f"s_mov_b32 s56, {spin_max}")
    LB("L_poll1")
    A("buffer_load_dwordx4 v[72:75], v13, s[40:43], s60 offen sc1")
    A("buffer_load_dwordx4 v[76:79], v13, s[40:43], s60 offen offset:16 sc1")
    A("buffer_load_dwordx2 v[80:81], v12, s[40:43], s61 offen offset:2048 sc1")
    A("s_waitcnt vmcnt(0)")
    A("v_max3_u32 v18, v72, v73, v74")
    A("v_max3_u32 v19, v75, v76, v77")
    A("v_max3_u32 v18, v18, v78, v79")
    A("v_max3_u32 v19, v19, v80, v81")
    A("v_max_u32 v18, v18, v19")
    A("v_cmp_eq_u32 vcc, -1, v18")
    A("s_cbranch_vccz L_poll1_done")
    A("s_mov_b64 exec, vcc")
    A(f"s_sleep {sl1}")
    A("s_sub_u32 s56, s56, 1")
    A("s_cmp_lg_u32 s56, 0")
    A("s_cbranch_scc1 L_poll1")
    LB("L_poll1_done")
    A("s_mov_b64 exec, -1")
    A("s_barrier")
    stamp(6)
    A(f"v_max_f32_dpp v18, v80, v80 row_ror:8 {DPP}")
    for rr in (4, 2, 1):
        A("s_nop 1")
        A(f"v_max_f32_dpp v18, v18, v18 row_ror:{rr} {DPP}")
    A("v_sub_f32 v18, v80, v18")
    A("v_mul_f32 v18, s59, v18")
    A("v_exp_f32 v18, v18")
    A("s_nop 0")
    A("v_mul_f32 v80, v18, v81")
    for k in range(8):
        A(f"v_mul_f32 v{72+k}, v18, v{72+k}")
    for rr in (8, 4, 2, 1):
        for k in range(9):
            A(f"v_add_f32_dpp v{72+k}, v{72+k}, v{72+k} row_ror:{rr} {DPP}")
    A("v_rcp_f32 v80, v80")
    A("s_nop 0")
    for k in range(8):
        A(f"v_mul_f32 v{72+k}, v80, v{72+k}")
    for k in range(8):
        A(f"v_cvt_pk_bf16_f32 v{72+k}, v{72+k}, v{72+k}")
    for t in range(8):
        for k in range(4):
            A(f"v_and_b32 v{88+4*t+k}, v{72+t}, v{4+k}")
        if t >= 1:
            tt = t - 1
            for cb in range(4):
                b = 128 + 16*tt + 4*cb
                d = 16 + 4*cb
                c = "0" if tt == 0 else f"v[{d}:{d+3}]"
                A(f"v_mfma_f32_16x16x32_bf16 v[{d}:{d+3}], v[{88+4*tt}:{91+4*tt}], v[{b}:{b+3}], {c}")
    tt = 7
    for cb in range(4):
        b = 128 + 16*tt + 4*cb
        d = 16 + 4*cb
        A(f"v_mfma_f32_16x16x32_bf16 v[{d}:{d+3}], v[{88+4*tt}:{91+4*tt}], v[{b}:{b+3}], v[{d}:{d+3}]")
    A("s_mov_b32 s62, -1")
    A("s_mov_b32 s63, 0")
    A("s_nop 3")
    for cb in range(4):
        for k in range(4):
            A(f"v_fmac_f32 v{40+4*cb+k}, v2, v{16+4*cb+k}")
        if cb == 0:
            A("s_mov_b64 exec, s[62:63]")
        if cb == 3:
            A("s_mov_b32 s62, 0x00ff00ff")
            A("s_mov_b64 exec, s[62:63]")
        A(f"buffer_store_dwordx4 v[{40+4*cb}:{43+4*cb}], v14, s[40:43], s58 offen offset:{512*cb} sc1")
    A("s_mov_b64 exec, -1")
    stamp(7)
    dump_stamps("service")
    LB("L_end")
    A("s_endpgm")
    L.append('.section .rodata,"a"')
    L.append(".p2align 6")
    L.append(f".amdhsa_kernel {NAME}_kernel")
    L.append("  .amdhsa_next_free_vgpr 256")
    L.append("  .amdhsa_next_free_sgpr 96")
    L.append("  .amdhsa_accum_offset 256")
    L.append("  .amdhsa_group_segment_fixed_size 0")
    L.append("  .amdhsa_kernarg_size 96")
    L.append("  .amdhsa_user_sgpr_count 2")
    L.append("  .amdhsa_user_sgpr_kernarg_segment_ptr 1")
    L.append("  .amdhsa_system_sgpr_workgroup_id_x 1")
    L.append(".end_amdhsa_kernel")
    return "\n".join(L) + "\n"


if __name__ == "__main__":
    out = sys.argv[1]
    kw = {}
    for a in sys.argv[2:]:
        k, v = a.split("=")
        kw[k] = int(v) if v.isdigit() else v
    open(out, "w").write(gen(**kw))
```

```python
import sys, math

NAME = "gated_mix__gqa_block_cached__dense_activation_silu__decode"
HEADER = open("cdna_kernels/" + NAME + ".s.ref").read().split("; Override launch")[0]

QBOX = 0x0
TICK = 0x10000
OB1 = 0x40000
OB1S = 2304
OB2 = 0x200000
OB2S = 1792
STAMP = 0x20000000
L_Q = 0
L_S = 1024
L_O = L_S + 16384
L_ML = L_O + 8192
L_H = L_ML + 64
L_QP = L_H + 64
L_CNT = L_QP + 512
L_WIN = L_CNT + 64
LDS_BYTES = L_WIN + 512

C_SCALE = (1.0 / 16.0) * math.log2(math.e)
import struct
def f2u(x): return struct.unpack("<I", struct.pack("<f", x))[0]


def gen(prof=0, NPRE=6, PFI=1, early=1, spin_max=200000, sl1=4, sl2=2, slq=1, fbk=4, late=4, NS=28, fl=0, bm='kkwwrtttttxxx', DEP=1, kw8=0, SB=64, nobg=0, nowq=0, noclr=0, ptile=0, flv=-1, qx=0, ackf=1, kfirst=0, vth=0, kth=0, defer=0, dsl=4, jit=0, la=0, adapt=1):
    L = []
    A = lambda s: L.append("  " + s)
    LB = lambda s: L.append(s + ":")
    nstamp = [0]

    def stamp(k, svc=[False]):
        if k == 'service':
            svc[0] = True
            return
        if ptile and not svc[0] and k not in (0, 7, 2):
            return
        if ptile and not svc[0] and k == 2:
            k = 6
        if prof:
            A(f"s_memrealtime s[{80+2*k}:{81+2*k}]")

    def dump_dbg(pairs):
        A("s_waitcnt lgkmcnt(0)")
        srd(52, 24, 25, 256)
        A("v_mov_b32 v56, 0")
        for (k, sp) in pairs:
            A(f"s_not_b32 s56, s{80+2*k}")
            A(f"v_writelane_b32 v56, s56, {2*sp}")
            A(f"v_writelane_b32 v56, s{80+2*k}, {2*sp+1}")
        A("v_lshlrev_b32 v57, 2, v1")
        A("s_mov_b64 exec, 0xffff")
        A("buffer_atomic_umax v56, v57, s[52:55], 0 offen")
        A("s_mov_b64 exec, -1")

    def dump_stamps(kind=None):
        if not prof:
            return
        if prof == 2:
            dump_dbg({"stream": [(0,0),(2,1),(3,2),(4,3)], "service": [(2,5),(3,6),(6,7)]}[kind])
            return
        A("s_waitcnt lgkmcnt(0)")
        A("s_lshl_b32 s56, s2, 3")
        A("s_add_u32 s56, s56, s3")
        A("s_lshl_b32 s56, s56, 6")
        A(f"s_add_u32 s56, s56, {STAMP}")
        A("s_mov_b64 exec, 1")
        A("v_mov_b32 v60, 0")
        for q in range(4):
            for j in range(4):
                A(f"v_mov_b32 v{56+j}, s{80+4*q+j}")
            A(f"buffer_store_dwordx4 v[56:59], v60, s[40:43], s56 offen offset:{16*q}")
            A("s_nop 1")
        A("s_mov_b64 exec, -1")

    def srd(d, lo, hi, n):
        A(f"s_mov_b32 s{d}, s{lo}")
        A(f"s_mov_b32 s{d+1}, s{hi}")
        A(f"s_mov_b32 s{d+2}, {n}")
        A(f"s_mov_b32 s{d+3}, 0x00020000")

    DPP = "row_mask:0xf bank_mask:0xf"
    ACC = 16
    XR = 32
    def matvec_pairs(npairs, wbase, xbase, tail_ops):
        for u in range(npairs):
            A(f"s_waitcnt vmcnt({2*npairs - (2*u+2) + tail_ops})")
            w0 = wbase + 8*u; w1 = w0 + 4
            for k in range(4):
                A(f"v_perm_b32 v{52+k}, v{w1+k}, v{w0+k}, s60")
                A(f"v_perm_b32 v{56+k}, v{w1+k}, v{w0+k}, s61")
            for k in range(4):
                A(f"v_dot2c_f32_bf16 v{ACC+2*k}, v{52+k}, v{xbase+u}")
                A(f"v_dot2c_f32_bf16 v{ACC+2*k+1}, v{56+k}, v{xbase+u}")
        A("s_nop 3")
        for k in range(4):
            A(f"v_permlane32_swap_b32 v{ACC+k}, v{ACC+4+k}")
        A("s_nop 1")
        for k in range(4):
            A(f"v_add_f32 v{ACC+k}, v{ACC+k}, v{ACC+4+k}")
        A("s_nop 1")
        for k in range(2):
            A(f"v_permlane16_swap_b32 v{ACC+k}, v{ACC+2+k}")
        A("s_nop 1")
        for k in range(2):
            A(f"v_add_f32 v{ACC+k}, v{ACC+k}, v{ACC+2+k}")
        for rr in (8, 4):
            A("s_nop 1")
            for k in range(2):
                A(f"v_add_f32_dpp v{ACC+k}, v{ACC+k}, v{ACC+k} row_ror:{rr} {DPP}")
    def make_masks(t0, t1):
        A(f"v_and_b32 v{t0}, 1, v1")
        A(f"v_lshlrev_b32 v{t0}, 4, v{t0}")
        A(f"v_mov_b32 v{t1}, 0xffff")
        A(f"v_lshlrev_b32 v{t1}, v{t0}, v{t1}")
        A(f"v_bfe_u32 v{t0}, v1, 1, 2")
        for k in range(4):
            A(f"v_cmp_eq_u32 vcc, {k}, v{t0}")
            A("s_nop 1")
            A(f"v_cndmask_b32 v{4+k}, 0, v{t1}, vcc")
    L.append(HEADER.rstrip("\n"))
    L.append(f"; @launch grid=(256,1,1) block=(320,1,1) lds={LDS_BYTES}")
    L.append('.amdgcn_target "amdgcn-amd-amdhsa--gfx950"')
    L.append(".text")
    L.append(f".globl {NAME}_kernel")
    L.append(".p2align 8")
    L.append(f".type {NAME}_kernel,@function")
    LB(f"{NAME}_kernel")
    A("s_cmp_ge_u32 s2, 256")
    A("s_cbranch_scc1 L_end")
    A("s_load_dwordx16 s[4:19], s[0:1], 0")
    A("s_load_dwordx8 s[20:27], s[0:1], 64")
    if prof:
        for k in range(8):
            A(f"s_mov_b64 s[{80+2*k}:{81+2*k}], 0")
    stamp(0)
    A("v_lshrrev_b32 v2, 6, v0")
    A("v_and_b32 v1, 63, v0")
    A("v_readfirstlane_b32 s3, v2")
    A("s_lshr_b32 s28, s2, 4")
    A("s_and_b32 s29, s2, 15")
    A("s_lshr_b32 s30, s2, 7")
    A("s_and_b32 s31, s2, 127")
    if qx:
        A("s_and_b32 s64, s31, 7")
        A("s_lshl_b32 s64, s64, 4")
        A("s_lshr_b32 s65, s31, 3")
        A("s_add_u32 s64, s64, s65")
    else:
        A("s_and_b32 s64, s29, 7")
        A("s_lshl_b32 s64, s64, 1")
        A("s_lshr_b32 s65, s29, 3")
        A("s_add_u32 s64, s64, s65")
        A("s_andn2_b32 s65, s31, 15")
        A("s_add_u32 s64, s64, s65")
    A("v_and_b32 v8, 15, v1")
    A("v_lshrrev_b32 v9, 4, v1")
    A("s_waitcnt lgkmcnt(0)")
    srd(40, 26, 27, "0x40000000")
    A("s_cmp_lg_u32 s3, 4")
    A("s_cbranch_scc1 L_stream")
    A("v_lshlrev_b32 v10, 5, v1")
    A("s_lshl_b32 s56, s28, 11")
    A(f"buffer_load_dwordx4 v[64:67], v10, s[40:43], s56 offen offset:{QBOX} sc1")
    A(f"buffer_load_dwordx4 v[68:71], v10, s[40:43], s56 offen offset:{QBOX+16} sc1")
    A("v_and_b32 v11, 3, v1")
    A("v_lshlrev_b32 v12, 5, v11")
    A("v_lshl_add_u32 v12, v9, 3, v12")
    A("s_lshl_b32 s59, s30, 7")
    A("s_add_u32 s59, s59, s64")
    A("s_lshl_b32 s59, s59, 7")
    A(f"buffer_load_dwordx2 v[72:73], v12, s[40:43], s59 offen offset:{QBOX} sc1")
    A("s_branch L_service")
    LB("L_stream")

    srd(32, 6, 7, "0x10000000")
    srd(36, 8, 9, "0x10000000")
    assert len(bm) == 13 and sorted(bm) == sorted('kkwwrtttttxxx')
    pos = {c: [11+i for i, ch in enumerate(bm) if ch == c] for c in 'kwrxt'}
    def runs(positions):
        out = []
        for i, p in enumerate(positions):
            if out and out[-1][1] + out[-1][2] == p: out[-1][2] += 1
            else: out.append([i, p, 1])
        return out
    def deposit(dst, src, srcbit0, positions, tmp):
        for (sb, db, n) in runs(positions):
            A(f"s_bfe_u32 s{tmp}, s{src}, {(n << 16) | (sb + srcbit0):#x}")
            A(f"s_lshl_b32 s{tmp}, s{tmp}, {db}")
            A(f"s_or_b32 s{dst}, s{dst}, s{tmp}")
    A("s_lshl_b32 s56, s28, 24")
    deposit(56, 3, 0, pos['w'], 57)
    deposit(56, 29, 0, pos['x'], 57)
    deposit(56, 29, 3, pos['r'], 57)
    TM = sum(1 << p for p in pos['t'])
    def tstep():
        if len(runs(pos['t'])) == 1:
            A(f"s_add_u32 s57, s57, {1 << pos['t'][0]:#x}")
        else:
            A(f"s_or_b32 s57, s57, {(~TM) & 0xffffffff:#x}")
            A(f"s_add_u32 s57, s57, {1 << pos['t'][0]:#x}")
            A(f"s_and_b32 s57, s57, {TM:#x}")
            A("s_or_b32 s57, s57, s56")
    def vdeposit(dst, src, tmp):
        if pos['k'][1] == pos['k'][0] + 1:
            A(f"v_lshlrev_b32 v{dst}, {pos['k'][0]}, v{src}")
        else:
            A(f"v_and_b32 v{tmp}, 1, v{src}")
            A(f"v_lshrrev_b32 v{dst}, 1, v{src}")
            A(f"v_lshlrev_b32 v{dst}, {pos['k'][1]}, v{dst}")
            A(f"v_lshl_add_u32 v{dst}, v{tmp}, {pos['k'][0]}, v{dst}")
    A("v_lshrrev_b32 v3, 2, v8")
    vdeposit(2, 3, 10)
    A("v_lshl_add_u32 v2, v9, 6, v2")
    vdeposit(3, 9, 10)
    A("v_lshl_add_u32 v3, v8, 4, v3")
    A("v_and_b32 v10, 3, v1")
    A("v_lshl_add_u32 v2, v10, 4, v2")
    SLOT0 = 64
    def slot(sl, i): return SLOT0 + 32*sl + 4*i
    def issue(kind, sl, sreg):
        srdn = "s[32:35]" if kind == 'k' else "s[36:39]"
        va = "v2" if kind == 'k' else "v3"
        for i in range(8):
            b = slot(sl, i)
            A(f"buffer_load_dwordx4 v[{b}:{b+3}], {va}, {srdn}, {sreg} offen offset:{(i>>1)*512+(i&1)*256} {['nt','sc1 nt','sc0 sc1 nt','sc0 nt','','sc1','sc0 sc1'][fl if (kind == 'k' or flv < 0) else flv]}")
    if kfirst:
        issue('k', 0, "s56")
    A("s_mul_i32 s57, s30, 896")
    A("s_add_u32 s44, s4, s57")
    A("s_addc_u32 s45, s5, 0")
    A("s_mov_b32 s46, 896")
    A("s_mov_b32 s47, 0x00020000")
    srd(48, 10, 11, 0 if nowq else 448*4096*2)
    A("v_lshrrev_b32 v12, 2, v1")
    A("s_mul_i32 s57, s3, 14")
    A("v_cmp_gt_u32 vcc, 14, v12")
    A("v_add_u32 v12, s57, v12")
    A("v_mov_b32 v13, 0x4000")
    A("v_cndmask_b32 v12, v13, v12, vcc")
    A("v_lshlrev_b32 v13, 16, v12")
    A("v_lshl_add_u32 v13, v10, 4, v13")
    A("v_lshlrev_b32 v12, 4, v12")
    A(f"buffer_load_dwordx4 v[{XR}:{XR+3}], v12, s[44:47], 0 offen")
    A("s_lshl_b32 s57, s64, 6")
    WQB = slot(NPRE-1, 0)
    for t in range(8):
        A(f"buffer_load_dwordx4 v[{WQB+4*t}:{WQB+4*t+3}], v13, s[48:51], s57 offen nt")
        A("s_add_u32 s57, s57, 0x2000")
    A("s_mov_b32 s57, s56")
    if kfirst:
        early = 2
        tstep()
    else:
        for t in range(early):
            issue('k', t, "s57")
            tstep()
    A("s_mov_b32 s60, 0x05040100")
    A("s_mov_b32 s61, 0x07060302")
    for k in range(8):
        A(f"v_mov_b32 v{ACC+k}, 0")
    A("v_lshlrev_b32 v12, 5, v10")
    A("v_lshl_add_u32 v12, v9, 3, v12")
    A("s_lshl_b32 s58, s3, 7")
    A("v_add_u32 v12, s58, v12")
    if kfirst:
        A("s_waitcnt vmcnt(9)")
        if ptile: A(f"s_memrealtime s[82:83]")
        issue('k', 1, "s57")
        tstep()
    matvec_pairs(4, WQB, XR, 8 if kfirst else 8*early)
    A("s_mov_b32 s62, 0x000f000f")
    A("s_mov_b32 s63, 0x000f000f")
    A("s_mov_b64 exec, s[62:63]")
    A(f"ds_write_b64 v12, v[{ACC}:{ACC+1}] offset:{L_QP}")
    A("s_mov_b64 exec, -1")
    A("s_waitcnt lgkmcnt(0)")
    A("s_barrier")
    stamp(7)
    for t in range(early, NPRE):
        if t >= PFI:
            A(f"s_waitcnt vmcnt({8*(PFI-1)})")
        if ptile: A(f"s_memrealtime s[{80+2*t}:{81+2*t}]")
        issue('k', t, "s57")
        tstep()
        if t == early:
            A("v_bfe_u32 v12, v1, 3, 1")
            A("v_lshlrev_b32 v13, 2, v12")
            A("v_add_u32 v13, v13, v9")
            A("v_lshlrev_b32 v12, 9, v12")
            A("v_lshl_add_u32 v12, v9, 6, v12")
            A("v_lshl_add_u32 v12, v10, 4, v12")
            A("s_lshl_b32 s58, s3, 12")
            A(f"s_add_u32 s58, s58, {L_S}")
            A("v_lshlrev_b32 v13, 4, v13")
            A("v_add_u32 v13, s58, v13")
            make_masks(56, 57)
            A("v_mov_b32 v14, 0xff800000")
            A("v_mov_b32 v15, 0")
            for r in range(8):
                A(f"v_mov_b32 v{24+r}, 0")
            A(f"s_mov_b32 s59, {f2u(C_SCALE):#x}")
    stamp(1)
    A("s_barrier")
    A(f"ds_read_b128 v[16:19], v12 offset:{L_Q}")
    A(f"ds_read_b128 v[20:23], v12 offset:{L_Q+256}")
    stamp(2)
    A("s_waitcnt lgkmcnt(0)")

    def kproc(sl, soff, mid=None, dyn=False):
        for r in range(4):
            d = 32 + 4*r
            a0 = slot(sl, 2*r); a1 = slot(sl, 2*r+1)
            A(f"v_mfma_f32_16x16x32_bf16 v[{d}:{d+3}], v[{a0}:{a0+3}], v[16:19], 0")
            A(f"v_mfma_f32_16x16x32_bf16 v[{d}:{d+3}], v[{a1}:{a1+3}], v[20:23], v[{d}:{d+3}]")
        if mid: mid()
        else: A("s_nop 1")
        for r in range(4):
            d = 32 + 4*r
            s = 48 + r
            if r == 3: pass
            A(f"v_mov_b32_dpp v{s}, v{d} quad_perm:[0,0,0,0] {DPP}")
            A(f"v_add_f32_dpp v{s}, v{d+1}, v{s} quad_perm:[1,1,1,1] {DPP}")
            A(f"v_add_f32_dpp v{s}, v{d+2}, v{s} quad_perm:[2,2,2,2] {DPP}")
            A(f"v_add_f32_dpp v{s}, v{d+3}, v{s} quad_perm:[3,3,3,3] {DPP}")
            A(f"v_cvt_pk_bf16_f32 v{s}, 0, v{s}")
        if dyn:
            return
        A("v_max3_f32 v14, v14, v48, v49")
        A("v_max3_f32 v14, v14, v50, v51")
        A(f"ds_write_b128 v13, v[48:51] offset:{soff}")

    assert NPRE % 2 == 0 and NPRE >= 2
    for t in range(NPRE):
        later = (NPRE - 1 - t) + min(t, DEP)
        A(f"s_waitcnt vmcnt({min(63, 8*later)})")
        if t < DEP:
            def mid0():
                issue('k', t, "s57")
                tstep()
            kproc(t, t*128, mid0)
        else:
            kproc(t, t*128)
    A(f"v_add_u32 v13, {NPRE*128}, v13")
    NLOOP = (NS - NPRE - 2)//2
    A(f"s_mov_b32 s58, {NLOOP}")
    assert DEP == 1 or late >= 1
    def kstep(sl, soff, nxt):
        A(f"s_waitcnt vmcnt({8*(DEP-1)})")
        if late == 0:
            nxt()
            kproc(sl, soff)
        elif late == 1:
            kproc(sl, soff, nxt)
        else:
            kproc(sl, soff)
            if kw8: A("s_waitcnt lgkmcnt(0)")
            for i in range(kth): A("s_nop 15")
            nxt()
    def nk(sl):
        def f():
            issue('k', sl, "s57")
            tstep()
        return f
    LB("L_kloop")
    kstep(0, 0, nk(2-DEP))
    kstep(1, 128, nk(DEP-1))
    A("v_add_u32 v13, 256, v13")
    A("s_sub_u32 s58, s58, 1")
    A("s_cmp_lg_u32 s58, 0")
    A("s_cbranch_scc1 L_kloop")
    def nv0():
        A("s_mov_b32 s57, s56")
        issue('v', 0, "s57")
        tstep()
    def nv1():
        issue('v', 1, "s57")
        tstep()
    if DEP == 1:
        kstep(0, 0, nk(1))
        kstep(1, 128, nv0)
    else:
        kstep(0, 0, nv0)
        kstep(1, 128, nv1)
    stamp(3)
    A(f"v_subrev_u32 v13, {(NS-2)*128}, v13")
    A("v_mov_b32 v10, v14")
    A("s_nop 1")
    A("v_permlane32_swap_b32 v10, v14")
    A("s_nop 1")
    A("v_max_f32 v14, v10, v14")
    A("v_mov_b32 v10, v14")
    A("s_nop 1")
    A("v_permlane16_swap_b32 v10, v14")
    A("s_nop 1")
    A("v_max_f32 v14, v10, v14")
    A("v_mul_f32 v11, s59, v14")
    A("s_waitcnt lgkmcnt(0)")
    A("ds_read_b128 v[48:51], v13")
    def pprep(sc):
        for r in range(4):
            A(f"v_fma_f32 v{sc+r}, v{sc+r}, s59, -v11")
        for r in range(4):
            A(f"v_exp_f32 v{sc+r}, v{sc+r}")
        A("s_nop 0")
        A(f"v_add_f32 v56, v{sc}, v{sc+1}")
        A(f"v_add_f32 v57, v{sc+2}, v{sc+3}")
        for r in range(4):
            A(f"v_cvt_pk_bf16_f32 v{sc+r}, v{sc+r}, v{sc+r}")
        A("v_add_f32 v56, v56, v57")
        A("v_add_f32 v15, v15, v56")
        for r in range(4):
            for k in range(4):
                A(f"v_and_b32 v{32+4*r+k}, v{sc+r}, v{4+k}")
    def pv(sl):
        for r in range(4):
            a = 32 + 4*r
            b0 = slot(sl, 2*r); b1 = slot(sl, 2*r+1)
            A(f"v_mfma_f32_16x16x32_bf16 v[24:27], v[{a}:{a+3}], v[{b0}:{b0+3}], v[24:27]")
            A(f"v_mfma_f32_16x16x32_bf16 v[28:31], v[{a}:{a+3}], v[{b1}:{b1+3}], v[28:31]")
    def vstep(sl, snext_off, nxt, pre=None):
        sc = 48 + 4*sl
        sn = 48 + 4*(1-sl)
        if late >= 3:
            cur_off = (snext_off - 128) if snext_off is not None else 128
            A("s_waitcnt vmcnt(0)")
            if late == 3:
                A(f"ds_read_b128 v[{sc}:{sc+3}], v13 offset:{cur_off}")
            A("s_waitcnt lgkmcnt(0)")
            if late == 4 and snext_off is not None:
                A(f"ds_read_b128 v[{sn}:{sn+3}], v13 offset:{snext_off}")
            if pre: pre()
            pprep(sc)
            A("s_nop 1")
            pv(sl)
            for i in range(vth): A("s_nop 15")
            if nxt: nxt()
            return
        A("s_waitcnt lgkmcnt(0)")
        if snext_off is not None:
            A(f"ds_read_b128 v[{sn}:{sn+3}], v13 offset:{snext_off}")
        if pre: pre()
        pprep(sc)
        A(f"s_waitcnt vmcnt({8*(DEP-1)})")
        if nxt and late == 0: nxt()
        else: A("s_nop 0")
        pv(sl)
        if nxt and late >= 1: nxt()
    def nv(sl):
        def f():
            issue('v', sl, "s57")
            tstep()
        return f
    def req_ticket():
        A("v_mov_b32 v58, 0")
        A("v_mov_b32 v59, 1")
        A("s_mov_b64 exec, 1")
        A(f"ds_add_rtn_u32 v59, v58, v59 offset:{L_CNT}")
        A("s_mov_b64 exec, -1")
    nlab = [0]
    def take_ticket():
        nlab[0] += 1
        n = nlab[0]
        A("s_waitcnt lgkmcnt(0)")
        A("v_readfirstlane_b32 s76, v59")
        A(f"s_mov_b32 s79, {spin_max}")
        A("s_andn2_b32 s77, s76, 3")
        A("v_mov_b32 v58, s77")
        LB(f"L_win{n}")
        A(f"ds_read_b32 v60, v58 offset:{L_WIN}")
        A("s_waitcnt lgkmcnt(0)")
        A("v_readfirstlane_b32 s77, v60")
        A("s_cmp_lg_u32 s77, -1")
        A(f"s_cbranch_scc1 L_win{n}_ok")
        A("s_sleep 1")
        A("s_sub_u32 s79, s79, 1")
        A("s_cmp_lg_u32 s79, 0")
        A(f"s_cbranch_scc1 L_win{n}")
        A("s_mov_b32 s77, 0x10000")
        LB(f"L_win{n}_ok")
        A("s_and_b32 s76, s76, 3")
        A("s_lshl_b32 s77, s77, 2")
        A("s_or_b32 s76, s76, s77")
        A("s_lshl_b32 s78, s28, 24")
        deposit(78, 76, 0, sorted(pos['w'] + pos['r'] + pos['x']), 77)
        A(f"s_add_u32 s79, s76, {NS*64}")
        deposit(78, 79, 6, pos['t'], 77)
        A(f"s_cmp_lt_u32 s76, {(32-NS)*64}")
        A("s_cselect_b32 s34, 0x10000000, 0")
        A("s_cselect_b32 s38, 0x10000000, 0")
        A("s_cselect_b32 s77, 1, 0")
        if not jit:
            A(f"s_cbranch_scc0 L_notick{n}")
            req_ticket()
            LB(f"L_notick{n}")
    A(f"s_mov_b32 s58, {(NS-2*DEP)//2}")
    LB("L_vloop")
    vstep(0, 128, nv(2-DEP))
    vstep(1, 256, nv(DEP-1))
    A("v_add_u32 v13, 256, v13")
    A("s_sub_u32 s58, s58, 1")
    A("s_cmp_lg_u32 s58, 0")
    A("s_cbranch_scc1 L_vloop")
    if NS == 32:
        assert DEP == 1
        vstep(0, 128, nv(1))
        vstep(1, None, None)
    else:
        if DEP == 1:
            vstep(0, 128, nv(1), req_ticket)
            def first_dyn():
                issue('k', 2, "s78")
                issue('v', 3, "s78")
            vstep(1, None, first_dyn, take_ticket)
        else:
            vstep(0, 128, nv(0))
            vstep(1, 256, nv(1), req_ticket)
            vstep(0, 384, lambda: issue('k', 2, "s78"), take_ticket)
            vstep(1, None, lambda: issue('v', 3, "s78"))
        stamp(1)
        A("s_cmp_lg_u32 s77, 0")
        A("s_cbranch_scc0 L_dyn_done")
        LB("L_dyn")
        A("s_waitcnt vmcnt(8)")
        if jit: req_ticket()
        kproc(2, 0, None, True)
        A("v_max3_f32 v10, v48, v49, v50")
        A("v_max_f32 v10, v10, v51")
        A("v_cmp_gt_f32 vcc, v10, v14")
        A("s_cbranch_vccnz L_rare")
        LB("L_back")
        pprep(48)
        if jit:
            A("s_waitcnt vmcnt(0)")
            pv(3)
            take_ticket()
            issue('k', 2, "s78")
            issue('v', 3, "s78")
        else:
            take_ticket()
            A("s_waitcnt vmcnt(0)")
            issue('k', 2, "s78")
            pv(3)
            issue('v', 3, "s78")
        A("s_cmp_lg_u32 s77, 0")
        A("s_cbranch_scc1 L_dyn")
        A("s_branch L_dyn_done")
        LB("L_rare")
        A("v_max_f32 v10, v10, v14")
        A("v_mov_b32 v56, v10")
        A("s_nop 1")
        A("v_permlane32_swap_b32 v56, v10")
        A("s_nop 1")
        A("v_max_f32 v10, v10, v56")
        A("v_mov_b32 v56, v10")
        A("s_nop 1")
        A("v_permlane16_swap_b32 v56, v10")
        A("s_nop 1")
        A("v_max_f32 v10, v10, v56")
        A("v_sub_f32 v56, v14, v10")
        A("v_mul_f32 v56, s59, v56")
        A("v_exp_f32 v56, v56")
        A("v_mov_b32 v14, v10")
        A("v_mul_f32 v11, s59, v10")
        A("v_mul_f32 v15, v15, v56")
        A("v_readlane_b32 s60, v56, 0")
        A("v_readlane_b32 s61, v56, 8")
        A("s_mov_b32 s62, 0")
        A("s_mov_b32 s63, -1")
        A("v_mov_b32 v57, s60")
        A("s_mov_b64 exec, s[62:63]")
        A("v_mov_b32 v57, s61")
        A("s_mov_b64 exec, -1")
        for r in range(8):
            A(f"v_mul_f32 v{24+r}, v57, v{24+r}")
        A("s_branch L_back")
        LB("L_dyn_done")
    A("v_mov_b32 v10, v15")
    A("v_lshrrev_b32 v12, 1, v9")
    A("v_lshlrev_b32 v12, 10, v12")
    A("v_permlane32_swap_b32 v10, v15")
    A("v_lshl_add_u32 v12, v8, 5, v12")
    A("v_add_f32 v15, v10, v15")
    A("v_mov_b32 v10, v15")
    A("v_and_b32 v13, 1, v9")
    A("v_lshl_add_u32 v12, v13, 4, v12")
    A("v_permlane16_swap_b32 v10, v15")
    A("s_lshl_b32 s58, s3, 11")
    A("v_add_u32 v12, s58, v12")
    A("v_add_f32 v15, v10, v15")
    A("s_lshl_b32 s58, s3, 4")
    A("v_and_b32 v13, 8, v1")
    A("v_add_u32 v13, s58, v13")
    A(f"ds_write_b128 v12, v[24:27] offset:{L_O}")
    A(f"ds_write_b128 v12, v[28:31] offset:{L_O+512}")
    A("s_mov_b64 exec, 0x101")
    A(f"ds_write_b64 v13, v[14:15] offset:{L_ML}")
    A("s_mov_b64 exec, -1")
    stamp(4)
    A("s_waitcnt lgkmcnt(0)")
    A("s_barrier")
    A("s_cmp_lg_u32 s3, 0")
    A("s_cbranch_scc1 L_fin")
    A("s_cmp_ge_u32 s31, 28")
    A("s_cbranch_scc1 L_fin")
    srd(44, 22, 23, 1792)
    A("v_lshrrev_b32 v10, 2, v1")
    A(f"v_mul_u32_u24 v10, {OB2S}, v10")
    A("v_and_b32 v11, 3, v1")
    A("v_lshl_add_u32 v10, v11, 4, v10")
    A(f"s_mul_i32 s58, s30, {128*OB2S}")
    A("s_lshl_b32 s61, s31, 6")
    A("s_add_u32 s58, s58, s61")
    A(f"s_add_u32 s58, s58, {OB2}")
    A(f"s_mov_b32 s60, {spin_max}")
    for t in range(8):
        A(f"s_mov_b64 s[{64+2*t}:{65+2*t}], -1")
    A("s_barrier")
    LB("L_poll2")
    for t in range(8):
        A(f"s_mov_b64 exec, s[{64+2*t}:{65+2*t}]")
        A(f"s_cbranch_execz L_p2s{t}")
        A(f"s_add_u32 s61, s58, {t*16*OB2S}")
        A(f"buffer_load_dwordx4 v[{64+4*t}:{67+4*t}], v10, s[40:43], s61 offen sc1")
        LB(f"L_p2s{t}")
    A("s_mov_b64 exec, -1")
    A("s_waitcnt vmcnt(0)")
    for t in range(8):
        A(f"v_max3_u32 v{12+(t&1)}, v{64+4*t}, v{65+4*t}, v{66+4*t}")
        A(f"v_max_u32 v{12+(t&1)}, v{12+(t&1)}, v{67+4*t}")
        A(f"v_cmp_eq_u32 s[{64+2*t}:{65+2*t}], -1, v{12+(t&1)}")
    A("s_or_b64 s[62:63], s[64:65], s[66:67]")
    for t in range(2, 8):
        A(f"s_or_b64 s[62:63], s[62:63], s[{64+2*t}:{65+2*t}]")
    A("s_cbranch_scc0 L_poll2_done")
    A(f"s_sleep {sl2}")
    A("s_sub_u32 s60, s60, 1")
    A("s_cmp_lg_u32 s60, 0")
    A("s_cbranch_scc1 L_poll2")
    LB("L_poll2_done")
    stamp(5)
    for step in (16, 8, 4):
        for k in range(step):
            A(f"v_add_f32 v{64+k}, v{64+k}, v{64+step+k}")
    A("s_nop 1")
    A("v_permlane32_swap_b32 v64, v66")
    A("v_permlane32_swap_b32 v65, v67")
    A("s_nop 1")
    A("v_add_f32 v64, v64, v66")
    A("v_add_f32 v65, v65, v67")
    A("v_mov_b32 v66, v64")
    A("v_mov_b32 v67, v65")
    A("s_nop 1")
    A("v_permlane16_swap_b32 v66, v64")
    A("v_permlane16_swap_b32 v67, v65")
    A("s_nop 1")
    A("v_add_f32 v64, v64, v66")
    A("v_add_f32 v65, v65, v67")
    A("s_nop 1")
    A(f"v_add_f32_dpp v64, v64, v64 row_ror:8 {DPP}")
    A(f"v_add_f32_dpp v65, v65, v65 row_ror:8 {DPP}")
    A("s_nop 1")
    A(f"v_add_f32_dpp v64, v64, v64 row_ror:4 {DPP}")
    A(f"v_add_f32_dpp v65, v65, v65 row_ror:4 {DPP}")
    A("v_lshrrev_b32 v12, 5, v1")
    A("v_lshlrev_b32 v12, 2, v12")
    A("v_lshl_add_u32 v12, v11, 3, v12")
    A("v_cvt_pk_bf16_f32 v64, v64, v65")
    A("s_mul_i32 s58, s30, 896")
    A("s_lshl_b32 s61, s31, 5")
    A("s_add_u32 s58, s58, s61")
    A("s_mov_b32 s60, 15")
    A("s_mov_b32 s61, 15")
    A("s_mov_b64 exec, s[60:61]")
    A("buffer_store_dword v64, v12, s[44:47], s58 offen")
    A("s_mov_b64 exec, -1")
    stamp(6)
    if prof == 2: dump_dbg([(6,4)])
    LB("L_fin")
    dump_stamps("stream")
    A("s_endpgm")

    LB("L_service")
    stamp('service')
    A("s_mul_i32 s60, s30, 896")
    A("s_add_u32 s44, s4, s60")
    A("s_addc_u32 s45, s5, 0")
    A("s_mov_b32 s46, 896")
    A("s_mov_b32 s47, 0x00020000")
    A("s_mov_b32 s51, 0x00020000")
    for k in range(4):
        A(f"v_mov_b32 v{48+k}, -1")
    A("v_lshlrev_b32 v14, 4, v1")
    A(f"s_mul_i32 s57, s2, {OB1S}")
    A(f"s_add_u32 s57, s57, {OB1}")
    A(f"s_mul_i32 s58, s2, {OB2S}")
    A(f"s_add_u32 s58, s58, {OB2}")
    if noclr: A("s_mov_b64 exec, 1")
    for k in range(2):
        A(f"buffer_store_dwordx4 v[48:51], v14, s[40:43], s57 offen offset:{1024*k} sc1")
    A("buffer_store_dwordx4 v[48:51], v14, s[40:43], s58 offen sc1")
    A("s_mov_b32 s60, -1")
    A("s_mov_b32 s61, 0xffff")
    if not noclr: A("s_mov_b64 exec, s[60:61]")
    A("buffer_store_dwordx4 v[48:51], v14, s[40:43], s58 offen offset:1024 sc1")
    A("s_mov_b64 exec, 0xffff")
    A("buffer_store_dwordx4 v[48:51], v14, s[40:43], s57 offen offset:2048 sc1")
    A("s_mov_b64 exec, -1")
    A("v_mov_b32 v15, 0")
    A(f"ds_write_b32 v15, v15 offset:{L_CNT}")
    A("v_lshlrev_b32 v13, 3, v1")
    A(f"ds_write_b64 v13, v[48:49] offset:{L_WIN}")
    A("s_cmp_lg_u32 s29, 0")
    A("s_cbranch_scc1 L_notinit")
    A("s_lshl_b32 s60, s28, 12")
    A(f"s_add_u32 s60, s60, {TICK}")
    A("s_mov_b64 exec, 1")
    A("buffer_store_dword v15, v15, s[40:43], s60 offen sc1")
    A("s_mov_b64 exec, -1")
    LB("L_notinit")
    A("s_mov_b32 s60, 0x05040100")
    A("s_mov_b32 s61, 0x07060302")
    A("s_mov_b32 s62, 0x000f000f")
    A("s_mov_b32 s63, 0x000f000f")
    stamp(1)
    A("s_waitcnt lgkmcnt(0)")
    A("s_barrier")
    for w in range(4):
        A(f"ds_read_b64 v[{16+2*w}:{17+2*w}], v12 offset:{L_QP+128*w}")
    A("s_waitcnt vmcnt(5)")
    A("v_add_u32 v72, 0x10000, v72")
    A("v_add_u32 v73, 0x10000, v73")
    A("v_and_b32 v72, 0xffff0000, v72")
    A("v_and_b32 v73, 0xffff0000, v73")
    A("s_waitcnt lgkmcnt(0)")
    A("v_add_f32 v16, v16, v18")
    A("v_add_f32 v17, v17, v19")
    A("v_add_f32 v20, v20, v22")
    A("v_add_f32 v21, v21, v23")
    A("v_add_f32 v16, v16, v20")
    A("v_add_f32 v17, v17, v21")
    A("v_cvt_pk_bf16_f32 v16, v16, 0")
    A("v_cvt_pk_bf16_f32 v17, v17, 0")
    A("v_or_b32 v72, v72, v16")
    A("v_or_b32 v73, v73, v17")
    A("s_mov_b64 exec, s[62:63]")
    A(f"buffer_store_dwordx2 v[72:73], v12, s[40:43], s59 offen offset:{QBOX} sc1")
    A("s_mov_b64 exec, -1")
    stamp(2)
    A("s_lshl_b32 s65, s30, 6")
    A("s_add_u32 s65, s65, 128")
    A("s_mov_b32 s68, 1")
    A("s_mov_b32 s59, 0")
    A("s_mov_b32 s66, 0x10000")
    if ackf:
        A("s_waitcnt vmcnt(0)")
        A("s_atomic_add s68, s[24:25], s65")
    LB("L_pollq")
    A(f"buffer_load_dwordx4 v[76:79], v10, s[40:43], s56 offen offset:{QBOX} sc1")
    A(f"buffer_load_dwordx4 v[80:83], v10, s[40:43], s56 offen offset:{QBOX+16} sc1")
    A("s_waitcnt vmcnt(0)")
    if not ackf:
        A("s_cmp_lg_u32 s59, 0")
        A("s_cbranch_scc1 L_pollq_arrived")
        A("s_atomic_add s68, s[24:25], s65")
        LB("L_pollq_arrived")
    for k in range(8):
        A(f"v_xor_b32 v{84+k}, v{64+k}, v{76+k}")
    A("v_min3_u32 v84, v84, v85, v86")
    A("v_min3_u32 v87, v87, v88, v89")
    A("v_min3_u32 v84, v84, v90, v91")
    A("v_min_u32 v84, v84, v87")
    A("v_cmp_gt_u32 vcc, s66, v84")
    A("s_cbranch_vccz L_pollq_done")
    A("s_mov_b64 exec, vcc")
    A("s_add_u32 s59, s59, 1")
    A(f"s_sleep {slq}")
    A(f"s_cmp_lt_u32 s59, {fbk}")
    A("s_cbranch_scc1 L_pollq")
    A("s_mov_b32 s70, 0")
    A("s_atomic_add s70, s[24:25], s65 glc")
    A("s_waitcnt lgkmcnt(0)")
    A("s_cmp_ge_u32 s70, 128")
    A("s_cselect_b32 s66, 0, s66")
    A(f"s_cmp_lt_u32 s59, {spin_max}")
    A("s_cbranch_scc1 L_pollq")
    LB("L_pollq_done")
    A("s_mov_b64 exec, -1")
    stamp(3)
    for k in range(4):
        A(f"v_perm_b32 v{48+k}, v{77+2*k}, v{76+2*k}, s60")
    A(f"ds_write_b128 v14, v[48:51] offset:{L_Q}")
    A("s_waitcnt lgkmcnt(0)")
    A("s_barrier")
    stamp(4)
    make_masks(56, 57)
    A("s_and_b32 s66, s31, 7")
    A("s_mul_i32 s66, s66, 14")
    A("s_lshr_b32 s67, s31, 3")
    A("s_add_u32 s66, s66, s67")
    A("s_cmp_lt_u32 s31, 112")
    A(f"s_cselect_b32 s59, {0 if nobg&1 else 448*1792*2}, 0")
    A("s_mov_b32 s48, s16"); A("s_mov_b32 s49, s17"); A("s_mov_b32 s50, s59")
    srd(32, 18, 19, "s59")
    srd(36, 20, 21, 896)
    A("v_lshrrev_b32 v10, 1, v1")
    A("v_and_b32 v11, 1, v1")
    A("v_mul_u32_u24 v12, 28, v10")
    A(f"v_mul_u32_u24 v13, {14*3584}, v10")
    A("v_lshl_add_u32 v13, v11, 4, v13")
    A(f"buffer_load_dwordx4 v[{XR}:{XR+3}], v12, s[44:47], 0 offen")
    A(f"buffer_load_dwordx3 v[{XR+4}:{XR+6}], v12, s[44:47], 0 offen offset:16")
    A("buffer_load_dwordx4 v[40:43], v14, s[44:47], 0 offen")
    A("buffer_load_dwordx4 v[44:47], v14, s[36:39], 0 offen")
    A("s_lshl_b32 s56, s66, 5")
    cnt = [0]
    def thr():
        cnt[0] += 1
        if cnt[0] % SB == 0: A("s_waitcnt vmcnt(0)")
    for t in range(14):
        A(f"buffer_load_dwordx4 v[{64+4*t}:{67+4*t}], v13, s[48:51], s56 offen nt")
        A("s_add_u32 s56, s56, 3584")
        thr()
    for k in range(8):
        A(f"v_mov_b32 v{ACC+k}, 0")
    matvec_pairs(7, 64, XR, 0)
    A("s_nop 1")
    for k in range(2):
        A(f"v_add_f32_dpp v{ACC+k}, v{ACC+k}, v{ACC+k} row_ror:2 {DPP}")
    A(f"s_mov_b32 s59, {f2u(-math.log2(math.e)):#x}")
    for k in range(2):
        A(f"v_cvt_pk_bf16_f32 v{ACC+k}, 0, v{ACC+k}")
    for k in range(2):
        A(f"v_mul_f32 v{ACC+2+k}, s59, v{ACC+k}")
    for k in range(2):
        A(f"v_exp_f32 v{ACC+2+k}, v{ACC+2+k}")
    A("s_nop 0")
    for k in range(2):
        A(f"v_add_f32 v{ACC+2+k}, 1.0, v{ACC+2+k}")
    for k in range(2):
        A(f"v_rcp_f32 v{ACC+2+k}, v{ACC+2+k}")
    A("s_nop 0")
    for k in range(2):
        A(f"v_mul_f32 v{ACC+k}, v{ACC+k}, v{ACC+2+k}")
    A("v_lshlrev_b32 v12, 5, v11")
    A("v_lshl_add_u32 v12, v9, 3, v12")
    A("s_mov_b32 s62, 0x00030003")
    A("s_mov_b32 s63, 0x00030003")
    A("s_mov_b64 exec, s[62:63]")
    A(f"ds_write_b64 v12, v[{ACC}:{ACC+1}] offset:{L_H}")
    A("s_mov_b64 exec, -1")
    A("v_lshlrev_b32 v12, 4, v9")
    A("s_waitcnt lgkmcnt(0)")
    A(f"ds_read_b128 v[{ACC}:{ACC+3}], v12 offset:{L_H}")
    for k in range(4):
        A(f"v_lshlrev_b32 v52, 16, v{40+k}")
        A(f"v_lshlrev_b32 v53, 16, v{44+k}")
        A(f"v_and_b32 v54, 0xffff0000, v{40+k}")
        A(f"v_and_b32 v55, 0xffff0000, v{44+k}")
        A("v_mul_f32 v52, v52, v53")
        A("v_mul_f32 v54, v54, v55")
        A("v_cvt_pk_bf16_f32 v52, 0, v52")
        A("v_cvt_pk_bf16_f32 v54, 0, v54")
        if k == 0:
            A("v_add_f32 v56, v52, v54")
        else:
            A("v_add_f32 v56, v56, v52")
            A("v_add_f32 v56, v56, v54")
    for rr in (8, 4, 2, 1):
        A("s_nop 1")
        A(f"v_add_f32_dpp v56, v56, v56 row_ror:{rr} {DPP}")
    A("v_mov_b32 v57, v56")
    A("s_nop 1")
    A("v_permlane32_swap_b32 v57, v56")
    A("s_nop 1")
    A("v_add_f32 v56, v56, v57")
    A("v_mov_b32 v57, v56")
    A("s_nop 1")
    A("v_permlane16_swap_b32 v57, v56")
    A("s_nop 1")
    A("v_add_f32 v56, v56, v57")
    A("v_cvt_pk_bf16_f32 v56, 0, v56")
    A("v_mul_f32 v56, s59, v56")
    A("v_exp_f32 v56, v56")
    A("s_nop 0")
    A("v_add_f32 v56, 1.0, v56")
    A("v_rcp_f32 v56, v56")
    A("s_nop 0")
    A("v_cvt_pk_bf16_f32 v2, 0, v56")
    A("v_sub_f32 v3, 1.0, v2")
    A("v_cvt_pk_bf16_f32 v3, 0, v3")
    A("s_waitcnt lgkmcnt(0) vmcnt(0)")
    for t in range(4):
        A(f"v_cvt_pk_bf16_f32 v{ACC+t}, v{ACC+t}, v{ACC+t}")
    for t in range(4):
        for k in range(4):
            A(f"v_and_b32 v{24+4*t+k}, v{ACC+t}, v{4+k}")
    def part_pollg():
        A(f"s_mov_b32 s56, {spin_max}")
        LB("L_pollg")
        A("s_mov_b32 s70, 0")
        A("s_atomic_add s70, s[24:25], s65 glc")
        A("s_waitcnt lgkmcnt(0)")
        A("s_cmp_ge_u32 s70, 128")
        A("s_cbranch_scc1 L_pollg_done")
        A("s_sleep 16")
        A("s_sub_u32 s56, s56, 1")
        A("s_cmp_lg_u32 s56, 0")
        A("s_cbranch_scc1 L_pollg")
        LB("L_pollg_done")
    srd(48, 12, 13, 0 if nobg&2 else 4096*448*2)
    A("v_mul_u32_u24 v18, 3584, v9")
    A("v_lshl_add_u32 v18, v8, 4, v18")
    A("v_mul_u32_u24 v19, 7168, v9")
    A("v_lshl_add_u32 v19, v8, 4, v19")
    A(f"s_mul_i32 s66, s66, {16*896}")
    A(f"s_mul_i32 s67, s31, {32*896}")
    A(f"s_add_u32 s68, s67, {4*896}")
    A(f"s_mov_b32 s59, {f2u(C_SCALE):#x}")
    A("v_lshlrev_b32 v10, 5, v1")
    A("v_lshrrev_b32 v11, 5, v1")
    A("v_lshlrev_b32 v11, 3, v11")
    A("v_lshrrev_b32 v15, 2, v1")
    A("v_mul_u32_u24 v15, 144, v15")
    A("v_and_b32 v12, 3, v1")
    A("v_lshl_add_u32 v15, v12, 5, v15")
    A(f"v_mul_u32_u24 v12, {OB1S}, v8")
    A("v_lshl_add_u32 v13, v9, 5, v12")
    A(f"s_mul_i32 s60, s28, {16*OB1S}")
    A("s_mul_i32 s61, s29, 144")
    A("s_add_u32 s60, s60, s61")
    A(f"s_add_u32 s60, s60, {OB1}")
    A("v_lshlrev_b32 v14, 5, v8")
    A("v_lshl_add_u32 v14, v9, 4, v14")
    part_pollg()
    def part_w():
        for t in range(4):
            for cb in range(4):
                b = 64 + 16*t + 4*cb
                A(f"buffer_load_dwordx4 v[{b}:{b+3}], v18, s[32:35], s66 offen offset:{t*896+cb*256} nt")
                if not defer: thr()
        for t in range(8):
            for cb in range(4):
                b = 128 + 16*t + 4*cb
                A(f"buffer_load_dwordx4 v[{b}:{b+3}], v19, s[48:51], s{67 + (t>>2)} offen offset:{(t&3)*896+cb*256} nt")
                if not defer: thr()
    def part_ffn2():
        A("s_waitcnt vmcnt(32)")
        for t in range(4):
            for cb in range(4):
                b = 64 + 16*t + 4*cb
                d = 40 + 4*cb
                c = "0" if t == 0 else f"v[{d}:{d+3}]"
                A(f"v_mfma_f32_16x16x32_bf16 v[{d}:{d+3}], v[{24+4*t}:{27+4*t}], v[{b}:{b+3}], {c}")
        A("s_nop 7")
        for k in range(16):
            A(f"v_mul_f32 v{40+k}, v3, v{40+k}")
    if not defer:
        part_w()
        part_ffn2()
    if NS < 32:
        A("s_lshl_b32 s74, s28, 12")
        A(f"s_add_u32 s74, s74, {TICK}")
        A("s_add_u32 s74, s26, s74")
        A("s_addc_u32 s75, s27, 0")
        A("s_mov_b32 s71, 0")
        A("s_mov_b32 s72, 0")
        A("s_mov_b32 s73, 0")
        A("v_mov_b32 v16, 0")
        A(f"s_mov_b32 s56, {spin_max*4}")
        LB("L_tk")
        A(f"ds_read_b32 v17, v16 offset:{L_CNT}")
        A("s_waitcnt lgkmcnt(0)")
        A("v_readfirstlane_b32 s70, v17")
        A("s_cmp_gt_u32 s70, s73")
        A("s_cbranch_scc1 L_tk_fetch")
        A(f"s_sleep {dsl}")
        A("s_sub_u32 s56, s56, 1")
        A("s_cmp_lg_u32 s56, 0")
        A("s_cbranch_scc1 L_tk")
        A("s_branch L_tk_done")
        LB("L_tk_fetch")
        A("s_mov_b32 s70, 1")
        A("s_atomic_add s70, s[74:75], 0 glc")
        A("v_mov_b32 v17, s71")
        A("s_waitcnt lgkmcnt(0)")
        A("v_mov_b32 v20, s70")
        A("s_add_u32 s71, s71, 4")
        A(f"s_sub_u32 s73, s71, {la}")
        A(f"ds_write_b32 v17, v20 offset:{L_WIN}")
        if defer:
            A(f"s_cmp_lt_u32 s70, {defer}")
            A("s_cbranch_scc1 L_tk")
            A("s_cmp_lg_u32 s72, 0")
            A("s_cbranch_scc1 L_tk_w")
            A("s_mov_b32 s72, 1")
            stamp(1)
            part_w()
            LB("L_tk_w")
        A(f"s_cmp_lt_u32 s70, {(32-NS)*16}")
        A("s_cbranch_scc1 L_tk")
        LB("L_tk_done")
    if defer:
        assert defer <= (32-NS)*16
        part_ffn2()
    A("s_waitcnt vmcnt(0) lgkmcnt(0)")
    if defer: stamp(2)
    A("s_barrier")
    stamp(5)
    if prof: A("s_waitcnt lgkmcnt(0)")
    for w in range(4):
        A(f"ds_read_b64 v[{56+2*w}:{57+2*w}], v11 offset:{L_ML+16*w}")
    for w in range(4):
        A(f"ds_read_b128 v[{64+8*w}:{67+8*w}], v10 offset:{L_O+2048*w}")
        A(f"ds_read_b128 v[{68+8*w}:{71+8*w}], v10 offset:{L_O+2048*w+16}")
    A("s_waitcnt lgkmcnt(8)")
    A("v_max3_f32 v16, v56, v58, v60")
    A("v_max_f32 v16, v16, v62")
    for w in range(4):
        A(f"v_sub_f32 v{56+2*w}, v{56+2*w}, v16")
    for w in range(4):
        A(f"v_mul_f32 v{56+2*w}, s59, v{56+2*w}")
    for w in range(4):
        A(f"v_exp_f32 v{56+2*w}, v{56+2*w}")
    A("s_nop 0")
    A("v_mul_f32 v17, v56, v57")
    for w in range(1, 4):
        A(f"v_fmac_f32 v17, v{56+2*w}, v{57+2*w}")
    A("s_waitcnt lgkmcnt(0)")
    for k in range(8):
        A(f"v_mul_f32 v{64+k}, v56, v{64+k}")
    for w in range(1, 4):
        for k in range(8):
            A(f"v_fmac_f32 v{64+k}, v{56+2*w}, v{64+8*w+k}")
    A("buffer_store_dwordx4 v[64:67], v15, s[40:43], s57 offen sc1")
    A("buffer_store_dwordx4 v[68:71], v15, s[40:43], s57 offen offset:16 sc1")
    A("s_mov_b32 s62, 0x11111111")
    A("s_mov_b32 s63, 0x11111111")
    A("s_mov_b64 exec, s[62:63]")
    A("buffer_store_dwordx2 v[16:17], v15, s[40:43], s57 offen offset:128 sc1")
    A("s_mov_b64 exec, -1")
    A(f"s_mov_b32 s56, {spin_max}")
    LB("L_poll1")
    A("buffer_load_dwordx4 v[72:75], v13, s[40:43], s60 offen sc1")
    A("buffer_load_dwordx4 v[76:79], v13, s[40:43], s60 offen offset:16 sc1")
    A("buffer_load_dwordx2 v[80:81], v12, s[40:43], s60 offen offset:128 sc1")
    A("s_waitcnt vmcnt(0)")
    A("v_max3_u32 v18, v72, v73, v74")
    A("v_max3_u32 v19, v75, v76, v77")
    A("v_max3_u32 v18, v18, v78, v79")
    A("v_max3_u32 v19, v19, v80, v81")
    A("v_max_u32 v18, v18, v19")
    A("v_cmp_eq_u32 vcc, -1, v18")
    A("s_cbranch_vccz L_poll1_done")
    A("s_mov_b64 exec, vcc")
    if adapt:
        A("s_bcnt1_i32_b64 s61, vcc")
        A("s_cmp_le_u32 s61, 12")
        A("s_cbranch_scc1 L_poll1_fast")
        A("s_sleep 16")
        LB("L_poll1_fast")
        A("s_sleep 1")
    else:
        A(f"s_sleep {sl1}")
    A("s_sub_u32 s56, s56, 1")
    A("s_cmp_lg_u32 s56, 0")
    A("s_cbranch_scc1 L_poll1")
    LB("L_poll1_done")
    A("s_mov_b64 exec, -1")
    A("s_barrier")
    stamp(6)
    A(f"v_max_f32_dpp v18, v80, v80 row_ror:8 {DPP}")
    for rr in (4, 2, 1):
        A("s_nop 1")
        A(f"v_max_f32_dpp v18, v18, v18 row_ror:{rr} {DPP}")
    A("v_sub_f32 v18, v80, v18")
    A("v_mul_f32 v18, s59, v18")
    A("v_exp_f32 v18, v18")
    A("s_nop 0")
    A("v_mul_f32 v80, v18, v81")
    for k in range(8):
        A(f"v_mul_f32 v{72+k}, v18, v{72+k}")
    for rr in (8, 4, 2, 1):
        for k in range(9):
            A(f"v_add_f32_dpp v{72+k}, v{72+k}, v{72+k} row_ror:{rr} {DPP}")
    A("v_rcp_f32 v80, v80")
    A("s_nop 0")
    for k in range(8):
        A(f"v_mul_f32 v{72+k}, v80, v{72+k}")
    for k in range(8):
        A(f"v_cvt_pk_bf16_f32 v{72+k}, v{72+k}, v{72+k}")
    for t in range(8):
        for k in range(4):
            A(f"v_and_b32 v{88+4*t+k}, v{72+t}, v{4+k}")
        if t >= 1:
            tt = t - 1
            for cb in range(4):
                b = 128 + 16*tt + 4*cb
                d = 16 + 4*cb
                c = "0" if tt == 0 else f"v[{d}:{d+3}]"
                A(f"v_mfma_f32_16x16x32_bf16 v[{d}:{d+3}], v[{88+4*tt}:{91+4*tt}], v[{b}:{b+3}], {c}")
    tt = 7
    for cb in range(4):
        b = 128 + 16*tt + 4*cb
        d = 16 + 4*cb
        A(f"v_mfma_f32_16x16x32_bf16 v[{d}:{d+3}], v[{88+4*tt}:{91+4*tt}], v[{b}:{b+3}], v[{d}:{d+3}]")
    A("s_mov_b32 s62, -1")
    A("s_mov_b32 s63, 0")
    A("s_nop 3")
    for cb in range(4):
        for k in range(4):
            A(f"v_fmac_f32 v{40+4*cb+k}, v2, v{16+4*cb+k}")
        if cb == 0:
            A("s_mov_b64 exec, s[62:63]")
        if cb == 3:
            A("s_mov_b32 s62, 0x00ff00ff")
            A("s_mov_b64 exec, s[62:63]")
        A(f"buffer_store_dwordx4 v[{40+4*cb}:{43+4*cb}], v14, s[40:43], s58 offen offset:{512*cb} sc1")
    A("s_mov_b64 exec, -1")
    stamp(7)
    dump_stamps("service")
    LB("L_end")
    A("s_endpgm")
    L.append('.section .rodata,"a"')
    L.append(".p2align 6")
    L.append(f".amdhsa_kernel {NAME}_kernel")
    L.append("  .amdhsa_next_free_vgpr 256")
    L.append("  .amdhsa_next_free_sgpr 96")
    L.append("  .amdhsa_accum_offset 256")
    L.append("  .amdhsa_group_segment_fixed_size 0")
    L.append("  .amdhsa_kernarg_size 96")
    L.append("  .amdhsa_user_sgpr_count 2")
    L.append("  .amdhsa_user_sgpr_kernarg_segment_ptr 1")
    L.append("  .amdhsa_system_sgpr_workgroup_id_x 1")
    L.append(".end_amdhsa_kernel")
    return "\n".join(L) + "\n"


if __name__ == "__main__":
    out = sys.argv[1]
    kw = {}
    for a in sys.argv[2:]:
        k, v = a.split("=")
        kw[k] = int(v) if v.isdigit() else v
    open(out, "w").write(gen(**kw))
```

```python
import sys, math

NAME = "gated_mix__gqa_block_cached__dense_activation_silu__decode"
HEADER = open("cdna_kernels/" + NAME + ".s.ref").read().split("; Override launch")[0]

QBOX = 0x0
TICK = 0x10000
OB1 = 0x40000
OB1S = 2304
OB2 = 0x200000
OB2S = 1792
STAMP = 0x20000000
L_Q = 0
L_S = 1024
L_O = L_S + 16384
L_ML = L_O + 8192
L_H = L_ML + 64
L_QP = L_H + 64
L_CNT = L_QP + 512
L_WIN = L_CNT + 64
LDS_BYTES = L_WIN + 1024

C_SCALE = (1.0 / 16.0) * math.log2(math.e)
import struct
def f2u(x): return struct.unpack("<I", struct.pack("<f", x))[0]


def gen(prof=0, NPRE=6, PFI=1, early=1, spin_max=200000, sl1=4, sl2=2, slq=1, fbk=4, late=4, NS=28, fl=0, bm='kkwwrtttttxxx', DEP=1, kw8=0, SB=64, nobg=0, nowq=0, noclr=0, ptile=0, flv=-1, qx=0, ackf=1, kfirst=0, vth=0, kth=0, defer=0, dsl=4, jit=0, la=0, adapt=1, tfix=0):
    L = []
    A = lambda s: L.append("  " + s)
    LB = lambda s: L.append(s + ":")
    nstamp = [0]

    def stamp(k, svc=[False]):
        if k == 'service':
            svc[0] = True
            return
        if ptile and not svc[0] and k not in (0, 7, 2):
            return
        if ptile and not svc[0] and k == 2:
            k = 6
        if prof:
            A(f"s_memrealtime s[{80+2*k}:{81+2*k}]")

    def dump_dbg(pairs):
        A("s_waitcnt lgkmcnt(0)")
        srd(52, 24, 25, 256)
        A("v_mov_b32 v56, 0")
        for (k, sp) in pairs:
            A(f"s_not_b32 s56, s{80+2*k}")
            A(f"v_writelane_b32 v56, s56, {2*sp}")
            A(f"v_writelane_b32 v56, s{80+2*k}, {2*sp+1}")
        A("v_lshlrev_b32 v57, 2, v1")
        A("s_mov_b64 exec, 0xffff")
        A("buffer_atomic_umax v56, v57, s[52:55], 0 offen")
        A("s_mov_b64 exec, -1")

    def dump_stamps(kind=None):
        if not prof:
            return
        if prof == 2:
            dump_dbg({"stream": [(0,0),(2,1),(3,2),(4,3)], "service": [(2,5),(3,6),(6,7)]}[kind])
            return
        A("s_waitcnt lgkmcnt(0)")
        A("s_lshl_b32 s56, s2, 3")
        A("s_add_u32 s56, s56, s3")
        A("s_lshl_b32 s56, s56, 6")
        A(f"s_add_u32 s56, s56, {STAMP}")
        A("s_mov_b64 exec, 1")
        A("v_mov_b32 v60, 0")
        for q in range(4):
            for j in range(4):
                A(f"v_mov_b32 v{56+j}, s{80+4*q+j}")
            A(f"buffer_store_dwordx4 v[56:59], v60, s[40:43], s56 offen offset:{16*q}")
            A("s_nop 1")
        A("s_mov_b64 exec, -1")

    def srd(d, lo, hi, n):
        A(f"s_mov_b32 s{d}, s{lo}")
        A(f"s_mov_b32 s{d+1}, s{hi}")
        A(f"s_mov_b32 s{d+2}, {n}")
        A(f"s_mov_b32 s{d+3}, 0x00020000")

    DPP = "row_mask:0xf bank_mask:0xf"
    ACC = 16
    XR = 32
    def matvec_pairs(npairs, wbase, xbase, tail_ops):
        for u in range(npairs):
            A(f"s_waitcnt vmcnt({2*npairs - (2*u+2) + tail_ops})")
            w0 = wbase + 8*u; w1 = w0 + 4
            for k in range(4):
                A(f"v_perm_b32 v{52+k}, v{w1+k}, v{w0+k}, s60")
                A(f"v_perm_b32 v{56+k}, v{w1+k}, v{w0+k}, s61")
            for k in range(4):
                A(f"v_dot2c_f32_bf16 v{ACC+2*k}, v{52+k}, v{xbase+u}")
                A(f"v_dot2c_f32_bf16 v{ACC+2*k+1}, v{56+k}, v{xbase+u}")
        A("s_nop 3")
        for k in range(4):
            A(f"v_permlane32_swap_b32 v{ACC+k}, v{ACC+4+k}")
        A("s_nop 1")
        for k in range(4):
            A(f"v_add_f32 v{ACC+k}, v{ACC+k}, v{ACC+4+k}")
        A("s_nop 1")
        for k in range(2):
            A(f"v_permlane16_swap_b32 v{ACC+k}, v{ACC+2+k}")
        A("s_nop 1")
        for k in range(2):
            A(f"v_add_f32 v{ACC+k}, v{ACC+k}, v{ACC+2+k}")
        for rr in (8, 4):
            A("s_nop 1")
            for k in range(2):
                A(f"v_add_f32_dpp v{ACC+k}, v{ACC+k}, v{ACC+k} row_ror:{rr} {DPP}")
    def make_masks(t0, t1):
        A(f"v_and_b32 v{t0}, 1, v1")
        A(f"v_lshlrev_b32 v{t0}, 4, v{t0}")
        A(f"v_mov_b32 v{t1}, 0xffff")
        A(f"v_lshlrev_b32 v{t1}, v{t0}, v{t1}")
        A(f"v_bfe_u32 v{t0}, v1, 1, 2")
        for k in range(4):
            A(f"v_cmp_eq_u32 vcc, {k}, v{t0}")
            A("s_nop 1")
            A(f"v_cndmask_b32 v{4+k}, 0, v{t1}, vcc")
    L.append(HEADER.rstrip("\n"))
    L.append(f"; @launch grid=(256,1,1) block=(320,1,1) lds={LDS_BYTES}")
    L.append('.amdgcn_target "amdgcn-amd-amdhsa--gfx950"')
    L.append(".text")
    L.append(f".globl {NAME}_kernel")
    L.append(".p2align 8")
    L.append(f".type {NAME}_kernel,@function")
    LB(f"{NAME}_kernel")
    A("s_cmp_ge_u32 s2, 256")
    A("s_cbranch_scc1 L_end")
    A("s_load_dwordx16 s[4:19], s[0:1], 0")
    A("s_load_dwordx8 s[20:27], s[0:1], 64")
    if prof:
        for k in range(8):
            A(f"s_mov_b64 s[{80+2*k}:{81+2*k}], 0")
    stamp(0)
    if tfix: A("s_memrealtime s[96:97]")
    A("v_lshrrev_b32 v2, 6, v0")
    A("v_and_b32 v1, 63, v0")
    A("v_readfirstlane_b32 s3, v2")
    A("s_lshr_b32 s28, s2, 4")
    A("s_and_b32 s29, s2, 15")
    A("s_lshr_b32 s30, s2, 7")
    A("s_and_b32 s31, s2, 127")
    if qx:
        A("s_and_b32 s64, s31, 7")
        A("s_lshl_b32 s64, s64, 4")
        A("s_lshr_b32 s65, s31, 3")
        A("s_add_u32 s64, s64, s65")
    else:
        A("s_and_b32 s64, s29, 7")
        A("s_lshl_b32 s64, s64, 1")
        A("s_lshr_b32 s65, s29, 3")
        A("s_add_u32 s64, s64, s65")
        A("s_andn2_b32 s65, s31, 15")
        A("s_add_u32 s64, s64, s65")
    A("v_and_b32 v8, 15, v1")
    A("v_lshrrev_b32 v9, 4, v1")
    A("s_waitcnt lgkmcnt(0)")
    srd(40, 26, 27, "0x40000000")
    A("s_cmp_lg_u32 s3, 4")
    A("s_cbranch_scc1 L_stream")
    A("v_lshlrev_b32 v10, 5, v1")
    A("s_lshl_b32 s56, s28, 11")
    A(f"buffer_load_dwordx4 v[64:67], v10, s[40:43], s56 offen offset:{QBOX} sc1")
    A(f"buffer_load_dwordx4 v[68:71], v10, s[40:43], s56 offen offset:{QBOX+16} sc1")
    A("v_and_b32 v11, 3, v1")
    A("v_lshlrev_b32 v12, 5, v11")
    A("v_lshl_add_u32 v12, v9, 3, v12")
    A("s_lshl_b32 s59, s30, 7")
    A("s_add_u32 s59, s59, s64")
    A("s_lshl_b32 s59, s59, 7")
    A(f"buffer_load_dwordx2 v[72:73], v12, s[40:43], s59 offen offset:{QBOX} sc1")
    A("s_branch L_service")
    LB("L_stream")

    srd(32, 6, 7, "0x10000000")
    srd(36, 8, 9, "0x10000000")
    assert len(bm) == 13 and sorted(bm) == sorted('kkwwrtttttxxx')
    pos = {c: [11+i for i, ch in enumerate(bm) if ch == c] for c in 'kwrxt'}
    def runs(positions):
        out = []
        for i, p in enumerate(positions):
            if out and out[-1][1] + out[-1][2] == p: out[-1][2] += 1
            else: out.append([i, p, 1])
        return out
    def deposit(dst, src, srcbit0, positions, tmp):
        for (sb, db, n) in runs(positions):
            A(f"s_bfe_u32 s{tmp}, s{src}, {(n << 16) | (sb + srcbit0):#x}")
            A(f"s_lshl_b32 s{tmp}, s{tmp}, {db}")
            A(f"s_or_b32 s{dst}, s{dst}, s{tmp}")
    A("s_lshl_b32 s56, s28, 24")
    deposit(56, 3, 0, pos['w'], 57)
    deposit(56, 29, 0, pos['x'], 57)
    deposit(56, 29, 3, pos['r'], 57)
    TM = sum(1 << p for p in pos['t'])
    def tstep():
        if len(runs(pos['t'])) == 1:
            A(f"s_add_u32 s57, s57, {1 << pos['t'][0]:#x}")
        else:
            A(f"s_or_b32 s57, s57, {(~TM) & 0xffffffff:#x}")
            A(f"s_add_u32 s57, s57, {1 << pos['t'][0]:#x}")
            A(f"s_and_b32 s57, s57, {TM:#x}")
            A("s_or_b32 s57, s57, s56")
    def vdeposit(dst, src, tmp):
        if pos['k'][1] == pos['k'][0] + 1:
            A(f"v_lshlrev_b32 v{dst}, {pos['k'][0]}, v{src}")
        else:
            A(f"v_and_b32 v{tmp}, 1, v{src}")
            A(f"v_lshrrev_b32 v{dst}, 1, v{src}")
            A(f"v_lshlrev_b32 v{dst}, {pos['k'][1]}, v{dst}")
            A(f"v_lshl_add_u32 v{dst}, v{tmp}, {pos['k'][0]}, v{dst}")
    A("v_lshrrev_b32 v3, 2, v8")
    vdeposit(2, 3, 10)
    A("v_lshl_add_u32 v2, v9, 6, v2")
    vdeposit(3, 9, 10)
    A("v_lshl_add_u32 v3, v8, 4, v3")
    A("v_and_b32 v10, 3, v1")
    A("v_lshl_add_u32 v2, v10, 4, v2")
    SLOT0 = 64
    def slot(sl, i): return SLOT0 + 32*sl + 4*i
    def issue(kind, sl, sreg):
        srdn = "s[32:35]" if kind == 'k' else "s[36:39]"
        va = "v2" if kind == 'k' else "v3"
        for i in range(8):
            b = slot(sl, i)
            A(f"buffer_load_dwordx4 v[{b}:{b+3}], {va}, {srdn}, {sreg} offen offset:{(i>>1)*512+(i&1)*256} {['nt','sc1 nt','sc0 sc1 nt','sc0 nt','','sc1','sc0 sc1'][fl if (kind == 'k' or flv < 0) else flv]}")
    if kfirst:
        issue('k', 0, "s56")
    A("s_mul_i32 s57, s30, 896")
    A("s_add_u32 s44, s4, s57")
    A("s_addc_u32 s45, s5, 0")
    A("s_mov_b32 s46, 896")
    A("s_mov_b32 s47, 0x00020000")
    srd(48, 10, 11, 0 if nowq else 448*4096*2)
    A("v_lshrrev_b32 v12, 2, v1")
    A("s_mul_i32 s57, s3, 14")
    A("v_cmp_gt_u32 vcc, 14, v12")
    A("v_add_u32 v12, s57, v12")
    A("v_mov_b32 v13, 0x4000")
    A("v_cndmask_b32 v12, v13, v12, vcc")
    A("v_lshlrev_b32 v13, 16, v12")
    A("v_lshl_add_u32 v13, v10, 4, v13")
    A("v_lshlrev_b32 v12, 4, v12")
    A(f"buffer_load_dwordx4 v[{XR}:{XR+3}], v12, s[44:47], 0 offen")
    A("s_lshl_b32 s57, s64, 6")
    WQB = slot(NPRE-1, 0)
    for t in range(8):
        A(f"buffer_load_dwordx4 v[{WQB+4*t}:{WQB+4*t+3}], v13, s[48:51], s57 offen nt")
        A("s_add_u32 s57, s57, 0x2000")
    A("s_mov_b32 s57, s56")
    if kfirst:
        early = 2
        tstep()
    else:
        for t in range(early):
            issue('k', t, "s57")
            tstep()
    A("s_mov_b32 s60, 0x05040100")
    A("s_mov_b32 s61, 0x07060302")
    for k in range(8):
        A(f"v_mov_b32 v{ACC+k}, 0")
    A("v_lshlrev_b32 v12, 5, v10")
    A("v_lshl_add_u32 v12, v9, 3, v12")
    A("s_lshl_b32 s58, s3, 7")
    A("v_add_u32 v12, s58, v12")
    if kfirst:
        A("s_waitcnt vmcnt(9)")
        if ptile: A(f"s_memrealtime s[82:83]")
        issue('k', 1, "s57")
        tstep()
    matvec_pairs(4, WQB, XR, 8 if kfirst else 8*early)
    A("s_mov_b32 s62, 0x000f000f")
    A("s_mov_b32 s63, 0x000f000f")
    A("s_mov_b64 exec, s[62:63]")
    A(f"ds_write_b64 v12, v[{ACC}:{ACC+1}] offset:{L_QP}")
    A("s_mov_b64 exec, -1")
    A("s_waitcnt lgkmcnt(0)")
    A("s_barrier")
    stamp(7)
    for t in range(early, NPRE):
        if t >= PFI:
            A(f"s_waitcnt vmcnt({8*(PFI-1)})")
        if ptile: A(f"s_memrealtime s[{80+2*t}:{81+2*t}]")
        issue('k', t, "s57")
        tstep()
        if t == early:
            A("v_bfe_u32 v12, v1, 3, 1")
            A("v_lshlrev_b32 v13, 2, v12")
            A("v_add_u32 v13, v13, v9")
            A("v_lshlrev_b32 v12, 9, v12")
            A("v_lshl_add_u32 v12, v9, 6, v12")
            A("v_lshl_add_u32 v12, v10, 4, v12")
            A("s_lshl_b32 s58, s3, 12")
            A(f"s_add_u32 s58, s58, {L_S}")
            A("v_lshlrev_b32 v13, 4, v13")
            A("v_add_u32 v13, s58, v13")
            make_masks(56, 57)
            A("v_mov_b32 v14, 0xff800000")
            A("v_mov_b32 v15, 0")
            for r in range(8):
                A(f"v_mov_b32 v{24+r}, 0")
            A(f"s_mov_b32 s59, {f2u(C_SCALE):#x}")
    stamp(1)
    A("s_barrier")
    A(f"ds_read_b128 v[16:19], v12 offset:{L_Q}")
    A(f"ds_read_b128 v[20:23], v12 offset:{L_Q+256}")
    stamp(2)
    A("s_waitcnt lgkmcnt(0)")

    def kproc(sl, soff, mid=None, dyn=False):
        for r in range(4):
            d = 32 + 4*r
            a0 = slot(sl, 2*r); a1 = slot(sl, 2*r+1)
            A(f"v_mfma_f32_16x16x32_bf16 v[{d}:{d+3}], v[{a0}:{a0+3}], v[16:19], 0")
            A(f"v_mfma_f32_16x16x32_bf16 v[{d}:{d+3}], v[{a1}:{a1+3}], v[20:23], v[{d}:{d+3}]")
        if mid: mid()
        else: A("s_nop 1")
        for r in range(4):
            d = 32 + 4*r
            s = 48 + r
            if r == 3: pass
            A(f"v_mov_b32_dpp v{s}, v{d} quad_perm:[0,0,0,0] {DPP}")
            A(f"v_add_f32_dpp v{s}, v{d+1}, v{s} quad_perm:[1,1,1,1] {DPP}")
            A(f"v_add_f32_dpp v{s}, v{d+2}, v{s} quad_perm:[2,2,2,2] {DPP}")
            A(f"v_add_f32_dpp v{s}, v{d+3}, v{s} quad_perm:[3,3,3,3] {DPP}")
            A(f"v_cvt_pk_bf16_f32 v{s}, 0, v{s}")
        if dyn:
            return
        A("v_max3_f32 v14, v14, v48, v49")
        A("v_max3_f32 v14, v14, v50, v51")
        A(f"ds_write_b128 v13, v[48:51] offset:{soff}")

    assert NPRE % 2 == 0 and NPRE >= 2
    for t in range(NPRE):
        later = (NPRE - 1 - t) + min(t, DEP)
        A(f"s_waitcnt vmcnt({min(63, 8*later)})")
        if t < DEP:
            def mid0():
                issue('k', t, "s57")
                tstep()
            kproc(t, t*128, mid0)
        else:
            kproc(t, t*128)
    A(f"v_add_u32 v13, {NPRE*128}, v13")
    NLOOP = (NS - NPRE - 2)//2
    A(f"s_mov_b32 s58, {NLOOP}")
    assert DEP == 1 or late >= 1
    def kstep(sl, soff, nxt):
        A(f"s_waitcnt vmcnt({8*(DEP-1)})")
        if late == 0:
            nxt()
            kproc(sl, soff)
        elif late == 1:
            kproc(sl, soff, nxt)
        else:
            kproc(sl, soff)
            if kw8: A("s_waitcnt lgkmcnt(0)")
            for i in range(kth): A("s_nop 15")
            nxt()
    def nk(sl):
        def f():
            issue('k', sl, "s57")
            tstep()
        return f
    LB("L_kloop")
    kstep(0, 0, nk(2-DEP))
    kstep(1, 128, nk(DEP-1))
    A("v_add_u32 v13, 256, v13")
    A("s_sub_u32 s58, s58, 1")
    A("s_cmp_lg_u32 s58, 0")
    A("s_cbranch_scc1 L_kloop")
    def nv0():
        A("s_mov_b32 s57, s56")
        issue('v', 0, "s57")
        tstep()
    def nv1():
        issue('v', 1, "s57")
        tstep()
    if DEP == 1:
        kstep(0, 0, nk(1))
        kstep(1, 128, nv0)
    else:
        kstep(0, 0, nv0)
        kstep(1, 128, nv1)
    stamp(3)
    A(f"v_subrev_u32 v13, {(NS-2)*128}, v13")
    A("v_mov_b32 v10, v14")
    A("s_nop 1")
    A("v_permlane32_swap_b32 v10, v14")
    A("s_nop 1")
    A("v_max_f32 v14, v10, v14")
    A("v_mov_b32 v10, v14")
    A("s_nop 1")
    A("v_permlane16_swap_b32 v10, v14")
    A("s_nop 1")
    A("v_max_f32 v14, v10, v14")
    A("v_mul_f32 v11, s59, v14")
    A("s_waitcnt lgkmcnt(0)")
    A("ds_read_b128 v[48:51], v13")
    def pprep(sc):
        for r in range(4):
            A(f"v_fma_f32 v{sc+r}, v{sc+r}, s59, -v11")
        for r in range(4):
            A(f"v_exp_f32 v{sc+r}, v{sc+r}")
        A("s_nop 0")
        A(f"v_add_f32 v56, v{sc}, v{sc+1}")
        A(f"v_add_f32 v57, v{sc+2}, v{sc+3}")
        for r in range(4):
            A(f"v_cvt_pk_bf16_f32 v{sc+r}, v{sc+r}, v{sc+r}")
        A("v_add_f32 v56, v56, v57")
        A("v_add_f32 v15, v15, v56")
        for r in range(4):
            for k in range(4):
                A(f"v_and_b32 v{32+4*r+k}, v{sc+r}, v{4+k}")
    def pv(sl):
        for r in range(4):
            a = 32 + 4*r
            b0 = slot(sl, 2*r); b1 = slot(sl, 2*r+1)
            A(f"v_mfma_f32_16x16x32_bf16 v[24:27], v[{a}:{a+3}], v[{b0}:{b0+3}], v[24:27]")
            A(f"v_mfma_f32_16x16x32_bf16 v[28:31], v[{a}:{a+3}], v[{b1}:{b1+3}], v[28:31]")
    def vstep(sl, snext_off, nxt, pre=None):
        sc = 48 + 4*sl
        sn = 48 + 4*(1-sl)
        if late >= 3:
            cur_off = (snext_off - 128) if snext_off is not None else 128
            A("s_waitcnt vmcnt(0)")
            if late == 3:
                A(f"ds_read_b128 v[{sc}:{sc+3}], v13 offset:{cur_off}")
            A("s_waitcnt lgkmcnt(0)")
            if late == 4 and snext_off is not None:
                A(f"ds_read_b128 v[{sn}:{sn+3}], v13 offset:{snext_off}")
            if pre: pre()
            pprep(sc)
            A("s_nop 1")
            pv(sl)
            for i in range(vth): A("s_nop 15")
            if nxt: nxt()
            return
        A("s_waitcnt lgkmcnt(0)")
        if snext_off is not None:
            A(f"ds_read_b128 v[{sn}:{sn+3}], v13 offset:{snext_off}")
        if pre: pre()
        pprep(sc)
        A(f"s_waitcnt vmcnt({8*(DEP-1)})")
        if nxt and late == 0: nxt()
        else: A("s_nop 0")
        pv(sl)
        if nxt and late >= 1: nxt()
    def nv(sl):
        def f():
            issue('v', sl, "s57")
            tstep()
        return f
    def req_ticket():
        A("v_mov_b32 v58, 0")
        A("v_mov_b32 v59, 1")
        A("s_mov_b64 exec, 1")
        A(f"ds_add_rtn_u32 v59, v58, v59 offset:{L_CNT}")
        A("s_mov_b64 exec, -1")
    nlab = [0]
    def take_ticket():
        nlab[0] += 1
        n = nlab[0]
        A("s_waitcnt lgkmcnt(0)")
        A("v_readfirstlane_b32 s76, v59")
        A(f"s_mov_b32 s79, {spin_max}")
        A("s_andn2_b32 s77, s76, 3")
        A("v_mov_b32 v58, s77")
        LB(f"L_win{n}")
        A(f"ds_read_b32 v60, v58 offset:{L_WIN}")
        A("s_waitcnt lgkmcnt(0)")
        A("v_readfirstlane_b32 s77, v60")
        A("s_cmp_lg_u32 s77, -1")
        A(f"s_cbranch_scc1 L_win{n}_ok")
        A("s_sleep 1")
        A("s_sub_u32 s79, s79, 1")
        A("s_cmp_lg_u32 s79, 0")
        A(f"s_cbranch_scc1 L_win{n}")
        A("s_mov_b32 s77, 0x10000")
        LB(f"L_win{n}_ok")
        A("s_and_b32 s76, s76, 3")
        A("s_lshl_b32 s77, s77, 2")
        A("s_or_b32 s76, s76, s77")
        A("s_lshl_b32 s78, s28, 24")
        deposit(78, 76, 0, sorted(pos['w'] + pos['r'] + pos['x']), 77)
        A(f"s_add_u32 s79, s76, {NS*64}")
        deposit(78, 79, 6, pos['t'], 77)
        A(f"s_cmp_lt_u32 s76, {(32-NS)*64}")
        A("s_cselect_b32 s34, 0x10000000, 0")
        A("s_cselect_b32 s38, 0x10000000, 0")
        A("s_cselect_b32 s77, 1, 0")
        if not jit:
            A(f"s_cbranch_scc0 L_notick{n}")
            req_ticket()
            LB(f"L_notick{n}")
    A(f"s_mov_b32 s58, {(NS-2*DEP)//2}")
    LB("L_vloop")
    vstep(0, 128, nv(2-DEP))
    vstep(1, 256, nv(DEP-1))
    A("v_add_u32 v13, 256, v13")
    A("s_sub_u32 s58, s58, 1")
    A("s_cmp_lg_u32 s58, 0")
    A("s_cbranch_scc1 L_vloop")
    if NS == 32:
        assert DEP == 1
        vstep(0, 128, nv(1))
        vstep(1, None, None)
    else:
        if DEP == 1:
            vstep(0, 128, nv(1), req_ticket)
            def first_dyn():
                issue('k', 2, "s78")
                issue('v', 3, "s78")
            vstep(1, None, first_dyn, take_ticket)
        else:
            vstep(0, 128, nv(0))
            vstep(1, 256, nv(1), req_ticket)
            vstep(0, 384, lambda: issue('k', 2, "s78"), take_ticket)
            vstep(1, None, lambda: issue('v', 3, "s78"))
        stamp(1)
        A("s_cmp_lg_u32 s77, 0")
        A("s_cbranch_scc0 L_dyn_done")
        LB("L_dyn")
        A("s_waitcnt vmcnt(8)")
        if jit: req_ticket()
        kproc(2, 0, None, True)
        A("v_max3_f32 v10, v48, v49, v50")
        A("v_max_f32 v10, v10, v51")
        A("v_cmp_gt_f32 vcc, v10, v14")
        A("s_cbranch_vccnz L_rare")
        LB("L_back")
        pprep(48)
        if jit:
            A("s_waitcnt vmcnt(0)")
            pv(3)
            take_ticket()
            issue('k', 2, "s78")
            issue('v', 3, "s78")
        else:
            take_ticket()
            A("s_waitcnt vmcnt(0)")
            issue('k', 2, "s78")
            pv(3)
            issue('v', 3, "s78")
        A("s_cmp_lg_u32 s77, 0")
        A("s_cbranch_scc1 L_dyn")
        A("s_branch L_dyn_done")
        LB("L_rare")
        A("v_max_f32 v10, v10, v14")
        A("v_mov_b32 v56, v10")
        A("s_nop 1")
        A("v_permlane32_swap_b32 v56, v10")
        A("s_nop 1")
        A("v_max_f32 v10, v10, v56")
        A("v_mov_b32 v56, v10")
        A("s_nop 1")
        A("v_permlane16_swap_b32 v56, v10")
        A("s_nop 1")
        A("v_max_f32 v10, v10, v56")
        A("v_sub_f32 v56, v14, v10")
        A("v_mul_f32 v56, s59, v56")
        A("v_exp_f32 v56, v56")
        A("v_mov_b32 v14, v10")
        A("v_mul_f32 v11, s59, v10")
        A("v_mul_f32 v15, v15, v56")
        A("v_readlane_b32 s60, v56, 0")
        A("v_readlane_b32 s61, v56, 8")
        A("s_mov_b32 s62, 0")
        A("s_mov_b32 s63, -1")
        A("v_mov_b32 v57, s60")
        A("s_mov_b64 exec, s[62:63]")
        A("v_mov_b32 v57, s61")
        A("s_mov_b64 exec, -1")
        for r in range(8):
            A(f"v_mul_f32 v{24+r}, v57, v{24+r}")
        A("s_branch L_back")
        LB("L_dyn_done")
    A("v_mov_b32 v10, v15")
    A("v_lshrrev_b32 v12, 1, v9")
    A("v_lshlrev_b32 v12, 10, v12")
    A("v_permlane32_swap_b32 v10, v15")
    A("v_lshl_add_u32 v12, v8, 5, v12")
    A("v_add_f32 v15, v10, v15")
    A("v_mov_b32 v10, v15")
    A("v_and_b32 v13, 1, v9")
    A("v_lshl_add_u32 v12, v13, 4, v12")
    A("v_permlane16_swap_b32 v10, v15")
    A("s_lshl_b32 s58, s3, 11")
    A("v_add_u32 v12, s58, v12")
    A("v_add_f32 v15, v10, v15")
    A("s_lshl_b32 s58, s3, 4")
    A("v_and_b32 v13, 8, v1")
    A("v_add_u32 v13, s58, v13")
    A(f"ds_write_b128 v12, v[24:27] offset:{L_O}")
    A(f"ds_write_b128 v12, v[28:31] offset:{L_O+512}")
    A("s_mov_b64 exec, 0x101")
    A(f"ds_write_b64 v13, v[14:15] offset:{L_ML}")
    A("s_mov_b64 exec, -1")
    stamp(4)
    A("s_waitcnt lgkmcnt(0)")
    A("s_barrier")
    A("s_cmp_lg_u32 s3, 0")
    A("s_cbranch_scc1 L_fin")
    A("s_cmp_ge_u32 s31, 28")
    A("s_cbranch_scc1 L_fin")
    srd(44, 22, 23, 1792)
    A("v_lshrrev_b32 v10, 2, v1")
    A(f"v_mul_u32_u24 v10, {OB2S}, v10")
    A("v_and_b32 v11, 3, v1")
    A("v_lshl_add_u32 v10, v11, 4, v10")
    A(f"s_mul_i32 s58, s30, {128*OB2S}")
    A("s_lshl_b32 s61, s31, 6")
    A("s_add_u32 s58, s58, s61")
    A(f"s_add_u32 s58, s58, {OB2}")
    A(f"s_mov_b32 s60, {spin_max}")
    for t in range(8):
        A(f"s_mov_b64 s[{64+2*t}:{65+2*t}], -1")
    A("s_barrier")
    LB("L_poll2")
    for t in range(8):
        A(f"s_mov_b64 exec, s[{64+2*t}:{65+2*t}]")
        A(f"s_cbranch_execz L_p2s{t}")
        A(f"s_add_u32 s61, s58, {t*16*OB2S}")
        A(f"buffer_load_dwordx4 v[{64+4*t}:{67+4*t}], v10, s[40:43], s61 offen sc1")
        LB(f"L_p2s{t}")
    A("s_mov_b64 exec, -1")
    A("s_waitcnt vmcnt(0)")
    for t in range(8):
        A(f"v_max3_u32 v{12+(t&1)}, v{64+4*t}, v{65+4*t}, v{66+4*t}")
        A(f"v_max_u32 v{12+(t&1)}, v{12+(t&1)}, v{67+4*t}")
        A(f"v_cmp_eq_u32 s[{64+2*t}:{65+2*t}], -1, v{12+(t&1)}")
    A("s_or_b64 s[62:63], s[64:65], s[66:67]")
    for t in range(2, 8):
        A(f"s_or_b64 s[62:63], s[62:63], s[{64+2*t}:{65+2*t}]")
    A("s_cbranch_scc0 L_poll2_done")
    A(f"s_sleep {sl2}")
    A("s_sub_u32 s60, s60, 1")
    A("s_cmp_lg_u32 s60, 0")
    A("s_cbranch_scc1 L_poll2")
    LB("L_poll2_done")
    stamp(5)
    for step in (16, 8, 4):
        for k in range(step):
            A(f"v_add_f32 v{64+k}, v{64+k}, v{64+step+k}")
    A("s_nop 1")
    A("v_permlane32_swap_b32 v64, v66")
    A("v_permlane32_swap_b32 v65, v67")
    A("s_nop 1")
    A("v_add_f32 v64, v64, v66")
    A("v_add_f32 v65, v65, v67")
    A("v_mov_b32 v66, v64")
    A("v_mov_b32 v67, v65")
    A("s_nop 1")
    A("v_permlane16_swap_b32 v66, v64")
    A("v_permlane16_swap_b32 v67, v65")
    A("s_nop 1")
    A("v_add_f32 v64, v64, v66")
    A("v_add_f32 v65, v65, v67")
    A("s_nop 1")
    A(f"v_add_f32_dpp v64, v64, v64 row_ror:8 {DPP}")
    A(f"v_add_f32_dpp v65, v65, v65 row_ror:8 {DPP}")
    A("s_nop 1")
    A(f"v_add_f32_dpp v64, v64, v64 row_ror:4 {DPP}")
    A(f"v_add_f32_dpp v65, v65, v65 row_ror:4 {DPP}")
    A("v_lshrrev_b32 v12, 5, v1")
    A("v_lshlrev_b32 v12, 2, v12")
    A("v_lshl_add_u32 v12, v11, 3, v12")
    A("v_cvt_pk_bf16_f32 v64, v64, v65")
    A("s_mul_i32 s58, s30, 896")
    A("s_lshl_b32 s61, s31, 5")
    A("s_add_u32 s58, s58, s61")
    A("s_mov_b32 s60, 15")
    A("s_mov_b32 s61, 15")
    if tfix:
        LB("L_tfix")
        A("s_memrealtime s[98:99]")
        A("s_waitcnt lgkmcnt(0)")
        A("s_sub_u32 s98, s98, s96")
        A(f"s_cmp_lt_u32 s98, {tfix*100}")
        A("s_cbranch_scc1 L_tfix")
    A("s_mov_b64 exec, s[60:61]")
    A("buffer_store_dword v64, v12, s[44:47], s58 offen")
    A("s_mov_b64 exec, -1")
    stamp(6)
    if prof == 2: dump_dbg([(6,4)])
    LB("L_fin")
    dump_stamps("stream")
    A("s_endpgm")

    LB("L_service")
    stamp('service')
    A("s_mul_i32 s60, s30, 896")
    A("s_add_u32 s44, s4, s60")
    A("s_addc_u32 s45, s5, 0")
    A("s_mov_b32 s46, 896")
    A("s_mov_b32 s47, 0x00020000")
    A("s_mov_b32 s51, 0x00020000")
    for k in range(4):
        A(f"v_mov_b32 v{48+k}, -1")
    A("v_lshlrev_b32 v14, 4, v1")
    A(f"s_mul_i32 s57, s2, {OB1S}")
    A(f"s_add_u32 s57, s57, {OB1}")
    A(f"s_mul_i32 s58, s2, {OB2S}")
    A(f"s_add_u32 s58, s58, {OB2}")
    if noclr: A("s_mov_b64 exec, 1")
    for k in range(2):
        A(f"buffer_store_dwordx4 v[48:51], v14, s[40:43], s57 offen offset:{1024*k} sc1")
    A("buffer_store_dwordx4 v[48:51], v14, s[40:43], s58 offen sc1")
    A("s_mov_b32 s60, -1")
    A("s_mov_b32 s61, 0xffff")
    if not noclr: A("s_mov_b64 exec, s[60:61]")
    A("buffer_store_dwordx4 v[48:51], v14, s[40:43], s58 offen offset:1024 sc1")
    A("s_mov_b64 exec, 0xffff")
    A("buffer_store_dwordx4 v[48:51], v14, s[40:43], s57 offen offset:2048 sc1")
    A("s_mov_b64 exec, -1")
    A("v_mov_b32 v15, 0")
    A(f"ds_write_b32 v15, v15 offset:{L_CNT}")
    A(f"ds_write_b128 v14, v[48:51] offset:{L_WIN}")
    A("s_cmp_lg_u32 s29, 0")
    A("s_cbranch_scc1 L_notinit")
    A("s_lshl_b32 s60, s28, 12")
    A(f"s_add_u32 s60, s60, {TICK}")
    A("s_mov_b64 exec, 1")
    A("buffer_store_dword v15, v15, s[40:43], s60 offen sc1")
    A("s_mov_b64 exec, -1")
    LB("L_notinit")
    A("s_mov_b32 s60, 0x05040100")
    A("s_mov_b32 s61, 0x07060302")
    A("s_mov_b32 s62, 0x000f000f")
    A("s_mov_b32 s63, 0x000f000f")
    stamp(1)
    A("s_waitcnt lgkmcnt(0)")
    A("s_barrier")
    for w in range(4):
        A(f"ds_read_b64 v[{16+2*w}:{17+2*w}], v12 offset:{L_QP+128*w}")
    A("s_waitcnt vmcnt(5)")
    A("v_add_u32 v72, 0x10000, v72")
    A("v_add_u32 v73, 0x10000, v73")
    A("v_and_b32 v72, 0xffff0000, v72")
    A("v_and_b32 v73, 0xffff0000, v73")
    A("s_waitcnt lgkmcnt(0)")
    A("v_add_f32 v16, v16, v18")
    A("v_add_f32 v17, v17, v19")
    A("v_add_f32 v20, v20, v22")
    A("v_add_f32 v21, v21, v23")
    A("v_add_f32 v16, v16, v20")
    A("v_add_f32 v17, v17, v21")
    A("v_cvt_pk_bf16_f32 v16, v16, 0")
    A("v_cvt_pk_bf16_f32 v17, v17, 0")
    A("v_or_b32 v72, v72, v16")
    A("v_or_b32 v73, v73, v17")
    A("s_mov_b64 exec, s[62:63]")
    A(f"buffer_store_dwordx2 v[72:73], v12, s[40:43], s59 offen offset:{QBOX} sc1")
    A("s_mov_b64 exec, -1")
    stamp(2)
    A("s_lshl_b32 s65, s30, 6")
    A("s_add_u32 s65, s65, 128")
    A("s_mov_b32 s68, 1")
    A("s_mov_b32 s59, 0")
    A("s_mov_b32 s66, 0x10000")
    if ackf:
        A("s_waitcnt vmcnt(0)")
        A("s_atomic_add s68, s[24:25], s65")
    LB("L_pollq")
    A(f"buffer_load_dwordx4 v[76:79], v10, s[40:43], s56 offen offset:{QBOX} sc1")
    A(f"buffer_load_dwordx4 v[80:83], v10, s[40:43], s56 offen offset:{QBOX+16} sc1")
    A("s_waitcnt vmcnt(0)")
    if not ackf:
        A("s_cmp_lg_u32 s59, 0")
        A("s_cbranch_scc1 L_pollq_arrived")
        A("s_atomic_add s68, s[24:25], s65")
        LB("L_pollq_arrived")
    for k in range(8):
        A(f"v_xor_b32 v{84+k}, v{64+k}, v{76+k}")
    A("v_min3_u32 v84, v84, v85, v86")
    A("v_min3_u32 v87, v87, v88, v89")
    A("v_min3_u32 v84, v84, v90, v91")
    A("v_min_u32 v84, v84, v87")
    A("v_cmp_gt_u32 vcc, s66, v84")
    A("s_cbranch_vccz L_pollq_done")
    A("s_mov_b64 exec, vcc")
    A("s_add_u32 s59, s59, 1")
    A(f"s_sleep {slq}")
    A(f"s_cmp_lt_u32 s59, {fbk}")
    A("s_cbranch_scc1 L_pollq")
    A("s_mov_b32 s70, 0")
    A("s_atomic_add s70, s[24:25], s65 glc")
    A("s_waitcnt lgkmcnt(0)")
    A("s_cmp_ge_u32 s70, 128")
    A("s_cselect_b32 s66, 0, s66")
    A(f"s_cmp_lt_u32 s59, {spin_max}")
    A("s_cbranch_scc1 L_pollq")
    LB("L_pollq_done")
    A("s_mov_b64 exec, -1")
    stamp(3)
    for k in range(4):
        A(f"v_perm_b32 v{48+k}, v{77+2*k}, v{76+2*k}, s60")
    A(f"ds_write_b128 v14, v[48:51] offset:{L_Q}")
    A("s_waitcnt lgkmcnt(0)")
    A("s_barrier")
    stamp(4)
    make_masks(56, 57)
    A("s_and_b32 s66, s31, 7")
    A("s_mul_i32 s66, s66, 14")
    A("s_lshr_b32 s67, s31, 3")
    A("s_add_u32 s66, s66, s67")
    A("s_cmp_lt_u32 s31, 112")
    A(f"s_cselect_b32 s59, {0 if nobg&1 else 448*1792*2}, 0")
    A("s_mov_b32 s48, s16"); A("s_mov_b32 s49, s17"); A("s_mov_b32 s50, s59")
    srd(32, 18, 19, "s59")
    srd(36, 20, 21, 896)
    A("v_lshrrev_b32 v10, 1, v1")
    A("v_and_b32 v11, 1, v1")
    A("v_mul_u32_u24 v12, 28, v10")
    A(f"v_mul_u32_u24 v13, {14*3584}, v10")
    A("v_lshl_add_u32 v13, v11, 4, v13")
    A(f"buffer_load_dwordx4 v[{XR}:{XR+3}], v12, s[44:47], 0 offen")
    A(f"buffer_load_dwordx3 v[{XR+4}:{XR+6}], v12, s[44:47], 0 offen offset:16")
    A("buffer_load_dwordx4 v[40:43], v14, s[44:47], 0 offen")
    A("buffer_load_dwordx4 v[44:47], v14, s[36:39], 0 offen")
    A("s_lshl_b32 s56, s66, 5")
    cnt = [0]
    def thr():
        cnt[0] += 1
        if cnt[0] % SB == 0: A("s_waitcnt vmcnt(0)")
    for t in range(14):
        A(f"buffer_load_dwordx4 v[{64+4*t}:{67+4*t}], v13, s[48:51], s56 offen nt")
        A("s_add_u32 s56, s56, 3584")
        thr()
    for k in range(8):
        A(f"v_mov_b32 v{ACC+k}, 0")
    matvec_pairs(7, 64, XR, 0)
    A("s_nop 1")
    for k in range(2):
        A(f"v_add_f32_dpp v{ACC+k}, v{ACC+k}, v{ACC+k} row_ror:2 {DPP}")
    A(f"s_mov_b32 s59, {f2u(-math.log2(math.e)):#x}")
    for k in range(2):
        A(f"v_cvt_pk_bf16_f32 v{ACC+k}, 0, v{ACC+k}")
    for k in range(2):
        A(f"v_mul_f32 v{ACC+2+k}, s59, v{ACC+k}")
    for k in range(2):
        A(f"v_exp_f32 v{ACC+2+k}, v{ACC+2+k}")
    A("s_nop 0")
    for k in range(2):
        A(f"v_add_f32 v{ACC+2+k}, 1.0, v{ACC+2+k}")
    for k in range(2):
        A(f"v_rcp_f32 v{ACC+2+k}, v{ACC+2+k}")
    A("s_nop 0")
    for k in range(2):
        A(f"v_mul_f32 v{ACC+k}, v{ACC+k}, v{ACC+2+k}")
    A("v_lshlrev_b32 v12, 5, v11")
    A("v_lshl_add_u32 v12, v9, 3, v12")
    A("s_mov_b32 s62, 0x00030003")
    A("s_mov_b32 s63, 0x00030003")
    A("s_mov_b64 exec, s[62:63]")
    A(f"ds_write_b64 v12, v[{ACC}:{ACC+1}] offset:{L_H}")
    A("s_mov_b64 exec, -1")
    A("v_lshlrev_b32 v12, 4, v9")
    A("s_waitcnt lgkmcnt(0)")
    A(f"ds_read_b128 v[{ACC}:{ACC+3}], v12 offset:{L_H}")
    for k in range(4):
        A(f"v_lshlrev_b32 v52, 16, v{40+k}")
        A(f"v_lshlrev_b32 v53, 16, v{44+k}")
        A(f"v_and_b32 v54, 0xffff0000, v{40+k}")
        A(f"v_and_b32 v55, 0xffff0000, v{44+k}")
        A("v_mul_f32 v52, v52, v53")
        A("v_mul_f32 v54, v54, v55")
        A("v_cvt_pk_bf16_f32 v52, 0, v52")
        A("v_cvt_pk_bf16_f32 v54, 0, v54")
        if k == 0:
            A("v_add_f32 v56, v52, v54")
        else:
            A("v_add_f32 v56, v56, v52")
            A("v_add_f32 v56, v56, v54")
    for rr in (8, 4, 2, 1):
        A("s_nop 1")
        A(f"v_add_f32_dpp v56, v56, v56 row_ror:{rr} {DPP}")
    A("v_mov_b32 v57, v56")
    A("s_nop 1")
    A("v_permlane32_swap_b32 v57, v56")
    A("s_nop 1")
    A("v_add_f32 v56, v56, v57")
    A("v_mov_b32 v57, v56")
    A("s_nop 1")
    A("v_permlane16_swap_b32 v57, v56")
    A("s_nop 1")
    A("v_add_f32 v56, v56, v57")
    A("v_cvt_pk_bf16_f32 v56, 0, v56")
    A("v_mul_f32 v56, s59, v56")
    A("v_exp_f32 v56, v56")
    A("s_nop 0")
    A("v_add_f32 v56, 1.0, v56")
    A("v_rcp_f32 v56, v56")
    A("s_nop 0")
    A("v_cvt_pk_bf16_f32 v2, 0, v56")
    A("v_sub_f32 v3, 1.0, v2")
    A("v_cvt_pk_bf16_f32 v3, 0, v3")
    A("s_waitcnt lgkmcnt(0) vmcnt(0)")
    for t in range(4):
        A(f"v_cvt_pk_bf16_f32 v{ACC+t}, v{ACC+t}, v{ACC+t}")
    for t in range(4):
        for k in range(4):
            A(f"v_and_b32 v{24+4*t+k}, v{ACC+t}, v{4+k}")
    def part_pollg():
        A(f"s_mov_b32 s56, {spin_max}")
        LB("L_pollg")
        A("s_mov_b32 s70, 0")
        A("s_atomic_add s70, s[24:25], s65 glc")
        A("s_waitcnt lgkmcnt(0)")
        A("s_cmp_ge_u32 s70, 128")
        A("s_cbranch_scc1 L_pollg_done")
        A("s_sleep 16")
        A("s_sub_u32 s56, s56, 1")
        A("s_cmp_lg_u32 s56, 0")
        A("s_cbranch_scc1 L_pollg")
        LB("L_pollg_done")
    srd(48, 12, 13, 0 if nobg&2 else 4096*448*2)
    A("v_mul_u32_u24 v18, 3584, v9")
    A("v_lshl_add_u32 v18, v8, 4, v18")
    A("v_mul_u32_u24 v19, 7168, v9")
    A("v_lshl_add_u32 v19, v8, 4, v19")
    A(f"s_mul_i32 s66, s66, {16*896}")
    A(f"s_mul_i32 s67, s31, {32*896}")
    A(f"s_add_u32 s68, s67, {4*896}")
    A(f"s_mov_b32 s59, {f2u(C_SCALE):#x}")
    A("v_lshlrev_b32 v10, 5, v1")
    A("v_lshrrev_b32 v11, 5, v1")
    A("v_lshlrev_b32 v11, 3, v11")
    A("v_lshrrev_b32 v15, 2, v1")
    A("v_mul_u32_u24 v15, 144, v15")
    A("v_and_b32 v12, 3, v1")
    A("v_lshl_add_u32 v15, v12, 5, v15")
    A(f"v_mul_u32_u24 v12, {OB1S}, v8")
    A("v_lshl_add_u32 v13, v9, 5, v12")
    A(f"s_mul_i32 s60, s28, {16*OB1S}")
    A("s_mul_i32 s61, s29, 144")
    A("s_add_u32 s60, s60, s61")
    A(f"s_add_u32 s60, s60, {OB1}")
    A("v_lshlrev_b32 v14, 5, v8")
    A("v_lshl_add_u32 v14, v9, 4, v14")
    part_pollg()
    def part_w():
        for t in range(4):
            for cb in range(4):
                b = 64 + 16*t + 4*cb
                A(f"buffer_load_dwordx4 v[{b}:{b+3}], v18, s[32:35], s66 offen offset:{t*896+cb*256} nt")
                if not defer: thr()
        for t in range(8):
            for cb in range(4):
                b = 128 + 16*t + 4*cb
                A(f"buffer_load_dwordx4 v[{b}:{b+3}], v19, s[48:51], s{67 + (t>>2)} offen offset:{(t&3)*896+cb*256} nt")
                if not defer: thr()
    def part_ffn2():
        A("s_waitcnt vmcnt(32)")
        for t in range(4):
            for cb in range(4):
                b = 64 + 16*t + 4*cb
                d = 40 + 4*cb
                c = "0" if t == 0 else f"v[{d}:{d+3}]"
                A(f"v_mfma_f32_16x16x32_bf16 v[{d}:{d+3}], v[{24+4*t}:{27+4*t}], v[{b}:{b+3}], {c}")
        A("s_nop 7")
        for k in range(16):
            A(f"v_mul_f32 v{40+k}, v3, v{40+k}")
    if not defer:
        part_w()
        part_ffn2()
    if NS < 32:
        A("s_lshl_b32 s74, s28, 12")
        A(f"s_add_u32 s74, s74, {TICK}")
        A("s_add_u32 s74, s26, s74")
        A("s_addc_u32 s75, s27, 0")
        A("s_mov_b32 s71, 0")
        A("s_mov_b32 s72, 0")
        A("s_mov_b32 s73, 0")
        A("v_mov_b32 v16, 0")
        A(f"s_mov_b32 s56, {spin_max*4}")
        LB("L_tk")
        A(f"ds_read_b32 v17, v16 offset:{L_CNT}")
        A("s_waitcnt lgkmcnt(0)")
        A("v_readfirstlane_b32 s70, v17")
        A("s_cmp_gt_u32 s70, s73")
        A("s_cbranch_scc1 L_tk_fetch")
        A(f"s_sleep {dsl}")
        A("s_sub_u32 s56, s56, 1")
        A("s_cmp_lg_u32 s56, 0")
        A("s_cbranch_scc1 L_tk")
        A("s_branch L_tk_done")
        LB("L_tk_fetch")
        A("s_mov_b32 s70, 1")
        A("s_atomic_add s70, s[74:75], 0 glc")
        A("v_mov_b32 v17, s71")
        A("s_waitcnt lgkmcnt(0)")
        A("v_mov_b32 v20, s70")
        A("s_add_u32 s71, s71, 4")
        A(f"s_sub_u32 s73, s71, {la}")
        A(f"ds_write_b32 v17, v20 offset:{L_WIN}")
        if defer:
            A(f"s_cmp_lt_u32 s70, {defer}")
            A("s_cbranch_scc1 L_tk")
            A("s_cmp_lg_u32 s72, 0")
            A("s_cbranch_scc1 L_tk_w")
            A("s_mov_b32 s72, 1")
            stamp(1)
            part_w()
            LB("L_tk_w")
        A(f"s_cmp_lt_u32 s70, {(32-NS)*16}")
        A("s_cbranch_scc1 L_tk")
        LB("L_tk_done")
    if defer:
        assert defer <= (32-NS)*16
        part_ffn2()
    A("s_waitcnt vmcnt(0) lgkmcnt(0)")
    if defer: stamp(2)
    A("s_barrier")
    stamp(5)
    if prof: A("s_waitcnt lgkmcnt(0)")
    for w in range(4):
        A(f"ds_read_b64 v[{56+2*w}:{57+2*w}], v11 offset:{L_ML+16*w}")
    for w in range(4):
        A(f"ds_read_b128 v[{64+8*w}:{67+8*w}], v10 offset:{L_O+2048*w}")
        A(f"ds_read_b128 v[{68+8*w}:{71+8*w}], v10 offset:{L_O+2048*w+16}")
    A("s_waitcnt lgkmcnt(8)")
    A("v_max3_f32 v16, v56, v58, v60")
    A("v_max_f32 v16, v16, v62")
    for w in range(4):
        A(f"v_sub_f32 v{56+2*w}, v{56+2*w}, v16")
    for w in range(4):
        A(f"v_mul_f32 v{56+2*w}, s59, v{56+2*w}")
    for w in range(4):
        A(f"v_exp_f32 v{56+2*w}, v{56+2*w}")
    A("s_nop 0")
    A("v_mul_f32 v17, v56, v57")
    for w in range(1, 4):
        A(f"v_fmac_f32 v17, v{56+2*w}, v{57+2*w}")
    A("s_waitcnt lgkmcnt(0)")
    for k in range(8):
        A(f"v_mul_f32 v{64+k}, v56, v{64+k}")
    for w in range(1, 4):
        for k in range(8):
            A(f"v_fmac_f32 v{64+k}, v{56+2*w}, v{64+8*w+k}")
    A("buffer_store_dwordx4 v[64:67], v15, s[40:43], s57 offen sc1")
    A("buffer_store_dwordx4 v[68:71], v15, s[40:43], s57 offen offset:16 sc1")
    A("s_mov_b32 s62, 0x11111111")
    A("s_mov_b32 s63, 0x11111111")
    A("s_mov_b64 exec, s[62:63]")
    A("buffer_store_dwordx2 v[16:17], v15, s[40:43], s57 offen offset:128 sc1")
    A("s_mov_b64 exec, -1")
    A(f"s_mov_b32 s56, {spin_max}")
    LB("L_poll1")
    A("buffer_load_dwordx4 v[72:75], v13, s[40:43], s60 offen sc1")
    A("buffer_load_dwordx4 v[76:79], v13, s[40:43], s60 offen offset:16 sc1")
    A("buffer_load_dwordx2 v[80:81], v12, s[40:43], s60 offen offset:128 sc1")
    A("s_waitcnt vmcnt(0)")
    A("v_max3_u32 v18, v72, v73, v74")
    A("v_max3_u32 v19, v75, v76, v77")
    A("v_max3_u32 v18, v18, v78, v79")
    A("v_max3_u32 v19, v19, v80, v81")
    A("v_max_u32 v18, v18, v19")
    A("v_cmp_eq_u32 vcc, -1, v18")
    A("s_cbranch_vccz L_poll1_done")
    A("s_mov_b64 exec, vcc")
    if adapt:
        A("s_bcnt1_i32_b64 s61, vcc")
        A("s_cmp_le_u32 s61, 12")
        A("s_cbranch_scc1 L_poll1_fast")
        A("s_sleep 16")
        LB("L_poll1_fast")
        A("s_sleep 1")
    else:
        A(f"s_sleep {sl1}")
    A("s_sub_u32 s56, s56, 1")
    A("s_cmp_lg_u32 s56, 0")
    A("s_cbranch_scc1 L_poll1")
    LB("L_poll1_done")
    A("s_mov_b64 exec, -1")
    A("s_barrier")
    stamp(6)
    A(f"v_max_f32_dpp v18, v80, v80 row_ror:8 {DPP}")
    for rr in (4, 2, 1):
        A("s_nop 1")
        A(f"v_max_f32_dpp v18, v18, v18 row_ror:{rr} {DPP}")
    A("v_sub_f32 v18, v80, v18")
    A("v_mul_f32 v18, s59, v18")
    A("v_exp_f32 v18, v18")
    A("s_nop 0")
    A("v_mul_f32 v80, v18, v81")
    for k in range(8):
        A(f"v_mul_f32 v{72+k}, v18, v{72+k}")
    for rr in (8, 4, 2, 1):
        for k in range(9):
            A(f"v_add_f32_dpp v{72+k}, v{72+k}, v{72+k} row_ror:{rr} {DPP}")
    A("v_rcp_f32 v80, v80")
    A("s_nop 0")
    for k in range(8):
        A(f"v_mul_f32 v{72+k}, v80, v{72+k}")
    for k in range(8):
        A(f"v_cvt_pk_bf16_f32 v{72+k}, v{72+k}, v{72+k}")
    for t in range(8):
        for k in range(4):
            A(f"v_and_b32 v{88+4*t+k}, v{72+t}, v{4+k}")
        if t >= 1:
            tt = t - 1
            for cb in range(4):
                b = 128 + 16*tt + 4*cb
                d = 16 + 4*cb
                c = "0" if tt == 0 else f"v[{d}:{d+3}]"
                A(f"v_mfma_f32_16x16x32_bf16 v[{d}:{d+3}], v[{88+4*tt}:{91+4*tt}], v[{b}:{b+3}], {c}")
    tt = 7
    for cb in range(4):
        b = 128 + 16*tt + 4*cb
        d = 16 + 4*cb
        A(f"v_mfma_f32_16x16x32_bf16 v[{d}:{d+3}], v[{88+4*tt}:{91+4*tt}], v[{b}:{b+3}], v[{d}:{d+3}]")
    A("s_mov_b32 s62, -1")
    A("s_mov_b32 s63, 0")
    A("s_nop 3")
    for cb in range(4):
        for k in range(4):
            A(f"v_fmac_f32 v{40+4*cb+k}, v2, v{16+4*cb+k}")
        if cb == 0:
            A("s_mov_b64 exec, s[62:63]")
        if cb == 3:
            A("s_mov_b32 s62, 0x00ff00ff")
            A("s_mov_b64 exec, s[62:63]")
        A(f"buffer_store_dwordx4 v[{40+4*cb}:{43+4*cb}], v14, s[40:43], s58 offen offset:{512*cb} sc1")
    A("s_mov_b64 exec, -1")
    stamp(7)
    dump_stamps("service")
    LB("L_end")
    A("s_endpgm")
    L.append('.section .rodata,"a"')
    L.append(".p2align 6")
    L.append(f".amdhsa_kernel {NAME}_kernel")
    L.append("  .amdhsa_next_free_vgpr 256")
    L.append("  .amdhsa_next_free_sgpr 100")
    L.append("  .amdhsa_accum_offset 256")
    L.append("  .amdhsa_group_segment_fixed_size 0")
    L.append("  .amdhsa_kernarg_size 96")
    L.append("  .amdhsa_user_sgpr_count 2")
    L.append("  .amdhsa_user_sgpr_kernarg_segment_ptr 1")
    L.append("  .amdhsa_system_sgpr_workgroup_id_x 1")
    L.append(".end_amdhsa_kernel")
    return "\n".join(L) + "\n"


if __name__ == "__main__":
    out = sys.argv[1]
    kw = {}
    for a in sys.argv[2:]:
        k, v = a.split("=")
        kw[k] = int(v) if v.isdigit() else v
    open(out, "w").write(gen(**kw))
```

```python
import sys, math

NAME = "gated_mix__gqa_block_cached__dense_activation_silu__decode"
HEADER = open("cdna_kernels/" + NAME + ".s.ref").read().split("; Override launch")[0]

QBOX = 0x0
TICK = 0x10000
OB1 = 0x40000
OB1S = 2304
OB2 = 0x200000
OB2S = 1792
STAMP = 0x20000000
L_Q = 0
L_S = 1024
L_O = L_S + 16384
L_ML = L_O + 8192
L_H = L_ML + 64
L_QP = L_H + 64
L_CNT = L_QP + 512
L_WIN = L_CNT + 64
LDS_BYTES = L_WIN + 1024

C_SCALE = (1.0 / 16.0) * math.log2(math.e)
import struct
def f2u(x): return struct.unpack("<I", struct.pack("<f", x))[0]


def gen(prof=0, NPRE=6, PFI=1, early=1, spin_max=200000, sl1=4, sl2=2, slq=1, fbk=4, late=4, NS=28, fl=0, bm='iikkwwrtttttxxx', DEP=1, kw8=0, SB=64, nobg=0, nowq=0, noclr=0, ptile=0, flv=-1, qx=0, ackf=1, kfirst=0, vth=0, kth=0, defer=0, dsl=4, jit=0, la=0, adapt=1, tfix=0, one=1, NSM=0, RET=8, smreq=0, gx='', pp1=0, pp2=0, wnt=3):
    L = []
    A = lambda s: L.append("  " + s)
    LB = lambda s: L.append(s + ":")
    nstamp = [0]

    def stamp(k, svc=[False]):
        if k == 'service':
            svc[0] = True
            return
        if ptile and not svc[0] and k not in (0, 7, 2):
            return
        if ptile and not svc[0] and k == 2:
            k = 6
        if prof:
            A(f"s_memrealtime s[{80+2*k}:{81+2*k}]")

    def dump_dbg(pairs):
        A("s_waitcnt lgkmcnt(0)")
        srd(52, 24, 25, 256)
        A("v_mov_b32 v56, 0")
        for (k, sp) in pairs:
            A(f"s_not_b32 s56, s{80+2*k}")
            A(f"v_writelane_b32 v56, s56, {2*sp}")
            A(f"v_writelane_b32 v56, s{80+2*k}, {2*sp+1}")
        A("v_lshlrev_b32 v57, 2, v1")
        A("s_mov_b64 exec, 0xffff")
        A("buffer_atomic_umax v56, v57, s[52:55], 0 offen")
        A("s_mov_b64 exec, -1")

    def dump_stamps(kind=None):
        if not prof:
            return
        if prof == 2:
            dump_dbg({"stream": [(0,0),(2,1),(3,2),(4,3)], "service": [(2,5),(3,6),(6,7)]}[kind])
            return
        A("s_waitcnt lgkmcnt(0)")
        A("s_lshl_b32 s56, s2, 3")
        A("s_add_u32 s56, s56, s3")
        A("s_lshl_b32 s56, s56, 6")
        A(f"s_add_u32 s56, s56, {STAMP}")
        A("s_mov_b64 exec, 1")
        A("v_mov_b32 v60, 0")
        for q in range(4):
            for j in range(4):
                A(f"v_mov_b32 v{56+j}, s{80+4*q+j}")
            A(f"buffer_store_dwordx4 v[56:59], v60, s[40:43], s56 offen offset:{16*q}")
            A("s_nop 1")
        A("s_mov_b64 exec, -1")

    def srd(d, lo, hi, n):
        A(f"s_mov_b32 s{d}, s{lo}")
        A(f"s_mov_b32 s{d+1}, s{hi}")
        A(f"s_mov_b32 s{d+2}, {n}")
        A(f"s_mov_b32 s{d+3}, 0x00020000")

    DPP = "row_mask:0xf bank_mask:0xf"
    ACC = 16
    XR = 32
    def matvec_pairs(npairs, wbase, xbase, tail_ops):
        for u in range(npairs):
            A(f"s_waitcnt vmcnt({2*npairs - (2*u+2) + tail_ops})")
            w0 = wbase + 8*u; w1 = w0 + 4
            for k in range(4):
                A(f"v_perm_b32 v{52+k}, v{w1+k}, v{w0+k}, s60")
                A(f"v_perm_b32 v{56+k}, v{w1+k}, v{w0+k}, s61")
            for k in range(4):
                A(f"v_dot2c_f32_bf16 v{ACC+2*k}, v{52+k}, v{xbase+u}")
                A(f"v_dot2c_f32_bf16 v{ACC+2*k+1}, v{56+k}, v{xbase+u}")
        A("s_nop 3")
        for k in range(4):
            A(f"v_permlane32_swap_b32 v{ACC+k}, v{ACC+4+k}")
        A("s_nop 1")
        for k in range(4):
            A(f"v_add_f32 v{ACC+k}, v{ACC+k}, v{ACC+4+k}")
        A("s_nop 1")
        for k in range(2):
            A(f"v_permlane16_swap_b32 v{ACC+k}, v{ACC+2+k}")
        A("s_nop 1")
        for k in range(2):
            A(f"v_add_f32 v{ACC+k}, v{ACC+k}, v{ACC+2+k}")
        for rr in (8, 4):
            A("s_nop 1")
            for k in range(2):
                A(f"v_add_f32_dpp v{ACC+k}, v{ACC+k}, v{ACC+k} row_ror:{rr} {DPP}")
    def make_masks(t0, t1):
        A(f"v_and_b32 v{t0}, 1, v1")
        A(f"v_lshlrev_b32 v{t0}, 4, v{t0}")
        A(f"v_mov_b32 v{t1}, 0xffff")
        A(f"v_lshlrev_b32 v{t1}, v{t0}, v{t1}")
        A(f"v_bfe_u32 v{t0}, v1, 1, 2")
        for k in range(4):
            A(f"v_cmp_eq_u32 vcc, {k}, v{t0}")
            A("s_nop 1")
            A(f"v_cndmask_b32 v{4+k}, 0, v{t1}, vcc")
    L.append(HEADER.rstrip("\n"))
    L.append(f"; @launch grid=(256,1,1) block=(320,1,1) lds={LDS_BYTES}")
    L.append('.amdgcn_target "amdgcn-amd-amdhsa--gfx950"')
    L.append(".text")
    L.append(f".globl {NAME}_kernel")
    L.append(".p2align 8")
    L.append(f".type {NAME}_kernel,@function")
    LB(f"{NAME}_kernel")
    A("s_cmp_ge_u32 s2, 256")
    A("s_cbranch_scc1 L_end")
    A("s_load_dwordx16 s[4:19], s[0:1], 0")
    A("s_load_dwordx8 s[20:27], s[0:1], 64")
    if prof:
        for k in range(8):
            A(f"s_mov_b64 s[{80+2*k}:{81+2*k}], 0")
    stamp(0)
    if tfix: A("s_memrealtime s[96:97]")
    A("v_lshrrev_b32 v2, 6, v0")
    A("v_and_b32 v1, 63, v0")
    A("v_readfirstlane_b32 s3, v2")
    NX = bm.count('x')
    A("s_and_b32 s63, s2, 127")
    if NX < 3:
        keep_hi = 0xff & ~((1 << (7 - NX)) - 1)
        nr = 4 - NX
        A(f"s_and_b32 s28, s2, {((1 << NX) - 1) | keep_hi:#x}")
        A(f"s_bfe_u32 s29, s2, {(nr << 16) | 3:#x}")
        A(f"s_lshl_b32 s29, s29, {NX}")
        A("s_or_b32 s28, s28, s29")
        A(f"s_bfe_u32 s29, s2, {((3 - NX) << 16) | NX:#x}")
        A("s_lshl_b32 s29, s29, 4")
        A("s_or_b32 s2, s28, s29")
    A("s_lshr_b32 s28, s2, 4")
    A("s_and_b32 s29, s2, 15")
    A("s_lshr_b32 s30, s2, 7")
    A("s_and_b32 s31, s2, 127")
    if qx:
        A("s_and_b32 s64, s31, 7")
        A("s_lshl_b32 s64, s64, 4")
        A("s_lshr_b32 s65, s31, 3")
        A("s_add_u32 s64, s64, s65")
    else:
        A(f"s_and_b32 s64, s29, {(1 << NX) - 1}")
        A(f"s_lshl_b32 s64, s64, {4 - NX}")
        A(f"s_lshr_b32 s65, s29, {NX}")
        A("s_add_u32 s64, s64, s65")
        A("s_andn2_b32 s65, s31, 15")
        A("s_add_u32 s64, s64, s65")
    A("v_and_b32 v8, 15, v1")
    A("v_lshrrev_b32 v9, 4, v1")
    A("s_waitcnt lgkmcnt(0)")
    srd(40, 26, 27, "0x40000000")
    A("s_cmp_lg_u32 s3, 4")
    A("s_cbranch_scc1 L_stream")
    A("v_lshlrev_b32 v10, 5, v1")
    A("s_lshl_b32 s56, s28, 11")
    A(f"buffer_load_dwordx4 v[64:67], v10, s[40:43], s56 offen offset:{QBOX} sc1")
    A(f"buffer_load_dwordx4 v[68:71], v10, s[40:43], s56 offen offset:{QBOX+16} sc1")
    A("v_and_b32 v11, 3, v1")
    A("v_lshlrev_b32 v12, 5, v11")
    A("v_lshl_add_u32 v12, v9, 3, v12")
    A("s_lshl_b32 s59, s30, 7")
    A("s_add_u32 s59, s59, s64")
    A("s_lshl_b32 s59, s59, 7")
    A(f"buffer_load_dwordx2 v[72:73], v12, s[40:43], s59 offen offset:{QBOX} sc1")
    A("s_mov_b32 s69, s63")
    A("s_branch L_service")
    LB("L_stream")

    srd(32, 6, 7, "0x10000000")
    srd(36, 8, 9, "0x10000000")
    assert len(bm) == 15 and bm.count('r') + NX == 4
    pos = {c: [9+i for i, ch in enumerate(bm) if ch == c] for c in 'ikwrxt'}
    def runs(positions):
        out = []
        for i, p in enumerate(positions):
            if out and out[-1][1] + out[-1][2] == p: out[-1][2] += 1
            else: out.append([i, p, 1])
        return out
    def deposit(dst, src, srcbit0, positions, tmp):
        for (sb, db, n) in runs(positions):
            A(f"s_bfe_u32 s{tmp}, s{src}, {(n << 16) | (sb + srcbit0):#x}")
            A(f"s_lshl_b32 s{tmp}, s{tmp}, {db}")
            A(f"s_or_b32 s{dst}, s{dst}, s{tmp}")
    A("s_lshl_b32 s56, s28, 24")
    deposit(56, 3, 0, pos['w'], 57)
    deposit(56, 29, 0, pos['x'], 57)
    deposit(56, 29, NX, pos['r'], 57)
    if gx:
        A("s_mov_b32 s71, 0")
        for it in gx.split('_'):
            gb, ab = int(it[0]), int(it[1:])
            A(f"s_bfe_u32 s57, s2, {(1 << 16) | (4 + gb):#x}")
            A(f"s_lshl_b32 s57, s57, {ab}")
            A("s_xor_b32 s71, s71, s57")
    TM = sum(1 << p for p in pos['t'])
    def tstep():
        if len(runs(pos['t'])) == 1:
            A(f"s_add_u32 s57, s57, {1 << pos['t'][0]:#x}")
        else:
            A(f"s_or_b32 s57, s57, {(~TM) & 0xffffffff:#x}")
            A(f"s_add_u32 s57, s57, {1 << pos['t'][0]:#x}")
            A(f"s_and_b32 s57, s57, {TM:#x}")
            A("s_or_b32 s57, s57, s56")
    def vdeposit(dst, src, tmp):
        if pos['k'][1] == pos['k'][0] + 1:
            A(f"v_lshlrev_b32 v{dst}, {pos['k'][0]}, v{src}")
        else:
            A(f"v_and_b32 v{tmp}, 1, v{src}")
            A(f"v_lshrrev_b32 v{dst}, 1, v{src}")
            A(f"v_lshlrev_b32 v{dst}, {pos['k'][1]}, v{dst}")
            A(f"v_lshl_add_u32 v{dst}, v{tmp}, {pos['k'][0]}, v{dst}")
    A("v_lshrrev_b32 v3, 2, v8")
    vdeposit(2, 3, 10)
    A("v_lshl_add_u32 v2, v9, 6, v2")
    vdeposit(3, 9, 10)
    A("v_lshl_add_u32 v3, v8, 4, v3")
    A("v_and_b32 v10, 3, v1")
    A("v_lshl_add_u32 v2, v10, 4, v2")
    SLOT0 = 64
    def slot(sl, i): return SLOT0 + 32*sl + 4*i
    def issue(kind, sl, sreg, small=False):
        srdn = "s[32:35]" if kind == 'k' else "s[36:39]"
        va = "v2" if kind == 'k' else "v3"
        if small: va = "v61" if kind == 'k' else "v62"
        flg = ['nt','sc1 nt','sc0 sc1 nt','sc0 nt','','sc1','sc0 sc1'][fl if (kind == 'k' or flv < 0) else flv]
        cur_hi = 0
        if gx:
            A(f"s_xor_b32 s70, {sreg}, s71")
            sreg = "s70"
        for i in range(4 if small else 8):
            b = slot(sl, i)
            r = i >> 1
            off = ((r & 1) << pos['i'][0]) + ((r >> 1) << pos['i'][1]) + (i & 1)*256
            hi = off & ~0xfff
            if hi and hi != cur_hi:
                A(f"s_add_u32 s69, {sreg}, {hi:#x}")
                cur_hi = hi
            A(f"buffer_load_dwordx4 v[{b}:{b+3}], {va}, {srdn}, {'s69' if hi else sreg} offen offset:{off & 0xfff} {flg}")
    if kfirst:
        issue('k', 0, "s56")
    A("s_mul_i32 s57, s30, 896")
    A("s_add_u32 s44, s4, s57")
    A("s_addc_u32 s45, s5, 0")
    A("s_mov_b32 s46, 896")
    A("s_mov_b32 s47, 0x00020000")
    srd(48, 10, 11, 0 if nowq else 448*4096*2)
    A("v_lshrrev_b32 v12, 2, v1")
    A("s_mul_i32 s57, s3, 14")
    A("v_cmp_gt_u32 vcc, 14, v12")
    A("v_add_u32 v12, s57, v12")
    A("v_mov_b32 v13, 0x4000")
    A("v_cndmask_b32 v12, v13, v12, vcc")
    A("v_lshlrev_b32 v13, 16, v12")
    A("v_lshl_add_u32 v13, v10, 4, v13")
    A("v_lshlrev_b32 v12, 4, v12")
    A(f"buffer_load_dwordx4 v[{XR}:{XR+3}], v12, s[44:47], 0 offen")
    A("s_lshl_b32 s57, s64, 6")
    WQB = slot(NPRE-1, 0)
    for t in range(8):
        A(f"buffer_load_dwordx4 v[{WQB+4*t}:{WQB+4*t+3}], v13, s[48:51], s57 offen {'nt' if wnt & 1 else ''}")
        A("s_add_u32 s57, s57, 0x2000")
    A("s_mov_b32 s57, s56")
    if kfirst:
        early = 2
        tstep()
    else:
        for t in range(early):
            issue('k', t, "s57")
            tstep()
    A("s_mov_b32 s60, 0x05040100")
    A("s_mov_b32 s61, 0x07060302")
    for k in range(8):
        A(f"v_mov_b32 v{ACC+k}, 0")
    A("v_lshlrev_b32 v12, 5, v10")
    A("v_lshl_add_u32 v12, v9, 3, v12")
    A("s_lshl_b32 s58, s3, 7")
    A("v_add_u32 v12, s58, v12")
    if kfirst:
        A("s_waitcnt vmcnt(9)")
        if ptile: A(f"s_memrealtime s[82:83]")
        issue('k', 1, "s57")
        tstep()
    matvec_pairs(4, WQB, XR, 8 if kfirst else 8*early)
    A("s_mov_b32 s62, 0x000f000f")
    A("s_mov_b32 s63, 0x000f000f")
    A("s_mov_b64 exec, s[62:63]")
    A(f"ds_write_b64 v12, v[{ACC}:{ACC+1}] offset:{L_QP}")
    A("s_mov_b64 exec, -1")
    A("s_waitcnt lgkmcnt(0)")
    A("s_barrier")
    stamp(7)
    for t in range(early, NPRE):
        if t >= PFI:
            A(f"s_waitcnt vmcnt({8*(PFI-1)})")
        if ptile: A(f"s_memrealtime s[{80+2*t}:{81+2*t}]")
        issue('k', t, "s57")
        tstep()
        if t == early:
            A("v_bfe_u32 v12, v1, 3, 1")
            A("v_lshlrev_b32 v13, 2, v12")
            A("v_add_u32 v13, v13, v9")
            A("v_lshlrev_b32 v12, 9, v12")
            A("v_lshl_add_u32 v12, v9, 6, v12")
            A("v_lshl_add_u32 v12, v10, 4, v12")
            A("s_lshl_b32 s58, s3, 12")
            A(f"s_add_u32 s58, s58, {L_S}")
            A("v_lshlrev_b32 v13, 4, v13")
            A("v_add_u32 v13, s58, v13")
            make_masks(56, 57)
            A("v_mov_b32 v14, 0xff800000")
            A("v_mov_b32 v15, 0")
            for r in range(8):
                A(f"v_mov_b32 v{24+r}, 0")
            A(f"s_mov_b32 s59, {f2u(C_SCALE):#x}")
    stamp(1)
    A("s_barrier")
    A(f"ds_read_b128 v[16:19], v12 offset:{L_Q}")
    A(f"ds_read_b128 v[20:23], v12 offset:{L_Q+256}")
    stamp(2)
    A("s_waitcnt lgkmcnt(0)")

    def kproc(sl, soff, mid=None, dyn=False, ng=4):
        for r in range(ng):
            d = 32 + 4*r
            a0 = slot(sl, 2*r); a1 = slot(sl, 2*r+1)
            A(f"v_mfma_f32_16x16x32_bf16 v[{d}:{d+3}], v[{a0}:{a0+3}], v[16:19], 0")
            A(f"v_mfma_f32_16x16x32_bf16 v[{d}:{d+3}], v[{a1}:{a1+3}], v[20:23], v[{d}:{d+3}]")
        if mid: mid()
        else: A(f"s_nop {1 if ng == 4 else 5}")
        for r in range(ng):
            d = 32 + 4*r
            s = 48 + r
            if r == 3: pass
            A(f"v_mov_b32_dpp v{s}, v{d} quad_perm:[0,0,0,0] {DPP}")
            A(f"v_add_f32_dpp v{s}, v{d+1}, v{s} quad_perm:[1,1,1,1] {DPP}")
            A(f"v_add_f32_dpp v{s}, v{d+2}, v{s} quad_perm:[2,2,2,2] {DPP}")
            A(f"v_add_f32_dpp v{s}, v{d+3}, v{s} quad_perm:[3,3,3,3] {DPP}")
            A(f"v_cvt_pk_bf16_f32 v{s}, 0, v{s}")
        if dyn:
            return
        A("v_max3_f32 v14, v14, v48, v49")
        A("v_max3_f32 v14, v14, v50, v51")
        A(f"ds_write_b128 v13, v[48:51] offset:{soff}")

    assert one or (NPRE % 2 == 0 and NPRE >= 2)
    for t in range(NPRE):
        later = (NPRE - 1 - t) + min(t, DEP)
        A(f"s_waitcnt vmcnt({min(63, 8*later)})")
        if t < DEP:
            def mid0():
                issue('k', t, "s57")
                tstep()
            kproc(t, t*128, mid0)
        else:
            kproc(t, t*128)
    A(f"v_add_u32 v13, {NPRE*128}, v13")
    if one:
        A(f"s_mov_b32 s58, {NS - NPRE - 1}")
        LB("L_kloop")
        A("s_waitcnt vmcnt(0)")
        kproc(0, 0)
        issue('k', 0, "s57")
        tstep()
        A("v_add_u32 v13, 128, v13")
        A("s_sub_u32 s58, s58, 1")
        A("s_cmp_lg_u32 s58, 0")
        A("s_cbranch_scc1 L_kloop")
        A("s_waitcnt vmcnt(0)")
        kproc(0, 0)
        A("s_mov_b32 s57, s56")
        issue('v', 0, "s57")
        tstep()
    else:
        NLOOP = (NS - NPRE - 2)//2
        A(f"s_mov_b32 s58, {NLOOP}")
        assert DEP == 1 or late >= 1
        def kstep(sl, soff, nxt):
            A(f"s_waitcnt vmcnt({8*(DEP-1)})")
            if late == 0:
                nxt()
                kproc(sl, soff)
            elif late == 1:
                kproc(sl, soff, nxt)
            else:
                kproc(sl, soff)
                if kw8: A("s_waitcnt lgkmcnt(0)")
                for i in range(kth): A("s_nop 15")
                nxt()
        def nk(sl):
            def f():
                issue('k', sl, "s57")
                tstep()
            return f
        LB("L_kloop")
        kstep(0, 0, nk(2-DEP))
        kstep(1, 128, nk(DEP-1))
        A("v_add_u32 v13, 256, v13")
        A("s_sub_u32 s58, s58, 1")
        A("s_cmp_lg_u32 s58, 0")
        A("s_cbranch_scc1 L_kloop")
        def nv0():
            A("s_mov_b32 s57, s56")
            issue('v', 0, "s57")
            tstep()
        def nv1():
            issue('v', 1, "s57")
            tstep()
        if DEP == 1:
            kstep(0, 0, nk(1))
            kstep(1, 128, nv0)
        else:
            kstep(0, 0, nv0)
            kstep(1, 128, nv1)
    stamp(3)
    A(f"v_subrev_u32 v13, {(NS-(1 if one else 2))*128}, v13")
    A("v_mov_b32 v10, v14")
    A("s_nop 1")
    A("v_permlane32_swap_b32 v10, v14")
    A("s_nop 1")
    A("v_max_f32 v14, v10, v14")
    A("v_mov_b32 v10, v14")
    A("s_nop 1")
    A("v_permlane16_swap_b32 v10, v14")
    A("s_nop 1")
    A("v_max_f32 v14, v10, v14")
    A("v_mul_f32 v11, s59, v14")
    if not one:
        A("s_waitcnt lgkmcnt(0)")
        A("ds_read_b128 v[48:51], v13")
    def pprep(sc, ng=4):
        for r in range(ng):
            A(f"v_fma_f32 v{sc+r}, v{sc+r}, s59, -v11")
        for r in range(ng):
            A(f"v_exp_f32 v{sc+r}, v{sc+r}")
        A("s_nop 0")
        A(f"v_add_f32 v56, v{sc}, v{sc+1}")
        if ng == 4: A(f"v_add_f32 v57, v{sc+2}, v{sc+3}")
        for r in range(ng):
            A(f"v_cvt_pk_bf16_f32 v{sc+r}, v{sc+r}, v{sc+r}")
        if ng == 4: A("v_add_f32 v56, v56, v57")
        A("v_add_f32 v15, v15, v56")
        for r in range(ng):
            for k in range(4):
                A(f"v_and_b32 v{32+4*r+k}, v{sc+r}, v{4+k}")
    def pv(sl, ng=4):
        for r in range(ng):
            a = 32 + 4*r
            b0 = slot(sl, 2*r); b1 = slot(sl, 2*r+1)
            A(f"v_mfma_f32_16x16x32_bf16 v[24:27], v[{a}:{a+3}], v[{b0}:{b0+3}], v[24:27]")
            A(f"v_mfma_f32_16x16x32_bf16 v[28:31], v[{a}:{a+3}], v[{b1}:{b1+3}], v[28:31]")
    def vstep(sl, snext_off, nxt, pre=None):
        sc = 48 + 4*sl
        sn = 48 + 4*(1-sl)
        if late >= 3:
            cur_off = (snext_off - 128) if snext_off is not None else 128
            A("s_waitcnt vmcnt(0)")
            if late == 3:
                A(f"ds_read_b128 v[{sc}:{sc+3}], v13 offset:{cur_off}")
            A("s_waitcnt lgkmcnt(0)")
            if late == 4 and snext_off is not None:
                A(f"ds_read_b128 v[{sn}:{sn+3}], v13 offset:{snext_off}")
            if pre: pre()
            pprep(sc)
            A("s_nop 1")
            pv(sl)
            for i in range(vth): A("s_nop 15")
            if nxt: nxt()
            return
        A("s_waitcnt lgkmcnt(0)")
        if snext_off is not None:
            A(f"ds_read_b128 v[{sn}:{sn+3}], v13 offset:{snext_off}")
        if pre: pre()
        pprep(sc)
        A(f"s_waitcnt vmcnt({8*(DEP-1)})")
        if nxt and late == 0: nxt()
        else: A("s_nop 0")
        pv(sl)
        if nxt and late >= 1: nxt()
    def nv(sl):
        def f():
            issue('v', sl, "s57")
            tstep()
        return f
    def req_ticket():
        A("v_mov_b32 v58, 0")
        A("v_mov_b32 v59, 1")
        A("s_mov_b64 exec, 1")
        A(f"ds_add_rtn_u32 v59, v58, v59 offset:{L_CNT}")
        A("s_mov_b64 exec, -1")
    NWIN = (32-NS)*16
    NBIG = NWIN - NSM
    NTK = NBIG + 2*NSM
    def v1step(off, nxt, post=None):
        A(f"ds_read_b128 v[48:51], v13 offset:{off}")
        A("s_waitcnt vmcnt(0) lgkmcnt(0)")
        pprep(48)
        A("s_nop 1")
        pv(0)
        if post: post()
        if nxt: nxt()
    assert NS < 32 and one and (NSM == 0 or bm.startswith('iikkww'))
    A(f"s_mov_b32 s58, {NS-2}")
    LB("L_vloop")
    v1step(0, nv(0))
    A("v_add_u32 v13, 128, v13")
    A("s_sub_u32 s58, s58, 1")
    A("s_cmp_lg_u32 s58, 0")
    A("s_cbranch_scc1 L_vloop")
    v1step(0, nv(0), req_ticket)
    if NSM:
        A("v_lshrrev_b32 v61, 2, v8")
        A("v_lshlrev_b32 v61, 10, v61")
        A("v_sub_u32 v61, v2, v61")
        A("v_lshlrev_b32 v62, 10, v9")
        A("v_sub_u32 v62, v3, v62")
    v1step(128, None)
    stamp(1)
    if True:
        LB("L_next")
        A("s_waitcnt lgkmcnt(0)")
        A("v_readfirstlane_b32 s76, v59")
        A(f"s_mov_b32 s79, {spin_max}")
        A("s_andn2_b32 s77, s76, 3")
        A("v_mov_b32 v58, s77")
        LB("L_win")
        A(f"ds_read_b32 v60, v58 offset:{L_WIN}")
        A("s_waitcnt lgkmcnt(0)")
        A("v_readfirstlane_b32 s77, v60")
        A("s_cmp_lg_u32 s77, -1")
        A("s_cbranch_scc1 L_win_ok")
        A("s_sleep 1")
        A("s_sub_u32 s79, s79, 1")
        A("s_cmp_lg_u32 s79, 0")
        A("s_cbranch_scc1 L_win")
        LB("L_win_ok")
        A(f"s_cmp_ge_u32 s77, {NTK}")
        A("s_cbranch_scc1 L_dyn_done")
        A("s_and_b32 s76, s76, 3")
        if NSM:
            A(f"s_cmp_ge_u32 s77, {NBIG}")
            A("s_cbranch_scc1 L_small")
        def winaddr(src):
            A("s_lshl_b32 s78, s28, 24")
            deposit(78, src, 0, sorted(pos['r'] + pos['x']), 79)
            A(f"s_add_u32 s{src}, s{src}, {NS*16}")
            deposit(78, src, 4, pos['t'], 79)
        winaddr(77)
        deposit(78, 76, 0, pos['w'], 79)
        issue('k', 2, "s78")
        issue('v', 3, "s78")
        A("s_mov_b32 s73, 0")
        A("s_waitcnt vmcnt(8)")
        req_ticket()
        kproc(2, 0, None, True)
        A("v_max3_f32 v10, v48, v49, v50")
        A("v_max_f32 v10, v10, v51")
        A("v_cmp_gt_f32 vcc, v10, v14")
        A("s_cbranch_vccnz L_rare")
        LB("L_back")
        pprep(48)
        A("s_waitcnt vmcnt(0)")
        pv(3)
        A("s_branch L_next")
        if NSM:
            LB("L_small")
            A(f"s_add_u32 s77, s77, {NBIG}")
            A("s_and_b32 s79, s77, 1")
            A("s_lshl_b32 s79, s79, 2")
            A("s_add_u32 s76, s76, s79")
            A("s_lshr_b32 s77, s77, 1")
            winaddr(77)
            A("s_lshl_b32 s76, s76, 12")
            A("s_add_u32 s78, s78, s76")
            issue('k', 2, "s78", True)
            issue('v', 3, "s78", True)
            A("s_mov_b32 s73, 1")
            if smreq == 0: req_ticket()
            A("s_waitcnt vmcnt(4)")
            if smreq == 1: req_ticket()
            kproc(2, 0, None, True, 2)
            A("v_max_f32 v10, v48, v49")
            A("v_cmp_gt_f32 vcc, v10, v14")
            A("s_cbranch_vccnz L_rare")
            LB("L_back_sm")
            pprep(48, 2)
            A("s_waitcnt vmcnt(0)")
            A("s_nop 0")
            pv(3, 2)
            A("s_branch L_next")
        LB("L_rare")
        A("v_max_f32 v10, v10, v14")
        A("v_mov_b32 v56, v10")
        A("s_nop 1")
        A("v_permlane32_swap_b32 v56, v10")
        A("s_nop 1")
        A("v_max_f32 v10, v10, v56")
        A("v_mov_b32 v56, v10")
        A("s_nop 1")
        A("v_permlane16_swap_b32 v56, v10")
        A("s_nop 1")
        A("v_max_f32 v10, v10, v56")
        A("v_sub_f32 v56, v14, v10")
        A("v_mul_f32 v56, s59, v56")
        A("v_exp_f32 v56, v56")
        A("v_mov_b32 v14, v10")
        A("v_mul_f32 v11, s59, v10")
        A("v_mul_f32 v15, v15, v56")
        A("v_readlane_b32 s60, v56, 0")
        A("v_readlane_b32 s61, v56, 8")
        A("s_mov_b32 s62, 0")
        A("s_mov_b32 s63, -1")
        A("v_mov_b32 v57, s60")
        A("s_mov_b64 exec, s[62:63]")
        A("v_mov_b32 v57, s61")
        A("s_mov_b64 exec, -1")
        for r in range(8):
            A(f"v_mul_f32 v{24+r}, v57, v{24+r}")
        if NSM:
            A("s_cmp_lg_u32 s73, 0")
            A("s_cbranch_scc1 L_back_sm")
        A("s_branch L_back")
        LB("L_dyn_done")
    A("v_mov_b32 v10, v15")
    A("v_lshrrev_b32 v12, 1, v9")
    A("v_lshlrev_b32 v12, 10, v12")
    A("v_permlane32_swap_b32 v10, v15")
    A("v_lshl_add_u32 v12, v8, 5, v12")
    A("v_add_f32 v15, v10, v15")
    A("v_mov_b32 v10, v15")
    A("v_and_b32 v13, 1, v9")
    A("v_lshl_add_u32 v12, v13, 4, v12")
    A("v_permlane16_swap_b32 v10, v15")
    A("s_lshl_b32 s58, s3, 11")
    A("v_add_u32 v12, s58, v12")
    A("v_add_f32 v15, v10, v15")
    A("s_lshl_b32 s58, s3, 4")
    A("v_and_b32 v13, 8, v1")
    A("v_add_u32 v13, s58, v13")
    A(f"ds_write_b128 v12, v[24:27] offset:{L_O}")
    A(f"ds_write_b128 v12, v[28:31] offset:{L_O+512}")
    A("s_mov_b64 exec, 0x101")
    A(f"ds_write_b64 v13, v[14:15] offset:{L_ML}")
    A("s_mov_b64 exec, -1")
    stamp(4)
    A("s_waitcnt lgkmcnt(0)")
    A("s_barrier")
    A("s_cmp_lg_u32 s3, 0")
    A("s_cbranch_scc1 L_fin")
    A("s_cmp_ge_u32 s31, 28")
    A("s_cbranch_scc1 L_fin")
    srd(44, 22, 23, 1792)
    A("v_lshrrev_b32 v10, 2, v1")
    A(f"v_mul_u32_u24 v10, {OB2S}, v10")
    A("v_and_b32 v11, 3, v1")
    A("v_lshl_add_u32 v10, v11, 4, v10")
    A(f"s_mul_i32 s58, s30, {128*OB2S}")
    A("s_lshl_b32 s61, s31, 6")
    A("s_add_u32 s58, s58, s61")
    A(f"s_add_u32 s58, s58, {OB2}")
    A(f"s_mov_b32 s60, {spin_max}")
    for t in range(8):
        A(f"s_mov_b64 s[{64+2*t}:{65+2*t}], -1")
    if pp2:
        for k in range(32):
            A(f"v_mov_b32 v{96+k}, -1")
        for t in range(8):
            A(f"s_add_u32 s{48+t}, s58, {t*16*OB2S}")
        A("s_barrier")
        LB("L_poll2")
        for t in range(8):
            A(f"s_mov_b64 exec, s[{64+2*t}:{65+2*t}]")
            A(f"s_cbranch_execz L_p2s{t}")
            A(f"buffer_load_dwordx4 v[{96+4*t}:{99+4*t}], v10, s[40:43], s{48+t} offen sc1")
            LB(f"L_p2s{t}")
        A(f"s_waitcnt vmcnt({pp2})")
        A("s_mov_b64 s[62:63], 0")
        for t in range(8):
            A(f"s_mov_b64 exec, s[{64+2*t}:{65+2*t}]")
            A(f"s_cbranch_execz L_p2c{t}")
            for k in range(4):
                A(f"v_mov_b32 v{64+4*t+k}, v{96+4*t+k}")
            A(f"v_max3_u32 v12, v{64+4*t}, v{65+4*t}, v{66+4*t}")
            A(f"v_max_u32 v12, v12, v{67+4*t}")
            A(f"v_cmp_eq_u32 s[{64+2*t}:{65+2*t}], -1, v12")
            A(f"s_or_b64 s[62:63], s[62:63], s[{64+2*t}:{65+2*t}]")
            LB(f"L_p2c{t}")
        A("s_mov_b64 exec, -1")
        A("s_cmp_eq_u64 s[62:63], 0")
        A("s_cbranch_scc1 L_poll2_done")
        A("s_sleep 1")
        A("s_sub_u32 s60, s60, 1")
        A("s_cmp_lg_u32 s60, 0")
        A("s_cbranch_scc1 L_poll2")
    else:
        A("s_barrier")
        LB("L_poll2")
        for t in range(8):
            A(f"s_mov_b64 exec, s[{64+2*t}:{65+2*t}]")
            A(f"s_cbranch_execz L_p2s{t}")
            A(f"s_add_u32 s61, s58, {t*16*OB2S}")
            A(f"buffer_load_dwordx4 v[{64+4*t}:{67+4*t}], v10, s[40:43], s61 offen sc1")
            LB(f"L_p2s{t}")
        A("s_mov_b64 exec, -1")
        A("s_waitcnt vmcnt(0)")
        for t in range(8):
            A(f"v_max3_u32 v{12+(t&1)}, v{64+4*t}, v{65+4*t}, v{66+4*t}")
            A(f"v_max_u32 v{12+(t&1)}, v{12+(t&1)}, v{67+4*t}")
            A(f"v_cmp_eq_u32 s[{64+2*t}:{65+2*t}], -1, v{12+(t&1)}")
        A("s_or_b64 s[62:63], s[64:65], s[66:67]")
        for t in range(2, 8):
            A(f"s_or_b64 s[62:63], s[62:63], s[{64+2*t}:{65+2*t}]")
        A("s_cbranch_scc0 L_poll2_done")
        A(f"s_sleep {sl2}")
        A("s_sub_u32 s60, s60, 1")
        A("s_cmp_lg_u32 s60, 0")
        A("s_cbranch_scc1 L_poll2")
    LB("L_poll2_done")
    stamp(5)
    for step in (16, 8, 4):
        for k in range(step):
            A(f"v_add_f32 v{64+k}, v{64+k}, v{64+step+k}")
    A("s_nop 1")
    A("v_permlane32_swap_b32 v64, v66")
    A("v_permlane32_swap_b32 v65, v67")
    A("s_nop 1")
    A("v_add_f32 v64, v64, v66")
    A("v_add_f32 v65, v65, v67")
    A("v_mov_b32 v66, v64")
    A("v_mov_b32 v67, v65")
    A("s_nop 1")
    A("v_permlane16_swap_b32 v66, v64")
    A("v_permlane16_swap_b32 v67, v65")
    A("s_nop 1")
    A("v_add_f32 v64, v64, v66")
    A("v_add_f32 v65, v65, v67")
    A("s_nop 1")
    A(f"v_add_f32_dpp v64, v64, v64 row_ror:8 {DPP}")
    A(f"v_add_f32_dpp v65, v65, v65 row_ror:8 {DPP}")
    A("s_nop 1")
    A(f"v_add_f32_dpp v64, v64, v64 row_ror:4 {DPP}")
    A(f"v_add_f32_dpp v65, v65, v65 row_ror:4 {DPP}")
    A("v_lshrrev_b32 v12, 5, v1")
    A("v_lshlrev_b32 v12, 2, v12")
    A("v_lshl_add_u32 v12, v11, 3, v12")
    A("v_cvt_pk_bf16_f32 v64, v64, v65")
    A("s_mul_i32 s58, s30, 896")
    A("s_lshl_b32 s61, s31, 5")
    A("s_add_u32 s58, s58, s61")
    A("s_mov_b32 s60, 15")
    A("s_mov_b32 s61, 15")
    if tfix:
        LB("L_tfix")
        A("s_memrealtime s[98:99]")
        A("s_waitcnt lgkmcnt(0)")
        A("s_sub_u32 s98, s98, s96")
        A(f"s_cmp_lt_u32 s98, {tfix*100}")
        A("s_cbranch_scc1 L_tfix")
    A("s_mov_b64 exec, s[60:61]")
    A("buffer_store_dword v64, v12, s[44:47], s58 offen")
    A("s_mov_b64 exec, -1")
    stamp(6)
    if prof == 2: dump_dbg([(6,4)])
    LB("L_fin")
    dump_stamps("stream")
    A("s_endpgm")

    LB("L_service")
    stamp('service')
    A("s_mul_i32 s60, s30, 896")
    A("s_add_u32 s44, s4, s60")
    A("s_addc_u32 s45, s5, 0")
    A("s_mov_b32 s46, 896")
    A("s_mov_b32 s47, 0x00020000")
    A("s_mov_b32 s51, 0x00020000")
    for k in range(4):
        A(f"v_mov_b32 v{48+k}, -1")
    A("v_lshlrev_b32 v14, 4, v1")
    A(f"s_mul_i32 s57, s2, {OB1S}")
    A(f"s_add_u32 s57, s57, {OB1}")
    A(f"s_mul_i32 s58, s2, {OB2S}")
    A(f"s_add_u32 s58, s58, {OB2}")
    if noclr: A("s_mov_b64 exec, 1")
    for k in range(2):
        A(f"buffer_store_dwordx4 v[48:51], v14, s[40:43], s57 offen offset:{1024*k} sc1")
    A("buffer_store_dwordx4 v[48:51], v14, s[40:43], s58 offen sc1")
    A("s_mov_b32 s60, -1")
    A("s_mov_b32 s61, 0xffff")
    if not noclr: A("s_mov_b64 exec, s[60:61]")
    A("buffer_store_dwordx4 v[48:51], v14, s[40:43], s58 offen offset:1024 sc1")
    A("s_mov_b64 exec, 0xffff")
    A("buffer_store_dwordx4 v[48:51], v14, s[40:43], s57 offen offset:2048 sc1")
    A("s_mov_b64 exec, -1")
    A("v_mov_b32 v15, 0")
    A(f"ds_write_b32 v15, v15 offset:{L_CNT}")
    A(f"ds_write_b128 v14, v[48:51] offset:{L_WIN}")
    A("s_cmp_lg_u32 s29, 0")
    A("s_cbranch_scc1 L_notinit")
    A("s_lshl_b32 s60, s28, 12")
    A(f"s_add_u32 s60, s60, {TICK}")
    A("s_mov_b64 exec, 1")
    A("buffer_store_dword v15, v15, s[40:43], s60 offen sc1")
    A("s_mov_b64 exec, -1")
    LB("L_notinit")
    A("s_mov_b32 s60, 0x05040100")
    A("s_mov_b32 s61, 0x07060302")
    A("s_mov_b32 s62, 0x000f000f")
    A("s_mov_b32 s63, 0x000f000f")
    stamp(1)
    A("s_waitcnt lgkmcnt(0)")
    A("s_barrier")
    for w in range(4):
        A(f"ds_read_b64 v[{16+2*w}:{17+2*w}], v12 offset:{L_QP+128*w}")
    A("s_waitcnt vmcnt(5)")
    A("v_add_u32 v72, 0x10000, v72")
    A("v_add_u32 v73, 0x10000, v73")
    A("v_and_b32 v72, 0xffff0000, v72")
    A("v_and_b32 v73, 0xffff0000, v73")
    A("s_waitcnt lgkmcnt(0)")
    A("v_add_f32 v16, v16, v18")
    A("v_add_f32 v17, v17, v19")
    A("v_add_f32 v20, v20, v22")
    A("v_add_f32 v21, v21, v23")
    A("v_add_f32 v16, v16, v20")
    A("v_add_f32 v17, v17, v21")
    A("v_cvt_pk_bf16_f32 v16, v16, 0")
    A("v_cvt_pk_bf16_f32 v17, v17, 0")
    A("v_or_b32 v72, v72, v16")
    A("v_or_b32 v73, v73, v17")
    A("s_mov_b64 exec, s[62:63]")
    A(f"buffer_store_dwordx2 v[72:73], v12, s[40:43], s59 offen offset:{QBOX} sc1")
    A("s_mov_b64 exec, -1")
    stamp(2)
    A("s_lshl_b32 s65, s30, 6")
    A("s_add_u32 s65, s65, 128")
    A("s_mov_b32 s68, 1")
    A("s_mov_b32 s59, 0")
    A("s_mov_b32 s66, 0x10000")
    if ackf:
        A("s_waitcnt vmcnt(0)")
        A("s_atomic_add s68, s[24:25], s65")
    LB("L_pollq")
    A(f"buffer_load_dwordx4 v[76:79], v10, s[40:43], s56 offen offset:{QBOX} sc1")
    A(f"buffer_load_dwordx4 v[80:83], v10, s[40:43], s56 offen offset:{QBOX+16} sc1")
    A("s_waitcnt vmcnt(0)")
    if not ackf:
        A("s_cmp_lg_u32 s59, 0")
        A("s_cbranch_scc1 L_pollq_arrived")
        A("s_atomic_add s68, s[24:25], s65")
        LB("L_pollq_arrived")
    for k in range(8):
        A(f"v_xor_b32 v{84+k}, v{64+k}, v{76+k}")
    A("v_min3_u32 v84, v84, v85, v86")
    A("v_min3_u32 v87, v87, v88, v89")
    A("v_min3_u32 v84, v84, v90, v91")
    A("v_min_u32 v84, v84, v87")
    A("v_cmp_gt_u32 vcc, s66, v84")
    A("s_cbranch_vccz L_pollq_done")
    A("s_mov_b64 exec, vcc")
    A("s_add_u32 s59, s59, 1")
    A(f"s_sleep {slq}")
    A(f"s_cmp_lt_u32 s59, {fbk}")
    A("s_cbranch_scc1 L_pollq")
    A("s_mov_b32 s70, 0")
    A("s_atomic_add s70, s[24:25], s65 glc")
    A("s_waitcnt lgkmcnt(0)")
    A("s_cmp_ge_u32 s70, 128")
    A("s_cselect_b32 s66, 0, s66")
    A(f"s_cmp_lt_u32 s59, {spin_max}")
    A("s_cbranch_scc1 L_pollq")
    LB("L_pollq_done")
    A("s_mov_b64 exec, -1")
    stamp(3)
    for k in range(4):
        A(f"v_perm_b32 v{48+k}, v{77+2*k}, v{76+2*k}, s60")
    A(f"ds_write_b128 v14, v[48:51] offset:{L_Q}")
    A("s_waitcnt lgkmcnt(0)")
    A("s_barrier")
    stamp(4)
    make_masks(56, 57)
    A("s_and_b32 s66, s69, 7")
    A("s_mul_i32 s66, s66, 14")
    A("s_lshr_b32 s67, s69, 3")
    A("s_add_u32 s66, s66, s67")
    A("s_cmp_lt_u32 s69, 112")
    A(f"s_cselect_b32 s59, {0 if nobg&1 else 448*1792*2}, 0")
    A("s_mov_b32 s48, s16"); A("s_mov_b32 s49, s17"); A("s_mov_b32 s50, s59")
    srd(32, 18, 19, "s59")
    srd(36, 20, 21, 896)
    A("v_lshrrev_b32 v10, 1, v1")
    A("v_and_b32 v11, 1, v1")
    A("v_mul_u32_u24 v12, 28, v10")
    A(f"v_mul_u32_u24 v13, {14*3584}, v10")
    A("v_lshl_add_u32 v13, v11, 4, v13")
    A(f"buffer_load_dwordx4 v[{XR}:{XR+3}], v12, s[44:47], 0 offen")
    A(f"buffer_load_dwordx3 v[{XR+4}:{XR+6}], v12, s[44:47], 0 offen offset:16")
    A("buffer_load_dwordx4 v[40:43], v14, s[44:47], 0 offen")
    A("buffer_load_dwordx4 v[44:47], v14, s[36:39], 0 offen")
    A("s_lshl_b32 s56, s66, 5")
    cnt = [0]
    def thr():
        cnt[0] += 1
        if cnt[0] % SB == 0: A("s_waitcnt vmcnt(0)")
    for t in range(14):
        A(f"buffer_load_dwordx4 v[{64+4*t}:{67+4*t}], v13, s[48:51], s56 offen {'nt' if wnt & 2 else ''}")
        A("s_add_u32 s56, s56, 3584")
        thr()
    for k in range(8):
        A(f"v_mov_b32 v{ACC+k}, 0")
    matvec_pairs(7, 64, XR, 0)
    A("s_nop 1")
    for k in range(2):
        A(f"v_add_f32_dpp v{ACC+k}, v{ACC+k}, v{ACC+k} row_ror:2 {DPP}")
    A(f"s_mov_b32 s59, {f2u(-math.log2(math.e)):#x}")
    for k in range(2):
        A(f"v_cvt_pk_bf16_f32 v{ACC+k}, 0, v{ACC+k}")
    for k in range(2):
        A(f"v_mul_f32 v{ACC+2+k}, s59, v{ACC+k}")
    for k in range(2):
        A(f"v_exp_f32 v{ACC+2+k}, v{ACC+2+k}")
    A("s_nop 0")
    for k in range(2):
        A(f"v_add_f32 v{ACC+2+k}, 1.0, v{ACC+2+k}")
    for k in range(2):
        A(f"v_rcp_f32 v{ACC+2+k}, v{ACC+2+k}")
    A("s_nop 0")
    for k in range(2):
        A(f"v_mul_f32 v{ACC+k}, v{ACC+k}, v{ACC+2+k}")
    A("v_lshlrev_b32 v12, 5, v11")
    A("v_lshl_add_u32 v12, v9, 3, v12")
    A("s_mov_b32 s62, 0x00030003")
    A("s_mov_b32 s63, 0x00030003")
    A("s_mov_b64 exec, s[62:63]")
    A(f"ds_write_b64 v12, v[{ACC}:{ACC+1}] offset:{L_H}")
    A("s_mov_b64 exec, -1")
    A("v_lshlrev_b32 v12, 4, v9")
    A("s_waitcnt lgkmcnt(0)")
    A(f"ds_read_b128 v[{ACC}:{ACC+3}], v12 offset:{L_H}")
    for k in range(4):
        A(f"v_lshlrev_b32 v52, 16, v{40+k}")
        A(f"v_lshlrev_b32 v53, 16, v{44+k}")
        A(f"v_and_b32 v54, 0xffff0000, v{40+k}")
        A(f"v_and_b32 v55, 0xffff0000, v{44+k}")
        A("v_mul_f32 v52, v52, v53")
        A("v_mul_f32 v54, v54, v55")
        A("v_cvt_pk_bf16_f32 v52, 0, v52")
        A("v_cvt_pk_bf16_f32 v54, 0, v54")
        if k == 0:
            A("v_add_f32 v56, v52, v54")
        else:
            A("v_add_f32 v56, v56, v52")
            A("v_add_f32 v56, v56, v54")
    for rr in (8, 4, 2, 1):
        A("s_nop 1")
        A(f"v_add_f32_dpp v56, v56, v56 row_ror:{rr} {DPP}")
    A("v_mov_b32 v57, v56")
    A("s_nop 1")
    A("v_permlane32_swap_b32 v57, v56")
    A("s_nop 1")
    A("v_add_f32 v56, v56, v57")
    A("v_mov_b32 v57, v56")
    A("s_nop 1")
    A("v_permlane16_swap_b32 v57, v56")
    A("s_nop 1")
    A("v_add_f32 v56, v56, v57")
    A("v_cvt_pk_bf16_f32 v56, 0, v56")
    A("v_mul_f32 v56, s59, v56")
    A("v_exp_f32 v56, v56")
    A("s_nop 0")
    A("v_add_f32 v56, 1.0, v56")
    A("v_rcp_f32 v56, v56")
    A("s_nop 0")
    A("v_cvt_pk_bf16_f32 v2, 0, v56")
    A("v_sub_f32 v3, 1.0, v2")
    A("v_cvt_pk_bf16_f32 v3, 0, v3")
    A("s_waitcnt lgkmcnt(0) vmcnt(0)")
    for t in range(4):
        A(f"v_cvt_pk_bf16_f32 v{ACC+t}, v{ACC+t}, v{ACC+t}")
    for t in range(4):
        for k in range(4):
            A(f"v_and_b32 v{24+4*t+k}, v{ACC+t}, v{4+k}")
    def part_pollg():
        A(f"s_mov_b32 s56, {spin_max}")
        LB("L_pollg")
        A("s_mov_b32 s70, 0")
        A("s_atomic_add s70, s[24:25], s65 glc")
        A("s_waitcnt lgkmcnt(0)")
        A("s_cmp_ge_u32 s70, 128")
        A("s_cbranch_scc1 L_pollg_done")
        A("s_sleep 16")
        A("s_sub_u32 s56, s56, 1")
        A("s_cmp_lg_u32 s56, 0")
        A("s_cbranch_scc1 L_pollg")
        LB("L_pollg_done")
    srd(48, 12, 13, 0 if nobg&2 else 4096*448*2)
    A("v_mul_u32_u24 v18, 3584, v9")
    A("v_lshl_add_u32 v18, v8, 4, v18")
    A("v_mul_u32_u24 v19, 7168, v9")
    A("v_lshl_add_u32 v19, v8, 4, v19")
    A(f"s_mul_i32 s66, s66, {16*896}")
    A(f"s_mul_i32 s67, s31, {32*896}")
    A(f"s_add_u32 s68, s67, {4*896}")
    A(f"s_mov_b32 s59, {f2u(C_SCALE):#x}")
    A("v_lshlrev_b32 v10, 5, v1")
    A("v_lshrrev_b32 v11, 5, v1")
    A("v_lshlrev_b32 v11, 3, v11")
    A("v_lshrrev_b32 v15, 2, v1")
    A("v_mul_u32_u24 v15, 144, v15")
    A("v_and_b32 v12, 3, v1")
    A("v_lshl_add_u32 v15, v12, 5, v15")
    A(f"v_mul_u32_u24 v12, {OB1S}, v8")
    A("v_lshl_add_u32 v13, v9, 5, v12")
    A(f"s_mul_i32 s60, s28, {16*OB1S}")
    A("s_mul_i32 s61, s29, 144")
    A("s_add_u32 s60, s60, s61")
    A(f"s_add_u32 s60, s60, {OB1}")
    A("v_lshlrev_b32 v14, 5, v8")
    A("v_lshl_add_u32 v14, v9, 4, v14")
    part_pollg()
    def part_w():
        for t in range(4):
            for cb in range(4):
                b = 64 + 16*t + 4*cb
                A(f"buffer_load_dwordx4 v[{b}:{b+3}], v18, s[32:35], s66 offen offset:{t*896+cb*256} {'nt' if wnt & 2 else ''}")
                if not defer: thr()
        for t in range(8):
            for cb in range(4):
                b = 128 + 16*t + 4*cb
                A(f"buffer_load_dwordx4 v[{b}:{b+3}], v19, s[48:51], s{67 + (t>>2)} offen offset:{(t&3)*896+cb*256} {'nt' if wnt & 2 else ''}")
                if not defer: thr()
    def part_ffn2():
        A("s_waitcnt vmcnt(32)")
        for t in range(4):
            for cb in range(4):
                b = 64 + 16*t + 4*cb
                d = 40 + 4*cb
                c = "0" if t == 0 else f"v[{d}:{d+3}]"
                A(f"v_mfma_f32_16x16x32_bf16 v[{d}:{d+3}], v[{24+4*t}:{27+4*t}], v[{b}:{b+3}], {c}")
        A("s_nop 7")
        for k in range(16):
            A(f"v_mul_f32 v{40+k}, v3, v{40+k}")
    if not defer:
        part_w()
        part_ffn2()
    if NS < 32:
        A("s_lshl_b32 s74, s28, 12")
        A(f"s_add_u32 s74, s74, {TICK}")
        A("s_add_u32 s74, s26, s74")
        A("s_addc_u32 s75, s27, 0")
        A("s_mov_b32 s71, 0")
        A("s_mov_b32 s72, 0")
        A("s_mov_b32 s73, 0")
        A("v_mov_b32 v16, 0")
        A(f"s_mov_b32 s56, {spin_max*4}")
        LB("L_tk")
        A(f"ds_read_b32 v17, v16 offset:{L_CNT}")
        A("s_waitcnt lgkmcnt(0)")
        A("v_readfirstlane_b32 s70, v17")
        A("s_cmp_gt_u32 s70, s73")
        A("s_cbranch_scc1 L_tk_fetch")
        A(f"s_sleep {dsl}")
        A("s_sub_u32 s56, s56, 1")
        A("s_cmp_lg_u32 s56, 0")
        A("s_cbranch_scc1 L_tk")
        A("s_branch L_tk_done")
        LB("L_tk_fetch")
        A("s_mov_b32 s70, 1")
        A("s_atomic_add s70, s[74:75], 0 glc")
        A("v_mov_b32 v17, s71")
        A("s_waitcnt lgkmcnt(0)")
        A("v_mov_b32 v20, s70")
        A("s_add_u32 s71, s71, 4")
        A(f"s_sub_u32 s73, s71, {la}")
        A(f"ds_write_b32 v17, v20 offset:{L_WIN}")
        if defer:
            A(f"s_cmp_lt_u32 s70, {defer}")
            A("s_cbranch_scc1 L_tk")
            A("s_cmp_lg_u32 s72, 0")
            A("s_cbranch_scc1 L_tk_w")
            A("s_mov_b32 s72, 1")
            stamp(1)
            part_w()
            LB("L_tk_w")
        A(f"s_cmp_lt_u32 s70, {NTK - RET}")
        A("s_cbranch_scc1 L_tk")
        A("v_mov_b32 v17, s71")
        A("v_mov_b32 v20, 0x10000")
        A(f"ds_write_b32 v17, v20 offset:{L_WIN}")
        LB("L_tk_done")
    if defer:
        assert defer <= NTK - RET
        part_ffn2()
    A("s_waitcnt vmcnt(0) lgkmcnt(0)")
    if pp1:
        for k in range(8):
            A(f"v_mov_b32 v{120+k}, -1")
    if defer: stamp(2)
    A("s_barrier")
    stamp(5)
    if prof: A("s_waitcnt lgkmcnt(0)")
    for w in range(4):
        A(f"ds_read_b64 v[{56+2*w}:{57+2*w}], v11 offset:{L_ML+16*w}")
    for w in range(4):
        A(f"ds_read_b128 v[{64+8*w}:{67+8*w}], v10 offset:{L_O+2048*w}")
        A(f"ds_read_b128 v[{68+8*w}:{71+8*w}], v10 offset:{L_O+2048*w+16}")
    A("s_waitcnt lgkmcnt(8)")
    A("v_max3_f32 v16, v56, v58, v60")
    A("v_max_f32 v16, v16, v62")
    for w in range(4):
        A(f"v_sub_f32 v{56+2*w}, v{56+2*w}, v16")
    for w in range(4):
        A(f"v_mul_f32 v{56+2*w}, s59, v{56+2*w}")
    for w in range(4):
        A(f"v_exp_f32 v{56+2*w}, v{56+2*w}")
    A("s_nop 0")
    A("v_mul_f32 v17, v56, v57")
    for w in range(1, 4):
        A(f"v_fmac_f32 v17, v{56+2*w}, v{57+2*w}")
    A("s_waitcnt lgkmcnt(0)")
    for k in range(8):
        A(f"v_mul_f32 v{64+k}, v56, v{64+k}")
    for w in range(1, 4):
        for k in range(8):
            A(f"v_fmac_f32 v{64+k}, v{56+2*w}, v{64+8*w+k}")
    if pp1:
        A("v_mov_b32 v82, -1")
        A("v_mov_b32 v83, -1")
    A("buffer_store_dwordx4 v[64:67], v15, s[40:43], s57 offen sc1")
    A("buffer_store_dwordx4 v[68:71], v15, s[40:43], s57 offen offset:16 sc1")
    A("s_mov_b32 s62, 0x11111111")
    A("s_mov_b32 s63, 0x11111111")
    A("s_mov_b64 exec, s[62:63]")
    A("buffer_store_dwordx2 v[16:17], v15, s[40:43], s57 offen offset:128 sc1")
    A("s_mov_b64 exec, -1")
    A(f"s_mov_b32 s56, {spin_max}")
    if pp1:
        LB("L_poll1")
        A("buffer_load_dwordx4 v[120:123], v13, s[40:43], s60 offen sc1")
        A("buffer_load_dwordx4 v[124:127], v13, s[40:43], s60 offen offset:16 sc1")
        A("buffer_load_dwordx2 v[82:83], v12, s[40:43], s60 offen offset:128 sc1")
        A(f"s_waitcnt vmcnt({3*(pp1-1)})")
        for k in range(8):
            A(f"v_mov_b32 v{72+k}, v{120+k}")
        A("v_mov_b32 v80, v82")
        A("v_mov_b32 v81, v83")
        A("v_max3_u32 v18, v72, v73, v74")
        A("v_max3_u32 v19, v75, v76, v77")
        A("v_max3_u32 v18, v18, v78, v79")
        A("v_max3_u32 v19, v19, v80, v81")
        A("v_max_u32 v18, v18, v19")
        A("v_cmp_eq_u32 vcc, -1, v18")
        A("s_cbranch_vccz L_poll1_done")
        A("s_mov_b64 exec, vcc")
        A("s_bcnt1_i32_b64 s61, vcc")
        A("s_cmp_le_u32 s61, 12")
        A("s_cbranch_scc1 L_poll1_fast")
        A("s_waitcnt vmcnt(0)")
        A("s_sleep 8")
        LB("L_poll1_fast")
        A("s_sub_u32 s56, s56, 1")
        A("s_cmp_lg_u32 s56, 0")
        A("s_cbranch_scc1 L_poll1")
    else:
        LB("L_poll1")
        A("buffer_load_dwordx4 v[72:75], v13, s[40:43], s60 offen sc1")
        A("buffer_load_dwordx4 v[76:79], v13, s[40:43], s60 offen offset:16 sc1")
        A("buffer_load_dwordx2 v[80:81], v12, s[40:43], s60 offen offset:128 sc1")
        A("s_waitcnt vmcnt(0)")
        A("v_max3_u32 v18, v72, v73, v74")
        A("v_max3_u32 v19, v75, v76, v77")
        A("v_max3_u32 v18, v18, v78, v79")
        A("v_max3_u32 v19, v19, v80, v81")
        A("v_max_u32 v18, v18, v19")
        A("v_cmp_eq_u32 vcc, -1, v18")
        A("s_cbranch_vccz L_poll1_done")
        A("s_mov_b64 exec, vcc")
        if adapt:
            A("s_bcnt1_i32_b64 s61, vcc")
            A("s_cmp_le_u32 s61, 12")
            A("s_cbranch_scc1 L_poll1_fast")
            A("s_sleep 16")
            LB("L_poll1_fast")
            A("s_sleep 1")
        else:
            A(f"s_sleep {sl1}")
        A("s_sub_u32 s56, s56, 1")
        A("s_cmp_lg_u32 s56, 0")
        A("s_cbranch_scc1 L_poll1")
    LB("L_poll1_done")
    A("s_mov_b64 exec, -1")
    A("s_barrier")
    stamp(6)
    A(f"v_max_f32_dpp v18, v80, v80 row_ror:8 {DPP}")
    for rr in (4, 2, 1):
        A("s_nop 1")
        A(f"v_max_f32_dpp v18, v18, v18 row_ror:{rr} {DPP}")
    A("v_sub_f32 v18, v80, v18")
    A("v_mul_f32 v18, s59, v18")
    A("v_exp_f32 v18, v18")
    A("s_nop 0")
    A("v_mul_f32 v80, v18, v81")
    for k in range(8):
        A(f"v_mul_f32 v{72+k}, v18, v{72+k}")
    for rr in (8, 4, 2, 1):
        for k in range(9):
            A(f"v_add_f32_dpp v{72+k}, v{72+k}, v{72+k} row_ror:{rr} {DPP}")
    A("v_rcp_f32 v80, v80")
    A("s_nop 0")
    for k in range(8):
        A(f"v_mul_f32 v{72+k}, v80, v{72+k}")
    for k in range(8):
        A(f"v_cvt_pk_bf16_f32 v{72+k}, v{72+k}, v{72+k}")
    for t in range(8):
        for k in range(4):
            A(f"v_and_b32 v{88+4*t+k}, v{72+t}, v{4+k}")
        if t >= 1:
            tt = t - 1
            for cb in range(4):
                b = 128 + 16*tt + 4*cb
                d = 16 + 4*cb
                c = "0" if tt == 0 else f"v[{d}:{d+3}]"
                A(f"v_mfma_f32_16x16x32_bf16 v[{d}:{d+3}], v[{88+4*tt}:{91+4*tt}], v[{b}:{b+3}], {c}")
    tt = 7
    for cb in range(4):
        b = 128 + 16*tt + 4*cb
        d = 16 + 4*cb
        A(f"v_mfma_f32_16x16x32_bf16 v[{d}:{d+3}], v[{88+4*tt}:{91+4*tt}], v[{b}:{b+3}], v[{d}:{d+3}]")
    A("s_mov_b32 s62, -1")
    A("s_mov_b32 s63, 0")
    A("s_nop 3")
    for cb in range(4):
        for k in range(4):
            A(f"v_fmac_f32 v{40+4*cb+k}, v2, v{16+4*cb+k}")
        if cb == 0:
            A("s_mov_b64 exec, s[62:63]")
        if cb == 3:
            A("s_mov_b32 s62, 0x00ff00ff")
            A("s_mov_b64 exec, s[62:63]")
        A(f"buffer_store_dwordx4 v[{40+4*cb}:{43+4*cb}], v14, s[40:43], s58 offen offset:{512*cb} sc1")
    A("s_mov_b64 exec, -1")
    stamp(7)
    dump_stamps("service")
    LB("L_end")
    A("s_endpgm")
    L.append('.section .rodata,"a"')
    L.append(".p2align 6")
    L.append(f".amdhsa_kernel {NAME}_kernel")
    L.append("  .amdhsa_next_free_vgpr 256")
    L.append("  .amdhsa_next_free_sgpr 100")
    L.append("  .amdhsa_accum_offset 256")
    L.append("  .amdhsa_group_segment_fixed_size 0")
    L.append("  .amdhsa_kernarg_size 96")
    L.append("  .amdhsa_user_sgpr_count 2")
    L.append("  .amdhsa_user_sgpr_kernarg_segment_ptr 1")
    L.append("  .amdhsa_system_sgpr_workgroup_id_x 1")
    L.append(".end_amdhsa_kernel")
    return "\n".join(L) + "\n"


if __name__ == "__main__":
    out = sys.argv[1]
    kw = {}
    for a in sys.argv[2:]:
        k, v = a.split("=")
        kw[k] = int(v) if (v.isdigit() and k != 'gx') else v
    open(out, "w").write(gen(**kw))
```

```python
import sys, math

NAME = "gated_mix__gqa_block_cached__dense_activation_silu__decode"
HEADER = open("cdna_kernels/" + NAME + ".s.ref").read().split("; Override launch")[0]

QBOX = 0x0
TICK = 0x10000
OB1 = 0x40000
OB1S = 2304
OB2 = 0x200000
OB2S = 1792
STAMP = 0x20000000
L_Q = 0
L_S = 1024
L_O = L_S + 16384
L_ML = L_O + 8192
L_H = L_ML + 64
L_QP = L_H + 64
L_CNT = L_QP + 512
L_WIN = L_CNT + 64
LDS_BYTES = L_WIN + 1024

C_SCALE = (1.0 / 16.0) * math.log2(math.e)
import struct
def f2u(x): return struct.unpack("<I", struct.pack("<f", x))[0]


def gen(prof=0, NPRE=6, PFI=1, early=1, spin_max=200000, sl1=4, sl2=2, slq=1, fbk=4, late=4, NS=28, fl=0, bm='iikkwwrtttttxxx', DEP=1, kw8=0, SB=64, nobg=0, nowq=0, noclr=0, ptile=0, flv=-1, qx=0, ackf=1, kfirst=0, vth=0, kth=0, defer=0, dsl=4, jit=0, la=0, adapt=1, tfix=0, one=1, NSM=0, RET=8, smreq=0, gx='', pp1=0, pp2=0, wnt=3):
    L = []
    A = lambda s: L.append("  " + s)
    LB = lambda s: L.append(s + ":")
    nstamp = [0]

    def stamp(k, svc=[False]):
        if k == 'service':
            svc[0] = True
            return
        if ptile and not svc[0] and k not in (0, 7, 2):
            return
        if ptile and not svc[0] and k == 2:
            k = 6
        if prof:
            A(f"s_memrealtime s[{80+2*k}:{81+2*k}]")

    def dump_dbg(pairs):
        A("s_waitcnt lgkmcnt(0)")
        srd(52, 24, 25, 256)
        A("v_mov_b32 v56, 0")
        for (k, sp) in pairs:
            A(f"s_not_b32 s56, s{80+2*k}")
            A(f"v_writelane_b32 v56, s56, {2*sp}")
            A(f"v_writelane_b32 v56, s{80+2*k}, {2*sp+1}")
        A("v_lshlrev_b32 v57, 2, v1")
        A("s_mov_b64 exec, 0xffff")
        A("buffer_atomic_umax v56, v57, s[52:55], 0 offen")
        A("s_mov_b64 exec, -1")

    def dump_stamps(kind=None):
        if not prof:
            return
        if prof == 2:
            dump_dbg({"stream": [(0,0),(2,1),(3,2),(4,3)], "service": [(2,5),(3,6),(6,7)]}[kind])
            return
        A("s_waitcnt lgkmcnt(0)")
        A("s_lshl_b32 s56, s2, 3")
        A("s_add_u32 s56, s56, s3")
        A("s_lshl_b32 s56, s56, 6")
        A(f"s_add_u32 s56, s56, {STAMP}")
        A("s_mov_b64 exec, 1")
        A("v_mov_b32 v60, 0")
        for q in range(4):
            for j in range(4):
                A(f"v_mov_b32 v{56+j}, s{80+4*q+j}")
            A(f"buffer_store_dwordx4 v[56:59], v60, s[40:43], s56 offen offset:{16*q}")
            A("s_nop 1")
        A("s_mov_b64 exec, -1")

    def srd(d, lo, hi, n):
        A(f"s_mov_b32 s{d}, s{lo}")
        A(f"s_mov_b32 s{d+1}, s{hi}")
        A(f"s_mov_b32 s{d+2}, {n}")
        A(f"s_mov_b32 s{d+3}, 0x00020000")

    DPP = "row_mask:0xf bank_mask:0xf"
    ACC = 16
    XR = 32
    def matvec_pairs(npairs, wbase, xbase, tail_ops):
        for u in range(npairs):
            A(f"s_waitcnt vmcnt({2*npairs - (2*u+2) + tail_ops})")
            w0 = wbase + 8*u; w1 = w0 + 4
            for k in range(4):
                A(f"v_perm_b32 v{52+k}, v{w1+k}, v{w0+k}, s60")
                A(f"v_perm_b32 v{56+k}, v{w1+k}, v{w0+k}, s61")
            for k in range(4):
                A(f"v_dot2c_f32_bf16 v{ACC+2*k}, v{52+k}, v{xbase+u}")
                A(f"v_dot2c_f32_bf16 v{ACC+2*k+1}, v{56+k}, v{xbase+u}")
        A("s_nop 3")
        for k in range(4):
            A(f"v_permlane32_swap_b32 v{ACC+k}, v{ACC+4+k}")
        A("s_nop 1")
        for k in range(4):
            A(f"v_add_f32 v{ACC+k}, v{ACC+k}, v{ACC+4+k}")
        A("s_nop 1")
        for k in range(2):
            A(f"v_permlane16_swap_b32 v{ACC+k}, v{ACC+2+k}")
        A("s_nop 1")
        for k in range(2):
            A(f"v_add_f32 v{ACC+k}, v{ACC+k}, v{ACC+2+k}")
        for rr in (8, 4):
            A("s_nop 1")
            for k in range(2):
                A(f"v_add_f32_dpp v{ACC+k}, v{ACC+k}, v{ACC+k} row_ror:{rr} {DPP}")
    def make_masks(t0, t1):
        A(f"v_and_b32 v{t0}, 1, v1")
        A(f"v_lshlrev_b32 v{t0}, 4, v{t0}")
        A(f"v_mov_b32 v{t1}, 0xffff")
        A(f"v_lshlrev_b32 v{t1}, v{t0}, v{t1}")
        A(f"v_bfe_u32 v{t0}, v1, 1, 2")
        for k in range(4):
            A(f"v_cmp_eq_u32 vcc, {k}, v{t0}")
            A("s_nop 1")
            A(f"v_cndmask_b32 v{4+k}, 0, v{t1}, vcc")
    L.append(HEADER.rstrip("\n"))
    L.append(f"; @launch grid=(256,1,1) block=(320,1,1) lds={LDS_BYTES}")
    L.append('.amdgcn_target "amdgcn-amd-amdhsa--gfx950"')
    L.append(".text")
    L.append(f".globl {NAME}_kernel")
    L.append(".p2align 8")
    L.append(f".type {NAME}_kernel,@function")
    LB(f"{NAME}_kernel")
    A("s_cmp_ge_u32 s2, 256")
    A("s_cbranch_scc1 L_end")
    A("s_load_dwordx16 s[4:19], s[0:1], 0")
    A("s_load_dwordx8 s[20:27], s[0:1], 64")
    if prof:
        for k in range(8):
            A(f"s_mov_b64 s[{80+2*k}:{81+2*k}], 0")
    stamp(0)
    if tfix: A("s_memrealtime s[96:97]")
    A("v_lshrrev_b32 v2, 6, v0")
    A("v_and_b32 v1, 63, v0")
    A("v_readfirstlane_b32 s3, v2")
    NX = bm.count('x')
    A("s_and_b32 s63, s2, 127")
    if NX < 3:
        keep_hi = 0xff & ~((1 << (7 - NX)) - 1)
        nr = 4 - NX
        A(f"s_and_b32 s28, s2, {((1 << NX) - 1) | keep_hi:#x}")
        A(f"s_bfe_u32 s29, s2, {(nr << 16) | 3:#x}")
        A(f"s_lshl_b32 s29, s29, {NX}")
        A("s_or_b32 s28, s28, s29")
        A(f"s_bfe_u32 s29, s2, {((3 - NX) << 16) | NX:#x}")
        A("s_lshl_b32 s29, s29, 4")
        A("s_or_b32 s2, s28, s29")
    A("s_lshr_b32 s28, s2, 4")
    A("s_and_b32 s29, s2, 15")
    A("s_lshr_b32 s30, s2, 7")
    A("s_and_b32 s31, s2, 127")
    if qx:
        A("s_and_b32 s64, s31, 7")
        A("s_lshl_b32 s64, s64, 4")
        A("s_lshr_b32 s65, s31, 3")
        A("s_add_u32 s64, s64, s65")
    else:
        A(f"s_and_b32 s64, s29, {(1 << NX) - 1}")
        A(f"s_lshl_b32 s64, s64, {4 - NX}")
        A(f"s_lshr_b32 s65, s29, {NX}")
        A("s_add_u32 s64, s64, s65")
        A("s_andn2_b32 s65, s31, 15")
        A("s_add_u32 s64, s64, s65")
    A("v_and_b32 v8, 15, v1")
    A("v_lshrrev_b32 v9, 4, v1")
    A("s_waitcnt lgkmcnt(0)")
    srd(40, 26, 27, "0x40000000")
    A("s_cmp_lg_u32 s3, 4")
    A("s_cbranch_scc1 L_stream")
    A("v_lshlrev_b32 v10, 5, v1")
    A("s_lshl_b32 s56, s28, 11")
    A(f"buffer_load_dwordx4 v[64:67], v10, s[40:43], s56 offen offset:{QBOX} sc1")
    A(f"buffer_load_dwordx4 v[68:71], v10, s[40:43], s56 offen offset:{QBOX+16} sc1")
    A("v_and_b32 v11, 3, v1")
    A("v_lshlrev_b32 v12, 5, v11")
    A("v_lshl_add_u32 v12, v9, 3, v12")
    A("s_lshl_b32 s59, s30, 7")
    A("s_add_u32 s59, s59, s64")
    A("s_lshl_b32 s59, s59, 7")
    A(f"buffer_load_dwordx2 v[72:73], v12, s[40:43], s59 offen offset:{QBOX} sc1")
    A("s_mov_b32 s69, s63")
    A("s_branch L_service")
    LB("L_stream")

    srd(32, 6, 7, "0x10000000")
    srd(36, 8, 9, "0x10000000")
    assert len(bm) == 15 and bm.count('r') + NX == 4
    pos = {c: [9+i for i, ch in enumerate(bm) if ch == c] for c in 'ikwrxt'}
    def runs(positions):
        out = []
        for i, p in enumerate(positions):
            if out and out[-1][1] + out[-1][2] == p: out[-1][2] += 1
            else: out.append([i, p, 1])
        return out
    def deposit(dst, src, srcbit0, positions, tmp):
        for (sb, db, n) in runs(positions):
            A(f"s_bfe_u32 s{tmp}, s{src}, {(n << 16) | (sb + srcbit0):#x}")
            A(f"s_lshl_b32 s{tmp}, s{tmp}, {db}")
            A(f"s_or_b32 s{dst}, s{dst}, s{tmp}")
    A("s_lshl_b32 s56, s28, 24")
    deposit(56, 3, 0, pos['w'], 57)
    deposit(56, 29, 0, pos['x'], 57)
    deposit(56, 29, NX, pos['r'], 57)
    if gx:
        A("s_mov_b32 s71, 0")
        for it in gx.split('_'):
            gb, ab = int(it[0]), int(it[1:])
            A(f"s_bfe_u32 s57, s2, {(1 << 16) | (4 + gb):#x}")
            A(f"s_lshl_b32 s57, s57, {ab}")
            A("s_xor_b32 s71, s71, s57")
    TM = sum(1 << p for p in pos['t'])
    def tstep():
        if len(runs(pos['t'])) == 1:
            A(f"s_add_u32 s57, s57, {1 << pos['t'][0]:#x}")
        else:
            A(f"s_or_b32 s57, s57, {(~TM) & 0xffffffff:#x}")
            A(f"s_add_u32 s57, s57, {1 << pos['t'][0]:#x}")
            A(f"s_and_b32 s57, s57, {TM:#x}")
            A("s_or_b32 s57, s57, s56")
    def vdeposit(dst, src, tmp):
        if pos['k'][1] == pos['k'][0] + 1:
            A(f"v_lshlrev_b32 v{dst}, {pos['k'][0]}, v{src}")
        else:
            A(f"v_and_b32 v{tmp}, 1, v{src}")
            A(f"v_lshrrev_b32 v{dst}, 1, v{src}")
            A(f"v_lshlrev_b32 v{dst}, {pos['k'][1]}, v{dst}")
            A(f"v_lshl_add_u32 v{dst}, v{tmp}, {pos['k'][0]}, v{dst}")
    A("v_lshrrev_b32 v3, 2, v8")
    vdeposit(2, 3, 10)
    A("v_lshl_add_u32 v2, v9, 6, v2")
    vdeposit(3, 9, 10)
    A("v_lshl_add_u32 v3, v8, 4, v3")
    A("v_and_b32 v10, 3, v1")
    A("v_lshl_add_u32 v2, v10, 4, v2")
    SLOT0 = 64
    def slot(sl, i): return SLOT0 + 32*sl + 4*i
    def issue(kind, sl, sreg, small=False):
        srdn = "s[32:35]" if kind == 'k' else "s[36:39]"
        va = "v2" if kind == 'k' else "v3"
        if small: va = "v61" if kind == 'k' else "v62"
        flg = ['nt','sc1 nt','sc0 sc1 nt','sc0 nt','','sc1','sc0 sc1'][fl if (kind == 'k' or flv < 0) else flv]
        cur_hi = 0
        if gx:
            A(f"s_xor_b32 s70, {sreg}, s71")
            sreg = "s70"
        for i in range(4 if small else 8):
            b = slot(sl, i)
            r = i >> 1
            off = ((r & 1) << pos['i'][0]) + ((r >> 1) << pos['i'][1]) + (i & 1)*256
            hi = off & ~0xfff
            if hi and hi != cur_hi:
                A(f"s_add_u32 s69, {sreg}, {hi:#x}")
                cur_hi = hi
            A(f"buffer_load_dwordx4 v[{b}:{b+3}], {va}, {srdn}, {'s69' if hi else sreg} offen offset:{off & 0xfff} {flg}")
    if kfirst:
        issue('k', 0, "s56")
    A("s_mul_i32 s57, s30, 896")
    A("s_add_u32 s44, s4, s57")
    A("s_addc_u32 s45, s5, 0")
    A("s_mov_b32 s46, 896")
    A("s_mov_b32 s47, 0x00020000")
    srd(48, 10, 11, 0 if nowq else 448*4096*2)
    A("v_lshrrev_b32 v12, 2, v1")
    A("s_mul_i32 s57, s3, 14")
    A("v_cmp_gt_u32 vcc, 14, v12")
    A("v_add_u32 v12, s57, v12")
    A("v_mov_b32 v13, 0x4000")
    A("v_cndmask_b32 v12, v13, v12, vcc")
    A("v_lshlrev_b32 v13, 16, v12")
    A("v_lshl_add_u32 v13, v10, 4, v13")
    A("v_lshlrev_b32 v12, 4, v12")
    A(f"buffer_load_dwordx4 v[{XR}:{XR+3}], v12, s[44:47], 0 offen")
    A("s_lshl_b32 s57, s64, 6")
    WQB = slot(NPRE-1, 0)
    for t in range(8):
        A(f"buffer_load_dwordx4 v[{WQB+4*t}:{WQB+4*t+3}], v13, s[48:51], s57 offen {'nt' if wnt & 1 else ''}")
        A("s_add_u32 s57, s57, 0x2000")
    A("s_mov_b32 s57, s56")
    if kfirst:
        early = 2
        tstep()
    else:
        for t in range(early):
            issue('k', t, "s57")
            tstep()
    A("s_mov_b32 s60, 0x05040100")
    A("s_mov_b32 s61, 0x07060302")
    for k in range(8):
        A(f"v_mov_b32 v{ACC+k}, 0")
    A("v_lshlrev_b32 v12, 5, v10")
    A("v_lshl_add_u32 v12, v9, 3, v12")
    A("s_lshl_b32 s58, s3, 7")
    A("v_add_u32 v12, s58, v12")
    if kfirst:
        A("s_waitcnt vmcnt(9)")
        if ptile: A(f"s_memrealtime s[82:83]")
        issue('k', 1, "s57")
        tstep()
    matvec_pairs(4, WQB, XR, 8 if kfirst else 8*early)
    A("s_mov_b32 s62, 0x000f000f")
    A("s_mov_b32 s63, 0x000f000f")
    A("s_mov_b64 exec, s[62:63]")
    A(f"ds_write_b64 v12, v[{ACC}:{ACC+1}] offset:{L_QP}")
    A("s_mov_b64 exec, -1")
    A("s_waitcnt lgkmcnt(0)")
    A("s_barrier")
    stamp(7)
    for t in range(early, NPRE):
        if t >= PFI:
            A(f"s_waitcnt vmcnt({8*(PFI-1)})")
        if ptile: A(f"s_memrealtime s[{80+2*t}:{81+2*t}]")
        issue('k', t, "s57")
        tstep()
        if t == early:
            A("v_bfe_u32 v12, v1, 3, 1")
            A("v_lshlrev_b32 v13, 2, v12")
            A("v_add_u32 v13, v13, v9")
            A("v_lshlrev_b32 v12, 9, v12")
            A("v_lshl_add_u32 v12, v9, 6, v12")
            A("v_lshl_add_u32 v12, v10, 4, v12")
            A("s_lshl_b32 s58, s3, 12")
            A(f"s_add_u32 s58, s58, {L_S}")
            A("v_lshlrev_b32 v13, 4, v13")
            A("v_add_u32 v13, s58, v13")
            make_masks(56, 57)
            A("v_mov_b32 v14, 0xff800000")
            A("v_mov_b32 v15, 0")
            for r in range(8):
                A(f"v_mov_b32 v{24+r}, 0")
            A(f"s_mov_b32 s59, {f2u(C_SCALE):#x}")
    stamp(1)
    A("s_barrier")
    A(f"ds_read_b128 v[16:19], v12 offset:{L_Q}")
    A(f"ds_read_b128 v[20:23], v12 offset:{L_Q+256}")
    stamp(2)
    A("s_waitcnt lgkmcnt(0)")

    def kproc(sl, soff, mid=None, dyn=False, ng=4):
        for r in range(ng):
            d = 32 + 4*r
            a0 = slot(sl, 2*r); a1 = slot(sl, 2*r+1)
            A(f"v_mfma_f32_16x16x32_bf16 v[{d}:{d+3}], v[{a0}:{a0+3}], v[16:19], 0")
            A(f"v_mfma_f32_16x16x32_bf16 v[{d}:{d+3}], v[{a1}:{a1+3}], v[20:23], v[{d}:{d+3}]")
        if mid: mid()
        else: A(f"s_nop {1 if ng == 4 else 5}")
        for r in range(ng):
            d = 32 + 4*r
            s = 48 + r
            if r == 3: pass
            A(f"v_mov_b32_dpp v{s}, v{d} quad_perm:[0,0,0,0] {DPP}")
            A(f"v_add_f32_dpp v{s}, v{d+1}, v{s} quad_perm:[1,1,1,1] {DPP}")
            A(f"v_add_f32_dpp v{s}, v{d+2}, v{s} quad_perm:[2,2,2,2] {DPP}")
            A(f"v_add_f32_dpp v{s}, v{d+3}, v{s} quad_perm:[3,3,3,3] {DPP}")
            A(f"v_cvt_pk_bf16_f32 v{s}, 0, v{s}")
        if dyn:
            return
        A("v_max3_f32 v14, v14, v48, v49")
        A("v_max3_f32 v14, v14, v50, v51")
        A(f"ds_write_b128 v13, v[48:51] offset:{soff}")

    assert one or (NPRE % 2 == 0 and NPRE >= 2)
    for t in range(NPRE):
        later = (NPRE - 1 - t) + min(t, DEP)
        A(f"s_waitcnt vmcnt({min(63, 8*later)})")
        if t < DEP:
            def mid0():
                issue('k', t, "s57")
                tstep()
            kproc(t, t*128, mid0)
        else:
            kproc(t, t*128)
    A(f"v_add_u32 v13, {NPRE*128}, v13")
    if one:
        A(f"s_mov_b32 s58, {NS - NPRE - 1}")
        LB("L_kloop")
        A("s_waitcnt vmcnt(0)")
        kproc(0, 0)
        issue('k', 0, "s57")
        tstep()
        A("v_add_u32 v13, 128, v13")
        A("s_sub_u32 s58, s58, 1")
        A("s_cmp_lg_u32 s58, 0")
        A("s_cbranch_scc1 L_kloop")
        A("s_waitcnt vmcnt(0)")
        kproc(0, 0)
        A("s_mov_b32 s57, s56")
        issue('v', 0, "s57")
        tstep()
    else:
        NLOOP = (NS - NPRE - 2)//2
        A(f"s_mov_b32 s58, {NLOOP}")
        assert DEP == 1 or late >= 1
        def kstep(sl, soff, nxt):
            A(f"s_waitcnt vmcnt({8*(DEP-1)})")
            if late == 0:
                nxt()
                kproc(sl, soff)
            elif late == 1:
                kproc(sl, soff, nxt)
            else:
                kproc(sl, soff)
                if kw8: A("s_waitcnt lgkmcnt(0)")
                for i in range(kth): A("s_nop 15")
                nxt()
        def nk(sl):
            def f():
                issue('k', sl, "s57")
                tstep()
            return f
        LB("L_kloop")
        kstep(0, 0, nk(2-DEP))
        kstep(1, 128, nk(DEP-1))
        A("v_add_u32 v13, 256, v13")
        A("s_sub_u32 s58, s58, 1")
        A("s_cmp_lg_u32 s58, 0")
        A("s_cbranch_scc1 L_kloop")
        def nv0():
            A("s_mov_b32 s57, s56")
            issue('v', 0, "s57")
            tstep()
        def nv1():
            issue('v', 1, "s57")
            tstep()
        if DEP == 1:
            kstep(0, 0, nk(1))
            kstep(1, 128, nv0)
        else:
            kstep(0, 0, nv0)
            kstep(1, 128, nv1)
    stamp(3)
    A(f"v_subrev_u32 v13, {(NS-(1 if one else 2))*128}, v13")
    A("v_mov_b32 v10, v14")
    A("s_nop 1")
    A("v_permlane32_swap_b32 v10, v14")
    A("s_nop 1")
    A("v_max_f32 v14, v10, v14")
    A("v_mov_b32 v10, v14")
    A("s_nop 1")
    A("v_permlane16_swap_b32 v10, v14")
    A("s_nop 1")
    A("v_max_f32 v14, v10, v14")
    A("v_mul_f32 v11, s59, v14")
    if not one:
        A("s_waitcnt lgkmcnt(0)")
        A("ds_read_b128 v[48:51], v13")
    def pprep(sc, ng=4):
        for r in range(ng):
            A(f"v_fma_f32 v{sc+r}, v{sc+r}, s59, -v11")
        for r in range(ng):
            A(f"v_exp_f32 v{sc+r}, v{sc+r}")
        A("s_nop 0")
        A(f"v_add_f32 v56, v{sc}, v{sc+1}")
        if ng == 4: A(f"v_add_f32 v57, v{sc+2}, v{sc+3}")
        for r in range(ng):
            A(f"v_cvt_pk_bf16_f32 v{sc+r}, v{sc+r}, v{sc+r}")
        if ng == 4: A("v_add_f32 v56, v56, v57")
        A("v_add_f32 v15, v15, v56")
        for r in range(ng):
            for k in range(4):
                A(f"v_and_b32 v{32+4*r+k}, v{sc+r}, v{4+k}")
    def pv(sl, ng=4):
        for r in range(ng):
            a = 32 + 4*r
            b0 = slot(sl, 2*r); b1 = slot(sl, 2*r+1)
            A(f"v_mfma_f32_16x16x32_bf16 v[24:27], v[{a}:{a+3}], v[{b0}:{b0+3}], v[24:27]")
            A(f"v_mfma_f32_16x16x32_bf16 v[28:31], v[{a}:{a+3}], v[{b1}:{b1+3}], v[28:31]")
    def vstep(sl, snext_off, nxt, pre=None):
        sc = 48 + 4*sl
        sn = 48 + 4*(1-sl)
        if late >= 3:
            cur_off = (snext_off - 128) if snext_off is not None else 128
            A("s_waitcnt vmcnt(0)")
            if late == 3:
                A(f"ds_read_b128 v[{sc}:{sc+3}], v13 offset:{cur_off}")
            A("s_waitcnt lgkmcnt(0)")
            if late == 4 and snext_off is not None:
                A(f"ds_read_b128 v[{sn}:{sn+3}], v13 offset:{snext_off}")
            if pre: pre()
            pprep(sc)
            A("s_nop 1")
            pv(sl)
            for i in range(vth): A("s_nop 15")
            if nxt: nxt()
            return
        A("s_waitcnt lgkmcnt(0)")
        if snext_off is not None:
            A(f"ds_read_b128 v[{sn}:{sn+3}], v13 offset:{snext_off}")
        if pre: pre()
        pprep(sc)
        A(f"s_waitcnt vmcnt({8*(DEP-1)})")
        if nxt and late == 0: nxt()
        else: A("s_nop 0")
        pv(sl)
        if nxt and late >= 1: nxt()
    def nv(sl):
        def f():
            issue('v', sl, "s57")
            tstep()
        return f
    def req_ticket():
        A("v_mov_b32 v58, 0")
        A("v_mov_b32 v59, 1")
        A("s_mov_b64 exec, 1")
        A(f"ds_add_rtn_u32 v59, v58, v59 offset:{L_CNT}")
        A("s_mov_b64 exec, -1")
    NWIN = (32-NS)*16
    NBIG = NWIN - NSM
    NTK = NBIG + 2*NSM
    def v1step(off, nxt, post=None):
        A(f"ds_read_b128 v[48:51], v13 offset:{off}")
        A("s_waitcnt vmcnt(0) lgkmcnt(0)")
        pprep(48)
        A("s_nop 1")
        pv(0)
        if post: post()
        if nxt: nxt()
    assert NS < 32 and one and (NSM == 0 or bm.startswith('iikkww'))
    A(f"s_mov_b32 s58, {NS-2}")
    LB("L_vloop")
    v1step(0, nv(0))
    A("v_add_u32 v13, 128, v13")
    A("s_sub_u32 s58, s58, 1")
    A("s_cmp_lg_u32 s58, 0")
    A("s_cbranch_scc1 L_vloop")
    v1step(0, nv(0), req_ticket)
    if NSM:
        A("v_lshrrev_b32 v61, 2, v8")
        A("v_lshlrev_b32 v61, 10, v61")
        A("v_sub_u32 v61, v2, v61")
        A("v_lshlrev_b32 v62, 10, v9")
        A("v_sub_u32 v62, v3, v62")
    v1step(128, None)
    stamp(1)
    if True:
        LB("L_next")
        A("s_waitcnt lgkmcnt(0)")
        A("v_readfirstlane_b32 s76, v59")
        A(f"s_mov_b32 s79, {spin_max}")
        A("s_andn2_b32 s77, s76, 3")
        A("v_mov_b32 v58, s77")
        LB("L_win")
        A(f"ds_read_b32 v60, v58 offset:{L_WIN}")
        A("s_waitcnt lgkmcnt(0)")
        A("v_readfirstlane_b32 s77, v60")
        A("s_cmp_lg_u32 s77, -1")
        A("s_cbranch_scc1 L_win_ok")
        A("s_sleep 1")
        A("s_sub_u32 s79, s79, 1")
        A("s_cmp_lg_u32 s79, 0")
        A("s_cbranch_scc1 L_win")
        LB("L_win_ok")
        A(f"s_cmp_ge_u32 s77, {NTK}")
        A("s_cbranch_scc1 L_dyn_done")
        A("s_and_b32 s76, s76, 3")
        if NSM:
            A(f"s_cmp_ge_u32 s77, {NBIG}")
            A("s_cbranch_scc1 L_small")
        def winaddr(src):
            A("s_lshl_b32 s78, s28, 24")
            deposit(78, src, 0, sorted(pos['r'] + pos['x']), 79)
            A(f"s_add_u32 s{src}, s{src}, {NS*16}")
            deposit(78, src, 4, pos['t'], 79)
        winaddr(77)
        deposit(78, 76, 0, pos['w'], 79)
        issue('k', 2, "s78")
        issue('v', 3, "s78")
        A("s_mov_b32 s73, 0")
        A("s_waitcnt vmcnt(8)")
        req_ticket()
        kproc(2, 0, None, True)
        A("v_max3_f32 v10, v48, v49, v50")
        A("v_max_f32 v10, v10, v51")
        A("v_cmp_gt_f32 vcc, v10, v14")
        A("s_cbranch_vccnz L_rare")
        LB("L_back")
        pprep(48)
        A("s_waitcnt vmcnt(0)")
        pv(3)
        A("s_branch L_next")
        if NSM:
            LB("L_small")
            A(f"s_add_u32 s77, s77, {NBIG}")
            A("s_and_b32 s79, s77, 1")
            A("s_lshl_b32 s79, s79, 2")
            A("s_add_u32 s76, s76, s79")
            A("s_lshr_b32 s77, s77, 1")
            winaddr(77)
            A("s_lshl_b32 s76, s76, 12")
            A("s_add_u32 s78, s78, s76")
            issue('k', 2, "s78", True)
            issue('v', 3, "s78", True)
            A("s_mov_b32 s73, 1")
            if smreq == 0: req_ticket()
            A("s_waitcnt vmcnt(4)")
            if smreq == 1: req_ticket()
            kproc(2, 0, None, True, 2)
            A("v_max_f32 v10, v48, v49")
            A("v_cmp_gt_f32 vcc, v10, v14")
            A("s_cbranch_vccnz L_rare")
            LB("L_back_sm")
            pprep(48, 2)
            A("s_waitcnt vmcnt(0)")
            A("s_nop 0")
            pv(3, 2)
            A("s_branch L_next")
        LB("L_rare")
        A("v_max_f32 v10, v10, v14")
        A("v_mov_b32 v56, v10")
        A("s_nop 1")
        A("v_permlane32_swap_b32 v56, v10")
        A("s_nop 1")
        A("v_max_f32 v10, v10, v56")
        A("v_mov_b32 v56, v10")
        A("s_nop 1")
        A("v_permlane16_swap_b32 v56, v10")
        A("s_nop 1")
        A("v_max_f32 v10, v10, v56")
        A("v_sub_f32 v56, v14, v10")
        A("v_mul_f32 v56, s59, v56")
        A("v_exp_f32 v56, v56")
        A("v_mov_b32 v14, v10")
        A("v_mul_f32 v11, s59, v10")
        A("v_mul_f32 v15, v15, v56")
        A("v_readlane_b32 s60, v56, 0")
        A("v_readlane_b32 s61, v56, 8")
        A("s_mov_b32 s62, 0")
        A("s_mov_b32 s63, -1")
        A("v_mov_b32 v57, s60")
        A("s_mov_b64 exec, s[62:63]")
        A("v_mov_b32 v57, s61")
        A("s_mov_b64 exec, -1")
        for r in range(8):
            A(f"v_mul_f32 v{24+r}, v57, v{24+r}")
        if NSM:
            A("s_cmp_lg_u32 s73, 0")
            A("s_cbranch_scc1 L_back_sm")
        A("s_branch L_back")
        LB("L_dyn_done")
    A("v_mov_b32 v10, v15")
    A("v_lshrrev_b32 v12, 1, v9")
    A("v_lshlrev_b32 v12, 10, v12")
    A("v_permlane32_swap_b32 v10, v15")
    A("v_lshl_add_u32 v12, v8, 5, v12")
    A("v_add_f32 v15, v10, v15")
    A("v_mov_b32 v10, v15")
    A("v_and_b32 v13, 1, v9")
    A("v_lshl_add_u32 v12, v13, 4, v12")
    A("v_permlane16_swap_b32 v10, v15")
    A("s_lshl_b32 s58, s3, 11")
    A("v_add_u32 v12, s58, v12")
    A("v_add_f32 v15, v10, v15")
    A("s_lshl_b32 s58, s3, 4")
    A("v_and_b32 v13, 8, v1")
    A("v_add_u32 v13, s58, v13")
    A(f"ds_write_b128 v12, v[24:27] offset:{L_O}")
    A(f"ds_write_b128 v12, v[28:31] offset:{L_O+512}")
    A("s_mov_b64 exec, 0x101")
    A(f"ds_write_b64 v13, v[14:15] offset:{L_ML}")
    A("s_mov_b64 exec, -1")
    stamp(4)
    A("s_waitcnt lgkmcnt(0)")
    A("s_barrier")
    A("s_cmp_lg_u32 s3, 0")
    A("s_cbranch_scc1 L_fin")
    A("s_cmp_ge_u32 s31, 28")
    A("s_cbranch_scc1 L_fin")
    srd(44, 22, 23, 1792)
    A("v_lshrrev_b32 v10, 2, v1")
    A(f"v_mul_u32_u24 v10, {OB2S}, v10")
    A("v_and_b32 v11, 3, v1")
    A("v_lshl_add_u32 v10, v11, 4, v10")
    A(f"s_mul_i32 s58, s30, {128*OB2S}")
    A("s_lshl_b32 s61, s31, 6")
    A("s_add_u32 s58, s58, s61")
    A(f"s_add_u32 s58, s58, {OB2}")
    A(f"s_mov_b32 s60, {spin_max}")
    for t in range(8):
        A(f"s_mov_b64 s[{64+2*t}:{65+2*t}], -1")
    if pp2:
        for k in range(32):
            A(f"v_mov_b32 v{96+k}, -1")
        for t in range(8):
            A(f"s_add_u32 s{48+t}, s58, {t*16*OB2S}")
        A("s_barrier")
        LB("L_poll2")
        for t in range(8):
            A(f"s_mov_b64 exec, s[{64+2*t}:{65+2*t}]")
            A(f"s_cbranch_execz L_p2s{t}")
            A(f"buffer_load_dwordx4 v[{96+4*t}:{99+4*t}], v10, s[40:43], s{48+t} offen sc1")
            LB(f"L_p2s{t}")
        A(f"s_waitcnt vmcnt({pp2})")
        A("s_mov_b64 s[62:63], 0")
        for t in range(8):
            A(f"s_mov_b64 exec, s[{64+2*t}:{65+2*t}]")
            A(f"s_cbranch_execz L_p2c{t}")
            for k in range(4):
                A(f"v_mov_b32 v{64+4*t+k}, v{96+4*t+k}")
            A(f"v_max3_u32 v12, v{64+4*t}, v{65+4*t}, v{66+4*t}")
            A(f"v_max_u32 v12, v12, v{67+4*t}")
            A(f"v_cmp_eq_u32 s[{64+2*t}:{65+2*t}], -1, v12")
            A(f"s_or_b64 s[62:63], s[62:63], s[{64+2*t}:{65+2*t}]")
            LB(f"L_p2c{t}")
        A("s_mov_b64 exec, -1")
        A("s_cmp_eq_u64 s[62:63], 0")
        A("s_cbranch_scc1 L_poll2_done")
        A("s_sleep 1")
        A("s_sub_u32 s60, s60, 1")
        A("s_cmp_lg_u32 s60, 0")
        A("s_cbranch_scc1 L_poll2")
    else:
        A("s_barrier")
        LB("L_poll2")
        for t in range(8):
            A(f"s_mov_b64 exec, s[{64+2*t}:{65+2*t}]")
            A(f"s_cbranch_execz L_p2s{t}")
            A(f"s_add_u32 s61, s58, {t*16*OB2S}")
            A(f"buffer_load_dwordx4 v[{64+4*t}:{67+4*t}], v10, s[40:43], s61 offen sc1")
            LB(f"L_p2s{t}")
        A("s_mov_b64 exec, -1")
        A("s_waitcnt vmcnt(0)")
        for t in range(8):
            A(f"v_max3_u32 v{12+(t&1)}, v{64+4*t}, v{65+4*t}, v{66+4*t}")
            A(f"v_max_u32 v{12+(t&1)}, v{12+(t&1)}, v{67+4*t}")
            A(f"v_cmp_eq_u32 s[{64+2*t}:{65+2*t}], -1, v{12+(t&1)}")
        A("s_or_b64 s[62:63], s[64:65], s[66:67]")
        for t in range(2, 8):
            A(f"s_or_b64 s[62:63], s[62:63], s[{64+2*t}:{65+2*t}]")
        A("s_cbranch_scc0 L_poll2_done")
        A(f"s_sleep {sl2}")
        A("s_sub_u32 s60, s60, 1")
        A("s_cmp_lg_u32 s60, 0")
        A("s_cbranch_scc1 L_poll2")
    LB("L_poll2_done")
    stamp(5)
    for step in (16, 8, 4):
        for k in range(step):
            A(f"v_add_f32 v{64+k}, v{64+k}, v{64+step+k}")
    A("s_nop 1")
    A("v_permlane32_swap_b32 v64, v66")
    A("v_permlane32_swap_b32 v65, v67")
    A("s_nop 1")
    A("v_add_f32 v64, v64, v66")
    A("v_add_f32 v65, v65, v67")
    A("v_mov_b32 v66, v64")
    A("v_mov_b32 v67, v65")
    A("s_nop 1")
    A("v_permlane16_swap_b32 v66, v64")
    A("v_permlane16_swap_b32 v67, v65")
    A("s_nop 1")
    A("v_add_f32 v64, v64, v66")
    A("v_add_f32 v65, v65, v67")
    A("s_nop 1")
    A(f"v_add_f32_dpp v64, v64, v64 row_ror:8 {DPP}")
    A(f"v_add_f32_dpp v65, v65, v65 row_ror:8 {DPP}")
    A("s_nop 1")
    A(f"v_add_f32_dpp v64, v64, v64 row_ror:4 {DPP}")
    A(f"v_add_f32_dpp v65, v65, v65 row_ror:4 {DPP}")
    A("v_lshrrev_b32 v12, 5, v1")
    A("v_lshlrev_b32 v12, 2, v12")
    A("v_lshl_add_u32 v12, v11, 3, v12")
    A("v_cvt_pk_bf16_f32 v64, v64, v65")
    A("s_mul_i32 s58, s30, 896")
    A("s_lshl_b32 s61, s31, 5")
    A("s_add_u32 s58, s58, s61")
    A("s_mov_b32 s60, 15")
    A("s_mov_b32 s61, 15")
    if tfix:
        if tfix == 150:
            A("s_getreg_b32 s98, hwreg(HW_REG_XCC_ID)")
            A("s_and_b32 s98, s98, 7")
            A("s_and_b32 s99, s2, 7")
            A("s_cmp_eq_u32 s98, s99")
            A("s_cbranch_scc1 L_tfix_skip")
        if tfix == 160:
            A("s_or_b32 s98, s6, s8")
            A("s_and_b32 s98, s98, 0x1fffff")
            A("s_cmp_eq_u32 s98, 0")
            A("s_cbranch_scc1 L_tfix_skip")
        LB("L_tfix")
        A("s_memrealtime s[98:99]")
        A("s_waitcnt lgkmcnt(0)")
        A("s_sub_u32 s98, s98, s96")
        A(f"s_cmp_lt_u32 s98, {tfix*100}")
        A("s_cbranch_scc1 L_tfix")
        LB("L_tfix_skip")
    A("s_mov_b64 exec, s[60:61]")
    A("buffer_store_dword v64, v12, s[44:47], s58 offen")
    A("s_mov_b64 exec, -1")
    stamp(6)
    if prof == 2: dump_dbg([(6,4)])
    LB("L_fin")
    dump_stamps("stream")
    A("s_endpgm")

    LB("L_service")
    stamp('service')
    A("s_mul_i32 s60, s30, 896")
    A("s_add_u32 s44, s4, s60")
    A("s_addc_u32 s45, s5, 0")
    A("s_mov_b32 s46, 896")
    A("s_mov_b32 s47, 0x00020000")
    A("s_mov_b32 s51, 0x00020000")
    for k in range(4):
        A(f"v_mov_b32 v{48+k}, -1")
    A("v_lshlrev_b32 v14, 4, v1")
    A(f"s_mul_i32 s57, s2, {OB1S}")
    A(f"s_add_u32 s57, s57, {OB1}")
    A(f"s_mul_i32 s58, s2, {OB2S}")
    A(f"s_add_u32 s58, s58, {OB2}")
    if noclr: A("s_mov_b64 exec, 1")
    for k in range(2):
        A(f"buffer_store_dwordx4 v[48:51], v14, s[40:43], s57 offen offset:{1024*k} sc1")
    A("buffer_store_dwordx4 v[48:51], v14, s[40:43], s58 offen sc1")
    A("s_mov_b32 s60, -1")
    A("s_mov_b32 s61, 0xffff")
    if not noclr: A("s_mov_b64 exec, s[60:61]")
    A("buffer_store_dwordx4 v[48:51], v14, s[40:43], s58 offen offset:1024 sc1")
    A("s_mov_b64 exec, 0xffff")
    A("buffer_store_dwordx4 v[48:51], v14, s[40:43], s57 offen offset:2048 sc1")
    A("s_mov_b64 exec, -1")
    A("v_mov_b32 v15, 0")
    A(f"ds_write_b32 v15, v15 offset:{L_CNT}")
    A(f"ds_write_b128 v14, v[48:51] offset:{L_WIN}")
    A("s_cmp_lg_u32 s29, 0")
    A("s_cbranch_scc1 L_notinit")
    A("s_lshl_b32 s60, s28, 12")
    A(f"s_add_u32 s60, s60, {TICK}")
    A("s_mov_b64 exec, 1")
    A("buffer_store_dword v15, v15, s[40:43], s60 offen sc1")
    A("s_mov_b64 exec, -1")
    LB("L_notinit")
    A("s_mov_b32 s60, 0x05040100")
    A("s_mov_b32 s61, 0x07060302")
    A("s_mov_b32 s62, 0x000f000f")
    A("s_mov_b32 s63, 0x000f000f")
    stamp(1)
    A("s_waitcnt lgkmcnt(0)")
    A("s_barrier")
    for w in range(4):
        A(f"ds_read_b64 v[{16+2*w}:{17+2*w}], v12 offset:{L_QP+128*w}")
    A("s_waitcnt vmcnt(5)")
    A("v_add_u32 v72, 0x10000, v72")
    A("v_add_u32 v73, 0x10000, v73")
    A("v_and_b32 v72, 0xffff0000, v72")
    A("v_and_b32 v73, 0xffff0000, v73")
    A("s_waitcnt lgkmcnt(0)")
    A("v_add_f32 v16, v16, v18")
    A("v_add_f32 v17, v17, v19")
    A("v_add_f32 v20, v20, v22")
    A("v_add_f32 v21, v21, v23")
    A("v_add_f32 v16, v16, v20")
    A("v_add_f32 v17, v17, v21")
    A("v_cvt_pk_bf16_f32 v16, v16, 0")
    A("v_cvt_pk_bf16_f32 v17, v17, 0")
    A("v_or_b32 v72, v72, v16")
    A("v_or_b32 v73, v73, v17")
    A("s_mov_b64 exec, s[62:63]")
    A(f"buffer_store_dwordx2 v[72:73], v12, s[40:43], s59 offen offset:{QBOX} sc1")
    A("s_mov_b64 exec, -1")
    stamp(2)
    A("s_lshl_b32 s65, s30, 6")
    A("s_add_u32 s65, s65, 128")
    A("s_mov_b32 s68, 1")
    A("s_mov_b32 s59, 0")
    A("s_mov_b32 s66, 0x10000")
    if ackf:
        A("s_waitcnt vmcnt(0)")
        A("s_atomic_add s68, s[24:25], s65")
    LB("L_pollq")
    A(f"buffer_load_dwordx4 v[76:79], v10, s[40:43], s56 offen offset:{QBOX} sc1")
    A(f"buffer_load_dwordx4 v[80:83], v10, s[40:43], s56 offen offset:{QBOX+16} sc1")
    A("s_waitcnt vmcnt(0)")
    if not ackf:
        A("s_cmp_lg_u32 s59, 0")
        A("s_cbranch_scc1 L_pollq_arrived")
        A("s_atomic_add s68, s[24:25], s65")
        LB("L_pollq_arrived")
    for k in range(8):
        A(f"v_xor_b32 v{84+k}, v{64+k}, v{76+k}")
    A("v_min3_u32 v84, v84, v85, v86")
    A("v_min3_u32 v87, v87, v88, v89")
    A("v_min3_u32 v84, v84, v90, v91")
    A("v_min_u32 v84, v84, v87")
    A("v_cmp_gt_u32 vcc, s66, v84")
    A("s_cbranch_vccz L_pollq_done")
    A("s_mov_b64 exec, vcc")
    A("s_add_u32 s59, s59, 1")
    A(f"s_sleep {slq}")
    A(f"s_cmp_lt_u32 s59, {fbk}")
    A("s_cbranch_scc1 L_pollq")
    A("s_mov_b32 s70, 0")
    A("s_atomic_add s70, s[24:25], s65 glc")
    A("s_waitcnt lgkmcnt(0)")
    A("s_cmp_ge_u32 s70, 128")
    A("s_cselect_b32 s66, 0, s66")
    A(f"s_cmp_lt_u32 s59, {spin_max}")
    A("s_cbranch_scc1 L_pollq")
    LB("L_pollq_done")
    A("s_mov_b64 exec, -1")
    stamp(3)
    for k in range(4):
        A(f"v_perm_b32 v{48+k}, v{77+2*k}, v{76+2*k}, s60")
    A(f"ds_write_b128 v14, v[48:51] offset:{L_Q}")
    A("s_waitcnt lgkmcnt(0)")
    A("s_barrier")
    stamp(4)
    make_masks(56, 57)
    A("s_and_b32 s66, s69, 7")
    A("s_mul_i32 s66, s66, 14")
    A("s_lshr_b32 s67, s69, 3")
    A("s_add_u32 s66, s66, s67")
    A("s_cmp_lt_u32 s69, 112")
    A(f"s_cselect_b32 s59, {0 if nobg&1 else 448*1792*2}, 0")
    A("s_mov_b32 s48, s16"); A("s_mov_b32 s49, s17"); A("s_mov_b32 s50, s59")
    srd(32, 18, 19, "s59")
    srd(36, 20, 21, 896)
    A("v_lshrrev_b32 v10, 1, v1")
    A("v_and_b32 v11, 1, v1")
    A("v_mul_u32_u24 v12, 28, v10")
    A(f"v_mul_u32_u24 v13, {14*3584}, v10")
    A("v_lshl_add_u32 v13, v11, 4, v13")
    A(f"buffer_load_dwordx4 v[{XR}:{XR+3}], v12, s[44:47], 0 offen")
    A(f"buffer_load_dwordx3 v[{XR+4}:{XR+6}], v12, s[44:47], 0 offen offset:16")
    A("buffer_load_dwordx4 v[40:43], v14, s[44:47], 0 offen")
    A("buffer_load_dwordx4 v[44:47], v14, s[36:39], 0 offen")
    A("s_lshl_b32 s56, s66, 5")
    cnt = [0]
    def thr():
        cnt[0] += 1
        if cnt[0] % SB == 0: A("s_waitcnt vmcnt(0)")
    for t in range(14):
        A(f"buffer_load_dwordx4 v[{64+4*t}:{67+4*t}], v13, s[48:51], s56 offen {'nt' if wnt & 2 else ''}")
        A("s_add_u32 s56, s56, 3584")
        thr()
    for k in range(8):
        A(f"v_mov_b32 v{ACC+k}, 0")
    matvec_pairs(7, 64, XR, 0)
    A("s_nop 1")
    for k in range(2):
        A(f"v_add_f32_dpp v{ACC+k}, v{ACC+k}, v{ACC+k} row_ror:2 {DPP}")
    A(f"s_mov_b32 s59, {f2u(-math.log2(math.e)):#x}")
    for k in range(2):
        A(f"v_cvt_pk_bf16_f32 v{ACC+k}, 0, v{ACC+k}")
    for k in range(2):
        A(f"v_mul_f32 v{ACC+2+k}, s59, v{ACC+k}")
    for k in range(2):
        A(f"v_exp_f32 v{ACC+2+k}, v{ACC+2+k}")
    A("s_nop 0")
    for k in range(2):
        A(f"v_add_f32 v{ACC+2+k}, 1.0, v{ACC+2+k}")
    for k in range(2):
        A(f"v_rcp_f32 v{ACC+2+k}, v{ACC+2+k}")
    A("s_nop 0")
    for k in range(2):
        A(f"v_mul_f32 v{ACC+k}, v{ACC+k}, v{ACC+2+k}")
    A("v_lshlrev_b32 v12, 5, v11")
    A("v_lshl_add_u32 v12, v9, 3, v12")
    A("s_mov_b32 s62, 0x00030003")
    A("s_mov_b32 s63, 0x00030003")
    A("s_mov_b64 exec, s[62:63]")
    A(f"ds_write_b64 v12, v[{ACC}:{ACC+1}] offset:{L_H}")
    A("s_mov_b64 exec, -1")
    A("v_lshlrev_b32 v12, 4, v9")
    A("s_waitcnt lgkmcnt(0)")
    A(f"ds_read_b128 v[{ACC}:{ACC+3}], v12 offset:{L_H}")
    for k in range(4):
        A(f"v_lshlrev_b32 v52, 16, v{40+k}")
        A(f"v_lshlrev_b32 v53, 16, v{44+k}")
        A(f"v_and_b32 v54, 0xffff0000, v{40+k}")
        A(f"v_and_b32 v55, 0xffff0000, v{44+k}")
        A("v_mul_f32 v52, v52, v53")
        A("v_mul_f32 v54, v54, v55")
        A("v_cvt_pk_bf16_f32 v52, 0, v52")
        A("v_cvt_pk_bf16_f32 v54, 0, v54")
        if k == 0:
            A("v_add_f32 v56, v52, v54")
        else:
            A("v_add_f32 v56, v56, v52")
            A("v_add_f32 v56, v56, v54")
    for rr in (8, 4, 2, 1):
        A("s_nop 1")
        A(f"v_add_f32_dpp v56, v56, v56 row_ror:{rr} {DPP}")
    A("v_mov_b32 v57, v56")
    A("s_nop 1")
    A("v_permlane32_swap_b32 v57, v56")
    A("s_nop 1")
    A("v_add_f32 v56, v56, v57")
    A("v_mov_b32 v57, v56")
    A("s_nop 1")
    A("v_permlane16_swap_b32 v57, v56")
    A("s_nop 1")
    A("v_add_f32 v56, v56, v57")
    A("v_cvt_pk_bf16_f32 v56, 0, v56")
    A("v_mul_f32 v56, s59, v56")
    A("v_exp_f32 v56, v56")
    A("s_nop 0")
    A("v_add_f32 v56, 1.0, v56")
    A("v_rcp_f32 v56, v56")
    A("s_nop 0")
    A("v_cvt_pk_bf16_f32 v2, 0, v56")
    A("v_sub_f32 v3, 1.0, v2")
    A("v_cvt_pk_bf16_f32 v3, 0, v3")
    A("s_waitcnt lgkmcnt(0) vmcnt(0)")
    for t in range(4):
        A(f"v_cvt_pk_bf16_f32 v{ACC+t}, v{ACC+t}, v{ACC+t}")
    for t in range(4):
        for k in range(4):
            A(f"v_and_b32 v{24+4*t+k}, v{ACC+t}, v{4+k}")
    def part_pollg():
        A(f"s_mov_b32 s56, {spin_max}")
        LB("L_pollg")
        A("s_mov_b32 s70, 0")
        A("s_atomic_add s70, s[24:25], s65 glc")
        A("s_waitcnt lgkmcnt(0)")
        A("s_cmp_ge_u32 s70, 128")
        A("s_cbranch_scc1 L_pollg_done")
        A("s_sleep 16")
        A("s_sub_u32 s56, s56, 1")
        A("s_cmp_lg_u32 s56, 0")
        A("s_cbranch_scc1 L_pollg")
        LB("L_pollg_done")
    srd(48, 12, 13, 0 if nobg&2 else 4096*448*2)
    A("v_mul_u32_u24 v18, 3584, v9")
    A("v_lshl_add_u32 v18, v8, 4, v18")
    A("v_mul_u32_u24 v19, 7168, v9")
    A("v_lshl_add_u32 v19, v8, 4, v19")
    A(f"s_mul_i32 s66, s66, {16*896}")
    A(f"s_mul_i32 s67, s31, {32*896}")
    A(f"s_add_u32 s68, s67, {4*896}")
    A(f"s_mov_b32 s59, {f2u(C_SCALE):#x}")
    A("v_lshlrev_b32 v10, 5, v1")
    A("v_lshrrev_b32 v11, 5, v1")
    A("v_lshlrev_b32 v11, 3, v11")
    A("v_lshrrev_b32 v15, 2, v1")
    A("v_mul_u32_u24 v15, 144, v15")
    A("v_and_b32 v12, 3, v1")
    A("v_lshl_add_u32 v15, v12, 5, v15")
    A(f"v_mul_u32_u24 v12, {OB1S}, v8")
    A("v_lshl_add_u32 v13, v9, 5, v12")
    A(f"s_mul_i32 s60, s28, {16*OB1S}")
    A("s_mul_i32 s61, s29, 144")
    A("s_add_u32 s60, s60, s61")
    A(f"s_add_u32 s60, s60, {OB1}")
    A("v_lshlrev_b32 v14, 5, v8")
    A("v_lshl_add_u32 v14, v9, 4, v14")
    part_pollg()
    def part_w():
        for t in range(4):
            for cb in range(4):
                b = 64 + 16*t + 4*cb
                A(f"buffer_load_dwordx4 v[{b}:{b+3}], v18, s[32:35], s66 offen offset:{t*896+cb*256} {'nt' if wnt & 2 else ''}")
                if not defer: thr()
        for t in range(8):
            for cb in range(4):
                b = 128 + 16*t + 4*cb
                A(f"buffer_load_dwordx4 v[{b}:{b+3}], v19, s[48:51], s{67 + (t>>2)} offen offset:{(t&3)*896+cb*256} {'nt' if wnt & 2 else ''}")
                if not defer: thr()
    def part_ffn2():
        A("s_waitcnt vmcnt(32)")
        for t in range(4):
            for cb in range(4):
                b = 64 + 16*t + 4*cb
                d = 40 + 4*cb
                c = "0" if t == 0 else f"v[{d}:{d+3}]"
                A(f"v_mfma_f32_16x16x32_bf16 v[{d}:{d+3}], v[{24+4*t}:{27+4*t}], v[{b}:{b+3}], {c}")
        A("s_nop 7")
        for k in range(16):
            A(f"v_mul_f32 v{40+k}, v3, v{40+k}")
    if not defer:
        part_w()
        part_ffn2()
    if NS < 32:
        A("s_lshl_b32 s74, s28, 12")
        A(f"s_add_u32 s74, s74, {TICK}")
        A("s_add_u32 s74, s26, s74")
        A("s_addc_u32 s75, s27, 0")
        A("s_mov_b32 s71, 0")
        A("s_mov_b32 s72, 0")
        A("s_mov_b32 s73, 0")
        A("v_mov_b32 v16, 0")
        A(f"s_mov_b32 s56, {spin_max*4}")
        LB("L_tk")
        A(f"ds_read_b32 v17, v16 offset:{L_CNT}")
        A("s_waitcnt lgkmcnt(0)")
        A("v_readfirstlane_b32 s70, v17")
        A("s_cmp_gt_u32 s70, s73")
        A("s_cbranch_scc1 L_tk_fetch")
        A(f"s_sleep {dsl}")
        A("s_sub_u32 s56, s56, 1")
        A("s_cmp_lg_u32 s56, 0")
        A("s_cbranch_scc1 L_tk")
        A("s_branch L_tk_done")
        LB("L_tk_fetch")
        A("s_mov_b32 s70, 1")
        A("s_atomic_add s70, s[74:75], 0 glc")
        A("v_mov_b32 v17, s71")
        A("s_waitcnt lgkmcnt(0)")
        A("v_mov_b32 v20, s70")
        A("s_add_u32 s71, s71, 4")
        A(f"s_sub_u32 s73, s71, {la}")
        A(f"ds_write_b32 v17, v20 offset:{L_WIN}")
        if defer:
            A(f"s_cmp_lt_u32 s70, {defer}")
            A("s_cbranch_scc1 L_tk")
            A("s_cmp_lg_u32 s72, 0")
            A("s_cbranch_scc1 L_tk_w")
            A("s_mov_b32 s72, 1")
            stamp(1)
            part_w()
            LB("L_tk_w")
        A(f"s_cmp_lt_u32 s70, {NTK - RET}")
        A("s_cbranch_scc1 L_tk")
        A("v_mov_b32 v17, s71")
        A("v_mov_b32 v20, 0x10000")
        A(f"ds_write_b32 v17, v20 offset:{L_WIN}")
        LB("L_tk_done")
    if defer:
        assert defer <= NTK - RET
        part_ffn2()
    A("s_waitcnt vmcnt(0) lgkmcnt(0)")
    if pp1:
        for k in range(8):
            A(f"v_mov_b32 v{120+k}, -1")
    if defer: stamp(2)
    A("s_barrier")
    stamp(5)
    if prof: A("s_waitcnt lgkmcnt(0)")
    for w in range(4):
        A(f"ds_read_b64 v[{56+2*w}:{57+2*w}], v11 offset:{L_ML+16*w}")
    for w in range(4):
        A(f"ds_read_b128 v[{64+8*w}:{67+8*w}], v10 offset:{L_O+2048*w}")
        A(f"ds_read_b128 v[{68+8*w}:{71+8*w}], v10 offset:{L_O+2048*w+16}")
    A("s_waitcnt lgkmcnt(8)")
    A("v_max3_f32 v16, v56, v58, v60")
    A("v_max_f32 v16, v16, v62")
    for w in range(4):
        A(f"v_sub_f32 v{56+2*w}, v{56+2*w}, v16")
    for w in range(4):
        A(f"v_mul_f32 v{56+2*w}, s59, v{56+2*w}")
    for w in range(4):
        A(f"v_exp_f32 v{56+2*w}, v{56+2*w}")
    A("s_nop 0")
    A("v_mul_f32 v17, v56, v57")
    for w in range(1, 4):
        A(f"v_fmac_f32 v17, v{56+2*w}, v{57+2*w}")
    A("s_waitcnt lgkmcnt(0)")
    for k in range(8):
        A(f"v_mul_f32 v{64+k}, v56, v{64+k}")
    for w in range(1, 4):
        for k in range(8):
            A(f"v_fmac_f32 v{64+k}, v{56+2*w}, v{64+8*w+k}")
    if pp1:
        A("v_mov_b32 v82, -1")
        A("v_mov_b32 v83, -1")
    A("buffer_store_dwordx4 v[64:67], v15, s[40:43], s57 offen sc1")
    A("buffer_store_dwordx4 v[68:71], v15, s[40:43], s57 offen offset:16 sc1")
    A("s_mov_b32 s62, 0x11111111")
    A("s_mov_b32 s63, 0x11111111")
    A("s_mov_b64 exec, s[62:63]")
    A("buffer_store_dwordx2 v[16:17], v15, s[40:43], s57 offen offset:128 sc1")
    A("s_mov_b64 exec, -1")
    A(f"s_mov_b32 s56, {spin_max}")
    if pp1:
        LB("L_poll1")
        A("buffer_load_dwordx4 v[120:123], v13, s[40:43], s60 offen sc1")
        A("buffer_load_dwordx4 v[124:127], v13, s[40:43], s60 offen offset:16 sc1")
        A("buffer_load_dwordx2 v[82:83], v12, s[40:43], s60 offen offset:128 sc1")
        A(f"s_waitcnt vmcnt({3*(pp1-1)})")
        for k in range(8):
            A(f"v_mov_b32 v{72+k}, v{120+k}")
        A("v_mov_b32 v80, v82")
        A("v_mov_b32 v81, v83")
        A("v_max3_u32 v18, v72, v73, v74")
        A("v_max3_u32 v19, v75, v76, v77")
        A("v_max3_u32 v18, v18, v78, v79")
        A("v_max3_u32 v19, v19, v80, v81")
        A("v_max_u32 v18, v18, v19")
        A("v_cmp_eq_u32 vcc, -1, v18")
        A("s_cbranch_vccz L_poll1_done")
        A("s_mov_b64 exec, vcc")
        A("s_bcnt1_i32_b64 s61, vcc")
        A("s_cmp_le_u32 s61, 12")
        A("s_cbranch_scc1 L_poll1_fast")
        A("s_waitcnt vmcnt(0)")
        A("s_sleep 8")
        LB("L_poll1_fast")
        A("s_sub_u32 s56, s56, 1")
        A("s_cmp_lg_u32 s56, 0")
        A("s_cbranch_scc1 L_poll1")
    else:
        LB("L_poll1")
        A("buffer_load_dwordx4 v[72:75], v13, s[40:43], s60 offen sc1")
        A("buffer_load_dwordx4 v[76:79], v13, s[40:43], s60 offen offset:16 sc1")
        A("buffer_load_dwordx2 v[80:81], v12, s[40:43], s60 offen offset:128 sc1")
        A("s_waitcnt vmcnt(0)")
        A("v_max3_u32 v18, v72, v73, v74")
        A("v_max3_u32 v19, v75, v76, v77")
        A("v_max3_u32 v18, v18, v78, v79")
        A("v_max3_u32 v19, v19, v80, v81")
        A("v_max_u32 v18, v18, v19")
        A("v_cmp_eq_u32 vcc, -1, v18")
        A("s_cbranch_vccz L_poll1_done")
        A("s_mov_b64 exec, vcc")
        if adapt:
            A("s_bcnt1_i32_b64 s61, vcc")
            A("s_cmp_le_u32 s61, 12")
            A("s_cbranch_scc1 L_poll1_fast")
            A("s_sleep 16")
            LB("L_poll1_fast")
            A("s_sleep 1")
        else:
            A(f"s_sleep {sl1}")
        A("s_sub_u32 s56, s56, 1")
        A("s_cmp_lg_u32 s56, 0")
        A("s_cbranch_scc1 L_poll1")
    LB("L_poll1_done")
    A("s_mov_b64 exec, -1")
    A("s_barrier")
    stamp(6)
    A(f"v_max_f32_dpp v18, v80, v80 row_ror:8 {DPP}")
    for rr in (4, 2, 1):
        A("s_nop 1")
        A(f"v_max_f32_dpp v18, v18, v18 row_ror:{rr} {DPP}")
    A("v_sub_f32 v18, v80, v18")
    A("v_mul_f32 v18, s59, v18")
    A("v_exp_f32 v18, v18")
    A("s_nop 0")
    A("v_mul_f32 v80, v18, v81")
    for k in range(8):
        A(f"v_mul_f32 v{72+k}, v18, v{72+k}")
    for rr in (8, 4, 2, 1):
        for k in range(9):
            A(f"v_add_f32_dpp v{72+k}, v{72+k}, v{72+k} row_ror:{rr} {DPP}")
    A("v_rcp_f32 v80, v80")
    A("s_nop 0")
    for k in range(8):
        A(f"v_mul_f32 v{72+k}, v80, v{72+k}")
    for k in range(8):
        A(f"v_cvt_pk_bf16_f32 v{72+k}, v{72+k}, v{72+k}")
    for t in range(8):
        for k in range(4):
            A(f"v_and_b32 v{88+4*t+k}, v{72+t}, v{4+k}")
        if t >= 1:
            tt = t - 1
            for cb in range(4):
                b = 128 + 16*tt + 4*cb
                d = 16 + 4*cb
                c = "0" if tt == 0 else f"v[{d}:{d+3}]"
                A(f"v_mfma_f32_16x16x32_bf16 v[{d}:{d+3}], v[{88+4*tt}:{91+4*tt}], v[{b}:{b+3}], {c}")
    tt = 7
    for cb in range(4):
        b = 128 + 16*tt + 4*cb
        d = 16 + 4*cb
        A(f"v_mfma_f32_16x16x32_bf16 v[{d}:{d+3}], v[{88+4*tt}:{91+4*tt}], v[{b}:{b+3}], v[{d}:{d+3}]")
    A("s_mov_b32 s62, -1")
    A("s_mov_b32 s63, 0")
    A("s_nop 3")
    for cb in range(4):
        for k in range(4):
            A(f"v_fmac_f32 v{40+4*cb+k}, v2, v{16+4*cb+k}")
        if cb == 0:
            A("s_mov_b64 exec, s[62:63]")
        if cb == 3:
            A("s_mov_b32 s62, 0x00ff00ff")
            A("s_mov_b64 exec, s[62:63]")
        A(f"buffer_store_dwordx4 v[{40+4*cb}:{43+4*cb}], v14, s[40:43], s58 offen offset:{512*cb} sc1")
    A("s_mov_b64 exec, -1")
    stamp(7)
    dump_stamps("service")
    LB("L_end")
    A("s_endpgm")
    L.append('.section .rodata,"a"')
    L.append(".p2align 6")
    L.append(f".amdhsa_kernel {NAME}_kernel")
    L.append("  .amdhsa_next_free_vgpr 256")
    L.append("  .amdhsa_next_free_sgpr 100")
    L.append("  .amdhsa_accum_offset 256")
    L.append("  .amdhsa_group_segment_fixed_size 0")
    L.append("  .amdhsa_kernarg_size 96")
    L.append("  .amdhsa_user_sgpr_count 2")
    L.append("  .amdhsa_user_sgpr_kernarg_segment_ptr 1")
    L.append("  .amdhsa_system_sgpr_workgroup_id_x 1")
    L.append(".end_amdhsa_kernel")
    return "\n".join(L) + "\n"


if __name__ == "__main__":
    out = sys.argv[1]
    kw = {}
    for a in sys.argv[2:]:
        k, v = a.split("=")
        kw[k] = int(v) if (v.isdigit() and k != 'gx') else v
    open(out, "w").write(gen(**kw))
```

```python
import sys, math

NAME = "gated_mix__gqa_block_cached__dense_activation_silu__decode"
HEADER = open("cdna_kernels/" + NAME + ".s.ref").read().split("; Override launch")[0]

QBOX = 0x0
TICK = 0x10000
OB1 = 0x40000
OB1S = 2304
OB2 = 0x200000
OB2S = 1792
STAMP = 0x20000000
L_Q = 0
L_S = 1024
L_O = L_S + 16384
L_ML = L_O + 8192
L_H = L_ML + 64
L_QP = L_H + 64
L_CNT = L_QP + 512
L_WIN = L_CNT + 64
LDS_BYTES = L_WIN + 1024

C_SCALE = (1.0 / 16.0) * math.log2(math.e)
import struct
def f2u(x): return struct.unpack("<I", struct.pack("<f", x))[0]


def gen(prof=0, NPRE=6, PFI=1, early=1, spin_max=200000, sl1=4, sl2=2, slq=1, fbk=4, late=4, NS=27, fl=0, bm='iikkwwrtttttxxx', DEP=1, kw8=0, SB=8, nobg=0, nowq=0, noclr=0, ptile=0, flv=-1, qx=0, ackf=1, kfirst=0, vth=0, kth=0, defer=0, dsl=2, jit=0, la=0, adapt=1, tfix=0, one=1, NSM=0, RET=8, smreq=0, gx='', pp1=0, pp2=0, wnt=0, svc0=1):
    L = []
    A = lambda s: L.append("  " + s)
    LB = lambda s: L.append(s + ":")
    nstamp = [0]

    def stamp(k, svc=[False]):
        if k == 'service':
            svc[0] = True
            return
        if ptile and not svc[0] and k not in (0, 7, 2):
            return
        if ptile and not svc[0] and k == 2:
            k = 6
        if prof:
            A(f"s_memrealtime s[{80+2*k}:{81+2*k}]")

    def dump_dbg(pairs):
        A("s_waitcnt lgkmcnt(0)")
        srd(52, 24, 25, 256)
        A("v_mov_b32 v56, 0")
        for (k, sp) in pairs:
            A(f"s_not_b32 s56, s{80+2*k}")
            A(f"v_writelane_b32 v56, s56, {2*sp}")
            A(f"v_writelane_b32 v56, s{80+2*k}, {2*sp+1}")
        A("v_lshlrev_b32 v57, 2, v1")
        A("s_mov_b64 exec, 0xffff")
        A("buffer_atomic_umax v56, v57, s[52:55], 0 offen")
        A("s_mov_b64 exec, -1")

    def dump_stamps(kind=None):
        if not prof:
            return
        if prof == 2:
            dump_dbg({"stream": [(0,0),(2,1),(3,2),(4,3)], "service": [(2,5),(3,6),(6,7)]}[kind])
            return
        A("s_waitcnt lgkmcnt(0)")
        A("s_lshl_b32 s56, s2, 3")
        A("s_add_u32 s56, s56, s3")
        A("s_lshl_b32 s56, s56, 6")
        A(f"s_add_u32 s56, s56, {STAMP}")
        A("s_mov_b64 exec, 1")
        A("v_mov_b32 v60, 0")
        for q in range(4):
            for j in range(4):
                A(f"v_mov_b32 v{56+j}, s{80+4*q+j}")
            A(f"buffer_store_dwordx4 v[56:59], v60, s[40:43], s56 offen offset:{16*q}")
            A("s_nop 1")
        A("s_mov_b64 exec, -1")

    def srd(d, lo, hi, n):
        A(f"s_mov_b32 s{d}, s{lo}")
        A(f"s_mov_b32 s{d+1}, s{hi}")
        A(f"s_mov_b32 s{d+2}, {n}")
        A(f"s_mov_b32 s{d+3}, 0x00020000")

    DPP = "row_mask:0xf bank_mask:0xf"
    ACC = 16
    XR = 32
    def matvec_pairs(npairs, wbase, xbase, tail_ops):
        for u in range(npairs):
            A(f"s_waitcnt vmcnt({2*npairs - (2*u+2) + tail_ops})")
            w0 = wbase + 8*u; w1 = w0 + 4
            for k in range(4):
                A(f"v_perm_b32 v{52+k}, v{w1+k}, v{w0+k}, s60")
                A(f"v_perm_b32 v{56+k}, v{w1+k}, v{w0+k}, s61")
            for k in range(4):
                A(f"v_dot2c_f32_bf16 v{ACC+2*k}, v{52+k}, v{xbase+u}")
                A(f"v_dot2c_f32_bf16 v{ACC+2*k+1}, v{56+k}, v{xbase+u}")
        A("s_nop 3")
        for k in range(4):
            A(f"v_permlane32_swap_b32 v{ACC+k}, v{ACC+4+k}")
        A("s_nop 1")
        for k in range(4):
            A(f"v_add_f32 v{ACC+k}, v{ACC+k}, v{ACC+4+k}")
        A("s_nop 1")
        for k in range(2):
            A(f"v_permlane16_swap_b32 v{ACC+k}, v{ACC+2+k}")
        A("s_nop 1")
        for k in range(2):
            A(f"v_add_f32 v{ACC+k}, v{ACC+k}, v{ACC+2+k}")
        for rr in (8, 4):
            A("s_nop 1")
            for k in range(2):
                A(f"v_add_f32_dpp v{ACC+k}, v{ACC+k}, v{ACC+k} row_ror:{rr} {DPP}")
    def make_masks(t0, t1):
        A(f"v_and_b32 v{t0}, 1, v1")
        A(f"v_lshlrev_b32 v{t0}, 4, v{t0}")
        A(f"v_mov_b32 v{t1}, 0xffff")
        A(f"v_lshlrev_b32 v{t1}, v{t0}, v{t1}")
        A(f"v_bfe_u32 v{t0}, v1, 1, 2")
        for k in range(4):
            A(f"v_cmp_eq_u32 vcc, {k}, v{t0}")
            A("s_nop 1")
            A(f"v_cndmask_b32 v{4+k}, 0, v{t1}, vcc")
    L.append(HEADER.rstrip("\n"))
    L.append(f"; @launch grid=(256,1,1) block=(320,1,1) lds={LDS_BYTES}")
    L.append('.amdgcn_target "amdgcn-amd-amdhsa--gfx950"')
    L.append(".text")
    L.append(f".globl {NAME}_kernel")
    L.append(".p2align 8")
    L.append(f".type {NAME}_kernel,@function")
    LB(f"{NAME}_kernel")
    A("s_cmp_ge_u32 s2, 256")
    A("s_cbranch_scc1 L_end")
    A("s_load_dwordx2 s[44:45], s[0:1], 0")
    A("s_load_dwordx2 s[48:49], s[0:1], 24")
    A("s_load_dwordx2 s[32:33], s[0:1], 8")
    A("s_load_dwordx2 s[40:41], s[0:1], 88")
    A("s_load_dwordx2 s[36:37], s[0:1], 16")
    A("s_load_dwordx16 s[4:19], s[0:1], 0")
    A("s_load_dwordx8 s[20:27], s[0:1], 64")
    if prof:
        for k in range(8):
            A(f"s_mov_b64 s[{80+2*k}:{81+2*k}], 0")
    stamp(0)
    if tfix: A("s_memrealtime s[96:97]")
    A("v_lshrrev_b32 v2, 6, v0")
    A("v_and_b32 v1, 63, v0")
    A("v_readfirstlane_b32 s3, v2")
    if svc0:
        A("s_sub_u32 s3, s3, 1")
        A("s_min_u32 s3, s3, 4")
    NX = bm.count('x')
    A("s_and_b32 s63, s2, 127")
    if NX < 3:
        keep_hi = 0xff & ~((1 << (7 - NX)) - 1)
        nr = 4 - NX
        A(f"s_and_b32 s28, s2, {((1 << NX) - 1) | keep_hi:#x}")
        A(f"s_bfe_u32 s29, s2, {(nr << 16) | 3:#x}")
        A(f"s_lshl_b32 s29, s29, {NX}")
        A("s_or_b32 s28, s28, s29")
        A(f"s_bfe_u32 s29, s2, {((3 - NX) << 16) | NX:#x}")
        A("s_lshl_b32 s29, s29, 4")
        A("s_or_b32 s2, s28, s29")
    A("s_lshr_b32 s28, s2, 4")
    A("s_and_b32 s29, s2, 15")
    A("s_lshr_b32 s30, s2, 7")
    A("s_and_b32 s31, s2, 127")
    if qx:
        A("s_and_b32 s64, s31, 7")
        A("s_lshl_b32 s64, s64, 4")
        A("s_lshr_b32 s65, s31, 3")
        A("s_add_u32 s64, s64, s65")
    else:
        A(f"s_and_b32 s64, s29, {(1 << NX) - 1}")
        A(f"s_lshl_b32 s64, s64, {4 - NX}")
        A(f"s_lshr_b32 s65, s29, {NX}")
        A("s_add_u32 s64, s64, s65")
        A("s_andn2_b32 s65, s31, 15")
        A("s_add_u32 s64, s64, s65")
    A("v_and_b32 v8, 15, v1")
    A("v_lshrrev_b32 v9, 4, v1")
    A("s_mov_b32 s42, 0x40000000")
    A("s_mov_b32 s43, 0x00020000")
    A("s_cmp_lg_u32 s3, 4")
    A("s_cbranch_scc1 L_stream")
    A("v_lshlrev_b32 v10, 5, v1")
    A("s_lshl_b32 s56, s28, 11")
    A("v_and_b32 v11, 3, v1")
    A("v_lshlrev_b32 v12, 5, v11")
    A("v_lshl_add_u32 v12, v9, 3, v12")
    A("s_lshl_b32 s59, s30, 7")
    A("s_add_u32 s59, s59, s64")
    A("s_lshl_b32 s59, s59, 7")
    A("s_waitcnt lgkmcnt(0)")
    A(f"buffer_load_dwordx4 v[64:67], v10, s[40:43], s56 offen offset:{QBOX} sc1")
    A(f"buffer_load_dwordx4 v[68:71], v10, s[40:43], s56 offen offset:{QBOX+16} sc1")
    A(f"buffer_load_dwordx2 v[72:73], v12, s[40:43], s59 offen offset:{QBOX} sc1")
    A("s_mov_b32 s69, s63")
    A("s_branch L_service")
    LB("L_stream")

    A("s_mov_b32 s34, 0x10000000")
    A("s_mov_b32 s35, 0x00020000")
    A("s_mov_b32 s38, 0x10000000")
    A("s_mov_b32 s39, 0x00020000")
    assert len(bm) == 15 and bm.count('r') + NX == 4
    pos = {c: [9+i for i, ch in enumerate(bm) if ch == c] for c in 'ikwrxt'}
    def runs(positions):
        out = []
        for i, p in enumerate(positions):
            if out and out[-1][1] + out[-1][2] == p: out[-1][2] += 1
            else: out.append([i, p, 1])
        return out
    def deposit(dst, src, srcbit0, positions, tmp):
        for (sb, db, n) in runs(positions):
            A(f"s_bfe_u32 s{tmp}, s{src}, {(n << 16) | (sb + srcbit0):#x}")
            A(f"s_lshl_b32 s{tmp}, s{tmp}, {db}")
            A(f"s_or_b32 s{dst}, s{dst}, s{tmp}")
    A("s_lshl_b32 s56, s28, 24")
    deposit(56, 3, 0, pos['w'], 57)
    deposit(56, 29, 0, pos['x'], 57)
    deposit(56, 29, NX, pos['r'], 57)
    if gx:
        A("s_mov_b32 s71, 0")
        for it in gx.split('_'):
            gb, ab = int(it[0]), int(it[1:])
            A(f"s_bfe_u32 s57, s2, {(1 << 16) | (4 + gb):#x}")
            A(f"s_lshl_b32 s57, s57, {ab}")
            A("s_xor_b32 s71, s71, s57")
    TM = sum(1 << p for p in pos['t'])
    def tstep():
        if len(runs(pos['t'])) == 1:
            A(f"s_add_u32 s57, s57, {1 << pos['t'][0]:#x}")
        else:
            A(f"s_or_b32 s57, s57, {(~TM) & 0xffffffff:#x}")
            A(f"s_add_u32 s57, s57, {1 << pos['t'][0]:#x}")
            A(f"s_and_b32 s57, s57, {TM:#x}")
            A("s_or_b32 s57, s57, s56")
    def vdeposit(dst, src, tmp):
        if pos['k'][1] == pos['k'][0] + 1:
            A(f"v_lshlrev_b32 v{dst}, {pos['k'][0]}, v{src}")
        else:
            A(f"v_and_b32 v{tmp}, 1, v{src}")
            A(f"v_lshrrev_b32 v{dst}, 1, v{src}")
            A(f"v_lshlrev_b32 v{dst}, {pos['k'][1]}, v{dst}")
            A(f"v_lshl_add_u32 v{dst}, v{tmp}, {pos['k'][0]}, v{dst}")
    A("v_lshrrev_b32 v3, 2, v8")
    vdeposit(2, 3, 10)
    A("v_lshl_add_u32 v2, v9, 6, v2")
    vdeposit(3, 9, 10)
    A("v_lshl_add_u32 v3, v8, 4, v3")
    A("v_and_b32 v10, 3, v1")
    A("v_lshl_add_u32 v2, v10, 4, v2")
    SLOT0 = 64
    def slot(sl, i): return SLOT0 + 32*sl + 4*i
    def issue(kind, sl, sreg, small=False):
        srdn = "s[32:35]" if kind == 'k' else "s[36:39]"
        va = "v2" if kind == 'k' else "v3"
        if small: va = "v61" if kind == 'k' else "v62"
        flg = ['nt','sc1 nt','sc0 sc1 nt','sc0 nt','','sc1','sc0 sc1'][fl if (kind == 'k' or flv < 0) else flv]
        cur_hi = 0
        if gx:
            A(f"s_xor_b32 s70, {sreg}, s71")
            sreg = "s70"
        for i in range(4 if small else 8):
            b = slot(sl, i)
            r = i >> 1
            off = ((r & 1) << pos['i'][0]) + ((r >> 1) << pos['i'][1]) + (i & 1)*256
            hi = off & ~0xfff
            if hi and hi != cur_hi:
                A(f"s_add_u32 s69, {sreg}, {hi:#x}")
                cur_hi = hi
            A(f"buffer_load_dwordx4 v[{b}:{b+3}], {va}, {srdn}, {'s69' if hi else sreg} offen offset:{off & 0xfff} {flg}")
    assert not kfirst
    A("s_mul_i32 s58, s30, 896")
    A("s_mov_b32 s46, 1792")
    A("s_mov_b32 s47, 0x00020000")
    A(f"s_mov_b32 s50, {0 if nowq else 448*4096*2}")
    A("s_mov_b32 s51, 0x00020000")
    A("v_lshrrev_b32 v12, 2, v1")
    A("s_mul_i32 s57, s3, 14")
    A("v_cmp_gt_u32 vcc, 14, v12")
    A("v_add_u32 v12, s57, v12")
    A("v_mov_b32 v13, 0x4000")
    A("v_cndmask_b32 v12, v13, v12, vcc")
    A("v_lshlrev_b32 v13, 16, v12")
    A("v_lshl_add_u32 v13, v10, 4, v13")
    A("v_lshlrev_b32 v12, 4, v12")
    A("s_lshl_b32 s57, s64, 6")
    A("s_waitcnt lgkmcnt(0)")
    A(f"buffer_load_dwordx4 v[{XR}:{XR+3}], v12, s[44:47], s58 offen")
    WQB = slot(NPRE-1, 0)
    for t in range(8):
        A(f"buffer_load_dwordx4 v[{WQB+4*t}:{WQB+4*t+3}], v13, s[48:51], s57 offen {'nt' if wnt & 1 else ''}")
        A("s_add_u32 s57, s57, 0x2000")
    A("s_mov_b32 s57, s56")
    if kfirst:
        early = 2
        tstep()
    else:
        for t in range(early):
            issue('k', t, "s57")
            tstep()
    A("s_mov_b32 s60, 0x05040100")
    A("s_mov_b32 s61, 0x07060302")
    for k in range(8):
        A(f"v_mov_b32 v{ACC+k}, 0")
    A("v_lshlrev_b32 v12, 5, v10")
    A("v_lshl_add_u32 v12, v9, 3, v12")
    A("s_lshl_b32 s58, s3, 7")
    A("v_add_u32 v12, s58, v12")
    if kfirst:
        A("s_waitcnt vmcnt(9)")
        if ptile: A(f"s_memrealtime s[82:83]")
        issue('k', 1, "s57")
        tstep()
    matvec_pairs(4, WQB, XR, 8 if kfirst else 8*early)
    A("s_mov_b32 s62, 0x000f000f")
    A("s_mov_b32 s63, 0x000f000f")
    A("s_mov_b64 exec, s[62:63]")
    A(f"ds_write_b64 v12, v[{ACC}:{ACC+1}] offset:{L_QP}")
    A("s_mov_b64 exec, -1")
    A("s_waitcnt lgkmcnt(0)")
    A("s_barrier")
    stamp(7)
    for t in range(early, NPRE):
        if t >= PFI:
            A(f"s_waitcnt vmcnt({8*(PFI-1)})")
        if ptile: A(f"s_memrealtime s[{80+2*t}:{81+2*t}]")
        issue('k', t, "s57")
        tstep()
        if t == early:
            A("v_bfe_u32 v12, v1, 3, 1")
            A("v_lshlrev_b32 v13, 2, v12")
            A("v_add_u32 v13, v13, v9")
            A("v_lshlrev_b32 v12, 9, v12")
            A("v_lshl_add_u32 v12, v9, 6, v12")
            A("v_lshl_add_u32 v12, v10, 4, v12")
            A("s_lshl_b32 s58, s3, 12")
            A(f"s_add_u32 s58, s58, {L_S}")
            A("v_lshlrev_b32 v13, 4, v13")
            A("v_add_u32 v13, s58, v13")
            make_masks(56, 57)
            A("v_mov_b32 v14, 0xff800000")
            A("v_mov_b32 v15, 0")
            for r in range(8):
                A(f"v_mov_b32 v{24+r}, 0")
            A(f"s_mov_b32 s59, {f2u(C_SCALE):#x}")
    stamp(1)
    A("s_barrier")
    A(f"ds_read_b128 v[16:19], v12 offset:{L_Q}")
    A(f"ds_read_b128 v[20:23], v12 offset:{L_Q+256}")
    stamp(2)
    A("s_waitcnt lgkmcnt(0)")

    def kproc(sl, soff, mid=None, dyn=False, ng=4):
        for r in range(ng):
            d = 32 + 4*r
            a0 = slot(sl, 2*r); a1 = slot(sl, 2*r+1)
            A(f"v_mfma_f32_16x16x32_bf16 v[{d}:{d+3}], v[{a0}:{a0+3}], v[16:19], 0")
            A(f"v_mfma_f32_16x16x32_bf16 v[{d}:{d+3}], v[{a1}:{a1+3}], v[20:23], v[{d}:{d+3}]")
        if mid: mid()
        else: A(f"s_nop {4 if ng == 4 else 6}")
        for k in range(4):
            for r in range(ng):
                d = 32 + 4*r + k
                s_ = 48 + r
                if k == 0:
                    A(f"v_mov_b32_dpp v{s_}, v{d} quad_perm:[0,0,0,0] {DPP}")
                else:
                    A(f"v_add_f32_dpp v{s_}, v{d}, v{s_} quad_perm:[{k},{k},{k},{k}] {DPP}")
            if ng == 2 and k < 3: A("s_nop 0")
        for r in range(ng):
            A(f"v_cvt_pk_bf16_f32 v{48+r}, 0, v{48+r}")
        if dyn:
            return
        A("v_max3_f32 v14, v14, v48, v49")
        A("v_max3_f32 v14, v14, v50, v51")
        A(f"ds_write_b128 v13, v[48:51] offset:{soff}")

    assert one or (NPRE % 2 == 0 and NPRE >= 2)
    for t in range(NPRE):
        later = (NPRE - 1 - t) + min(t, DEP)
        A(f"s_waitcnt vmcnt({min(63, 8*later)})")
        if t < DEP:
            def mid0():
                issue('k', t, "s57")
                tstep()
            kproc(t, t*128, mid0)
        else:
            kproc(t, t*128)
    A(f"v_add_u32 v13, {NPRE*128}, v13")
    if one:
        A(f"s_mov_b32 s58, {NS - NPRE - 1}")
        LB("L_kloop")
        A("s_waitcnt vmcnt(0)")
        kproc(0, 0)
        issue('k', 0, "s57")
        tstep()
        A("v_add_u32 v13, 128, v13")
        A("s_sub_u32 s58, s58, 1")
        A("s_cmp_lg_u32 s58, 0")
        A("s_cbranch_scc1 L_kloop")
        A("s_waitcnt vmcnt(0)")
        kproc(0, 0)
        A("s_mov_b32 s57, s56")
        issue('v', 0, "s57")
        tstep()
    else:
        NLOOP = (NS - NPRE - 2)//2
        A(f"s_mov_b32 s58, {NLOOP}")
        assert DEP == 1 or late >= 1
        def kstep(sl, soff, nxt):
            A(f"s_waitcnt vmcnt({8*(DEP-1)})")
            if late == 0:
                nxt()
                kproc(sl, soff)
            elif late == 1:
                kproc(sl, soff, nxt)
            else:
                kproc(sl, soff)
                if kw8: A("s_waitcnt lgkmcnt(0)")
                for i in range(kth): A("s_nop 15")
                nxt()
        def nk(sl):
            def f():
                issue('k', sl, "s57")
                tstep()
            return f
        LB("L_kloop")
        kstep(0, 0, nk(2-DEP))
        kstep(1, 128, nk(DEP-1))
        A("v_add_u32 v13, 256, v13")
        A("s_sub_u32 s58, s58, 1")
        A("s_cmp_lg_u32 s58, 0")
        A("s_cbranch_scc1 L_kloop")
        def nv0():
            A("s_mov_b32 s57, s56")
            issue('v', 0, "s57")
            tstep()
        def nv1():
            issue('v', 1, "s57")
            tstep()
        if DEP == 1:
            kstep(0, 0, nk(1))
            kstep(1, 128, nv0)
        else:
            kstep(0, 0, nv0)
            kstep(1, 128, nv1)
    stamp(3)
    A(f"v_subrev_u32 v13, {(NS-(1 if one else 2))*128}, v13")
    A("v_mov_b32 v10, v14")
    A("s_nop 1")
    A("v_permlane32_swap_b32 v10, v14")
    A("s_nop 1")
    A("v_max_f32 v14, v10, v14")
    A("v_mov_b32 v10, v14")
    A("s_nop 1")
    A("v_permlane16_swap_b32 v10, v14")
    A("s_nop 1")
    A("v_max_f32 v14, v10, v14")
    A("v_mul_f32 v11, s59, v14")
    if not one:
        A("s_waitcnt lgkmcnt(0)")
        A("ds_read_b128 v[48:51], v13")
    def pprep(sc, ng=4):
        for r in range(ng):
            A(f"v_fma_f32 v{sc+r}, v{sc+r}, s59, -v11")
        for r in range(ng):
            A(f"v_exp_f32 v{sc+r}, v{sc+r}")
        A("s_nop 0")
        A(f"v_add_f32 v56, v{sc}, v{sc+1}")
        if ng == 4: A(f"v_add_f32 v57, v{sc+2}, v{sc+3}")
        for r in range(ng):
            A(f"v_cvt_pk_bf16_f32 v{sc+r}, v{sc+r}, v{sc+r}")
        if ng == 4: A("v_add_f32 v56, v56, v57")
        A("v_add_f32 v15, v15, v56")
        for r in range(ng):
            for k in range(4):
                A(f"v_and_b32 v{32+4*r+k}, v{sc+r}, v{4+k}")
    def pv(sl, ng=4):
        for r in range(ng):
            a = 32 + 4*r
            b0 = slot(sl, 2*r); b1 = slot(sl, 2*r+1)
            A(f"v_mfma_f32_16x16x32_bf16 v[24:27], v[{a}:{a+3}], v[{b0}:{b0+3}], v[24:27]")
            A(f"v_mfma_f32_16x16x32_bf16 v[28:31], v[{a}:{a+3}], v[{b1}:{b1+3}], v[28:31]")
    def vstep(sl, snext_off, nxt, pre=None):
        sc = 48 + 4*sl
        sn = 48 + 4*(1-sl)
        if late >= 3:
            cur_off = (snext_off - 128) if snext_off is not None else 128
            A("s_waitcnt vmcnt(0)")
            if late == 3:
                A(f"ds_read_b128 v[{sc}:{sc+3}], v13 offset:{cur_off}")
            A("s_waitcnt lgkmcnt(0)")
            if late == 4 and snext_off is not None:
                A(f"ds_read_b128 v[{sn}:{sn+3}], v13 offset:{snext_off}")
            if pre: pre()
            pprep(sc)
            A("s_nop 1")
            pv(sl)
            for i in range(vth): A("s_nop 15")
            if nxt: nxt()
            return
        A("s_waitcnt lgkmcnt(0)")
        if snext_off is not None:
            A(f"ds_read_b128 v[{sn}:{sn+3}], v13 offset:{snext_off}")
        if pre: pre()
        pprep(sc)
        A(f"s_waitcnt vmcnt({8*(DEP-1)})")
        if nxt and late == 0: nxt()
        else: A("s_nop 0")
        pv(sl)
        if nxt and late >= 1: nxt()
    def nv(sl):
        def f():
            issue('v', sl, "s57")
            tstep()
        return f
    def req_ticket():
        A("v_mov_b32 v58, 0")
        A("v_mov_b32 v59, 1")
        A("s_mov_b64 exec, 1")
        A(f"ds_add_rtn_u32 v59, v58, v59 offset:{L_CNT}")
        A("s_mov_b64 exec, -1")
    NWIN = (32-NS)*16
    NBIG = NWIN - NSM
    NTK = NBIG + 2*NSM
    def v1step(off, nxt, post=None):
        A(f"ds_read_b128 v[48:51], v13 offset:{off}")
        A("s_waitcnt vmcnt(0) lgkmcnt(0)")
        pprep(48)
        A("s_nop 1")
        pv(0)
        if post: post()
        if nxt: nxt()
    assert NS < 32 and one and (NSM == 0 or bm.startswith('iikkww'))
    A(f"s_mov_b32 s58, {NS-2}")
    LB("L_vloop")
    v1step(0, nv(0))
    A("v_add_u32 v13, 128, v13")
    A("s_sub_u32 s58, s58, 1")
    A("s_cmp_lg_u32 s58, 0")
    A("s_cbranch_scc1 L_vloop")
    v1step(0, nv(0), req_ticket)
    if NSM:
        A("v_lshrrev_b32 v61, 2, v8")
        A("v_lshlrev_b32 v61, 10, v61")
        A("v_sub_u32 v61, v2, v61")
        A("v_lshlrev_b32 v62, 10, v9")
        A("v_sub_u32 v62, v3, v62")
    v1step(128, None)
    stamp(1)
    if True:
        LB("L_next")
        A("s_waitcnt lgkmcnt(0)")
        A("v_readfirstlane_b32 s76, v59")
        A(f"s_mov_b32 s79, {spin_max}")
        A("s_andn2_b32 s77, s76, 3")
        A("v_mov_b32 v58, s77")
        LB("L_win")
        A(f"ds_read_b32 v60, v58 offset:{L_WIN}")
        A("s_waitcnt lgkmcnt(0)")
        A("v_readfirstlane_b32 s77, v60")
        A("s_cmp_lg_u32 s77, -1")
        A("s_cbranch_scc1 L_win_ok")
        A("s_sleep 1")
        A("s_sub_u32 s79, s79, 1")
        A("s_cmp_lg_u32 s79, 0")
        A("s_cbranch_scc1 L_win")
        LB("L_win_ok")
        A(f"s_cmp_ge_u32 s77, {NTK}")
        A("s_cbranch_scc1 L_dyn_done")
        A("s_and_b32 s76, s76, 3")
        if NSM:
            A(f"s_cmp_ge_u32 s77, {NBIG}")
            A("s_cbranch_scc1 L_small")
        def winaddr(src):
            A("s_lshl_b32 s78, s28, 24")
            deposit(78, src, 0, sorted(pos['r'] + pos['x']), 79)
            A(f"s_add_u32 s{src}, s{src}, {NS*16}")
            deposit(78, src, 4, pos['t'], 79)
        winaddr(77)
        deposit(78, 76, 0, pos['w'], 79)
        issue('k', 2, "s78")
        issue('v', 3, "s78")
        A("s_mov_b32 s73, 0")
        A("s_waitcnt vmcnt(8)")
        req_ticket()
        kproc(2, 0, None, True)
        A("v_max3_f32 v10, v48, v49, v50")
        A("v_max_f32 v10, v10, v51")
        A("v_cmp_gt_f32 vcc, v10, v14")
        A("s_cbranch_vccnz L_rare")
        LB("L_back")
        pprep(48)
        A("s_waitcnt vmcnt(0)")
        pv(3)
        A("s_branch L_next")
        if NSM:
            LB("L_small")
            A(f"s_add_u32 s77, s77, {NBIG}")
            A("s_and_b32 s79, s77, 1")
            A("s_lshl_b32 s79, s79, 2")
            A("s_add_u32 s76, s76, s79")
            A("s_lshr_b32 s77, s77, 1")
            winaddr(77)
            A("s_lshl_b32 s76, s76, 12")
            A("s_add_u32 s78, s78, s76")
            issue('k', 2, "s78", True)
            issue('v', 3, "s78", True)
            A("s_mov_b32 s73, 1")
            if smreq == 0: req_ticket()
            A("s_waitcnt vmcnt(4)")
            if smreq == 1: req_ticket()
            kproc(2, 0, None, True, 2)
            A("v_max_f32 v10, v48, v49")
            A("v_cmp_gt_f32 vcc, v10, v14")
            A("s_cbranch_vccnz L_rare")
            LB("L_back_sm")
            pprep(48, 2)
            A("s_waitcnt vmcnt(0)")
            A("s_nop 0")
            pv(3, 2)
            A("s_branch L_next")
        LB("L_rare")
        A("v_max_f32 v10, v10, v14")
        A("v_mov_b32 v56, v10")
        A("s_nop 1")
        A("v_permlane32_swap_b32 v56, v10")
        A("s_nop 1")
        A("v_max_f32 v10, v10, v56")
        A("v_mov_b32 v56, v10")
        A("s_nop 1")
        A("v_permlane16_swap_b32 v56, v10")
        A("s_nop 1")
        A("v_max_f32 v10, v10, v56")
        A("v_sub_f32 v56, v14, v10")
        A("v_mul_f32 v56, s59, v56")
        A("v_exp_f32 v56, v56")
        A("v_mov_b32 v14, v10")
        A("v_mul_f32 v11, s59, v10")
        A("v_mul_f32 v15, v15, v56")
        A("v_readlane_b32 s60, v56, 0")
        A("v_readlane_b32 s61, v56, 8")
        A("s_mov_b32 s62, 0")
        A("s_mov_b32 s63, -1")
        A("v_mov_b32 v57, s60")
        A("s_mov_b64 exec, s[62:63]")
        A("v_mov_b32 v57, s61")
        A("s_mov_b64 exec, -1")
        for r in range(8):
            A(f"v_mul_f32 v{24+r}, v57, v{24+r}")
        if NSM:
            A("s_cmp_lg_u32 s73, 0")
            A("s_cbranch_scc1 L_back_sm")
        A("s_branch L_back")
        LB("L_dyn_done")
    A("v_mov_b32 v10, v15")
    A("v_lshrrev_b32 v12, 1, v9")
    A("v_lshlrev_b32 v12, 10, v12")
    A("v_permlane32_swap_b32 v10, v15")
    A("v_lshl_add_u32 v12, v8, 5, v12")
    A("v_add_f32 v15, v10, v15")
    A("v_mov_b32 v10, v15")
    A("v_and_b32 v13, 1, v9")
    A("v_lshl_add_u32 v12, v13, 4, v12")
    A("v_permlane16_swap_b32 v10, v15")
    A("s_lshl_b32 s58, s3, 11")
    A("v_add_u32 v12, s58, v12")
    A("v_add_f32 v15, v10, v15")
    A("s_lshl_b32 s58, s3, 4")
    A("v_and_b32 v13, 8, v1")
    A("v_add_u32 v13, s58, v13")
    A(f"ds_write_b128 v12, v[24:27] offset:{L_O}")
    A(f"ds_write_b128 v12, v[28:31] offset:{L_O+512}")
    A("s_mov_b64 exec, 0x101")
    A(f"ds_write_b64 v13, v[14:15] offset:{L_ML}")
    A("s_mov_b64 exec, -1")
    stamp(4)
    A("s_waitcnt lgkmcnt(0)")
    A("s_barrier")
    A("s_cmp_lg_u32 s3, 0")
    A("s_cbranch_scc1 L_fin")
    A("s_cmp_ge_u32 s31, 28")
    A("s_cbranch_scc1 L_fin")
    srd(44, 22, 23, 1792)
    A("v_lshrrev_b32 v10, 2, v1")
    A(f"v_mul_u32_u24 v10, {OB2S}, v10")
    A("v_and_b32 v11, 3, v1")
    A("v_lshl_add_u32 v10, v11, 4, v10")
    A(f"s_mul_i32 s58, s30, {128*OB2S}")
    A("s_lshl_b32 s61, s31, 6")
    A("s_add_u32 s58, s58, s61")
    A(f"s_add_u32 s58, s58, {OB2}")
    A(f"s_mov_b32 s60, {spin_max}")
    for t in range(8):
        A(f"s_mov_b64 s[{64+2*t}:{65+2*t}], -1")
    if pp2:
        for k in range(32):
            A(f"v_mov_b32 v{96+k}, -1")
        for t in range(8):
            A(f"s_add_u32 s{48+t}, s58, {t*16*OB2S}")
        A("s_barrier")
        LB("L_poll2")
        for t in range(8):
            A(f"s_mov_b64 exec, s[{64+2*t}:{65+2*t}]")
            A(f"s_cbranch_execz L_p2s{t}")
            A(f"buffer_load_dwordx4 v[{96+4*t}:{99+4*t}], v10, s[40:43], s{48+t} offen sc1")
            LB(f"L_p2s{t}")
        A(f"s_waitcnt vmcnt({pp2})")
        A("s_mov_b64 s[62:63], 0")
        for t in range(8):
            A(f"s_mov_b64 exec, s[{64+2*t}:{65+2*t}]")
            A(f"s_cbranch_execz L_p2c{t}")
            for k in range(4):
                A(f"v_mov_b32 v{64+4*t+k}, v{96+4*t+k}")
            A(f"v_max3_u32 v12, v{64+4*t}, v{65+4*t}, v{66+4*t}")
            A(f"v_max_u32 v12, v12, v{67+4*t}")
            A(f"v_cmp_eq_u32 s[{64+2*t}:{65+2*t}], -1, v12")
            A(f"s_or_b64 s[62:63], s[62:63], s[{64+2*t}:{65+2*t}]")
            LB(f"L_p2c{t}")
        A("s_mov_b64 exec, -1")
        A("s_cmp_eq_u64 s[62:63], 0")
        A("s_cbranch_scc1 L_poll2_done")
        A("s_sleep 1")
        A("s_sub_u32 s60, s60, 1")
        A("s_cmp_lg_u32 s60, 0")
        A("s_cbranch_scc1 L_poll2")
    else:
        A("s_barrier")
        LB("L_poll2")
        for t in range(8):
            A(f"s_mov_b64 exec, s[{64+2*t}:{65+2*t}]")
            A(f"s_cbranch_execz L_p2s{t}")
            A(f"s_add_u32 s61, s58, {t*16*OB2S}")
            A(f"buffer_load_dwordx4 v[{64+4*t}:{67+4*t}], v10, s[40:43], s61 offen sc1")
            LB(f"L_p2s{t}")
        A("s_mov_b64 exec, -1")
        A("s_waitcnt vmcnt(0)")
        for t in range(8):
            A(f"v_max3_u32 v{12+(t&1)}, v{64+4*t}, v{65+4*t}, v{66+4*t}")
            A(f"v_max_u32 v{12+(t&1)}, v{12+(t&1)}, v{67+4*t}")
            A(f"v_cmp_eq_u32 s[{64+2*t}:{65+2*t}], -1, v{12+(t&1)}")
        A("s_or_b64 s[62:63], s[64:65], s[66:67]")
        for t in range(2, 8):
            A(f"s_or_b64 s[62:63], s[62:63], s[{64+2*t}:{65+2*t}]")
        A("s_cbranch_scc0 L_poll2_done")
        A(f"s_sleep {sl2}")
        A("s_sub_u32 s60, s60, 1")
        A("s_cmp_lg_u32 s60, 0")
        A("s_cbranch_scc1 L_poll2")
    LB("L_poll2_done")
    stamp(5)
    for step in (16, 8, 4):
        for k in range(step):
            A(f"v_add_f32 v{64+k}, v{64+k}, v{64+step+k}")
    A("s_nop 1")
    A("v_permlane32_swap_b32 v64, v66")
    A("v_permlane32_swap_b32 v65, v67")
    A("s_nop 1")
    A("v_add_f32 v64, v64, v66")
    A("v_add_f32 v65, v65, v67")
    A("v_mov_b32 v66, v64")
    A("v_mov_b32 v67, v65")
    A("s_nop 1")
    A("v_permlane16_swap_b32 v66, v64")
    A("v_permlane16_swap_b32 v67, v65")
    A("s_nop 1")
    A("v_add_f32 v64, v64, v66")
    A("v_add_f32 v65, v65, v67")
    A("s_nop 1")
    A(f"v_add_f32_dpp v64, v64, v64 row_ror:8 {DPP}")
    A(f"v_add_f32_dpp v65, v65, v65 row_ror:8 {DPP}")
    A("s_nop 1")
    A(f"v_add_f32_dpp v64, v64, v64 row_ror:4 {DPP}")
    A(f"v_add_f32_dpp v65, v65, v65 row_ror:4 {DPP}")
    A("v_lshrrev_b32 v12, 5, v1")
    A("v_lshlrev_b32 v12, 2, v12")
    A("v_lshl_add_u32 v12, v11, 3, v12")
    A("v_cvt_pk_bf16_f32 v64, v64, v65")
    A("s_mul_i32 s58, s30, 896")
    A("s_lshl_b32 s61, s31, 5")
    A("s_add_u32 s58, s58, s61")
    A("s_mov_b32 s60, 15")
    A("s_mov_b32 s61, 15")
    if tfix:
        if tfix == 150:
            A("s_getreg_b32 s98, hwreg(HW_REG_XCC_ID)")
            A("s_and_b32 s98, s98, 7")
            A("s_and_b32 s99, s2, 7")
            A("s_cmp_eq_u32 s98, s99")
            A("s_cbranch_scc1 L_tfix_skip")
        if tfix == 160:
            A("s_or_b32 s98, s6, s8")
            A("s_and_b32 s98, s98, 0x1fffff")
            A("s_cmp_eq_u32 s98, 0")
            A("s_cbranch_scc1 L_tfix_skip")
        LB("L_tfix")
        A("s_memrealtime s[98:99]")
        A("s_waitcnt lgkmcnt(0)")
        A("s_sub_u32 s98, s98, s96")
        A(f"s_cmp_lt_u32 s98, {tfix*100}")
        A("s_cbranch_scc1 L_tfix")
        LB("L_tfix_skip")
    A("s_mov_b64 exec, s[60:61]")
    A("buffer_store_dword v64, v12, s[44:47], s58 offen")
    A("s_mov_b64 exec, -1")
    stamp(6)
    if prof == 2: dump_dbg([(6,4)])
    LB("L_fin")
    dump_stamps("stream")
    A("s_endpgm")

    LB("L_service")
    stamp('service')
    A("s_mul_i32 s60, s30, 896")
    A("s_add_u32 s44, s4, s60")
    A("s_addc_u32 s45, s5, 0")
    A("s_mov_b32 s46, 896")
    A("s_mov_b32 s47, 0x00020000")
    A("s_mov_b32 s51, 0x00020000")
    for k in range(4):
        A(f"v_mov_b32 v{48+k}, -1")
    A("v_lshlrev_b32 v14, 4, v1")
    A(f"s_mul_i32 s57, s2, {OB1S}")
    A(f"s_add_u32 s57, s57, {OB1}")
    A(f"s_mul_i32 s58, s2, {OB2S}")
    A(f"s_add_u32 s58, s58, {OB2}")
    if noclr: A("s_mov_b64 exec, 1")
    for k in range(2):
        A(f"buffer_store_dwordx4 v[48:51], v14, s[40:43], s57 offen offset:{1024*k} sc1")
    A("buffer_store_dwordx4 v[48:51], v14, s[40:43], s58 offen sc1")
    A("s_mov_b32 s60, -1")
    A("s_mov_b32 s61, 0xffff")
    if not noclr: A("s_mov_b64 exec, s[60:61]")
    A("buffer_store_dwordx4 v[48:51], v14, s[40:43], s58 offen offset:1024 sc1")
    A("s_mov_b64 exec, 0xffff")
    A("buffer_store_dwordx4 v[48:51], v14, s[40:43], s57 offen offset:2048 sc1")
    A("s_mov_b64 exec, -1")
    A("v_mov_b32 v15, 0")
    A(f"ds_write_b32 v15, v15 offset:{L_CNT}")
    A(f"ds_write_b128 v14, v[48:51] offset:{L_WIN}")
    A("s_cmp_lg_u32 s29, 0")
    A("s_cbranch_scc1 L_notinit")
    A("s_lshl_b32 s60, s28, 12")
    A(f"s_add_u32 s60, s60, {TICK}")
    A("s_mov_b64 exec, 1")
    A("buffer_store_dword v15, v15, s[40:43], s60 offen sc1")
    A("s_mov_b64 exec, -1")
    LB("L_notinit")
    A("s_mov_b32 s60, 0x05040100")
    A("s_mov_b32 s61, 0x07060302")
    A("s_mov_b32 s62, 0x000f000f")
    A("s_mov_b32 s63, 0x000f000f")
    stamp(1)
    A("s_waitcnt lgkmcnt(0)")
    A("s_barrier")
    for w in range(4):
        A(f"ds_read_b64 v[{16+2*w}:{17+2*w}], v12 offset:{L_QP+128*w}")
    A("s_waitcnt vmcnt(5)")
    A("v_add_u32 v72, 0x10000, v72")
    A("v_add_u32 v73, 0x10000, v73")
    A("v_and_b32 v72, 0xffff0000, v72")
    A("v_and_b32 v73, 0xffff0000, v73")
    A("s_waitcnt lgkmcnt(0)")
    A("v_add_f32 v16, v16, v18")
    A("v_add_f32 v17, v17, v19")
    A("v_add_f32 v20, v20, v22")
    A("v_add_f32 v21, v21, v23")
    A("v_add_f32 v16, v16, v20")
    A("v_add_f32 v17, v17, v21")
    A("v_cvt_pk_bf16_f32 v16, v16, 0")
    A("v_cvt_pk_bf16_f32 v17, v17, 0")
    A("v_or_b32 v72, v72, v16")
    A("v_or_b32 v73, v73, v17")
    A("s_mov_b64 exec, s[62:63]")
    A(f"buffer_store_dwordx2 v[72:73], v12, s[40:43], s59 offen offset:{QBOX} sc1")
    A("s_mov_b64 exec, -1")
    stamp(2)
    A("s_lshl_b32 s65, s30, 6")
    A("s_add_u32 s65, s65, 128")
    A("s_mov_b32 s68, 1")
    A("s_mov_b32 s59, 0")
    A("s_mov_b32 s66, 0x10000")
    if ackf:
        A("s_waitcnt vmcnt(0)")
        A("s_atomic_add s68, s[24:25], s65")
    LB("L_pollq")
    A(f"buffer_load_dwordx4 v[76:79], v10, s[40:43], s56 offen offset:{QBOX} sc1")
    A(f"buffer_load_dwordx4 v[80:83], v10, s[40:43], s56 offen offset:{QBOX+16} sc1")
    A("s_waitcnt vmcnt(0)")
    if not ackf:
        A("s_cmp_lg_u32 s59, 0")
        A("s_cbranch_scc1 L_pollq_arrived")
        A("s_atomic_add s68, s[24:25], s65")
        LB("L_pollq_arrived")
    for k in range(8):
        A(f"v_xor_b32 v{84+k}, v{64+k}, v{76+k}")
    A("v_min3_u32 v84, v84, v85, v86")
    A("v_min3_u32 v87, v87, v88, v89")
    A("v_min3_u32 v84, v84, v90, v91")
    A("v_min_u32 v84, v84, v87")
    A("v_cmp_gt_u32 vcc, s66, v84")
    A("s_cbranch_vccz L_pollq_done")
    A("s_mov_b64 exec, vcc")
    A("s_add_u32 s59, s59, 1")
    A(f"s_sleep {slq}")
    A(f"s_cmp_lt_u32 s59, {fbk}")
    A("s_cbranch_scc1 L_pollq")
    A("s_mov_b32 s70, 0")
    A("s_atomic_add s70, s[24:25], s65 glc")
    A("s_waitcnt lgkmcnt(0)")
    A("s_cmp_ge_u32 s70, 128")
    A("s_cselect_b32 s66, 0, s66")
    A(f"s_cmp_lt_u32 s59, {spin_max}")
    A("s_cbranch_scc1 L_pollq")
    LB("L_pollq_done")
    A("s_mov_b64 exec, -1")
    stamp(3)
    for k in range(4):
        A(f"v_perm_b32 v{48+k}, v{77+2*k}, v{76+2*k}, s60")
    A(f"ds_write_b128 v14, v[48:51] offset:{L_Q}")
    A("s_waitcnt lgkmcnt(0)")
    A("s_barrier")
    stamp(4)
    make_masks(56, 57)
    A("s_and_b32 s66, s69, 7")
    A("s_mul_i32 s66, s66, 14")
    A("s_lshr_b32 s67, s69, 3")
    A("s_add_u32 s66, s66, s67")
    A("s_cmp_lt_u32 s69, 112")
    A(f"s_cselect_b32 s59, {0 if nobg&1 else 448*1792*2}, 0")
    A("s_mov_b32 s48, s16"); A("s_mov_b32 s49, s17"); A("s_mov_b32 s50, s59")
    srd(32, 18, 19, "s59")
    srd(36, 20, 21, 896)
    A("v_lshrrev_b32 v10, 1, v1")
    A("v_and_b32 v11, 1, v1")
    A("v_mul_u32_u24 v12, 28, v10")
    A(f"v_mul_u32_u24 v13, {14*3584}, v10")
    A("v_lshl_add_u32 v13, v11, 4, v13")
    A(f"buffer_load_dwordx4 v[{XR}:{XR+3}], v12, s[44:47], 0 offen")
    A(f"buffer_load_dwordx3 v[{XR+4}:{XR+6}], v12, s[44:47], 0 offen offset:16")
    A("buffer_load_dwordx4 v[40:43], v14, s[44:47], 0 offen")
    A("buffer_load_dwordx4 v[44:47], v14, s[36:39], 0 offen")
    A("s_lshl_b32 s56, s66, 5")
    cnt = [0]
    def thr():
        cnt[0] += 1
        if cnt[0] % SB == 0: A("s_waitcnt vmcnt(0)")
    for t in range(14):
        A(f"buffer_load_dwordx4 v[{64+4*t}:{67+4*t}], v13, s[48:51], s56 offen {'nt' if wnt & 2 else ''}")
        A("s_add_u32 s56, s56, 3584")
        thr()
    for k in range(8):
        A(f"v_mov_b32 v{ACC+k}, 0")
    matvec_pairs(7, 64, XR, 0)
    A("s_nop 1")
    for k in range(2):
        A(f"v_add_f32_dpp v{ACC+k}, v{ACC+k}, v{ACC+k} row_ror:2 {DPP}")
    A(f"s_mov_b32 s59, {f2u(-math.log2(math.e)):#x}")
    for k in range(2):
        A(f"v_cvt_pk_bf16_f32 v{ACC+k}, 0, v{ACC+k}")
    for k in range(2):
        A(f"v_mul_f32 v{ACC+2+k}, s59, v{ACC+k}")
    for k in range(2):
        A(f"v_exp_f32 v{ACC+2+k}, v{ACC+2+k}")
    A("s_nop 0")
    for k in range(2):
        A(f"v_add_f32 v{ACC+2+k}, 1.0, v{ACC+2+k}")
    for k in range(2):
        A(f"v_rcp_f32 v{ACC+2+k}, v{ACC+2+k}")
    A("s_nop 0")
    for k in range(2):
        A(f"v_mul_f32 v{ACC+k}, v{ACC+k}, v{ACC+2+k}")
    A("v_lshlrev_b32 v12, 5, v11")
    A("v_lshl_add_u32 v12, v9, 3, v12")
    A("s_mov_b32 s62, 0x00030003")
    A("s_mov_b32 s63, 0x00030003")
    A("s_mov_b64 exec, s[62:63]")
    A(f"ds_write_b64 v12, v[{ACC}:{ACC+1}] offset:{L_H}")
    A("s_mov_b64 exec, -1")
    A("v_lshlrev_b32 v12, 4, v9")
    A("s_waitcnt lgkmcnt(0)")
    A(f"ds_read_b128 v[{ACC}:{ACC+3}], v12 offset:{L_H}")
    for k in range(4):
        A(f"v_lshlrev_b32 v52, 16, v{40+k}")
        A(f"v_lshlrev_b32 v53, 16, v{44+k}")
        A(f"v_and_b32 v54, 0xffff0000, v{40+k}")
        A(f"v_and_b32 v55, 0xffff0000, v{44+k}")
        A("v_mul_f32 v52, v52, v53")
        A("v_mul_f32 v54, v54, v55")
        A("v_cvt_pk_bf16_f32 v52, 0, v52")
        A("v_cvt_pk_bf16_f32 v54, 0, v54")
        if k == 0:
            A("v_add_f32 v56, v52, v54")
        else:
            A("v_add_f32 v56, v56, v52")
            A("v_add_f32 v56, v56, v54")
    for rr in (8, 4, 2, 1):
        A("s_nop 1")
        A(f"v_add_f32_dpp v56, v56, v56 row_ror:{rr} {DPP}")
    A("v_mov_b32 v57, v56")
    A("s_nop 1")
    A("v_permlane32_swap_b32 v57, v56")
    A("s_nop 1")
    A("v_add_f32 v56, v56, v57")
    A("v_mov_b32 v57, v56")
    A("s_nop 1")
    A("v_permlane16_swap_b32 v57, v56")
    A("s_nop 1")
    A("v_add_f32 v56, v56, v57")
    A("v_cvt_pk_bf16_f32 v56, 0, v56")
    A("v_mul_f32 v56, s59, v56")
    A("v_exp_f32 v56, v56")
    A("s_nop 0")
    A("v_add_f32 v56, 1.0, v56")
    A("v_rcp_f32 v56, v56")
    A("s_nop 0")
    A("v_cvt_pk_bf16_f32 v2, 0, v56")
    A("v_sub_f32 v3, 1.0, v2")
    A("v_cvt_pk_bf16_f32 v3, 0, v3")
    A("s_waitcnt lgkmcnt(0) vmcnt(0)")
    for t in range(4):
        A(f"v_cvt_pk_bf16_f32 v{ACC+t}, v{ACC+t}, v{ACC+t}")
    for t in range(4):
        for k in range(4):
            A(f"v_and_b32 v{24+4*t+k}, v{ACC+t}, v{4+k}")
    def part_pollg():
        A(f"s_mov_b32 s56, {spin_max}")
        LB("L_pollg")
        A("s_mov_b32 s70, 0")
        A("s_atomic_add s70, s[24:25], s65 glc")
        A("s_waitcnt lgkmcnt(0)")
        A("s_cmp_ge_u32 s70, 128")
        A("s_cbranch_scc1 L_pollg_done")
        A("s_sleep 16")
        A("s_sub_u32 s56, s56, 1")
        A("s_cmp_lg_u32 s56, 0")
        A("s_cbranch_scc1 L_pollg")
        LB("L_pollg_done")
    srd(48, 12, 13, 0 if nobg&2 else 4096*448*2)
    A("v_mul_u32_u24 v18, 3584, v9")
    A("v_lshl_add_u32 v18, v8, 4, v18")
    A("v_mul_u32_u24 v19, 7168, v9")
    A("v_lshl_add_u32 v19, v8, 4, v19")
    A(f"s_mul_i32 s66, s66, {16*896}")
    A(f"s_mul_i32 s67, s31, {32*896}")
    A(f"s_add_u32 s68, s67, {4*896}")
    A(f"s_mov_b32 s59, {f2u(C_SCALE):#x}")
    A("v_lshlrev_b32 v10, 5, v1")
    A("v_lshrrev_b32 v11, 5, v1")
    A("v_lshlrev_b32 v11, 3, v11")
    A("v_lshrrev_b32 v15, 2, v1")
    A("v_mul_u32_u24 v15, 144, v15")
    A("v_and_b32 v12, 3, v1")
    A("v_lshl_add_u32 v15, v12, 5, v15")
    A(f"v_mul_u32_u24 v12, {OB1S}, v8")
    A("v_lshl_add_u32 v13, v9, 5, v12")
    A(f"s_mul_i32 s60, s28, {16*OB1S}")
    A("s_mul_i32 s61, s29, 144")
    A("s_add_u32 s60, s60, s61")
    A(f"s_add_u32 s60, s60, {OB1}")
    A("v_lshlrev_b32 v14, 5, v8")
    A("v_lshl_add_u32 v14, v9, 4, v14")
    part_pollg()
    def part_w():
        for t in range(4):
            for cb in range(4):
                b = 64 + 16*t + 4*cb
                A(f"buffer_load_dwordx4 v[{b}:{b+3}], v18, s[32:35], s66 offen offset:{t*896+cb*256} {'nt' if wnt & 2 else ''}")
                if not defer: thr()
        for t in range(8):
            for cb in range(4):
                b = 128 + 16*t + 4*cb
                A(f"buffer_load_dwordx4 v[{b}:{b+3}], v19, s[48:51], s{67 + (t>>2)} offen offset:{(t&3)*896+cb*256} {'nt' if wnt & 2 else ''}")
                if not defer: thr()
    def part_ffn2():
        A("s_waitcnt vmcnt(32)")
        for t in range(4):
            for cb in range(4):
                b = 64 + 16*t + 4*cb
                d = 40 + 4*cb
                c = "0" if t == 0 else f"v[{d}:{d+3}]"
                A(f"v_mfma_f32_16x16x32_bf16 v[{d}:{d+3}], v[{24+4*t}:{27+4*t}], v[{b}:{b+3}], {c}")
        A("s_nop 7")
        for k in range(16):
            A(f"v_mul_f32 v{40+k}, v3, v{40+k}")
    if not defer:
        part_w()
        part_ffn2()
    if NS < 32:
        A("s_lshl_b32 s74, s28, 12")
        A(f"s_add_u32 s74, s74, {TICK}")
        A("s_add_u32 s74, s26, s74")
        A("s_addc_u32 s75, s27, 0")
        A("s_mov_b32 s71, 0")
        A("s_mov_b32 s72, 0")
        A("s_mov_b32 s73, 0")
        A("v_mov_b32 v16, 0")
        A(f"s_mov_b32 s56, {spin_max*4}")
        LB("L_tk")
        A(f"ds_read_b32 v17, v16 offset:{L_CNT}")
        A("s_waitcnt lgkmcnt(0)")
        A("v_readfirstlane_b32 s70, v17")
        A("s_cmp_gt_u32 s70, s73")
        A("s_cbranch_scc1 L_tk_fetch")
        A(f"s_sleep {dsl}")
        A("s_sub_u32 s56, s56, 1")
        A("s_cmp_lg_u32 s56, 0")
        A("s_cbranch_scc1 L_tk")
        A("s_branch L_tk_done")
        LB("L_tk_fetch")
        A("s_mov_b32 s70, 1")
        A("s_atomic_add s70, s[74:75], 0 glc")
        A("v_mov_b32 v17, s71")
        A("s_waitcnt lgkmcnt(0)")
        A("v_mov_b32 v20, s70")
        A("s_add_u32 s71, s71, 4")
        A(f"s_sub_u32 s73, s71, {la}")
        A(f"ds_write_b32 v17, v20 offset:{L_WIN}")
        if defer:
            A(f"s_cmp_lt_u32 s70, {defer}")
            A("s_cbranch_scc1 L_tk")
            A("s_cmp_lg_u32 s72, 0")
            A("s_cbranch_scc1 L_tk_w")
            A("s_mov_b32 s72, 1")
            stamp(1)
            part_w()
            LB("L_tk_w")
        A(f"s_cmp_lt_u32 s70, {NTK - RET}")
        A("s_cbranch_scc1 L_tk")
        A("v_mov_b32 v17, s71")
        A("v_mov_b32 v20, 0x10000")
        A(f"ds_write_b32 v17, v20 offset:{L_WIN}")
        LB("L_tk_done")
    if defer:
        assert defer <= NTK - RET
        part_ffn2()
    A("s_waitcnt vmcnt(0) lgkmcnt(0)")
    if pp1:
        for k in range(8):
            A(f"v_mov_b32 v{120+k}, -1")
    if defer: stamp(2)
    A("s_barrier")
    stamp(5)
    if prof: A("s_waitcnt lgkmcnt(0)")
    for w in range(4):
        A(f"ds_read_b64 v[{56+2*w}:{57+2*w}], v11 offset:{L_ML+16*w}")
    for w in range(4):
        A(f"ds_read_b128 v[{64+8*w}:{67+8*w}], v10 offset:{L_O+2048*w}")
        A(f"ds_read_b128 v[{68+8*w}:{71+8*w}], v10 offset:{L_O+2048*w+16}")
    A("s_waitcnt lgkmcnt(8)")
    A("v_max3_f32 v16, v56, v58, v60")
    A("v_max_f32 v16, v16, v62")
    for w in range(4):
        A(f"v_sub_f32 v{56+2*w}, v{56+2*w}, v16")
    for w in range(4):
        A(f"v_mul_f32 v{56+2*w}, s59, v{56+2*w}")
    for w in range(4):
        A(f"v_exp_f32 v{56+2*w}, v{56+2*w}")
    A("s_nop 0")
    A("v_mul_f32 v17, v56, v57")
    for w in range(1, 4):
        A(f"v_fmac_f32 v17, v{56+2*w}, v{57+2*w}")
    A("s_waitcnt lgkmcnt(0)")
    for k in range(8):
        A(f"v_mul_f32 v{64+k}, v56, v{64+k}")
    for w in range(1, 4):
        for k in range(8):
            A(f"v_fmac_f32 v{64+k}, v{56+2*w}, v{64+8*w+k}")
    if pp1:
        A("v_mov_b32 v82, -1")
        A("v_mov_b32 v83, -1")
    A("buffer_store_dwordx4 v[64:67], v15, s[40:43], s57 offen sc1")
    A("buffer_store_dwordx4 v[68:71], v15, s[40:43], s57 offen offset:16 sc1")
    A("s_mov_b32 s62, 0x11111111")
    A("s_mov_b32 s63, 0x11111111")
    A("s_mov_b64 exec, s[62:63]")
    A("buffer_store_dwordx2 v[16:17], v15, s[40:43], s57 offen offset:128 sc1")
    A("s_mov_b64 exec, -1")
    A(f"s_mov_b32 s56, {spin_max}")
    if pp1:
        LB("L_poll1")
        A("buffer_load_dwordx4 v[120:123], v13, s[40:43], s60 offen sc1")
        A("buffer_load_dwordx4 v[124:127], v13, s[40:43], s60 offen offset:16 sc1")
        A("buffer_load_dwordx2 v[82:83], v12, s[40:43], s60 offen offset:128 sc1")
        A(f"s_waitcnt vmcnt({3*(pp1-1)})")
        for k in range(8):
            A(f"v_mov_b32 v{72+k}, v{120+k}")
        A("v_mov_b32 v80, v82")
        A("v_mov_b32 v81, v83")
        A("v_max3_u32 v18, v72, v73, v74")
        A("v_max3_u32 v19, v75, v76, v77")
        A("v_max3_u32 v18, v18, v78, v79")
        A("v_max3_u32 v19, v19, v80, v81")
        A("v_max_u32 v18, v18, v19")
        A("v_cmp_eq_u32 vcc, -1, v18")
        A("s_cbranch_vccz L_poll1_done")
        A("s_mov_b64 exec, vcc")
        A("s_bcnt1_i32_b64 s61, vcc")
        A("s_cmp_le_u32 s61, 12")
        A("s_cbranch_scc1 L_poll1_fast")
        A("s_waitcnt vmcnt(0)")
        A("s_sleep 8")
        LB("L_poll1_fast")
        A("s_sub_u32 s56, s56, 1")
        A("s_cmp_lg_u32 s56, 0")
        A("s_cbranch_scc1 L_poll1")
    else:
        LB("L_poll1")
        A("buffer_load_dwordx4 v[72:75], v13, s[40:43], s60 offen sc1")
        A("buffer_load_dwordx4 v[76:79], v13, s[40:43], s60 offen offset:16 sc1")
        A("buffer_load_dwordx2 v[80:81], v12, s[40:43], s60 offen offset:128 sc1")
        A("s_waitcnt vmcnt(0)")
        A("v_max3_u32 v18, v72, v73, v74")
        A("v_max3_u32 v19, v75, v76, v77")
        A("v_max3_u32 v18, v18, v78, v79")
        A("v_max3_u32 v19, v19, v80, v81")
        A("v_max_u32 v18, v18, v19")
        A("v_cmp_eq_u32 vcc, -1, v18")
        A("s_cbranch_vccz L_poll1_done")
        A("s_mov_b64 exec, vcc")
        if adapt:
            A("s_bcnt1_i32_b64 s61, vcc")
            A("s_cmp_le_u32 s61, 12")
            A("s_cbranch_scc1 L_poll1_fast")
            A("s_sleep 16")
            LB("L_poll1_fast")
            A("s_sleep 1")
        else:
            A(f"s_sleep {sl1}")
        A("s_sub_u32 s56, s56, 1")
        A("s_cmp_lg_u32 s56, 0")
        A("s_cbranch_scc1 L_poll1")
    LB("L_poll1_done")
    A("s_mov_b64 exec, -1")
    A("s_barrier")
    stamp(6)
    A(f"v_max_f32_dpp v18, v80, v80 row_ror:8 {DPP}")
    for rr in (4, 2, 1):
        A("s_nop 1")
        A(f"v_max_f32_dpp v18, v18, v18 row_ror:{rr} {DPP}")
    A("v_sub_f32 v18, v80, v18")
    A("v_mul_f32 v18, s59, v18")
    A("v_exp_f32 v18, v18")
    A("s_nop 0")
    A("v_mul_f32 v80, v18, v81")
    for k in range(8):
        A(f"v_mul_f32 v{72+k}, v18, v{72+k}")
    for rr in (8, 4, 2, 1):
        for k in range(9):
            A(f"v_add_f32_dpp v{72+k}, v{72+k}, v{72+k} row_ror:{rr} {DPP}")
    A("v_rcp_f32 v80, v80")
    A("s_nop 0")
    for k in range(8):
        A(f"v_mul_f32 v{72+k}, v80, v{72+k}")
    for k in range(8):
        A(f"v_cvt_pk_bf16_f32 v{72+k}, v{72+k}, v{72+k}")
    for t in range(8):
        for k in range(4):
            A(f"v_and_b32 v{88+4*t+k}, v{72+t}, v{4+k}")
        if t >= 1:
            tt = t - 1
            for cb in range(4):
                b = 128 + 16*tt + 4*cb
                d = 16 + 4*cb
                c = "0" if tt == 0 else f"v[{d}:{d+3}]"
                A(f"v_mfma_f32_16x16x32_bf16 v[{d}:{d+3}], v[{88+4*tt}:{91+4*tt}], v[{b}:{b+3}], {c}")
    tt = 7
    for cb in range(4):
        b = 128 + 16*tt + 4*cb
        d = 16 + 4*cb
        A(f"v_mfma_f32_16x16x32_bf16 v[{d}:{d+3}], v[{88+4*tt}:{91+4*tt}], v[{b}:{b+3}], v[{d}:{d+3}]")
    A("s_mov_b32 s62, -1")
    A("s_mov_b32 s63, 0")
    A("s_nop 3")
    for cb in range(4):
        for k in range(4):
            A(f"v_fmac_f32 v{40+4*cb+k}, v2, v{16+4*cb+k}")
        if cb == 0:
            A("s_mov_b64 exec, s[62:63]")
        if cb == 3:
            A("s_mov_b32 s62, 0x00ff00ff")
            A("s_mov_b64 exec, s[62:63]")
        A(f"buffer_store_dwordx4 v[{40+4*cb}:{43+4*cb}], v14, s[40:43], s58 offen offset:{512*cb} sc1")
    A("s_mov_b64 exec, -1")
    stamp(7)
    dump_stamps("service")
    LB("L_end")
    A("s_endpgm")
    L.append('.section .rodata,"a"')
    L.append(".p2align 6")
    L.append(f".amdhsa_kernel {NAME}_kernel")
    L.append("  .amdhsa_next_free_vgpr 256")
    L.append("  .amdhsa_next_free_sgpr 100")
    L.append("  .amdhsa_accum_offset 256")
    L.append("  .amdhsa_group_segment_fixed_size 0")
    L.append("  .amdhsa_kernarg_size 96")
    L.append("  .amdhsa_user_sgpr_count 2")
    L.append("  .amdhsa_user_sgpr_kernarg_segment_ptr 1")
    L.append("  .amdhsa_system_sgpr_workgroup_id_x 1")
    L.append(".end_amdhsa_kernel")
    return "\n".join(L) + "\n"


if __name__ == "__main__":
    out = sys.argv[1]
    kw = {}
    for a in sys.argv[2:]:
        k, v = a.split("=")
        kw[k] = int(v) if (v.isdigit() and k != 'gx') else v
    open(out, "w").write(gen(**kw))
```

```python
import sys, math

NAME = "gated_mix__gqa_block_cached__dense_activation_silu__decode"
HEADER = open("cdna_kernels/" + NAME + ".s.ref").read().split("; Override launch")[0]

QBOX = 0x0
TICK = 0x10000
OB1 = 0x40000
OB1S = 2304
OB2 = 0x200000
OB2S = 1792
STAMP = 0x20000000
L_Q = 0
L_S = 1024
L_O = L_S + 16384
L_ML = L_O + 8192
L_H = L_ML + 64
L_QP = L_H + 64
L_CNT = L_QP + 512
L_WIN = L_CNT + 64
LDS_BYTES = L_WIN + 1024

C_SCALE = (1.0 / 16.0) * math.log2(math.e)
import struct
def f2u(x): return struct.unpack("<I", struct.pack("<f", x))[0]


def gen(prof=0, NPRE=6, PFI=1, early=1, spin_max=200000, sl1=4, sl2=2, slq=1, fbk=4, late=4, NS=27, fl=0, bm='iikkwwrtttttxxx', DEP=1, kw8=0, SB=8, nobg=0, nowq=0, noclr=0, ptile=0, flv=-1, qx=0, ackf=1, kfirst=0, vth=0, kth=0, defer=0, dsl=2, jit=0, la=0, adapt=1, tfix=0, one=1, NSM=0, RET=8, smreq=0, gx='', pp1=0, pp2=0, wnt=0, svc0=1, lateclr=1, ldsx=0):
    L = []
    A = lambda s: L.append("  " + s)
    LB = lambda s: L.append(s + ":")
    nstamp = [0]

    def stamp(k, svc=[False]):
        if k == 'service':
            svc[0] = True
            return
        if ptile and not svc[0] and k not in (0, 7, 2):
            return
        if ptile and not svc[0] and k == 2:
            k = 6
        if prof:
            A(f"s_memrealtime s[{80+2*k}:{81+2*k}]")

    def dump_dbg(pairs):
        A("s_waitcnt lgkmcnt(0)")
        srd(52, 24, 25, 256)
        A("v_mov_b32 v56, 0")
        for (k, sp) in pairs:
            A(f"s_not_b32 s56, s{80+2*k}")
            A(f"v_writelane_b32 v56, s56, {2*sp}")
            A(f"v_writelane_b32 v56, s{80+2*k}, {2*sp+1}")
        A("v_lshlrev_b32 v57, 2, v1")
        A("s_mov_b64 exec, 0xffff")
        A("buffer_atomic_umax v56, v57, s[52:55], 0 offen")
        A("s_mov_b64 exec, -1")

    def dump_stamps(kind=None):
        if not prof:
            return
        if prof == 2:
            dump_dbg({"stream": [(0,0),(2,1),(3,2),(4,3)], "service": [(2,5),(3,6),(6,7)]}[kind])
            return
        A("s_waitcnt lgkmcnt(0)")
        A("s_lshl_b32 s56, s2, 3")
        A("s_add_u32 s56, s56, s3")
        A("s_lshl_b32 s56, s56, 6")
        A(f"s_add_u32 s56, s56, {STAMP}")
        A("s_mov_b64 exec, 1")
        A("v_mov_b32 v60, 0")
        for q in range(4):
            for j in range(4):
                A(f"v_mov_b32 v{56+j}, s{80+4*q+j}")
            A(f"buffer_store_dwordx4 v[56:59], v60, s[40:43], s56 offen offset:{16*q}")
            A("s_nop 1")
        A("s_mov_b64 exec, -1")

    def srd(d, lo, hi, n):
        A(f"s_mov_b32 s{d}, s{lo}")
        A(f"s_mov_b32 s{d+1}, s{hi}")
        A(f"s_mov_b32 s{d+2}, {n}")
        A(f"s_mov_b32 s{d+3}, 0x00020000")

    DPP = "row_mask:0xf bank_mask:0xf"
    ACC = 16
    XR = 32
    def matvec_pairs(npairs, wbase, xbase, tail_ops):
        for u in range(npairs):
            A(f"s_waitcnt vmcnt({2*npairs - (2*u+2) + tail_ops})")
            w0 = wbase + 8*u; w1 = w0 + 4
            for k in range(4):
                A(f"v_perm_b32 v{52+k}, v{w1+k}, v{w0+k}, s60")
                A(f"v_perm_b32 v{56+k}, v{w1+k}, v{w0+k}, s61")
            for k in range(4):
                A(f"v_dot2c_f32_bf16 v{ACC+2*k}, v{52+k}, v{xbase+u}")
                A(f"v_dot2c_f32_bf16 v{ACC+2*k+1}, v{56+k}, v{xbase+u}")
        A("s_nop 3")
        for k in range(4):
            A(f"v_permlane32_swap_b32 v{ACC+k}, v{ACC+4+k}")
        A("s_nop 1")
        for k in range(4):
            A(f"v_add_f32 v{ACC+k}, v{ACC+k}, v{ACC+4+k}")
        A("s_nop 1")
        for k in range(2):
            A(f"v_permlane16_swap_b32 v{ACC+k}, v{ACC+2+k}")
        A("s_nop 1")
        for k in range(2):
            A(f"v_add_f32 v{ACC+k}, v{ACC+k}, v{ACC+2+k}")
        for rr in (8, 4):
            A("s_nop 1")
            for k in range(2):
                A(f"v_add_f32_dpp v{ACC+k}, v{ACC+k}, v{ACC+k} row_ror:{rr} {DPP}")
    def make_masks(t0, t1):
        A(f"v_and_b32 v{t0}, 1, v1")
        A(f"v_lshlrev_b32 v{t0}, 4, v{t0}")
        A(f"v_mov_b32 v{t1}, 0xffff")
        A(f"v_lshlrev_b32 v{t1}, v{t0}, v{t1}")
        A(f"v_bfe_u32 v{t0}, v1, 1, 2")
        for k in range(4):
            A(f"v_cmp_eq_u32 vcc, {k}, v{t0}")
            A("s_nop 1")
            A(f"v_cndmask_b32 v{4+k}, 0, v{t1}, vcc")
    L.append(HEADER.rstrip("\n"))
    L.append(f"; @launch grid=(256,1,1) block=(320,1,1) lds={ldsx or LDS_BYTES}")
    L.append('.amdgcn_target "amdgcn-amd-amdhsa--gfx950"')
    L.append(".text")
    L.append(f".globl {NAME}_kernel")
    L.append(".p2align 8")
    L.append(f".type {NAME}_kernel,@function")
    LB(f"{NAME}_kernel")
    A("s_cmp_ge_u32 s2, 256")
    A("s_cbranch_scc1 L_end")
    A("s_load_dwordx2 s[44:45], s[0:1], 0")
    A("s_load_dwordx2 s[48:49], s[0:1], 24")
    A("s_load_dwordx2 s[32:33], s[0:1], 8")
    A("s_load_dwordx2 s[40:41], s[0:1], 88")
    A("s_load_dwordx2 s[36:37], s[0:1], 16")
    A("s_load_dwordx16 s[4:19], s[0:1], 0")
    A("s_load_dwordx8 s[20:27], s[0:1], 64")
    if prof:
        for k in range(8):
            A(f"s_mov_b64 s[{80+2*k}:{81+2*k}], 0")
    stamp(0)
    if tfix: A("s_memrealtime s[96:97]")
    A("v_lshrrev_b32 v2, 6, v0")
    A("v_and_b32 v1, 63, v0")
    A("v_readfirstlane_b32 s3, v2")
    if svc0:
        A("s_sub_u32 s3, s3, 1")
        A("s_min_u32 s3, s3, 4")
    NX = bm.count('x')
    A("s_and_b32 s63, s2, 127")
    if NX < 3:
        keep_hi = 0xff & ~((1 << (7 - NX)) - 1)
        nr = 4 - NX
        A(f"s_and_b32 s28, s2, {((1 << NX) - 1) | keep_hi:#x}")
        A(f"s_bfe_u32 s29, s2, {(nr << 16) | 3:#x}")
        A(f"s_lshl_b32 s29, s29, {NX}")
        A("s_or_b32 s28, s28, s29")
        A(f"s_bfe_u32 s29, s2, {((3 - NX) << 16) | NX:#x}")
        A("s_lshl_b32 s29, s29, 4")
        A("s_or_b32 s2, s28, s29")
    A("s_lshr_b32 s28, s2, 4")
    A("s_and_b32 s29, s2, 15")
    A("s_lshr_b32 s30, s2, 7")
    A("s_and_b32 s31, s2, 127")
    if qx:
        A("s_and_b32 s64, s31, 7")
        A("s_lshl_b32 s64, s64, 4")
        A("s_lshr_b32 s65, s31, 3")
        A("s_add_u32 s64, s64, s65")
    else:
        A(f"s_and_b32 s64, s29, {(1 << NX) - 1}")
        A(f"s_lshl_b32 s64, s64, {4 - NX}")
        A(f"s_lshr_b32 s65, s29, {NX}")
        A("s_add_u32 s64, s64, s65")
        A("s_andn2_b32 s65, s31, 15")
        A("s_add_u32 s64, s64, s65")
    A("v_and_b32 v8, 15, v1")
    A("v_lshrrev_b32 v9, 4, v1")
    A("s_mov_b32 s42, 0x40000000")
    A("s_mov_b32 s43, 0x00020000")
    A("s_cmp_lg_u32 s3, 4")
    A("s_cbranch_scc1 L_stream")
    A("v_lshlrev_b32 v10, 5, v1")
    A("s_lshl_b32 s56, s28, 11")
    A("v_and_b32 v11, 3, v1")
    A("v_lshlrev_b32 v12, 5, v11")
    A("v_lshl_add_u32 v12, v9, 3, v12")
    A("s_lshl_b32 s59, s30, 7")
    A("s_add_u32 s59, s59, s64")
    A("s_lshl_b32 s59, s59, 7")
    A("s_waitcnt lgkmcnt(0)")
    A(f"buffer_load_dwordx4 v[64:67], v10, s[40:43], s56 offen offset:{QBOX} sc1")
    A(f"buffer_load_dwordx4 v[68:71], v10, s[40:43], s56 offen offset:{QBOX+16} sc1")
    A(f"buffer_load_dwordx2 v[72:73], v12, s[40:43], s59 offen offset:{QBOX} sc1")
    A("s_mov_b32 s69, s63")
    A("s_branch L_service")
    LB("L_stream")

    A("s_mov_b32 s34, 0x10000000")
    A("s_mov_b32 s35, 0x00020000")
    A("s_mov_b32 s38, 0x10000000")
    A("s_mov_b32 s39, 0x00020000")
    assert len(bm) == 15 and bm.count('r') + NX == 4
    pos = {c: [9+i for i, ch in enumerate(bm) if ch == c] for c in 'ikwrxt'}
    def runs(positions):
        out = []
        for i, p in enumerate(positions):
            if out and out[-1][1] + out[-1][2] == p: out[-1][2] += 1
            else: out.append([i, p, 1])
        return out
    def deposit(dst, src, srcbit0, positions, tmp):
        for (sb, db, n) in runs(positions):
            A(f"s_bfe_u32 s{tmp}, s{src}, {(n << 16) | (sb + srcbit0):#x}")
            A(f"s_lshl_b32 s{tmp}, s{tmp}, {db}")
            A(f"s_or_b32 s{dst}, s{dst}, s{tmp}")
    A("s_lshl_b32 s56, s28, 24")
    deposit(56, 3, 0, pos['w'], 57)
    deposit(56, 29, 0, pos['x'], 57)
    deposit(56, 29, NX, pos['r'], 57)
    if gx:
        A("s_mov_b32 s71, 0")
        for it in gx.split('_'):
            gb, ab = int(it[0]), int(it[1:])
            A(f"s_bfe_u32 s57, s2, {(1 << 16) | (4 + gb):#x}")
            A(f"s_lshl_b32 s57, s57, {ab}")
            A("s_xor_b32 s71, s71, s57")
    TM = sum(1 << p for p in pos['t'])
    def tstep():
        if len(runs(pos['t'])) == 1:
            A(f"s_add_u32 s57, s57, {1 << pos['t'][0]:#x}")
        else:
            A(f"s_or_b32 s57, s57, {(~TM) & 0xffffffff:#x}")
            A(f"s_add_u32 s57, s57, {1 << pos['t'][0]:#x}")
            A(f"s_and_b32 s57, s57, {TM:#x}")
            A("s_or_b32 s57, s57, s56")
    def vdeposit(dst, src, tmp):
        if pos['k'][1] == pos['k'][0] + 1:
            A(f"v_lshlrev_b32 v{dst}, {pos['k'][0]}, v{src}")
        else:
            A(f"v_and_b32 v{tmp}, 1, v{src}")
            A(f"v_lshrrev_b32 v{dst}, 1, v{src}")
            A(f"v_lshlrev_b32 v{dst}, {pos['k'][1]}, v{dst}")
            A(f"v_lshl_add_u32 v{dst}, v{tmp}, {pos['k'][0]}, v{dst}")
    A("v_lshrrev_b32 v3, 2, v8")
    vdeposit(2, 3, 10)
    A("v_lshl_add_u32 v2, v9, 6, v2")
    vdeposit(3, 9, 10)
    A("v_lshl_add_u32 v3, v8, 4, v3")
    A("v_and_b32 v10, 3, v1")
    A("v_lshl_add_u32 v2, v10, 4, v2")
    SLOT0 = 64
    def slot(sl, i): return SLOT0 + 32*sl + 4*i
    def issue(kind, sl, sreg, small=False):
        srdn = "s[32:35]" if kind == 'k' else "s[36:39]"
        va = "v2" if kind == 'k' else "v3"
        if small: va = "v61" if kind == 'k' else "v62"
        flg = ['nt','sc1 nt','sc0 sc1 nt','sc0 nt','','sc1','sc0 sc1'][fl if (kind == 'k' or flv < 0) else flv]
        cur_hi = 0
        if gx:
            A(f"s_xor_b32 s70, {sreg}, s71")
            sreg = "s70"
        for i in range(4 if small else 8):
            b = slot(sl, i)
            r = i >> 1
            off = ((r & 1) << pos['i'][0]) + ((r >> 1) << pos['i'][1]) + (i & 1)*256
            hi = off & ~0xfff
            if hi and hi != cur_hi:
                A(f"s_add_u32 s69, {sreg}, {hi:#x}")
                cur_hi = hi
            A(f"buffer_load_dwordx4 v[{b}:{b+3}], {va}, {srdn}, {'s69' if hi else sreg} offen offset:{off & 0xfff} {flg}")
    assert not kfirst
    A("s_mul_i32 s58, s30, 896")
    A("s_mov_b32 s46, 1792")
    A("s_mov_b32 s47, 0x00020000")
    A(f"s_mov_b32 s50, {0 if nowq else 448*4096*2}")
    A("s_mov_b32 s51, 0x00020000")
    A("v_lshrrev_b32 v12, 2, v1")
    A("s_mul_i32 s57, s3, 14")
    A("v_cmp_gt_u32 vcc, 14, v12")
    A("v_add_u32 v12, s57, v12")
    A("v_mov_b32 v13, 0x4000")
    A("v_cndmask_b32 v12, v13, v12, vcc")
    A("v_lshlrev_b32 v13, 16, v12")
    A("v_lshl_add_u32 v13, v10, 4, v13")
    A("v_lshlrev_b32 v12, 4, v12")
    A("s_lshl_b32 s57, s64, 6")
    A("s_waitcnt lgkmcnt(0)")
    A(f"buffer_load_dwordx4 v[{XR}:{XR+3}], v12, s[44:47], s58 offen")
    WQB = slot(NPRE-1, 0)
    for t in range(8):
        A(f"buffer_load_dwordx4 v[{WQB+4*t}:{WQB+4*t+3}], v13, s[48:51], s57 offen {'nt' if wnt & 1 else ''}")
        A("s_add_u32 s57, s57, 0x2000")
    A("s_mov_b32 s57, s56")
    if kfirst:
        early = 2
        tstep()
    else:
        for t in range(early):
            issue('k', t, "s57")
            tstep()
    A("s_mov_b32 s60, 0x05040100")
    A("s_mov_b32 s61, 0x07060302")
    for k in range(8):
        A(f"v_mov_b32 v{ACC+k}, 0")
    A("v_lshlrev_b32 v12, 5, v10")
    A("v_lshl_add_u32 v12, v9, 3, v12")
    A("s_lshl_b32 s58, s3, 7")
    A("v_add_u32 v12, s58, v12")
    if kfirst:
        A("s_waitcnt vmcnt(9)")
        if ptile: A(f"s_memrealtime s[82:83]")
        issue('k', 1, "s57")
        tstep()
    matvec_pairs(4, WQB, XR, 8 if kfirst else 8*early)
    A("s_mov_b32 s62, 0x000f000f")
    A("s_mov_b32 s63, 0x000f000f")
    A("s_mov_b64 exec, s[62:63]")
    A(f"ds_write_b64 v12, v[{ACC}:{ACC+1}] offset:{L_QP}")
    A("s_mov_b64 exec, -1")
    A("s_waitcnt lgkmcnt(0)")
    A("s_barrier")
    stamp(7)
    for t in range(early, NPRE):
        if t >= PFI:
            A(f"s_waitcnt vmcnt({8*(PFI-1)})")
        if ptile: A(f"s_memrealtime s[{80+2*t}:{81+2*t}]")
        issue('k', t, "s57")
        tstep()
        if t == early:
            A("v_bfe_u32 v12, v1, 3, 1")
            A("v_lshlrev_b32 v13, 2, v12")
            A("v_add_u32 v13, v13, v9")
            A("v_lshlrev_b32 v12, 9, v12")
            A("v_lshl_add_u32 v12, v9, 6, v12")
            A("v_lshl_add_u32 v12, v10, 4, v12")
            A("s_lshl_b32 s58, s3, 12")
            A(f"s_add_u32 s58, s58, {L_S}")
            A("v_lshlrev_b32 v13, 4, v13")
            A("v_add_u32 v13, s58, v13")
            make_masks(56, 57)
            A("v_mov_b32 v14, 0xff800000")
            A("v_mov_b32 v15, 0")
            for r in range(8):
                A(f"v_mov_b32 v{24+r}, 0")
            A(f"s_mov_b32 s59, {f2u(C_SCALE):#x}")
    stamp(1)
    A("s_barrier")
    A(f"ds_read_b128 v[16:19], v12 offset:{L_Q}")
    A(f"ds_read_b128 v[20:23], v12 offset:{L_Q+256}")
    stamp(2)
    A("s_waitcnt lgkmcnt(0)")

    def kproc(sl, soff, mid=None, dyn=False, ng=4):
        for r in range(ng):
            d = 32 + 4*r
            a0 = slot(sl, 2*r); a1 = slot(sl, 2*r+1)
            A(f"v_mfma_f32_16x16x32_bf16 v[{d}:{d+3}], v[{a0}:{a0+3}], v[16:19], 0")
            A(f"v_mfma_f32_16x16x32_bf16 v[{d}:{d+3}], v[{a1}:{a1+3}], v[20:23], v[{d}:{d+3}]")
        if mid: mid()
        else: A(f"s_nop {4 if ng == 4 else 6}")
        for k in range(4):
            for r in range(ng):
                d = 32 + 4*r + k
                s_ = 48 + r
                if k == 0:
                    A(f"v_mov_b32_dpp v{s_}, v{d} quad_perm:[0,0,0,0] {DPP}")
                else:
                    A(f"v_add_f32_dpp v{s_}, v{d}, v{s_} quad_perm:[{k},{k},{k},{k}] {DPP}")
            if ng == 2 and k < 3: A("s_nop 0")
        for r in range(ng):
            A(f"v_cvt_pk_bf16_f32 v{48+r}, 0, v{48+r}")
        if dyn:
            return
        A("v_max3_f32 v14, v14, v48, v49")
        A("v_max3_f32 v14, v14, v50, v51")
        A(f"ds_write_b128 v13, v[48:51] offset:{soff}")

    assert one or (NPRE % 2 == 0 and NPRE >= 2)
    for t in range(NPRE):
        later = (NPRE - 1 - t) + min(t, DEP)
        A(f"s_waitcnt vmcnt({min(63, 8*later)})")
        if t < DEP:
            def mid0():
                issue('k', t, "s57")
                tstep()
            kproc(t, t*128, mid0)
        else:
            kproc(t, t*128)
    A(f"v_add_u32 v13, {NPRE*128}, v13")
    if one:
        A(f"s_mov_b32 s58, {NS - NPRE - 1}")
        LB("L_kloop")
        A("s_waitcnt vmcnt(0)")
        kproc(0, 0)
        issue('k', 0, "s57")
        tstep()
        A("v_add_u32 v13, 128, v13")
        A("s_sub_u32 s58, s58, 1")
        A("s_cmp_lg_u32 s58, 0")
        A("s_cbranch_scc1 L_kloop")
        A("s_waitcnt vmcnt(0)")
        kproc(0, 0)
        A("s_mov_b32 s57, s56")
        issue('v', 0, "s57")
        tstep()
    else:
        NLOOP = (NS - NPRE - 2)//2
        A(f"s_mov_b32 s58, {NLOOP}")
        assert DEP == 1 or late >= 1
        def kstep(sl, soff, nxt):
            A(f"s_waitcnt vmcnt({8*(DEP-1)})")
            if late == 0:
                nxt()
                kproc(sl, soff)
            elif late == 1:
                kproc(sl, soff, nxt)
            else:
                kproc(sl, soff)
                if kw8: A("s_waitcnt lgkmcnt(0)")
                for i in range(kth): A("s_nop 15")
                nxt()
        def nk(sl):
            def f():
                issue('k', sl, "s57")
                tstep()
            return f
        LB("L_kloop")
        kstep(0, 0, nk(2-DEP))
        kstep(1, 128, nk(DEP-1))
        A("v_add_u32 v13, 256, v13")
        A("s_sub_u32 s58, s58, 1")
        A("s_cmp_lg_u32 s58, 0")
        A("s_cbranch_scc1 L_kloop")
        def nv0():
            A("s_mov_b32 s57, s56")
            issue('v', 0, "s57")
            tstep()
        def nv1():
            issue('v', 1, "s57")
            tstep()
        if DEP == 1:
            kstep(0, 0, nk(1))
            kstep(1, 128, nv0)
        else:
            kstep(0, 0, nv0)
            kstep(1, 128, nv1)
    stamp(3)
    A(f"v_subrev_u32 v13, {(NS-(1 if one else 2))*128}, v13")
    A("v_mov_b32 v10, v14")
    A("s_nop 1")
    A("v_permlane32_swap_b32 v10, v14")
    A("s_nop 1")
    A("v_max_f32 v14, v10, v14")
    A("v_mov_b32 v10, v14")
    A("s_nop 1")
    A("v_permlane16_swap_b32 v10, v14")
    A("s_nop 1")
    A("v_max_f32 v14, v10, v14")
    A("v_mul_f32 v11, s59, v14")
    if not one:
        A("s_waitcnt lgkmcnt(0)")
        A("ds_read_b128 v[48:51], v13")
    def pprep(sc, ng=4):
        for r in range(ng):
            A(f"v_fma_f32 v{sc+r}, v{sc+r}, s59, -v11")
        for r in range(ng):
            A(f"v_exp_f32 v{sc+r}, v{sc+r}")
        A("s_nop 0")
        A(f"v_add_f32 v56, v{sc}, v{sc+1}")
        if ng == 4: A(f"v_add_f32 v57, v{sc+2}, v{sc+3}")
        for r in range(ng):
            A(f"v_cvt_pk_bf16_f32 v{sc+r}, v{sc+r}, v{sc+r}")
        if ng == 4: A("v_add_f32 v56, v56, v57")
        A("v_add_f32 v15, v15, v56")
        for r in range(ng):
            for k in range(4):
                A(f"v_and_b32 v{32+4*r+k}, v{sc+r}, v{4+k}")
    def pv(sl, ng=4):
        for r in range(ng):
            a = 32 + 4*r
            b0 = slot(sl, 2*r); b1 = slot(sl, 2*r+1)
            A(f"v_mfma_f32_16x16x32_bf16 v[24:27], v[{a}:{a+3}], v[{b0}:{b0+3}], v[24:27]")
            A(f"v_mfma_f32_16x16x32_bf16 v[28:31], v[{a}:{a+3}], v[{b1}:{b1+3}], v[28:31]")
    def vstep(sl, snext_off, nxt, pre=None):
        sc = 48 + 4*sl
        sn = 48 + 4*(1-sl)
        if late >= 3:
            cur_off = (snext_off - 128) if snext_off is not None else 128
            A("s_waitcnt vmcnt(0)")
            if late == 3:
                A(f"ds_read_b128 v[{sc}:{sc+3}], v13 offset:{cur_off}")
            A("s_waitcnt lgkmcnt(0)")
            if late == 4 and snext_off is not None:
                A(f"ds_read_b128 v[{sn}:{sn+3}], v13 offset:{snext_off}")
            if pre: pre()
            pprep(sc)
            A("s_nop 1")
            pv(sl)
            for i in range(vth): A("s_nop 15")
            if nxt: nxt()
            return
        A("s_waitcnt lgkmcnt(0)")
        if snext_off is not None:
            A(f"ds_read_b128 v[{sn}:{sn+3}], v13 offset:{snext_off}")
        if pre: pre()
        pprep(sc)
        A(f"s_waitcnt vmcnt({8*(DEP-1)})")
        if nxt and late == 0: nxt()
        else: A("s_nop 0")
        pv(sl)
        if nxt and late >= 1: nxt()
    def nv(sl):
        def f():
            issue('v', sl, "s57")
            tstep()
        return f
    def req_ticket():
        A("v_mov_b32 v58, 0")
        A("v_mov_b32 v59, 1")
        A("s_mov_b64 exec, 1")
        A(f"ds_add_rtn_u32 v59, v58, v59 offset:{L_CNT}")
        A("s_mov_b64 exec, -1")
    NWIN = (32-NS)*16
    NBIG = NWIN - NSM
    NTK = NBIG + 2*NSM
    def v1step(off, nxt, post=None):
        A(f"ds_read_b128 v[48:51], v13 offset:{off}")
        A("s_waitcnt vmcnt(0) lgkmcnt(0)")
        pprep(48)
        A("s_nop 1")
        pv(0)
        if post: post()
        if nxt: nxt()
    assert NS < 32 and one and (NSM == 0 or bm.startswith('iikkww'))
    A(f"s_mov_b32 s58, {NS-2}")
    LB("L_vloop")
    v1step(0, nv(0))
    A("v_add_u32 v13, 128, v13")
    A("s_sub_u32 s58, s58, 1")
    A("s_cmp_lg_u32 s58, 0")
    A("s_cbranch_scc1 L_vloop")
    v1step(0, nv(0), req_ticket)
    if NSM:
        A("v_lshrrev_b32 v61, 2, v8")
        A("v_lshlrev_b32 v61, 10, v61")
        A("v_sub_u32 v61, v2, v61")
        A("v_lshlrev_b32 v62, 10, v9")
        A("v_sub_u32 v62, v3, v62")
    v1step(128, None)
    stamp(1)
    if True:
        LB("L_next")
        A("s_waitcnt lgkmcnt(0)")
        A("v_readfirstlane_b32 s76, v59")
        A(f"s_mov_b32 s79, {spin_max}")
        A("s_andn2_b32 s77, s76, 3")
        A("v_mov_b32 v58, s77")
        LB("L_win")
        A(f"ds_read_b32 v60, v58 offset:{L_WIN}")
        A("s_waitcnt lgkmcnt(0)")
        A("v_readfirstlane_b32 s77, v60")
        A("s_cmp_lg_u32 s77, -1")
        A("s_cbranch_scc1 L_win_ok")
        A("s_sleep 1")
        A("s_sub_u32 s79, s79, 1")
        A("s_cmp_lg_u32 s79, 0")
        A("s_cbranch_scc1 L_win")
        LB("L_win_ok")
        A(f"s_cmp_ge_u32 s77, {NTK}")
        A("s_cbranch_scc1 L_dyn_done")
        A("s_and_b32 s76, s76, 3")
        if NSM:
            A(f"s_cmp_ge_u32 s77, {NBIG}")
            A("s_cbranch_scc1 L_small")
        def winaddr(src):
            A("s_lshl_b32 s78, s28, 24")
            deposit(78, src, 0, sorted(pos['r'] + pos['x']), 79)
            A(f"s_add_u32 s{src}, s{src}, {NS*16}")
            deposit(78, src, 4, pos['t'], 79)
        winaddr(77)
        deposit(78, 76, 0, pos['w'], 79)
        issue('k', 2, "s78")
        issue('v', 3, "s78")
        A("s_mov_b32 s73, 0")
        A("s_waitcnt vmcnt(8)")
        req_ticket()
        kproc(2, 0, None, True)
        A("v_max3_f32 v10, v48, v49, v50")
        A("v_max_f32 v10, v10, v51")
        A("v_cmp_gt_f32 vcc, v10, v14")
        A("s_cbranch_vccnz L_rare")
        LB("L_back")
        pprep(48)
        A("s_waitcnt vmcnt(0)")
        pv(3)
        A("s_branch L_next")
        if NSM:
            LB("L_small")
            A(f"s_add_u32 s77, s77, {NBIG}")
            A("s_and_b32 s79, s77, 1")
            A("s_lshl_b32 s79, s79, 2")
            A("s_add_u32 s76, s76, s79")
            A("s_lshr_b32 s77, s77, 1")
            winaddr(77)
            A("s_lshl_b32 s76, s76, 12")
            A("s_add_u32 s78, s78, s76")
            issue('k', 2, "s78", True)
            issue('v', 3, "s78", True)
            A("s_mov_b32 s73, 1")
            if smreq == 0: req_ticket()
            A("s_waitcnt vmcnt(4)")
            if smreq == 1: req_ticket()
            kproc(2, 0, None, True, 2)
            A("v_max_f32 v10, v48, v49")
            A("v_cmp_gt_f32 vcc, v10, v14")
            A("s_cbranch_vccnz L_rare")
            LB("L_back_sm")
            pprep(48, 2)
            A("s_waitcnt vmcnt(0)")
            A("s_nop 0")
            pv(3, 2)
            A("s_branch L_next")
        LB("L_rare")
        A("v_max_f32 v10, v10, v14")
        A("v_mov_b32 v56, v10")
        A("s_nop 1")
        A("v_permlane32_swap_b32 v56, v10")
        A("s_nop 1")
        A("v_max_f32 v10, v10, v56")
        A("v_mov_b32 v56, v10")
        A("s_nop 1")
        A("v_permlane16_swap_b32 v56, v10")
        A("s_nop 1")
        A("v_max_f32 v10, v10, v56")
        A("v_sub_f32 v56, v14, v10")
        A("v_mul_f32 v56, s59, v56")
        A("v_exp_f32 v56, v56")
        A("v_mov_b32 v14, v10")
        A("v_mul_f32 v11, s59, v10")
        A("v_mul_f32 v15, v15, v56")
        A("v_readlane_b32 s60, v56, 0")
        A("v_readlane_b32 s61, v56, 8")
        A("s_mov_b32 s62, 0")
        A("s_mov_b32 s63, -1")
        A("v_mov_b32 v57, s60")
        A("s_mov_b64 exec, s[62:63]")
        A("v_mov_b32 v57, s61")
        A("s_mov_b64 exec, -1")
        for r in range(8):
            A(f"v_mul_f32 v{24+r}, v57, v{24+r}")
        if NSM:
            A("s_cmp_lg_u32 s73, 0")
            A("s_cbranch_scc1 L_back_sm")
        A("s_branch L_back")
        LB("L_dyn_done")
    A("v_mov_b32 v10, v15")
    A("v_lshrrev_b32 v12, 1, v9")
    A("v_lshlrev_b32 v12, 10, v12")
    A("v_permlane32_swap_b32 v10, v15")
    A("v_lshl_add_u32 v12, v8, 5, v12")
    A("v_add_f32 v15, v10, v15")
    A("v_mov_b32 v10, v15")
    A("v_and_b32 v13, 1, v9")
    A("v_lshl_add_u32 v12, v13, 4, v12")
    A("v_permlane16_swap_b32 v10, v15")
    A("s_lshl_b32 s58, s3, 11")
    A("v_add_u32 v12, s58, v12")
    A("v_add_f32 v15, v10, v15")
    A("s_lshl_b32 s58, s3, 4")
    A("v_and_b32 v13, 8, v1")
    A("v_add_u32 v13, s58, v13")
    A(f"ds_write_b128 v12, v[24:27] offset:{L_O}")
    A(f"ds_write_b128 v12, v[28:31] offset:{L_O+512}")
    A("s_mov_b64 exec, 0x101")
    A(f"ds_write_b64 v13, v[14:15] offset:{L_ML}")
    A("s_mov_b64 exec, -1")
    stamp(4)
    A("s_waitcnt lgkmcnt(0)")
    A("s_barrier")
    A("s_cmp_lg_u32 s3, 0")
    A("s_cbranch_scc1 L_fin")
    A("s_cmp_ge_u32 s31, 28")
    A("s_cbranch_scc1 L_fin")
    srd(44, 22, 23, 1792)
    A("v_lshrrev_b32 v10, 2, v1")
    A(f"v_mul_u32_u24 v10, {OB2S}, v10")
    A("v_and_b32 v11, 3, v1")
    A("v_lshl_add_u32 v10, v11, 4, v10")
    A(f"s_mul_i32 s58, s30, {128*OB2S}")
    A("s_lshl_b32 s61, s31, 6")
    A("s_add_u32 s58, s58, s61")
    A(f"s_add_u32 s58, s58, {OB2}")
    A(f"s_mov_b32 s60, {spin_max}")
    for t in range(8):
        A(f"s_mov_b64 s[{64+2*t}:{65+2*t}], -1")
    if pp2:
        for k in range(32):
            A(f"v_mov_b32 v{96+k}, -1")
        for t in range(8):
            A(f"s_add_u32 s{48+t}, s58, {t*16*OB2S}")
        A("s_barrier")
        LB("L_poll2")
        for t in range(8):
            A(f"s_mov_b64 exec, s[{64+2*t}:{65+2*t}]")
            A(f"s_cbranch_execz L_p2s{t}")
            A(f"buffer_load_dwordx4 v[{96+4*t}:{99+4*t}], v10, s[40:43], s{48+t} offen sc1")
            LB(f"L_p2s{t}")
        A(f"s_waitcnt vmcnt({pp2})")
        A("s_mov_b64 s[62:63], 0")
        for t in range(8):
            A(f"s_mov_b64 exec, s[{64+2*t}:{65+2*t}]")
            A(f"s_cbranch_execz L_p2c{t}")
            for k in range(4):
                A(f"v_mov_b32 v{64+4*t+k}, v{96+4*t+k}")
            A(f"v_max3_u32 v12, v{64+4*t}, v{65+4*t}, v{66+4*t}")
            A(f"v_max_u32 v12, v12, v{67+4*t}")
            A(f"v_cmp_eq_u32 s[{64+2*t}:{65+2*t}], -1, v12")
            A(f"s_or_b64 s[62:63], s[62:63], s[{64+2*t}:{65+2*t}]")
            LB(f"L_p2c{t}")
        A("s_mov_b64 exec, -1")
        A("s_cmp_eq_u64 s[62:63], 0")
        A("s_cbranch_scc1 L_poll2_done")
        A("s_sleep 1")
        A("s_sub_u32 s60, s60, 1")
        A("s_cmp_lg_u32 s60, 0")
        A("s_cbranch_scc1 L_poll2")
    else:
        A("s_barrier")
        LB("L_poll2")
        for t in range(8):
            A(f"s_mov_b64 exec, s[{64+2*t}:{65+2*t}]")
            A(f"s_cbranch_execz L_p2s{t}")
            A(f"s_add_u32 s61, s58, {t*16*OB2S}")
            A(f"buffer_load_dwordx4 v[{64+4*t}:{67+4*t}], v10, s[40:43], s61 offen sc1")
            LB(f"L_p2s{t}")
        A("s_mov_b64 exec, -1")
        A("s_waitcnt vmcnt(0)")
        for t in range(8):
            A(f"v_max3_u32 v{12+(t&1)}, v{64+4*t}, v{65+4*t}, v{66+4*t}")
            A(f"v_max_u32 v{12+(t&1)}, v{12+(t&1)}, v{67+4*t}")
            A(f"v_cmp_eq_u32 s[{64+2*t}:{65+2*t}], -1, v{12+(t&1)}")
        A("s_or_b64 s[62:63], s[64:65], s[66:67]")
        for t in range(2, 8):
            A(f"s_or_b64 s[62:63], s[62:63], s[{64+2*t}:{65+2*t}]")
        A("s_cbranch_scc0 L_poll2_done")
        A(f"s_sleep {sl2}")
        A("s_sub_u32 s60, s60, 1")
        A("s_cmp_lg_u32 s60, 0")
        A("s_cbranch_scc1 L_poll2")
    LB("L_poll2_done")
    stamp(5)
    for step in (16, 8, 4):
        for k in range(step):
            A(f"v_add_f32 v{64+k}, v{64+k}, v{64+step+k}")
    A("s_nop 1")
    A("v_permlane32_swap_b32 v64, v66")
    A("v_permlane32_swap_b32 v65, v67")
    A("s_nop 1")
    A("v_add_f32 v64, v64, v66")
    A("v_add_f32 v65, v65, v67")
    A("v_mov_b32 v66, v64")
    A("v_mov_b32 v67, v65")
    A("s_nop 1")
    A("v_permlane16_swap_b32 v66, v64")
    A("v_permlane16_swap_b32 v67, v65")
    A("s_nop 1")
    A("v_add_f32 v64, v64, v66")
    A("v_add_f32 v65, v65, v67")
    A("s_nop 1")
    A(f"v_add_f32_dpp v64, v64, v64 row_ror:8 {DPP}")
    A(f"v_add_f32_dpp v65, v65, v65 row_ror:8 {DPP}")
    A("s_nop 1")
    A(f"v_add_f32_dpp v64, v64, v64 row_ror:4 {DPP}")
    A(f"v_add_f32_dpp v65, v65, v65 row_ror:4 {DPP}")
    A("v_lshrrev_b32 v12, 5, v1")
    A("v_lshlrev_b32 v12, 2, v12")
    A("v_lshl_add_u32 v12, v11, 3, v12")
    A("v_cvt_pk_bf16_f32 v64, v64, v65")
    A("s_mul_i32 s58, s30, 896")
    A("s_lshl_b32 s61, s31, 5")
    A("s_add_u32 s58, s58, s61")
    A("s_mov_b32 s60, 15")
    A("s_mov_b32 s61, 15")
    if tfix:
        if tfix == 150:
            A("s_getreg_b32 s98, hwreg(HW_REG_XCC_ID)")
            A("s_and_b32 s98, s98, 7")
            A("s_and_b32 s99, s2, 7")
            A("s_cmp_eq_u32 s98, s99")
            A("s_cbranch_scc1 L_tfix_skip")
        if tfix == 160:
            A("s_or_b32 s98, s6, s8")
            A("s_and_b32 s98, s98, 0x1fffff")
            A("s_cmp_eq_u32 s98, 0")
            A("s_cbranch_scc1 L_tfix_skip")
        LB("L_tfix")
        A("s_memrealtime s[98:99]")
        A("s_waitcnt lgkmcnt(0)")
        A("s_sub_u32 s98, s98, s96")
        A(f"s_cmp_lt_u32 s98, {tfix*100}")
        A("s_cbranch_scc1 L_tfix")
        LB("L_tfix_skip")
    A("s_mov_b64 exec, s[60:61]")
    A("buffer_store_dword v64, v12, s[44:47], s58 offen")
    A("s_mov_b64 exec, -1")
    stamp(6)
    if prof == 2: dump_dbg([(6,4)])
    LB("L_fin")
    dump_stamps("stream")
    A("s_endpgm")

    LB("L_service")
    stamp('service')
    A("s_mul_i32 s60, s30, 896")
    A("s_add_u32 s44, s4, s60")
    A("s_addc_u32 s45, s5, 0")
    A("s_mov_b32 s46, 896")
    A("s_mov_b32 s47, 0x00020000")
    A("s_mov_b32 s51, 0x00020000")
    def clears():
        if noclr: A("s_mov_b64 exec, 1")
        for k in range(2):
            A(f"buffer_store_dwordx4 v[48:51], v14, s[40:43], s57 offen offset:{1024*k} sc1")
        A("buffer_store_dwordx4 v[48:51], v14, s[40:43], s58 offen sc1")
        A("s_mov_b32 s70, -1")
        A("s_mov_b32 s71, 0xffff")
        if not noclr: A("s_mov_b64 exec, s[70:71]")
        A("buffer_store_dwordx4 v[48:51], v14, s[40:43], s58 offen offset:1024 sc1")
        A("s_mov_b64 exec, 0xffff")
        A("buffer_store_dwordx4 v[48:51], v14, s[40:43], s57 offen offset:2048 sc1")
        A("s_mov_b64 exec, -1")
        A("s_cmp_lg_u32 s29, 0")
        A("s_cbranch_scc1 L_notinit")
        A("s_lshl_b32 s70, s28, 12")
        A(f"s_add_u32 s70, s70, {TICK}")
        A("s_mov_b64 exec, 1")
        A("buffer_store_dword v15, v15, s[40:43], s70 offen sc1")
        A("s_mov_b64 exec, -1")
        LB("L_notinit")
    for k in range(4):
        A(f"v_mov_b32 v{48+k}, -1")
    A("v_lshlrev_b32 v14, 4, v1")
    A(f"s_mul_i32 s57, s2, {OB1S}")
    A(f"s_add_u32 s57, s57, {OB1}")
    A(f"s_mul_i32 s58, s2, {OB2S}")
    A(f"s_add_u32 s58, s58, {OB2}")
    A("v_mov_b32 v15, 0")
    A(f"ds_write_b32 v15, v15 offset:{L_CNT}")
    A(f"ds_write_b128 v14, v[48:51] offset:{L_WIN}")
    if not lateclr: clears()
    A("s_mov_b32 s60, 0x05040100")
    A("s_mov_b32 s61, 0x07060302")
    A("s_mov_b32 s62, 0x000f000f")
    A("s_mov_b32 s63, 0x000f000f")
    stamp(1)
    A("s_waitcnt lgkmcnt(0)")
    A("s_barrier")
    for w in range(4):
        A(f"ds_read_b64 v[{16+2*w}:{17+2*w}], v12 offset:{L_QP+128*w}")
    A(f"s_waitcnt vmcnt({0 if lateclr else 5})")
    A("v_add_u32 v72, 0x10000, v72")
    A("v_add_u32 v73, 0x10000, v73")
    A("v_and_b32 v72, 0xffff0000, v72")
    A("v_and_b32 v73, 0xffff0000, v73")
    A("s_waitcnt lgkmcnt(0)")
    A("v_add_f32 v16, v16, v18")
    A("v_add_f32 v17, v17, v19")
    A("v_add_f32 v20, v20, v22")
    A("v_add_f32 v21, v21, v23")
    A("v_add_f32 v16, v16, v20")
    A("v_add_f32 v17, v17, v21")
    A("v_cvt_pk_bf16_f32 v16, v16, 0")
    A("v_cvt_pk_bf16_f32 v17, v17, 0")
    A("v_or_b32 v72, v72, v16")
    A("v_or_b32 v73, v73, v17")
    A("s_mov_b64 exec, s[62:63]")
    A(f"buffer_store_dwordx2 v[72:73], v12, s[40:43], s59 offen offset:{QBOX} sc1")
    A("s_mov_b64 exec, -1")
    stamp(2)
    if lateclr: clears()
    A("s_lshl_b32 s65, s30, 6")
    A("s_add_u32 s65, s65, 128")
    A("s_mov_b32 s68, 1")
    A("s_mov_b32 s59, 0")
    A("s_mov_b32 s66, 0x10000")
    if ackf:
        A("s_waitcnt vmcnt(0)")
        A("s_atomic_add s68, s[24:25], s65")
    LB("L_pollq")
    A(f"buffer_load_dwordx4 v[76:79], v10, s[40:43], s56 offen offset:{QBOX} sc1")
    A(f"buffer_load_dwordx4 v[80:83], v10, s[40:43], s56 offen offset:{QBOX+16} sc1")
    A("s_waitcnt vmcnt(0)")
    if not ackf:
        A("s_cmp_lg_u32 s59, 0")
        A("s_cbranch_scc1 L_pollq_arrived")
        A("s_atomic_add s68, s[24:25], s65")
        LB("L_pollq_arrived")
    for k in range(8):
        A(f"v_xor_b32 v{84+k}, v{64+k}, v{76+k}")
    A("v_min3_u32 v84, v84, v85, v86")
    A("v_min3_u32 v87, v87, v88, v89")
    A("v_min3_u32 v84, v84, v90, v91")
    A("v_min_u32 v84, v84, v87")
    A("v_cmp_gt_u32 vcc, s66, v84")
    A("s_cbranch_vccz L_pollq_done")
    A("s_mov_b64 exec, vcc")
    A("s_add_u32 s59, s59, 1")
    A(f"s_sleep {slq}")
    A(f"s_cmp_lt_u32 s59, {fbk}")
    A("s_cbranch_scc1 L_pollq")
    A("s_mov_b32 s70, 0")
    A("s_atomic_add s70, s[24:25], s65 glc")
    A("s_waitcnt lgkmcnt(0)")
    A("s_cmp_ge_u32 s70, 128")
    A("s_cselect_b32 s66, 0, s66")
    A(f"s_cmp_lt_u32 s59, {spin_max}")
    A("s_cbranch_scc1 L_pollq")
    LB("L_pollq_done")
    A("s_mov_b64 exec, -1")
    stamp(3)
    for k in range(4):
        A(f"v_perm_b32 v{48+k}, v{77+2*k}, v{76+2*k}, s60")
    A(f"ds_write_b128 v14, v[48:51] offset:{L_Q}")
    A("s_waitcnt lgkmcnt(0)")
    A("s_barrier")
    stamp(4)
    make_masks(56, 57)
    A("s_and_b32 s66, s69, 7")
    A("s_mul_i32 s66, s66, 14")
    A("s_lshr_b32 s67, s69, 3")
    A("s_add_u32 s66, s66, s67")
    A("s_cmp_lt_u32 s69, 112")
    A(f"s_cselect_b32 s59, {0 if nobg&1 else 448*1792*2}, 0")
    A("s_mov_b32 s48, s16"); A("s_mov_b32 s49, s17"); A("s_mov_b32 s50, s59")
    srd(32, 18, 19, "s59")
    srd(36, 20, 21, 896)
    A("v_lshrrev_b32 v10, 1, v1")
    A("v_and_b32 v11, 1, v1")
    A("v_mul_u32_u24 v12, 28, v10")
    A(f"v_mul_u32_u24 v13, {14*3584}, v10")
    A("v_lshl_add_u32 v13, v11, 4, v13")
    A(f"buffer_load_dwordx4 v[{XR}:{XR+3}], v12, s[44:47], 0 offen")
    A(f"buffer_load_dwordx3 v[{XR+4}:{XR+6}], v12, s[44:47], 0 offen offset:16")
    A("buffer_load_dwordx4 v[40:43], v14, s[44:47], 0 offen")
    A("buffer_load_dwordx4 v[44:47], v14, s[36:39], 0 offen")
    A("s_lshl_b32 s56, s66, 5")
    cnt = [0]
    def thr():
        cnt[0] += 1
        if cnt[0] % SB == 0: A("s_waitcnt vmcnt(0)")
    for t in range(14):
        A(f"buffer_load_dwordx4 v[{64+4*t}:{67+4*t}], v13, s[48:51], s56 offen {'nt' if wnt & 2 else ''}")
        A("s_add_u32 s56, s56, 3584")
        thr()
    for k in range(8):
        A(f"v_mov_b32 v{ACC+k}, 0")
    matvec_pairs(7, 64, XR, 0)
    A("s_nop 1")
    for k in range(2):
        A(f"v_add_f32_dpp v{ACC+k}, v{ACC+k}, v{ACC+k} row_ror:2 {DPP}")
    A(f"s_mov_b32 s59, {f2u(-math.log2(math.e)):#x}")
    for k in range(2):
        A(f"v_cvt_pk_bf16_f32 v{ACC+k}, 0, v{ACC+k}")
    for k in range(2):
        A(f"v_mul_f32 v{ACC+2+k}, s59, v{ACC+k}")
    for k in range(2):
        A(f"v_exp_f32 v{ACC+2+k}, v{ACC+2+k}")
    A("s_nop 0")
    for k in range(2):
        A(f"v_add_f32 v{ACC+2+k}, 1.0, v{ACC+2+k}")
    for k in range(2):
        A(f"v_rcp_f32 v{ACC+2+k}, v{ACC+2+k}")
    A("s_nop 0")
    for k in range(2):
        A(f"v_mul_f32 v{ACC+k}, v{ACC+k}, v{ACC+2+k}")
    A("v_lshlrev_b32 v12, 5, v11")
    A("v_lshl_add_u32 v12, v9, 3, v12")
    A("s_mov_b32 s62, 0x00030003")
    A("s_mov_b32 s63, 0x00030003")
    A("s_mov_b64 exec, s[62:63]")
    A(f"ds_write_b64 v12, v[{ACC}:{ACC+1}] offset:{L_H}")
    A("s_mov_b64 exec, -1")
    A("v_lshlrev_b32 v12, 4, v9")
    A("s_waitcnt lgkmcnt(0)")
    A(f"ds_read_b128 v[{ACC}:{ACC+3}], v12 offset:{L_H}")
    for k in range(4):
        A(f"v_lshlrev_b32 v52, 16, v{40+k}")
        A(f"v_lshlrev_b32 v53, 16, v{44+k}")
        A(f"v_and_b32 v54, 0xffff0000, v{40+k}")
        A(f"v_and_b32 v55, 0xffff0000, v{44+k}")
        A("v_mul_f32 v52, v52, v53")
        A("v_mul_f32 v54, v54, v55")
        A("v_cvt_pk_bf16_f32 v52, 0, v52")
        A("v_cvt_pk_bf16_f32 v54, 0, v54")
        if k == 0:
            A("v_add_f32 v56, v52, v54")
        else:
            A("v_add_f32 v56, v56, v52")
            A("v_add_f32 v56, v56, v54")
    for rr in (8, 4, 2, 1):
        A("s_nop 1")
        A(f"v_add_f32_dpp v56, v56, v56 row_ror:{rr} {DPP}")
    A("v_mov_b32 v57, v56")
    A("s_nop 1")
    A("v_permlane32_swap_b32 v57, v56")
    A("s_nop 1")
    A("v_add_f32 v56, v56, v57")
    A("v_mov_b32 v57, v56")
    A("s_nop 1")
    A("v_permlane16_swap_b32 v57, v56")
    A("s_nop 1")
    A("v_add_f32 v56, v56, v57")
    A("v_cvt_pk_bf16_f32 v56, 0, v56")
    A("v_mul_f32 v56, s59, v56")
    A("v_exp_f32 v56, v56")
    A("s_nop 0")
    A("v_add_f32 v56, 1.0, v56")
    A("v_rcp_f32 v56, v56")
    A("s_nop 0")
    A("v_cvt_pk_bf16_f32 v2, 0, v56")
    A("v_sub_f32 v3, 1.0, v2")
    A("v_cvt_pk_bf16_f32 v3, 0, v3")
    A("s_waitcnt lgkmcnt(0) vmcnt(0)")
    for t in range(4):
        A(f"v_cvt_pk_bf16_f32 v{ACC+t}, v{ACC+t}, v{ACC+t}")
    for t in range(4):
        for k in range(4):
            A(f"v_and_b32 v{24+4*t+k}, v{ACC+t}, v{4+k}")
    def part_pollg():
        A(f"s_mov_b32 s56, {spin_max}")
        LB("L_pollg")
        A("s_mov_b32 s70, 0")
        A("s_atomic_add s70, s[24:25], s65 glc")
        A("s_waitcnt lgkmcnt(0)")
        A("s_cmp_ge_u32 s70, 128")
        A("s_cbranch_scc1 L_pollg_done")
        A("s_sleep 16")
        A("s_sub_u32 s56, s56, 1")
        A("s_cmp_lg_u32 s56, 0")
        A("s_cbranch_scc1 L_pollg")
        LB("L_pollg_done")
    srd(48, 12, 13, 0 if nobg&2 else 4096*448*2)
    A("v_mul_u32_u24 v18, 3584, v9")
    A("v_lshl_add_u32 v18, v8, 4, v18")
    A("v_mul_u32_u24 v19, 7168, v9")
    A("v_lshl_add_u32 v19, v8, 4, v19")
    A(f"s_mul_i32 s66, s66, {16*896}")
    A(f"s_mul_i32 s67, s31, {32*896}")
    A(f"s_add_u32 s68, s67, {4*896}")
    A(f"s_mov_b32 s59, {f2u(C_SCALE):#x}")
    A("v_lshlrev_b32 v10, 5, v1")
    A("v_lshrrev_b32 v11, 5, v1")
    A("v_lshlrev_b32 v11, 3, v11")
    A("v_lshrrev_b32 v15, 2, v1")
    A("v_mul_u32_u24 v15, 144, v15")
    A("v_and_b32 v12, 3, v1")
    A("v_lshl_add_u32 v15, v12, 5, v15")
    A(f"v_mul_u32_u24 v12, {OB1S}, v8")
    A("v_lshl_add_u32 v13, v9, 5, v12")
    A(f"s_mul_i32 s60, s28, {16*OB1S}")
    A("s_mul_i32 s61, s29, 144")
    A("s_add_u32 s60, s60, s61")
    A(f"s_add_u32 s60, s60, {OB1}")
    A("v_lshlrev_b32 v14, 5, v8")
    A("v_lshl_add_u32 v14, v9, 4, v14")
    part_pollg()
    def part_w():
        for t in range(4):
            for cb in range(4):
                b = 64 + 16*t + 4*cb
                A(f"buffer_load_dwordx4 v[{b}:{b+3}], v18, s[32:35], s66 offen offset:{t*896+cb*256} {'nt' if wnt & 2 else ''}")
                if not defer: thr()
        for t in range(8):
            for cb in range(4):
                b = 128 + 16*t + 4*cb
                A(f"buffer_load_dwordx4 v[{b}:{b+3}], v19, s[48:51], s{67 + (t>>2)} offen offset:{(t&3)*896+cb*256} {'nt' if wnt & 2 else ''}")
                if not defer: thr()
    def part_ffn2():
        A("s_waitcnt vmcnt(32)")
        for t in range(4):
            for cb in range(4):
                b = 64 + 16*t + 4*cb
                d = 40 + 4*cb
                c = "0" if t == 0 else f"v[{d}:{d+3}]"
                A(f"v_mfma_f32_16x16x32_bf16 v[{d}:{d+3}], v[{24+4*t}:{27+4*t}], v[{b}:{b+3}], {c}")
        A("s_nop 7")
        for k in range(16):
            A(f"v_mul_f32 v{40+k}, v3, v{40+k}")
    if not defer:
        part_w()
        part_ffn2()
    if NS < 32:
        A("s_lshl_b32 s74, s28, 12")
        A(f"s_add_u32 s74, s74, {TICK}")
        A("s_add_u32 s74, s26, s74")
        A("s_addc_u32 s75, s27, 0")
        A("s_mov_b32 s71, 0")
        A("s_mov_b32 s72, 0")
        A("s_mov_b32 s73, 0")
        A("v_mov_b32 v16, 0")
        A(f"s_mov_b32 s56, {spin_max*4}")
        LB("L_tk")
        A(f"ds_read_b32 v17, v16 offset:{L_CNT}")
        A("s_waitcnt lgkmcnt(0)")
        A("v_readfirstlane_b32 s70, v17")
        A("s_cmp_gt_u32 s70, s73")
        A("s_cbranch_scc1 L_tk_fetch")
        A(f"s_sleep {dsl}")
        A("s_sub_u32 s56, s56, 1")
        A("s_cmp_lg_u32 s56, 0")
        A("s_cbranch_scc1 L_tk")
        A("s_branch L_tk_done")
        LB("L_tk_fetch")
        A("s_mov_b32 s70, 1")
        A("s_atomic_add s70, s[74:75], 0 glc")
        A("v_mov_b32 v17, s71")
        A("s_waitcnt lgkmcnt(0)")
        A("v_mov_b32 v20, s70")
        A("s_add_u32 s71, s71, 4")
        A(f"s_sub_u32 s73, s71, {la}")
        A(f"ds_write_b32 v17, v20 offset:{L_WIN}")
        if defer:
            A(f"s_cmp_lt_u32 s70, {defer}")
            A("s_cbranch_scc1 L_tk")
            A("s_cmp_lg_u32 s72, 0")
            A("s_cbranch_scc1 L_tk_w")
            A("s_mov_b32 s72, 1")
            stamp(1)
            part_w()
            LB("L_tk_w")
        A(f"s_cmp_lt_u32 s70, {NTK - RET}")
        A("s_cbranch_scc1 L_tk")
        A("v_mov_b32 v17, s71")
        A("v_mov_b32 v20, 0x10000")
        A(f"ds_write_b32 v17, v20 offset:{L_WIN}")
        LB("L_tk_done")
    if defer:
        assert defer <= NTK - RET
        part_ffn2()
    A("s_waitcnt vmcnt(0) lgkmcnt(0)")
    if pp1:
        for k in range(8):
            A(f"v_mov_b32 v{120+k}, -1")
    if defer: stamp(2)
    A("s_barrier")
    stamp(5)
    if prof: A("s_waitcnt lgkmcnt(0)")
    for w in range(4):
        A(f"ds_read_b64 v[{56+2*w}:{57+2*w}], v11 offset:{L_ML+16*w}")
    for w in range(4):
        A(f"ds_read_b128 v[{64+8*w}:{67+8*w}], v10 offset:{L_O+2048*w}")
        A(f"ds_read_b128 v[{68+8*w}:{71+8*w}], v10 offset:{L_O+2048*w+16}")
    A("s_waitcnt lgkmcnt(8)")
    A("v_max3_f32 v16, v56, v58, v60")
    A("v_max_f32 v16, v16, v62")
    for w in range(4):
        A(f"v_sub_f32 v{56+2*w}, v{56+2*w}, v16")
    for w in range(4):
        A(f"v_mul_f32 v{56+2*w}, s59, v{56+2*w}")
    for w in range(4):
        A(f"v_exp_f32 v{56+2*w}, v{56+2*w}")
    A("s_nop 0")
    A("v_mul_f32 v17, v56, v57")
    for w in range(1, 4):
        A(f"v_fmac_f32 v17, v{56+2*w}, v{57+2*w}")
    A("s_waitcnt lgkmcnt(0)")
    for k in range(8):
        A(f"v_mul_f32 v{64+k}, v56, v{64+k}")
    for w in range(1, 4):
        for k in range(8):
            A(f"v_fmac_f32 v{64+k}, v{56+2*w}, v{64+8*w+k}")
    if pp1:
        A("v_mov_b32 v82, -1")
        A("v_mov_b32 v83, -1")
    A("buffer_store_dwordx4 v[64:67], v15, s[40:43], s57 offen sc1")
    A("buffer_store_dwordx4 v[68:71], v15, s[40:43], s57 offen offset:16 sc1")
    A("s_mov_b32 s62, 0x11111111")
    A("s_mov_b32 s63, 0x11111111")
    A("s_mov_b64 exec, s[62:63]")
    A("buffer_store_dwordx2 v[16:17], v15, s[40:43], s57 offen offset:128 sc1")
    A("s_mov_b64 exec, -1")
    A(f"s_mov_b32 s56, {spin_max}")
    if pp1:
        LB("L_poll1")
        A("buffer_load_dwordx4 v[120:123], v13, s[40:43], s60 offen sc1")
        A("buffer_load_dwordx4 v[124:127], v13, s[40:43], s60 offen offset:16 sc1")
        A("buffer_load_dwordx2 v[82:83], v12, s[40:43], s60 offen offset:128 sc1")
        A(f"s_waitcnt vmcnt({3*(pp1-1)})")
        for k in range(8):
            A(f"v_mov_b32 v{72+k}, v{120+k}")
        A("v_mov_b32 v80, v82")
        A("v_mov_b32 v81, v83")
        A("v_max3_u32 v18, v72, v73, v74")
        A("v_max3_u32 v19, v75, v76, v77")
        A("v_max3_u32 v18, v18, v78, v79")
        A("v_max3_u32 v19, v19, v80, v81")
        A("v_max_u32 v18, v18, v19")
        A("v_cmp_eq_u32 vcc, -1, v18")
        A("s_cbranch_vccz L_poll1_done")
        A("s_mov_b64 exec, vcc")
        A("s_bcnt1_i32_b64 s61, vcc")
        A("s_cmp_le_u32 s61, 12")
        A("s_cbranch_scc1 L_poll1_fast")
        A("s_waitcnt vmcnt(0)")
        A("s_sleep 8")
        LB("L_poll1_fast")
        A("s_sub_u32 s56, s56, 1")
        A("s_cmp_lg_u32 s56, 0")
        A("s_cbranch_scc1 L_poll1")
    else:
        LB("L_poll1")
        A("buffer_load_dwordx4 v[72:75], v13, s[40:43], s60 offen sc1")
        A("buffer_load_dwordx4 v[76:79], v13, s[40:43], s60 offen offset:16 sc1")
        A("buffer_load_dwordx2 v[80:81], v12, s[40:43], s60 offen offset:128 sc1")
        A("s_waitcnt vmcnt(0)")
        A("v_max3_u32 v18, v72, v73, v74")
        A("v_max3_u32 v19, v75, v76, v77")
        A("v_max3_u32 v18, v18, v78, v79")
        A("v_max3_u32 v19, v19, v80, v81")
        A("v_max_u32 v18, v18, v19")
        A("v_cmp_eq_u32 vcc, -1, v18")
        A("s_cbranch_vccz L_poll1_done")
        A("s_mov_b64 exec, vcc")
        if adapt:
            A("s_bcnt1_i32_b64 s61, vcc")
            A("s_cmp_le_u32 s61, 12")
            A("s_cbranch_scc1 L_poll1_fast")
            A("s_sleep 16")
            LB("L_poll1_fast")
            A("s_sleep 1")
        else:
            A(f"s_sleep {sl1}")
        A("s_sub_u32 s56, s56, 1")
        A("s_cmp_lg_u32 s56, 0")
        A("s_cbranch_scc1 L_poll1")
    LB("L_poll1_done")
    A("s_mov_b64 exec, -1")
    A("s_barrier")
    stamp(6)
    A(f"v_max_f32_dpp v18, v80, v80 row_ror:8 {DPP}")
    for rr in (4, 2, 1):
        A("s_nop 1")
        A(f"v_max_f32_dpp v18, v18, v18 row_ror:{rr} {DPP}")
    A("v_sub_f32 v18, v80, v18")
    A("v_mul_f32 v18, s59, v18")
    A("v_exp_f32 v18, v18")
    A("s_nop 0")
    A("v_mul_f32 v80, v18, v81")
    for k in range(8):
        A(f"v_mul_f32 v{72+k}, v18, v{72+k}")
    for rr in (8, 4, 2, 1):
        for k in range(9):
            A(f"v_add_f32_dpp v{72+k}, v{72+k}, v{72+k} row_ror:{rr} {DPP}")
    A("v_rcp_f32 v80, v80")
    A("s_nop 0")
    for k in range(8):
        A(f"v_mul_f32 v{72+k}, v80, v{72+k}")
    for k in range(8):
        A(f"v_cvt_pk_bf16_f32 v{72+k}, v{72+k}, v{72+k}")
    for t in range(8):
        for k in range(4):
            A(f"v_and_b32 v{88+4*t+k}, v{72+t}, v{4+k}")
        if t >= 1:
            tt = t - 1
            for cb in range(4):
                b = 128 + 16*tt + 4*cb
                d = 16 + 4*cb
                c = "0" if tt == 0 else f"v[{d}:{d+3}]"
                A(f"v_mfma_f32_16x16x32_bf16 v[{d}:{d+3}], v[{88+4*tt}:{91+4*tt}], v[{b}:{b+3}], {c}")
    tt = 7
    for cb in range(4):
        b = 128 + 16*tt + 4*cb
        d = 16 + 4*cb
        A(f"v_mfma_f32_16x16x32_bf16 v[{d}:{d+3}], v[{88+4*tt}:{91+4*tt}], v[{b}:{b+3}], v[{d}:{d+3}]")
    A("s_mov_b32 s62, -1")
    A("s_mov_b32 s63, 0")
    A("s_nop 3")
    for cb in range(4):
        for k in range(4):
            A(f"v_fmac_f32 v{40+4*cb+k}, v2, v{16+4*cb+k}")
        if cb == 0:
            A("s_mov_b64 exec, s[62:63]")
        if cb == 3:
            A("s_mov_b32 s62, 0x00ff00ff")
            A("s_mov_b64 exec, s[62:63]")
        A(f"buffer_store_dwordx4 v[{40+4*cb}:{43+4*cb}], v14, s[40:43], s58 offen offset:{512*cb} sc1")
    A("s_mov_b64 exec, -1")
    stamp(7)
    dump_stamps("service")
    LB("L_end")
    A("s_endpgm")
    L.append('.section .rodata,"a"')
    L.append(".p2align 6")
    L.append(f".amdhsa_kernel {NAME}_kernel")
    L.append("  .amdhsa_next_free_vgpr 256")
    L.append("  .amdhsa_next_free_sgpr 100")
    L.append("  .amdhsa_accum_offset 256")
    L.append("  .amdhsa_group_segment_fixed_size 0")
    L.append("  .amdhsa_kernarg_size 96")
    L.append("  .amdhsa_user_sgpr_count 2")
    L.append("  .amdhsa_user_sgpr_kernarg_segment_ptr 1")
    L.append("  .amdhsa_system_sgpr_workgroup_id_x 1")
    L.append(".end_amdhsa_kernel")
    return "\n".join(L) + "\n"


if __name__ == "__main__":
    out = sys.argv[1]
    kw = {}
    for a in sys.argv[2:]:
        k, v = a.split("=")
        kw[k] = int(v) if (v.isdigit() and k != 'gx') else v
    open(out, "w").write(gen(**kw))
```

```python
import sys, math, struct

NAME = "gated_mix__gqa_block_cached__dense_activation_silu__decode"
HEADER = open("cdna_kernels/" + NAME + ".s.ref").read().split("; Override launch")[0]

QBOX = 0x0
TICK = 0x10000
OB1 = 0x40000
OB1S = 2304
OB2 = 0x200000
OB2S = 1792
STAMP = 0x20000000
C_SCALE = (1.0 / 16.0) * math.log2(math.e)
def f2u(x): return struct.unpack("<I", struct.pack("<f", x))[0]


def gen(prof=0, NSW=3, NS=30, NPRE=6, kip=1, vip=1, RET=8, fbk=4, SB=8, spin_max=200000, ldsx=0, dseq=0, PF2=0):
    NT = NS*4 // NSW
    assert NS*4 % NSW == 0 and NSW in (3, 4)
    SSTR = NT*128
    L_Q = 0
    L_S = 1024
    L_O = L_S + NSW*SSTR
    L_ML = L_O + 2048*NSW
    L_H = L_ML + 64
    L_QP = L_H + 64
    L_CNT = L_QP + 512
    L_WIN = L_CNT + 64
    LDS_BYTES = L_WIN + 1024
    NTK = (32-NS)*16
    L = []
    A = lambda s: L.append("  " + s)
    LB = lambda s: L.append(s + ":")
    C = lambda s: L.append("  ; " + s)
    DPP = "row_mask:0xf bank_mask:0xf"
    ACC, XR = 16, 32

    def stamp(k):
        if prof: A(f"s_memrealtime s[{80+2*k}:{81+2*k}]")
    def dump_stamps(svc):
        if not prof: return
        A("s_waitcnt lgkmcnt(0)")
        A("s_lshl_b32 s56, s2, 3")
        A(f"s_add_u32 s56, s56, {'4' if svc else 's3'}")
        A("s_lshl_b32 s56, s56, 6")
        A(f"s_add_u32 s56, s56, {STAMP}")
        A("s_mov_b64 exec, 1")
        A("v_mov_b32 v60, 0")
        for q in range(4):
            for j in range(4):
                A(f"v_mov_b32 v{56+j}, s{80+4*q+j}")
            A(f"buffer_store_dwordx4 v[56:59], v60, s[40:43], s56 offen offset:{16*q}")
            A("s_nop 1")
        A("s_mov_b64 exec, -1")
    def srd(d, lo, hi, n):
        A(f"s_mov_b32 s{d}, s{lo}")
        A(f"s_mov_b32 s{d+1}, s{hi}")
        A(f"s_mov_b32 s{d+2}, {n}")
        A(f"s_mov_b32 s{d+3}, 0x00020000")
    def matvec_pairs(npairs, wbase, xbase, tail_ops):
        for u in range(npairs):
            A(f"s_waitcnt vmcnt({2*npairs - (2*u+2) + tail_ops})")
            w0 = wbase + 8*u; w1 = w0 + 4
            for k in range(4):
                A(f"v_perm_b32 v{52+k}, v{w1+k}, v{w0+k}, s60")
                A(f"v_perm_b32 v{56+k}, v{w1+k}, v{w0+k}, s61")
            for k in range(4):
                A(f"v_dot2c_f32_bf16 v{ACC+2*k}, v{52+k}, v{xbase+u}")
                A(f"v_dot2c_f32_bf16 v{ACC+2*k+1}, v{56+k}, v{xbase+u}")
        A("s_nop 3")
        for k in range(4):
            A(f"v_permlane32_swap_b32 v{ACC+k}, v{ACC+4+k}")
        A("s_nop 1")
        for k in range(4):
            A(f"v_add_f32 v{ACC+k}, v{ACC+k}, v{ACC+4+k}")
        A("s_nop 1")
        for k in range(2):
            A(f"v_permlane16_swap_b32 v{ACC+k}, v{ACC+2+k}")
        A("s_nop 1")
        for k in range(2):
            A(f"v_add_f32 v{ACC+k}, v{ACC+k}, v{ACC+2+k}")
        for rr in (8, 4):
            A("s_nop 1")
            for k in range(2):
                A(f"v_add_f32_dpp v{ACC+k}, v{ACC+k}, v{ACC+k} row_ror:{rr} {DPP}")
    def make_masks(t0, t1):
        C("v4..v7: lane e=l&7 owns bf16 element e of an 8-element A fragment")
        A(f"v_and_b32 v{t0}, 1, v1")
        A(f"v_lshlrev_b32 v{t0}, 4, v{t0}")
        A(f"v_mov_b32 v{t1}, 0xffff")
        A(f"v_lshlrev_b32 v{t1}, v{t0}, v{t1}")
        A(f"v_bfe_u32 v{t0}, v1, 1, 2")
        for k in range(4):
            A(f"v_cmp_eq_u32 vcc, {k}, v{t0}")
            A("s_nop 1")
            A(f"v_cndmask_b32 v{4+k}, 0, v{t1}, vcc")
    SLOT0 = 64
    def slot(sl, i): return SLOT0 + 32*sl + 4*i
    WQB = slot(5, 0)
    def wq_loads():
        A(f"buffer_load_dwordx4 v[{XR}:{XR+3}], v14, s[44:47], s58 offen")
        for t in range(8):
            A(f"buffer_load_dwordx4 v[{WQB+4*t}:{WQB+4*t+3}], v13, s[48:51], s57 offen")
            if t < 7: A("s_add_u32 s57, s57, 0x2000")
    def q_partial(tail):
        for k in range(8):
            A(f"v_mov_b32 v{ACC+k}, 0")
        A("s_lshl_b32 s58, s3, 7")
        A("v_add_u32 v13, s58, v12")
        matvec_pairs(4, WQB, XR, tail)
        A("s_mov_b64 exec, s[62:63]")
        A(f"ds_write_b64 v13, v[{ACC}:{ACC+1}] offset:{L_QP}")
        A("s_mov_b64 exec, -1")

    L.append(HEADER.rstrip("\n"))
    L.append(f"; @launch grid=(256,1,1) block=({64*(NSW+1)},1,1) lds={ldsx or LDS_BYTES}")
    L.append('.amdgcn_target "amdgcn-amd-amdhsa--gfx950"')
    L.append(".text")
    L.append(f".globl {NAME}_kernel")
    L.append(".p2align 8")
    L.append(f".type {NAME}_kernel,@function")
    LB(f"{NAME}_kernel")
    A("s_cmp_ge_u32 s2, 256")
    A("s_cbranch_scc1 L_end")
    if prof:
        for k in range(8):
            A(f"s_mov_b64 s[{80+2*k}:{81+2*k}], 0")
        stamp(0)
        A("s_waitcnt lgkmcnt(0)")
    A("s_load_dwordx2 s[44:45], s[0:1], 0     ; x  -> SRD s[44:47]")
    A("s_load_dwordx2 s[48:49], s[0:1], 24")
    A("s_load_dwordx2 s[32:33], s[0:1], 8     ; K  -> SRD s[32:35]")
    A("s_load_dwordx2 s[40:41], s[0:1], 88")
    A("s_load_dwordx2 s[36:37], s[0:1], 16    ; V  -> SRD s[36:39]")
    A("s_load_dwordx16 s[4:19], s[0:1], 0")
    A("s_load_dwordx8 s[20:27], s[0:1], 64")
    A("v_lshrrev_b32 v2, 6, v0")
    A("v_and_b32 v1, 63, v0                   ; lane")
    A("v_readfirstlane_b32 s3, v2")
    A("s_sub_u32 s3, s3, 1")
    A(f"s_min_u32 s3, s3, {NSW}")
    A("s_lshr_b32 s28, s2, 4                  ; group")
    A("s_and_b32 s29, s2, 15                  ; s")
    A("s_lshr_b32 s30, s2, 7                  ; b")
    A("s_and_b32 s31, s2, 127                 ; i")
    C("s64 = q slice produced here: (i & ~15) + (s&7)*2 + (s>>3)")
    A("s_and_b32 s64, s29, 7")
    A("s_lshl_b32 s64, s64, 1")
    A("s_lshr_b32 s65, s29, 3")
    A("s_add_u32 s64, s64, s65")
    A("s_andn2_b32 s65, s31, 15")
    A("s_add_u32 s64, s64, s65")
    A("v_and_b32 v8, 15, v1")
    A("v_lshrrev_b32 v9, 4, v1                ; g")
    A("v_and_b32 v10, 3, v1")
    A("s_mov_b32 s42, 0x40000000")
    A("s_mov_b32 s43, 0x00020000")
    C("q partial: rows (role*14+rg)*8 + t, cols slice*32 + chunk*8")
    A("s_mul_i32 s58, s30, 896")
    A("s_mov_b32 s46, 1792")
    A("s_mov_b32 s47, 0x00020000")
    A(f"s_mov_b32 s50, {448*4096*2}")
    A("s_mov_b32 s51, 0x00020000")
    A("v_lshrrev_b32 v14, 2, v1")
    A("s_mul_i32 s57, s3, 14")
    A("v_cmp_gt_u32 vcc, 14, v14")
    A("v_add_u32 v14, s57, v14")
    A("v_mov_b32 v13, 0x4000")
    A("v_cndmask_b32 v14, v13, v14, vcc")
    A("v_lshlrev_b32 v13, 16, v14")
    A("v_lshl_add_u32 v13, v10, 4, v13")
    A("v_lshlrev_b32 v14, 4, v14")
    A("s_lshl_b32 s57, s64, 6")
    A("v_lshlrev_b32 v12, 5, v10")
    A("v_lshl_add_u32 v12, v9, 3, v12         ; chunk*32 + g*8")
    A("s_mov_b32 s60, 0x05040100")
    A("s_mov_b32 s61, 0x07060302")
    A("s_mov_b32 s62, 0x000f000f")
    A("s_mov_b32 s63, 0x000f000f")
    A(f"s_cmp_lg_u32 s3, {NSW}")
    A("s_cbranch_scc1 L_stream")
    C("service: snapshot of the group's q box and of this WG's own stale tags")
    A("v_lshlrev_b32 v11, 5, v1")
    A("s_lshl_b32 s56, s28, 11")
    A("s_lshl_b32 s59, s30, 7")
    A("s_add_u32 s59, s59, s64")
    A("s_lshl_b32 s59, s59, 7")
    A("s_waitcnt lgkmcnt(0)")
    A(f"buffer_load_dwordx4 v[64:67], v11, s[40:43], s56 offen offset:{QBOX} sc1")
    A(f"buffer_load_dwordx4 v[68:71], v11, s[40:43], s56 offen offset:{QBOX+16} sc1")
    A(f"buffer_load_dwordx2 v[72:73], v12, s[40:43], s59 offen offset:{QBOX} sc1")
    if NSW == 3: wq_loads()
    A("s_branch L_service")

    LB("L_stream")
    A("s_mov_b32 s34, 0x10000000")
    A("s_mov_b32 s35, 0x00020000")
    A("s_mov_b32 s38, 0x10000000")
    A("s_mov_b32 s39, 0x00020000")
    C("tile n of this WG: group<<24 | (s&7)<<21 | (n>>2)<<16 | (s>>3)<<15 | (n&3)<<13")
    A("s_lshl_b32 s56, s28, 24")
    A("s_and_b32 s66, s29, 7")
    A("s_lshl_b32 s66, s66, 21")
    A("s_or_b32 s56, s56, s66")
    A("s_lshr_b32 s66, s29, 3")
    A("s_lshl_b32 s66, s66, 15")
    A("s_or_b32 s56, s56, s66")
    A("s_lshl_b32 s67, s3, 13")
    A("s_or_b32 s56, s56, s67")
    def tstep():
        if NSW == 4:
            A("s_add_u32 s57, s57, 0x10000")
        else:
            A("s_or_b32 s57, s57, 0x8000")
            A("s_add_u32 s57, s57, 0x6000")
            A("s_andn2_b32 s57, s57, 0x8000")
            A("s_or_b32 s57, s57, s66")
    A("v_lshrrev_b32 v3, 2, v8")
    A("v_lshlrev_b32 v2, 11, v3")
    A("v_lshl_add_u32 v2, v9, 6, v2")
    A("v_lshl_add_u32 v2, v10, 4, v2")
    A("v_lshlrev_b32 v3, 11, v9")
    A("v_lshl_add_u32 v3, v8, 4, v3")
    def issue(kind, sl, sreg, which=range(8)):
        srdn = "s[32:35]" if kind == 'k' else "s[36:39]"
        va = "v2" if kind == 'k' else "v3"
        for i in which:
            b = slot(sl, i)
            A(f"buffer_load_dwordx4 v[{b}:{b+3}], {va}, {srdn}, {sreg} offen offset:{256*i} nt")
    A("s_waitcnt lgkmcnt(0)")
    wq_loads()
    A("s_mov_b32 s57, s56")
    issue('k', 0, "s57")
    tstep()
    q_partial(8)
    A("s_waitcnt lgkmcnt(0)")
    A("s_barrier")
    stamp(7)
    for t in range(1, NPRE):
        A(f"s_waitcnt vmcnt({PF2})")
        issue('k', t, "s57")
        tstep()
        if t == 1:
            A("v_bfe_u32 v12, v1, 3, 1")
            A("v_lshlrev_b32 v13, 2, v12")
            A("v_add_u32 v13, v13, v9")
            A("v_lshlrev_b32 v12, 9, v12")
            A("v_lshl_add_u32 v12, v9, 6, v12")
            A("v_lshl_add_u32 v12, v10, 4, v12")
            A(f"s_mul_i32 s58, s3, {SSTR}")
            A(f"s_add_u32 s58, s58, {L_S}")
            A("v_lshlrev_b32 v13, 4, v13")
            A("v_add_u32 v13, s58, v13")
            make_masks(56, 57)
            A("v_mov_b32 v14, 0xff800000")
            A("v_mov_b32 v15, 0                       ; l")
            for r in range(8):
                A(f"v_mov_b32 v{24+r}, 0")
            A(f"s_mov_b32 s59, {f2u(C_SCALE):#x}")
    A("s_barrier")
    A(f"ds_read_b128 v[16:19], v12 offset:{L_Q}")
    A(f"ds_read_b128 v[20:23], v12 offset:{L_Q+256}")
    stamp(2)
    A("s_waitcnt lgkmcnt(0)")

    def kproc(sl, soff, mid=None, dyn=False, roll=False):
        for r in range(4):
            d = 32 + 4*r
            a0 = slot(sl, 2*r); a1 = slot(sl, 2*r+1)
            A(f"v_mfma_f32_16x16x32_bf16 v[{d}:{d+3}], v[{a0}:{a0+3}], v[16:19], 0")
            A(f"v_mfma_f32_16x16x32_bf16 v[{d}:{d+3}], v[{a1}:{a1+3}], v[20:23], v[{d}:{d+3}]")
            if roll: issue('k', sl, "s57", (2*r, 2*r+1))
        if roll:
            tstep(); A("s_nop 1")
        elif mid: mid()
        else: A("s_nop 4")
        for k in range(4):
            for r in range(4):
                d = 32 + 4*r + k
                if k == 0:
                    A(f"v_mov_b32_dpp v{48+r}, v{d} quad_perm:[0,0,0,0] {DPP}")
                else:
                    A(f"v_add_f32_dpp v{48+r}, v{d}, v{48+r} quad_perm:[{k},{k},{k},{k}] {DPP}")
        for r in range(4):
            A(f"v_cvt_pk_bf16_f32 v{48+r}, 0, v{48+r}")
        if dyn: return
        A("v_max3_f32 v14, v14, v48, v49")
        A("v_max3_f32 v14, v14, v50, v51")
        A(f"ds_write_b128 v13, v[48:51] offset:{soff}")
    def nk():
        issue('k', 0, "s57"); tstep()
    def nv():
        issue('v', 0, "s57"); tstep()
    def nv0():
        A("s_mov_b32 s57, s56"); nv()
    for t in range(NPRE):
        A(f"s_waitcnt vmcnt({8*((NPRE-1-t) + min(t, 1))})")
        kproc(t, t*128, nk if t == 0 else None)
    A(f"v_add_u32 v13, {NPRE*128}, v13")
    def kstep(nxt):
        A("s_waitcnt vmcnt(0)")
        if kip == 0 and nxt is nk: kproc(0, 0, None, False, True)
        elif kip <= 1: kproc(0, 0, nxt)
        else:
            kproc(0, 0); nxt()
    A(f"s_mov_b32 s58, {NT - NPRE - 1}")
    LB("L_kloop")
    kstep(nk)
    A("v_add_u32 v13, 128, v13")
    A("s_sub_u32 s58, s58, 1")
    A("s_cmp_lg_u32 s58, 0")
    A("s_cbranch_scc1 L_kloop")
    kstep(nv0)
    stamp(3)
    C("true max of this wave's keys per head")
    A(f"v_subrev_u32 v13, {(NT-1)*128}, v13")
    A("v_mov_b32 v10, v14")
    A("s_nop 1")
    A("v_permlane32_swap_b32 v10, v14")
    A("s_nop 1")
    A("v_max_f32 v14, v10, v14")
    A("v_mov_b32 v10, v14")
    A("s_nop 1")
    A("v_permlane16_swap_b32 v10, v14")
    A("s_nop 1")
    A("v_max_f32 v14, v10, v14")
    A("v_mul_f32 v11, s59, v14")
    def pprep():
        for r in range(4):
            A(f"v_fma_f32 v{48+r}, v{48+r}, s59, -v11")
        for r in range(4):
            A(f"v_exp_f32 v{48+r}, v{48+r}")
        A("s_nop 0")
        A("v_add_f32 v56, v48, v49")
        A("v_add_f32 v57, v50, v51")
        for r in range(4):
            A(f"v_cvt_pk_bf16_f32 v{48+r}, v{48+r}, v{48+r}")
        A("v_add_f32 v56, v56, v57")
        A("v_add_f32 v15, v15, v56")
        for r in range(4):
            for k in range(4):
                A(f"v_and_b32 v{32+4*r+k}, v{48+r}, v{4+k}")
    def pv(sl, roll=False):
        for r in range(4):
            a = 32 + 4*r
            b0 = slot(sl, 2*r); b1 = slot(sl, 2*r+1)
            A(f"v_mfma_f32_16x16x32_bf16 v[24:27], v[{a}:{a+3}], v[{b0}:{b0+3}], v[24:27]")
            A(f"v_mfma_f32_16x16x32_bf16 v[28:31], v[{a}:{a+3}], v[{b1}:{b1+3}], v[28:31]")
            if roll: issue('v', sl, "s57", (2*r, 2*r+1))
        if roll: tstep()
    def req_ticket():
        A("v_mov_b32 v58, 0")
        A("v_mov_b32 v59, 1")
        A("s_mov_b64 exec, 1")
        A(f"ds_add_rtn_u32 v59, v58, v59 offset:{L_CNT}")
        A("s_mov_b64 exec, -1")
    def vstep(off, nxt, post=None):
        A(f"ds_read_b128 v[48:51], v13 offset:{off}")
        if vip <= 1:
            A("s_waitcnt lgkmcnt(0)")
            pprep()
            A("s_waitcnt vmcnt(0)")
        else:
            A("s_waitcnt vmcnt(0) lgkmcnt(0)")
            pprep()
            A("s_nop 0")
        if vip == 0 and nxt: pv(0, True)
        else:
            pv(0)
            if nxt: nxt()
        if post: post()
    A(f"s_mov_b32 s58, {NT-2}")
    LB("L_vloop")
    vstep(0, nv)
    A("v_add_u32 v13, 128, v13")
    A("s_sub_u32 s58, s58, 1")
    A("s_cmp_lg_u32 s58, 0")
    A("s_cbranch_scc1 L_vloop")
    vstep(0, nv, req_ticket)
    vstep(128, None)
    stamp(1)
    C("shared pool: sub-ticket (LDS) -> window ticket fetched by the service wave")
    LB("L_next")
    A("s_waitcnt lgkmcnt(0)")
    A("v_readfirstlane_b32 s76, v59")
    A(f"s_mov_b32 s79, {spin_max}")
    A("s_andn2_b32 s77, s76, 3")
    A("v_mov_b32 v58, s77")
    LB("L_win")
    A(f"ds_read_b32 v60, v58 offset:{L_WIN}")
    A("s_waitcnt lgkmcnt(0)")
    A("v_readfirstlane_b32 s77, v60")
    A("s_cmp_lg_u32 s77, -1")
    A("s_cbranch_scc1 L_win_ok")
    A("s_sleep 1")
    A("s_sub_u32 s79, s79, 1")
    A("s_cmp_lg_u32 s79, 0")
    A("s_cbranch_scc1 L_win")
    LB("L_win_ok")
    A(f"s_cmp_ge_u32 s77, {NTK}")
    A("s_cbranch_scc1 L_dyn_done")
    A("s_and_b32 s76, s76, 3")
    A("s_lshl_b32 s78, s28, 24")
    A("s_lshl_b32 s76, s76, 13")
    A("s_or_b32 s78, s78, s76")
    A("s_and_b32 s79, s77, 1")
    A("s_lshl_b32 s79, s79, 15")
    A("s_or_b32 s78, s78, s79")
    A("s_bfe_u32 s79, s77, 0x30001")
    A("s_lshl_b32 s79, s79, 21")
    A("s_or_b32 s78, s78, s79")
    A("s_lshr_b32 s79, s77, 4")
    A(f"s_add_u32 s79, s79, {NS}")
    A("s_lshl_b32 s79, s79, 16")
    A("s_or_b32 s78, s78, s79")
    issue('k', 2, "s78")
    if dseq:
        A("s_waitcnt vmcnt(0)")
        req_ticket()
        kproc(2, 0, lambda: issue('v', 3, "s78"), True)
    else:
        issue('v', 3, "s78")
        A("s_waitcnt vmcnt(8)")
        req_ticket()
        kproc(2, 0, None, True)
    A("v_max3_f32 v10, v48, v49, v50")
    A("v_max_f32 v10, v10, v51")
    A("v_cmp_gt_f32 vcc, v10, v14")
    A("s_cbranch_vccnz L_rare")
    LB("L_back")
    pprep()
    A("s_waitcnt vmcnt(0)")
    pv(3)
    A("s_branch L_next")
    LB("L_rare")
    C("running max rose: rescale l and O")
    A("v_max_f32 v10, v10, v14")
    A("v_mov_b32 v56, v10")
    A("s_nop 1")
    A("v_permlane32_swap_b32 v56, v10")
    A("s_nop 1")
    A("v_max_f32 v10, v10, v56")
    A("v_mov_b32 v56, v10")
    A("s_nop 1")
    A("v_permlane16_swap_b32 v56, v10")
    A("s_nop 1")
    A("v_max_f32 v10, v10, v56")
    A("v_sub_f32 v56, v14, v10")
    A("v_mul_f32 v56, s59, v56")
    A("v_exp_f32 v56, v56")
    A("v_mov_b32 v14, v10")
    A("v_mul_f32 v11, s59, v10")
    A("v_mul_f32 v15, v15, v56")
    A("v_readlane_b32 s60, v56, 0")
    A("v_readlane_b32 s61, v56, 8")
    A("s_mov_b32 s62, 0")
    A("s_mov_b32 s63, -1")
    A("v_mov_b32 v57, s60")
    A("s_mov_b64 exec, s[62:63]")
    A("v_mov_b32 v57, s61")
    A("s_mov_b64 exec, -1")
    for r in range(8):
        A(f"v_mul_f32 v{24+r}, v57, v{24+r}")
    A("s_branch L_back")
    LB("L_dyn_done")
    C("wave partial -> LDS")
    A("v_mov_b32 v10, v15")
    A("v_lshrrev_b32 v12, 1, v9")
    A("v_lshlrev_b32 v12, 10, v12")
    A("v_permlane32_swap_b32 v10, v15")
    A("v_lshl_add_u32 v12, v8, 5, v12")
    A("v_add_f32 v15, v10, v15")
    A("v_mov_b32 v10, v15")
    A("v_and_b32 v13, 1, v9")
    A("v_lshl_add_u32 v12, v13, 4, v12")
    A("v_permlane16_swap_b32 v10, v15")
    A("s_lshl_b32 s58, s3, 11")
    A("v_add_u32 v12, s58, v12")
    A("v_add_f32 v15, v10, v15")
    A("s_lshl_b32 s58, s3, 4")
    A("v_and_b32 v13, 8, v1")
    A("v_add_u32 v13, s58, v13")
    A(f"ds_write_b128 v12, v[24:27] offset:{L_O}")
    A(f"ds_write_b128 v12, v[28:31] offset:{L_O+512}")
    A("s_mov_b64 exec, 0x101")
    A(f"ds_write_b64 v13, v[14:15] offset:{L_ML}")
    A("s_mov_b64 exec, -1")
    stamp(4)
    A("s_waitcnt lgkmcnt(0)")
    A("s_barrier")
    C("role 0 of WGs with i<28: sums the 128 y partials of 16 output columns")
    A("s_cmp_lg_u32 s3, 0")
    A("s_cbranch_scc1 L_fin")
    A("s_cmp_ge_u32 s31, 28")
    A("s_cbranch_scc1 L_fin")
    srd(44, 22, 23, 1792)
    A("v_lshrrev_b32 v10, 2, v1")
    A(f"v_mul_u32_u24 v10, {OB2S}, v10")
    A("v_and_b32 v11, 3, v1")
    A("v_lshl_add_u32 v10, v11, 4, v10")
    A(f"s_mul_i32 s58, s30, {128*OB2S}")
    A("s_lshl_b32 s61, s31, 6")
    A("s_add_u32 s58, s58, s61")
    A(f"s_add_u32 s58, s58, {OB2}")
    for t in range(8):
        A(f"s_add_u32 s{48+t}, s58, {t*16*OB2S}")
    A("v_lshrrev_b32 v14, 5, v1")
    A("v_lshlrev_b32 v14, 2, v14")
    A("v_lshl_add_u32 v14, v11, 3, v14")
    A("s_mul_i32 s58, s30, 896")
    A("s_lshl_b32 s61, s31, 5")
    A("s_add_u32 s58, s58, s61")
    A(f"s_mov_b32 s60, {spin_max}")
    for t in range(8):
        A(f"s_mov_b64 s[{64+2*t}:{65+2*t}], -1")
    A("s_barrier")
    LB("L_poll2")
    for t in range(8):
        A(f"s_mov_b64 exec, s[{64+2*t}:{65+2*t}]")
        A(f"s_cbranch_execz L_p2s{t}")
        A(f"buffer_load_dwordx4 v[{64+4*t}:{67+4*t}], v10, s[40:43], s{48+t} offen sc1")
        LB(f"L_p2s{t}")
    A("s_mov_b64 exec, -1")
    A("s_waitcnt vmcnt(0)")
    for t in range(8):
        A(f"v_max3_u32 v{12+(t&1)}, v{64+4*t}, v{65+4*t}, v{66+4*t}")
        A(f"v_max_u32 v{12+(t&1)}, v{12+(t&1)}, v{67+4*t}")
        A(f"v_cmp_eq_u32 s[{64+2*t}:{65+2*t}], -1, v{12+(t&1)}")
    A("s_or_b64 s[62:63], s[64:65], s[66:67]")
    for t in range(2, 8):
        A(f"s_or_b64 s[62:63], s[62:63], s[{64+2*t}:{65+2*t}]")
    A("s_cbranch_scc0 L_poll2_done")
    A("s_sleep 2")
    A("s_sub_u32 s60, s60, 1")
    A("s_cmp_lg_u32 s60, 0")
    A("s_cbranch_scc1 L_poll2")
    LB("L_poll2_done")
    stamp(5)
    for step in (16, 8, 4):
        for k in range(step):
            A(f"v_add_f32 v{64+k}, v{64+k}, v{64+step+k}")
    A("s_nop 1")
    A("v_permlane32_swap_b32 v64, v66")
    A("v_permlane32_swap_b32 v65, v67")
    A("s_nop 1")
    A("v_add_f32 v64, v64, v66")
    A("v_add_f32 v65, v65, v67")
    A("v_mov_b32 v66, v64")
    A("v_mov_b32 v67, v65")
    A("s_nop 1")
    A("v_permlane16_swap_b32 v66, v64")
    A("v_permlane16_swap_b32 v67, v65")
    A("s_nop 1")
    A("v_add_f32 v64, v64, v66")
    A("v_add_f32 v65, v65, v67")
    A("s_nop 1")
    A(f"v_add_f32_dpp v64, v64, v64 row_ror:8 {DPP}")
    A(f"v_add_f32_dpp v65, v65, v65 row_ror:8 {DPP}")
    A("s_nop 1")
    A(f"v_add_f32_dpp v64, v64, v64 row_ror:4 {DPP}")
    A(f"v_add_f32_dpp v65, v65, v65 row_ror:4 {DPP}")
    A("s_mov_b32 s60, 15")
    A("s_mov_b32 s61, 15")
    A("v_cvt_pk_bf16_f32 v64, v64, v65")
    A("s_mov_b64 exec, s[60:61]")
    A("buffer_store_dword v64, v14, s[44:47], s58 offen")
    A("s_mov_b64 exec, -1")
    stamp(6)
    LB("L_fin")
    dump_stamps(False)
    A("s_endpgm")

    LB("L_service")
    for k in range(4):
        A(f"v_mov_b32 v{48+k}, -1")
    A("v_lshlrev_b32 v14, 4, v1")
    A("v_mov_b32 v15, 0")
    A(f"ds_write_b32 v15, v15 offset:{L_CNT}")
    A(f"ds_write_b128 v14, v[48:51] offset:{L_WIN}")
    if NSW == 3: q_partial(0)
    A("s_mul_i32 s70, s30, 896")
    A("s_add_u32 s44, s4, s70")
    A("s_addc_u32 s45, s5, 0")
    A("s_mov_b32 s46, 896")
    A(f"s_mul_i32 s57, s2, {OB1S}")
    A(f"s_add_u32 s57, s57, {OB1}")
    A(f"s_mul_i32 s58, s2, {OB2S}")
    A(f"s_add_u32 s58, s58, {OB2}")
    stamp(1)
    A("s_waitcnt lgkmcnt(0)")
    A("s_barrier")
    for w in range(4):
        A(f"ds_read_b64 v[{16+2*w}:{17+2*w}], v12 offset:{L_QP+128*w}")
    A("s_waitcnt vmcnt(0)")
    A("v_add_u32 v72, 0x10000, v72")
    A("v_add_u32 v73, 0x10000, v73")
    A("v_and_b32 v72, 0xffff0000, v72")
    A("v_and_b32 v73, 0xffff0000, v73")
    A("s_waitcnt lgkmcnt(0)")
    A("v_add_f32 v16, v16, v18")
    A("v_add_f32 v17, v17, v19")
    A("v_add_f32 v20, v20, v22")
    A("v_add_f32 v21, v21, v23")
    A("v_add_f32 v16, v16, v20")
    A("v_add_f32 v17, v17, v21")
    A("v_cvt_pk_bf16_f32 v16, v16, 0")
    A("v_cvt_pk_bf16_f32 v17, v17, 0")
    A("v_or_b32 v72, v72, v16")
    A("v_or_b32 v73, v73, v17")
    A("s_mov_b64 exec, s[62:63]")
    A(f"buffer_store_dwordx2 v[72:73], v12, s[40:43], s59 offen offset:{QBOX} sc1")
    A("s_mov_b64 exec, -1")
    stamp(2)
    C("own outboxes := sentinel, ticket counter := 0")
    for k in range(2):
        A(f"buffer_store_dwordx4 v[48:51], v14, s[40:43], s57 offen offset:{1024*k} sc1")
    A("buffer_store_dwordx4 v[48:51], v14, s[40:43], s58 offen sc1")
    A("s_mov_b32 s70, -1")
    A("s_mov_b32 s71, 0xffff")
    A("s_mov_b64 exec, s[70:71]")
    A("buffer_store_dwordx4 v[48:51], v14, s[40:43], s58 offen offset:1024 sc1")
    A("s_mov_b64 exec, 0xffff")
    A("buffer_store_dwordx4 v[48:51], v14, s[40:43], s57 offen offset:2048 sc1")
    A("s_mov_b64 exec, -1")
    A("s_cmp_lg_u32 s29, 0")
    A("s_cbranch_scc1 L_notinit")
    A("s_lshl_b32 s70, s28, 12")
    A(f"s_add_u32 s70, s70, {TICK}")
    A("s_mov_b64 exec, 1")
    A("buffer_store_dword v15, v15, s[40:43], s70 offen sc1")
    A("s_mov_b64 exec, -1")
    LB("L_notinit")
    A("s_lshl_b32 s65, s30, 6")
    A("s_add_u32 s65, s65, 128")
    A("s_mov_b32 s68, 1")
    A("s_mov_b32 s59, 0")
    A("s_mov_b32 s66, 0x10000")
    A("s_waitcnt vmcnt(0)")
    A("s_atomic_add s68, s[24:25], s65")
    LB("L_pollq")
    A(f"buffer_load_dwordx4 v[76:79], v11, s[40:43], s56 offen offset:{QBOX} sc1")
    A(f"buffer_load_dwordx4 v[80:83], v11, s[40:43], s56 offen offset:{QBOX+16} sc1")
    A("s_waitcnt vmcnt(0)")
    for k in range(8):
        A(f"v_xor_b32 v{84+k}, v{64+k}, v{76+k}")
    A("v_min3_u32 v84, v84, v85, v86")
    A("v_min3_u32 v87, v87, v88, v89")
    A("v_min3_u32 v84, v84, v90, v91")
    A("v_min_u32 v84, v84, v87")
    A("v_cmp_gt_u32 vcc, s66, v84")
    A("s_cbranch_vccz L_pollq_done")
    A("s_mov_b64 exec, vcc")
    A("s_add_u32 s59, s59, 1")
    A("s_sleep 1")
    A(f"s_cmp_lt_u32 s59, {fbk}")
    A("s_cbranch_scc1 L_pollq")
    C("the snapshot may have been taken after a producer wrote: once the whole batch arrived, the next read is valid")
    A("s_mov_b32 s70, 0")
    A("s_atomic_add s70, s[24:25], s65 glc")
    A("s_waitcnt lgkmcnt(0)")
    A("s_cmp_ge_u32 s70, 128")
    A("s_cselect_b32 s66, 0, s66")
    A(f"s_cmp_lt_u32 s59, {spin_max}")
    A("s_cbranch_scc1 L_pollq")
    LB("L_pollq_done")
    A("s_mov_b64 exec, -1")
    stamp(3)
    for k in range(4):
        A(f"v_perm_b32 v{48+k}, v{77+2*k}, v{76+2*k}, s60")
    A(f"ds_write_b128 v14, v[48:51] offset:{L_Q}")
    A("s_waitcnt lgkmcnt(0)")
    A("s_barrier")
    stamp(4)
    C("background: FFN hidden slice, gate, output-side weights")
    make_masks(56, 57)
    A("s_and_b32 s66, s31, 7")
    A("s_mul_i32 s66, s66, 14")
    A("s_lshr_b32 s67, s31, 3")
    A("s_add_u32 s66, s66, s67")
    A("s_cmp_lt_u32 s31, 112")
    A(f"s_cselect_b32 s59, {448*1792*2}, 0")
    srd(48, 16, 17, "s59")
    srd(32, 18, 19, "s59")
    srd(36, 20, 21, 896)
    A("v_lshrrev_b32 v10, 1, v1")
    A("v_and_b32 v11, 1, v1")
    A("v_mul_u32_u24 v12, 28, v10")
    A(f"v_mul_u32_u24 v13, {14*3584}, v10")
    A("v_lshl_add_u32 v13, v11, 4, v13")
    A(f"buffer_load_dwordx4 v[{XR}:{XR+3}], v12, s[44:47], 0 offen")
    A(f"buffer_load_dwordx3 v[{XR+4}:{XR+6}], v12, s[44:47], 0 offen offset:16")
    A("buffer_load_dwordx4 v[40:43], v14, s[44:47], 0 offen")
    A("buffer_load_dwordx4 v[44:47], v14, s[36:39], 0 offen")
    A("s_lshl_b32 s56, s66, 5")
    cnt = [0]
    def thr():
        cnt[0] += 1
        if cnt[0] % SB == 0: A("s_waitcnt vmcnt(0)")
    for t in range(14):
        A(f"buffer_load_dwordx4 v[{64+4*t}:{67+4*t}], v13, s[48:51], s56 offen")
        A("s_add_u32 s56, s56, 3584")
        thr()
    for k in range(8):
        A(f"v_mov_b32 v{ACC+k}, 0")
    matvec_pairs(7, 64, XR, 0)
    A("s_nop 1")
    for k in range(2):
        A(f"v_add_f32_dpp v{ACC+k}, v{ACC+k}, v{ACC+k} row_ror:2 {DPP}")
    A(f"s_mov_b32 s59, {f2u(-math.log2(math.e)):#x}")
    for k in range(2):
        A(f"v_cvt_pk_bf16_f32 v{ACC+k}, 0, v{ACC+k}")
    for k in range(2):
        A(f"v_mul_f32 v{ACC+2+k}, s59, v{ACC+k}")
    for k in range(2):
        A(f"v_exp_f32 v{ACC+2+k}, v{ACC+2+k}")
    A("s_nop 0")
    for k in range(2):
        A(f"v_add_f32 v{ACC+2+k}, 1.0, v{ACC+2+k}")
    for k in range(2):
        A(f"v_rcp_f32 v{ACC+2+k}, v{ACC+2+k}")
    A("s_nop 0")
    for k in range(2):
        A(f"v_mul_f32 v{ACC+k}, v{ACC+k}, v{ACC+2+k}       ; silu")
    A("v_lshlrev_b32 v12, 5, v11")
    A("v_lshl_add_u32 v12, v9, 3, v12")
    A("s_mov_b32 s62, 0x00030003")
    A("s_mov_b32 s63, 0x00030003")
    A("s_mov_b64 exec, s[62:63]")
    A(f"ds_write_b64 v12, v[{ACC}:{ACC+1}] offset:{L_H}")
    A("s_mov_b64 exec, -1")
    A("v_lshlrev_b32 v12, 4, v9")
    A("s_waitcnt lgkmcnt(0)")
    A(f"ds_read_b128 v[{ACC}:{ACC+3}], v12 offset:{L_H}")
    C("gate")
    for k in range(4):
        A(f"v_lshlrev_b32 v52, 16, v{40+k}")
        A(f"v_lshlrev_b32 v53, 16, v{44+k}")
        A(f"v_and_b32 v54, 0xffff0000, v{40+k}")
        A(f"v_and_b32 v55, 0xffff0000, v{44+k}")
        A("v_mul_f32 v52, v52, v53")
        A("v_mul_f32 v54, v54, v55")
        A("v_cvt_pk_bf16_f32 v52, 0, v52")
        A("v_cvt_pk_bf16_f32 v54, 0, v54")
        if k == 0:
            A("v_add_f32 v56, v52, v54")
        else:
            A("v_add_f32 v56, v56, v52")
            A("v_add_f32 v56, v56, v54")
    for rr in (8, 4, 2, 1):
        A("s_nop 1")
        A(f"v_add_f32_dpp v56, v56, v56 row_ror:{rr} {DPP}")
    A("v_mov_b32 v57, v56")
    A("s_nop 1")
    A("v_permlane32_swap_b32 v57, v56")
    A("s_nop 1")
    A("v_add_f32 v56, v56, v57")
    A("v_mov_b32 v57, v56")
    A("s_nop 1")
    A("v_permlane16_swap_b32 v57, v56")
    A("s_nop 1")
    A("v_add_f32 v56, v56, v57")
    A("v_cvt_pk_bf16_f32 v56, 0, v56")
    A("v_mul_f32 v56, s59, v56")
    A("v_exp_f32 v56, v56")
    A("s_nop 0")
    A("v_add_f32 v56, 1.0, v56")
    A("v_rcp_f32 v56, v56")
    A("s_nop 0")
    A("v_cvt_pk_bf16_f32 v2, 0, v56           ; g")
    A("v_sub_f32 v3, 1.0, v2")
    A("v_cvt_pk_bf16_f32 v3, 0, v3            ; 1-g")
    A("s_waitcnt lgkmcnt(0)")
    for t in range(4):
        A(f"v_cvt_pk_bf16_f32 v{ACC+t}, v{ACC+t}, v{ACC+t}")
    for t in range(4):
        for k in range(4):
            A(f"v_and_b32 v{24+4*t+k}, v{ACC+t}, v{4+k}")
    srd(48, 12, 13, 4096*448*2)
    A("v_mul_u32_u24 v18, 3584, v9")
    A("v_lshl_add_u32 v18, v8, 4, v18         ; w2 row 16f + 4g + t")
    A("v_mul_u32_u24 v19, 7168, v9")
    A("v_lshl_add_u32 v19, v8, 4, v19")
    A(f"s_mul_i32 s66, s66, {16*896}")
    A(f"s_mul_i32 s67, s31, {32*896}")
    A(f"s_add_u32 s68, s67, {4*896}")
    for t in range(4):
        for cb in range(4):
            b = 64 + 16*t + 4*cb
            A(f"buffer_load_dwordx4 v[{b}:{b+3}], v18, s[32:35], s66 offen offset:{t*896+cb*256}")
            thr()
    for t in range(8):
        for cb in range(4):
            b = 128 + 16*t + 4*cb
            A(f"buffer_load_dwordx4 v[{b}:{b+3}], v19, s[48:51], s{67 + (t>>2)} offen offset:{(t&3)*896+cb*256}")
            thr()
    A("s_waitcnt vmcnt(32)")
    for t in range(4):
        for cb in range(4):
            b = 64 + 16*t + 4*cb
            d = 40 + 4*cb
            c = "0" if t == 0 else f"v[{d}:{d+3}]"
            A(f"v_mfma_f32_16x16x32_bf16 v[{d}:{d+3}], v[{24+4*t}:{27+4*t}], v[{b}:{b+3}], {c}")
    A(f"s_mov_b32 s59, {f2u(C_SCALE):#x}")
    A("v_lshlrev_b32 v10, 5, v1")
    A("v_lshrrev_b32 v11, 5, v1")
    A("v_lshlrev_b32 v11, 3, v11")
    A("v_lshrrev_b32 v15, 2, v1")
    A("v_mul_u32_u24 v15, 144, v15")
    A("v_and_b32 v12, 3, v1")
    A("v_lshl_add_u32 v15, v12, 5, v15")
    A(f"v_mul_u32_u24 v12, {OB1S}, v8")
    A("v_lshl_add_u32 v13, v9, 5, v12")
    A(f"s_mul_i32 s60, s28, {16*OB1S}")
    A("s_mul_i32 s61, s29, 144")
    A("s_add_u32 s60, s60, s61")
    A(f"s_add_u32 s60, s60, {OB1}")
    A("v_lshlrev_b32 v14, 5, v8")
    A("v_lshl_add_u32 v14, v9, 4, v14")
    for k in range(16):
        A(f"v_mul_f32 v{40+k}, v3, v{40+k}")
    C("whole batch arrived => every outbox read later was cleared and the ticket counters are set")
    A(f"s_mov_b32 s56, {spin_max}")
    LB("L_pollg")
    A("s_mov_b32 s70, 0")
    A("s_atomic_add s70, s[24:25], s65 glc")
    A("s_waitcnt lgkmcnt(0)")
    A("s_cmp_ge_u32 s70, 128")
    A("s_cbranch_scc1 L_pollg_done")
    A("s_sleep 16")
    A("s_sub_u32 s56, s56, 1")
    A("s_cmp_lg_u32 s56, 0")
    A("s_cbranch_scc1 L_pollg")
    LB("L_pollg_done")
    C("window-ticket server")
    A("s_lshl_b32 s74, s28, 12")
    A(f"s_add_u32 s74, s74, {TICK}")
    A("s_add_u32 s74, s26, s74")
    A("s_addc_u32 s75, s27, 0")
    A("s_mov_b32 s71, 0")
    A("v_mov_b32 v16, 0")
    A(f"s_mov_b32 s56, {spin_max*8}")
    LB("L_tk")
    A(f"ds_read_b32 v17, v16 offset:{L_CNT}")
    A("s_waitcnt lgkmcnt(0)")
    A("v_readfirstlane_b32 s70, v17")
    A("s_cmp_gt_u32 s70, s71")
    A("s_cbranch_scc1 L_tk_fetch")
    A("s_sleep 2")
    A("s_sub_u32 s56, s56, 1")
    A("s_cmp_lg_u32 s56, 0")
    A("s_cbranch_scc1 L_tk")
    A("s_branch L_tk_done")
    LB("L_tk_fetch")
    A("s_mov_b32 s70, 1")
    A("s_atomic_add s70, s[74:75], 0 glc")
    A("v_mov_b32 v17, s71")
    A("s_waitcnt lgkmcnt(0)")
    A("v_mov_b32 v20, s70")
    A("s_add_u32 s71, s71, 4")
    A(f"ds_write_b32 v17, v20 offset:{L_WIN}")
    A(f"s_cmp_lt_u32 s70, {NTK - RET}")
    A("s_cbranch_scc1 L_tk")
    C("one of the last tickets (or none): this WG asks for nothing more")
    A("v_mov_b32 v17, s71")
    A("v_mov_b32 v20, 0x10000")
    A(f"ds_write_b32 v17, v20 offset:{L_WIN}")
    LB("L_tk_done")
    A("s_waitcnt vmcnt(0) lgkmcnt(0)")
    A("s_barrier")
    stamp(5)
    if prof: A("s_waitcnt lgkmcnt(0)")
    C("WG combine")
    for w in range(NSW):
        A(f"ds_read_b64 v[{56+2*w}:{57+2*w}], v11 offset:{L_ML+16*w}")
    for w in range(NSW):
        A(f"ds_read_b128 v[{64+8*w}:{67+8*w}], v10 offset:{L_O+2048*w}")
        A(f"ds_read_b128 v[{68+8*w}:{71+8*w}], v10 offset:{L_O+2048*w+16}")
    A(f"s_waitcnt lgkmcnt({2*NSW})")
    A("v_max3_f32 v16, v56, v58, v60")
    if NSW == 4: A("v_max_f32 v16, v16, v62")
    for w in range(NSW):
        A(f"v_sub_f32 v{56+2*w}, v{56+2*w}, v16")
    for w in range(NSW):
        A(f"v_mul_f32 v{56+2*w}, s59, v{56+2*w}")
    for w in range(NSW):
        A(f"v_exp_f32 v{56+2*w}, v{56+2*w}")
    A("s_nop 0")
    A("v_mul_f32 v17, v56, v57")
    for w in range(1, NSW):
        A(f"v_fmac_f32 v17, v{56+2*w}, v{57+2*w}")
    A("s_waitcnt lgkmcnt(0)")
    for k in range(8):
        A(f"v_mul_f32 v{64+k}, v56, v{64+k}")
    for w in range(1, NSW):
        for k in range(8):
            A(f"v_fmac_f32 v{64+k}, v{56+2*w}, v{64+8*w+k}")
    A("buffer_store_dwordx4 v[64:67], v15, s[40:43], s57 offen sc1")
    A("buffer_store_dwordx4 v[68:71], v15, s[40:43], s57 offen offset:16 sc1")
    A("s_mov_b32 s62, 0x11111111")
    A("s_mov_b32 s63, 0x11111111")
    A("s_mov_b64 exec, s[62:63]")
    A("buffer_store_dwordx2 v[16:17], v15, s[40:43], s57 offen offset:128 sc1")
    A("s_mov_b64 exec, -1")
    A(f"s_mov_b32 s56, {spin_max}")
    LB("L_poll1")
    A("buffer_load_dwordx4 v[72:75], v13, s[40:43], s60 offen sc1")
    A("buffer_load_dwordx4 v[76:79], v13, s[40:43], s60 offen offset:16 sc1")
    A("buffer_load_dwordx2 v[80:81], v12, s[40:43], s60 offen offset:128 sc1")
    A("s_waitcnt vmcnt(0)")
    A("v_max3_u32 v18, v72, v73, v74")
    A("v_max3_u32 v19, v75, v76, v77")
    A("v_max3_u32 v18, v18, v78, v79")
    A("v_max3_u32 v19, v19, v80, v81")
    A("v_max_u32 v18, v18, v19")
    A("v_cmp_eq_u32 vcc, -1, v18")
    A("s_cbranch_vccz L_poll1_done")
    A("s_mov_b64 exec, vcc")
    A("s_bcnt1_i32_b64 s61, vcc")
    A("s_cmp_le_u32 s61, 12")
    A("s_cbranch_scc1 L_poll1_fast")
    A("s_sleep 16")
    LB("L_poll1_fast")
    A("s_sleep 1")
    A("s_sub_u32 s56, s56, 1")
    A("s_cmp_lg_u32 s56, 0")
    A("s_cbranch_scc1 L_poll1")
    LB("L_poll1_done")
    A("s_mov_b64 exec, -1")
    A("s_barrier")
    stamp(6)
    C("group combine over the 16 producers, then 32 rows of wo")
    A(f"v_max_f32_dpp v18, v80, v80 row_ror:8 {DPP}")
    for rr in (4, 2, 1):
        A("s_nop 1")
        A(f"v_max_f32_dpp v18, v18, v18 row_ror:{rr} {DPP}")
    A("v_sub_f32 v18, v80, v18")
    A("v_mul_f32 v18, s59, v18")
    A("v_exp_f32 v18, v18")
    A("s_nop 0")
    A("v_mul_f32 v80, v18, v81")
    for k in range(8):
        A(f"v_mul_f32 v{72+k}, v18, v{72+k}")
    for rr in (8, 4, 2, 1):
        for k in (8, 0, 1, 2, 3, 4, 5, 6, 7):
            A(f"v_add_f32_dpp v{72+k}, v{72+k}, v{72+k} row_ror:{rr} {DPP}")
    A("v_rcp_f32 v80, v80")
    A("s_nop 0")
    for k in range(8):
        A(f"v_mul_f32 v{72+k}, v80, v{72+k}")
    for k in range(8):
        A(f"v_cvt_pk_bf16_f32 v{72+k}, v{72+k}, v{72+k}")
    def wo_mfma(tt):
        for cb in range(4):
            b = 128 + 16*tt + 4*cb
            d = 16 + 4*cb
            c = "0" if tt == 0 else f"v[{d}:{d+3}]"
            A(f"v_mfma_f32_16x16x32_bf16 v[{d}:{d+3}], v[{88+4*tt}:{91+4*tt}], v[{b}:{b+3}], {c}")
    for t in range(8):
        for k in range(4):
            A(f"v_and_b32 v{88+4*t+k}, v{72+t}, v{4+k}")
        if t >= 1: wo_mfma(t-1)
    wo_mfma(7)
    A("s_mov_b32 s62, -1")
    A("s_mov_b32 s63, 0")
    A("s_nop 3")
    for cb in range(4):
        for k in range(4):
            A(f"v_fmac_f32 v{40+4*cb+k}, v2, v{16+4*cb+k}")
        if cb == 0:
            A("s_mov_b64 exec, s[62:63]")
        if cb == 3:
            A("s_mov_b32 s62, 0x00ff00ff")
            A("s_mov_b64 exec, s[62:63]")
        A(f"buffer_store_dwordx4 v[{40+4*cb}:{43+4*cb}], v14, s[40:43], s58 offen offset:{512*cb} sc1")
    A("s_mov_b64 exec, -1")
    stamp(7)
    dump_stamps(True)
    LB("L_end")
    A("s_endpgm")
    L.append('.section .rodata,"a"')
    L.append(".p2align 6")
    L.append(f".amdhsa_kernel {NAME}_kernel")
    L.append("  .amdhsa_next_free_vgpr 256")
    L.append("  .amdhsa_next_free_sgpr 96")
    L.append("  .amdhsa_accum_offset 256")
    L.append("  .amdhsa_group_segment_fixed_size 0")
    L.append("  .amdhsa_kernarg_size 96")
    L.append("  .amdhsa_user_sgpr_count 2")
    L.append("  .amdhsa_user_sgpr_kernarg_segment_ptr 1")
    L.append("  .amdhsa_system_sgpr_workgroup_id_x 1")
    L.append(".end_amdhsa_kernel")
    return "\n".join(L) + "\n"


if __name__ == "__main__":
    out = sys.argv[1]
    kw = {}
    for a in sys.argv[2:]:
        k, v = a.split("=")
        kw[k] = int(v)
    open(out, "w").write(gen(**kw))
```

```python
import sys, math, struct

NAME = "gated_mix__gqa_block_cached__dense_activation_silu__decode"
HEADER = open("cdna_kernels/" + NAME + ".s.ref").read().split("; Override launch")[0]

QBOX = 0x0
TICK = 0x10000
OB1 = 0x40000
OB1S = 2304
OB2 = 0x200000
OB2S = 1792
STAMP = 0x20000000
C_SCALE = (1.0 / 16.0) * math.log2(math.e)
def f2u(x): return struct.unpack("<I", struct.pack("<f", x))[0]


def gen(prof=0, NSW=3, NS=30, NPRE=6, kip=1, vip=1, RET=8, fbk=4, SB=8, spin_max=200000, ldsx=0, dseq=0, PF2=0, WT=4, skip=0, ptile=0, early=1, eh=0, hl=0, hs=0, ls=16, lt=28, s2=2, pre=1, tfix=0, osc=0):
    NT = NS*4 // NSW
    assert NS*4 % NSW == 0 and NSW in (3, 4)
    SSTR = NT*128
    L_Q = 0
    L_S = 1024
    L_O = L_S + NSW*SSTR
    L_ML = L_O + 2048*NSW
    L_H = L_ML + 64
    L_QP = L_H + 64
    L_CNT = L_QP + 512
    L_WIN = L_CNT + 64
    LDS_BYTES = L_WIN + 1024
    NPT = (32-NS)*64
    NTK = -(-NPT // WT)
    L = []
    A = lambda s: L.append("  " + s)
    LB = lambda s: L.append(s + ":")
    C = lambda s: L.append("  ; " + s)
    DPP = "row_mask:0xf bank_mask:0xf"
    ACC, XR = 16, 32

    svc = [False]
    HL = ['sc1', 'sc0 sc1', 'sc1 nt'][hl]
    HS = ['sc1', 'sc0 sc1', 'sc1 nt'][hs]
    def stamp(k, force=False):
        if ptile and not svc[0] and not force and k not in (0, 7):
            return
        if prof: A(f"s_memrealtime s[{80+2*k}:{81+2*k}]")
    def dump_stamps(svc):
        if not prof: return
        A("s_waitcnt lgkmcnt(0)")
        A("s_lshl_b32 s56, s2, 3")
        A(f"s_add_u32 s56, s56, {'4' if svc else 's3'}")
        A("s_lshl_b32 s56, s56, 6")
        A(f"s_add_u32 s56, s56, {STAMP}")
        A("s_mov_b64 exec, 1")
        A("v_mov_b32 v60, 0")
        for q in range(4):
            for j in range(4):
                A(f"v_mov_b32 v{56+j}, s{80+4*q+j}")
            A(f"buffer_store_dwordx4 v[56:59], v60, s[40:43], s56 offen offset:{16*q}")
            A("s_nop 1")
        A("s_mov_b64 exec, -1")
    def srd(d, lo, hi, n):
        A(f"s_mov_b32 s{d}, s{lo}")
        A(f"s_mov_b32 s{d+1}, s{hi}")
        A(f"s_mov_b32 s{d+2}, {n}")
        A(f"s_mov_b32 s{d+3}, 0x00020000")
    def matvec_pairs(npairs, wbase, xbase, tail_ops):
        for u in range(npairs):
            A(f"s_waitcnt vmcnt({2*npairs - (2*u+2) + tail_ops})")
            w0 = wbase + 8*u; w1 = w0 + 4
            for k in range(4):
                A(f"v_perm_b32 v{52+k}, v{w1+k}, v{w0+k}, s60")
                A(f"v_perm_b32 v{56+k}, v{w1+k}, v{w0+k}, s61")
            for k in range(4):
                A(f"v_dot2c_f32_bf16 v{ACC+2*k}, v{52+k}, v{xbase+u}")
                A(f"v_dot2c_f32_bf16 v{ACC+2*k+1}, v{56+k}, v{xbase+u}")
        A("s_nop 3")
        for k in range(4):
            A(f"v_permlane32_swap_b32 v{ACC+k}, v{ACC+4+k}")
        A("s_nop 1")
        for k in range(4):
            A(f"v_add_f32 v{ACC+k}, v{ACC+k}, v{ACC+4+k}")
        A("s_nop 1")
        for k in range(2):
            A(f"v_permlane16_swap_b32 v{ACC+k}, v{ACC+2+k}")
        A("s_nop 1")
        for k in range(2):
            A(f"v_add_f32 v{ACC+k}, v{ACC+k}, v{ACC+2+k}")
        for rr in (8, 4):
            A("s_nop 1")
            for k in range(2):
                A(f"v_add_f32_dpp v{ACC+k}, v{ACC+k}, v{ACC+k} row_ror:{rr} {DPP}")
    def make_masks(t0, t1):
        C("v4..v7: lane e=l&7 owns bf16 element e of an 8-element A fragment")
        A(f"v_and_b32 v{t0}, 1, v1")
        A(f"v_lshlrev_b32 v{t0}, 4, v{t0}")
        A(f"v_mov_b32 v{t1}, 0xffff")
        A(f"v_lshlrev_b32 v{t1}, v{t0}, v{t1}")
        A(f"v_bfe_u32 v{t0}, v1, 1, 2")
        for k in range(4):
            A(f"v_cmp_eq_u32 vcc, {k}, v{t0}")
            A("s_nop 1")
            A(f"v_cndmask_b32 v{4+k}, 0, v{t1}, vcc")
    SLOT0 = 64
    def slot(sl, i): return SLOT0 + 32*sl + 4*i
    WQB = slot(5, 0)
    def wq_loads():
        A(f"buffer_load_dwordx4 v[{XR}:{XR+3}], v14, s[44:47], s58 offen")
        for t in range(8):
            A(f"buffer_load_dwordx4 v[{WQB+4*t}:{WQB+4*t+3}], v13, s[48:51], s57 offen")
            if t < 7: A("s_add_u32 s57, s57, 0x2000")
    def q_partial(tail):
        for k in range(8):
            A(f"v_mov_b32 v{ACC+k}, 0")
        A("s_lshl_b32 s58, s3, 7")
        A("v_add_u32 v13, s58, v12")
        matvec_pairs(4, WQB, XR, tail)
        A("s_mov_b64 exec, s[62:63]")
        A(f"ds_write_b64 v13, v[{ACC}:{ACC+1}] offset:{L_QP}")
        A("s_mov_b64 exec, -1")

    L.append(HEADER.rstrip("\n"))
    L.append(f"; @launch grid=(256,1,1) block=({64*(NSW+1)},1,1) lds={ldsx or LDS_BYTES}")
    L.append('.amdgcn_target "amdgcn-amd-amdhsa--gfx950"')
    L.append(".text")
    L.append(f".globl {NAME}_kernel")
    L.append(".p2align 8")
    L.append(f".type {NAME}_kernel,@function")
    LB(f"{NAME}_kernel")
    A("s_cmp_ge_u32 s2, 256")
    A("s_cbranch_scc1 L_end")
    if prof:
        for k in range(8):
            A(f"s_mov_b64 s[{80+2*k}:{81+2*k}], 0")
        stamp(0)
        A("s_waitcnt lgkmcnt(0)")
    if tfix:
        A("s_memrealtime s[92:93]")
        A("s_waitcnt lgkmcnt(0)")
    A("s_load_dwordx2 s[44:45], s[0:1], 0     ; x  -> SRD s[44:47]")
    A("s_load_dwordx2 s[48:49], s[0:1], 24")
    A("s_load_dwordx2 s[32:33], s[0:1], 8     ; K  -> SRD s[32:35]")
    A("s_load_dwordx2 s[40:41], s[0:1], 88")
    A("s_load_dwordx2 s[36:37], s[0:1], 16    ; V  -> SRD s[36:39]")
    A("s_load_dwordx16 s[4:19], s[0:1], 0")
    A("s_load_dwordx8 s[20:27], s[0:1], 64")
    A("v_lshrrev_b32 v2, 6, v0")
    A("v_and_b32 v1, 63, v0                   ; lane")
    A("v_readfirstlane_b32 s3, v2")
    A("s_sub_u32 s3, s3, 1")
    A(f"s_min_u32 s3, s3, {NSW}")
    A("s_lshr_b32 s28, s2, 4                  ; group")
    A("s_and_b32 s29, s2, 15                  ; s")
    A("s_lshr_b32 s30, s2, 7                  ; b")
    A("s_and_b32 s31, s2, 127                 ; i")
    C("s64 = q slice produced here: (i & ~15) + (s&7)*2 + (s>>3)")
    A("s_and_b32 s64, s29, 7")
    A("s_lshl_b32 s64, s64, 1")
    A("s_lshr_b32 s65, s29, 3")
    A("s_add_u32 s64, s64, s65")
    A("s_andn2_b32 s65, s31, 15")
    A("s_add_u32 s64, s64, s65")
    A("v_and_b32 v8, 15, v1")
    A("v_lshrrev_b32 v9, 4, v1                ; g")
    A("v_and_b32 v10, 3, v1")
    A("s_mov_b32 s42, 0x40000000")
    A("s_mov_b32 s43, 0x00020000")
    C("q partial: rows (role*14+rg)*8 + t, cols slice*32 + chunk*8")
    A("s_mul_i32 s58, s30, 896")
    A("s_mov_b32 s46, 1792")
    A("s_mov_b32 s47, 0x00020000")
    A(f"s_mov_b32 s50, {0 if skip & 1 else 448*4096*2}")
    A("s_mov_b32 s51, 0x00020000")
    A("v_lshrrev_b32 v14, 2, v1")
    A("s_mul_i32 s57, s3, 14")
    A("v_cmp_gt_u32 vcc, 14, v14")
    A("v_add_u32 v14, s57, v14")
    A("v_mov_b32 v13, 0x4000")
    A("v_cndmask_b32 v14, v13, v14, vcc")
    A("v_lshlrev_b32 v13, 16, v14")
    A("v_lshl_add_u32 v13, v10, 4, v13")
    A("v_lshlrev_b32 v14, 4, v14")
    A("s_lshl_b32 s57, s64, 6")
    A("v_lshlrev_b32 v12, 5, v10")
    A("v_lshl_add_u32 v12, v9, 3, v12         ; chunk*32 + g*8")
    A("s_mov_b32 s60, 0x05040100")
    A("s_mov_b32 s61, 0x07060302")
    A("s_mov_b32 s62, 0x000f000f")
    A("s_mov_b32 s63, 0x000f000f")
    A(f"s_cmp_lg_u32 s3, {NSW}")
    A("s_cbranch_scc1 L_stream")
    C("service: snapshot of the group's q box and of this WG's own stale tags")
    A("v_lshlrev_b32 v11, 5, v1")
    A("s_lshl_b32 s56, s28, 11")
    A("s_lshl_b32 s59, s30, 7")
    A("s_add_u32 s59, s59, s64")
    A("s_lshl_b32 s59, s59, 7")
    A("s_waitcnt lgkmcnt(0)")
    A(f"buffer_load_dwordx4 v[64:67], v11, s[40:43], s56 offen offset:{QBOX} sc1")
    A(f"buffer_load_dwordx4 v[68:71], v11, s[40:43], s56 offen offset:{QBOX+16} sc1")
    A(f"buffer_load_dwordx2 v[72:73], v12, s[40:43], s59 offen offset:{QBOX} sc1")
    if NSW == 3: wq_loads()
    A("s_branch L_service")

    LB("L_stream")
    A("s_mov_b32 s34, 0x10000000")
    A("s_mov_b32 s35, 0x00020000")
    A("s_mov_b32 s38, 0x10000000")
    A("s_mov_b32 s39, 0x00020000")
    C("tile n of this WG: group<<24 | (s&7)<<21 | (n>>2)<<16 | (s>>3)<<15 | (n&3)<<13")
    A("s_lshl_b32 s56, s28, 24")
    A("s_and_b32 s66, s29, 7")
    A("s_lshl_b32 s66, s66, 21")
    A("s_or_b32 s56, s56, s66")
    A("s_lshr_b32 s66, s29, 3")
    A("s_lshl_b32 s66, s66, 15")
    A("s_or_b32 s56, s56, s66")
    A("s_lshl_b32 s67, s3, 13")
    A("s_or_b32 s56, s56, s67")
    def tstep():
        if NSW == 4:
            A("s_add_u32 s57, s57, 0x10000")
        else:
            A("s_or_b32 s57, s57, 0x8000")
            A("s_add_u32 s57, s57, 0x6000")
            A("s_andn2_b32 s57, s57, 0x8000")
            A("s_or_b32 s57, s57, s66")
    A("v_lshrrev_b32 v3, 2, v8")
    A("v_lshlrev_b32 v2, 11, v3")
    A("v_lshl_add_u32 v2, v9, 6, v2")
    A("v_lshl_add_u32 v2, v10, 4, v2")
    A("v_lshlrev_b32 v3, 11, v9")
    A("v_lshl_add_u32 v3, v8, 4, v3")
    def issue(kind, sl, sreg, which=range(8)):
        srdn = "s[32:35]" if kind == 'k' else "s[36:39]"
        va = "v2" if kind == 'k' else "v3"
        for i in which:
            b = slot(sl, i)
            A(f"buffer_load_dwordx4 v[{b}:{b+3}], {va}, {srdn}, {sreg} offen offset:{256*i} nt")
    A("s_waitcnt lgkmcnt(0)")
    wq_loads()
    A("s_mov_b32 s57, s56")
    for t in range(early):
        issue('k', t, "s57")
        tstep()
    q_partial(8*early)
    A("s_waitcnt lgkmcnt(0)")
    A("s_barrier")
    stamp(7)
    for t in range(early, NPRE):
        A(f"s_waitcnt vmcnt({eh if t == early else PF2})")
        if ptile == 1: stamp(t, True)
        issue('k', t, "s57")
        tstep()
        if t == early:
            A("v_bfe_u32 v12, v1, 3, 1")
            A("v_lshlrev_b32 v13, 2, v12")
            A("v_add_u32 v13, v13, v9")
            A("v_lshlrev_b32 v12, 9, v12")
            A("v_lshl_add_u32 v12, v9, 6, v12")
            A("v_lshl_add_u32 v12, v10, 4, v12")
            A(f"s_mul_i32 s58, s3, {SSTR}")
            A(f"s_add_u32 s58, s58, {L_S}")
            A("v_lshlrev_b32 v13, 4, v13")
            A("v_add_u32 v13, s58, v13")
            make_masks(56, 57)
            A("v_mov_b32 v14, 0xff800000")
            A("v_mov_b32 v15, 0                       ; l")
            for r in range(8):
                A(f"v_mov_b32 v{24+r}, 0")
            A(f"s_mov_b32 s59, {f2u(C_SCALE):#x}")
    A("s_barrier")
    A(f"ds_read_b128 v[16:19], v12 offset:{L_Q}")
    A(f"ds_read_b128 v[20:23], v12 offset:{L_Q+256}")
    stamp(2)
    if ptile == 1: stamp(6, True)
    if ptile == 2: stamp(1, True)
    A("s_waitcnt lgkmcnt(0)")

    def kproc(sl, soff, mid=None, dyn=False, roll=False):
        for r in range(4):
            d = 32 + 4*r
            a0 = slot(sl, 2*r); a1 = slot(sl, 2*r+1)
            A(f"v_mfma_f32_16x16x32_bf16 v[{d}:{d+3}], v[{a0}:{a0+3}], v[16:19], 0")
            A(f"v_mfma_f32_16x16x32_bf16 v[{d}:{d+3}], v[{a1}:{a1+3}], v[20:23], v[{d}:{d+3}]")
            if roll: issue('k', sl, "s57", (2*r, 2*r+1))
        if roll:
            tstep(); A("s_nop 1")
        elif mid: mid()
        else: A("s_nop 4")
        for k in range(4):
            for r in range(4):
                d = 32 + 4*r + k
                if k == 0:
                    A(f"v_mov_b32_dpp v{48+r}, v{d} quad_perm:[0,0,0,0] {DPP}")
                else:
                    A(f"v_add_f32_dpp v{48+r}, v{d}, v{48+r} quad_perm:[{k},{k},{k},{k}] {DPP}")
        for r in range(4):
            A(f"v_cvt_pk_bf16_f32 v{48+r}, 0, v{48+r}")
        if dyn: return
        A("v_max3_f32 v14, v14, v48, v49")
        A("v_max3_f32 v14, v14, v50, v51")
        A(f"ds_write_b128 v13, v[48:51] offset:{soff}")
    def nk():
        issue('k', 0, "s57"); tstep()
    def nv():
        issue('v', 0, "s57"); tstep()
    def nv0():
        A("s_mov_b32 s57, s56"); nv()
    for t in range(NPRE):
        A(f"s_waitcnt vmcnt({8*((NPRE-1-t) + min(t, 1))})")
        kproc(t, t*128, nk if t == 0 else None)
    A(f"v_add_u32 v13, {NPRE*128}, v13")
    def kstep(nxt):
        A("s_waitcnt vmcnt(0)")
        if kip == 0 and nxt is nk: kproc(0, 0, None, False, True)
        elif kip <= 1: kproc(0, 0, nxt)
        else:
            kproc(0, 0); nxt()
    extra = 0
    if ptile == 2:
        stamp(2, True)
        for q in range(3, 7):
            for rep in range(3):
                kstep(nk)
                A("v_add_u32 v13, 128, v13")
                extra += 1
            stamp(q, True)
    A(f"s_mov_b32 s58, {NT - NPRE - 1 - extra}")
    LB("L_kloop")
    kstep(nk)
    A("v_add_u32 v13, 128, v13")
    A("s_sub_u32 s58, s58, 1")
    A("s_cmp_lg_u32 s58, 0")
    A("s_cbranch_scc1 L_kloop")
    kstep(nv0)
    stamp(3)
    C("true max of this wave's keys per head")
    A(f"v_subrev_u32 v13, {(NT-1)*128}, v13")
    A("v_mov_b32 v10, v14")
    A("s_nop 1")
    A("v_permlane32_swap_b32 v10, v14")
    A("s_nop 1")
    A("v_max_f32 v14, v10, v14")
    A("v_mov_b32 v10, v14")
    A("s_nop 1")
    A("v_permlane16_swap_b32 v10, v14")
    A("s_nop 1")
    A("v_max_f32 v14, v10, v14")
    A("v_mul_f32 v11, s59, v14")
    def pprep():
        for r in range(4):
            A(f"v_fma_f32 v{48+r}, v{48+r}, s59, -v11")
        for r in range(4):
            A(f"v_exp_f32 v{48+r}, v{48+r}")
        A("s_nop 0")
        A("v_add_f32 v56, v48, v49")
        A("v_add_f32 v57, v50, v51")
        for r in range(4):
            A(f"v_cvt_pk_bf16_f32 v{48+r}, v{48+r}, v{48+r}")
        A("v_add_f32 v56, v56, v57")
        A("v_add_f32 v15, v15, v56")
        for r in range(4):
            for k in range(4):
                A(f"v_and_b32 v{32+4*r+k}, v{48+r}, v{4+k}")
    def pv(sl, roll=False):
        for r in range(4):
            a = 32 + 4*r
            b0 = slot(sl, 2*r); b1 = slot(sl, 2*r+1)
            A(f"v_mfma_f32_16x16x32_bf16 v[24:27], v[{a}:{a+3}], v[{b0}:{b0+3}], v[24:27]")
            A(f"v_mfma_f32_16x16x32_bf16 v[28:31], v[{a}:{a+3}], v[{b1}:{b1+3}], v[28:31]")
            if roll: issue('v', sl, "s57", (2*r, 2*r+1))
        if roll: tstep()
    def req_ticket():
        A("v_mov_b32 v58, 0")
        A("v_mov_b32 v59, 1")
        A("s_mov_b64 exec, 1")
        A(f"ds_add_rtn_u32 v59, v58, v59 offset:{L_CNT}")
        A("s_mov_b64 exec, -1")
    def lookup_issue(wait_v=False):
        A("s_waitcnt lgkmcnt(0)")
        A("v_readfirstlane_b32 s76, v59")
        if WT == 4:
            A("s_andn2_b32 s77, s76, 3")
            A("s_and_b32 s76, s76, 3")
        else:
            A(f"s_mul_i32 s77, s76, {-(-65536 // WT)}")
            A("s_lshr_b32 s77, s77, 16")
            A(f"s_mul_i32 s79, s77, {WT}")
            A("s_sub_u32 s76, s76, s79")
            A("s_lshl_b32 s77, s77, 2")
        A("v_mov_b32 v58, s77")
        if wait_v: A("s_waitcnt vmcnt(0)")
        A(f"ds_read_b32 v60, v58 offset:{L_WIN}")
    def vstep(off, nxt, post=None, last=False):
        A(f"ds_read_b128 v[48:51], v13 offset:{off}")
        if vip <= 1:
            A("s_waitcnt lgkmcnt(0)")
            pprep()
            if last and pre: lookup_issue(True)
            else: A("s_waitcnt vmcnt(0)")
        else:
            A("s_waitcnt vmcnt(0) lgkmcnt(0)")
            pprep()
            A("s_nop 0")
        if vip == 0 and nxt: pv(0, True)
        else:
            pv(0)
            if nxt: nxt()
        if post: post()
    A(f"s_mov_b32 s58, {NT-2}")
    LB("L_vloop")
    vstep(0, nv)
    A("v_add_u32 v13, 128, v13")
    A("s_sub_u32 s58, s58, 1")
    A("s_cmp_lg_u32 s58, 0")
    A("s_cbranch_scc1 L_vloop")
    vstep(0, nv, req_ticket)
    C("LDS addresses of this wave's partial")
    A("v_lshrrev_b32 v61, 1, v9")
    A("v_lshlrev_b32 v61, 10, v61")
    A("v_lshl_add_u32 v61, v8, 5, v61")
    A("v_and_b32 v62, 1, v9")
    A("v_lshl_add_u32 v61, v62, 4, v61")
    A("s_lshl_b32 s58, s3, 11")
    A("v_add_u32 v61, s58, v61")
    A("s_lshl_b32 s58, s3, 4")
    A("v_and_b32 v62, 8, v1")
    A("v_add_u32 v62, s58, v62")
    assert vip <= 1
    vstep(128, None, None, True)
    stamp(1)
    C("shared pool: sub-ticket (LDS) -> window ticket fetched by the service wave")
    if not pre:
        LB("L_next")
        lookup_issue()
    else:
        LB("L_next")
    A(f"s_mov_b32 s79, {spin_max}")
    LB("L_win")
    A("s_waitcnt lgkmcnt(0)")
    A("v_readfirstlane_b32 s77, v60")
    A("s_cmp_lg_u32 s77, -1")
    A("s_cbranch_scc1 L_win_ok")
    A("s_sleep 1")
    A(f"ds_read_b32 v60, v58 offset:{L_WIN}")
    A("s_sub_u32 s79, s79, 1")
    A("s_cmp_lg_u32 s79, 0")
    A("s_cbranch_scc1 L_win")
    LB("L_win_ok")
    A(f"s_cmp_ge_u32 s77, {NTK}")
    A("s_cbranch_scc1 L_dyn_done")
    A(f"s_mul_i32 s77, s77, {WT}")
    A("s_add_u32 s77, s77, s76")
    if NPT % WT:
        A(f"s_cmp_ge_u32 s77, {NPT}")
        A("s_cbranch_scc1 L_dyn_done")
    A("s_lshl_b32 s78, s28, 24")
    A("s_and_b32 s79, s77, 7")
    A("s_lshl_b32 s79, s79, 13")
    A("s_or_b32 s78, s78, s79")
    A("s_bfe_u32 s79, s77, 0x30003")
    A("s_lshl_b32 s79, s79, 21")
    A("s_or_b32 s78, s78, s79")
    A("s_lshr_b32 s79, s77, 6")
    A(f"s_add_u32 s79, s79, {NS}")
    A("s_lshl_b32 s79, s79, 16")
    A("s_or_b32 s78, s78, s79")
    issue('k', 2, "s78")
    if dseq:
        A("s_waitcnt vmcnt(0)")
        req_ticket()
        kproc(2, 0, lambda: issue('v', 3, "s78"), True)
    else:
        issue('v', 3, "s78")
        A("s_waitcnt vmcnt(8)")
        req_ticket()
        kproc(2, 0, None, True)
    A("v_max3_f32 v10, v48, v49, v50")
    A("v_max_f32 v10, v10, v51")
    A("v_cmp_gt_f32 vcc, v10, v14")
    A("s_cbranch_vccnz L_rare")
    LB("L_back")
    pprep()
    if pre: lookup_issue(True)
    else: A("s_waitcnt vmcnt(0)")
    pv(3)
    A("s_branch L_next")
    LB("L_rare")
    C("running max rose: rescale l and O")
    A("v_max_f32 v10, v10, v14")
    A("v_mov_b32 v56, v10")
    A("s_nop 1")
    A("v_permlane32_swap_b32 v56, v10")
    A("s_nop 1")
    A("v_max_f32 v10, v10, v56")
    A("v_mov_b32 v56, v10")
    A("s_nop 1")
    A("v_permlane16_swap_b32 v56, v10")
    A("s_nop 1")
    A("v_max_f32 v10, v10, v56")
    A("v_sub_f32 v56, v14, v10")
    A("v_mul_f32 v56, s59, v56")
    A("v_exp_f32 v56, v56")
    A("v_mov_b32 v14, v10")
    A("v_mul_f32 v11, s59, v10")
    A("v_mul_f32 v15, v15, v56")
    A("v_readlane_b32 s60, v56, 0")
    A("v_readlane_b32 s61, v56, 8")
    A("s_mov_b32 s62, 0")
    A("s_mov_b32 s63, -1")
    A("v_mov_b32 v57, s60")
    A("s_mov_b64 exec, s[62:63]")
    A("v_mov_b32 v57, s61")
    A("s_mov_b64 exec, -1")
    for r in range(8):
        A(f"v_mul_f32 v{24+r}, v57, v{24+r}")
    A("s_branch L_back")
    LB("L_dyn_done")
    C("wave partial -> LDS")
    A("v_mov_b32 v10, v15")
    A("s_nop 1")
    A("v_permlane32_swap_b32 v10, v15")
    A("s_nop 0")
    A("v_add_f32 v15, v10, v15")
    A("v_mov_b32 v10, v15")
    A(f"ds_write_b128 v61, v[24:27] offset:{L_O}")
    A(f"ds_write_b128 v61, v[28:31] offset:{L_O+512}")
    A("v_permlane16_swap_b32 v10, v15")
    A("s_nop 0")
    A("v_add_f32 v15, v10, v15")
    A("s_mov_b64 exec, 0x101")
    A(f"ds_write_b64 v62, v[14:15] offset:{L_ML}")
    A("s_mov_b64 exec, -1")
    stamp(4)
    A("s_waitcnt lgkmcnt(0)")
    A("s_barrier")
    C("role 0 of WGs with i<28: sums the 128 y partials of 16 output columns")
    A("s_cmp_lg_u32 s3, 0")
    A("s_cbranch_scc1 L_fin")
    A("s_cmp_ge_u32 s31, 28")
    A("s_cbranch_scc1 L_fin")
    srd(44, 22, 23, 1792)
    A("v_lshrrev_b32 v10, 2, v1")
    A(f"v_mul_u32_u24 v10, {OB2S}, v10")
    A("v_and_b32 v11, 3, v1")
    A("v_lshl_add_u32 v10, v11, 4, v10")
    A(f"s_mul_i32 s58, s30, {128*OB2S}")
    A("s_lshl_b32 s61, s31, 6")
    A("s_add_u32 s58, s58, s61")
    A(f"s_add_u32 s58, s58, {OB2}")
    for t in range(8):
        A(f"s_add_u32 s{48+t}, s58, {t*16*OB2S}")
    A("v_lshrrev_b32 v14, 5, v1")
    A("v_lshlrev_b32 v14, 2, v14")
    A("v_lshl_add_u32 v14, v11, 3, v14")
    A("s_mul_i32 s58, s30, 896")
    A("s_lshl_b32 s61, s31, 5")
    A("s_add_u32 s58, s58, s61")
    A(f"s_mov_b32 s60, {spin_max}")
    for t in range(8):
        A(f"s_mov_b64 s[{64+2*t}:{65+2*t}], -1")
    A("s_barrier")
    LB("L_poll2")
    for t in range(8):
        A(f"s_mov_b64 exec, s[{64+2*t}:{65+2*t}]")
        A(f"s_cbranch_execz L_p2s{t}")
        A(f"buffer_load_dwordx4 v[{64+4*t}:{67+4*t}], v10, s[40:43], s{48+t} offen {HL}")
        LB(f"L_p2s{t}")
    A("s_mov_b64 exec, -1")
    A("s_waitcnt vmcnt(0)")
    for t in range(8):
        A(f"v_max3_u32 v{12+(t&1)}, v{64+4*t}, v{65+4*t}, v{66+4*t}")
        A(f"v_max_u32 v{12+(t&1)}, v{12+(t&1)}, v{67+4*t}")
        A(f"v_cmp_eq_u32 s[{64+2*t}:{65+2*t}], -1, v{12+(t&1)}")
    A("s_or_b64 s[62:63], s[64:65], s[66:67]")
    for t in range(2, 8):
        A(f"s_or_b64 s[62:63], s[62:63], s[{64+2*t}:{65+2*t}]")
    A("s_cbranch_scc0 L_poll2_done")
    A(f"s_sleep {s2}")
    A("s_sub_u32 s60, s60, 1")
    A("s_cmp_lg_u32 s60, 0")
    A("s_cbranch_scc1 L_poll2")
    LB("L_poll2_done")
    stamp(5)
    for step in (16, 8, 4):
        for k in range(step):
            A(f"v_add_f32 v{64+k}, v{64+k}, v{64+step+k}")
    A("s_nop 1")
    A("v_permlane32_swap_b32 v64, v66")
    A("v_permlane32_swap_b32 v65, v67")
    A("s_nop 1")
    A("v_add_f32 v64, v64, v66")
    A("v_add_f32 v65, v65, v67")
    A("v_mov_b32 v66, v64")
    A("v_mov_b32 v67, v65")
    A("s_nop 1")
    A("v_permlane16_swap_b32 v66, v64")
    A("v_permlane16_swap_b32 v67, v65")
    A("s_nop 1")
    A("v_add_f32 v64, v64, v66")
    A("v_add_f32 v65, v65, v67")
    A("s_nop 1")
    A(f"v_add_f32_dpp v64, v64, v64 row_ror:8 {DPP}")
    A(f"v_add_f32_dpp v65, v65, v65 row_ror:8 {DPP}")
    A("s_nop 1")
    A(f"v_add_f32_dpp v64, v64, v64 row_ror:4 {DPP}")
    A(f"v_add_f32_dpp v65, v65, v65 row_ror:4 {DPP}")
    A("s_mov_b32 s60, 15")
    A("s_mov_b32 s61, 15")
    A("v_cvt_pk_bf16_f32 v64, v64, v65")
    if tfix:
        LB("L_tfix")
        A("s_memrealtime s[94:95]")
        A("s_waitcnt lgkmcnt(0)")
        A("s_sub_u32 s94, s94, s92")
        A(f"s_cmp_lt_u32 s94, {tfix*100}")
        A("s_cbranch_scc1 L_tfix")
    A("s_mov_b64 exec, s[60:61]")
    A(f"buffer_store_dword v64, v14, s[44:47], s58 offen {['', 'sc1', 'sc0 sc1', 'nt'][osc]}")
    A("s_mov_b64 exec, -1")
    stamp(6)
    LB("L_fin")
    dump_stamps(False)
    A("s_endpgm")

    LB("L_service")
    svc[0] = True
    for k in range(4):
        A(f"v_mov_b32 v{48+k}, -1")
    A("v_lshlrev_b32 v14, 4, v1")
    A("v_mov_b32 v15, 0")
    A(f"ds_write_b32 v15, v15 offset:{L_CNT}")
    A(f"ds_write_b128 v14, v[48:51] offset:{L_WIN}")
    if NSW == 3: q_partial(0)
    A("s_mul_i32 s70, s30, 896")
    A("s_add_u32 s44, s4, s70")
    A("s_addc_u32 s45, s5, 0")
    A("s_mov_b32 s46, 896")
    A(f"s_mul_i32 s57, s2, {OB1S}")
    A(f"s_add_u32 s57, s57, {OB1}")
    A(f"s_mul_i32 s58, s2, {OB2S}")
    A(f"s_add_u32 s58, s58, {OB2}")
    stamp(1)
    A("s_waitcnt lgkmcnt(0)")
    A("s_barrier")
    for w in range(4):
        A(f"ds_read_b64 v[{16+2*w}:{17+2*w}], v12 offset:{L_QP+128*w}")
    A("s_waitcnt vmcnt(0)")
    A("v_add_u32 v72, 0x10000, v72")
    A("v_add_u32 v73, 0x10000, v73")
    A("v_and_b32 v72, 0xffff0000, v72")
    A("v_and_b32 v73, 0xffff0000, v73")
    A("s_waitcnt lgkmcnt(0)")
    A("v_add_f32 v16, v16, v18")
    A("v_add_f32 v17, v17, v19")
    A("v_add_f32 v20, v20, v22")
    A("v_add_f32 v21, v21, v23")
    A("v_add_f32 v16, v16, v20")
    A("v_add_f32 v17, v17, v21")
    A("v_cvt_pk_bf16_f32 v16, v16, 0")
    A("v_cvt_pk_bf16_f32 v17, v17, 0")
    A("v_or_b32 v72, v72, v16")
    A("v_or_b32 v73, v73, v17")
    A("s_mov_b64 exec, s[62:63]")
    A(f"buffer_store_dwordx2 v[72:73], v12, s[40:43], s59 offen offset:{QBOX} sc1")
    A("s_mov_b64 exec, -1")
    stamp(2)
    C("own outboxes := sentinel, ticket counter := 0")
    for k in range(2):
        A(f"buffer_store_dwordx4 v[48:51], v14, s[40:43], s57 offen offset:{1024*k} sc1")
    A("buffer_store_dwordx4 v[48:51], v14, s[40:43], s58 offen sc1")
    A("s_mov_b32 s70, -1")
    A("s_mov_b32 s71, 0xffff")
    A("s_mov_b64 exec, s[70:71]")
    A("buffer_store_dwordx4 v[48:51], v14, s[40:43], s58 offen offset:1024 sc1")
    A("s_mov_b64 exec, 0xffff")
    A("buffer_store_dwordx4 v[48:51], v14, s[40:43], s57 offen offset:2048 sc1")
    A("s_mov_b64 exec, -1")
    A("s_cmp_lg_u32 s29, 0")
    A("s_cbranch_scc1 L_notinit")
    A("s_lshl_b32 s70, s28, 12")
    A(f"s_add_u32 s70, s70, {TICK}")
    A("s_mov_b64 exec, 1")
    A("buffer_store_dword v15, v15, s[40:43], s70 offen sc1")
    A("s_mov_b64 exec, -1")
    LB("L_notinit")
    A("s_lshl_b32 s65, s30, 6")
    A("s_add_u32 s65, s65, 128")
    A("s_mov_b32 s68, 1")
    A("s_mov_b32 s59, 0")
    A("s_mov_b32 s66, 0x10000")
    A("s_waitcnt vmcnt(0)")
    A("s_atomic_add s68, s[24:25], s65")
    LB("L_pollq")
    A(f"buffer_load_dwordx4 v[76:79], v11, s[40:43], s56 offen offset:{QBOX} sc1")
    A(f"buffer_load_dwordx4 v[80:83], v11, s[40:43], s56 offen offset:{QBOX+16} sc1")
    A("s_waitcnt vmcnt(0)")
    for k in range(8):
        A(f"v_xor_b32 v{84+k}, v{64+k}, v{76+k}")
    A("v_min3_u32 v84, v84, v85, v86")
    A("v_min3_u32 v87, v87, v88, v89")
    A("v_min3_u32 v84, v84, v90, v91")
    A("v_min_u32 v84, v84, v87")
    A("v_cmp_gt_u32 vcc, s66, v84")
    A("s_cbranch_vccz L_pollq_done")
    A("s_mov_b64 exec, vcc")
    A("s_add_u32 s59, s59, 1")
    A("s_sleep 1")
    A(f"s_cmp_lt_u32 s59, {fbk}")
    A("s_cbranch_scc1 L_pollq")
    C("the snapshot may have been taken after a producer wrote: once the whole batch arrived, the next read is valid")
    A("s_mov_b32 s70, 0")
    A("s_atomic_add s70, s[24:25], s65 glc")
    A("s_waitcnt lgkmcnt(0)")
    A("s_cmp_ge_u32 s70, 128")
    A("s_cselect_b32 s66, 0, s66")
    A(f"s_cmp_lt_u32 s59, {spin_max}")
    A("s_cbranch_scc1 L_pollq")
    LB("L_pollq_done")
    A("s_mov_b64 exec, -1")
    stamp(3)
    for k in range(4):
        A(f"v_perm_b32 v{48+k}, v{77+2*k}, v{76+2*k}, s60")
    A(f"ds_write_b128 v14, v[48:51] offset:{L_Q}")
    A("s_waitcnt lgkmcnt(0)")
    A("s_barrier")
    stamp(4)
    C("background: FFN hidden slice, gate, output-side weights")
    make_masks(56, 57)
    A("s_and_b32 s66, s31, 7")
    A("s_mul_i32 s66, s66, 14")
    A("s_lshr_b32 s67, s31, 3")
    A("s_add_u32 s66, s66, s67")
    A("s_cmp_lt_u32 s31, 112")
    A(f"s_cselect_b32 s59, {448*1792*2}, 0")
    srd(48, 16, 17, 0 if skip & 2 else "s59")
    srd(32, 18, 19, 0 if skip & 4 else "s59")
    srd(36, 20, 21, 896)
    A("v_lshrrev_b32 v10, 1, v1")
    A("v_and_b32 v11, 1, v1")
    A("v_mul_u32_u24 v12, 28, v10")
    A(f"v_mul_u32_u24 v13, {14*3584}, v10")
    A("v_lshl_add_u32 v13, v11, 4, v13")
    A(f"buffer_load_dwordx4 v[{XR}:{XR+3}], v12, s[44:47], 0 offen")
    A(f"buffer_load_dwordx3 v[{XR+4}:{XR+6}], v12, s[44:47], 0 offen offset:16")
    A("buffer_load_dwordx4 v[40:43], v14, s[44:47], 0 offen")
    A("buffer_load_dwordx4 v[44:47], v14, s[36:39], 0 offen")
    A("s_lshl_b32 s56, s66, 5")
    cnt = [0]
    def thr():
        cnt[0] += 1
        if cnt[0] % SB == 0: A("s_waitcnt vmcnt(0)")
    for t in range(14):
        A(f"buffer_load_dwordx4 v[{64+4*t}:{67+4*t}], v13, s[48:51], s56 offen")
        A("s_add_u32 s56, s56, 3584")
        thr()
    for k in range(8):
        A(f"v_mov_b32 v{ACC+k}, 0")
    matvec_pairs(7, 64, XR, 0)
    A("s_nop 1")
    for k in range(2):
        A(f"v_add_f32_dpp v{ACC+k}, v{ACC+k}, v{ACC+k} row_ror:2 {DPP}")
    A(f"s_mov_b32 s59, {f2u(-math.log2(math.e)):#x}")
    for k in range(2):
        A(f"v_cvt_pk_bf16_f32 v{ACC+k}, 0, v{ACC+k}")
    for k in range(2):
        A(f"v_mul_f32 v{ACC+2+k}, s59, v{ACC+k}")
    for k in range(2):
        A(f"v_exp_f32 v{ACC+2+k}, v{ACC+2+k}")
    A("s_nop 0")
    for k in range(2):
        A(f"v_add_f32 v{ACC+2+k}, 1.0, v{ACC+2+k}")
    for k in range(2):
        A(f"v_rcp_f32 v{ACC+2+k}, v{ACC+2+k}")
    A("s_nop 0")
    for k in range(2):
        A(f"v_mul_f32 v{ACC+k}, v{ACC+k}, v{ACC+2+k}       ; silu")
    A("v_lshlrev_b32 v12, 5, v11")
    A("v_lshl_add_u32 v12, v9, 3, v12")
    A("s_mov_b32 s62, 0x00030003")
    A("s_mov_b32 s63, 0x00030003")
    A("s_mov_b64 exec, s[62:63]")
    A(f"ds_write_b64 v12, v[{ACC}:{ACC+1}] offset:{L_H}")
    A("s_mov_b64 exec, -1")
    A("v_lshlrev_b32 v12, 4, v9")
    A("s_waitcnt lgkmcnt(0)")
    A(f"ds_read_b128 v[{ACC}:{ACC+3}], v12 offset:{L_H}")
    C("gate")
    for k in range(4):
        A(f"v_lshlrev_b32 v52, 16, v{40+k}")
        A(f"v_lshlrev_b32 v53, 16, v{44+k}")
        A(f"v_and_b32 v54, 0xffff0000, v{40+k}")
        A(f"v_and_b32 v55, 0xffff0000, v{44+k}")
        A("v_mul_f32 v52, v52, v53")
        A("v_mul_f32 v54, v54, v55")
        A("v_cvt_pk_bf16_f32 v52, 0, v52")
        A("v_cvt_pk_bf16_f32 v54, 0, v54")
        if k == 0:
            A("v_add_f32 v56, v52, v54")
        else:
            A("v_add_f32 v56, v56, v52")
            A("v_add_f32 v56, v56, v54")
    for rr in (8, 4, 2, 1):
        A("s_nop 1")
        A(f"v_add_f32_dpp v56, v56, v56 row_ror:{rr} {DPP}")
    A("v_mov_b32 v57, v56")
    A("s_nop 1")
    A("v_permlane32_swap_b32 v57, v56")
    A("s_nop 1")
    A("v_add_f32 v56, v56, v57")
    A("v_mov_b32 v57, v56")
    A("s_nop 1")
    A("v_permlane16_swap_b32 v57, v56")
    A("s_nop 1")
    A("v_add_f32 v56, v56, v57")
    A("v_cvt_pk_bf16_f32 v56, 0, v56")
    A("v_mul_f32 v56, s59, v56")
    A("v_exp_f32 v56, v56")
    A("s_nop 0")
    A("v_add_f32 v56, 1.0, v56")
    A("v_rcp_f32 v56, v56")
    A("s_nop 0")
    A("v_cvt_pk_bf16_f32 v2, 0, v56           ; g")
    A("v_sub_f32 v3, 1.0, v2")
    A("v_cvt_pk_bf16_f32 v3, 0, v3            ; 1-g")
    A("s_waitcnt lgkmcnt(0)")
    for t in range(4):
        A(f"v_cvt_pk_bf16_f32 v{ACC+t}, v{ACC+t}, v{ACC+t}")
    for t in range(4):
        for k in range(4):
            A(f"v_and_b32 v{24+4*t+k}, v{ACC+t}, v{4+k}")
    srd(48, 12, 13, 0 if skip & 8 else 4096*448*2)
    A("v_mul_u32_u24 v18, 3584, v9")
    A("v_lshl_add_u32 v18, v8, 4, v18         ; w2 row 16f + 4g + t")
    A("v_mul_u32_u24 v19, 7168, v9")
    A("v_lshl_add_u32 v19, v8, 4, v19")
    A(f"s_mul_i32 s66, s66, {16*896}")
    A(f"s_mul_i32 s67, s31, {32*896}")
    A(f"s_add_u32 s68, s67, {4*896}")
    for t in range(4):
        for cb in range(4):
            b = 64 + 16*t + 4*cb
            A(f"buffer_load_dwordx4 v[{b}:{b+3}], v18, s[32:35], s66 offen offset:{t*896+cb*256}")
            thr()
    for t in range(8):
        for cb in range(4):
            b = 128 + 16*t + 4*cb
            A(f"buffer_load_dwordx4 v[{b}:{b+3}], v19, s[48:51], s{67 + (t>>2)} offen offset:{(t&3)*896+cb*256}")
            thr()
    A("s_waitcnt vmcnt(32)")
    for t in range(4):
        for cb in range(4):
            b = 64 + 16*t + 4*cb
            d = 40 + 4*cb
            c = "0" if t == 0 else f"v[{d}:{d+3}]"
            A(f"v_mfma_f32_16x16x32_bf16 v[{d}:{d+3}], v[{24+4*t}:{27+4*t}], v[{b}:{b+3}], {c}")
    A(f"s_mov_b32 s59, {f2u(C_SCALE):#x}")
    A("v_lshlrev_b32 v10, 5, v1")
    A("v_lshrrev_b32 v11, 5, v1")
    A("v_lshlrev_b32 v11, 3, v11")
    A("v_lshrrev_b32 v15, 2, v1")
    A("v_mul_u32_u24 v15, 144, v15")
    A("v_and_b32 v12, 3, v1")
    A("v_lshl_add_u32 v15, v12, 5, v15")
    A(f"v_mul_u32_u24 v12, {OB1S}, v8")
    A("v_lshl_add_u32 v13, v9, 5, v12")
    A(f"s_mul_i32 s60, s28, {16*OB1S}")
    A("s_mul_i32 s61, s29, 144")
    A("s_add_u32 s60, s60, s61")
    A(f"s_add_u32 s60, s60, {OB1}")
    A("v_lshlrev_b32 v14, 5, v8")
    A("v_lshl_add_u32 v14, v9, 4, v14")
    for k in range(16):
        A(f"v_mul_f32 v{40+k}, v3, v{40+k}")
    C("whole batch arrived => every outbox read later was cleared and the ticket counters are set")
    A(f"s_mov_b32 s56, {spin_max}")
    LB("L_pollg")
    A("s_mov_b32 s70, 0")
    A("s_atomic_add s70, s[24:25], s65 glc")
    A("s_waitcnt lgkmcnt(0)")
    A("s_cmp_ge_u32 s70, 128")
    A("s_cbranch_scc1 L_pollg_done")
    A("s_sleep 16")
    A("s_sub_u32 s56, s56, 1")
    A("s_cmp_lg_u32 s56, 0")
    A("s_cbranch_scc1 L_pollg")
    LB("L_pollg_done")
    C("window-ticket server")
    A("s_lshl_b32 s74, s28, 12")
    A(f"s_add_u32 s74, s74, {TICK}")
    A("s_add_u32 s74, s26, s74")
    A("s_addc_u32 s75, s27, 0")
    A("s_mov_b32 s71, 0")
    A("s_mov_b32 s72, 0")
    A("v_mov_b32 v16, 0")
    A(f"s_mov_b32 s56, {spin_max*8}")
    LB("L_tk")
    A(f"ds_read_b32 v17, v16 offset:{L_CNT}")
    A("s_waitcnt lgkmcnt(0)")
    A("v_readfirstlane_b32 s70, v17")
    A("s_cmp_gt_u32 s70, s72")
    A("s_cbranch_scc1 L_tk_fetch")
    A("s_sleep 2")
    A("s_sub_u32 s56, s56, 1")
    A("s_cmp_lg_u32 s56, 0")
    A("s_cbranch_scc1 L_tk")
    A("s_branch L_tk_done")
    LB("L_tk_fetch")
    A("s_mov_b32 s70, 1")
    A("s_atomic_add s70, s[74:75], 0 glc")
    A("v_mov_b32 v17, s71")
    A("s_waitcnt lgkmcnt(0)")
    A("v_mov_b32 v20, s70")
    A("s_add_u32 s71, s71, 4")
    A(f"s_add_u32 s72, s72, {WT}")
    A(f"ds_write_b32 v17, v20 offset:{L_WIN}")
    A(f"s_cmp_lt_u32 s70, {NTK - RET}")
    A("s_cbranch_scc1 L_tk")
    C("one of the last tickets (or none): this WG asks for nothing more")
    A("v_mov_b32 v17, s71")
    A("v_mov_b32 v20, 0x10000")
    for k in range(-(-NSW // WT)):
        A(f"ds_write_b32 v17, v20 offset:{L_WIN + 4*k}")
    LB("L_tk_done")
    A("s_waitcnt vmcnt(0) lgkmcnt(0)")
    A("s_barrier")
    stamp(5)
    if prof: A("s_waitcnt lgkmcnt(0)")
    C("WG combine")
    for w in range(NSW):
        A(f"ds_read_b64 v[{56+2*w}:{57+2*w}], v11 offset:{L_ML+16*w}")
    for w in range(NSW):
        A(f"ds_read_b128 v[{64+8*w}:{67+8*w}], v10 offset:{L_O+2048*w}")
        A(f"ds_read_b128 v[{68+8*w}:{71+8*w}], v10 offset:{L_O+2048*w+16}")
    A(f"s_waitcnt lgkmcnt({2*NSW})")
    A("v_max3_f32 v16, v56, v58, v60")
    if NSW == 4: A("v_max_f32 v16, v16, v62")
    for w in range(NSW):
        A(f"v_sub_f32 v{56+2*w}, v{56+2*w}, v16")
    for w in range(NSW):
        A(f"v_mul_f32 v{56+2*w}, s59, v{56+2*w}")
    for w in range(NSW):
        A(f"v_exp_f32 v{56+2*w}, v{56+2*w}")
    A("s_nop 0")
    A("v_mul_f32 v17, v56, v57")
    for w in range(1, NSW):
        A(f"v_fmac_f32 v17, v{56+2*w}, v{57+2*w}")
    A("s_waitcnt lgkmcnt(0)")
    for k in range(8):
        A(f"v_mul_f32 v{64+k}, v56, v{64+k}")
    for w in range(1, NSW):
        for k in range(8):
            A(f"v_fmac_f32 v{64+k}, v{56+2*w}, v{64+8*w+k}")
    A(f"buffer_store_dwordx4 v[64:67], v15, s[40:43], s57 offen {HS}")
    A(f"buffer_store_dwordx4 v[68:71], v15, s[40:43], s57 offen offset:16 {HS}")
    A("s_mov_b32 s62, 0x11111111")
    A("s_mov_b32 s63, 0x11111111")
    A("s_mov_b64 exec, s[62:63]")
    A(f"buffer_store_dwordx2 v[16:17], v15, s[40:43], s57 offen offset:128 {HS}")
    A("s_mov_b64 exec, -1")
    A(f"s_mov_b32 s56, {spin_max}")
    LB("L_poll1")
    A(f"buffer_load_dwordx4 v[72:75], v13, s[40:43], s60 offen {HL}")
    A(f"buffer_load_dwordx4 v[76:79], v13, s[40:43], s60 offen offset:16 {HL}")
    A(f"buffer_load_dwordx2 v[80:81], v12, s[40:43], s60 offen offset:128 {HL}")
    A("s_waitcnt vmcnt(0)")
    A("v_max3_u32 v18, v72, v73, v74")
    A("v_max3_u32 v19, v75, v76, v77")
    A("v_max3_u32 v18, v18, v78, v79")
    A("v_max3_u32 v19, v19, v80, v81")
    A("v_max_u32 v18, v18, v19")
    A("v_cmp_eq_u32 vcc, -1, v18")
    A("s_cbranch_vccz L_poll1_done")
    A("s_mov_b64 exec, vcc")
    A("s_bcnt1_i32_b64 s61, vcc")
    A(f"s_cmp_le_u32 s61, {lt}")
    A("s_cbranch_scc1 L_poll1_fast")
    A(f"s_sleep {ls}")
    LB("L_poll1_fast")
    A("s_sleep 1")
    A("s_sub_u32 s56, s56, 1")
    A("s_cmp_lg_u32 s56, 0")
    A("s_cbranch_scc1 L_poll1")
    LB("L_poll1_done")
    A("s_mov_b64 exec, -1")
    A("s_barrier")
    stamp(6)
    C("group combine over the 16 producers, then 32 rows of wo")
    A(f"v_max_f32_dpp v18, v80, v80 row_ror:8 {DPP}")
    for rr in (4, 2, 1):
        A("s_nop 1")
        A(f"v_max_f32_dpp v18, v18, v18 row_ror:{rr} {DPP}")
    A("v_sub_f32 v18, v80, v18")
    A("v_mul_f32 v18, s59, v18")
    A("v_exp_f32 v18, v18")
    A("s_nop 0")
    A("v_mul_f32 v80, v18, v81")
    for k in range(8):
        A(f"v_mul_f32 v{72+k}, v18, v{72+k}")
    for rr in (8, 4, 2, 1):
        for k in (8, 0, 1, 2, 3, 4, 5, 6, 7):
            A(f"v_add_f32_dpp v{72+k}, v{72+k}, v{72+k} row_ror:{rr} {DPP}")
    A("v_rcp_f32 v80, v80")
    A("s_nop 0")
    for k in range(8):
        A(f"v_mul_f32 v{72+k}, v80, v{72+k}")
    for k in range(8):
        A(f"v_cvt_pk_bf16_f32 v{72+k}, v{72+k}, v{72+k}")
    def wo_mfma(tt):
        for cb in range(4):
            b = 128 + 16*tt + 4*cb
            d = 16 + 4*cb
            c = "0" if tt == 0 else f"v[{d}:{d+3}]"
            A(f"v_mfma_f32_16x16x32_bf16 v[{d}:{d+3}], v[{88+4*tt}:{91+4*tt}], v[{b}:{b+3}], {c}")
    for t in range(8):
        for k in range(4):
            A(f"v_and_b32 v{88+4*t+k}, v{72+t}, v{4+k}")
        if t >= 1: wo_mfma(t-1)
    wo_mfma(7)
    A("s_mov_b32 s62, -1")
    A("s_mov_b32 s63, 0")
    A("s_nop 3")
    for cb in range(4):
        for k in range(4):
            A(f"v_fmac_f32 v{40+4*cb+k}, v2, v{16+4*cb+k}")
        if cb == 0:
            A("s_mov_b64 exec, s[62:63]")
        if cb == 3:
            A("s_mov_b32 s62, 0x00ff00ff")
            A("s_mov_b64 exec, s[62:63]")
        A(f"buffer_store_dwordx4 v[{40+4*cb}:{43+4*cb}], v14, s[40:43], s58 offen offset:{512*cb} {HS}")
    A("s_mov_b64 exec, -1")
    stamp(7)
    dump_stamps(True)
    LB("L_end")
    A("s_endpgm")
    L.append('.section .rodata,"a"')
    L.append(".p2align 6")
    L.append(f".amdhsa_kernel {NAME}_kernel")
    L.append("  .amdhsa_next_free_vgpr 256")
    L.append("  .amdhsa_next_free_sgpr 96")
    L.append("  .amdhsa_accum_offset 256")
    L.append("  .amdhsa_group_segment_fixed_size 0")
    L.append("  .amdhsa_kernarg_size 96")
    L.append("  .amdhsa_user_sgpr_count 2")
    L.append("  .amdhsa_user_sgpr_kernarg_segment_ptr 1")
    L.append("  .amdhsa_system_sgpr_workgroup_id_x 1")
    L.append(".end_amdhsa_kernel")
    return "\n".join(L) + "\n"


if __name__ == "__main__":
    out = sys.argv[1]
    kw = {}
    for a in sys.argv[2:]:
        k, v = a.split("=")
        kw[k] = int(v)
    open(out, "w").write(gen(**kw))
```

```python
import sys, math, struct

NAME = "gated_mix__gqa_block_cached__dense_activation_silu__decode"
HEADER = open("cdna_kernels/" + NAME + ".s.ref").read().split("; Override launch")[0]

QBOX = 0x0
TICK = 0x10000
OB1 = 0x40000
OB1S = 2304
OB2 = 0x200000
OB2S = 1792
STAMP = 0x20000000
C_SCALE = (1.0 / 16.0) * math.log2(math.e)
def f2u(x): return struct.unpack("<I", struct.pack("<f", x))[0]


def gen(prof=0, NSW=3, NS=30, NPRE=6, kip=1, vip=1, RET=8, fbk=4, SB=8, spin_max=200000, ldsx=0, dseq=0, PF2=0, WT=4, skip=0, ptile=0, early=1, eh=0, hl=0, hs=0, ls=16, lt=28, s2=2, pre=1):
    NT = NS*4 // NSW
    assert NS*4 % NSW == 0 and NSW in (3, 4)
    SSTR = NT*128
    L_Q = 0
    L_S = 1024
    L_O = L_S + NSW*SSTR
    L_ML = L_O + 2048*NSW
    L_H = L_ML + 64
    L_QP = L_H + 64
    L_CNT = L_QP + 512
    L_WIN = L_CNT + 64
    LDS_BYTES = L_WIN + 1024
    NPT = (32-NS)*64
    NTK = -(-NPT // WT)
    L = []
    A = lambda s: L.append("  " + s)
    LB = lambda s: L.append(s + ":")
    C = lambda s: L.append("  ; " + s)
    DPP = "row_mask:0xf bank_mask:0xf"
    ACC, XR = 16, 32

    svc = [False]
    HL = ['sc1', 'sc0 sc1', 'sc1 nt'][hl]
    HS = ['sc1', 'sc0 sc1', 'sc1 nt'][hs]
    def stamp(k, force=False):
        if ptile and not svc[0] and not force and k not in (0, 7):
            return
        if prof: A(f"s_memrealtime s[{80+2*k}:{81+2*k}]")
    def dump_stamps(svc):
        if not prof: return
        A("s_waitcnt lgkmcnt(0)")
        A("s_lshl_b32 s56, s2, 3")
        A(f"s_add_u32 s56, s56, {'4' if svc else 's3'}")
        A("s_lshl_b32 s56, s56, 6")
        A(f"s_add_u32 s56, s56, {STAMP}")
        A("s_mov_b64 exec, 1")
        A("v_mov_b32 v60, 0")
        for q in range(4):
            for j in range(4):
                A(f"v_mov_b32 v{56+j}, s{80+4*q+j}")
            A(f"buffer_store_dwordx4 v[56:59], v60, s[40:43], s56 offen offset:{16*q}")
            A("s_nop 1")
        A("s_mov_b64 exec, -1")
    def srd(d, lo, hi, n):
        A(f"s_mov_b32 s{d}, s{lo}")
        A(f"s_mov_b32 s{d+1}, s{hi}")
        A(f"s_mov_b32 s{d+2}, {n}")
        A(f"s_mov_b32 s{d+3}, 0x00020000")
    def matvec_pairs(npairs, wbase, xbase, tail_ops):
        for u in range(npairs):
            A(f"s_waitcnt vmcnt({2*npairs - (2*u+2) + tail_ops})")
            w0 = wbase + 8*u; w1 = w0 + 4
            for k in range(4):
                A(f"v_perm_b32 v{52+k}, v{w1+k}, v{w0+k}, s60")
                A(f"v_perm_b32 v{56+k}, v{w1+k}, v{w0+k}, s61")
            for k in range(4):
                A(f"v_dot2c_f32_bf16 v{ACC+2*k}, v{52+k}, v{xbase+u}")
                A(f"v_dot2c_f32_bf16 v{ACC+2*k+1}, v{56+k}, v{xbase+u}")
        A("s_nop 3")
        for k in range(4):
            A(f"v_permlane32_swap_b32 v{ACC+k}, v{ACC+4+k}")
        A("s_nop 1")
        for k in range(4):
            A(f"v_add_f32 v{ACC+k}, v{ACC+k}, v{ACC+4+k}")
        A("s_nop 1")
        for k in range(2):
            A(f"v_permlane16_swap_b32 v{ACC+k}, v{ACC+2+k}")
        A("s_nop 1")
        for k in range(2):
            A(f"v_add_f32 v{ACC+k}, v{ACC+k}, v{ACC+2+k}")
        for rr in (8, 4):
            A("s_nop 1")
            for k in range(2):
                A(f"v_add_f32_dpp v{ACC+k}, v{ACC+k}, v{ACC+k} row_ror:{rr} {DPP}")
    def make_masks(t0, t1):
        C("v4..v7: lane e=l&7 owns bf16 element e of an 8-element A fragment")
        A(f"v_and_b32 v{t0}, 1, v1")
        A(f"v_lshlrev_b32 v{t0}, 4, v{t0}")
        A(f"v_mov_b32 v{t1}, 0xffff")
        A(f"v_lshlrev_b32 v{t1}, v{t0}, v{t1}")
        A(f"v_bfe_u32 v{t0}, v1, 1, 2")
        for k in range(4):
            A(f"v_cmp_eq_u32 vcc, {k}, v{t0}")
            A("s_nop 1")
            A(f"v_cndmask_b32 v{4+k}, 0, v{t1}, vcc")
    SLOT0 = 64
    def slot(sl, i): return SLOT0 + 32*sl + 4*i
    WQB = slot(5, 0)
    def wq_loads():
        A(f"buffer_load_dwordx4 v[{XR}:{XR+3}], v14, s[44:47], s58 offen")
        for t in range(8):
            A(f"buffer_load_dwordx4 v[{WQB+4*t}:{WQB+4*t+3}], v13, s[48:51], s57 offen")
            if t < 7: A("s_add_u32 s57, s57, 0x2000")
    def q_partial(tail):
        for k in range(8):
            A(f"v_mov_b32 v{ACC+k}, 0")
        A("s_lshl_b32 s58, s3, 7")
        A("v_add_u32 v13, s58, v12")
        matvec_pairs(4, WQB, XR, tail)
        A("s_mov_b64 exec, s[62:63]")
        A(f"ds_write_b64 v13, v[{ACC}:{ACC+1}] offset:{L_QP}")
        A("s_mov_b64 exec, -1")

    L.append(HEADER.rstrip("\n"))
    L.append(f"; @launch grid=(256,1,1) block=({64*(NSW+1)},1,1) lds={ldsx or LDS_BYTES}")
    L.append('.amdgcn_target "amdgcn-amd-amdhsa--gfx950"')
    L.append(".text")
    L.append(f".globl {NAME}_kernel")
    L.append(".p2align 8")
    L.append(f".type {NAME}_kernel,@function")
    LB(f"{NAME}_kernel")
    A("s_cmp_ge_u32 s2, 256")
    A("s_cbranch_scc1 L_end")
    if prof:
        for k in range(8):
            A(f"s_mov_b64 s[{80+2*k}:{81+2*k}], 0")
        stamp(0)
        A("s_waitcnt lgkmcnt(0)")
    A("s_load_dwordx2 s[44:45], s[0:1], 0     ; x  -> SRD s[44:47]")
    A("s_load_dwordx2 s[48:49], s[0:1], 24")
    A("s_load_dwordx2 s[32:33], s[0:1], 8     ; K  -> SRD s[32:35]")
    A("s_load_dwordx2 s[40:41], s[0:1], 88")
    A("s_load_dwordx2 s[36:37], s[0:1], 16    ; V  -> SRD s[36:39]")
    A("s_load_dwordx16 s[4:19], s[0:1], 0")
    A("s_load_dwordx8 s[20:27], s[0:1], 64")
    A("v_lshrrev_b32 v2, 6, v0")
    A("v_and_b32 v1, 63, v0                   ; lane")
    A("v_readfirstlane_b32 s3, v2")
    A("s_sub_u32 s3, s3, 1")
    A(f"s_min_u32 s3, s3, {NSW}")
    A("s_lshr_b32 s28, s2, 4                  ; group")
    A("s_and_b32 s29, s2, 15                  ; s")
    A("s_lshr_b32 s30, s2, 7                  ; b")
    A("s_and_b32 s31, s2, 127                 ; i")
    C("s64 = q slice produced here: (i & ~15) + (s&7)*2 + (s>>3)")
    A("s_and_b32 s64, s29, 7")
    A("s_lshl_b32 s64, s64, 1")
    A("s_lshr_b32 s65, s29, 3")
    A("s_add_u32 s64, s64, s65")
    A("s_andn2_b32 s65, s31, 15")
    A("s_add_u32 s64, s64, s65")
    A("v_and_b32 v8, 15, v1")
    A("v_lshrrev_b32 v9, 4, v1                ; g")
    A("v_and_b32 v10, 3, v1")
    A("s_mov_b32 s42, 0x40000000")
    A("s_mov_b32 s43, 0x00020000")
    C("q partial: rows (role*14+rg)*8 + t, cols slice*32 + chunk*8")
    A("s_mul_i32 s58, s30, 896")
    A("s_mov_b32 s46, 1792")
    A("s_mov_b32 s47, 0x00020000")
    A(f"s_mov_b32 s50, {0 if skip & 1 else 448*4096*2}")
    A("s_mov_b32 s51, 0x00020000")
    A("v_lshrrev_b32 v14, 2, v1")
    A("s_mul_i32 s57, s3, 14")
    A("v_cmp_gt_u32 vcc, 14, v14")
    A("v_add_u32 v14, s57, v14")
    A("v_mov_b32 v13, 0x4000")
    A("v_cndmask_b32 v14, v13, v14, vcc")
    A("v_lshlrev_b32 v13, 16, v14")
    A("v_lshl_add_u32 v13, v10, 4, v13")
    A("v_lshlrev_b32 v14, 4, v14")
    A("s_lshl_b32 s57, s64, 6")
    A("v_lshlrev_b32 v12, 5, v10")
    A("v_lshl_add_u32 v12, v9, 3, v12         ; chunk*32 + g*8")
    A("s_mov_b32 s60, 0x05040100")
    A("s_mov_b32 s61, 0x07060302")
    A("s_mov_b32 s62, 0x000f000f")
    A("s_mov_b32 s63, 0x000f000f")
    A(f"s_cmp_lg_u32 s3, {NSW}")
    A("s_cbranch_scc1 L_stream")
    C("service: snapshot of the group's q box and of this WG's own stale tags")
    A("v_lshlrev_b32 v11, 5, v1")
    A("s_lshl_b32 s56, s28, 11")
    A("s_lshl_b32 s59, s30, 7")
    A("s_add_u32 s59, s59, s64")
    A("s_lshl_b32 s59, s59, 7")
    A("s_waitcnt lgkmcnt(0)")
    A(f"buffer_load_dwordx4 v[64:67], v11, s[40:43], s56 offen offset:{QBOX} sc1")
    A(f"buffer_load_dwordx4 v[68:71], v11, s[40:43], s56 offen offset:{QBOX+16} sc1")
    A(f"buffer_load_dwordx2 v[72:73], v12, s[40:43], s59 offen offset:{QBOX} sc1")
    if NSW == 3: wq_loads()
    A("s_branch L_service")

    LB("L_stream")
    A("s_mov_b32 s34, 0x10000000")
    A("s_mov_b32 s35, 0x00020000")
    A("s_mov_b32 s38, 0x10000000")
    A("s_mov_b32 s39, 0x00020000")
    C("tile n of this WG: group<<24 | (s&7)<<21 | (n>>2)<<16 | (s>>3)<<15 | (n&3)<<13")
    A("s_lshl_b32 s56, s28, 24")
    A("s_and_b32 s66, s29, 7")
    A("s_lshl_b32 s66, s66, 21")
    A("s_or_b32 s56, s56, s66")
    A("s_lshr_b32 s66, s29, 3")
    A("s_lshl_b32 s66, s66, 15")
    A("s_or_b32 s56, s56, s66")
    A("s_lshl_b32 s67, s3, 13")
    A("s_or_b32 s56, s56, s67")
    def tstep():
        if NSW == 4:
            A("s_add_u32 s57, s57, 0x10000")
        else:
            A("s_or_b32 s57, s57, 0x8000")
            A("s_add_u32 s57, s57, 0x6000")
            A("s_andn2_b32 s57, s57, 0x8000")
            A("s_or_b32 s57, s57, s66")
    A("v_lshrrev_b32 v3, 2, v8")
    A("v_lshlrev_b32 v2, 11, v3")
    A("v_lshl_add_u32 v2, v9, 6, v2")
    A("v_lshl_add_u32 v2, v10, 4, v2")
    A("v_lshlrev_b32 v3, 11, v9")
    A("v_lshl_add_u32 v3, v8, 4, v3")
    def issue(kind, sl, sreg, which=range(8)):
        srdn = "s[32:35]" if kind == 'k' else "s[36:39]"
        va = "v2" if kind == 'k' else "v3"
        for i in which:
            b = slot(sl, i)
            A(f"buffer_load_dwordx4 v[{b}:{b+3}], {va}, {srdn}, {sreg} offen offset:{256*i} nt")
    A("s_waitcnt lgkmcnt(0)")
    wq_loads()
    A("s_mov_b32 s57, s56")
    for t in range(early):
        issue('k', t, "s57")
        tstep()
    q_partial(8*early)
    A("s_waitcnt lgkmcnt(0)")
    A("s_barrier")
    stamp(7)
    for t in range(early, NPRE):
        A(f"s_waitcnt vmcnt({eh if t == early else PF2})")
        if ptile == 1: stamp(t, True)
        issue('k', t, "s57")
        tstep()
        if t == early:
            A("v_bfe_u32 v12, v1, 3, 1")
            A("v_lshlrev_b32 v13, 2, v12")
            A("v_add_u32 v13, v13, v9")
            A("v_lshlrev_b32 v12, 9, v12")
            A("v_lshl_add_u32 v12, v9, 6, v12")
            A("v_lshl_add_u32 v12, v10, 4, v12")
            A(f"s_mul_i32 s58, s3, {SSTR}")
            A(f"s_add_u32 s58, s58, {L_S}")
            A("v_lshlrev_b32 v13, 4, v13")
            A("v_add_u32 v13, s58, v13")
            make_masks(56, 57)
            A("v_mov_b32 v14, 0xff800000")
            A("v_mov_b32 v15, 0                       ; l")
            for r in range(8):
                A(f"v_mov_b32 v{24+r}, 0")
            A(f"s_mov_b32 s59, {f2u(C_SCALE):#x}")
    A("s_barrier")
    A(f"ds_read_b128 v[16:19], v12 offset:{L_Q}")
    A(f"ds_read_b128 v[20:23], v12 offset:{L_Q+256}")
    stamp(2)
    if ptile == 1: stamp(6, True)
    if ptile == 2: stamp(1, True)
    A("s_waitcnt lgkmcnt(0)")

    def kproc(sl, soff, mid=None, dyn=False, roll=False):
        for r in range(4):
            d = 32 + 4*r
            a0 = slot(sl, 2*r); a1 = slot(sl, 2*r+1)
            A(f"v_mfma_f32_16x16x32_bf16 v[{d}:{d+3}], v[{a0}:{a0+3}], v[16:19], 0")
            A(f"v_mfma_f32_16x16x32_bf16 v[{d}:{d+3}], v[{a1}:{a1+3}], v[20:23], v[{d}:{d+3}]")
            if roll: issue('k', sl, "s57", (2*r, 2*r+1))
        if roll:
            tstep(); A("s_nop 1")
        elif mid: mid()
        else: A("s_nop 4")
        for k in range(4):
            for r in range(4):
                d = 32 + 4*r + k
                if k == 0:
                    A(f"v_mov_b32_dpp v{48+r}, v{d} quad_perm:[0,0,0,0] {DPP}")
                else:
                    A(f"v_add_f32_dpp v{48+r}, v{d}, v{48+r} quad_perm:[{k},{k},{k},{k}] {DPP}")
        for r in range(4):
            A(f"v_cvt_pk_bf16_f32 v{48+r}, 0, v{48+r}")
        if dyn: return
        A("v_max3_f32 v14, v14, v48, v49")
        A("v_max3_f32 v14, v14, v50, v51")
        A(f"ds_write_b128 v13, v[48:51] offset:{soff}")
    def nk():
        issue('k', 0, "s57"); tstep()
    def nv():
        issue('v', 0, "s57"); tstep()
    def nv0():
        A("s_mov_b32 s57, s56"); nv()
    for t in range(NPRE):
        A(f"s_waitcnt vmcnt({8*((NPRE-1-t) + min(t, 1))})")
        kproc(t, t*128, nk if t == 0 else None)
    A(f"v_add_u32 v13, {NPRE*128}, v13")
    def kstep(nxt):
        A("s_waitcnt vmcnt(0)")
        if kip == 0 and nxt is nk: kproc(0, 0, None, False, True)
        elif kip <= 1: kproc(0, 0, nxt)
        else:
            kproc(0, 0); nxt()
    extra = 0
    if ptile == 2:
        stamp(2, True)
        for q in range(3, 7):
            for rep in range(3):
                kstep(nk)
                A("v_add_u32 v13, 128, v13")
                extra += 1
            stamp(q, True)
    A(f"s_mov_b32 s58, {NT - NPRE - 1 - extra}")
    LB("L_kloop")
    kstep(nk)
    A("v_add_u32 v13, 128, v13")
    A("s_sub_u32 s58, s58, 1")
    A("s_cmp_lg_u32 s58, 0")
    A("s_cbranch_scc1 L_kloop")
    kstep(nv0)
    stamp(3)
    C("true max of this wave's keys per head")
    A(f"v_subrev_u32 v13, {(NT-1)*128}, v13")
    A("v_mov_b32 v10, v14")
    A("s_nop 1")
    A("v_permlane32_swap_b32 v10, v14")
    A("s_nop 1")
    A("v_max_f32 v14, v10, v14")
    A("v_mov_b32 v10, v14")
    A("s_nop 1")
    A("v_permlane16_swap_b32 v10, v14")
    A("s_nop 1")
    A("v_max_f32 v14, v10, v14")
    A("v_mul_f32 v11, s59, v14")
    def pprep():
        for r in range(4):
            A(f"v_fma_f32 v{48+r}, v{48+r}, s59, -v11")
        for r in range(4):
            A(f"v_exp_f32 v{48+r}, v{48+r}")
        A("s_nop 0")
        A("v_add_f32 v56, v48, v49")
        A("v_add_f32 v57, v50, v51")
        for r in range(4):
            A(f"v_cvt_pk_bf16_f32 v{48+r}, v{48+r}, v{48+r}")
        A("v_add_f32 v56, v56, v57")
        A("v_add_f32 v15, v15, v56")
        for r in range(4):
            for k in range(4):
                A(f"v_and_b32 v{32+4*r+k}, v{48+r}, v{4+k}")
    def pv(sl, roll=False):
        for r in range(4):
            a = 32 + 4*r
            b0 = slot(sl, 2*r); b1 = slot(sl, 2*r+1)
            A(f"v_mfma_f32_16x16x32_bf16 v[24:27], v[{a}:{a+3}], v[{b0}:{b0+3}], v[24:27]")
            A(f"v_mfma_f32_16x16x32_bf16 v[28:31], v[{a}:{a+3}], v[{b1}:{b1+3}], v[28:31]")
            if roll: issue('v', sl, "s57", (2*r, 2*r+1))
        if roll: tstep()
    def req_ticket():
        A("v_mov_b32 v58, 0")
        A("v_mov_b32 v59, 1")
        A("s_mov_b64 exec, 1")
        A(f"ds_add_rtn_u32 v59, v58, v59 offset:{L_CNT}")
        A("s_mov_b64 exec, -1")
    def lookup_issue(wait_v=False):
        A("s_waitcnt lgkmcnt(0)")
        A("v_readfirstlane_b32 s76, v59")
        if WT == 4:
            A("s_andn2_b32 s77, s76, 3")
            A("s_and_b32 s76, s76, 3")
        else:
            A(f"s_mul_i32 s77, s76, {-(-65536 // WT)}")
            A("s_lshr_b32 s77, s77, 16")
            A(f"s_mul_i32 s79, s77, {WT}")
            A("s_sub_u32 s76, s76, s79")
            A("s_lshl_b32 s77, s77, 2")
        A("v_mov_b32 v58, s77")
        if wait_v: A("s_waitcnt vmcnt(0)")
        A(f"ds_read_b32 v60, v58 offset:{L_WIN}")
    def vstep(off, nxt, post=None, last=False):
        A(f"ds_read_b128 v[48:51], v13 offset:{off}")
        if vip <= 1:
            A("s_waitcnt lgkmcnt(0)")
            pprep()
            if last and pre: lookup_issue(True)
            else: A("s_waitcnt vmcnt(0)")
        else:
            A("s_waitcnt vmcnt(0) lgkmcnt(0)")
            pprep()
            A("s_nop 0")
        if vip == 0 and nxt: pv(0, True)
        else:
            pv(0)
            if nxt: nxt()
        if post: post()
    A(f"s_mov_b32 s58, {NT-2}")
    LB("L_vloop")
    vstep(0, nv)
    A("v_add_u32 v13, 128, v13")
    A("s_sub_u32 s58, s58, 1")
    A("s_cmp_lg_u32 s58, 0")
    A("s_cbranch_scc1 L_vloop")
    vstep(0, nv, req_ticket)
    C("LDS addresses of this wave's partial")
    A("v_lshrrev_b32 v61, 1, v9")
    A("v_lshlrev_b32 v61, 10, v61")
    A("v_lshl_add_u32 v61, v8, 5, v61")
    A("v_and_b32 v62, 1, v9")
    A("v_lshl_add_u32 v61, v62, 4, v61")
    A("s_lshl_b32 s58, s3, 11")
    A("v_add_u32 v61, s58, v61")
    A("s_lshl_b32 s58, s3, 4")
    A("v_and_b32 v62, 8, v1")
    A("v_add_u32 v62, s58, v62")
    assert vip <= 1
    vstep(128, None, None, True)
    stamp(1)
    C("shared pool: sub-ticket (LDS) -> window ticket fetched by the service wave")
    if not pre:
        LB("L_next")
        lookup_issue()
    else:
        LB("L_next")
    A(f"s_mov_b32 s79, {spin_max}")
    LB("L_win")
    A("s_waitcnt lgkmcnt(0)")
    A("v_readfirstlane_b32 s77, v60")
    A("s_cmp_lg_u32 s77, -1")
    A("s_cbranch_scc1 L_win_ok")
    A("s_sleep 1")
    A(f"ds_read_b32 v60, v58 offset:{L_WIN}")
    A("s_sub_u32 s79, s79, 1")
    A("s_cmp_lg_u32 s79, 0")
    A("s_cbranch_scc1 L_win")
    LB("L_win_ok")
    A(f"s_cmp_ge_u32 s77, {NTK}")
    A("s_cbranch_scc1 L_dyn_done")
    A(f"s_mul_i32 s77, s77, {WT}")
    A("s_add_u32 s77, s77, s76")
    if NPT % WT:
        A(f"s_cmp_ge_u32 s77, {NPT}")
        A("s_cbranch_scc1 L_dyn_done")
    A("s_lshl_b32 s78, s28, 24")
    A("s_and_b32 s79, s77, 7")
    A("s_lshl_b32 s79, s79, 13")
    A("s_or_b32 s78, s78, s79")
    A("s_bfe_u32 s79, s77, 0x30003")
    A("s_lshl_b32 s79, s79, 21")
    A("s_or_b32 s78, s78, s79")
    A("s_lshr_b32 s79, s77, 6")
    A(f"s_add_u32 s79, s79, {NS}")
    A("s_lshl_b32 s79, s79, 16")
    A("s_or_b32 s78, s78, s79")
    issue('k', 2, "s78")
    if dseq:
        A("s_waitcnt vmcnt(0)")
        req_ticket()
        kproc(2, 0, lambda: issue('v', 3, "s78"), True)
    else:
        issue('v', 3, "s78")
        A("s_waitcnt vmcnt(8)")
        req_ticket()
        kproc(2, 0, None, True)
    A("v_max3_f32 v10, v48, v49, v50")
    A("v_max_f32 v10, v10, v51")
    A("v_cmp_gt_f32 vcc, v10, v14")
    A("s_cbranch_vccnz L_rare")
    LB("L_back")
    pprep()
    if pre: lookup_issue(True)
    else: A("s_waitcnt vmcnt(0)")
    pv(3)
    A("s_branch L_next")
    LB("L_rare")
    C("running max rose: rescale l and O")
    A("v_max_f32 v10, v10, v14")
    A("v_mov_b32 v56, v10")
    A("s_nop 1")
    A("v_permlane32_swap_b32 v56, v10")
    A("s_nop 1")
    A("v_max_f32 v10, v10, v56")
    A("v_mov_b32 v56, v10")
    A("s_nop 1")
    A("v_permlane16_swap_b32 v56, v10")
    A("s_nop 1")
    A("v_max_f32 v10, v10, v56")
    A("v_sub_f32 v56, v14, v10")
    A("v_mul_f32 v56, s59, v56")
    A("v_exp_f32 v56, v56")
    A("v_mov_b32 v14, v10")
    A("v_mul_f32 v11, s59, v10")
    A("v_mul_f32 v15, v15, v56")
    A("v_readlane_b32 s60, v56, 0")
    A("v_readlane_b32 s61, v56, 8")
    A("s_mov_b32 s62, 0")
    A("s_mov_b32 s63, -1")
    A("v_mov_b32 v57, s60")
    A("s_mov_b64 exec, s[62:63]")
    A("v_mov_b32 v57, s61")
    A("s_mov_b64 exec, -1")
    for r in range(8):
        A(f"v_mul_f32 v{24+r}, v57, v{24+r}")
    A("s_branch L_back")
    LB("L_dyn_done")
    C("wave partial -> LDS")
    A("v_mov_b32 v10, v15")
    A("s_nop 1")
    A("v_permlane32_swap_b32 v10, v15")
    A("s_nop 0")
    A("v_add_f32 v15, v10, v15")
    A("v_mov_b32 v10, v15")
    A(f"ds_write_b128 v61, v[24:27] offset:{L_O}")
    A(f"ds_write_b128 v61, v[28:31] offset:{L_O+512}")
    A("v_permlane16_swap_b32 v10, v15")
    A("s_nop 0")
    A("v_add_f32 v15, v10, v15")
    A("s_mov_b64 exec, 0x101")
    A(f"ds_write_b64 v62, v[14:15] offset:{L_ML}")
    A("s_mov_b64 exec, -1")
    stamp(4)
    A("s_waitcnt lgkmcnt(0)")
    A("s_barrier")
    C("role 0 of WGs with i<28: sums the 128 y partials of 16 output columns")
    A("s_cmp_lg_u32 s3, 0")
    A("s_cbranch_scc1 L_fin")
    A("s_cmp_ge_u32 s31, 28")
    A("s_cbranch_scc1 L_fin")
    srd(44, 22, 23, 1792)
    A("v_lshrrev_b32 v10, 2, v1")
    A(f"v_mul_u32_u24 v10, {OB2S}, v10")
    A("v_and_b32 v11, 3, v1")
    A("v_lshl_add_u32 v10, v11, 4, v10")
    A(f"s_mul_i32 s58, s30, {128*OB2S}")
    A("s_lshl_b32 s61, s31, 6")
    A("s_add_u32 s58, s58, s61")
    A(f"s_add_u32 s58, s58, {OB2}")
    for t in range(8):
        A(f"s_add_u32 s{48+t}, s58, {t*16*OB2S}")
    A("v_lshrrev_b32 v14, 5, v1")
    A("v_lshlrev_b32 v14, 2, v14")
    A("v_lshl_add_u32 v14, v11, 3, v14")
    A("s_mul_i32 s58, s30, 896")
    A("s_lshl_b32 s61, s31, 5")
    A("s_add_u32 s58, s58, s61")
    A(f"s_mov_b32 s60, {spin_max}")
    for t in range(8):
        A(f"s_mov_b64 s[{64+2*t}:{65+2*t}], -1")
    A("s_barrier")
    LB("L_poll2")
    for t in range(8):
        A(f"s_mov_b64 exec, s[{64+2*t}:{65+2*t}]")
        A(f"s_cbranch_execz L_p2s{t}")
        A(f"buffer_load_dwordx4 v[{64+4*t}:{67+4*t}], v10, s[40:43], s{48+t} offen {HL}")
        LB(f"L_p2s{t}")
    A("s_mov_b64 exec, -1")
    A("s_waitcnt vmcnt(0)")
    for t in range(8):
        A(f"v_max3_u32 v{12+(t&1)}, v{64+4*t}, v{65+4*t}, v{66+4*t}")
        A(f"v_max_u32 v{12+(t&1)}, v{12+(t&1)}, v{67+4*t}")
        A(f"v_cmp_eq_u32 s[{64+2*t}:{65+2*t}], -1, v{12+(t&1)}")
    A("s_or_b64 s[62:63], s[64:65], s[66:67]")
    for t in range(2, 8):
        A(f"s_or_b64 s[62:63], s[62:63], s[{64+2*t}:{65+2*t}]")
    A("s_cbranch_scc0 L_poll2_done")
    A(f"s_sleep {s2}")
    A("s_sub_u32 s60, s60, 1")
    A("s_cmp_lg_u32 s60, 0")
    A("s_cbranch_scc1 L_poll2")
    LB("L_poll2_done")
    stamp(5)
    for step in (16, 8, 4):
        for k in range(step):
            A(f"v_add_f32 v{64+k}, v{64+k}, v{64+step+k}")
    A("s_nop 1")
    A("v_permlane32_swap_b32 v64, v66")
    A("v_permlane32_swap_b32 v65, v67")
    A("s_nop 1")
    A("v_add_f32 v64, v64, v66")
    A("v_add_f32 v65, v65, v67")
    A("v_mov_b32 v66, v64")
    A("v_mov_b32 v67, v65")
    A("s_nop 1")
    A("v_permlane16_swap_b32 v66, v64")
    A("v_permlane16_swap_b32 v67, v65")
    A("s_nop 1")
    A("v_add_f32 v64, v64, v66")
    A("v_add_f32 v65, v65, v67")
    A("s_nop 1")
    A(f"v_add_f32_dpp v64, v64, v64 row_ror:8 {DPP}")
    A(f"v_add_f32_dpp v65, v65, v65 row_ror:8 {DPP}")
    A("s_nop 1")
    A(f"v_add_f32_dpp v64, v64, v64 row_ror:4 {DPP}")
    A(f"v_add_f32_dpp v65, v65, v65 row_ror:4 {DPP}")
    A("s_mov_b32 s60, 15")
    A("s_mov_b32 s61, 15")
    A("v_cvt_pk_bf16_f32 v64, v64, v65")
    A("s_mov_b64 exec, s[60:61]")
    A("buffer_store_dword v64, v14, s[44:47], s58 offen")
    A("s_mov_b64 exec, -1")
    stamp(6)
    LB("L_fin")
    dump_stamps(False)
    A("s_endpgm")

    LB("L_service")
    svc[0] = True
    for k in range(4):
        A(f"v_mov_b32 v{48+k}, -1")
    A("v_lshlrev_b32 v14, 4, v1")
    A("v_mov_b32 v15, 0")
    A(f"ds_write_b32 v15, v15 offset:{L_CNT}")
    A(f"ds_write_b128 v14, v[48:51] offset:{L_WIN}")
    if NSW == 3: q_partial(0)
    A("s_mul_i32 s70, s30, 896")
    A("s_add_u32 s44, s4, s70")
    A("s_addc_u32 s45, s5, 0")
    A("s_mov_b32 s46, 896")
    A(f"s_mul_i32 s57, s2, {OB1S}")
    A(f"s_add_u32 s57, s57, {OB1}")
    A(f"s_mul_i32 s58, s2, {OB2S}")
    A(f"s_add_u32 s58, s58, {OB2}")
    stamp(1)
    A("s_waitcnt lgkmcnt(0)")
    A("s_barrier")
    for w in range(4):
        A(f"ds_read_b64 v[{16+2*w}:{17+2*w}], v12 offset:{L_QP+128*w}")
    A("s_waitcnt vmcnt(0)")
    A("v_add_u32 v72, 0x10000, v72")
    A("v_add_u32 v73, 0x10000, v73")
    A("v_and_b32 v72, 0xffff0000, v72")
    A("v_and_b32 v73, 0xffff0000, v73")
    A("s_waitcnt lgkmcnt(0)")
    A("v_add_f32 v16, v16, v18")
    A("v_add_f32 v17, v17, v19")
    A("v_add_f32 v20, v20, v22")
    A("v_add_f32 v21, v21, v23")
    A("v_add_f32 v16, v16, v20")
    A("v_add_f32 v17, v17, v21")
    A("v_cvt_pk_bf16_f32 v16, v16, 0")
    A("v_cvt_pk_bf16_f32 v17, v17, 0")
    A("v_or_b32 v72, v72, v16")
    A("v_or_b32 v73, v73, v17")
    A("s_mov_b64 exec, s[62:63]")
    A(f"buffer_store_dwordx2 v[72:73], v12, s[40:43], s59 offen offset:{QBOX} sc1")
    A("s_mov_b64 exec, -1")
    stamp(2)
    C("own outboxes := sentinel, ticket counter := 0")
    for k in range(2):
        A(f"buffer_store_dwordx4 v[48:51], v14, s[40:43], s57 offen offset:{1024*k} sc1")
    A("buffer_store_dwordx4 v[48:51], v14, s[40:43], s58 offen sc1")
    A("s_mov_b32 s70, -1")
    A("s_mov_b32 s71, 0xffff")
    A("s_mov_b64 exec, s[70:71]")
    A("buffer_store_dwordx4 v[48:51], v14, s[40:43], s58 offen offset:1024 sc1")
    A("s_mov_b64 exec, 0xffff")
    A("buffer_store_dwordx4 v[48:51], v14, s[40:43], s57 offen offset:2048 sc1")
    A("s_mov_b64 exec, -1")
    A("s_cmp_lg_u32 s29, 0")
    A("s_cbranch_scc1 L_notinit")
    A("s_lshl_b32 s70, s28, 12")
    A(f"s_add_u32 s70, s70, {TICK}")
    A("s_mov_b64 exec, 1")
    A("buffer_store_dword v15, v15, s[40:43], s70 offen sc1")
    A("s_mov_b64 exec, -1")
    LB("L_notinit")
    A("s_lshl_b32 s65, s30, 6")
    A("s_add_u32 s65, s65, 128")
    A("s_mov_b32 s68, 1")
    A("s_mov_b32 s59, 0")
    A("s_mov_b32 s66, 0x10000")
    A("s_waitcnt vmcnt(0)")
    A("s_atomic_add s68, s[24:25], s65")
    LB("L_pollq")
    A(f"buffer_load_dwordx4 v[76:79], v11, s[40:43], s56 offen offset:{QBOX} sc1")
    A(f"buffer_load_dwordx4 v[80:83], v11, s[40:43], s56 offen offset:{QBOX+16} sc1")
    A("s_waitcnt vmcnt(0)")
    for k in range(8):
        A(f"v_xor_b32 v{84+k}, v{64+k}, v{76+k}")
    A("v_min3_u32 v84, v84, v85, v86")
    A("v_min3_u32 v87, v87, v88, v89")
    A("v_min3_u32 v84, v84, v90, v91")
    A("v_min_u32 v84, v84, v87")
    A("v_cmp_gt_u32 vcc, s66, v84")
    A("s_cbranch_vccz L_pollq_done")
    A("s_mov_b64 exec, vcc")
    A("s_add_u32 s59, s59, 1")
    A("s_sleep 1")
    A(f"s_cmp_lt_u32 s59, {fbk}")
    A("s_cbranch_scc1 L_pollq")
    C("the snapshot may have been taken after a producer wrote: once the whole batch arrived, the next read is valid")
    A("s_mov_b32 s70, 0")
    A("s_atomic_add s70, s[24:25], s65 glc")
    A("s_waitcnt lgkmcnt(0)")
    A("s_cmp_ge_u32 s70, 128")
    A("s_cselect_b32 s66, 0, s66")
    A(f"s_cmp_lt_u32 s59, {spin_max}")
    A("s_cbranch_scc1 L_pollq")
    LB("L_pollq_done")
    A("s_mov_b64 exec, -1")
    stamp(3)
    for k in range(4):
        A(f"v_perm_b32 v{48+k}, v{77+2*k}, v{76+2*k}, s60")
    A(f"ds_write_b128 v14, v[48:51] offset:{L_Q}")
    A("s_waitcnt lgkmcnt(0)")
    A("s_barrier")
    stamp(4)
    C("background: FFN hidden slice, gate, output-side weights")
    make_masks(56, 57)
    A("s_and_b32 s66, s31, 7")
    A("s_mul_i32 s66, s66, 14")
    A("s_lshr_b32 s67, s31, 3")
    A("s_add_u32 s66, s66, s67")
    A("s_cmp_lt_u32 s31, 112")
    A(f"s_cselect_b32 s59, {448*1792*2}, 0")
    srd(48, 16, 17, 0 if skip & 2 else "s59")
    srd(32, 18, 19, 0 if skip & 4 else "s59")
    srd(36, 20, 21, 896)
    A("v_lshrrev_b32 v10, 1, v1")
    A("v_and_b32 v11, 1, v1")
    A("v_mul_u32_u24 v12, 28, v10")
    A(f"v_mul_u32_u24 v13, {14*3584}, v10")
    A("v_lshl_add_u32 v13, v11, 4, v13")
    A(f"buffer_load_dwordx4 v[{XR}:{XR+3}], v12, s[44:47], 0 offen")
    A(f"buffer_load_dwordx3 v[{XR+4}:{XR+6}], v12, s[44:47], 0 offen offset:16")
    A("buffer_load_dwordx4 v[40:43], v14, s[44:47], 0 offen")
    A("buffer_load_dwordx4 v[44:47], v14, s[36:39], 0 offen")
    A("s_lshl_b32 s56, s66, 5")
    cnt = [0]
    def thr():
        cnt[0] += 1
        if cnt[0] % SB == 0: A("s_waitcnt vmcnt(0)")
    for t in range(14):
        A(f"buffer_load_dwordx4 v[{64+4*t}:{67+4*t}], v13, s[48:51], s56 offen")
        A("s_add_u32 s56, s56, 3584")
        thr()
    for k in range(8):
        A(f"v_mov_b32 v{ACC+k}, 0")
    matvec_pairs(7, 64, XR, 0)
    A("s_nop 1")
    for k in range(2):
        A(f"v_add_f32_dpp v{ACC+k}, v{ACC+k}, v{ACC+k} row_ror:2 {DPP}")
    A(f"s_mov_b32 s59, {f2u(-math.log2(math.e)):#x}")
    for k in range(2):
        A(f"v_cvt_pk_bf16_f32 v{ACC+k}, 0, v{ACC+k}")
    for k in range(2):
        A(f"v_mul_f32 v{ACC+2+k}, s59, v{ACC+k}")
    for k in range(2):
        A(f"v_exp_f32 v{ACC+2+k}, v{ACC+2+k}")
    A("s_nop 0")
    for k in range(2):
        A(f"v_add_f32 v{ACC+2+k}, 1.0, v{ACC+2+k}")
    for k in range(2):
        A(f"v_rcp_f32 v{ACC+2+k}, v{ACC+2+k}")
    A("s_nop 0")
    for k in range(2):
        A(f"v_mul_f32 v{ACC+k}, v{ACC+k}, v{ACC+2+k}       ; silu")
    A("v_lshlrev_b32 v12, 5, v11")
    A("v_lshl_add_u32 v12, v9, 3, v12")
    A("s_mov_b32 s62, 0x00030003")
    A("s_mov_b32 s63, 0x00030003")
    A("s_mov_b64 exec, s[62:63]")
    A(f"ds_write_b64 v12, v[{ACC}:{ACC+1}] offset:{L_H}")
    A("s_mov_b64 exec, -1")
    A("v_lshlrev_b32 v12, 4, v9")
    A("s_waitcnt lgkmcnt(0)")
    A(f"ds_read_b128 v[{ACC}:{ACC+3}], v12 offset:{L_H}")
    C("gate")
    for k in range(4):
        A(f"v_lshlrev_b32 v52, 16, v{40+k}")
        A(f"v_lshlrev_b32 v53, 16, v{44+k}")
        A(f"v_and_b32 v54, 0xffff0000, v{40+k}")
        A(f"v_and_b32 v55, 0xffff0000, v{44+k}")
        A("v_mul_f32 v52, v52, v53")
        A("v_mul_f32 v54, v54, v55")
        A("v_cvt_pk_bf16_f32 v52, 0, v52")
        A("v_cvt_pk_bf16_f32 v54, 0, v54")
        if k == 0:
            A("v_add_f32 v56, v52, v54")
        else:
            A("v_add_f32 v56, v56, v52")
            A("v_add_f32 v56, v56, v54")
    for rr in (8, 4, 2, 1):
        A("s_nop 1")
        A(f"v_add_f32_dpp v56, v56, v56 row_ror:{rr} {DPP}")
    A("v_mov_b32 v57, v56")
    A("s_nop 1")
    A("v_permlane32_swap_b32 v57, v56")
    A("s_nop 1")
    A("v_add_f32 v56, v56, v57")
    A("v_mov_b32 v57, v56")
    A("s_nop 1")
    A("v_permlane16_swap_b32 v57, v56")
    A("s_nop 1")
    A("v_add_f32 v56, v56, v57")
    A("v_cvt_pk_bf16_f32 v56, 0, v56")
    A("v_mul_f32 v56, s59, v56")
    A("v_exp_f32 v56, v56")
    A("s_nop 0")
    A("v_add_f32 v56, 1.0, v56")
    A("v_rcp_f32 v56, v56")
    A("s_nop 0")
    A("v_cvt_pk_bf16_f32 v2, 0, v56           ; g")
    A("v_sub_f32 v3, 1.0, v2")
    A("v_cvt_pk_bf16_f32 v3, 0, v3            ; 1-g")
    A("s_waitcnt lgkmcnt(0)")
    for t in range(4):
        A(f"v_cvt_pk_bf16_f32 v{ACC+t}, v{ACC+t}, v{ACC+t}")
    for t in range(4):
        for k in range(4):
            A(f"v_and_b32 v{24+4*t+k}, v{ACC+t}, v{4+k}")
    srd(48, 12, 13, 0 if skip & 8 else 4096*448*2)
    A("v_mul_u32_u24 v18, 3584, v9")
    A("v_lshl_add_u32 v18, v8, 4, v18         ; w2 row 16f + 4g + t")
    A("v_mul_u32_u24 v19, 7168, v9")
    A("v_lshl_add_u32 v19, v8, 4, v19")
    A(f"s_mul_i32 s66, s66, {16*896}")
    A(f"s_mul_i32 s67, s31, {32*896}")
    A(f"s_add_u32 s68, s67, {4*896}")
    for t in range(4):
        for cb in range(4):
            b = 64 + 16*t + 4*cb
            A(f"buffer_load_dwordx4 v[{b}:{b+3}], v18, s[32:35], s66 offen offset:{t*896+cb*256}")
            thr()
    for t in range(8):
        for cb in range(4):
            b = 128 + 16*t + 4*cb
            A(f"buffer_load_dwordx4 v[{b}:{b+3}], v19, s[48:51], s{67 + (t>>2)} offen offset:{(t&3)*896+cb*256}")
            thr()
    A("s_waitcnt vmcnt(32)")
    for t in range(4):
        for cb in range(4):
            b = 64 + 16*t + 4*cb
            d = 40 + 4*cb
            c = "0" if t == 0 else f"v[{d}:{d+3}]"
            A(f"v_mfma_f32_16x16x32_bf16 v[{d}:{d+3}], v[{24+4*t}:{27+4*t}], v[{b}:{b+3}], {c}")
    A(f"s_mov_b32 s59, {f2u(C_SCALE):#x}")
    A("v_lshlrev_b32 v10, 5, v1")
    A("v_lshrrev_b32 v11, 5, v1")
    A("v_lshlrev_b32 v11, 3, v11")
    A("v_lshrrev_b32 v15, 2, v1")
    A("v_mul_u32_u24 v15, 144, v15")
    A("v_and_b32 v12, 3, v1")
    A("v_lshl_add_u32 v15, v12, 5, v15")
    A(f"v_mul_u32_u24 v12, {OB1S}, v8")
    A("v_lshl_add_u32 v13, v9, 5, v12")
    A(f"s_mul_i32 s60, s28, {16*OB1S}")
    A("s_mul_i32 s61, s29, 144")
    A("s_add_u32 s60, s60, s61")
    A(f"s_add_u32 s60, s60, {OB1}")
    A("v_lshlrev_b32 v14, 5, v8")
    A("v_lshl_add_u32 v14, v9, 4, v14")
    for k in range(16):
        A(f"v_mul_f32 v{40+k}, v3, v{40+k}")
    C("whole batch arrived => every outbox read later was cleared and the ticket counters are set")
    A(f"s_mov_b32 s56, {spin_max}")
    LB("L_pollg")
    A("s_mov_b32 s70, 0")
    A("s_atomic_add s70, s[24:25], s65 glc")
    A("s_waitcnt lgkmcnt(0)")
    A("s_cmp_ge_u32 s70, 128")
    A("s_cbranch_scc1 L_pollg_done")
    A("s_sleep 16")
    A("s_sub_u32 s56, s56, 1")
    A("s_cmp_lg_u32 s56, 0")
    A("s_cbranch_scc1 L_pollg")
    LB("L_pollg_done")
    C("window-ticket server")
    A("s_lshl_b32 s74, s28, 12")
    A(f"s_add_u32 s74, s74, {TICK}")
    A("s_add_u32 s74, s26, s74")
    A("s_addc_u32 s75, s27, 0")
    A("s_mov_b32 s71, 0")
    A("s_mov_b32 s72, 0")
    A("v_mov_b32 v16, 0")
    A(f"s_mov_b32 s56, {spin_max*8}")
    LB("L_tk")
    A(f"ds_read_b32 v17, v16 offset:{L_CNT}")
    A("s_waitcnt lgkmcnt(0)")
    A("v_readfirstlane_b32 s70, v17")
    A("s_cmp_gt_u32 s70, s72")
    A("s_cbranch_scc1 L_tk_fetch")
    A("s_sleep 2")
    A("s_sub_u32 s56, s56, 1")
    A("s_cmp_lg_u32 s56, 0")
    A("s_cbranch_scc1 L_tk")
    A("s_branch L_tk_done")
    LB("L_tk_fetch")
    A("s_mov_b32 s70, 1")
    A("s_atomic_add s70, s[74:75], 0 glc")
    A("v_mov_b32 v17, s71")
    A("s_waitcnt lgkmcnt(0)")
    A("v_mov_b32 v20, s70")
    A("s_add_u32 s71, s71, 4")
    A(f"s_add_u32 s72, s72, {WT}")
    A(f"ds_write_b32 v17, v20 offset:{L_WIN}")
    A(f"s_cmp_lt_u32 s70, {NTK - RET}")
    A("s_cbranch_scc1 L_tk")
    C("one of the last tickets (or none): this WG asks for nothing more")
    A("v_mov_b32 v17, s71")
    A("v_mov_b32 v20, 0x10000")
    for k in range(-(-NSW // WT)):
        A(f"ds_write_b32 v17, v20 offset:{L_WIN + 4*k}")
    LB("L_tk_done")
    A("s_waitcnt vmcnt(0) lgkmcnt(0)")
    A("s_barrier")
    stamp(5)
    if prof: A("s_waitcnt lgkmcnt(0)")
    C("WG combine")
    for w in range(NSW):
        A(f"ds_read_b64 v[{56+2*w}:{57+2*w}], v11 offset:{L_ML+16*w}")
    for w in range(NSW):
        A(f"ds_read_b128 v[{64+8*w}:{67+8*w}], v10 offset:{L_O+2048*w}")
        A(f"ds_read_b128 v[{68+8*w}:{71+8*w}], v10 offset:{L_O+2048*w+16}")
    A(f"s_waitcnt lgkmcnt({2*NSW})")
    A("v_max3_f32 v16, v56, v58, v60")
    if NSW == 4: A("v_max_f32 v16, v16, v62")
    for w in range(NSW):
        A(f"v_sub_f32 v{56+2*w}, v{56+2*w}, v16")
    for w in range(NSW):
        A(f"v_mul_f32 v{56+2*w}, s59, v{56+2*w}")
    for w in range(NSW):
        A(f"v_exp_f32 v{56+2*w}, v{56+2*w}")
    A("s_nop 0")
    A("v_mul_f32 v17, v56, v57")
    for w in range(1, NSW):
        A(f"v_fmac_f32 v17, v{56+2*w}, v{57+2*w}")
    A("s_waitcnt lgkmcnt(0)")
    for k in range(8):
        A(f"v_mul_f32 v{64+k}, v56, v{64+k}")
    for w in range(1, NSW):
        for k in range(8):
            A(f"v_fmac_f32 v{64+k}, v{56+2*w}, v{64+8*w+k}")
    A(f"buffer_store_dwordx4 v[64:67], v15, s[40:43], s57 offen {HS}")
    A(f"buffer_store_dwordx4 v[68:71], v15, s[40:43], s57 offen offset:16 {HS}")
    A("s_mov_b32 s62, 0x11111111")
    A("s_mov_b32 s63, 0x11111111")
    A("s_mov_b64 exec, s[62:63]")
    A(f"buffer_store_dwordx2 v[16:17], v15, s[40:43], s57 offen offset:128 {HS}")
    A("s_mov_b64 exec, -1")
    A(f"s_mov_b32 s56, {spin_max}")
    LB("L_poll1")
    A(f"buffer_load_dwordx4 v[72:75], v13, s[40:43], s60 offen {HL}")
    A(f"buffer_load_dwordx4 v[76:79], v13, s[40:43], s60 offen offset:16 {HL}")
    A(f"buffer_load_dwordx2 v[80:81], v12, s[40:43], s60 offen offset:128 {HL}")
    A("s_waitcnt vmcnt(0)")
    A("v_max3_u32 v18, v72, v73, v74")
    A("v_max3_u32 v19, v75, v76, v77")
    A("v_max3_u32 v18, v18, v78, v79")
    A("v_max3_u32 v19, v19, v80, v81")
    A("v_max_u32 v18, v18, v19")
    A("v_cmp_eq_u32 vcc, -1, v18")
    A("s_cbranch_vccz L_poll1_done")
    A("s_mov_b64 exec, vcc")
    A("s_bcnt1_i32_b64 s61, vcc")
    A(f"s_cmp_le_u32 s61, {lt}")
    A("s_cbranch_scc1 L_poll1_fast")
    A(f"s_sleep {ls}")
    LB("L_poll1_fast")
    A("s_sleep 1")
    A("s_sub_u32 s56, s56, 1")
    A("s_cmp_lg_u32 s56, 0")
    A("s_cbranch_scc1 L_poll1")
    LB("L_poll1_done")
    A("s_mov_b64 exec, -1")
    A("s_barrier")
    stamp(6)
    C("group combine over the 16 producers, then 32 rows of wo")
    A(f"v_max_f32_dpp v18, v80, v80 row_ror:8 {DPP}")
    for rr in (4, 2, 1):
        A("s_nop 1")
        A(f"v_max_f32_dpp v18, v18, v18 row_ror:{rr} {DPP}")
    A("v_sub_f32 v18, v80, v18")
    A("v_mul_f32 v18, s59, v18")
    A("v_exp_f32 v18, v18")
    A("s_nop 0")
    A("v_mul_f32 v80, v18, v81")
    for k in range(8):
        A(f"v_mul_f32 v{72+k}, v18, v{72+k}")
    for rr in (8, 4, 2, 1):
        for k in (8, 0, 1, 2, 3, 4, 5, 6, 7):
            A(f"v_add_f32_dpp v{72+k}, v{72+k}, v{72+k} row_ror:{rr} {DPP}")
    A("v_rcp_f32 v80, v80")
    A("s_nop 0")
    for k in range(8):
        A(f"v_mul_f32 v{72+k}, v80, v{72+k}")
    for k in range(8):
        A(f"v_cvt_pk_bf16_f32 v{72+k}, v{72+k}, v{72+k}")
    def wo_mfma(tt):
        for cb in range(4):
            b = 128 + 16*tt + 4*cb
            d = 16 + 4*cb
            c = "0" if tt == 0 else f"v[{d}:{d+3}]"
            A(f"v_mfma_f32_16x16x32_bf16 v[{d}:{d+3}], v[{88+4*tt}:{91+4*tt}], v[{b}:{b+3}], {c}")
    for t in range(8):
        for k in range(4):
            A(f"v_and_b32 v{88+4*t+k}, v{72+t}, v{4+k}")
        if t >= 1: wo_mfma(t-1)
    wo_mfma(7)
    A("s_mov_b32 s62, -1")
    A("s_mov_b32 s63, 0")
    A("s_nop 3")
    for cb in range(4):
        for k in range(4):
            A(f"v_fmac_f32 v{40+4*cb+k}, v2, v{16+4*cb+k}")
        if cb == 0:
            A("s_mov_b64 exec, s[62:63]")
        if cb == 3:
            A("s_mov_b32 s62, 0x00ff00ff")
            A("s_mov_b64 exec, s[62:63]")
        A(f"buffer_store_dwordx4 v[{40+4*cb}:{43+4*cb}], v14, s[40:43], s58 offen offset:{512*cb} {HS}")
    A("s_mov_b64 exec, -1")
    stamp(7)
    dump_stamps(True)
    LB("L_end")
    A("s_endpgm")
    L.append('.section .rodata,"a"')
    L.append(".p2align 6")
    L.append(f".amdhsa_kernel {NAME}_kernel")
    L.append("  .amdhsa_next_free_vgpr 256")
    L.append("  .amdhsa_next_free_sgpr 96")
    L.append("  .amdhsa_accum_offset 256")
    L.append("  .amdhsa_group_segment_fixed_size 0")
    L.append("  .amdhsa_kernarg_size 96")
    L.append("  .amdhsa_user_sgpr_count 2")
    L.append("  .amdhsa_user_sgpr_kernarg_segment_ptr 1")
    L.append("  .amdhsa_system_sgpr_workgroup_id_x 1")
    L.append(".end_amdhsa_kernel")
    return "\n".join(L) + "\n"


if __name__ == "__main__":
    out = sys.argv[1]
    kw = {}
    for a in sys.argv[2:]:
        k, v = a.split("=")
        kw[k] = int(v)
    open(out, "w").write(gen(**kw))
```

```python
import sys, math, struct

NAME = "gated_mix__gqa_block_cached__dense_activation_silu__decode"
HEADER = open("cdna_kernels/" + NAME + ".s.ref").read().split("; Override launch")[0]

QBOX = 0x0
TICK = 0x10000
OB1 = 0x40000
OB1S = 2304
OB2 = 0x200000
OB2S = 1792
STAMP = 0x20000000
C_SCALE = (1.0 / 16.0) * math.log2(math.e)
def f2u(x): return struct.unpack("<I", struct.pack("<f", x))[0]


DOC = """
One launch, 256 workgroups (group = wg>>4 = batch*8 + kv head, 16 workgroups per group), 4 waves each.
 * wave 0 (service): hands q slices round the group through d_ws (16-bit tags = stale tag + 1, arrival
   counter in d_debug as fall-back), computes a 16-unit FFN slice and the gate, serves window tickets,
   merges the wave partials, merges the 16 partials of a 32-row slice of o and multiplies it with wo.
 * waves 1-3 stream K (scores -> LDS, true max), then V, straight into MFMA operand registers:
   QK^T uses 64-byte row pieces as A rows and picks the diagonal blocks, P.V puts p on the diagonal of
   A so that row-major V is the B operand as loaded.  The last 1/16 of the keys is a shared pool handed
   out by tickets (running max with rescale) so that all workgroups finish together.
 * partial results travel through sentinel-cleared boxes in d_ws (sc1 stores / sc1 loads).
"""

def gen(prof=0, NSW=3, NS=30, NPRE=6, kip=1, vip=1, RET=8, fbk=4, SB=8, spin_max=200000, ldsx=0, dseq=0, PF2=0, WT=3, skip=0, ptile=0, early=1, eh=0, hl=0, hs=0, ls=16, lt=28, s2=2, pre=1, tfix=0, osc=0, tmode=0, ob=3, warm=0, own=1, m3=1):
    NT = NS*4 // NSW
    assert NS*4 % NSW == 0 and NSW in (3, 4)
    SSTR = NT*128
    L_Q = 0
    L_S = 1024
    L_O = L_S + NSW*SSTR
    L_ML = L_O + 2048*NSW
    L_H = L_ML + 64
    L_G = L_H + 64
    L_OP = L_G + 64
    L_QP = L_OP + 128
    L_CNT = L_QP + 512
    L_WIN = L_CNT + 64
    LDS_BYTES = L_WIN + 1024
    NPT = (32-NS)*64
    NTK = -(-NPT // WT)
    L = []
    A = lambda s: L.append("  " + s)
    LB = lambda s: L.append(s + ":")
    C = lambda s: L.append("  ; " + s)
    DPP = "row_mask:0xf bank_mask:0xf"
    ACC, XR = 16, 32

    svc = [False]
    HL = ['sc1', 'sc0 sc1', 'sc1 nt'][hl]
    HS = ['sc1', 'sc0 sc1', 'sc1 nt'][hs]
    def stamp(k, force=False):
        if ptile and not svc[0] and not force and k not in (0, 7):
            return
        if prof: A(f"s_memrealtime s[{80+2*k}:{81+2*k}]")
    def dump_stamps(svc):
        if not prof: return
        A("s_waitcnt lgkmcnt(0)")
        A("s_lshl_b32 s56, s2, 3")
        A(f"s_add_u32 s56, s56, {'4' if svc else 's3'}")
        A("s_lshl_b32 s56, s56, 6")
        A(f"s_add_u32 s56, s56, {STAMP}")
        A("s_mov_b64 exec, 1")
        A("v_mov_b32 v60, 0")
        for q in range(4):
            for j in range(4):
                A(f"v_mov_b32 v{56+j}, s{80+4*q+j}")
            A(f"buffer_store_dwordx4 v[56:59], v60, s[40:43], s56 offen offset:{16*q}")
            A("s_nop 1")
        A("s_mov_b64 exec, -1")
    def srd(d, lo, hi, n):
        A(f"s_mov_b32 s{d}, s{lo}")
        A(f"s_mov_b32 s{d+1}, s{hi}")
        A(f"s_mov_b32 s{d+2}, {n}")
        A(f"s_mov_b32 s{d+3}, 0x00020000")
    def matvec_pairs(npairs, wbase, xbase, tail_ops):
        for u in range(npairs):
            A(f"s_waitcnt vmcnt({2*npairs - (2*u+2) + tail_ops})")
            w0 = wbase + 8*u; w1 = w0 + 4
            for k in range(4):
                A(f"v_perm_b32 v{52+k}, v{w1+k}, v{w0+k}, s60")
                A(f"v_perm_b32 v{56+k}, v{w1+k}, v{w0+k}, s61")
            for k in range(4):
                A(f"v_dot2c_f32_bf16 v{ACC+2*k}, v{52+k}, v{xbase+u}")
                A(f"v_dot2c_f32_bf16 v{ACC+2*k+1}, v{56+k}, v{xbase+u}")
        A("s_nop 3")
        for k in range(4):
            A(f"v_permlane32_swap_b32 v{ACC+k}, v{ACC+4+k}")
        A("s_nop 1")
        for k in range(4):
            A(f"v_add_f32 v{ACC+k}, v{ACC+k}, v{ACC+4+k}")
        A("s_nop 1")
        for k in range(2):
            A(f"v_permlane16_swap_b32 v{ACC+k}, v{ACC+2+k}")
        A("s_nop 1")
        for k in range(2):
            A(f"v_add_f32 v{ACC+k}, v{ACC+k}, v{ACC+2+k}")
        for rr in (8, 4):
            A("s_nop 1")
            for k in range(2):
                A(f"v_add_f32_dpp v{ACC+k}, v{ACC+k}, v{ACC+k} row_ror:{rr} {DPP}")
    def make_masks(t0, t1):
        C("v4..v7: lane e=l&7 owns bf16 element e of an 8-element A fragment")
        A(f"v_and_b32 v{t0}, 1, v1")
        A(f"v_lshlrev_b32 v{t0}, 4, v{t0}")
        A(f"v_mov_b32 v{t1}, 0xffff")
        A(f"v_lshlrev_b32 v{t1}, v{t0}, v{t1}")
        A(f"v_bfe_u32 v{t0}, v1, 1, 2")
        for k in range(4):
            A(f"v_cmp_eq_u32 vcc, {k}, v{t0}")
            A("s_nop 1")
            A(f"v_cndmask_b32 v{4+k}, 0, v{t1}, vcc")
    SLOT0 = 64
    def slot(sl, i): return SLOT0 + 32*sl + 4*i
    WQB = slot(5, 0)
    def wq_loads():
        A(f"buffer_load_dwordx4 v[{XR}:{XR+3}], v14, s[44:47], s58 offen")
        for t in range(8):
            A(f"buffer_load_dwordx4 v[{WQB+4*t}:{WQB+4*t+3}], v13, s[48:51], s57 offen")
            if t < 7: A("s_add_u32 s57, s57, 0x2000")
    def q_partial(tail):
        for k in range(8):
            A(f"v_mov_b32 v{ACC+k}, 0")
        A("s_lshl_b32 s58, s3, 7")
        A("v_add_u32 v13, s58, v12")
        matvec_pairs(4, WQB, XR, tail)
        A("s_mov_b64 exec, s[62:63]")
        A(f"ds_write_b64 v13, v[{ACC}:{ACC+1}] offset:{L_QP}")
        A("s_mov_b64 exec, -1")

    def out_setup():
        C("output side: this wave owns column block cb = role of 32 wo rows and 16 w2 rows")
        A("s_and_b32 s69, s31, 7")
        A("s_mul_i32 s69, s69, 14")
        A("s_lshr_b32 s67, s31, 3")
        A("s_add_u32 s69, s69, s67")
        A(f"s_mul_i32 s69, s69, {16*896}")
        A("s_cmp_lt_u32 s31, 112")
        A(f"s_cselect_b32 s46, {0 if skip & 4 else 448*1792*2}, 0")
        A("s_mov_b32 s44, s18")
        A("s_mov_b32 s45, s19")
        A("s_mov_b32 s47, 0x00020000")
        srd(48, 12, 13, 0 if skip & 8 else 4096*448*2)
        A("s_lshl_b32 s64, s3, 8")
        A("s_add_u32 s69, s69, s64")
        A(f"s_mul_i32 s67, s31, {32*896}")
        A("s_add_u32 s67, s67, s64")
        A(f"s_add_u32 s68, s67, {4*896}")
        A("s_lshl_b32 s64, s64, 1")
        A(f"s_mul_i32 s52, s2, {OB2S}")
        A("s_add_u32 s64, s64, s52")
        A(f"s_add_u32 s64, s64, {OB2}")
        A("s_cmp_eq_u32 s3, 3")
        A("s_cselect_b32 s52, 0x00ff00ff, -1")
        A("s_mov_b32 s53, 0")
        A("v_mul_u32_u24 v54, 3584, v9")
        A("v_lshl_add_u32 v54, v8, 4, v54         ; w2 row 16f + 4g + t")
        A("v_mul_u32_u24 v55, 7168, v9")
        A("v_lshl_add_u32 v55, v8, 4, v55")
        A("v_lshlrev_b32 v53, 5, v8")
        A("v_lshl_add_u32 v53, v9, 4, v53")
        A("v_lshlrev_b32 v52, 4, v9")
    def ffn_mfma():
        for t in range(4):
            c = "0" if t == 0 else "v[20:23]"
            A(f"v_mfma_f32_16x16x32_bf16 v[20:23], v[{24+4*t}:{27+4*t}], v[{160+4*t}:{163+4*t}], {c}")
    def out_loads():
        for t in range(4):
            A(f"buffer_load_dwordx4 v[{160+4*t}:{163+4*t}], v54, s[44:47], s69 offen offset:{t*896}")
        for t in range(8):
            A(f"buffer_load_dwordx4 v[{128+4*t}:{131+4*t}], v55, s[48:51], s{67 + (t>>2)} offen offset:{(t&3)*896}")
    L.append(HEADER.rstrip("\n"))
    L.append(f"; @launch grid=(256,1,1) block=({64*(NSW+1)},1,1) lds={ldsx or LDS_BYTES}")
    L.append('.amdgcn_target "amdgcn-amd-amdhsa--gfx950"')
    for line in DOC.strip("\n").splitlines():
        L.append("; " + line)
    L.append(".text")
    L.append(f".globl {NAME}_kernel")
    L.append(".p2align 8")
    L.append(f".type {NAME}_kernel,@function")
    LB(f"{NAME}_kernel")
    A("s_cmp_ge_u32 s2, 256")
    A("s_cbranch_scc1 L_end")
    if prof:
        for k in range(8):
            A(f"s_mov_b64 s[{80+2*k}:{81+2*k}], 0")
        stamp(0)
        A("s_waitcnt lgkmcnt(0)")
    if tfix:
        A("s_memrealtime s[92:93]")
        A("s_waitcnt lgkmcnt(0)")
    A("s_load_dwordx2 s[44:45], s[0:1], 0     ; x  -> SRD s[44:47]")
    A("s_load_dwordx2 s[48:49], s[0:1], 24")
    A("s_load_dwordx2 s[32:33], s[0:1], 8     ; K  -> SRD s[32:35]")
    A("s_load_dwordx2 s[40:41], s[0:1], 88")
    A("s_load_dwordx2 s[36:37], s[0:1], 16    ; V  -> SRD s[36:39]")
    A("s_load_dwordx16 s[4:19], s[0:1], 0")
    A("s_load_dwordx8 s[20:27], s[0:1], 64")
    A("v_lshrrev_b32 v2, 6, v0")
    A("v_and_b32 v1, 63, v0                   ; lane")
    A("v_readfirstlane_b32 s3, v2")
    A("s_sub_u32 s3, s3, 1")
    A(f"s_min_u32 s3, s3, {NSW}")
    A("s_lshr_b32 s28, s2, 4                  ; group")
    A("s_and_b32 s29, s2, 15                  ; s")
    A("s_lshr_b32 s30, s2, 7                  ; b")
    A("s_and_b32 s31, s2, 127                 ; i")
    C("s64 = q slice produced here: (i & ~15) + (s&7)*2 + (s>>3)")
    A("s_and_b32 s64, s29, 7")
    A("s_lshl_b32 s64, s64, 1")
    A("s_lshr_b32 s65, s29, 3")
    A("s_add_u32 s64, s64, s65")
    A("s_andn2_b32 s65, s31, 15")
    A("s_add_u32 s64, s64, s65")
    A("v_and_b32 v8, 15, v1")
    A("v_lshrrev_b32 v9, 4, v1                ; g")
    A("v_and_b32 v10, 3, v1")
    A("s_mov_b32 s42, 0x40000000")
    A("s_mov_b32 s43, 0x00020000")
    C("q partial: rows (role*14+rg)*8 + t, cols slice*32 + chunk*8")
    A("s_mul_i32 s58, s30, 896")
    A("s_mov_b32 s46, 1792")
    A("s_mov_b32 s47, 0x00020000")
    A(f"s_mov_b32 s50, {0 if skip & 1 else 448*4096*2}")
    A("s_mov_b32 s51, 0x00020000")
    A("v_lshrrev_b32 v14, 2, v1")
    A("s_mul_i32 s57, s3, 14")
    A("v_cmp_gt_u32 vcc, 14, v14")
    A("v_add_u32 v14, s57, v14")
    A("v_mov_b32 v13, 0x4000")
    A("v_cndmask_b32 v14, v13, v14, vcc")
    A("v_lshlrev_b32 v13, 16, v14")
    A("v_lshl_add_u32 v13, v10, 4, v13")
    A("v_lshlrev_b32 v14, 4, v14")
    A("s_lshl_b32 s57, s64, 6")
    A("v_lshlrev_b32 v12, 5, v10")
    A("v_lshl_add_u32 v12, v9, 3, v12         ; chunk*32 + g*8")
    A("s_mov_b32 s60, 0x05040100")
    A("s_mov_b32 s61, 0x07060302")
    A("s_mov_b32 s62, 0x000f000f")
    A("s_mov_b32 s63, 0x000f000f")
    A(f"s_cmp_lg_u32 s3, {NSW}")
    A("s_cbranch_scc1 L_stream")
    C("service: snapshot of the group's q box and of this WG's own stale tags")
    A("v_lshlrev_b32 v11, 5, v1")
    A("s_lshl_b32 s56, s28, 11")
    A("s_lshl_b32 s59, s30, 7")
    A("s_add_u32 s59, s59, s64")
    A("s_lshl_b32 s59, s59, 7")
    A("s_waitcnt lgkmcnt(0)")
    A(f"buffer_load_dwordx4 v[64:67], v11, s[40:43], s56 offen offset:{QBOX} sc1")
    A(f"buffer_load_dwordx4 v[68:71], v11, s[40:43], s56 offen offset:{QBOX+16} sc1")
    A(f"buffer_load_dwordx2 v[72:73], v12, s[40:43], s59 offen offset:{QBOX} sc1")
    if NSW == 3: wq_loads()
    A("s_branch L_service")

    LB("L_stream")
    A("s_mov_b32 s34, 0x10000000")
    A("s_mov_b32 s35, 0x00020000")
    A("s_mov_b32 s38, 0x10000000")
    A("s_mov_b32 s39, 0x00020000")
    C("tile n of this WG: group<<24 | (s&7)<<21 | (n>>2)<<16 | (s>>3)<<15 | (n&3)<<13")
    A("s_lshl_b32 s56, s28, 24")
    A("s_and_b32 s66, s29, 7")
    A("s_lshl_b32 s66, s66, 21")
    A("s_or_b32 s56, s56, s66")
    A("s_lshr_b32 s66, s29, 3")
    A("s_lshl_b32 s66, s66, 15")
    A("s_or_b32 s56, s56, s66")
    A("s_lshl_b32 s67, s3, 13")
    A("s_or_b32 s56, s56, s67")
    def tstep():
        if NSW == 4:
            A("s_add_u32 s57, s57, 0x10000")
        else:
            A("s_or_b32 s57, s57, 0x8000")
            A("s_add_u32 s57, s57, 0x6000")
            A("s_andn2_b32 s57, s57, 0x8000")
            A("s_or_b32 s57, s57, s66")
    A("v_lshrrev_b32 v3, 2, v8")
    A("v_lshlrev_b32 v2, 11, v3")
    A("v_lshl_add_u32 v2, v9, 6, v2")
    A("v_lshl_add_u32 v2, v10, 4, v2")
    A("v_lshlrev_b32 v3, 11, v9")
    A("v_lshl_add_u32 v3, v8, 4, v3")
    def issue(kind, sl, sreg, which=range(8)):
        srdn = "s[32:35]" if kind == 'k' else "s[36:39]"
        va = "v2" if kind == 'k' else "v3"
        for i in which:
            b = slot(sl, i)
            A(f"buffer_load_dwordx4 v[{b}:{b+3}], {va}, {srdn}, {sreg} offen offset:{256*i} nt")
    A("s_waitcnt lgkmcnt(0)")
    wq_loads()
    A("s_mov_b32 s57, s56")
    for t in range(early):
        issue('k', t, "s57")
        tstep()
    q_partial(8*early)
    A("s_waitcnt lgkmcnt(0)")
    A("s_barrier")
    stamp(7)
    for t in range(early, NPRE):
        A(f"s_waitcnt vmcnt({eh if t == early else PF2})")
        if ptile == 1: stamp(t, True)
        issue('k', t, "s57")
        tstep()
        if t == early:
            A("v_bfe_u32 v12, v1, 3, 1")
            A("v_lshlrev_b32 v13, 2, v12")
            A("v_add_u32 v13, v13, v9")
            A("v_lshlrev_b32 v12, 9, v12")
            A("v_lshl_add_u32 v12, v9, 6, v12")
            A("v_lshl_add_u32 v12, v10, 4, v12")
            A(f"s_mul_i32 s58, s3, {SSTR}")
            A(f"s_add_u32 s58, s58, {L_S}")
            A("v_lshlrev_b32 v13, 4, v13")
            A("v_add_u32 v13, s58, v13")
            make_masks(56, 57)
            A("v_mov_b32 v14, 0xff800000")
            A("v_mov_b32 v15, 0                       ; l")
            for r in range(8):
                A(f"v_mov_b32 v{24+r}, 0")
            A(f"s_mov_b32 s59, {f2u(C_SCALE):#x}")
    A("s_barrier")
    A(f"ds_read_b128 v[16:19], v12 offset:{L_Q}")
    A(f"ds_read_b128 v[20:23], v12 offset:{L_Q+256}")
    stamp(2)
    if ptile == 1: stamp(6, True)
    if ptile == 2: stamp(1, True)
    A("s_waitcnt lgkmcnt(0)")

    def kproc(sl, soff, mid=None, dyn=False, roll=False):
        for r in range(4):
            d = 32 + 4*r
            a0 = slot(sl, 2*r); a1 = slot(sl, 2*r+1)
            A(f"v_mfma_f32_16x16x32_bf16 v[{d}:{d+3}], v[{a0}:{a0+3}], v[16:19], 0")
            A(f"v_mfma_f32_16x16x32_bf16 v[{d}:{d+3}], v[{a1}:{a1+3}], v[20:23], v[{d}:{d+3}]")
            if roll: issue('k', sl, "s57", (2*r, 2*r+1))
        if roll:
            tstep(); A("s_nop 1")
        elif mid: mid()
        else: A("s_nop 4")
        for k in range(4):
            for r in range(4):
                d = 32 + 4*r + k
                if k == 0:
                    A(f"v_mov_b32_dpp v{48+r}, v{d} quad_perm:[0,0,0,0] {DPP}")
                else:
                    A(f"v_add_f32_dpp v{48+r}, v{d}, v{48+r} quad_perm:[{k},{k},{k},{k}] {DPP}")
        for r in range(4):
            A(f"v_cvt_pk_bf16_f32 v{48+r}, 0, v{48+r}")
        if dyn: return
        A("v_max3_f32 v14, v14, v48, v49")
        A("v_max3_f32 v14, v14, v50, v51")
        A(f"ds_write_b128 v13, v[48:51] offset:{soff}")
    def nk():
        issue('k', 0, "s57"); tstep()
    def nv():
        issue('v', 0, "s57"); tstep()
    def nv0():
        A("s_mov_b32 s57, s56"); nv()
    for t in range(NPRE):
        A(f"s_waitcnt vmcnt({8*((NPRE-1-t) + min(t, 1))})")
        kproc(t, t*128, nk if t == 0 else None)
    A(f"v_add_u32 v13, {NPRE*128}, v13")
    def kstep(nxt):
        A("s_waitcnt vmcnt(0)")
        if kip == 0 and nxt is nk: kproc(0, 0, None, False, True)
        elif kip <= 1: kproc(0, 0, nxt)
        else:
            kproc(0, 0); nxt()
    extra = 0
    if ptile == 2:
        stamp(2, True)
        for q in range(3, 7):
            for rep in range(3):
                kstep(nk)
                A("v_add_u32 v13, 128, v13")
                extra += 1
            stamp(q, True)
    A(f"s_mov_b32 s58, {NT - NPRE - 1 - extra}")
    LB("L_kloop")
    kstep(nk)
    A("v_add_u32 v13, 128, v13")
    A("s_sub_u32 s58, s58, 1")
    A("s_cmp_lg_u32 s58, 0")
    A("s_cbranch_scc1 L_kloop")
    kstep(nv0)
    stamp(3)
    C("true max of this wave's keys per head")
    A(f"v_subrev_u32 v13, {(NT-1)*128}, v13")
    A("v_mov_b32 v10, v14")
    A("s_nop 1")
    A("v_permlane32_swap_b32 v10, v14")
    A("s_nop 1")
    A("v_max_f32 v14, v10, v14")
    A("v_mov_b32 v10, v14")
    A("s_nop 1")
    A("v_permlane16_swap_b32 v10, v14")
    A("s_nop 1")
    A("v_max_f32 v14, v10, v14")
    A("v_mul_f32 v11, s59, v14")
    def pprep():
        for r in range(4):
            A(f"v_fma_f32 v{48+r}, v{48+r}, s59, -v11")
        for r in range(4):
            A(f"v_exp_f32 v{48+r}, v{48+r}")
        A("s_nop 0")
        A("v_add_f32 v56, v48, v49")
        A("v_add_f32 v57, v50, v51")
        for r in range(4):
            A(f"v_cvt_pk_bf16_f32 v{48+r}, v{48+r}, v{48+r}")
        A("v_add_f32 v56, v56, v57")
        A("v_add_f32 v15, v15, v56")
        for r in range(4):
            for k in range(4):
                A(f"v_and_b32 v{32+4*r+k}, v{48+r}, v{4+k}")
    def pv(sl, roll=False):
        for r in range(4):
            a = 32 + 4*r
            b0 = slot(sl, 2*r); b1 = slot(sl, 2*r+1)
            A(f"v_mfma_f32_16x16x32_bf16 v[24:27], v[{a}:{a+3}], v[{b0}:{b0+3}], v[24:27]")
            A(f"v_mfma_f32_16x16x32_bf16 v[28:31], v[{a}:{a+3}], v[{b1}:{b1+3}], v[28:31]")
            if roll: issue('v', sl, "s57", (2*r, 2*r+1))
        if roll: tstep()
    def req_ticket():
        A("v_mov_b32 v58, 0")
        A("v_mov_b32 v59, 1")
        A("s_mov_b64 exec, 1")
        A(f"ds_add_rtn_u32 v59, v58, v59 offset:{L_CNT}")
        A("s_mov_b64 exec, -1")
    def lookup_issue(wait_v=False):
        A("s_waitcnt lgkmcnt(0)")
        A("v_readfirstlane_b32 s76, v59")
        if WT == 4:
            A("s_andn2_b32 s77, s76, 3")
            A("s_and_b32 s76, s76, 3")
        else:
            A(f"s_mul_i32 s77, s76, {-(-65536 // WT)}")
            A("s_lshr_b32 s77, s77, 16")
            A(f"s_mul_i32 s79, s77, {WT}")
            A("s_sub_u32 s76, s76, s79")
            A("s_lshl_b32 s77, s77, 2")
        A("v_mov_b32 v58, s77")
        if wait_v: A("s_waitcnt vmcnt(0)")
        A(f"ds_read_b32 v60, v58 offset:{L_WIN}")
    def vstep(off, nxt, post=None, last=False):
        A(f"ds_read_b128 v[48:51], v13 offset:{off}")
        if vip <= 1:
            A("s_waitcnt lgkmcnt(0)")
            pprep()
            if last and pre: lookup_issue(True)
            else: A("s_waitcnt vmcnt(0)")
        else:
            A("s_waitcnt vmcnt(0) lgkmcnt(0)")
            pprep()
            A("s_nop 0")
        if vip == 0 and nxt: pv(0, True)
        else:
            pv(0)
            if nxt: nxt()
        if post: post()
    A(f"s_mov_b32 s58, {NT-2}")
    LB("L_vloop")
    vstep(0, nv)
    A("v_add_u32 v13, 128, v13")
    A("s_sub_u32 s58, s58, 1")
    A("s_cmp_lg_u32 s58, 0")
    A("s_cbranch_scc1 L_vloop")
    vstep(0, nv, req_ticket)
    C("LDS addresses of this wave's partial")
    A("v_lshrrev_b32 v61, 1, v9")
    A("v_lshlrev_b32 v61, 10, v61")
    A("v_lshl_add_u32 v61, v8, 5, v61")
    A("v_and_b32 v62, 1, v9")
    A("v_lshl_add_u32 v61, v62, 4, v61")
    A("s_lshl_b32 s58, s3, 11")
    A("v_add_u32 v61, s58, v61")
    A("s_lshl_b32 s58, s3, 4")
    A("v_and_b32 v62, 8, v1")
    A("v_add_u32 v62, s58, v62")
    assert vip <= 1 and NSW == 3
    out_setup()
    vstep(128, None, None, True)
    stamp(1)
    C("shared pool: sub-ticket (LDS) -> window ticket fetched by the service wave")
    if not pre:
        LB("L_next")
        lookup_issue()
    else:
        LB("L_next")
    A(f"s_mov_b32 s79, {spin_max}")
    LB("L_win")
    A("s_waitcnt lgkmcnt(0)")
    A("v_readfirstlane_b32 s77, v60")
    A("s_cmp_lg_u32 s77, -1")
    A("s_cbranch_scc1 L_win_ok")
    A("s_sleep 1")
    A(f"ds_read_b32 v60, v58 offset:{L_WIN}")
    A("s_sub_u32 s79, s79, 1")
    A("s_cmp_lg_u32 s79, 0")
    A("s_cbranch_scc1 L_win")
    LB("L_win_ok")
    A(f"s_cmp_ge_u32 s77, {NTK}")
    A("s_cbranch_scc1 L_dyn_done")
    A(f"s_mul_i32 s77, s77, {WT}")
    A("s_add_u32 s77, s77, s76")
    if NPT % WT:
        A(f"s_cmp_ge_u32 s77, {NPT}")
        A("s_cbranch_scc1 L_dyn_done")
    A("s_lshl_b32 s78, s28, 24")
    A("s_and_b32 s79, s77, 7")
    A("s_lshl_b32 s79, s79, 13")
    A("s_or_b32 s78, s78, s79")
    A("s_bfe_u32 s79, s77, 0x30003")
    A("s_lshl_b32 s79, s79, 21")
    A("s_or_b32 s78, s78, s79")
    A("s_lshr_b32 s79, s77, 6")
    A(f"s_add_u32 s79, s79, {NS}")
    A("s_lshl_b32 s79, s79, 16")
    A("s_or_b32 s78, s78, s79")
    issue('k', 2, "s78")
    if dseq:
        A("s_waitcnt vmcnt(0)")
        req_ticket()
        kproc(2, 0, lambda: issue('v', 3, "s78"), True)
    else:
        issue('v', 3, "s78")
        A("s_waitcnt vmcnt(8)")
        req_ticket()
        kproc(2, 0, None, True)
    A("v_max3_f32 v10, v48, v49, v50")
    A("v_max_f32 v10, v10, v51")
    A("v_cmp_gt_f32 vcc, v10, v14")
    A("s_cbranch_vccnz L_rare")
    LB("L_back")
    pprep()
    if pre: lookup_issue(True)
    else: A("s_waitcnt vmcnt(0)")
    pv(3)
    A("s_branch L_next")
    LB("L_rare")
    C("running max rose: rescale l and O")
    A("v_max_f32 v10, v10, v14")
    A("v_mov_b32 v56, v10")
    A("s_nop 1")
    A("v_permlane32_swap_b32 v56, v10")
    A("s_nop 1")
    A("v_max_f32 v10, v10, v56")
    A("v_mov_b32 v56, v10")
    A("s_nop 1")
    A("v_permlane16_swap_b32 v56, v10")
    A("s_nop 1")
    A("v_max_f32 v10, v10, v56")
    A("v_sub_f32 v56, v14, v10")
    A("v_mul_f32 v56, s59, v56")
    A("v_exp_f32 v56, v56")
    A("v_mov_b32 v14, v10")
    A("v_mul_f32 v11, s59, v10")
    A("v_mul_f32 v15, v15, v56")
    A("v_readlane_b32 s60, v56, 0")
    A("v_readlane_b32 s61, v56, 8")
    A("s_mov_b32 s62, 0")
    A("s_mov_b32 s63, -1")
    A("v_mov_b32 v57, s60")
    A("s_mov_b64 exec, s[62:63]")
    A("v_mov_b32 v57, s61")
    A("s_mov_b64 exec, -1")
    for r in range(8):
        A(f"v_mul_f32 v{24+r}, v57, v{24+r}")
    A("s_branch L_back")
    LB("L_dyn_done")
    C("wave partial -> LDS")
    A("v_mov_b32 v10, v15")
    A("s_nop 1")
    A("v_permlane32_swap_b32 v10, v15")
    A("s_nop 0")
    A("v_add_f32 v15, v10, v15")
    A("v_mov_b32 v10, v15")
    A(f"ds_write_b128 v61, v[24:27] offset:{L_O}")
    A(f"ds_write_b128 v61, v[28:31] offset:{L_O+512}")
    A("v_permlane16_swap_b32 v10, v15")
    A("s_nop 0")
    A("v_add_f32 v15, v10, v15")
    A("s_mov_b64 exec, 0x101")
    A(f"ds_write_b64 v62, v[14:15] offset:{L_ML}")
    A("s_mov_b64 exec, -1")
    stamp(4)
    if ob == 0: out_loads()
    A("s_waitcnt lgkmcnt(0)")
    A("s_barrier")
    if ob == 1: out_loads()
    C("FFN part of this column block (hidden slice and gate come through LDS)")
    A("v_mov_b32 v10, 0")
    A(f"ds_read_b128 v[80:83], v52 offset:{L_H}")
    A(f"ds_read_b64 v[2:3], v10 offset:{L_G}")
    A("v_lshlrev_b32 v52, 1, v52")
    A("s_waitcnt lgkmcnt(0)")
    for t in range(4):
        for k in range(4):
            A(f"v_and_b32 v{24+4*t+k}, v{80+t}, v{4+k}")
    if ob == 3: A("s_barrier")
    if ob >= 2: out_loads()
    LB("L_out")
    A("s_barrier")
    A(f"ds_read_b128 v[72:75], v52 offset:{L_OP}")
    A(f"ds_read_b128 v[76:79], v52 offset:{L_OP+16}")
    A("s_waitcnt vmcnt(0)")
    ffn_mfma()
    A("s_waitcnt lgkmcnt(0)")
    def wo_mfma(tt):
        c = "0" if tt == 0 else "v[16:19]"
        A(f"v_mfma_f32_16x16x32_bf16 v[16:19], v[{88+4*tt}:{91+4*tt}], v[{128+4*tt}:{131+4*tt}], {c}")
    for t in range(8):
        for k in range(4):
            A(f"v_and_b32 v{88+4*t+k}, v{72+t}, v{4+k}")
        if t >= 1: wo_mfma(t-1)
    A("s_nop 0")
    wo_mfma(7)
    A("s_mov_b64 exec, s[52:53]")
    for k in range(4):
        A(f"v_mul_f32 v{20+k}, v3, v{20+k}")
    A("s_nop 2")
    for k in range(4):
        A(f"v_fmac_f32 v{20+k}, v2, v{16+k}")
    A(f"buffer_store_dwordx4 v[20:23], v53, s[40:43], s64 offen {HS}")
    A("s_mov_b64 exec, -1")
    if prof:
        A(f"s_cmp_eq_u32 s3, {NSW}")
        A("s_cbranch_scc1 L_svc_end")
    C("role 0 of WGs with i<28: sums the 128 y partials of 16 output columns")
    A("s_cmp_lg_u32 s3, 0")
    A("s_cbranch_scc1 L_fin")
    A("s_cmp_ge_u32 s31, 28")
    A("s_cbranch_scc1 L_fin")
    srd(44, 22, 23, 1792)
    A("v_lshrrev_b32 v10, 2, v1")
    A(f"v_mul_u32_u24 v10, {OB2S}, v10")
    A("v_and_b32 v11, 3, v1")
    A("v_lshl_add_u32 v10, v11, 4, v10")
    A(f"s_mul_i32 s58, s30, {128*OB2S}")
    A("s_lshl_b32 s61, s31, 6")
    A("s_add_u32 s58, s58, s61")
    A(f"s_add_u32 s58, s58, {OB2}")
    for t in range(8):
        A(f"s_add_u32 s{48+t}, s58, {t*16*OB2S}")
    A("v_lshrrev_b32 v14, 5, v1")
    A("v_lshlrev_b32 v14, 2, v14")
    A("v_lshl_add_u32 v14, v11, 3, v14")
    A("s_mul_i32 s58, s30, 896")
    A("s_lshl_b32 s61, s31, 5")
    A("s_add_u32 s58, s58, s61")
    A(f"s_mov_b32 s60, {spin_max}")
    for t in range(8):
        A(f"s_mov_b64 s[{64+2*t}:{65+2*t}], -1")
    LB("L_poll2")
    for t in range(8):
        A(f"s_mov_b64 exec, s[{64+2*t}:{65+2*t}]")
        A(f"s_cbranch_execz L_p2s{t}")
        A(f"buffer_load_dwordx4 v[{64+4*t}:{67+4*t}], v10, s[40:43], s{48+t} offen {HL}")
        LB(f"L_p2s{t}")
    A("s_mov_b64 exec, -1")
    A("s_waitcnt vmcnt(0)")
    for t in range(8):
        A(f"v_max3_u32 v{12+(t&1)}, v{64+4*t}, v{65+4*t}, v{66+4*t}")
        A(f"v_max_u32 v{12+(t&1)}, v{12+(t&1)}, v{67+4*t}")
        A(f"v_cmp_eq_u32 s[{64+2*t}:{65+2*t}], -1, v{12+(t&1)}")
    A("s_or_b64 s[62:63], s[64:65], s[66:67]")
    for t in range(2, 8):
        A(f"s_or_b64 s[62:63], s[62:63], s[{64+2*t}:{65+2*t}]")
    A("s_cbranch_scc0 L_poll2_done")
    A(f"s_sleep {s2}")
    A("s_sub_u32 s60, s60, 1")
    A("s_cmp_lg_u32 s60, 0")
    A("s_cbranch_scc1 L_poll2")
    LB("L_poll2_done")
    stamp(5)
    for step in (16, 8, 4):
        for k in range(step):
            A(f"v_add_f32 v{64+k}, v{64+k}, v{64+step+k}")
    A("s_nop 1")
    A("v_permlane32_swap_b32 v64, v66")
    A("v_permlane32_swap_b32 v65, v67")
    A("s_nop 1")
    A("v_add_f32 v64, v64, v66")
    A("v_add_f32 v65, v65, v67")
    A("v_mov_b32 v66, v64")
    A("v_mov_b32 v67, v65")
    A("s_nop 1")
    A("v_permlane16_swap_b32 v66, v64")
    A("v_permlane16_swap_b32 v67, v65")
    A("s_nop 1")
    A("v_add_f32 v64, v64, v66")
    A("v_add_f32 v65, v65, v67")
    A("s_nop 1")
    A(f"v_add_f32_dpp v64, v64, v64 row_ror:8 {DPP}")
    A(f"v_add_f32_dpp v65, v65, v65 row_ror:8 {DPP}")
    A("s_nop 1")
    A(f"v_add_f32_dpp v64, v64, v64 row_ror:4 {DPP}")
    A(f"v_add_f32_dpp v65, v65, v65 row_ror:4 {DPP}")
    A("s_mov_b32 s60, 15")
    A("s_mov_b32 s61, 15")
    A("v_cvt_pk_bf16_f32 v64, v64, v65")
    if tfix:
        if tmode:
            A("s_mov_b32 s92, 0")
            A("s_atomic_add s92, s[24:25], 0 glc")
            A("s_waitcnt lgkmcnt(0)")
            if tmode == 1: A("s_not_b32 s92, s92")
        LB("L_tfix")
        A("s_memrealtime s[94:95]")
        A("s_waitcnt lgkmcnt(0)")
        A("s_sub_u32 s94, s94, s92")
        A(f"s_cmp_lt_u32 s94, {tfix*100}")
        A("s_cbranch_scc1 L_tfix")
    A("s_mov_b64 exec, s[60:61]")
    A(f"buffer_store_dword v64, v14, s[44:47], s58 offen {['', 'sc1', 'sc0 sc1', 'nt'][osc]}")
    A("s_mov_b64 exec, -1")
    stamp(6)
    LB("L_fin")
    dump_stamps(False)
    A("s_endpgm")

    LB("L_service")
    svc[0] = True
    for k in range(4):
        A(f"v_mov_b32 v{48+k}, -1")
    A("v_lshlrev_b32 v14, 4, v1")
    A("v_mov_b32 v15, 0")
    A(f"ds_write_b32 v15, v15 offset:{L_CNT}")
    A(f"ds_write_b128 v14, v[48:51] offset:{L_WIN}")
    if NSW == 3: q_partial(0)
    A("s_mul_i32 s70, s30, 896")
    A("s_add_u32 s44, s4, s70")
    A("s_addc_u32 s45, s5, 0")
    A("s_mov_b32 s46, 896")
    A(f"s_mul_i32 s57, s2, {OB1S}")
    A(f"s_add_u32 s57, s57, {OB1}")
    A(f"s_mul_i32 s58, s2, {OB2S}")
    A(f"s_add_u32 s58, s58, {OB2}")
    stamp(1)
    A("s_waitcnt lgkmcnt(0)")
    A("s_barrier")
    for w in range(4):
        A(f"ds_read_b64 v[{16+2*w}:{17+2*w}], v12 offset:{L_QP+128*w}")
    A("s_waitcnt vmcnt(0)")
    A("v_add_u32 v72, 0x10000, v72")
    A("v_add_u32 v73, 0x10000, v73")
    A("v_and_b32 v72, 0xffff0000, v72")
    A("v_and_b32 v73, 0xffff0000, v73")
    A("s_waitcnt lgkmcnt(0)")
    A("v_add_f32 v16, v16, v18")
    A("v_add_f32 v17, v17, v19")
    A("v_add_f32 v20, v20, v22")
    A("v_add_f32 v21, v21, v23")
    A("v_add_f32 v16, v16, v20")
    A("v_add_f32 v17, v17, v21")
    A("v_cvt_pk_bf16_f32 v16, v16, 0")
    A("v_cvt_pk_bf16_f32 v17, v17, 0")
    A("v_or_b32 v72, v72, v16")
    A("v_or_b32 v73, v73, v17")
    A("s_mov_b64 exec, s[62:63]")
    A(f"buffer_store_dwordx2 v[72:73], v12, s[40:43], s59 offen offset:{QBOX} sc1")
    A("s_mov_b64 exec, -1")
    stamp(2)
    C("own outboxes := sentinel, ticket counter := 0")
    for k in range(2):
        A(f"buffer_store_dwordx4 v[48:51], v14, s[40:43], s57 offen offset:{1024*k} sc1")
    A("buffer_store_dwordx4 v[48:51], v14, s[40:43], s58 offen sc1")
    A("s_mov_b32 s70, -1")
    A("s_mov_b32 s71, 0xffff")
    A("s_mov_b64 exec, s[70:71]")
    A("buffer_store_dwordx4 v[48:51], v14, s[40:43], s58 offen offset:1024 sc1")
    A("s_mov_b64 exec, 0xffff")
    A("buffer_store_dwordx4 v[48:51], v14, s[40:43], s57 offen offset:2048 sc1")
    A("s_mov_b64 exec, -1")
    A("s_cmp_lg_u32 s29, 0")
    A("s_cbranch_scc1 L_notinit")
    A("s_lshl_b32 s70, s28, 12")
    A(f"s_add_u32 s70, s70, {TICK}")
    A("s_mov_b64 exec, 1")
    A("buffer_store_dword v15, v15, s[40:43], s70 offen sc1")
    A("s_mov_b64 exec, -1")
    LB("L_notinit")
    A("s_lshl_b32 s65, s30, 6")
    A("s_add_u32 s65, s65, 128")
    A("s_mov_b32 s68, 1")
    A("s_mov_b32 s59, 0")
    A("s_mov_b32 s66, 0x10000")
    A("s_waitcnt vmcnt(0)")
    A("s_atomic_add s68, s[24:25], s65")
    LB("L_pollq")
    A(f"buffer_load_dwordx4 v[76:79], v11, s[40:43], s56 offen offset:{QBOX} sc1")
    A(f"buffer_load_dwordx4 v[80:83], v11, s[40:43], s56 offen offset:{QBOX+16} sc1")
    A("s_waitcnt vmcnt(0)")
    for k in range(8):
        A(f"v_xor_b32 v{84+k}, v{64+k}, v{76+k}")
    A("v_min3_u32 v84, v84, v85, v86")
    A("v_min3_u32 v87, v87, v88, v89")
    A("v_min3_u32 v84, v84, v90, v91")
    A("v_min_u32 v84, v84, v87")
    A("v_cmp_gt_u32 vcc, s66, v84")
    A("s_cbranch_vccz L_pollq_done")
    A("s_mov_b64 exec, vcc")
    A("s_add_u32 s59, s59, 1")
    A("s_sleep 1")
    A(f"s_cmp_lt_u32 s59, {fbk}")
    A("s_cbranch_scc1 L_pollq")
    C("the snapshot may have been taken after a producer wrote: once the whole batch arrived, the next read is valid")
    A("s_mov_b32 s70, 0")
    A("s_atomic_add s70, s[24:25], s65 glc")
    A("s_waitcnt lgkmcnt(0)")
    A("s_cmp_ge_u32 s70, 128")
    A("s_cselect_b32 s66, 0, s66")
    A(f"s_cmp_lt_u32 s59, {spin_max}")
    A("s_cbranch_scc1 L_pollq")
    LB("L_pollq_done")
    A("s_mov_b64 exec, -1")
    stamp(3)
    for k in range(4):
        A(f"v_perm_b32 v{48+k}, v{77+2*k}, v{76+2*k}, s60")
    A(f"ds_write_b128 v14, v[48:51] offset:{L_Q}")
    A("s_waitcnt lgkmcnt(0)")
    A("s_barrier")
    stamp(4)
    if tmode == 1:
        A("s_not_b32 s94, s92")
        A("s_atomic_umax s94, s[24:25], 0")
        A("s_waitcnt lgkmcnt(0)")
    if tmode == 2:
        A("s_mov_b32 s94, s92")
        A("s_atomic_umax s94, s[24:25], 0")
        A("s_waitcnt lgkmcnt(0)")
    if tmode == 3:
        A("s_memrealtime s[94:95]")
        A("s_waitcnt lgkmcnt(0)")
        A("s_atomic_umax s94, s[24:25], 0")
        A("s_waitcnt lgkmcnt(0)")
    C("background: FFN hidden slice, gate, output-side weights")
    make_masks(56, 57)
    A("s_and_b32 s66, s31, 7")
    A("s_mul_i32 s66, s66, 14")
    A("s_lshr_b32 s67, s31, 3")
    A("s_add_u32 s66, s66, s67")
    A("s_cmp_lt_u32 s31, 112")
    A(f"s_cselect_b32 s59, {448*1792*2}, 0")
    srd(48, 16, 17, 0 if skip & 2 else "s59")
    srd(36, 20, 21, 896)
    A("v_lshrrev_b32 v10, 1, v1")
    A("v_and_b32 v11, 1, v1")
    A("v_mul_u32_u24 v12, 28, v10")
    A(f"v_mul_u32_u24 v13, {14*3584}, v10")
    A("v_lshl_add_u32 v13, v11, 4, v13")
    A(f"buffer_load_dwordx4 v[{XR}:{XR+3}], v12, s[44:47], 0 offen")
    A(f"buffer_load_dwordx3 v[{XR+4}:{XR+6}], v12, s[44:47], 0 offen offset:16")
    A("buffer_load_dwordx4 v[40:43], v14, s[44:47], 0 offen")
    A("buffer_load_dwordx4 v[44:47], v14, s[36:39], 0 offen")
    A("s_lshl_b32 s56, s66, 5")
    cnt = [0]
    def thr():
        cnt[0] += 1
        if cnt[0] % SB == 0: A("s_waitcnt vmcnt(0)")
    for t in range(14):
        A(f"buffer_load_dwordx4 v[{64+4*t}:{67+4*t}], v13, s[48:51], s56 offen")
        A("s_add_u32 s56, s56, 3584")
        thr()
    for k in range(8):
        A(f"v_mov_b32 v{ACC+k}, 0")
    matvec_pairs(7, 64, XR, 0)
    A("s_nop 1")
    for k in range(2):
        A(f"v_add_f32_dpp v{ACC+k}, v{ACC+k}, v{ACC+k} row_ror:2 {DPP}")
    A(f"s_mov_b32 s59, {f2u(-math.log2(math.e)):#x}")
    for k in range(2):
        A(f"v_cvt_pk_bf16_f32 v{ACC+k}, 0, v{ACC+k}")
    for k in range(2):
        A(f"v_mul_f32 v{ACC+2+k}, s59, v{ACC+k}")
    for k in range(2):
        A(f"v_exp_f32 v{ACC+2+k}, v{ACC+2+k}")
    A("s_nop 0")
    for k in range(2):
        A(f"v_add_f32 v{ACC+2+k}, 1.0, v{ACC+2+k}")
    for k in range(2):
        A(f"v_rcp_f32 v{ACC+2+k}, v{ACC+2+k}")
    A("s_nop 0")
    for k in range(2):
        A(f"v_mul_f32 v{ACC+k}, v{ACC+k}, v{ACC+2+k}       ; silu")
    for k in range(2):
        A(f"v_cvt_pk_bf16_f32 v{ACC+k}, v{ACC+k}, v{ACC+k}")
    A("v_lshlrev_b32 v12, 5, v11")
    A("v_lshl_add_u32 v12, v9, 3, v12")
    A("s_mov_b32 s62, 0x00030003")
    A("s_mov_b32 s63, 0x00030003")
    A("s_mov_b64 exec, s[62:63]")
    A(f"ds_write_b64 v12, v[{ACC}:{ACC+1}] offset:{L_H}")
    A("s_mov_b64 exec, -1")
    C("gate")
    for k in range(4):
        A(f"v_lshlrev_b32 v52, 16, v{40+k}")
        A(f"v_lshlrev_b32 v53, 16, v{44+k}")
        A(f"v_and_b32 v54, 0xffff0000, v{40+k}")
        A(f"v_and_b32 v55, 0xffff0000, v{44+k}")
        A("v_mul_f32 v52, v52, v53")
        A("v_mul_f32 v54, v54, v55")
        A("v_cvt_pk_bf16_f32 v52, 0, v52")
        A("v_cvt_pk_bf16_f32 v54, 0, v54")
        if k == 0:
            A("v_add_f32 v56, v52, v54")
        else:
            A("v_add_f32 v56, v56, v52")
            A("v_add_f32 v56, v56, v54")
    for rr in (8, 4, 2, 1):
        A("s_nop 1")
        A(f"v_add_f32_dpp v56, v56, v56 row_ror:{rr} {DPP}")
    A("v_mov_b32 v57, v56")
    A("s_nop 1")
    A("v_permlane32_swap_b32 v57, v56")
    A("s_nop 1")
    A("v_add_f32 v56, v56, v57")
    A("v_mov_b32 v57, v56")
    A("s_nop 1")
    A("v_permlane16_swap_b32 v57, v56")
    A("s_nop 1")
    A("v_add_f32 v56, v56, v57")
    A("v_cvt_pk_bf16_f32 v56, 0, v56")
    A("v_mul_f32 v56, s59, v56")
    A("v_exp_f32 v56, v56")
    A("s_nop 0")
    A("v_add_f32 v56, 1.0, v56")
    A("v_rcp_f32 v56, v56")
    A("s_nop 0")
    A("v_cvt_pk_bf16_f32 v2, 0, v56           ; g")
    A("v_sub_f32 v3, 1.0, v2")
    A("v_cvt_pk_bf16_f32 v3, 0, v3            ; 1-g")
    A("v_mov_b32 v16, 0")
    A(f"ds_write_b64 v16, v[2:3] offset:{L_G}")
    out_setup()
    A(f"ds_read_b128 v[80:83], v52 offset:{L_H}")
    A("v_lshlrev_b32 v52, 1, v52")
    A("s_waitcnt lgkmcnt(0)")
    for t in range(4):
        for k in range(4):
            A(f"v_and_b32 v{24+4*t+k}, v{80+t}, v{4+k}")
    A(f"s_mov_b32 s59, {f2u(C_SCALE):#x}")
    A("v_lshlrev_b32 v10, 5, v1")
    A("v_lshrrev_b32 v11, 5, v1")
    A("v_lshlrev_b32 v11, 3, v11")
    A("v_lshrrev_b32 v15, 2, v1")
    A("v_mul_u32_u24 v15, 144, v15")
    A("v_and_b32 v12, 3, v1")
    A("v_lshl_add_u32 v15, v12, 5, v15")
    A(f"v_mul_u32_u24 v12, {OB1S}, v8")
    A("v_lshl_add_u32 v13, v9, 5, v12")
    A(f"s_mul_i32 s60, s28, {16*OB1S}")
    A("s_mul_i32 s61, s29, 144")
    A("s_add_u32 s60, s60, s61")
    A(f"s_add_u32 s60, s60, {OB1}")
    A("v_lshlrev_b32 v14, 5, v9")
    A("s_lshl_b32 s54, 0x00010001, s29")
    A("s_mov_b32 s55, s54")
    A("s_lshl_b32 s61, s29, 4")
    A("v_lshl_add_u32 v21, v9, 2, s61")
    C("whole batch arrived => every outbox read later was cleared and the ticket counters are set")
    A(f"s_mov_b32 s56, {spin_max}")
    LB("L_pollg")
    A("s_mov_b32 s70, 0")
    A("s_atomic_add s70, s[24:25], s65 glc")
    A("s_waitcnt lgkmcnt(0)")
    A("s_cmp_ge_u32 s70, 128")
    A("s_cbranch_scc1 L_pollg_done")
    A("s_sleep 16")
    A("s_sub_u32 s56, s56, 1")
    A("s_cmp_lg_u32 s56, 0")
    A("s_cbranch_scc1 L_pollg")
    LB("L_pollg_done")
    C("window-ticket server")
    A("s_lshl_b32 s74, s28, 12")
    A(f"s_add_u32 s74, s74, {TICK}")
    A("s_add_u32 s74, s26, s74")
    A("s_addc_u32 s75, s27, 0")
    A("s_mov_b32 s71, 0")
    A("s_mov_b32 s72, 0")
    A("v_mov_b32 v16, 0")
    A(f"s_mov_b32 s56, {spin_max*8}")
    LB("L_tk")
    A(f"ds_read_b32 v17, v16 offset:{L_CNT}")
    A("s_waitcnt lgkmcnt(0)")
    A("v_readfirstlane_b32 s70, v17")
    A("s_cmp_gt_u32 s70, s72")
    A("s_cbranch_scc1 L_tk_fetch")
    A("s_sleep 2")
    A("s_sub_u32 s56, s56, 1")
    A("s_cmp_lg_u32 s56, 0")
    A("s_cbranch_scc1 L_tk")
    A("s_branch L_tk_done")
    LB("L_tk_fetch")
    A("s_mov_b32 s70, 1")
    A("s_atomic_add s70, s[74:75], 0 glc")
    A("v_mov_b32 v17, s71")
    A("s_waitcnt lgkmcnt(0)")
    A("v_mov_b32 v20, s70")
    A("s_add_u32 s71, s71, 4")
    A(f"s_add_u32 s72, s72, {WT}")
    A(f"ds_write_b32 v17, v20 offset:{L_WIN}")
    A(f"s_cmp_lt_u32 s70, {NTK - RET}")
    A("s_cbranch_scc1 L_tk")
    C("one of the last tickets (or none): this WG asks for nothing more")
    A("v_mov_b32 v17, s71")
    A("v_mov_b32 v20, 0x10000")
    for k in range(-(-NSW // WT)):
        A(f"ds_write_b32 v17, v20 offset:{L_WIN + 4*k}")
    LB("L_tk_done")
    if warm:
        C("touch the pages of the output-side weights (address translation only)")
        A("s_mov_b64 exec, 1")
        A("buffer_load_dword v17, v54, s[44:47], s69 offen")
        A("buffer_load_dword v20, v55, s[48:51], s67 offen")
        A("s_mov_b64 exec, -1")
    A("s_waitcnt vmcnt(0) lgkmcnt(0)")
    A("s_barrier")
    stamp(5)
    if prof: A("s_waitcnt lgkmcnt(0)")
    C("WG combine")
    for w in range(NSW):
        A(f"ds_read_b64 v[{56+2*w}:{57+2*w}], v11 offset:{L_ML+16*w}")
    for w in range(NSW):
        A(f"ds_read_b128 v[{64+8*w}:{67+8*w}], v10 offset:{L_O+2048*w}")
        A(f"ds_read_b128 v[{68+8*w}:{71+8*w}], v10 offset:{L_O+2048*w+16}")
    A(f"s_waitcnt lgkmcnt({2*NSW})")
    A("v_max3_f32 v16, v56, v58, v60")
    if NSW == 4: A("v_max_f32 v16, v16, v62")
    for w in range(NSW):
        A(f"v_sub_f32 v{56+2*w}, v{56+2*w}, v16")
    for w in range(NSW):
        A(f"v_mul_f32 v{56+2*w}, s59, v{56+2*w}")
    for w in range(NSW):
        A(f"v_exp_f32 v{56+2*w}, v{56+2*w}")
    A("s_nop 0")
    A("v_mul_f32 v17, v56, v57")
    for w in range(1, NSW):
        A(f"v_fmac_f32 v17, v{56+2*w}, v{57+2*w}")
    A("s_waitcnt lgkmcnt(0)")
    for k in range(8):
        A(f"v_mul_f32 v{64+k}, v56, v{64+k}")
    for w in range(1, NSW):
        for k in range(8):
            A(f"v_fmac_f32 v{64+k}, v{56+2*w}, v{64+8*w+k}")
    A(f"buffer_store_dwordx4 v[64:67], v15, s[40:43], s57 offen {HS}")
    A(f"buffer_store_dwordx4 v[68:71], v15, s[40:43], s57 offen offset:16 {HS}")
    A("s_mov_b32 s62, 0x11111111")
    A("s_mov_b32 s63, 0x11111111")
    A("s_mov_b64 exec, s[62:63]")
    A(f"buffer_store_dwordx2 v[16:17], v15, s[40:43], s57 offen offset:128 {HS}")
    A("s_mov_b64 exec, -1")
    def poll1_loads():
        A(f"buffer_load_dwordx4 v[72:75], v13, s[40:43], s60 offen {HL}")
        A(f"buffer_load_dwordx4 v[76:79], v13, s[40:43], s60 offen offset:16 {HL}")
        A(f"buffer_load_dwordx2 v[80:81], v12, s[40:43], s60 offen offset:128 {HL}")
    if ob == 3: A("s_barrier")
    A(f"s_mov_b32 s56, {spin_max}")
    if own:
        C("own packet comes from registers; the other 15 are polled")
        A("s_andn2_b64 exec, -1, s[54:55]")
        poll1_loads()
        if m3:
            A("s_mov_b32 s62, 0x00ff00ff")
            A("s_mov_b32 s63, 0x00ff00ff")
            A("s_mov_b64 exec, s[62:63]")
        else:
            A("s_mov_b64 exec, -1")
        out_loads()
        A("s_mov_b64 exec, -1")
        for k in range(8):
            A(f"ds_bpermute_b32 v{88+k}, v21, v{64+k}")
        A("ds_bpermute_b32 v96, v21, v16")
        A("ds_bpermute_b32 v97, v21, v17")
        A("s_mov_b64 exec, s[54:55]")
        A("s_waitcnt lgkmcnt(0)")
        for k in range(10):
            A(f"v_mov_b32 v{72+k}, v{88+k}")
        A("s_mov_b64 exec, -1")
        A("s_waitcnt vmcnt(12)")
        A("s_branch L_poll1_chk")
    else:
        out_loads()
    LB("L_poll1")
    poll1_loads()
    A("s_waitcnt vmcnt(0)")
    LB("L_poll1_chk")
    A("v_max3_u32 v18, v72, v73, v74")
    A("v_max3_u32 v19, v75, v76, v77")
    A("v_max3_u32 v18, v18, v78, v79")
    A("v_max3_u32 v19, v19, v80, v81")
    A("v_max_u32 v18, v18, v19")
    A("v_cmp_eq_u32 vcc, -1, v18")
    A("s_cbranch_vccz L_poll1_done")
    A("s_mov_b64 exec, vcc")
    A("s_bcnt1_i32_b64 s61, vcc")
    A(f"s_cmp_le_u32 s61, {lt}")
    A("s_cbranch_scc1 L_poll1_fast")
    A(f"s_sleep {ls}")
    LB("L_poll1_fast")
    A("s_sleep 1")
    A("s_sub_u32 s56, s56, 1")
    A("s_cmp_lg_u32 s56, 0")
    A("s_cbranch_scc1 L_poll1")
    LB("L_poll1_done")
    A("s_mov_b64 exec, -1")
    stamp(6)
    C("group combine over the 16 producers, then 32 rows of wo")
    A(f"v_max_f32_dpp v18, v80, v80 row_ror:8 {DPP}")
    for rr in (4, 2, 1):
        A("s_nop 1")
        A(f"v_max_f32_dpp v18, v18, v18 row_ror:{rr} {DPP}")
    A("v_sub_f32 v18, v80, v18")
    A("v_mul_f32 v18, s59, v18")
    A("v_exp_f32 v18, v18")
    A("s_nop 0")
    A("v_mul_f32 v80, v18, v81")
    for k in range(8):
        A(f"v_mul_f32 v{72+k}, v18, v{72+k}")
    for rr in (8, 4, 2, 1):
        for k in (8, 0, 1, 2, 3, 4, 5, 6, 7):
            A(f"v_add_f32_dpp v{72+k}, v{72+k}, v{72+k} row_ror:{rr} {DPP}")
    A("v_rcp_f32 v80, v80")
    A("s_nop 0")
    for k in range(8):
        A(f"v_mul_f32 v{72+k}, v80, v{72+k}")
    for k in range(8):
        A(f"v_cvt_pk_bf16_f32 v{72+k}, v{72+k}, v{72+k}")
    A("s_mov_b32 s62, 0x00010001")
    A("s_mov_b32 s63, 0x00010001")
    A("s_mov_b64 exec, s[62:63]")
    A(f"ds_write_b128 v14, v[72:75] offset:{L_OP}")
    A(f"ds_write_b128 v14, v[76:79] offset:{L_OP+16}")
    A("s_mov_b64 exec, -1")
    A("s_waitcnt lgkmcnt(0)")
    A("s_branch L_out")
    LB("L_svc_end")
    stamp(7)
    dump_stamps(True)
    LB("L_end")
    A("s_endpgm")
    L.append('.section .rodata,"a"')
    L.append(".p2align 6")
    L.append(f".amdhsa_kernel {NAME}_kernel")
    L.append("  .amdhsa_next_free_vgpr 256")
    L.append("  .amdhsa_next_free_sgpr 96")
    L.append("  .amdhsa_accum_offset 256")
    L.append("  .amdhsa_group_segment_fixed_size 0")
    L.append("  .amdhsa_kernarg_size 96")
    L.append("  .amdhsa_user_sgpr_count 2")
    L.append("  .amdhsa_user_sgpr_kernarg_segment_ptr 1")
    L.append("  .amdhsa_system_sgpr_workgroup_id_x 1")
    L.append(".end_amdhsa_kernel")
    return "\n".join(L) + "\n"


if __name__ == "__main__":
    out = sys.argv[1]
    kw = {}
    for a in sys.argv[2:]:
        k, v = a.split("=")
        kw[k] = int(v)
    open(out, "w").write(gen(**kw))
```

```python
import sys, math, struct

NAME = "gated_mix__gqa_block_cached__dense_activation_silu__decode"
HEADER = open("cdna_kernels/" + NAME + ".s.ref").read().split("; Override launch")[0]

QBOX = 0x0
TICK = 0x10000
OB1 = 0x40000
OB1S = 2304
OB2 = 0x200000
OB2S = 1792
STAMP = 0x20000000
C_SCALE = (1.0 / 16.0) * math.log2(math.e)
def f2u(x): return struct.unpack("<I", struct.pack("<f", x))[0]


DOC = """
One launch, 256 workgroups (group = wg>>4 = batch*8 + kv head, 16 workgroups per group), 4 waves each.
 * wave 0 (service): hands q slices round the group through d_ws (16-bit tags = stale tag + 1, arrival
   counter in d_debug as fall-back), computes a 16-unit FFN slice and the gate, serves window tickets,
   merges the wave partials, merges the 16 partials of a 32-row slice of o and multiplies it with wo.
 * waves 1-3 stream K (scores -> LDS, true max), then V, straight into MFMA operand registers:
   QK^T uses 64-byte row pieces as A rows and picks the diagonal blocks, P.V puts p on the diagonal of
   A so that row-major V is the B operand as loaded.  The last 1/16 of the keys is a shared pool handed
   out by tickets (running max with rescale) so that all workgroups finish together.
 * partial results travel through sentinel-cleared boxes in d_ws (sc1 stores / sc1 loads).
"""

def gen(prof=0, NSW=3, NS=30, NPRE=6, kip=1, vip=1, RET=8, fbk=4, SB=8, spin_max=200000, ldsx=0, dseq=0, PF2=0, WT=3, skip=0, ptile=0, early=1, eh=0, hl=0, hs=0, ls=16, lt=28, s2=2, pre=1, tfix=0, osc=0, tmode=0, ob=3, warm=0, own=1, m3=1, sprobe=0):
    NT = NS*4 // NSW
    assert NS*4 % NSW == 0 and NSW in (3, 4)
    SSTR = NT*128
    L_Q = 0
    L_S = 1024
    L_O = L_S + NSW*SSTR
    L_ML = L_O + 2048*NSW
    L_H = L_ML + 64
    L_G = L_H + 64
    L_OP = L_G + 64
    L_QP = L_OP + 128
    L_CNT = L_QP + 512
    L_WIN = L_CNT + 64
    LDS_BYTES = L_WIN + 1024
    NPT = (32-NS)*64
    NTK = -(-NPT // WT)
    L = []
    A = lambda s: L.append("  " + s)
    LB = lambda s: L.append(s + ":")
    C = lambda s: L.append("  ; " + s)
    DPP = "row_mask:0xf bank_mask:0xf"
    ACC, XR = 16, 32

    svc = [False]
    HL = ['sc1', 'sc0 sc1', 'sc1 nt'][hl]
    HS = ['sc1', 'sc0 sc1', 'sc1 nt'][hs]
    def stamp(k, force=False):
        if ptile and not svc[0] and not force and k not in (0, 7):
            return
        if prof: A(f"s_memrealtime s[{80+2*k}:{81+2*k}]")
    def dump_stamps(svc):
        if not prof: return
        A("s_waitcnt lgkmcnt(0)")
        A("s_lshl_b32 s56, s2, 3")
        A(f"s_add_u32 s56, s56, {'4' if svc else 's3'}")
        A("s_lshl_b32 s56, s56, 6")
        A(f"s_add_u32 s56, s56, {STAMP}")
        A("s_mov_b64 exec, 1")
        A("v_mov_b32 v60, 0")
        for q in range(4):
            for j in range(4):
                A(f"v_mov_b32 v{56+j}, s{80+4*q+j}")
            A(f"buffer_store_dwordx4 v[56:59], v60, s[40:43], s56 offen offset:{16*q}")
            A("s_nop 1")
        A("s_mov_b64 exec, -1")
    def srd(d, lo, hi, n):
        A(f"s_mov_b32 s{d}, s{lo}")
        A(f"s_mov_b32 s{d+1}, s{hi}")
        A(f"s_mov_b32 s{d+2}, {n}")
        A(f"s_mov_b32 s{d+3}, 0x00020000")
    def matvec_pairs(npairs, wbase, xbase, tail_ops):
        for u in range(npairs):
            A(f"s_waitcnt vmcnt({2*npairs - (2*u+2) + tail_ops})")
            w0 = wbase + 8*u; w1 = w0 + 4
            for k in range(4):
                A(f"v_perm_b32 v{52+k}, v{w1+k}, v{w0+k}, s60")
                A(f"v_perm_b32 v{56+k}, v{w1+k}, v{w0+k}, s61")
            for k in range(4):
                A(f"v_dot2c_f32_bf16 v{ACC+2*k}, v{52+k}, v{xbase+u}")
                A(f"v_dot2c_f32_bf16 v{ACC+2*k+1}, v{56+k}, v{xbase+u}")
        A("s_nop 3")
        for k in range(4):
            A(f"v_permlane32_swap_b32 v{ACC+k}, v{ACC+4+k}")
        A("s_nop 1")
        for k in range(4):
            A(f"v_add_f32 v{ACC+k}, v{ACC+k}, v{ACC+4+k}")
        A("s_nop 1")
        for k in range(2):
            A(f"v_permlane16_swap_b32 v{ACC+k}, v{ACC+2+k}")
        A("s_nop 1")
        for k in range(2):
            A(f"v_add_f32 v{ACC+k}, v{ACC+k}, v{ACC+2+k}")
        for rr in (8, 4):
            A("s_nop 1")
            for k in range(2):
                A(f"v_add_f32_dpp v{ACC+k}, v{ACC+k}, v{ACC+k} row_ror:{rr} {DPP}")
    def make_masks(t0, t1):
        C("v4..v7: lane e=l&7 owns bf16 element e of an 8-element A fragment")
        A(f"v_and_b32 v{t0}, 1, v1")
        A(f"v_lshlrev_b32 v{t0}, 4, v{t0}")
        A(f"v_mov_b32 v{t1}, 0xffff")
        A(f"v_lshlrev_b32 v{t1}, v{t0}, v{t1}")
        A(f"v_bfe_u32 v{t0}, v1, 1, 2")
        for k in range(4):
            A(f"v_cmp_eq_u32 vcc, {k}, v{t0}")
            A("s_nop 1")
            A(f"v_cndmask_b32 v{4+k}, 0, v{t1}, vcc")
    SLOT0 = 64
    def slot(sl, i): return SLOT0 + 32*sl + 4*i
    WQB = slot(5, 0)
    def wq_loads():
        A(f"buffer_load_dwordx4 v[{XR}:{XR+3}], v14, s[44:47], s58 offen")
        for t in range(8):
            A(f"buffer_load_dwordx4 v[{WQB+4*t}:{WQB+4*t+3}], v13, s[48:51], s57 offen")
            if t < 7: A("s_add_u32 s57, s57, 0x2000")
    def q_partial(tail):
        for k in range(8):
            A(f"v_mov_b32 v{ACC+k}, 0")
        A("s_lshl_b32 s58, s3, 7")
        A("v_add_u32 v13, s58, v12")
        matvec_pairs(4, WQB, XR, tail)
        A("s_mov_b64 exec, s[62:63]")
        A(f"ds_write_b64 v13, v[{ACC}:{ACC+1}] offset:{L_QP}")
        A("s_mov_b64 exec, -1")

    def out_setup():
        C("output side: this wave owns column block cb = role of 32 wo rows and 16 w2 rows")
        A("s_and_b32 s69, s31, 7")
        A("s_mul_i32 s69, s69, 14")
        A("s_lshr_b32 s67, s31, 3")
        A("s_add_u32 s69, s69, s67")
        A(f"s_mul_i32 s69, s69, {16*896}")
        A("s_cmp_lt_u32 s31, 112")
        A(f"s_cselect_b32 s46, {0 if skip & 4 else 448*1792*2}, 0")
        A("s_mov_b32 s44, s18")
        A("s_mov_b32 s45, s19")
        A("s_mov_b32 s47, 0x00020000")
        srd(48, 12, 13, 0 if skip & 8 else 4096*448*2)
        A("s_lshl_b32 s64, s3, 8")
        A("s_add_u32 s69, s69, s64")
        A(f"s_mul_i32 s67, s31, {32*896}")
        A("s_add_u32 s67, s67, s64")
        A(f"s_add_u32 s68, s67, {4*896}")
        A("s_lshl_b32 s64, s64, 1")
        A(f"s_mul_i32 s52, s2, {OB2S}")
        A("s_add_u32 s64, s64, s52")
        A(f"s_add_u32 s64, s64, {OB2}")
        A("s_cmp_eq_u32 s3, 3")
        A("s_cselect_b32 s52, 0x00ff00ff, -1")
        A("s_mov_b32 s53, 0")
        A("v_mul_u32_u24 v54, 3584, v9")
        A("v_lshl_add_u32 v54, v8, 4, v54         ; w2 row 16f + 4g + t")
        A("v_mul_u32_u24 v55, 7168, v9")
        A("v_lshl_add_u32 v55, v8, 4, v55")
        A("v_lshlrev_b32 v53, 5, v8")
        A("v_lshl_add_u32 v53, v9, 4, v53")
        A("v_lshlrev_b32 v52, 4, v9")
    def ffn_mfma():
        for t in range(4):
            c = "0" if t == 0 else "v[20:23]"
            A(f"v_mfma_f32_16x16x32_bf16 v[20:23], v[{24+4*t}:{27+4*t}], v[{160+4*t}:{163+4*t}], {c}")
    def out_loads():
        for t in range(4):
            A(f"buffer_load_dwordx4 v[{160+4*t}:{163+4*t}], v54, s[44:47], s69 offen offset:{t*896}")
        for t in range(8):
            A(f"buffer_load_dwordx4 v[{128+4*t}:{131+4*t}], v55, s[48:51], s{67 + (t>>2)} offen offset:{(t&3)*896}")
    L.append(HEADER.rstrip("\n"))
    L.append(f"; @launch grid=(256,1,1) block=({64*(NSW+1)},1,1) lds={ldsx or LDS_BYTES}")
    L.append('.amdgcn_target "amdgcn-amd-amdhsa--gfx950"')
    for line in DOC.strip("\n").splitlines():
        L.append("; " + line)
    L.append(".text")
    L.append(f".globl {NAME}_kernel")
    L.append(".p2align 8")
    L.append(f".type {NAME}_kernel,@function")
    LB(f"{NAME}_kernel")
    A("s_cmp_ge_u32 s2, 256")
    A("s_cbranch_scc1 L_end")
    if prof:
        for k in range(8):
            A(f"s_mov_b64 s[{80+2*k}:{81+2*k}], 0")
        stamp(0)
        A("s_waitcnt lgkmcnt(0)")
    if tfix:
        A("s_memrealtime s[92:93]")
        A("s_waitcnt lgkmcnt(0)")
    A("s_load_dwordx2 s[44:45], s[0:1], 0     ; x  -> SRD s[44:47]")
    A("s_load_dwordx2 s[48:49], s[0:1], 24")
    A("s_load_dwordx2 s[32:33], s[0:1], 8     ; K  -> SRD s[32:35]")
    A("s_load_dwordx2 s[40:41], s[0:1], 88")
    A("s_load_dwordx2 s[36:37], s[0:1], 16    ; V  -> SRD s[36:39]")
    A("s_load_dwordx16 s[4:19], s[0:1], 0")
    A("s_load_dwordx8 s[20:27], s[0:1], 64")
    A("v_lshrrev_b32 v2, 6, v0")
    A("v_and_b32 v1, 63, v0                   ; lane")
    A("v_readfirstlane_b32 s3, v2")
    A("s_sub_u32 s3, s3, 1")
    A(f"s_min_u32 s3, s3, {NSW}")
    A("s_lshr_b32 s28, s2, 4                  ; group")
    A("s_and_b32 s29, s2, 15                  ; s")
    A("s_lshr_b32 s30, s2, 7                  ; b")
    A("s_and_b32 s31, s2, 127                 ; i")
    C("s64 = q slice produced here: (i & ~15) + (s&7)*2 + (s>>3)")
    A("s_and_b32 s64, s29, 7")
    A("s_lshl_b32 s64, s64, 1")
    A("s_lshr_b32 s65, s29, 3")
    A("s_add_u32 s64, s64, s65")
    A("s_andn2_b32 s65, s31, 15")
    A("s_add_u32 s64, s64, s65")
    A("v_and_b32 v8, 15, v1")
    A("v_lshrrev_b32 v9, 4, v1                ; g")
    A("v_and_b32 v10, 3, v1")
    A("s_mov_b32 s42, 0x40000000")
    A("s_mov_b32 s43, 0x00020000")
    C("q partial: rows (role*14+rg)*8 + t, cols slice*32 + chunk*8")
    A("s_mul_i32 s58, s30, 896")
    A("s_mov_b32 s46, 1792")
    A("s_mov_b32 s47, 0x00020000")
    A(f"s_mov_b32 s50, {0 if skip & 1 else 448*4096*2}")
    A("s_mov_b32 s51, 0x00020000")
    A("v_lshrrev_b32 v14, 2, v1")
    A("s_mul_i32 s57, s3, 14")
    A("v_cmp_gt_u32 vcc, 14, v14")
    A("v_add_u32 v14, s57, v14")
    A("v_mov_b32 v13, 0x4000")
    A("v_cndmask_b32 v14, v13, v14, vcc")
    A("v_lshlrev_b32 v13, 16, v14")
    A("v_lshl_add_u32 v13, v10, 4, v13")
    A("v_lshlrev_b32 v14, 4, v14")
    A("s_lshl_b32 s57, s64, 6")
    A("v_lshlrev_b32 v12, 5, v10")
    A("v_lshl_add_u32 v12, v9, 3, v12         ; chunk*32 + g*8")
    A("s_mov_b32 s60, 0x05040100")
    A("s_mov_b32 s61, 0x07060302")
    A("s_mov_b32 s62, 0x000f000f")
    A("s_mov_b32 s63, 0x000f000f")
    A(f"s_cmp_lg_u32 s3, {NSW}")
    A("s_cbranch_scc1 L_stream")
    C("service: snapshot of the group's q box and of this WG's own stale tags")
    A("v_lshlrev_b32 v11, 5, v1")
    A("s_lshl_b32 s56, s28, 11")
    A("s_lshl_b32 s59, s30, 7")
    A("s_add_u32 s59, s59, s64")
    A("s_lshl_b32 s59, s59, 7")
    A("s_waitcnt lgkmcnt(0)")
    A(f"buffer_load_dwordx4 v[64:67], v11, s[40:43], s56 offen offset:{QBOX} sc1")
    A(f"buffer_load_dwordx4 v[68:71], v11, s[40:43], s56 offen offset:{QBOX+16} sc1")
    A(f"buffer_load_dwordx2 v[72:73], v12, s[40:43], s59 offen offset:{QBOX} sc1")
    if NSW == 3: wq_loads()
    A("s_branch L_service")

    LB("L_stream")
    A("s_mov_b32 s34, 0x10000000")
    A("s_mov_b32 s35, 0x00020000")
    A("s_mov_b32 s38, 0x10000000")
    A("s_mov_b32 s39, 0x00020000")
    C("tile n of this WG: group<<24 | (s&7)<<21 | (n>>2)<<16 | (s>>3)<<15 | (n&3)<<13")
    A("s_lshl_b32 s56, s28, 24")
    A("s_and_b32 s66, s29, 7")
    A("s_lshl_b32 s66, s66, 21")
    A("s_or_b32 s56, s56, s66")
    A("s_lshr_b32 s66, s29, 3")
    A("s_lshl_b32 s66, s66, 15")
    A("s_or_b32 s56, s56, s66")
    A("s_lshl_b32 s67, s3, 13")
    A("s_or_b32 s56, s56, s67")
    def tstep():
        if NSW == 4:
            A("s_add_u32 s57, s57, 0x10000")
        else:
            A("s_or_b32 s57, s57, 0x8000")
            A("s_add_u32 s57, s57, 0x6000")
            A("s_andn2_b32 s57, s57, 0x8000")
            A("s_or_b32 s57, s57, s66")
    A("v_lshrrev_b32 v3, 2, v8")
    A("v_lshlrev_b32 v2, 11, v3")
    A("v_lshl_add_u32 v2, v9, 6, v2")
    A("v_lshl_add_u32 v2, v10, 4, v2")
    A("v_lshlrev_b32 v3, 11, v9")
    A("v_lshl_add_u32 v3, v8, 4, v3")
    def issue(kind, sl, sreg, which=range(8)):
        srdn = "s[32:35]" if kind == 'k' else "s[36:39]"
        va = "v2" if kind == 'k' else "v3"
        for i in which:
            b = slot(sl, i)
            A(f"buffer_load_dwordx4 v[{b}:{b+3}], {va}, {srdn}, {sreg} offen offset:{256*i} nt")
    A("s_waitcnt lgkmcnt(0)")
    wq_loads()
    A("s_mov_b32 s57, s56")
    for t in range(early):
        issue('k', t, "s57")
        tstep()
    q_partial(8*early)
    A("s_waitcnt lgkmcnt(0)")
    A("s_barrier")
    stamp(7)
    for t in range(early, NPRE):
        A(f"s_waitcnt vmcnt({eh if t == early else PF2})")
        if ptile == 1: stamp(t, True)
        issue('k', t, "s57")
        tstep()
        if t == early:
            A("v_bfe_u32 v12, v1, 3, 1")
            A("v_lshlrev_b32 v13, 2, v12")
            A("v_add_u32 v13, v13, v9")
            A("v_lshlrev_b32 v12, 9, v12")
            A("v_lshl_add_u32 v12, v9, 6, v12")
            A("v_lshl_add_u32 v12, v10, 4, v12")
            A(f"s_mul_i32 s58, s3, {SSTR}")
            A(f"s_add_u32 s58, s58, {L_S}")
            A("v_lshlrev_b32 v13, 4, v13")
            A("v_add_u32 v13, s58, v13")
            make_masks(56, 57)
            A("v_mov_b32 v14, 0xff800000")
            A("v_mov_b32 v15, 0                       ; l")
            for r in range(8):
                A(f"v_mov_b32 v{24+r}, 0")
            A(f"s_mov_b32 s59, {f2u(C_SCALE):#x}")
    A("s_barrier")
    A(f"ds_read_b128 v[16:19], v12 offset:{L_Q}")
    A(f"ds_read_b128 v[20:23], v12 offset:{L_Q+256}")
    stamp(2)
    if ptile == 1: stamp(6, True)
    if ptile == 2: stamp(1, True)
    A("s_waitcnt lgkmcnt(0)")

    def kproc(sl, soff, mid=None, dyn=False, roll=False):
        for r in range(4):
            d = 32 + 4*r
            a0 = slot(sl, 2*r); a1 = slot(sl, 2*r+1)
            A(f"v_mfma_f32_16x16x32_bf16 v[{d}:{d+3}], v[{a0}:{a0+3}], v[16:19], 0")
            A(f"v_mfma_f32_16x16x32_bf16 v[{d}:{d+3}], v[{a1}:{a1+3}], v[20:23], v[{d}:{d+3}]")
            if roll: issue('k', sl, "s57", (2*r, 2*r+1))
        if roll:
            tstep(); A("s_nop 1")
        elif mid: mid()
        else: A("s_nop 4")
        for k in range(4):
            for r in range(4):
                d = 32 + 4*r + k
                if k == 0:
                    A(f"v_mov_b32_dpp v{48+r}, v{d} quad_perm:[0,0,0,0] {DPP}")
                else:
                    A(f"v_add_f32_dpp v{48+r}, v{d}, v{48+r} quad_perm:[{k},{k},{k},{k}] {DPP}")
        for r in range(4):
            A(f"v_cvt_pk_bf16_f32 v{48+r}, 0, v{48+r}")
        if dyn: return
        A("v_max3_f32 v14, v14, v48, v49")
        A("v_max3_f32 v14, v14, v50, v51")
        A(f"ds_write_b128 v13, v[48:51] offset:{soff}")
    def nk():
        issue('k', 0, "s57"); tstep()
    def nv():
        issue('v', 0, "s57"); tstep()
    def nv0():
        A("s_mov_b32 s57, s56"); nv()
    for t in range(NPRE):
        A(f"s_waitcnt vmcnt({8*((NPRE-1-t) + min(t, 1))})")
        kproc(t, t*128, nk if t == 0 else None)
    A(f"v_add_u32 v13, {NPRE*128}, v13")
    def kstep(nxt):
        A("s_waitcnt vmcnt(0)")
        if kip == 0 and nxt is nk: kproc(0, 0, None, False, True)
        elif kip <= 1: kproc(0, 0, nxt)
        else:
            kproc(0, 0); nxt()
    extra = 0
    if ptile == 2:
        stamp(2, True)
        for q in range(3, 7):
            for rep in range(3):
                kstep(nk)
                A("v_add_u32 v13, 128, v13")
                extra += 1
            stamp(q, True)
    A(f"s_mov_b32 s58, {NT - NPRE - 1 - extra}")
    LB("L_kloop")
    kstep(nk)
    A("v_add_u32 v13, 128, v13")
    A("s_sub_u32 s58, s58, 1")
    A("s_cmp_lg_u32 s58, 0")
    A("s_cbranch_scc1 L_kloop")
    kstep(nv0)
    stamp(3)
    C("true max of this wave's keys per head")
    A(f"v_subrev_u32 v13, {(NT-1)*128}, v13")
    A("v_mov_b32 v10, v14")
    A("s_nop 1")
    A("v_permlane32_swap_b32 v10, v14")
    A("s_nop 1")
    A("v_max_f32 v14, v10, v14")
    A("v_mov_b32 v10, v14")
    A("s_nop 1")
    A("v_permlane16_swap_b32 v10, v14")
    A("s_nop 1")
    A("v_max_f32 v14, v10, v14")
    A("v_mul_f32 v11, s59, v14")
    def pprep():
        for r in range(4):
            A(f"v_fma_f32 v{48+r}, v{48+r}, s59, -v11")
        for r in range(4):
            A(f"v_exp_f32 v{48+r}, v{48+r}")
        A("s_nop 0")
        A("v_add_f32 v56, v48, v49")
        A("v_add_f32 v57, v50, v51")
        for r in range(4):
            A(f"v_cvt_pk_bf16_f32 v{48+r}, v{48+r}, v{48+r}")
        A("v_add_f32 v56, v56, v57")
        A("v_add_f32 v15, v15, v56")
        for r in range(4):
            for k in range(4):
                A(f"v_and_b32 v{32+4*r+k}, v{48+r}, v{4+k}")
    def pv(sl, roll=False):
        for r in range(4):
            a = 32 + 4*r
            b0 = slot(sl, 2*r); b1 = slot(sl, 2*r+1)
            A(f"v_mfma_f32_16x16x32_bf16 v[24:27], v[{a}:{a+3}], v[{b0}:{b0+3}], v[24:27]")
            A(f"v_mfma_f32_16x16x32_bf16 v[28:31], v[{a}:{a+3}], v[{b1}:{b1+3}], v[28:31]")
            if roll: issue('v', sl, "s57", (2*r, 2*r+1))
        if roll: tstep()
    def req_ticket():
        A("v_mov_b32 v58, 0")
        A("v_mov_b32 v59, 1")
        A("s_mov_b64 exec, 1")
        A(f"ds_add_rtn_u32 v59, v58, v59 offset:{L_CNT}")
        A("s_mov_b64 exec, -1")
    def lookup_issue(wait_v=False):
        A("s_waitcnt lgkmcnt(0)")
        A("v_readfirstlane_b32 s76, v59")
        if WT == 4:
            A("s_andn2_b32 s77, s76, 3")
            A("s_and_b32 s76, s76, 3")
        else:
            A(f"s_mul_i32 s77, s76, {-(-65536 // WT)}")
            A("s_lshr_b32 s77, s77, 16")
            A(f"s_mul_i32 s79, s77, {WT}")
            A("s_sub_u32 s76, s76, s79")
            A("s_lshl_b32 s77, s77, 2")
        A("v_mov_b32 v58, s77")
        if wait_v: A("s_waitcnt vmcnt(0)")
        A(f"ds_read_b32 v60, v58 offset:{L_WIN}")
    def vstep(off, nxt, post=None, last=False):
        A(f"ds_read_b128 v[48:51], v13 offset:{off}")
        if vip <= 1:
            A("s_waitcnt lgkmcnt(0)")
            pprep()
            if last and pre: lookup_issue(True)
            else: A("s_waitcnt vmcnt(0)")
        else:
            A("s_waitcnt vmcnt(0) lgkmcnt(0)")
            pprep()
            A("s_nop 0")
        if vip == 0 and nxt: pv(0, True)
        else:
            pv(0)
            if nxt: nxt()
        if post: post()
    A(f"s_mov_b32 s58, {NT-2}")
    LB("L_vloop")
    vstep(0, nv)
    A("v_add_u32 v13, 128, v13")
    A("s_sub_u32 s58, s58, 1")
    A("s_cmp_lg_u32 s58, 0")
    A("s_cbranch_scc1 L_vloop")
    vstep(0, nv, req_ticket)
    C("LDS addresses of this wave's partial")
    A("v_lshrrev_b32 v61, 1, v9")
    A("v_lshlrev_b32 v61, 10, v61")
    A("v_lshl_add_u32 v61, v8, 5, v61")
    A("v_and_b32 v62, 1, v9")
    A("v_lshl_add_u32 v61, v62, 4, v61")
    A("s_lshl_b32 s58, s3, 11")
    A("v_add_u32 v61, s58, v61")
    A("s_lshl_b32 s58, s3, 4")
    A("v_and_b32 v62, 8, v1")
    A("v_add_u32 v62, s58, v62")
    assert vip <= 1 and NSW == 3
    out_setup()
    vstep(128, None, None, True)
    stamp(1)
    C("shared pool: sub-ticket (LDS) -> window ticket fetched by the service wave")
    if not pre:
        LB("L_next")
        lookup_issue()
    else:
        LB("L_next")
    A(f"s_mov_b32 s79, {spin_max}")
    LB("L_win")
    A("s_waitcnt lgkmcnt(0)")
    A("v_readfirstlane_b32 s77, v60")
    A("s_cmp_lg_u32 s77, -1")
    A("s_cbranch_scc1 L_win_ok")
    A("s_sleep 1")
    A(f"ds_read_b32 v60, v58 offset:{L_WIN}")
    A("s_sub_u32 s79, s79, 1")
    A("s_cmp_lg_u32 s79, 0")
    A("s_cbranch_scc1 L_win")
    LB("L_win_ok")
    A(f"s_cmp_ge_u32 s77, {NTK}")
    A("s_cbranch_scc1 L_dyn_done")
    A(f"s_mul_i32 s77, s77, {WT}")
    A("s_add_u32 s77, s77, s76")
    if NPT % WT:
        A(f"s_cmp_ge_u32 s77, {NPT}")
        A("s_cbranch_scc1 L_dyn_done")
    A("s_lshl_b32 s78, s28, 24")
    A("s_and_b32 s79, s77, 7")
    A("s_lshl_b32 s79, s79, 13")
    A("s_or_b32 s78, s78, s79")
    A("s_bfe_u32 s79, s77, 0x30003")
    A("s_lshl_b32 s79, s79, 21")
    A("s_or_b32 s78, s78, s79")
    A("s_lshr_b32 s79, s77, 6")
    A(f"s_add_u32 s79, s79, {NS}")
    A("s_lshl_b32 s79, s79, 16")
    A("s_or_b32 s78, s78, s79")
    issue('k', 2, "s78")
    if dseq:
        A("s_waitcnt vmcnt(0)")
        req_ticket()
        kproc(2, 0, lambda: issue('v', 3, "s78"), True)
    else:
        issue('v', 3, "s78")
        A("s_waitcnt vmcnt(8)")
        req_ticket()
        kproc(2, 0, None, True)
    A("v_max3_f32 v10, v48, v49, v50")
    A("v_max_f32 v10, v10, v51")
    A("v_cmp_gt_f32 vcc, v10, v14")
    A("s_cbranch_vccnz L_rare")
    LB("L_back")
    pprep()
    if pre: lookup_issue(True)
    else: A("s_waitcnt vmcnt(0)")
    pv(3)
    A("s_branch L_next")
    LB("L_rare")
    C("running max rose: rescale l and O")
    A("v_max_f32 v10, v10, v14")
    A("v_mov_b32 v56, v10")
    A("s_nop 1")
    A("v_permlane32_swap_b32 v56, v10")
    A("s_nop 1")
    A("v_max_f32 v10, v10, v56")
    A("v_mov_b32 v56, v10")
    A("s_nop 1")
    A("v_permlane16_swap_b32 v56, v10")
    A("s_nop 1")
    A("v_max_f32 v10, v10, v56")
    A("v_sub_f32 v56, v14, v10")
    A("v_mul_f32 v56, s59, v56")
    A("v_exp_f32 v56, v56")
    A("v_mov_b32 v14, v10")
    A("v_mul_f32 v11, s59, v10")
    A("v_mul_f32 v15, v15, v56")
    A("v_readlane_b32 s60, v56, 0")
    A("v_readlane_b32 s61, v56, 8")
    A("s_mov_b32 s62, 0")
    A("s_mov_b32 s63, -1")
    A("v_mov_b32 v57, s60")
    A("s_mov_b64 exec, s[62:63]")
    A("v_mov_b32 v57, s61")
    A("s_mov_b64 exec, -1")
    for r in range(8):
        A(f"v_mul_f32 v{24+r}, v57, v{24+r}")
    A("s_branch L_back")
    LB("L_dyn_done")
    C("wave partial -> LDS")
    A("v_mov_b32 v10, v15")
    A("s_nop 1")
    A("v_permlane32_swap_b32 v10, v15")
    A("s_nop 0")
    A("v_add_f32 v15, v10, v15")
    A("v_mov_b32 v10, v15")
    A(f"ds_write_b128 v61, v[24:27] offset:{L_O}")
    A(f"ds_write_b128 v61, v[28:31] offset:{L_O+512}")
    A("v_permlane16_swap_b32 v10, v15")
    A("s_nop 0")
    A("v_add_f32 v15, v10, v15")
    A("s_mov_b64 exec, 0x101")
    A(f"ds_write_b64 v62, v[14:15] offset:{L_ML}")
    A("s_mov_b64 exec, -1")
    stamp(4)
    if ob == 0: out_loads()
    A("s_waitcnt lgkmcnt(0)")
    A("s_barrier")
    if ob == 1: out_loads()
    C("FFN part of this column block (hidden slice and gate come through LDS)")
    A("v_mov_b32 v10, 0")
    A(f"ds_read_b128 v[80:83], v52 offset:{L_H}")
    A(f"ds_read_b64 v[2:3], v10 offset:{L_G}")
    A("v_lshlrev_b32 v52, 1, v52")
    A("s_waitcnt lgkmcnt(0)")
    for t in range(4):
        for k in range(4):
            A(f"v_and_b32 v{24+4*t+k}, v{80+t}, v{4+k}")
    if ob == 3: A("s_barrier")
    if ob >= 2: out_loads()
    LB("L_out")
    A("s_barrier")
    A(f"ds_read_b128 v[72:75], v52 offset:{L_OP}")
    A(f"ds_read_b128 v[76:79], v52 offset:{L_OP+16}")
    A("s_waitcnt vmcnt(0)")
    ffn_mfma()
    A("s_waitcnt lgkmcnt(0)")
    def wo_mfma(tt):
        c = "0" if tt == 0 else "v[16:19]"
        A(f"v_mfma_f32_16x16x32_bf16 v[16:19], v[{88+4*tt}:{91+4*tt}], v[{128+4*tt}:{131+4*tt}], {c}")
    for t in range(8):
        for k in range(4):
            A(f"v_and_b32 v{88+4*t+k}, v{72+t}, v{4+k}")
        if t >= 1: wo_mfma(t-1)
    A("s_nop 0")
    wo_mfma(7)
    A("s_mov_b64 exec, s[52:53]")
    for k in range(4):
        A(f"v_mul_f32 v{20+k}, v3, v{20+k}")
    A("s_nop 2")
    for k in range(4):
        A(f"v_fmac_f32 v{20+k}, v2, v{16+k}")
    A(f"buffer_store_dwordx4 v[20:23], v53, s[40:43], s64 offen {HS}")
    A("s_mov_b64 exec, -1")
    if prof:
        A(f"s_cmp_eq_u32 s3, {NSW}")
        A("s_cbranch_scc1 L_svc_end")
    C("role 0 of WGs with i<28: sums the 128 y partials of 16 output columns")
    A("s_cmp_lg_u32 s3, 0")
    A("s_cbranch_scc1 L_fin")
    A("s_cmp_ge_u32 s31, 28")
    A("s_cbranch_scc1 L_fin")
    srd(44, 22, 23, 1792)
    A("v_lshrrev_b32 v10, 2, v1")
    A(f"v_mul_u32_u24 v10, {OB2S}, v10")
    A("v_and_b32 v11, 3, v1")
    A("v_lshl_add_u32 v10, v11, 4, v10")
    A(f"s_mul_i32 s58, s30, {128*OB2S}")
    A("s_lshl_b32 s61, s31, 6")
    A("s_add_u32 s58, s58, s61")
    A(f"s_add_u32 s58, s58, {OB2}")
    for t in range(8):
        A(f"s_add_u32 s{48+t}, s58, {t*16*OB2S}")
    A("v_lshrrev_b32 v14, 5, v1")
    A("v_lshlrev_b32 v14, 2, v14")
    A("v_lshl_add_u32 v14, v11, 3, v14")
    A("s_mul_i32 s58, s30, 896")
    A("s_lshl_b32 s61, s31, 5")
    A("s_add_u32 s58, s58, s61")
    A(f"s_mov_b32 s60, {spin_max}")
    for t in range(8):
        A(f"s_mov_b64 s[{64+2*t}:{65+2*t}], -1")
    LB("L_poll2")
    for t in range(8):
        A(f"s_mov_b64 exec, s[{64+2*t}:{65+2*t}]")
        A(f"s_cbranch_execz L_p2s{t}")
        A(f"buffer_load_dwordx4 v[{64+4*t}:{67+4*t}], v10, s[40:43], s{48+t} offen {HL}")
        LB(f"L_p2s{t}")
    A("s_mov_b64 exec, -1")
    A("s_waitcnt vmcnt(0)")
    for t in range(8):
        A(f"v_max3_u32 v{12+(t&1)}, v{64+4*t}, v{65+4*t}, v{66+4*t}")
        A(f"v_max_u32 v{12+(t&1)}, v{12+(t&1)}, v{67+4*t}")
        A(f"v_cmp_eq_u32 s[{64+2*t}:{65+2*t}], -1, v{12+(t&1)}")
    A("s_or_b64 s[62:63], s[64:65], s[66:67]")
    for t in range(2, 8):
        A(f"s_or_b64 s[62:63], s[62:63], s[{64+2*t}:{65+2*t}]")
    A("s_cbranch_scc0 L_poll2_done")
    A(f"s_sleep {s2}")
    A("s_sub_u32 s60, s60, 1")
    A("s_cmp_lg_u32 s60, 0")
    A("s_cbranch_scc1 L_poll2")
    LB("L_poll2_done")
    stamp(5)
    for step in (16, 8, 4):
        for k in range(step):
            A(f"v_add_f32 v{64+k}, v{64+k}, v{64+step+k}")
    A("s_nop 1")
    A("v_permlane32_swap_b32 v64, v66")
    A("v_permlane32_swap_b32 v65, v67")
    A("s_nop 1")
    A("v_add_f32 v64, v64, v66")
    A("v_add_f32 v65, v65, v67")
    A("v_mov_b32 v66, v64")
    A("v_mov_b32 v67, v65")
    A("s_nop 1")
    A("v_permlane16_swap_b32 v66, v64")
    A("v_permlane16_swap_b32 v67, v65")
    A("s_nop 1")
    A("v_add_f32 v64, v64, v66")
    A("v_add_f32 v65, v65, v67")
    A("s_nop 1")
    A(f"v_add_f32_dpp v64, v64, v64 row_ror:8 {DPP}")
    A(f"v_add_f32_dpp v65, v65, v65 row_ror:8 {DPP}")
    A("s_nop 1")
    A(f"v_add_f32_dpp v64, v64, v64 row_ror:4 {DPP}")
    A(f"v_add_f32_dpp v65, v65, v65 row_ror:4 {DPP}")
    A("s_mov_b32 s60, 15")
    A("s_mov_b32 s61, 15")
    A("v_cvt_pk_bf16_f32 v64, v64, v65")
    if sprobe:
        A("s_mov_b32 s92, 0")
        A("s_atomic_add s92, s[24:25], 0 glc")
        A("s_memrealtime s[90:91]")
        A("s_waitcnt lgkmcnt(0)")
        A("s_not_b32 s92, s92")
        A("s_sub_u32 s92, s90, s92")
        A("s_min_u32 s92, s92, 5000")
        A(f"s_mul_i32 s92, s92, {sprobe}")
        LB("L_sp2")
        A("s_memrealtime s[94:95]")
        A("s_waitcnt lgkmcnt(0)")
        A("s_sub_u32 s94, s94, s90")
        A("s_cmp_lt_u32 s94, s92")
        A("s_cbranch_scc1 L_sp2")
    if tfix:
        if tmode:
            A("s_mov_b32 s92, 0")
            A("s_atomic_add s92, s[24:25], 0 glc")
            A("s_waitcnt lgkmcnt(0)")
            if tmode == 1: A("s_not_b32 s92, s92")
        LB("L_tfix")
        A("s_memrealtime s[94:95]")
        A("s_waitcnt lgkmcnt(0)")
        A("s_sub_u32 s94, s94, s92")
        A(f"s_cmp_lt_u32 s94, {tfix*100}")
        A("s_cbranch_scc1 L_tfix")
    A("s_mov_b64 exec, s[60:61]")
    A(f"buffer_store_dword v64, v14, s[44:47], s58 offen {['', 'sc1', 'sc0 sc1', 'nt'][osc]}")
    A("s_mov_b64 exec, -1")
    stamp(6)
    LB("L_fin")
    dump_stamps(False)
    A("s_endpgm")

    LB("L_service")
    svc[0] = True
    for k in range(4):
        A(f"v_mov_b32 v{48+k}, -1")
    A("v_lshlrev_b32 v14, 4, v1")
    A("v_mov_b32 v15, 0")
    A(f"ds_write_b32 v15, v15 offset:{L_CNT}")
    A(f"ds_write_b128 v14, v[48:51] offset:{L_WIN}")
    if NSW == 3: q_partial(0)
    A("s_mul_i32 s70, s30, 896")
    A("s_add_u32 s44, s4, s70")
    A("s_addc_u32 s45, s5, 0")
    A("s_mov_b32 s46, 896")
    A(f"s_mul_i32 s57, s2, {OB1S}")
    A(f"s_add_u32 s57, s57, {OB1}")
    A(f"s_mul_i32 s58, s2, {OB2S}")
    A(f"s_add_u32 s58, s58, {OB2}")
    stamp(1)
    A("s_waitcnt lgkmcnt(0)")
    A("s_barrier")
    for w in range(4):
        A(f"ds_read_b64 v[{16+2*w}:{17+2*w}], v12 offset:{L_QP+128*w}")
    A("s_waitcnt vmcnt(0)")
    A("v_add_u32 v72, 0x10000, v72")
    A("v_add_u32 v73, 0x10000, v73")
    A("v_and_b32 v72, 0xffff0000, v72")
    A("v_and_b32 v73, 0xffff0000, v73")
    A("s_waitcnt lgkmcnt(0)")
    A("v_add_f32 v16, v16, v18")
    A("v_add_f32 v17, v17, v19")
    A("v_add_f32 v20, v20, v22")
    A("v_add_f32 v21, v21, v23")
    A("v_add_f32 v16, v16, v20")
    A("v_add_f32 v17, v17, v21")
    A("v_cvt_pk_bf16_f32 v16, v16, 0")
    A("v_cvt_pk_bf16_f32 v17, v17, 0")
    A("v_or_b32 v72, v72, v16")
    A("v_or_b32 v73, v73, v17")
    A("s_mov_b64 exec, s[62:63]")
    A(f"buffer_store_dwordx2 v[72:73], v12, s[40:43], s59 offen offset:{QBOX} sc1")
    A("s_mov_b64 exec, -1")
    stamp(2)
    C("own outboxes := sentinel, ticket counter := 0")
    for k in range(2):
        A(f"buffer_store_dwordx4 v[48:51], v14, s[40:43], s57 offen offset:{1024*k} sc1")
    A("buffer_store_dwordx4 v[48:51], v14, s[40:43], s58 offen sc1")
    A("s_mov_b32 s70, -1")
    A("s_mov_b32 s71, 0xffff")
    A("s_mov_b64 exec, s[70:71]")
    A("buffer_store_dwordx4 v[48:51], v14, s[40:43], s58 offen offset:1024 sc1")
    A("s_mov_b64 exec, 0xffff")
    A("buffer_store_dwordx4 v[48:51], v14, s[40:43], s57 offen offset:2048 sc1")
    A("s_mov_b64 exec, -1")
    A("s_cmp_lg_u32 s29, 0")
    A("s_cbranch_scc1 L_notinit")
    A("s_lshl_b32 s70, s28, 12")
    A(f"s_add_u32 s70, s70, {TICK}")
    A("s_mov_b64 exec, 1")
    A("buffer_store_dword v15, v15, s[40:43], s70 offen sc1")
    A("s_mov_b64 exec, -1")
    LB("L_notinit")
    A("s_lshl_b32 s65, s30, 6")
    A("s_add_u32 s65, s65, 128")
    A("s_mov_b32 s68, 1")
    A("s_mov_b32 s59, 0")
    A("s_mov_b32 s66, 0x10000")
    A("s_waitcnt vmcnt(0)")
    A("s_atomic_add s68, s[24:25], s65")
    LB("L_pollq")
    A(f"buffer_load_dwordx4 v[76:79], v11, s[40:43], s56 offen offset:{QBOX} sc1")
    A(f"buffer_load_dwordx4 v[80:83], v11, s[40:43], s56 offen offset:{QBOX+16} sc1")
    A("s_waitcnt vmcnt(0)")
    for k in range(8):
        A(f"v_xor_b32 v{84+k}, v{64+k}, v{76+k}")
    A("v_min3_u32 v84, v84, v85, v86")
    A("v_min3_u32 v87, v87, v88, v89")
    A("v_min3_u32 v84, v84, v90, v91")
    A("v_min_u32 v84, v84, v87")
    A("v_cmp_gt_u32 vcc, s66, v84")
    A("s_cbranch_vccz L_pollq_done")
    A("s_mov_b64 exec, vcc")
    A("s_add_u32 s59, s59, 1")
    A("s_sleep 1")
    A(f"s_cmp_lt_u32 s59, {fbk}")
    A("s_cbranch_scc1 L_pollq")
    C("the snapshot may have been taken after a producer wrote: once the whole batch arrived, the next read is valid")
    A("s_mov_b32 s70, 0")
    A("s_atomic_add s70, s[24:25], s65 glc")
    A("s_waitcnt lgkmcnt(0)")
    A("s_cmp_ge_u32 s70, 128")
    A("s_cselect_b32 s66, 0, s66")
    A(f"s_cmp_lt_u32 s59, {spin_max}")
    A("s_cbranch_scc1 L_pollq")
    LB("L_pollq_done")
    A("s_mov_b64 exec, -1")
    stamp(3)
    for k in range(4):
        A(f"v_perm_b32 v{48+k}, v{77+2*k}, v{76+2*k}, s60")
    A(f"ds_write_b128 v14, v[48:51] offset:{L_Q}")
    A("s_waitcnt lgkmcnt(0)")
    A("s_barrier")
    stamp(4)
    if tmode == 1:
        A("s_not_b32 s94, s92")
        A("s_atomic_umax s94, s[24:25], 0")
        A("s_waitcnt lgkmcnt(0)")
    if tmode == 2:
        A("s_mov_b32 s94, s92")
        A("s_atomic_umax s94, s[24:25], 0")
        A("s_waitcnt lgkmcnt(0)")
    if tmode == 3:
        A("s_memrealtime s[94:95]")
        A("s_waitcnt lgkmcnt(0)")
        A("s_atomic_umax s94, s[24:25], 0")
        A("s_waitcnt lgkmcnt(0)")
    C("background: FFN hidden slice, gate, output-side weights")
    make_masks(56, 57)
    A("s_and_b32 s66, s31, 7")
    A("s_mul_i32 s66, s66, 14")
    A("s_lshr_b32 s67, s31, 3")
    A("s_add_u32 s66, s66, s67")
    A("s_cmp_lt_u32 s31, 112")
    A(f"s_cselect_b32 s59, {448*1792*2}, 0")
    srd(48, 16, 17, 0 if skip & 2 else "s59")
    srd(36, 20, 21, 896)
    A("v_lshrrev_b32 v10, 1, v1")
    A("v_and_b32 v11, 1, v1")
    A("v_mul_u32_u24 v12, 28, v10")
    A(f"v_mul_u32_u24 v13, {14*3584}, v10")
    A("v_lshl_add_u32 v13, v11, 4, v13")
    A(f"buffer_load_dwordx4 v[{XR}:{XR+3}], v12, s[44:47], 0 offen")
    A(f"buffer_load_dwordx3 v[{XR+4}:{XR+6}], v12, s[44:47], 0 offen offset:16")
    A("buffer_load_dwordx4 v[40:43], v14, s[44:47], 0 offen")
    A("buffer_load_dwordx4 v[44:47], v14, s[36:39], 0 offen")
    A("s_lshl_b32 s56, s66, 5")
    cnt = [0]
    def thr():
        cnt[0] += 1
        if cnt[0] % SB == 0: A("s_waitcnt vmcnt(0)")
    for t in range(14):
        A(f"buffer_load_dwordx4 v[{64+4*t}:{67+4*t}], v13, s[48:51], s56 offen")
        A("s_add_u32 s56, s56, 3584")
        thr()
    for k in range(8):
        A(f"v_mov_b32 v{ACC+k}, 0")
    matvec_pairs(7, 64, XR, 0)
    A("s_nop 1")
    for k in range(2):
        A(f"v_add_f32_dpp v{ACC+k}, v{ACC+k}, v{ACC+k} row_ror:2 {DPP}")
    A(f"s_mov_b32 s59, {f2u(-math.log2(math.e)):#x}")
    for k in range(2):
        A(f"v_cvt_pk_bf16_f32 v{ACC+k}, 0, v{ACC+k}")
    for k in range(2):
        A(f"v_mul_f32 v{ACC+2+k}, s59, v{ACC+k}")
    for k in range(2):
        A(f"v_exp_f32 v{ACC+2+k}, v{ACC+2+k}")
    A("s_nop 0")
    for k in range(2):
        A(f"v_add_f32 v{ACC+2+k}, 1.0, v{ACC+2+k}")
    for k in range(2):
        A(f"v_rcp_f32 v{ACC+2+k}, v{ACC+2+k}")
    A("s_nop 0")
    for k in range(2):
        A(f"v_mul_f32 v{ACC+k}, v{ACC+k}, v{ACC+2+k}       ; silu")
    for k in range(2):
        A(f"v_cvt_pk_bf16_f32 v{ACC+k}, v{ACC+k}, v{ACC+k}")
    A("v_lshlrev_b32 v12, 5, v11")
    A("v_lshl_add_u32 v12, v9, 3, v12")
    A("s_mov_b32 s62, 0x00030003")
    A("s_mov_b32 s63, 0x00030003")
    A("s_mov_b64 exec, s[62:63]")
    A(f"ds_write_b64 v12, v[{ACC}:{ACC+1}] offset:{L_H}")
    A("s_mov_b64 exec, -1")
    C("gate")
    for k in range(4):
        A(f"v_lshlrev_b32 v52, 16, v{40+k}")
        A(f"v_lshlrev_b32 v53, 16, v{44+k}")
        A(f"v_and_b32 v54, 0xffff0000, v{40+k}")
        A(f"v_and_b32 v55, 0xffff0000, v{44+k}")
        A("v_mul_f32 v52, v52, v53")
        A("v_mul_f32 v54, v54, v55")
        A("v_cvt_pk_bf16_f32 v52, 0, v52")
        A("v_cvt_pk_bf16_f32 v54, 0, v54")
        if k == 0:
            A("v_add_f32 v56, v52, v54")
        else:
            A("v_add_f32 v56, v56, v52")
            A("v_add_f32 v56, v56, v54")
    for rr in (8, 4, 2, 1):
        A("s_nop 1")
        A(f"v_add_f32_dpp v56, v56, v56 row_ror:{rr} {DPP}")
    A("v_mov_b32 v57, v56")
    A("s_nop 1")
    A("v_permlane32_swap_b32 v57, v56")
    A("s_nop 1")
    A("v_add_f32 v56, v56, v57")
    A("v_mov_b32 v57, v56")
    A("s_nop 1")
    A("v_permlane16_swap_b32 v57, v56")
    A("s_nop 1")
    A("v_add_f32 v56, v56, v57")
    A("v_cvt_pk_bf16_f32 v56, 0, v56")
    A("v_mul_f32 v56, s59, v56")
    A("v_exp_f32 v56, v56")
    A("s_nop 0")
    A("v_add_f32 v56, 1.0, v56")
    A("v_rcp_f32 v56, v56")
    A("s_nop 0")
    A("v_cvt_pk_bf16_f32 v2, 0, v56           ; g")
    A("v_sub_f32 v3, 1.0, v2")
    A("v_cvt_pk_bf16_f32 v3, 0, v3            ; 1-g")
    A("v_mov_b32 v16, 0")
    A(f"ds_write_b64 v16, v[2:3] offset:{L_G}")
    out_setup()
    A(f"ds_read_b128 v[80:83], v52 offset:{L_H}")
    A("v_lshlrev_b32 v52, 1, v52")
    A("s_waitcnt lgkmcnt(0)")
    for t in range(4):
        for k in range(4):
            A(f"v_and_b32 v{24+4*t+k}, v{80+t}, v{4+k}")
    A(f"s_mov_b32 s59, {f2u(C_SCALE):#x}")
    A("v_lshlrev_b32 v10, 5, v1")
    A("v_lshrrev_b32 v11, 5, v1")
    A("v_lshlrev_b32 v11, 3, v11")
    A("v_lshrrev_b32 v15, 2, v1")
    A("v_mul_u32_u24 v15, 144, v15")
    A("v_and_b32 v12, 3, v1")
    A("v_lshl_add_u32 v15, v12, 5, v15")
    A(f"v_mul_u32_u24 v12, {OB1S}, v8")
    A("v_lshl_add_u32 v13, v9, 5, v12")
    A(f"s_mul_i32 s60, s28, {16*OB1S}")
    A("s_mul_i32 s61, s29, 144")
    A("s_add_u32 s60, s60, s61")
    A(f"s_add_u32 s60, s60, {OB1}")
    A("v_lshlrev_b32 v14, 5, v9")
    A("s_lshl_b32 s54, 0x00010001, s29")
    A("s_mov_b32 s55, s54")
    A("s_lshl_b32 s61, s29, 4")
    A("v_lshl_add_u32 v21, v9, 2, s61")
    C("whole batch arrived => every outbox read later was cleared and the ticket counters are set")
    A(f"s_mov_b32 s56, {spin_max}")
    LB("L_pollg")
    A("s_mov_b32 s70, 0")
    A("s_atomic_add s70, s[24:25], s65 glc")
    A("s_waitcnt lgkmcnt(0)")
    A("s_cmp_ge_u32 s70, 128")
    A("s_cbranch_scc1 L_pollg_done")
    A("s_sleep 16")
    A("s_sub_u32 s56, s56, 1")
    A("s_cmp_lg_u32 s56, 0")
    A("s_cbranch_scc1 L_pollg")
    LB("L_pollg_done")
    C("window-ticket server")
    A("s_lshl_b32 s74, s28, 12")
    A(f"s_add_u32 s74, s74, {TICK}")
    A("s_add_u32 s74, s26, s74")
    A("s_addc_u32 s75, s27, 0")
    A("s_mov_b32 s71, 0")
    A("s_mov_b32 s72, 0")
    A("v_mov_b32 v16, 0")
    A(f"s_mov_b32 s56, {spin_max*8}")
    LB("L_tk")
    A(f"ds_read_b32 v17, v16 offset:{L_CNT}")
    A("s_waitcnt lgkmcnt(0)")
    A("v_readfirstlane_b32 s70, v17")
    A("s_cmp_gt_u32 s70, s72")
    A("s_cbranch_scc1 L_tk_fetch")
    A("s_sleep 2")
    A("s_sub_u32 s56, s56, 1")
    A("s_cmp_lg_u32 s56, 0")
    A("s_cbranch_scc1 L_tk")
    A("s_branch L_tk_done")
    LB("L_tk_fetch")
    A("s_mov_b32 s70, 1")
    A("s_atomic_add s70, s[74:75], 0 glc")
    A("v_mov_b32 v17, s71")
    A("s_waitcnt lgkmcnt(0)")
    A("v_mov_b32 v20, s70")
    A("s_add_u32 s71, s71, 4")
    A(f"s_add_u32 s72, s72, {WT}")
    A(f"ds_write_b32 v17, v20 offset:{L_WIN}")
    A(f"s_cmp_lt_u32 s70, {NTK - RET}")
    A("s_cbranch_scc1 L_tk")
    C("one of the last tickets (or none): this WG asks for nothing more")
    A("v_mov_b32 v17, s71")
    A("v_mov_b32 v20, 0x10000")
    for k in range(-(-NSW // WT)):
        A(f"ds_write_b32 v17, v20 offset:{L_WIN + 4*k}")
    LB("L_tk_done")
    if warm:
        C("touch the pages of the output-side weights (address translation only)")
        A("s_mov_b64 exec, 1")
        A("buffer_load_dword v17, v54, s[44:47], s69 offen")
        A("buffer_load_dword v20, v55, s[48:51], s67 offen")
        A("s_mov_b64 exec, -1")
    A("s_waitcnt vmcnt(0) lgkmcnt(0)")
    A("s_barrier")
    stamp(5)
    if prof: A("s_waitcnt lgkmcnt(0)")
    C("WG combine")
    for w in range(NSW):
        A(f"ds_read_b64 v[{56+2*w}:{57+2*w}], v11 offset:{L_ML+16*w}")
    for w in range(NSW):
        A(f"ds_read_b128 v[{64+8*w}:{67+8*w}], v10 offset:{L_O+2048*w}")
        A(f"ds_read_b128 v[{68+8*w}:{71+8*w}], v10 offset:{L_O+2048*w+16}")
    A(f"s_waitcnt lgkmcnt({2*NSW})")
    A("v_max3_f32 v16, v56, v58, v60")
    if NSW == 4: A("v_max_f32 v16, v16, v62")
    for w in range(NSW):
        A(f"v_sub_f32 v{56+2*w}, v{56+2*w}, v16")
    for w in range(NSW):
        A(f"v_mul_f32 v{56+2*w}, s59, v{56+2*w}")
    for w in range(NSW):
        A(f"v_exp_f32 v{56+2*w}, v{56+2*w}")
    A("s_nop 0")
    A("v_mul_f32 v17, v56, v57")
    for w in range(1, NSW):
        A(f"v_fmac_f32 v17, v{56+2*w}, v{57+2*w}")
    A("s_waitcnt lgkmcnt(0)")
    for k in range(8):
        A(f"v_mul_f32 v{64+k}, v56, v{64+k}")
    for w in range(1, NSW):
        for k in range(8):
            A(f"v_fmac_f32 v{64+k}, v{56+2*w}, v{64+8*w+k}")
    A(f"buffer_store_dwordx4 v[64:67], v15, s[40:43], s57 offen {HS}")
    A(f"buffer_store_dwordx4 v[68:71], v15, s[40:43], s57 offen offset:16 {HS}")
    A("s_mov_b32 s62, 0x11111111")
    A("s_mov_b32 s63, 0x11111111")
    A("s_mov_b64 exec, s[62:63]")
    A(f"buffer_store_dwordx2 v[16:17], v15, s[40:43], s57 offen offset:128 {HS}")
    A("s_mov_b64 exec, -1")
    def poll1_loads():
        A(f"buffer_load_dwordx4 v[72:75], v13, s[40:43], s60 offen {HL}")
        A(f"buffer_load_dwordx4 v[76:79], v13, s[40:43], s60 offen offset:16 {HL}")
        A(f"buffer_load_dwordx2 v[80:81], v12, s[40:43], s60 offen offset:128 {HL}")
    if ob == 3: A("s_barrier")
    A(f"s_mov_b32 s56, {spin_max}")
    if own:
        C("own packet comes from registers; the other 15 are polled")
        A("s_andn2_b64 exec, -1, s[54:55]")
        poll1_loads()
        if m3:
            A("s_mov_b32 s62, 0x00ff00ff")
            A("s_mov_b32 s63, 0x00ff00ff")
            A("s_mov_b64 exec, s[62:63]")
        else:
            A("s_mov_b64 exec, -1")
        out_loads()
        A("s_mov_b64 exec, -1")
        for k in range(8):
            A(f"ds_bpermute_b32 v{88+k}, v21, v{64+k}")
        A("ds_bpermute_b32 v96, v21, v16")
        A("ds_bpermute_b32 v97, v21, v17")
        A("s_mov_b64 exec, s[54:55]")
        A("s_waitcnt lgkmcnt(0)")
        for k in range(10):
            A(f"v_mov_b32 v{72+k}, v{88+k}")
        A("s_mov_b64 exec, -1")
        A("s_waitcnt vmcnt(12)")
        A("s_branch L_poll1_chk")
    else:
        out_loads()
    LB("L_poll1")
    poll1_loads()
    A("s_waitcnt vmcnt(0)")
    LB("L_poll1_chk")
    A("v_max3_u32 v18, v72, v73, v74")
    A("v_max3_u32 v19, v75, v76, v77")
    A("v_max3_u32 v18, v18, v78, v79")
    A("v_max3_u32 v19, v19, v80, v81")
    A("v_max_u32 v18, v18, v19")
    A("v_cmp_eq_u32 vcc, -1, v18")
    A("s_cbranch_vccz L_poll1_done")
    A("s_mov_b64 exec, vcc")
    A("s_bcnt1_i32_b64 s61, vcc")
    A(f"s_cmp_le_u32 s61, {lt}")
    A("s_cbranch_scc1 L_poll1_fast")
    A(f"s_sleep {ls}")
    LB("L_poll1_fast")
    A("s_sleep 1")
    A("s_sub_u32 s56, s56, 1")
    A("s_cmp_lg_u32 s56, 0")
    A("s_cbranch_scc1 L_poll1")
    LB("L_poll1_done")
    A("s_mov_b64 exec, -1")
    stamp(6)
    if sprobe:
        A("s_cmp_lg_u32 s29, 0")
        A("s_cbranch_scc1 L_sp1")
        A("s_memrealtime s[94:95]")
        A("s_waitcnt lgkmcnt(0)")
        A("s_not_b32 s94, s94")
        A("s_atomic_umax s94, s[24:25], 0")
        LB("L_sp1")
    C("group combine over the 16 producers, then 32 rows of wo")
    A(f"v_max_f32_dpp v18, v80, v80 row_ror:8 {DPP}")
    for rr in (4, 2, 1):
        A("s_nop 1")
        A(f"v_max_f32_dpp v18, v18, v18 row_ror:{rr} {DPP}")
    A("v_sub_f32 v18, v80, v18")
    A("v_mul_f32 v18, s59, v18")
    A("v_exp_f32 v18, v18")
    A("s_nop 0")
    A("v_mul_f32 v80, v18, v81")
    for k in range(8):
        A(f"v_mul_f32 v{72+k}, v18, v{72+k}")
    for rr in (8, 4, 2, 1):
        for k in (8, 0, 1, 2, 3, 4, 5, 6, 7):
            A(f"v_add_f32_dpp v{72+k}, v{72+k}, v{72+k} row_ror:{rr} {DPP}")
    A("v_rcp_f32 v80, v80")
    A("s_nop 0")
    for k in range(8):
        A(f"v_mul_f32 v{72+k}, v80, v{72+k}")
    for k in range(8):
        A(f"v_cvt_pk_bf16_f32 v{72+k}, v{72+k}, v{72+k}")
    A("s_mov_b32 s62, 0x00010001")
    A("s_mov_b32 s63, 0x00010001")
    A("s_mov_b64 exec, s[62:63]")
    A(f"ds_write_b128 v14, v[72:75] offset:{L_OP}")
    A(f"ds_write_b128 v14, v[76:79] offset:{L_OP+16}")
    A("s_mov_b64 exec, -1")
    A("s_waitcnt lgkmcnt(0)")
    A("s_branch L_out")
    LB("L_svc_end")
    stamp(7)
    dump_stamps(True)
    LB("L_end")
    A("s_endpgm")
    L.append('.section .rodata,"a"')
    L.append(".p2align 6")
    L.append(f".amdhsa_kernel {NAME}_kernel")
    L.append("  .amdhsa_next_free_vgpr 256")
    L.append("  .amdhsa_next_free_sgpr 96")
    L.append("  .amdhsa_accum_offset 256")
    L.append("  .amdhsa_group_segment_fixed_size 0")
    L.append("  .amdhsa_kernarg_size 96")
    L.append("  .amdhsa_user_sgpr_count 2")
    L.append("  .amdhsa_user_sgpr_kernarg_segment_ptr 1")
    L.append("  .amdhsa_system_sgpr_workgroup_id_x 1")
    L.append(".end_amdhsa_kernel")
    return "\n".join(L) + "\n"


if __name__ == "__main__":
    out = sys.argv[1]
    kw = {}
    for a in sys.argv[2:]:
        k, v = a.split("=")
        kw[k] = int(v)
    open(out, "w").write(gen(**kw))
```

```python
import sys, math, struct

NAME = "gated_mix__gqa_block_cached__dense_activation_silu__decode"
HEADER = open("cdna_kernels/" + NAME + ".s.ref").read().split("; Override launch")[0]

QBOX = 0x0
TICK = 0x10000
OB1 = 0x40000
OB1S = 2304
OB2 = 0x200000
OB2S = 1792
STAMP = 0x20000000
C_SCALE = (1.0 / 16.0) * math.log2(math.e)
def f2u(x): return struct.unpack("<I", struct.pack("<f", x))[0]


DOC = """
One launch, 256 workgroups (group = wg>>4 = batch*8 + kv head, 16 workgroups per group), 4 waves each.
 * wave 0 (service): hands q slices round the group through d_ws (16-bit tags = stale tag + 1, arrival
   counter in d_debug as fall-back), computes a 16-unit FFN slice and the gate, serves window tickets,
   merges the wave partials, merges the 16 partials of a 32-row slice of o and multiplies it with wo.
 * waves 1-3 stream K (scores -> LDS, true max), then V, straight into MFMA operand registers:
   QK^T uses 64-byte row pieces as A rows and picks the diagonal blocks, P.V puts p on the diagonal of
   A so that row-major V is the B operand as loaded.  The last 1/16 of the keys is a shared pool handed
   out by tickets (running max with rescale) so that all workgroups finish together.
 * partial results travel through sentinel-cleared boxes in d_ws (sc1 stores / sc1 loads).
"""

def gen(prof=0, NSW=3, NS=30, NPRE=6, kip=1, vip=1, RET=8, fbk=4, SB=8, spin_max=200000, ldsx=0, dseq=0, PF2=0, WT=3, skip=0, ptile=0, early=1, eh=0, hl=0, hs=0, ls=16, lt=28, s2=2, pre=1, tfix=0, osc=0, tmode=0, ob=3, warm=0, own=1, m3=1, sprobe=0, pp=0, ppc=30):
    NT = NS*4 // NSW
    assert NS*4 % NSW == 0 and NSW in (3, 4)
    SSTR = NT*128
    L_Q = 0
    L_S = 1024
    L_O = L_S + NSW*SSTR
    L_ML = L_O + 2048*NSW
    L_H = L_ML + 64
    L_G = L_H + 64
    L_OP = L_G + 64
    L_QP = L_OP + 128
    L_CNT = L_QP + 512
    L_WIN = L_CNT + 64
    LDS_BYTES = L_WIN + 1024
    NPT = (32-NS)*64
    NTK = -(-NPT // WT)
    L = []
    A = lambda s: L.append("  " + s)
    LB = lambda s: L.append(s + ":")
    C = lambda s: L.append("  ; " + s)
    DPP = "row_mask:0xf bank_mask:0xf"
    ACC, XR = 16, 32

    svc = [False]
    HL = ['sc1', 'sc0 sc1', 'sc1 nt'][hl]
    HS = ['sc1', 'sc0 sc1', 'sc1 nt'][hs]
    def stamp(k, force=False):
        if ptile and not svc[0] and not force and k not in (0, 7):
            return
        if prof: A(f"s_memrealtime s[{80+2*k}:{81+2*k}]")
    def dump_stamps(svc):
        if not prof: return
        A("s_waitcnt lgkmcnt(0)")
        A("s_lshl_b32 s56, s2, 3")
        A(f"s_add_u32 s56, s56, {'4' if svc else 's3'}")
        A("s_lshl_b32 s56, s56, 6")
        A(f"s_add_u32 s56, s56, {STAMP}")
        A("s_mov_b64 exec, 1")
        A("v_mov_b32 v60, 0")
        for q in range(4):
            for j in range(4):
                A(f"v_mov_b32 v{56+j}, s{80+4*q+j}")
            A(f"buffer_store_dwordx4 v[56:59], v60, s[40:43], s56 offen offset:{16*q}")
            A("s_nop 1")
        A("s_mov_b64 exec, -1")
    def srd(d, lo, hi, n):
        A(f"s_mov_b32 s{d}, s{lo}")
        A(f"s_mov_b32 s{d+1}, s{hi}")
        A(f"s_mov_b32 s{d+2}, {n}")
        A(f"s_mov_b32 s{d+3}, 0x00020000")
    def matvec_pairs(npairs, wbase, xbase, tail_ops):
        for u in range(npairs):
            A(f"s_waitcnt vmcnt({2*npairs - (2*u+2) + tail_ops})")
            w0 = wbase + 8*u; w1 = w0 + 4
            for k in range(4):
                A(f"v_perm_b32 v{52+k}, v{w1+k}, v{w0+k}, s60")
                A(f"v_perm_b32 v{56+k}, v{w1+k}, v{w0+k}, s61")
            for k in range(4):
                A(f"v_dot2c_f32_bf16 v{ACC+2*k}, v{52+k}, v{xbase+u}")
                A(f"v_dot2c_f32_bf16 v{ACC+2*k+1}, v{56+k}, v{xbase+u}")
        A("s_nop 3")
        for k in range(4):
            A(f"v_permlane32_swap_b32 v{ACC+k}, v{ACC+4+k}")
        A("s_nop 1")
        for k in range(4):
            A(f"v_add_f32 v{ACC+k}, v{ACC+k}, v{ACC+4+k}")
        A("s_nop 1")
        for k in range(2):
            A(f"v_permlane16_swap_b32 v{ACC+k}, v{ACC+2+k}")
        A("s_nop 1")
        for k in range(2):
            A(f"v_add_f32 v{ACC+k}, v{ACC+k}, v{ACC+2+k}")
        for rr in (8, 4):
            A("s_nop 1")
            for k in range(2):
                A(f"v_add_f32_dpp v{ACC+k}, v{ACC+k}, v{ACC+k} row_ror:{rr} {DPP}")
    def make_masks(t0, t1):
        C("v4..v7: lane e=l&7 owns bf16 element e of an 8-element A fragment")
        A(f"v_and_b32 v{t0}, 1, v1")
        A(f"v_lshlrev_b32 v{t0}, 4, v{t0}")
        A(f"v_mov_b32 v{t1}, 0xffff")
        A(f"v_lshlrev_b32 v{t1}, v{t0}, v{t1}")
        A(f"v_bfe_u32 v{t0}, v1, 1, 2")
        for k in range(4):
            A(f"v_cmp_eq_u32 vcc, {k}, v{t0}")
            A("s_nop 1")
            A(f"v_cndmask_b32 v{4+k}, 0, v{t1}, vcc")
    SLOT0 = 64
    def slot(sl, i): return SLOT0 + 32*sl + 4*i
    WQB = slot(5, 0)
    def wq_loads():
        A(f"buffer_load_dwordx4 v[{XR}:{XR+3}], v14, s[44:47], s58 offen")
        for t in range(8):
            A(f"buffer_load_dwordx4 v[{WQB+4*t}:{WQB+4*t+3}], v13, s[48:51], s57 offen")
            if t < 7: A("s_add_u32 s57, s57, 0x2000")
    def q_partial(tail):
        for k in range(8):
            A(f"v_mov_b32 v{ACC+k}, 0")
        A("s_lshl_b32 s58, s3, 7")
        A("v_add_u32 v13, s58, v12")
        matvec_pairs(4, WQB, XR, tail)
        A("s_mov_b64 exec, s[62:63]")
        A(f"ds_write_b64 v13, v[{ACC}:{ACC+1}] offset:{L_QP}")
        A("s_mov_b64 exec, -1")

    def out_setup():
        C("output side: this wave owns column block cb = role of 32 wo rows and 16 w2 rows")
        A("s_and_b32 s69, s31, 7")
        A("s_mul_i32 s69, s69, 14")
        A("s_lshr_b32 s67, s31, 3")
        A("s_add_u32 s69, s69, s67")
        A(f"s_mul_i32 s69, s69, {16*896}")
        A("s_cmp_lt_u32 s31, 112")
        A(f"s_cselect_b32 s46, {0 if skip & 4 else 448*1792*2}, 0")
        A("s_mov_b32 s44, s18")
        A("s_mov_b32 s45, s19")
        A("s_mov_b32 s47, 0x00020000")
        srd(48, 12, 13, 0 if skip & 8 else 4096*448*2)
        A("s_lshl_b32 s64, s3, 8")
        A("s_add_u32 s69, s69, s64")
        A(f"s_mul_i32 s67, s31, {32*896}")
        A("s_add_u32 s67, s67, s64")
        A(f"s_add_u32 s68, s67, {4*896}")
        A("s_lshl_b32 s64, s64, 1")
        A(f"s_mul_i32 s52, s2, {OB2S}")
        A("s_add_u32 s64, s64, s52")
        A(f"s_add_u32 s64, s64, {OB2}")
        A("s_cmp_eq_u32 s3, 3")
        A("s_cselect_b32 s52, 0x00ff00ff, -1")
        A("s_mov_b32 s53, 0")
        A("v_mul_u32_u24 v54, 3584, v9")
        A("v_lshl_add_u32 v54, v8, 4, v54         ; w2 row 16f + 4g + t")
        A("v_mul_u32_u24 v55, 7168, v9")
        A("v_lshl_add_u32 v55, v8, 4, v55")
        A("v_lshlrev_b32 v53, 5, v8")
        A("v_lshl_add_u32 v53, v9, 4, v53")
        A("v_lshlrev_b32 v52, 4, v9")
    def ffn_mfma():
        for t in range(4):
            c = "0" if t == 0 else "v[20:23]"
            A(f"v_mfma_f32_16x16x32_bf16 v[20:23], v[{24+4*t}:{27+4*t}], v[{160+4*t}:{163+4*t}], {c}")
    def out_loads():
        for t in range(4):
            A(f"buffer_load_dwordx4 v[{160+4*t}:{163+4*t}], v54, s[44:47], s69 offen offset:{t*896}")
        for t in range(8):
            A(f"buffer_load_dwordx4 v[{128+4*t}:{131+4*t}], v55, s[48:51], s{67 + (t>>2)} offen offset:{(t&3)*896}")
    L.append(HEADER.rstrip("\n"))
    L.append(f"; @launch grid=(256,1,1) block=({64*(NSW+1)},1,1) lds={ldsx or LDS_BYTES}")
    L.append('.amdgcn_target "amdgcn-amd-amdhsa--gfx950"')
    for line in DOC.strip("\n").splitlines():
        L.append("; " + line)
    L.append(".text")
    L.append(f".globl {NAME}_kernel")
    L.append(".p2align 8")
    L.append(f".type {NAME}_kernel,@function")
    LB(f"{NAME}_kernel")
    A("s_cmp_ge_u32 s2, 256")
    A("s_cbranch_scc1 L_end")
    if prof:
        for k in range(8):
            A(f"s_mov_b64 s[{80+2*k}:{81+2*k}], 0")
        stamp(0)
        A("s_waitcnt lgkmcnt(0)")
    if tfix:
        A("s_memrealtime s[92:93]")
        A("s_waitcnt lgkmcnt(0)")
    A("s_load_dwordx2 s[44:45], s[0:1], 0     ; x  -> SRD s[44:47]")
    A("s_load_dwordx2 s[48:49], s[0:1], 24")
    A("s_load_dwordx2 s[32:33], s[0:1], 8     ; K  -> SRD s[32:35]")
    A("s_load_dwordx2 s[40:41], s[0:1], 88")
    A("s_load_dwordx2 s[36:37], s[0:1], 16    ; V  -> SRD s[36:39]")
    A("s_load_dwordx16 s[4:19], s[0:1], 0")
    A("s_load_dwordx8 s[20:27], s[0:1], 64")
    A("v_lshrrev_b32 v2, 6, v0")
    A("v_and_b32 v1, 63, v0                   ; lane")
    A("v_readfirstlane_b32 s3, v2")
    A("s_sub_u32 s3, s3, 1")
    A(f"s_min_u32 s3, s3, {NSW}")
    A("s_lshr_b32 s28, s2, 4                  ; group")
    A("s_and_b32 s29, s2, 15                  ; s")
    A("s_lshr_b32 s30, s2, 7                  ; b")
    A("s_and_b32 s31, s2, 127                 ; i")
    C("s64 = q slice produced here: (i & ~15) + (s&7)*2 + (s>>3)")
    A("s_and_b32 s64, s29, 7")
    A("s_lshl_b32 s64, s64, 1")
    A("s_lshr_b32 s65, s29, 3")
    A("s_add_u32 s64, s64, s65")
    A("s_andn2_b32 s65, s31, 15")
    A("s_add_u32 s64, s64, s65")
    A("v_and_b32 v8, 15, v1")
    A("v_lshrrev_b32 v9, 4, v1                ; g")
    A("v_and_b32 v10, 3, v1")
    A("s_mov_b32 s42, 0x40000000")
    A("s_mov_b32 s43, 0x00020000")
    C("q partial: rows (role*14+rg)*8 + t, cols slice*32 + chunk*8")
    A("s_mul_i32 s58, s30, 896")
    A("s_mov_b32 s46, 1792")
    A("s_mov_b32 s47, 0x00020000")
    A(f"s_mov_b32 s50, {0 if skip & 1 else 448*4096*2}")
    A("s_mov_b32 s51, 0x00020000")
    A("v_lshrrev_b32 v14, 2, v1")
    A("s_mul_i32 s57, s3, 14")
    A("v_cmp_gt_u32 vcc, 14, v14")
    A("v_add_u32 v14, s57, v14")
    A("v_mov_b32 v13, 0x4000")
    A("v_cndmask_b32 v14, v13, v14, vcc")
    A("v_lshlrev_b32 v13, 16, v14")
    A("v_lshl_add_u32 v13, v10, 4, v13")
    A("v_lshlrev_b32 v14, 4, v14")
    A("s_lshl_b32 s57, s64, 6")
    A("v_lshlrev_b32 v12, 5, v10")
    A("v_lshl_add_u32 v12, v9, 3, v12         ; chunk*32 + g*8")
    A("s_mov_b32 s60, 0x05040100")
    A("s_mov_b32 s61, 0x07060302")
    A("s_mov_b32 s62, 0x000f000f")
    A("s_mov_b32 s63, 0x000f000f")
    A(f"s_cmp_lg_u32 s3, {NSW}")
    A("s_cbranch_scc1 L_stream")
    C("service: snapshot of the group's q box and of this WG's own stale tags")
    A("v_lshlrev_b32 v11, 5, v1")
    A("s_lshl_b32 s56, s28, 11")
    A("s_lshl_b32 s59, s30, 7")
    A("s_add_u32 s59, s59, s64")
    A("s_lshl_b32 s59, s59, 7")
    A("s_waitcnt lgkmcnt(0)")
    A(f"buffer_load_dwordx4 v[64:67], v11, s[40:43], s56 offen offset:{QBOX} sc1")
    A(f"buffer_load_dwordx4 v[68:71], v11, s[40:43], s56 offen offset:{QBOX+16} sc1")
    A(f"buffer_load_dwordx2 v[72:73], v12, s[40:43], s59 offen offset:{QBOX} sc1")
    if NSW == 3: wq_loads()
    A("s_branch L_service")

    LB("L_stream")
    A("s_mov_b32 s34, 0x10000000")
    A("s_mov_b32 s35, 0x00020000")
    A("s_mov_b32 s38, 0x10000000")
    A("s_mov_b32 s39, 0x00020000")
    C("tile n of this WG: group<<24 | (s&7)<<21 | (n>>2)<<16 | (s>>3)<<15 | (n&3)<<13")
    A("s_lshl_b32 s56, s28, 24")
    A("s_and_b32 s66, s29, 7")
    A("s_lshl_b32 s66, s66, 21")
    A("s_or_b32 s56, s56, s66")
    A("s_lshr_b32 s66, s29, 3")
    A("s_lshl_b32 s66, s66, 15")
    A("s_or_b32 s56, s56, s66")
    A("s_lshl_b32 s67, s3, 13")
    A("s_or_b32 s56, s56, s67")
    def tstep():
        if NSW == 4:
            A("s_add_u32 s57, s57, 0x10000")
        else:
            A("s_or_b32 s57, s57, 0x8000")
            A("s_add_u32 s57, s57, 0x6000")
            A("s_andn2_b32 s57, s57, 0x8000")
            A("s_or_b32 s57, s57, s66")
    A("v_lshrrev_b32 v3, 2, v8")
    A("v_lshlrev_b32 v2, 11, v3")
    A("v_lshl_add_u32 v2, v9, 6, v2")
    A("v_lshl_add_u32 v2, v10, 4, v2")
    A("v_lshlrev_b32 v3, 11, v9")
    A("v_lshl_add_u32 v3, v8, 4, v3")
    def issue(kind, sl, sreg, which=range(8)):
        srdn = "s[32:35]" if kind == 'k' else "s[36:39]"
        va = "v2" if kind == 'k' else "v3"
        for i in which:
            b = slot(sl, i)
            A(f"buffer_load_dwordx4 v[{b}:{b+3}], {va}, {srdn}, {sreg} offen offset:{256*i} nt")
    A("s_waitcnt lgkmcnt(0)")
    wq_loads()
    A("s_mov_b32 s57, s56")
    for t in range(early):
        issue('k', t, "s57")
        tstep()
    q_partial(8*early)
    A("s_waitcnt lgkmcnt(0)")
    A("s_barrier")
    stamp(7)
    for t in range(early, NPRE):
        A(f"s_waitcnt vmcnt({eh if t == early else PF2})")
        if ptile == 1: stamp(t, True)
        issue('k', t, "s57")
        tstep()
        if t == early:
            A("v_bfe_u32 v12, v1, 3, 1")
            A("v_lshlrev_b32 v13, 2, v12")
            A("v_add_u32 v13, v13, v9")
            A("v_lshlrev_b32 v12, 9, v12")
            A("v_lshl_add_u32 v12, v9, 6, v12")
            A("v_lshl_add_u32 v12, v10, 4, v12")
            A(f"s_mul_i32 s58, s3, {SSTR}")
            A(f"s_add_u32 s58, s58, {L_S}")
            A("v_lshlrev_b32 v13, 4, v13")
            A("v_add_u32 v13, s58, v13")
            make_masks(56, 57)
            A("v_mov_b32 v14, 0xff800000")
            A("v_mov_b32 v15, 0                       ; l")
            for r in range(8):
                A(f"v_mov_b32 v{24+r}, 0")
            A(f"s_mov_b32 s59, {f2u(C_SCALE):#x}")
    A("s_barrier")
    A(f"ds_read_b128 v[16:19], v12 offset:{L_Q}")
    A(f"ds_read_b128 v[20:23], v12 offset:{L_Q+256}")
    stamp(2)
    if ptile == 1: stamp(6, True)
    if ptile == 2: stamp(1, True)
    A("s_waitcnt lgkmcnt(0)")

    def kproc(sl, soff, mid=None, dyn=False, roll=False):
        for r in range(4):
            d = 32 + 4*r
            a0 = slot(sl, 2*r); a1 = slot(sl, 2*r+1)
            A(f"v_mfma_f32_16x16x32_bf16 v[{d}:{d+3}], v[{a0}:{a0+3}], v[16:19], 0")
            A(f"v_mfma_f32_16x16x32_bf16 v[{d}:{d+3}], v[{a1}:{a1+3}], v[20:23], v[{d}:{d+3}]")
            if roll: issue('k', sl, "s57", (2*r, 2*r+1))
        if roll:
            tstep(); A("s_nop 1")
        elif mid: mid()
        else: A("s_nop 4")
        for k in range(4):
            for r in range(4):
                d = 32 + 4*r + k
                if k == 0:
                    A(f"v_mov_b32_dpp v{48+r}, v{d} quad_perm:[0,0,0,0] {DPP}")
                else:
                    A(f"v_add_f32_dpp v{48+r}, v{d}, v{48+r} quad_perm:[{k},{k},{k},{k}] {DPP}")
        for r in range(4):
            A(f"v_cvt_pk_bf16_f32 v{48+r}, 0, v{48+r}")
        if dyn: return
        A("v_max3_f32 v14, v14, v48, v49")
        A("v_max3_f32 v14, v14, v50, v51")
        A(f"ds_write_b128 v13, v[48:51] offset:{soff}")
    def nk():
        issue('k', 0, "s57"); tstep()
    def nv():
        issue('v', 0, "s57"); tstep()
    def nv0():
        A("s_mov_b32 s57, s56"); nv()
    for t in range(NPRE):
        A(f"s_waitcnt vmcnt({8*((NPRE-1-t) + min(t, 1))})")
        kproc(t, t*128, nk if t == 0 else None)
    A(f"v_add_u32 v13, {NPRE*128}, v13")
    def kstep(nxt):
        A("s_waitcnt vmcnt(0)")
        if kip == 0 and nxt is nk: kproc(0, 0, None, False, True)
        elif kip <= 1: kproc(0, 0, nxt)
        else:
            kproc(0, 0); nxt()
    extra = 0
    if ptile == 2:
        stamp(2, True)
        for q in range(3, 7):
            for rep in range(3):
                kstep(nk)
                A("v_add_u32 v13, 128, v13")
                extra += 1
            stamp(q, True)
    A(f"s_mov_b32 s58, {NT - NPRE - 1 - extra}")
    LB("L_kloop")
    kstep(nk)
    A("v_add_u32 v13, 128, v13")
    A("s_sub_u32 s58, s58, 1")
    A("s_cmp_lg_u32 s58, 0")
    A("s_cbranch_scc1 L_kloop")
    kstep(nv0)
    stamp(3)
    C("true max of this wave's keys per head")
    A(f"v_subrev_u32 v13, {(NT-1)*128}, v13")
    A("v_mov_b32 v10, v14")
    A("s_nop 1")
    A("v_permlane32_swap_b32 v10, v14")
    A("s_nop 1")
    A("v_max_f32 v14, v10, v14")
    A("v_mov_b32 v10, v14")
    A("s_nop 1")
    A("v_permlane16_swap_b32 v10, v14")
    A("s_nop 1")
    A("v_max_f32 v14, v10, v14")
    A("v_mul_f32 v11, s59, v14")
    def pprep():
        for r in range(4):
            A(f"v_fma_f32 v{48+r}, v{48+r}, s59, -v11")
        for r in range(4):
            A(f"v_exp_f32 v{48+r}, v{48+r}")
        A("s_nop 0")
        A("v_add_f32 v56, v48, v49")
        A("v_add_f32 v57, v50, v51")
        for r in range(4):
            A(f"v_cvt_pk_bf16_f32 v{48+r}, v{48+r}, v{48+r}")
        A("v_add_f32 v56, v56, v57")
        A("v_add_f32 v15, v15, v56")
        for r in range(4):
            for k in range(4):
                A(f"v_and_b32 v{32+4*r+k}, v{48+r}, v{4+k}")
    def pv(sl, roll=False):
        for r in range(4):
            a = 32 + 4*r
            b0 = slot(sl, 2*r); b1 = slot(sl, 2*r+1)
            A(f"v_mfma_f32_16x16x32_bf16 v[24:27], v[{a}:{a+3}], v[{b0}:{b0+3}], v[24:27]")
            A(f"v_mfma_f32_16x16x32_bf16 v[28:31], v[{a}:{a+3}], v[{b1}:{b1+3}], v[28:31]")
            if roll: issue('v', sl, "s57", (2*r, 2*r+1))
        if roll: tstep()
    def req_ticket():
        A("v_mov_b32 v58, 0")
        A("v_mov_b32 v59, 1")
        A("s_mov_b64 exec, 1")
        A(f"ds_add_rtn_u32 v59, v58, v59 offset:{L_CNT}")
        A("s_mov_b64 exec, -1")
    def lookup_issue(wait_v=False):
        A("s_waitcnt lgkmcnt(0)")
        A("v_readfirstlane_b32 s76, v59")
        if WT == 4:
            A("s_andn2_b32 s77, s76, 3")
            A("s_and_b32 s76, s76, 3")
        else:
            A(f"s_mul_i32 s77, s76, {-(-65536 // WT)}")
            A("s_lshr_b32 s77, s77, 16")
            A(f"s_mul_i32 s79, s77, {WT}")
            A("s_sub_u32 s76, s76, s79")
            A("s_lshl_b32 s77, s77, 2")
        A("v_mov_b32 v58, s77")
        if wait_v: A("s_waitcnt vmcnt(0)")
        A(f"ds_read_b32 v60, v58 offset:{L_WIN}")
    def vstep(off, nxt, post=None, last=False):
        A(f"ds_read_b128 v[48:51], v13 offset:{off}")
        if vip <= 1:
            A("s_waitcnt lgkmcnt(0)")
            pprep()
            if last and pre: lookup_issue(True)
            else: A("s_waitcnt vmcnt(0)")
        else:
            A("s_waitcnt vmcnt(0) lgkmcnt(0)")
            pprep()
            A("s_nop 0")
        if vip == 0 and nxt: pv(0, True)
        else:
            pv(0)
            if nxt: nxt()
        if post: post()
    A(f"s_mov_b32 s58, {NT-2}")
    LB("L_vloop")
    vstep(0, nv)
    A("v_add_u32 v13, 128, v13")
    A("s_sub_u32 s58, s58, 1")
    A("s_cmp_lg_u32 s58, 0")
    A("s_cbranch_scc1 L_vloop")
    vstep(0, nv, req_ticket)
    C("LDS addresses of this wave's partial")
    A("v_lshrrev_b32 v61, 1, v9")
    A("v_lshlrev_b32 v61, 10, v61")
    A("v_lshl_add_u32 v61, v8, 5, v61")
    A("v_and_b32 v62, 1, v9")
    A("v_lshl_add_u32 v61, v62, 4, v61")
    A("s_lshl_b32 s58, s3, 11")
    A("v_add_u32 v61, s58, v61")
    A("s_lshl_b32 s58, s3, 4")
    A("v_and_b32 v62, 8, v1")
    A("v_add_u32 v62, s58, v62")
    assert vip <= 1 and NSW == 3
    out_setup()
    vstep(128, None, None, True)
    stamp(1)
    C("shared pool: sub-ticket (LDS) -> window ticket fetched by the service wave")
    if not pre:
        LB("L_next")
        lookup_issue()
    else:
        LB("L_next")
    A(f"s_mov_b32 s79, {spin_max}")
    LB("L_win")
    A("s_waitcnt lgkmcnt(0)")
    A("v_readfirstlane_b32 s77, v60")
    A("s_cmp_lg_u32 s77, -1")
    A("s_cbranch_scc1 L_win_ok")
    A("s_sleep 1")
    A(f"ds_read_b32 v60, v58 offset:{L_WIN}")
    A("s_sub_u32 s79, s79, 1")
    A("s_cmp_lg_u32 s79, 0")
    A("s_cbranch_scc1 L_win")
    LB("L_win_ok")
    A(f"s_cmp_ge_u32 s77, {NTK}")
    A("s_cbranch_scc1 L_dyn_done")
    A(f"s_mul_i32 s77, s77, {WT}")
    A("s_add_u32 s77, s77, s76")
    if NPT % WT:
        A(f"s_cmp_ge_u32 s77, {NPT}")
        A("s_cbranch_scc1 L_dyn_done")
    A("s_lshl_b32 s78, s28, 24")
    A("s_and_b32 s79, s77, 7")
    A("s_lshl_b32 s79, s79, 13")
    A("s_or_b32 s78, s78, s79")
    A("s_bfe_u32 s79, s77, 0x30003")
    A("s_lshl_b32 s79, s79, 21")
    A("s_or_b32 s78, s78, s79")
    A("s_lshr_b32 s79, s77, 6")
    A(f"s_add_u32 s79, s79, {NS}")
    A("s_lshl_b32 s79, s79, 16")
    A("s_or_b32 s78, s78, s79")
    issue('k', 2, "s78")
    if dseq:
        A("s_waitcnt vmcnt(0)")
        req_ticket()
        kproc(2, 0, lambda: issue('v', 3, "s78"), True)
    else:
        issue('v', 3, "s78")
        A("s_waitcnt vmcnt(8)")
        req_ticket()
        kproc(2, 0, None, True)
    A("v_max3_f32 v10, v48, v49, v50")
    A("v_max_f32 v10, v10, v51")
    A("v_cmp_gt_f32 vcc, v10, v14")
    A("s_cbranch_vccnz L_rare")
    LB("L_back")
    pprep()
    if pre: lookup_issue(True)
    else: A("s_waitcnt vmcnt(0)")
    pv(3)
    A("s_branch L_next")
    LB("L_rare")
    C("running max rose: rescale l and O")
    A("v_max_f32 v10, v10, v14")
    A("v_mov_b32 v56, v10")
    A("s_nop 1")
    A("v_permlane32_swap_b32 v56, v10")
    A("s_nop 1")
    A("v_max_f32 v10, v10, v56")
    A("v_mov_b32 v56, v10")
    A("s_nop 1")
    A("v_permlane16_swap_b32 v56, v10")
    A("s_nop 1")
    A("v_max_f32 v10, v10, v56")
    A("v_sub_f32 v56, v14, v10")
    A("v_mul_f32 v56, s59, v56")
    A("v_exp_f32 v56, v56")
    A("v_mov_b32 v14, v10")
    A("v_mul_f32 v11, s59, v10")
    A("v_mul_f32 v15, v15, v56")
    A("v_readlane_b32 s60, v56, 0")
    A("v_readlane_b32 s61, v56, 8")
    A("s_mov_b32 s62, 0")
    A("s_mov_b32 s63, -1")
    A("v_mov_b32 v57, s60")
    A("s_mov_b64 exec, s[62:63]")
    A("v_mov_b32 v57, s61")
    A("s_mov_b64 exec, -1")
    for r in range(8):
        A(f"v_mul_f32 v{24+r}, v57, v{24+r}")
    A("s_branch L_back")
    LB("L_dyn_done")
    C("wave partial -> LDS")
    A("v_mov_b32 v10, v15")
    A("s_nop 1")
    A("v_permlane32_swap_b32 v10, v15")
    A("s_nop 0")
    A("v_add_f32 v15, v10, v15")
    A("v_mov_b32 v10, v15")
    A(f"ds_write_b128 v61, v[24:27] offset:{L_O}")
    A(f"ds_write_b128 v61, v[28:31] offset:{L_O+512}")
    A("v_permlane16_swap_b32 v10, v15")
    A("s_nop 0")
    A("v_add_f32 v15, v10, v15")
    A("s_mov_b64 exec, 0x101")
    A(f"ds_write_b64 v62, v[14:15] offset:{L_ML}")
    A("s_mov_b64 exec, -1")
    stamp(4)
    if ob == 0: out_loads()
    A("s_waitcnt lgkmcnt(0)")
    A("s_barrier")
    if ob == 1: out_loads()
    C("FFN part of this column block (hidden slice and gate come through LDS)")
    A("v_mov_b32 v10, 0")
    A(f"ds_read_b128 v[80:83], v52 offset:{L_H}")
    A(f"ds_read_b64 v[2:3], v10 offset:{L_G}")
    A("v_lshlrev_b32 v52, 1, v52")
    A("s_waitcnt lgkmcnt(0)")
    for t in range(4):
        for k in range(4):
            A(f"v_and_b32 v{24+4*t+k}, v{80+t}, v{4+k}")
    if ob == 3: A("s_barrier")
    if ob >= 2: out_loads()
    if pp: A("s_waitcnt vmcnt(0)")
    LB("L_out")
    A("s_barrier")
    A(f"ds_read_b128 v[72:75], v52 offset:{L_OP}")
    A(f"ds_read_b128 v[76:79], v52 offset:{L_OP+16}")
    if not pp: A("s_waitcnt vmcnt(0)")
    ffn_mfma()
    A("s_waitcnt lgkmcnt(0)")
    def wo_mfma(tt):
        c = "0" if tt == 0 else "v[16:19]"
        A(f"v_mfma_f32_16x16x32_bf16 v[16:19], v[{88+4*tt}:{91+4*tt}], v[{128+4*tt}:{131+4*tt}], {c}")
    for t in range(8):
        for k in range(4):
            A(f"v_and_b32 v{88+4*t+k}, v{72+t}, v{4+k}")
        if t >= 1: wo_mfma(t-1)
    A("s_nop 0")
    wo_mfma(7)
    A("s_mov_b64 exec, s[52:53]")
    for k in range(4):
        A(f"v_mul_f32 v{20+k}, v3, v{20+k}")
    A("s_nop 2")
    for k in range(4):
        A(f"v_fmac_f32 v{20+k}, v2, v{16+k}")
    A(f"buffer_store_dwordx4 v[20:23], v53, s[40:43], s64 offen {HS}")
    A("s_mov_b64 exec, -1")
    if prof:
        A(f"s_cmp_eq_u32 s3, {NSW}")
        A("s_cbranch_scc1 L_svc_end")
    C("role 0 of WGs with i<28: sums the 128 y partials of 16 output columns")
    A("s_cmp_lg_u32 s3, 0")
    A("s_cbranch_scc1 L_fin")
    A("s_cmp_ge_u32 s31, 28")
    A("s_cbranch_scc1 L_fin")
    srd(44, 22, 23, 1792)
    A("v_lshrrev_b32 v10, 2, v1")
    A(f"v_mul_u32_u24 v10, {OB2S}, v10")
    A("v_and_b32 v11, 3, v1")
    A("v_lshl_add_u32 v10, v11, 4, v10")
    A(f"s_mul_i32 s58, s30, {128*OB2S}")
    A("s_lshl_b32 s61, s31, 6")
    A("s_add_u32 s58, s58, s61")
    A(f"s_add_u32 s58, s58, {OB2}")
    for t in range(8):
        A(f"s_add_u32 s{48+t}, s58, {t*16*OB2S}")
    A("v_lshrrev_b32 v14, 5, v1")
    A("v_lshlrev_b32 v14, 2, v14")
    A("v_lshl_add_u32 v14, v11, 3, v14")
    A("s_mul_i32 s58, s30, 896")
    A("s_lshl_b32 s61, s31, 5")
    A("s_add_u32 s58, s58, s61")
    A(f"s_mov_b32 s60, {spin_max}")
    for t in range(8):
        A(f"s_mov_b64 s[{64+2*t}:{65+2*t}], -1")
    LB("L_poll2")
    for t in range(8):
        A(f"s_mov_b64 exec, s[{64+2*t}:{65+2*t}]")
        A(f"s_cbranch_execz L_p2s{t}")
        A(f"buffer_load_dwordx4 v[{64+4*t}:{67+4*t}], v10, s[40:43], s{48+t} offen {HL}")
        LB(f"L_p2s{t}")
    A("s_mov_b64 exec, -1")
    A("s_waitcnt vmcnt(0)")
    for t in range(8):
        A(f"v_max3_u32 v{12+(t&1)}, v{64+4*t}, v{65+4*t}, v{66+4*t}")
        A(f"v_max_u32 v{12+(t&1)}, v{12+(t&1)}, v{67+4*t}")
        A(f"v_cmp_eq_u32 s[{64+2*t}:{65+2*t}], -1, v{12+(t&1)}")
    A("s_or_b64 s[62:63], s[64:65], s[66:67]")
    for t in range(2, 8):
        A(f"s_or_b64 s[62:63], s[62:63], s[{64+2*t}:{65+2*t}]")
    A("s_cbranch_scc0 L_poll2_done")
    A(f"s_sleep {s2}")
    A("s_sub_u32 s60, s60, 1")
    A("s_cmp_lg_u32 s60, 0")
    A("s_cbranch_scc1 L_poll2")
    LB("L_poll2_done")
    stamp(5)
    for step in (16, 8, 4):
        for k in range(step):
            A(f"v_add_f32 v{64+k}, v{64+k}, v{64+step+k}")
    A("s_nop 1")
    A("v_permlane32_swap_b32 v64, v66")
    A("v_permlane32_swap_b32 v65, v67")
    A("s_nop 1")
    A("v_add_f32 v64, v64, v66")
    A("v_add_f32 v65, v65, v67")
    A("v_mov_b32 v66, v64")
    A("v_mov_b32 v67, v65")
    A("s_nop 1")
    A("v_permlane16_swap_b32 v66, v64")
    A("v_permlane16_swap_b32 v67, v65")
    A("s_nop 1")
    A("v_add_f32 v64, v64, v66")
    A("v_add_f32 v65, v65, v67")
    A("s_nop 1")
    A(f"v_add_f32_dpp v64, v64, v64 row_ror:8 {DPP}")
    A(f"v_add_f32_dpp v65, v65, v65 row_ror:8 {DPP}")
    A("s_nop 1")
    A(f"v_add_f32_dpp v64, v64, v64 row_ror:4 {DPP}")
    A(f"v_add_f32_dpp v65, v65, v65 row_ror:4 {DPP}")
    A("s_mov_b32 s60, 15")
    A("s_mov_b32 s61, 15")
    A("v_cvt_pk_bf16_f32 v64, v64, v65")
    if sprobe:
        A("s_mov_b32 s92, 0")
        A("s_atomic_add s92, s[24:25], 0 glc")
        A("s_memrealtime s[90:91]")
        A("s_waitcnt lgkmcnt(0)")
        A("s_not_b32 s92, s92")
        A("s_sub_u32 s92, s90, s92")
        A("s_min_u32 s92, s92, 5000")
        A(f"s_mul_i32 s92, s92, {sprobe}")
        LB("L_sp2")
        A("s_memrealtime s[94:95]")
        A("s_waitcnt lgkmcnt(0)")
        A("s_sub_u32 s94, s94, s90")
        A("s_cmp_lt_u32 s94, s92")
        A("s_cbranch_scc1 L_sp2")
    if tfix:
        if tmode:
            A("s_mov_b32 s92, 0")
            A("s_atomic_add s92, s[24:25], 0 glc")
            A("s_waitcnt lgkmcnt(0)")
            if tmode == 1: A("s_not_b32 s92, s92")
        LB("L_tfix")
        A("s_memrealtime s[94:95]")
        A("s_waitcnt lgkmcnt(0)")
        A("s_sub_u32 s94, s94, s92")
        A(f"s_cmp_lt_u32 s94, {tfix*100}")
        A("s_cbranch_scc1 L_tfix")
    A("s_mov_b64 exec, s[60:61]")
    A(f"buffer_store_dword v64, v14, s[44:47], s58 offen {['', 'sc1', 'sc0 sc1', 'nt'][osc]}")
    A("s_mov_b64 exec, -1")
    stamp(6)
    LB("L_fin")
    dump_stamps(False)
    A("s_endpgm")

    LB("L_service")
    svc[0] = True
    for k in range(4):
        A(f"v_mov_b32 v{48+k}, -1")
    A("v_lshlrev_b32 v14, 4, v1")
    A("v_mov_b32 v15, 0")
    A(f"ds_write_b32 v15, v15 offset:{L_CNT}")
    A(f"ds_write_b128 v14, v[48:51] offset:{L_WIN}")
    if NSW == 3: q_partial(0)
    A("s_mul_i32 s70, s30, 896")
    A("s_add_u32 s44, s4, s70")
    A("s_addc_u32 s45, s5, 0")
    A("s_mov_b32 s46, 896")
    A(f"s_mul_i32 s57, s2, {OB1S}")
    A(f"s_add_u32 s57, s57, {OB1}")
    A(f"s_mul_i32 s58, s2, {OB2S}")
    A(f"s_add_u32 s58, s58, {OB2}")
    stamp(1)
    A("s_waitcnt lgkmcnt(0)")
    A("s_barrier")
    for w in range(4):
        A(f"ds_read_b64 v[{16+2*w}:{17+2*w}], v12 offset:{L_QP+128*w}")
    A("s_waitcnt vmcnt(0)")
    A("v_add_u32 v72, 0x10000, v72")
    A("v_add_u32 v73, 0x10000, v73")
    A("v_and_b32 v72, 0xffff0000, v72")
    A("v_and_b32 v73, 0xffff0000, v73")
    A("s_waitcnt lgkmcnt(0)")
    A("v_add_f32 v16, v16, v18")
    A("v_add_f32 v17, v17, v19")
    A("v_add_f32 v20, v20, v22")
    A("v_add_f32 v21, v21, v23")
    A("v_add_f32 v16, v16, v20")
    A("v_add_f32 v17, v17, v21")
    A("v_cvt_pk_bf16_f32 v16, v16, 0")
    A("v_cvt_pk_bf16_f32 v17, v17, 0")
    A("v_or_b32 v72, v72, v16")
    A("v_or_b32 v73, v73, v17")
    A("s_mov_b64 exec, s[62:63]")
    A(f"buffer_store_dwordx2 v[72:73], v12, s[40:43], s59 offen offset:{QBOX} sc1")
    A("s_mov_b64 exec, -1")
    stamp(2)
    C("own outboxes := sentinel, ticket counter := 0")
    for k in range(2):
        A(f"buffer_store_dwordx4 v[48:51], v14, s[40:43], s57 offen offset:{1024*k} sc1")
    A("buffer_store_dwordx4 v[48:51], v14, s[40:43], s58 offen sc1")
    A("s_mov_b32 s70, -1")
    A("s_mov_b32 s71, 0xffff")
    A("s_mov_b64 exec, s[70:71]")
    A("buffer_store_dwordx4 v[48:51], v14, s[40:43], s58 offen offset:1024 sc1")
    A("s_mov_b64 exec, 0xffff")
    A("buffer_store_dwordx4 v[48:51], v14, s[40:43], s57 offen offset:2048 sc1")
    A("s_mov_b64 exec, -1")
    A("s_cmp_lg_u32 s29, 0")
    A("s_cbranch_scc1 L_notinit")
    A("s_lshl_b32 s70, s28, 12")
    A(f"s_add_u32 s70, s70, {TICK}")
    A("s_mov_b64 exec, 1")
    A("buffer_store_dword v15, v15, s[40:43], s70 offen sc1")
    A("s_mov_b64 exec, -1")
    LB("L_notinit")
    A("s_lshl_b32 s65, s30, 6")
    A("s_add_u32 s65, s65, 128")
    A("s_mov_b32 s68, 1")
    A("s_mov_b32 s59, 0")
    A("s_mov_b32 s66, 0x10000")
    A("s_waitcnt vmcnt(0)")
    A("s_atomic_add s68, s[24:25], s65")
    LB("L_pollq")
    A(f"buffer_load_dwordx4 v[76:79], v11, s[40:43], s56 offen offset:{QBOX} sc1")
    A(f"buffer_load_dwordx4 v[80:83], v11, s[40:43], s56 offen offset:{QBOX+16} sc1")
    A("s_waitcnt vmcnt(0)")
    for k in range(8):
        A(f"v_xor_b32 v{84+k}, v{64+k}, v{76+k}")
    A("v_min3_u32 v84, v84, v85, v86")
    A("v_min3_u32 v87, v87, v88, v89")
    A("v_min3_u32 v84, v84, v90, v91")
    A("v_min_u32 v84, v84, v87")
    A("v_cmp_gt_u32 vcc, s66, v84")
    A("s_cbranch_vccz L_pollq_done")
    A("s_mov_b64 exec, vcc")
    A("s_add_u32 s59, s59, 1")
    A("s_sleep 1")
    A(f"s_cmp_lt_u32 s59, {fbk}")
    A("s_cbranch_scc1 L_pollq")
    C("the snapshot may have been taken after a producer wrote: once the whole batch arrived, the next read is valid")
    A("s_mov_b32 s70, 0")
    A("s_atomic_add s70, s[24:25], s65 glc")
    A("s_waitcnt lgkmcnt(0)")
    A("s_cmp_ge_u32 s70, 128")
    A("s_cselect_b32 s66, 0, s66")
    A(f"s_cmp_lt_u32 s59, {spin_max}")
    A("s_cbranch_scc1 L_pollq")
    LB("L_pollq_done")
    A("s_mov_b64 exec, -1")
    stamp(3)
    for k in range(4):
        A(f"v_perm_b32 v{48+k}, v{77+2*k}, v{76+2*k}, s60")
    A(f"ds_write_b128 v14, v[48:51] offset:{L_Q}")
    A("s_waitcnt lgkmcnt(0)")
    A("s_barrier")
    stamp(4)
    if tmode == 1:
        A("s_not_b32 s94, s92")
        A("s_atomic_umax s94, s[24:25], 0")
        A("s_waitcnt lgkmcnt(0)")
    if tmode == 2:
        A("s_mov_b32 s94, s92")
        A("s_atomic_umax s94, s[24:25], 0")
        A("s_waitcnt lgkmcnt(0)")
    if tmode == 3:
        A("s_memrealtime s[94:95]")
        A("s_waitcnt lgkmcnt(0)")
        A("s_atomic_umax s94, s[24:25], 0")
        A("s_waitcnt lgkmcnt(0)")
    C("background: FFN hidden slice, gate, output-side weights")
    make_masks(56, 57)
    A("s_and_b32 s66, s31, 7")
    A("s_mul_i32 s66, s66, 14")
    A("s_lshr_b32 s67, s31, 3")
    A("s_add_u32 s66, s66, s67")
    A("s_cmp_lt_u32 s31, 112")
    A(f"s_cselect_b32 s59, {448*1792*2}, 0")
    srd(48, 16, 17, 0 if skip & 2 else "s59")
    srd(36, 20, 21, 896)
    A("v_lshrrev_b32 v10, 1, v1")
    A("v_and_b32 v11, 1, v1")
    A("v_mul_u32_u24 v12, 28, v10")
    A(f"v_mul_u32_u24 v13, {14*3584}, v10")
    A("v_lshl_add_u32 v13, v11, 4, v13")
    A(f"buffer_load_dwordx4 v[{XR}:{XR+3}], v12, s[44:47], 0 offen")
    A(f"buffer_load_dwordx3 v[{XR+4}:{XR+6}], v12, s[44:47], 0 offen offset:16")
    A("buffer_load_dwordx4 v[40:43], v14, s[44:47], 0 offen")
    A("buffer_load_dwordx4 v[44:47], v14, s[36:39], 0 offen")
    A("s_lshl_b32 s56, s66, 5")
    cnt = [0]
    def thr():
        cnt[0] += 1
        if cnt[0] % SB == 0: A("s_waitcnt vmcnt(0)")
    for t in range(14):
        A(f"buffer_load_dwordx4 v[{64+4*t}:{67+4*t}], v13, s[48:51], s56 offen")
        A("s_add_u32 s56, s56, 3584")
        thr()
    for k in range(8):
        A(f"v_mov_b32 v{ACC+k}, 0")
    matvec_pairs(7, 64, XR, 0)
    A("s_nop 1")
    for k in range(2):
        A(f"v_add_f32_dpp v{ACC+k}, v{ACC+k}, v{ACC+k} row_ror:2 {DPP}")
    A(f"s_mov_b32 s59, {f2u(-math.log2(math.e)):#x}")
    for k in range(2):
        A(f"v_cvt_pk_bf16_f32 v{ACC+k}, 0, v{ACC+k}")
    for k in range(2):
        A(f"v_mul_f32 v{ACC+2+k}, s59, v{ACC+k}")
    for k in range(2):
        A(f"v_exp_f32 v{ACC+2+k}, v{ACC+2+k}")
    A("s_nop 0")
    for k in range(2):
        A(f"v_add_f32 v{ACC+2+k}, 1.0, v{ACC+2+k}")
    for k in range(2):
        A(f"v_rcp_f32 v{ACC+2+k}, v{ACC+2+k}")
    A("s_nop 0")
    for k in range(2):
        A(f"v_mul_f32 v{ACC+k}, v{ACC+k}, v{ACC+2+k}       ; silu")
    for k in range(2):
        A(f"v_cvt_pk_bf16_f32 v{ACC+k}, v{ACC+k}, v{ACC+k}")
    A("v_lshlrev_b32 v12, 5, v11")
    A("v_lshl_add_u32 v12, v9, 3, v12")
    A("s_mov_b32 s62, 0x00030003")
    A("s_mov_b32 s63, 0x00030003")
    A("s_mov_b64 exec, s[62:63]")
    A(f"ds_write_b64 v12, v[{ACC}:{ACC+1}] offset:{L_H}")
    A("s_mov_b64 exec, -1")
    C("gate")
    for k in range(4):
        A(f"v_lshlrev_b32 v52, 16, v{40+k}")
        A(f"v_lshlrev_b32 v53, 16, v{44+k}")
        A(f"v_and_b32 v54, 0xffff0000, v{40+k}")
        A(f"v_and_b32 v55, 0xffff0000, v{44+k}")
        A("v_mul_f32 v52, v52, v53")
        A("v_mul_f32 v54, v54, v55")
        A("v_cvt_pk_bf16_f32 v52, 0, v52")
        A("v_cvt_pk_bf16_f32 v54, 0, v54")
        if k == 0:
            A("v_add_f32 v56, v52, v54")
        else:
            A("v_add_f32 v56, v56, v52")
            A("v_add_f32 v56, v56, v54")
    for rr in (8, 4, 2, 1):
        A("s_nop 1")
        A(f"v_add_f32_dpp v56, v56, v56 row_ror:{rr} {DPP}")
    A("v_mov_b32 v57, v56")
    A("s_nop 1")
    A("v_permlane32_swap_b32 v57, v56")
    A("s_nop 1")
    A("v_add_f32 v56, v56, v57")
    A("v_mov_b32 v57, v56")
    A("s_nop 1")
    A("v_permlane16_swap_b32 v57, v56")
    A("s_nop 1")
    A("v_add_f32 v56, v56, v57")
    A("v_cvt_pk_bf16_f32 v56, 0, v56")
    A("v_mul_f32 v56, s59, v56")
    A("v_exp_f32 v56, v56")
    A("s_nop 0")
    A("v_add_f32 v56, 1.0, v56")
    A("v_rcp_f32 v56, v56")
    A("s_nop 0")
    A("v_cvt_pk_bf16_f32 v2, 0, v56           ; g")
    A("v_sub_f32 v3, 1.0, v2")
    A("v_cvt_pk_bf16_f32 v3, 0, v3            ; 1-g")
    A("v_mov_b32 v16, 0")
    A(f"ds_write_b64 v16, v[2:3] offset:{L_G}")
    out_setup()
    A(f"ds_read_b128 v[80:83], v52 offset:{L_H}")
    A("v_lshlrev_b32 v52, 1, v52")
    A("s_waitcnt lgkmcnt(0)")
    for t in range(4):
        for k in range(4):
            A(f"v_and_b32 v{24+4*t+k}, v{80+t}, v{4+k}")
    A(f"s_mov_b32 s59, {f2u(C_SCALE):#x}")
    A("v_lshlrev_b32 v10, 5, v1")
    A("v_lshrrev_b32 v11, 5, v1")
    A("v_lshlrev_b32 v11, 3, v11")
    A("v_lshrrev_b32 v15, 2, v1")
    A("v_mul_u32_u24 v15, 144, v15")
    A("v_and_b32 v12, 3, v1")
    A("v_lshl_add_u32 v15, v12, 5, v15")
    A(f"v_mul_u32_u24 v12, {OB1S}, v8")
    A("v_lshl_add_u32 v13, v9, 5, v12")
    A(f"s_mul_i32 s60, s28, {16*OB1S}")
    A("s_mul_i32 s61, s29, 144")
    A("s_add_u32 s60, s60, s61")
    A(f"s_add_u32 s60, s60, {OB1}")
    A("v_lshlrev_b32 v14, 5, v9")
    if pp:
        for k in range(8):
            A(f"v_mov_b32 v{120+k}, -1")
    A("s_lshl_b32 s54, 0x00010001, s29")
    A("s_mov_b32 s55, s54")
    A("s_lshl_b32 s61, s29, 4")
    A("v_lshl_add_u32 v21, v9, 2, s61")
    C("whole batch arrived => every outbox read later was cleared and the ticket counters are set")
    A(f"s_mov_b32 s56, {spin_max}")
    LB("L_pollg")
    A("s_mov_b32 s70, 0")
    A("s_atomic_add s70, s[24:25], s65 glc")
    A("s_waitcnt lgkmcnt(0)")
    A("s_cmp_ge_u32 s70, 128")
    A("s_cbranch_scc1 L_pollg_done")
    A("s_sleep 16")
    A("s_sub_u32 s56, s56, 1")
    A("s_cmp_lg_u32 s56, 0")
    A("s_cbranch_scc1 L_pollg")
    LB("L_pollg_done")
    C("window-ticket server")
    A("s_lshl_b32 s74, s28, 12")
    A(f"s_add_u32 s74, s74, {TICK}")
    A("s_add_u32 s74, s26, s74")
    A("s_addc_u32 s75, s27, 0")
    A("s_mov_b32 s71, 0")
    A("s_mov_b32 s72, 0")
    A("v_mov_b32 v16, 0")
    A(f"s_mov_b32 s56, {spin_max*8}")
    LB("L_tk")
    A(f"ds_read_b32 v17, v16 offset:{L_CNT}")
    A("s_waitcnt lgkmcnt(0)")
    A("v_readfirstlane_b32 s70, v17")
    A("s_cmp_gt_u32 s70, s72")
    A("s_cbranch_scc1 L_tk_fetch")
    A("s_sleep 2")
    A("s_sub_u32 s56, s56, 1")
    A("s_cmp_lg_u32 s56, 0")
    A("s_cbranch_scc1 L_tk")
    A("s_branch L_tk_done")
    LB("L_tk_fetch")
    A("s_mov_b32 s70, 1")
    A("s_atomic_add s70, s[74:75], 0 glc")
    A("v_mov_b32 v17, s71")
    A("s_waitcnt lgkmcnt(0)")
    A("v_mov_b32 v20, s70")
    A("s_add_u32 s71, s71, 4")
    A(f"s_add_u32 s72, s72, {WT}")
    A(f"ds_write_b32 v17, v20 offset:{L_WIN}")
    A(f"s_cmp_lt_u32 s70, {NTK - RET}")
    A("s_cbranch_scc1 L_tk")
    C("one of the last tickets (or none): this WG asks for nothing more")
    A("v_mov_b32 v17, s71")
    A("v_mov_b32 v20, 0x10000")
    for k in range(-(-NSW // WT)):
        A(f"ds_write_b32 v17, v20 offset:{L_WIN + 4*k}")
    LB("L_tk_done")
    if warm:
        C("touch the pages of the output-side weights (address translation only)")
        A("s_mov_b64 exec, 1")
        A("buffer_load_dword v17, v54, s[44:47], s69 offen")
        A("buffer_load_dword v20, v55, s[48:51], s67 offen")
        A("s_mov_b64 exec, -1")
    A("s_waitcnt vmcnt(0) lgkmcnt(0)")
    A("s_barrier")
    stamp(5)
    if prof: A("s_waitcnt lgkmcnt(0)")
    C("WG combine")
    for w in range(NSW):
        A(f"ds_read_b64 v[{56+2*w}:{57+2*w}], v11 offset:{L_ML+16*w}")
    for w in range(NSW):
        A(f"ds_read_b128 v[{64+8*w}:{67+8*w}], v10 offset:{L_O+2048*w}")
        A(f"ds_read_b128 v[{68+8*w}:{71+8*w}], v10 offset:{L_O+2048*w+16}")
    A(f"s_waitcnt lgkmcnt({2*NSW})")
    A("v_max3_f32 v16, v56, v58, v60")
    if NSW == 4: A("v_max_f32 v16, v16, v62")
    for w in range(NSW):
        A(f"v_sub_f32 v{56+2*w}, v{56+2*w}, v16")
    for w in range(NSW):
        A(f"v_mul_f32 v{56+2*w}, s59, v{56+2*w}")
    for w in range(NSW):
        A(f"v_exp_f32 v{56+2*w}, v{56+2*w}")
    A("s_nop 0")
    A("v_mul_f32 v17, v56, v57")
    for w in range(1, NSW):
        A(f"v_fmac_f32 v17, v{56+2*w}, v{57+2*w}")
    A("s_waitcnt lgkmcnt(0)")
    for k in range(8):
        A(f"v_mul_f32 v{64+k}, v56, v{64+k}")
    for w in range(1, NSW):
        for k in range(8):
            A(f"v_fmac_f32 v{64+k}, v{56+2*w}, v{64+8*w+k}")
    A(f"buffer_store_dwordx4 v[64:67], v15, s[40:43], s57 offen {HS}")
    A(f"buffer_store_dwordx4 v[68:71], v15, s[40:43], s57 offen offset:16 {HS}")
    A("s_mov_b32 s62, 0x11111111")
    A("s_mov_b32 s63, 0x11111111")
    A("s_mov_b64 exec, s[62:63]")
    A(f"buffer_store_dwordx2 v[16:17], v15, s[40:43], s57 offen offset:128 {HS}")
    A("s_mov_b64 exec, -1")
    def poll1_loads():
        A(f"buffer_load_dwordx4 v[72:75], v13, s[40:43], s60 offen {HL}")
        A(f"buffer_load_dwordx4 v[76:79], v13, s[40:43], s60 offen offset:16 {HL}")
        A(f"buffer_load_dwordx2 v[80:81], v12, s[40:43], s60 offen offset:128 {HL}")
    if ob == 3: A("s_barrier")
    A(f"s_mov_b32 s56, {spin_max}")
    if pp:
        C("weights first; then overlapped polls that all land in v120..127/v86..87; a register copy is what is checked and used")
        A("s_mov_b32 s62, 0x00ff00ff")
        A("s_mov_b32 s63, 0x00ff00ff")
        A("s_mov_b64 exec, s[62:63]")
        out_loads()
        A("s_mov_b64 exec, -1")
        for k in range(8):
            A(f"ds_bpermute_b32 v{72+k}, v21, v{64+k}")
        A("ds_bpermute_b32 v80, v21, v16")
        A("ds_bpermute_b32 v81, v21, v17")
        A("v_mov_b32 v86, -1")
        A("v_mov_b32 v87, -1")
        A("s_andn2_b64 exec, -1, s[54:55]")
        LB("L_poll1")
        A(f"buffer_load_dwordx4 v[120:123], v13, s[40:43], s60 offen {HL}")
        A(f"buffer_load_dwordx4 v[124:127], v13, s[40:43], s60 offen offset:16 {HL}")
        A(f"buffer_load_dwordx2 v[86:87], v12, s[40:43], s60 offen offset:128 {HL}")
        A(f"s_sleep {pp}")
        A(f"s_waitcnt vmcnt({ppc}) lgkmcnt(0)")
        for k in range(8):
            A(f"v_mov_b32 v{72+k}, v{120+k}")
        A("v_mov_b32 v80, v86")
        A("v_mov_b32 v81, v87")
        A("v_max3_u32 v18, v72, v73, v74")
        A("v_max3_u32 v19, v75, v76, v77")
        A("v_max3_u32 v18, v18, v78, v79")
        A("v_max3_u32 v19, v19, v80, v81")
        A("v_max_u32 v18, v18, v19")
        A("v_cmp_eq_u32 vcc, -1, v18")
        A("s_cbranch_vccz L_poll1_done")
        A("s_mov_b64 exec, vcc")
        A("s_sub_u32 s56, s56, 1")
        A("s_cmp_lg_u32 s56, 0")
        A("s_cbranch_scc1 L_poll1")
        A("s_waitcnt vmcnt(0)")
    else:
        if own:
            C("own packet comes from registers; the other 15 are polled")
            A("s_andn2_b64 exec, -1, s[54:55]")
            poll1_loads()
            if m3:
                A("s_mov_b32 s62, 0x00ff00ff")
                A("s_mov_b32 s63, 0x00ff00ff")
                A("s_mov_b64 exec, s[62:63]")
            else:
                A("s_mov_b64 exec, -1")
            out_loads()
            A("s_mov_b64 exec, -1")
            for k in range(8):
                A(f"ds_bpermute_b32 v{88+k}, v21, v{64+k}")
            A("ds_bpermute_b32 v96, v21, v16")
            A("ds_bpermute_b32 v97, v21, v17")
            A("s_mov_b64 exec, s[54:55]")
            A("s_waitcnt vmcnt(12) lgkmcnt(0)")
            for k in range(10):
                A(f"v_mov_b32 v{72+k}, v{88+k}")
            A("s_mov_b64 exec, -1")
            A("s_branch L_poll1_chk")
        else:
            out_loads()
        LB("L_poll1")
        poll1_loads()
        A("s_waitcnt vmcnt(0)")
        LB("L_poll1_chk")
        A("v_max3_u32 v18, v72, v73, v74")
        A("v_max3_u32 v19, v75, v76, v77")
        A("v_max3_u32 v18, v18, v78, v79")
        A("v_max3_u32 v19, v19, v80, v81")
        A("v_max_u32 v18, v18, v19")
        A("v_cmp_eq_u32 vcc, -1, v18")
        A("s_cbranch_vccz L_poll1_done")
        A("s_mov_b64 exec, vcc")
        A("s_bcnt1_i32_b64 s61, vcc")
        A(f"s_cmp_le_u32 s61, {lt}")
        A("s_cbranch_scc1 L_poll1_fast")
        A(f"s_sleep {ls}")
        LB("L_poll1_fast")
        A("s_sleep 1")
        A("s_sub_u32 s56, s56, 1")
        A("s_cmp_lg_u32 s56, 0")
        A("s_cbranch_scc1 L_poll1")
    LB("L_poll1_done")
    A("s_mov_b64 exec, -1")
    stamp(6)
    if sprobe:
        A("s_cmp_lg_u32 s29, 0")
        A("s_cbranch_scc1 L_sp1")
        A("s_memrealtime s[94:95]")
        A("s_waitcnt lgkmcnt(0)")
        A("s_not_b32 s94, s94")
        A("s_atomic_umax s94, s[24:25], 0")
        LB("L_sp1")
    C("group combine over the 16 producers, then 32 rows of wo")
    A(f"v_max_f32_dpp v18, v80, v80 row_ror:8 {DPP}")
    for rr in (4, 2, 1):
        A("s_nop 1")
        A(f"v_max_f32_dpp v18, v18, v18 row_ror:{rr} {DPP}")
    A("v_sub_f32 v18, v80, v18")
    A("v_mul_f32 v18, s59, v18")
    A("v_exp_f32 v18, v18")
    A("s_nop 0")
    A("v_mul_f32 v80, v18, v81")
    for k in range(8):
        A(f"v_mul_f32 v{72+k}, v18, v{72+k}")
    for rr in (8, 4, 2, 1):
        for k in (8, 0, 1, 2, 3, 4, 5, 6, 7):
            A(f"v_add_f32_dpp v{72+k}, v{72+k}, v{72+k} row_ror:{rr} {DPP}")
    A("v_rcp_f32 v80, v80")
    A("s_nop 0")
    for k in range(8):
        A(f"v_mul_f32 v{72+k}, v80, v{72+k}")
    for k in range(8):
        A(f"v_cvt_pk_bf16_f32 v{72+k}, v{72+k}, v{72+k}")
    A("s_mov_b32 s62, 0x00010001")
    A("s_mov_b32 s63, 0x00010001")
    A("s_mov_b64 exec, s[62:63]")
    A(f"ds_write_b128 v14, v[72:75] offset:{L_OP}")
    A(f"ds_write_b128 v14, v[76:79] offset:{L_OP+16}")
    A("s_mov_b64 exec, -1")
    A("s_waitcnt lgkmcnt(0)")
    A("s_branch L_out")
    LB("L_svc_end")
    stamp(7)
    dump_stamps(True)
    LB("L_end")
    A("s_endpgm")
    L.append('.section .rodata,"a"')
    L.append(".p2align 6")
    L.append(f".amdhsa_kernel {NAME}_kernel")
    L.append("  .amdhsa_next_free_vgpr 256")
    L.append("  .amdhsa_next_free_sgpr 96")
    L.append("  .amdhsa_accum_offset 256")
    L.append("  .amdhsa_group_segment_fixed_size 0")
    L.append("  .amdhsa_kernarg_size 96")
    L.append("  .amdhsa_user_sgpr_count 2")
    L.append("  .amdhsa_user_sgpr_kernarg_segment_ptr 1")
    L.append("  .amdhsa_system_sgpr_workgroup_id_x 1")
    L.append(".end_amdhsa_kernel")
    return "\n".join(L) + "\n"


if __name__ == "__main__":
    out = sys.argv[1]
    kw = {}
    for a in sys.argv[2:]:
        k, v = a.split("=")
        kw[k] = int(v)
    open(out, "w").write(gen(**kw))
```

```python
import sys, math, struct

NAME = "gated_mix__gqa_block_cached__dense_activation_silu__decode"
HEADER = open("cdna_kernels/" + NAME + ".s.ref").read().split("; Override launch")[0]

QBOX = 0x0
TICK = 0x10000
OB1 = 0x40000
OB1S = 2304
OB2 = 0x200000
OB2S = 1792
STAMP = 0x20000000
C_SCALE = (1.0 / 16.0) * math.log2(math.e)
def f2u(x): return struct.unpack("<I", struct.pack("<f", x))[0]


DOC = """
One launch, 256 workgroups (group = wg>>4 = batch*8 + kv head, 16 workgroups per group), 4 waves each.
 * wave 0 (service): hands q slices round the group through d_ws (16-bit tags = stale tag + 1, arrival
   counter in d_debug as fall-back), computes a 16-unit FFN slice and the gate, serves window tickets,
   merges the wave partials, merges the 16 partials of a 32-row slice of o and multiplies it with wo.
 * waves 1-3 stream K (scores -> LDS, true max), then V, straight into MFMA operand registers:
   QK^T uses 64-byte row pieces as A rows and picks the diagonal blocks, P.V puts p on the diagonal of
   A so that row-major V is the B operand as loaded.  The last 1/16 of the keys is a shared pool handed
   out by tickets (running max with rescale) so that all workgroups finish together.
 * partial results travel through sentinel-cleared boxes in d_ws (sc1 stores / sc1 loads).
"""

def gen(prof=0, NSW=3, NS=30, NPRE=6, kip=1, vip=1, RET=8, fbk=4, SB=8, spin_max=200000, ldsx=0, dseq=0, PF2=0, WT=3, skip=0, ptile=0, early=1, eh=0, hl=0, hs=0, ls=16, lt=28, s2=2, pre=1, tfix=0, osc=0, tmode=0, ob=3, warm=0, own=1, m3=1, sprobe=0, pp=0, ppc=30, clr=1, wout=0):
    NT = NS*4 // NSW
    assert NS*4 % NSW == 0 and NSW in (3, 4)
    SSTR = NT*128
    L_Q = 0
    L_S = 1024
    L_O = L_S + NSW*SSTR
    L_ML = L_O + 2048*NSW
    L_H = L_ML + 64
    L_G = L_H + 64
    L_OP = L_G + 64
    L_QP = L_OP + 128
    L_CNT = L_QP + 512
    L_WIN = L_CNT + 64
    LDS_BYTES = L_WIN + 1024
    NPT = (32-NS)*64
    NTK = -(-NPT // WT)
    L = []
    A = lambda s: L.append("  " + s)
    LB = lambda s: L.append(s + ":")
    C = lambda s: L.append("  ; " + s)
    DPP = "row_mask:0xf bank_mask:0xf"
    ACC, XR = 16, 32

    svc = [False]
    HL = ['sc1', 'sc0 sc1', 'sc1 nt'][hl]
    HS = ['sc1', 'sc0 sc1', 'sc1 nt'][hs]
    def stamp(k, force=False):
        if ptile and not svc[0] and not force and k not in (0, 7):
            return
        if prof: A(f"s_memrealtime s[{80+2*k}:{81+2*k}]")
    def dump_stamps(svc):
        if not prof: return
        A("s_waitcnt lgkmcnt(0)")
        A("s_lshl_b32 s56, s2, 3")
        A(f"s_add_u32 s56, s56, {'4' if svc else 's3'}")
        A("s_lshl_b32 s56, s56, 6")
        A(f"s_add_u32 s56, s56, {STAMP}")
        A("s_mov_b64 exec, 1")
        A("v_mov_b32 v60, 0")
        for q in range(4):
            for j in range(4):
                A(f"v_mov_b32 v{56+j}, s{80+4*q+j}")
            A(f"buffer_store_dwordx4 v[56:59], v60, s[40:43], s56 offen offset:{16*q}")
            A("s_nop 1")
        A("s_mov_b64 exec, -1")
    def srd(d, lo, hi, n):
        A(f"s_mov_b32 s{d}, s{lo}")
        A(f"s_mov_b32 s{d+1}, s{hi}")
        A(f"s_mov_b32 s{d+2}, {n}")
        A(f"s_mov_b32 s{d+3}, 0x00020000")
    def matvec_pairs(npairs, wbase, xbase, tail_ops):
        for u in range(npairs):
            A(f"s_waitcnt vmcnt({2*npairs - (2*u+2) + tail_ops})")
            w0 = wbase + 8*u; w1 = w0 + 4
            for k in range(4):
                A(f"v_perm_b32 v{52+k}, v{w1+k}, v{w0+k}, s60")
                A(f"v_perm_b32 v{56+k}, v{w1+k}, v{w0+k}, s61")
            for k in range(4):
                A(f"v_dot2c_f32_bf16 v{ACC+2*k}, v{52+k}, v{xbase+u}")
                A(f"v_dot2c_f32_bf16 v{ACC+2*k+1}, v{56+k}, v{xbase+u}")
        A("s_nop 3")
        for k in range(4):
            A(f"v_permlane32_swap_b32 v{ACC+k}, v{ACC+4+k}")
        A("s_nop 1")
        for k in range(4):
            A(f"v_add_f32 v{ACC+k}, v{ACC+k}, v{ACC+4+k}")
        A("s_nop 1")
        for k in range(2):
            A(f"v_permlane16_swap_b32 v{ACC+k}, v{ACC+2+k}")
        A("s_nop 1")
        for k in range(2):
            A(f"v_add_f32 v{ACC+k}, v{ACC+k}, v{ACC+2+k}")
        for rr in (8, 4):
            A("s_nop 1")
            for k in range(2):
                A(f"v_add_f32_dpp v{ACC+k}, v{ACC+k}, v{ACC+k} row_ror:{rr} {DPP}")
    def make_masks(t0, t1):
        C("v4..v7: lane e=l&7 owns bf16 element e of an 8-element A fragment")
        A(f"v_and_b32 v{t0}, 1, v1")
        A(f"v_lshlrev_b32 v{t0}, 4, v{t0}")
        A(f"v_mov_b32 v{t1}, 0xffff")
        A(f"v_lshlrev_b32 v{t1}, v{t0}, v{t1}")
        A(f"v_bfe_u32 v{t0}, v1, 1, 2")
        for k in range(4):
            A(f"v_cmp_eq_u32 vcc, {k}, v{t0}")
            A("s_nop 1")
            A(f"v_cndmask_b32 v{4+k}, 0, v{t1}, vcc")
    SLOT0 = 64
    def slot(sl, i): return SLOT0 + 32*sl + 4*i
    WQB = slot(5, 0)
    def wq_loads():
        A(f"buffer_load_dwordx4 v[{XR}:{XR+3}], v14, s[44:47], s58 offen")
        for t in range(8):
            A(f"buffer_load_dwordx4 v[{WQB+4*t}:{WQB+4*t+3}], v13, s[48:51], s57 offen")
            if t < 7: A("s_add_u32 s57, s57, 0x2000")
    def q_partial(tail):
        for k in range(8):
            A(f"v_mov_b32 v{ACC+k}, 0")
        A("s_lshl_b32 s58, s3, 7")
        A("v_add_u32 v13, s58, v12")
        matvec_pairs(4, WQB, XR, tail)
        A("s_mov_b64 exec, s[62:63]")
        A(f"ds_write_b64 v13, v[{ACC}:{ACC+1}] offset:{L_QP}")
        A("s_mov_b64 exec, -1")

    def out_setup():
        C("output side: this wave owns column block cb = role of 32 wo rows and 16 w2 rows")
        A("s_and_b32 s69, s31, 7")
        A("s_mul_i32 s69, s69, 14")
        A("s_lshr_b32 s67, s31, 3")
        A("s_add_u32 s69, s69, s67")
        A(f"s_mul_i32 s69, s69, {16*896}")
        A("s_cmp_lt_u32 s31, 112")
        A(f"s_cselect_b32 s46, {0 if skip & 4 else 448*1792*2}, 0")
        A("s_mov_b32 s44, s18")
        A("s_mov_b32 s45, s19")
        A("s_mov_b32 s47, 0x00020000")
        srd(48, 12, 13, 0 if skip & 8 else 4096*448*2)
        A("s_lshl_b32 s64, s3, 8")
        A("s_add_u32 s69, s69, s64")
        A(f"s_mul_i32 s67, s31, {32*896}")
        A("s_add_u32 s67, s67, s64")
        A(f"s_add_u32 s68, s67, {4*896}")
        A("s_lshl_b32 s64, s64, 1")
        A(f"s_mul_i32 s52, s2, {OB2S}")
        A("s_add_u32 s64, s64, s52")
        A(f"s_add_u32 s64, s64, {OB2}")
        A("s_cmp_eq_u32 s3, 3")
        A("s_cselect_b32 s52, 0x00ff00ff, -1")
        A("s_mov_b32 s53, 0")
        A("v_mul_u32_u24 v54, 3584, v9")
        A("v_lshl_add_u32 v54, v8, 4, v54         ; w2 row 16f + 4g + t")
        A("v_mul_u32_u24 v55, 7168, v9")
        A("v_lshl_add_u32 v55, v8, 4, v55")
        A("v_lshlrev_b32 v53, 5, v8")
        A("v_lshl_add_u32 v53, v9, 4, v53")
        A("v_lshlrev_b32 v52, 4, v9")
    def ffn_mfma():
        for t in range(4):
            c = "0" if t == 0 else "v[20:23]"
            A(f"v_mfma_f32_16x16x32_bf16 v[20:23], v[{24+4*t}:{27+4*t}], v[{160+4*t}:{163+4*t}], {c}")
    def out_loads():
        for t in range(4):
            A(f"buffer_load_dwordx4 v[{160+4*t}:{163+4*t}], v54, s[44:47], s69 offen offset:{t*896}")
        for t in range(8):
            A(f"buffer_load_dwordx4 v[{128+4*t}:{131+4*t}], v55, s[48:51], s{67 + (t>>2)} offen offset:{(t&3)*896}")
    L.append(HEADER.rstrip("\n"))
    L.append(f"; @launch grid=(256,1,1) block=({64*(NSW+1)},1,1) lds={ldsx or LDS_BYTES}")
    L.append('.amdgcn_target "amdgcn-amd-amdhsa--gfx950"')
    for line in DOC.strip("\n").splitlines():
        L.append("; " + line)
    L.append(".text")
    L.append(f".globl {NAME}_kernel")
    L.append(".p2align 8")
    L.append(f".type {NAME}_kernel,@function")
    LB(f"{NAME}_kernel")
    A("s_cmp_ge_u32 s2, 256")
    A("s_cbranch_scc1 L_end")
    if prof:
        for k in range(8):
            A(f"s_mov_b64 s[{80+2*k}:{81+2*k}], 0")
        stamp(0)
        A("s_waitcnt lgkmcnt(0)")
    if tfix:
        A("s_memrealtime s[92:93]")
        A("s_waitcnt lgkmcnt(0)")
    A("s_load_dwordx2 s[44:45], s[0:1], 0     ; x  -> SRD s[44:47]")
    A("s_load_dwordx2 s[48:49], s[0:1], 24")
    A("s_load_dwordx2 s[32:33], s[0:1], 8     ; K  -> SRD s[32:35]")
    A("s_load_dwordx2 s[40:41], s[0:1], 88")
    A("s_load_dwordx2 s[36:37], s[0:1], 16    ; V  -> SRD s[36:39]")
    A("s_load_dwordx16 s[4:19], s[0:1], 0")
    A("s_load_dwordx8 s[20:27], s[0:1], 64")
    A("v_lshrrev_b32 v2, 6, v0")
    A("v_and_b32 v1, 63, v0                   ; lane")
    A("v_readfirstlane_b32 s3, v2")
    A("s_sub_u32 s3, s3, 1")
    A(f"s_min_u32 s3, s3, {NSW}")
    A("s_lshr_b32 s28, s2, 4                  ; group")
    A("s_and_b32 s29, s2, 15                  ; s")
    A("s_lshr_b32 s30, s2, 7                  ; b")
    A("s_and_b32 s31, s2, 127                 ; i")
    C("s64 = q slice produced here: (i & ~15) + (s&7)*2 + (s>>3)")
    A("s_and_b32 s64, s29, 7")
    A("s_lshl_b32 s64, s64, 1")
    A("s_lshr_b32 s65, s29, 3")
    A("s_add_u32 s64, s64, s65")
    A("s_andn2_b32 s65, s31, 15")
    A("s_add_u32 s64, s64, s65")
    A("v_and_b32 v8, 15, v1")
    A("v_lshrrev_b32 v9, 4, v1                ; g")
    A("v_and_b32 v10, 3, v1")
    A("s_mov_b32 s42, 0x40000000")
    A("s_mov_b32 s43, 0x00020000")
    C("q partial: rows (role*14+rg)*8 + t, cols slice*32 + chunk*8")
    A("s_mul_i32 s58, s30, 896")
    A("s_mov_b32 s46, 1792")
    A("s_mov_b32 s47, 0x00020000")
    A(f"s_mov_b32 s50, {0 if skip & 1 else 448*4096*2}")
    A("s_mov_b32 s51, 0x00020000")
    A("v_lshrrev_b32 v14, 2, v1")
    A("s_mul_i32 s57, s3, 14")
    A("v_cmp_gt_u32 vcc, 14, v14")
    A("v_add_u32 v14, s57, v14")
    A("v_mov_b32 v13, 0x4000")
    A("v_cndmask_b32 v14, v13, v14, vcc")
    A("v_lshlrev_b32 v13, 16, v14")
    A("v_lshl_add_u32 v13, v10, 4, v13")
    A("v_lshlrev_b32 v14, 4, v14")
    A("s_lshl_b32 s57, s64, 6")
    A("v_lshlrev_b32 v12, 5, v10")
    A("v_lshl_add_u32 v12, v9, 3, v12         ; chunk*32 + g*8")
    A("s_mov_b32 s60, 0x05040100")
    A("s_mov_b32 s61, 0x07060302")
    A("s_mov_b32 s62, 0x000f000f")
    A("s_mov_b32 s63, 0x000f000f")
    A(f"s_cmp_lg_u32 s3, {NSW}")
    A("s_cbranch_scc1 L_stream")
    C("service: snapshot of the group's q box and of this WG's own stale tags")
    A("v_lshlrev_b32 v11, 5, v1")
    A("s_lshl_b32 s56, s28, 11")
    A("s_lshl_b32 s59, s30, 7")
    A("s_add_u32 s59, s59, s64")
    A("s_lshl_b32 s59, s59, 7")
    A("s_waitcnt lgkmcnt(0)")
    A(f"buffer_load_dwordx4 v[64:67], v11, s[40:43], s56 offen offset:{QBOX} sc1")
    A(f"buffer_load_dwordx4 v[68:71], v11, s[40:43], s56 offen offset:{QBOX+16} sc1")
    A(f"buffer_load_dwordx2 v[72:73], v12, s[40:43], s59 offen offset:{QBOX} sc1")
    if NSW == 3: wq_loads()
    A("s_branch L_service")

    LB("L_stream")
    A("s_mov_b32 s34, 0x10000000")
    A("s_mov_b32 s35, 0x00020000")
    A("s_mov_b32 s38, 0x10000000")
    A("s_mov_b32 s39, 0x00020000")
    C("tile n of this WG: group<<24 | (s&7)<<21 | (n>>2)<<16 | (s>>3)<<15 | (n&3)<<13")
    A("s_lshl_b32 s56, s28, 24")
    A("s_and_b32 s66, s29, 7")
    A("s_lshl_b32 s66, s66, 21")
    A("s_or_b32 s56, s56, s66")
    A("s_lshr_b32 s66, s29, 3")
    A("s_lshl_b32 s66, s66, 15")
    A("s_or_b32 s56, s56, s66")
    A("s_lshl_b32 s67, s3, 13")
    A("s_or_b32 s56, s56, s67")
    def tstep():
        if NSW == 4:
            A("s_add_u32 s57, s57, 0x10000")
        else:
            A("s_or_b32 s57, s57, 0x8000")
            A("s_add_u32 s57, s57, 0x6000")
            A("s_andn2_b32 s57, s57, 0x8000")
            A("s_or_b32 s57, s57, s66")
    A("v_lshrrev_b32 v3, 2, v8")
    A("v_lshlrev_b32 v2, 11, v3")
    A("v_lshl_add_u32 v2, v9, 6, v2")
    A("v_lshl_add_u32 v2, v10, 4, v2")
    A("v_lshlrev_b32 v3, 11, v9")
    A("v_lshl_add_u32 v3, v8, 4, v3")
    def issue(kind, sl, sreg, which=range(8)):
        srdn = "s[32:35]" if kind == 'k' else "s[36:39]"
        va = "v2" if kind == 'k' else "v3"
        for i in which:
            b = slot(sl, i)
            A(f"buffer_load_dwordx4 v[{b}:{b+3}], {va}, {srdn}, {sreg} offen offset:{256*i} nt")
    A("s_waitcnt lgkmcnt(0)")
    wq_loads()
    A("s_mov_b32 s57, s56")
    for t in range(early):
        issue('k', t, "s57")
        tstep()
    q_partial(8*early)
    A("s_waitcnt lgkmcnt(0)")
    A("s_barrier")
    stamp(7)
    for t in range(early, NPRE):
        A(f"s_waitcnt vmcnt({eh if t == early else PF2})")
        if ptile == 1: stamp(t, True)
        issue('k', t, "s57")
        tstep()
        if t == early:
            A("v_bfe_u32 v12, v1, 3, 1")
            A("v_lshlrev_b32 v13, 2, v12")
            A("v_add_u32 v13, v13, v9")
            A("v_lshlrev_b32 v12, 9, v12")
            A("v_lshl_add_u32 v12, v9, 6, v12")
            A("v_lshl_add_u32 v12, v10, 4, v12")
            A(f"s_mul_i32 s58, s3, {SSTR}")
            A(f"s_add_u32 s58, s58, {L_S}")
            A("v_lshlrev_b32 v13, 4, v13")
            A("v_add_u32 v13, s58, v13")
            make_masks(56, 57)
            A("v_mov_b32 v14, 0xff800000")
            A("v_mov_b32 v15, 0                       ; l")
            for r in range(8):
                A(f"v_mov_b32 v{24+r}, 0")
            A(f"s_mov_b32 s59, {f2u(C_SCALE):#x}")
    A("s_barrier")
    A(f"ds_read_b128 v[16:19], v12 offset:{L_Q}")
    A(f"ds_read_b128 v[20:23], v12 offset:{L_Q+256}")
    stamp(2)
    if ptile == 1: stamp(6, True)
    if ptile == 2: stamp(1, True)
    A("s_waitcnt lgkmcnt(0)")

    def kproc(sl, soff, mid=None, dyn=False, roll=False):
        for r in range(4):
            d = 32 + 4*r
            a0 = slot(sl, 2*r); a1 = slot(sl, 2*r+1)
            A(f"v_mfma_f32_16x16x32_bf16 v[{d}:{d+3}], v[{a0}:{a0+3}], v[16:19], 0")
            A(f"v_mfma_f32_16x16x32_bf16 v[{d}:{d+3}], v[{a1}:{a1+3}], v[20:23], v[{d}:{d+3}]")
            if roll: issue('k', sl, "s57", (2*r, 2*r+1))
        if roll:
            tstep(); A("s_nop 1")
        elif mid: mid()
        else: A("s_nop 4")
        for k in range(4):
            for r in range(4):
                d = 32 + 4*r + k
                if k == 0:
                    A(f"v_mov_b32_dpp v{48+r}, v{d} quad_perm:[0,0,0,0] {DPP}")
                else:
                    A(f"v_add_f32_dpp v{48+r}, v{d}, v{48+r} quad_perm:[{k},{k},{k},{k}] {DPP}")
        for r in range(4):
            A(f"v_cvt_pk_bf16_f32 v{48+r}, 0, v{48+r}")
        if dyn: return
        A("v_max3_f32 v14, v14, v48, v49")
        A("v_max3_f32 v14, v14, v50, v51")
        A(f"ds_write_b128 v13, v[48:51] offset:{soff}")
    def nk():
        issue('k', 0, "s57"); tstep()
    def nv():
        issue('v', 0, "s57"); tstep()
    def nv0():
        A("s_mov_b32 s57, s56"); nv()
    for t in range(NPRE):
        A(f"s_waitcnt vmcnt({8*((NPRE-1-t) + min(t, 1))})")
        kproc(t, t*128, nk if t == 0 else None)
    A(f"v_add_u32 v13, {NPRE*128}, v13")
    def kstep(nxt):
        A("s_waitcnt vmcnt(0)")
        if kip == 0 and nxt is nk: kproc(0, 0, None, False, True)
        elif kip <= 1: kproc(0, 0, nxt)
        else:
            kproc(0, 0); nxt()
    extra = 0
    if ptile == 2:
        stamp(2, True)
        for q in range(3, 7):
            for rep in range(3):
                kstep(nk)
                A("v_add_u32 v13, 128, v13")
                extra += 1
            stamp(q, True)
    A(f"s_mov_b32 s58, {NT - NPRE - 1 - extra}")
    LB("L_kloop")
    kstep(nk)
    A("v_add_u32 v13, 128, v13")
    A("s_sub_u32 s58, s58, 1")
    A("s_cmp_lg_u32 s58, 0")
    A("s_cbranch_scc1 L_kloop")
    kstep(nv0)
    stamp(3)
    C("true max of this wave's keys per head")
    A(f"v_subrev_u32 v13, {(NT-1)*128}, v13")
    A("v_mov_b32 v10, v14")
    A("s_nop 1")
    A("v_permlane32_swap_b32 v10, v14")
    A("s_nop 1")
    A("v_max_f32 v14, v10, v14")
    A("v_mov_b32 v10, v14")
    A("s_nop 1")
    A("v_permlane16_swap_b32 v10, v14")
    A("s_nop 1")
    A("v_max_f32 v14, v10, v14")
    A("v_mul_f32 v11, s59, v14")
    def pprep():
        for r in range(4):
            A(f"v_fma_f32 v{48+r}, v{48+r}, s59, -v11")
        for r in range(4):
            A(f"v_exp_f32 v{48+r}, v{48+r}")
        A("s_nop 0")
        A("v_add_f32 v56, v48, v49")
        A("v_add_f32 v57, v50, v51")
        for r in range(4):
            A(f"v_cvt_pk_bf16_f32 v{48+r}, v{48+r}, v{48+r}")
        A("v_add_f32 v56, v56, v57")
        A("v_add_f32 v15, v15, v56")
        for r in range(4):
            for k in range(4):
                A(f"v_and_b32 v{32+4*r+k}, v{48+r}, v{4+k}")
    def pv(sl, roll=False):
        for r in range(4):
            a = 32 + 4*r
            b0 = slot(sl, 2*r); b1 = slot(sl, 2*r+1)
            A(f"v_mfma_f32_16x16x32_bf16 v[24:27], v[{a}:{a+3}], v[{b0}:{b0+3}], v[24:27]")
            A(f"v_mfma_f32_16x16x32_bf16 v[28:31], v[{a}:{a+3}], v[{b1}:{b1+3}], v[28:31]")
            if roll: issue('v', sl, "s57", (2*r, 2*r+1))
        if roll: tstep()
    def req_ticket():
        A("v_mov_b32 v58, 0")
        A("v_mov_b32 v59, 1")
        A("s_mov_b64 exec, 1")
        A(f"ds_add_rtn_u32 v59, v58, v59 offset:{L_CNT}")
        A("s_mov_b64 exec, -1")
    def lookup_issue(wait_v=False):
        A("s_waitcnt lgkmcnt(0)")
        A("v_readfirstlane_b32 s76, v59")
        if WT == 4:
            A("s_andn2_b32 s77, s76, 3")
            A("s_and_b32 s76, s76, 3")
        else:
            A(f"s_mul_i32 s77, s76, {-(-65536 // WT)}")
            A("s_lshr_b32 s77, s77, 16")
            A(f"s_mul_i32 s79, s77, {WT}")
            A("s_sub_u32 s76, s76, s79")
            A("s_lshl_b32 s77, s77, 2")
        A("v_mov_b32 v58, s77")
        if wait_v: A("s_waitcnt vmcnt(0)")
        A(f"ds_read_b32 v60, v58 offset:{L_WIN}")
    def vstep(off, nxt, post=None, last=False):
        A(f"ds_read_b128 v[48:51], v13 offset:{off}")
        if vip <= 1:
            A("s_waitcnt lgkmcnt(0)")
            pprep()
            if last and pre: lookup_issue(True)
            else: A("s_waitcnt vmcnt(0)")
        else:
            A("s_waitcnt vmcnt(0) lgkmcnt(0)")
            pprep()
            A("s_nop 0")
        if vip == 0 and nxt: pv(0, True)
        else:
            pv(0)
            if nxt: nxt()
        if post: post()
    A(f"s_mov_b32 s58, {NT-2}")
    LB("L_vloop")
    vstep(0, nv)
    A("v_add_u32 v13, 128, v13")
    A("s_sub_u32 s58, s58, 1")
    A("s_cmp_lg_u32 s58, 0")
    A("s_cbranch_scc1 L_vloop")
    vstep(0, nv, req_ticket)
    C("LDS addresses of this wave's partial")
    A("v_lshrrev_b32 v61, 1, v9")
    A("v_lshlrev_b32 v61, 10, v61")
    A("v_lshl_add_u32 v61, v8, 5, v61")
    A("v_and_b32 v62, 1, v9")
    A("v_lshl_add_u32 v61, v62, 4, v61")
    A("s_lshl_b32 s58, s3, 11")
    A("v_add_u32 v61, s58, v61")
    A("s_lshl_b32 s58, s3, 4")
    A("v_and_b32 v62, 8, v1")
    A("v_add_u32 v62, s58, v62")
    assert vip <= 1 and NSW == 3
    out_setup()
    vstep(128, None, None, True)
    stamp(1)
    C("shared pool: sub-ticket (LDS) -> window ticket fetched by the service wave")
    if not pre:
        LB("L_next")
        lookup_issue()
    else:
        LB("L_next")
    A(f"s_mov_b32 s79, {spin_max}")
    LB("L_win")
    A("s_waitcnt lgkmcnt(0)")
    A("v_readfirstlane_b32 s77, v60")
    A("s_cmp_lg_u32 s77, -1")
    A("s_cbranch_scc1 L_win_ok")
    A("s_sleep 1")
    A(f"ds_read_b32 v60, v58 offset:{L_WIN}")
    A("s_sub_u32 s79, s79, 1")
    A("s_cmp_lg_u32 s79, 0")
    A("s_cbranch_scc1 L_win")
    LB("L_win_ok")
    A(f"s_cmp_ge_u32 s77, {NTK}")
    A("s_cbranch_scc1 L_dyn_done")
    A(f"s_mul_i32 s77, s77, {WT}")
    A("s_add_u32 s77, s77, s76")
    if NPT % WT:
        A(f"s_cmp_ge_u32 s77, {NPT}")
        A("s_cbranch_scc1 L_dyn_done")
    A("s_lshl_b32 s78, s28, 24")
    A("s_and_b32 s79, s77, 7")
    A("s_lshl_b32 s79, s79, 13")
    A("s_or_b32 s78, s78, s79")
    A("s_bfe_u32 s79, s77, 0x30003")
    A("s_lshl_b32 s79, s79, 21")
    A("s_or_b32 s78, s78, s79")
    A("s_lshr_b32 s79, s77, 6")
    A(f"s_add_u32 s79, s79, {NS}")
    A("s_lshl_b32 s79, s79, 16")
    A("s_or_b32 s78, s78, s79")
    issue('k', 2, "s78")
    if dseq:
        A("s_waitcnt vmcnt(0)")
        req_ticket()
        kproc(2, 0, lambda: issue('v', 3, "s78"), True)
    else:
        issue('v', 3, "s78")
        A("s_waitcnt vmcnt(8)")
        req_ticket()
        kproc(2, 0, None, True)
    A("v_max3_f32 v10, v48, v49, v50")
    A("v_max_f32 v10, v10, v51")
    A("v_cmp_gt_f32 vcc, v10, v14")
    A("s_cbranch_vccnz L_rare")
    LB("L_back")
    pprep()
    if pre: lookup_issue(True)
    else: A("s_waitcnt vmcnt(0)")
    pv(3)
    A("s_branch L_next")
    LB("L_rare")
    C("running max rose: rescale l and O")
    A("v_max_f32 v10, v10, v14")
    A("v_mov_b32 v56, v10")
    A("s_nop 1")
    A("v_permlane32_swap_b32 v56, v10")
    A("s_nop 1")
    A("v_max_f32 v10, v10, v56")
    A("v_mov_b32 v56, v10")
    A("s_nop 1")
    A("v_permlane16_swap_b32 v56, v10")
    A("s_nop 1")
    A("v_max_f32 v10, v10, v56")
    A("v_sub_f32 v56, v14, v10")
    A("v_mul_f32 v56, s59, v56")
    A("v_exp_f32 v56, v56")
    A("v_mov_b32 v14, v10")
    A("v_mul_f32 v11, s59, v10")
    A("v_mul_f32 v15, v15, v56")
    A("v_readlane_b32 s60, v56, 0")
    A("v_readlane_b32 s61, v56, 8")
    A("s_mov_b32 s62, 0")
    A("s_mov_b32 s63, -1")
    A("v_mov_b32 v57, s60")
    A("s_mov_b64 exec, s[62:63]")
    A("v_mov_b32 v57, s61")
    A("s_mov_b64 exec, -1")
    for r in range(8):
        A(f"v_mul_f32 v{24+r}, v57, v{24+r}")
    A("s_branch L_back")
    LB("L_dyn_done")
    C("wave partial -> LDS")
    A("v_mov_b32 v10, v15")
    A("s_nop 1")
    A("v_permlane32_swap_b32 v10, v15")
    A("s_nop 0")
    A("v_add_f32 v15, v10, v15")
    A("v_mov_b32 v10, v15")
    A(f"ds_write_b128 v61, v[24:27] offset:{L_O}")
    A(f"ds_write_b128 v61, v[28:31] offset:{L_O+512}")
    A("v_permlane16_swap_b32 v10, v15")
    A("s_nop 0")
    A("v_add_f32 v15, v10, v15")
    A("s_mov_b64 exec, 0x101")
    A(f"ds_write_b64 v62, v[14:15] offset:{L_ML}")
    A("s_mov_b64 exec, -1")
    stamp(4)
    if ob == 0: out_loads()
    A("s_waitcnt lgkmcnt(0)")
    A("s_barrier")
    if ob == 1: out_loads()
    C("FFN part of this column block (hidden slice and gate come through LDS)")
    A("v_mov_b32 v10, 0")
    A(f"ds_read_b128 v[80:83], v52 offset:{L_H}")
    A(f"ds_read_b64 v[2:3], v10 offset:{L_G}")
    A("v_lshlrev_b32 v52, 1, v52")
    A("s_waitcnt lgkmcnt(0)")
    for t in range(4):
        for k in range(4):
            A(f"v_and_b32 v{24+4*t+k}, v{80+t}, v{4+k}")
    if ob == 3: A("s_barrier")
    if ob >= 2: out_loads()
    if pp: A("s_waitcnt vmcnt(0)")
    LB("L_out")
    A("s_barrier")
    A(f"ds_read_b128 v[72:75], v52 offset:{L_OP}")
    A(f"ds_read_b128 v[76:79], v52 offset:{L_OP+16}")
    if not pp: A("s_waitcnt vmcnt(0)")
    ffn_mfma()
    A("s_waitcnt lgkmcnt(0)")
    def wo_mfma(tt):
        c = "0" if tt == 0 else "v[16:19]"
        A(f"v_mfma_f32_16x16x32_bf16 v[16:19], v[{88+4*tt}:{91+4*tt}], v[{128+4*tt}:{131+4*tt}], {c}")
    for t in range(8):
        for k in range(4):
            A(f"v_and_b32 v{88+4*t+k}, v{72+t}, v{4+k}")
        if t >= 1: wo_mfma(t-1)
    A("s_nop 0")
    wo_mfma(7)
    A("s_mov_b64 exec, s[52:53]")
    for k in range(4):
        A(f"v_mul_f32 v{20+k}, v3, v{20+k}")
    A("s_nop 2")
    for k in range(4):
        A(f"v_fmac_f32 v{20+k}, v2, v{16+k}")
    A(f"buffer_store_dwordx4 v[20:23], v53, s[40:43], s64 offen {HS}")
    A("s_mov_b64 exec, -1")
    if prof:
        A(f"s_cmp_eq_u32 s3, {NSW}")
        A("s_cbranch_scc1 L_svc_end")
    C("role 0 of WGs with i<28: sums the 128 y partials of 16 output columns")
    A("s_cmp_lg_u32 s3, 0")
    A("s_cbranch_scc1 L_fin")
    A("s_cmp_ge_u32 s31, 28")
    A("s_cbranch_scc1 L_fin")
    srd(44, 22, 23, 1792)
    A("v_lshrrev_b32 v10, 2, v1")
    A(f"v_mul_u32_u24 v10, {OB2S}, v10")
    A("v_and_b32 v11, 3, v1")
    A("v_lshl_add_u32 v10, v11, 4, v10")
    A(f"s_mul_i32 s58, s30, {128*OB2S}")
    A("s_lshl_b32 s61, s31, 6")
    A("s_add_u32 s58, s58, s61")
    A(f"s_add_u32 s58, s58, {OB2}")
    for t in range(8):
        A(f"s_add_u32 s{48+t}, s58, {t*16*OB2S}")
    A("v_lshrrev_b32 v14, 5, v1")
    A("v_lshlrev_b32 v14, 2, v14")
    A("v_lshl_add_u32 v14, v11, 3, v14")
    A("s_mul_i32 s58, s30, 896")
    A("s_lshl_b32 s61, s31, 5")
    A("s_add_u32 s58, s58, s61")
    A(f"s_mov_b32 s60, {spin_max}")
    for t in range(8):
        A(f"s_mov_b64 s[{64+2*t}:{65+2*t}], -1")
    LB("L_poll2")
    for t in range(8):
        A(f"s_mov_b64 exec, s[{64+2*t}:{65+2*t}]")
        A(f"s_cbranch_execz L_p2s{t}")
        A(f"buffer_load_dwordx4 v[{64+4*t}:{67+4*t}], v10, s[40:43], s{48+t} offen {HL}")
        LB(f"L_p2s{t}")
    A("s_mov_b64 exec, -1")
    A("s_waitcnt vmcnt(0)")
    for t in range(8):
        A(f"v_max3_u32 v{12+(t&1)}, v{64+4*t}, v{65+4*t}, v{66+4*t}")
        A(f"v_max_u32 v{12+(t&1)}, v{12+(t&1)}, v{67+4*t}")
        A(f"v_cmp_eq_u32 s[{64+2*t}:{65+2*t}], -1, v{12+(t&1)}")
    A("s_or_b64 s[62:63], s[64:65], s[66:67]")
    for t in range(2, 8):
        A(f"s_or_b64 s[62:63], s[62:63], s[{64+2*t}:{65+2*t}]")
    A("s_cbranch_scc0 L_poll2_done")
    A(f"s_sleep {s2}")
    A("s_sub_u32 s60, s60, 1")
    A("s_cmp_lg_u32 s60, 0")
    A("s_cbranch_scc1 L_poll2")
    LB("L_poll2_done")
    stamp(5)
    for step in (16, 8, 4):
        for k in range(step):
            A(f"v_add_f32 v{64+k}, v{64+k}, v{64+step+k}")
    A("s_nop 1")
    A("v_permlane32_swap_b32 v64, v66")
    A("v_permlane32_swap_b32 v65, v67")
    A("s_nop 1")
    A("v_add_f32 v64, v64, v66")
    A("v_add_f32 v65, v65, v67")
    A("v_mov_b32 v66, v64")
    A("v_mov_b32 v67, v65")
    A("s_nop 1")
    A("v_permlane16_swap_b32 v66, v64")
    A("v_permlane16_swap_b32 v67, v65")
    A("s_nop 1")
    A("v_add_f32 v64, v64, v66")
    A("v_add_f32 v65, v65, v67")
    A("s_nop 1")
    A(f"v_add_f32_dpp v64, v64, v64 row_ror:8 {DPP}")
    A(f"v_add_f32_dpp v65, v65, v65 row_ror:8 {DPP}")
    A("s_nop 1")
    A(f"v_add_f32_dpp v64, v64, v64 row_ror:4 {DPP}")
    A(f"v_add_f32_dpp v65, v65, v65 row_ror:4 {DPP}")
    A("s_mov_b32 s60, 15")
    A("s_mov_b32 s61, 15")
    A("v_cvt_pk_bf16_f32 v64, v64, v65")
    if sprobe:
        A("s_mov_b32 s92, 0")
        A("s_atomic_add s92, s[24:25], 0 glc")
        A("s_memrealtime s[90:91]")
        A("s_waitcnt lgkmcnt(0)")
        A("s_not_b32 s92, s92")
        A("s_sub_u32 s92, s90, s92")
        A("s_min_u32 s92, s92, 5000")
        A(f"s_mul_i32 s92, s92, {sprobe}")
        LB("L_sp2")
        A("s_memrealtime s[94:95]")
        A("s_waitcnt lgkmcnt(0)")
        A("s_sub_u32 s94, s94, s90")
        A("s_cmp_lt_u32 s94, s92")
        A("s_cbranch_scc1 L_sp2")
    if tfix:
        if tmode:
            A("s_mov_b32 s92, 0")
            A("s_atomic_add s92, s[24:25], 0 glc")
            A("s_waitcnt lgkmcnt(0)")
            if tmode == 1: A("s_not_b32 s92, s92")
        LB("L_tfix")
        A("s_memrealtime s[94:95]")
        A("s_waitcnt lgkmcnt(0)")
        A("s_sub_u32 s94, s94, s92")
        A(f"s_cmp_lt_u32 s94, {tfix*100}")
        A("s_cbranch_scc1 L_tfix")
    A("s_mov_b64 exec, s[60:61]")
    A(f"buffer_store_dword v64, v14, s[44:47], s58 offen {['', 'sc1', 'sc0 sc1', 'nt'][osc]}")
    A("s_mov_b64 exec, -1")
    stamp(6)
    LB("L_fin")
    dump_stamps(False)
    A("s_endpgm")

    LB("L_service")
    svc[0] = True
    for k in range(4):
        A(f"v_mov_b32 v{48+k}, -1")
    A("v_lshlrev_b32 v14, 4, v1")
    A("v_mov_b32 v15, 0")
    A(f"ds_write_b32 v15, v15 offset:{L_CNT}")
    A(f"ds_write_b128 v14, v[48:51] offset:{L_WIN}")
    def clears():
        C("own outboxes := sentinel, ticket counter := 0")
        for k in range(2):
            A(f"buffer_store_dwordx4 v[48:51], v14, s[40:43], s57 offen offset:{1024*k} sc1")
        A("buffer_store_dwordx4 v[48:51], v14, s[40:43], s58 offen sc1")
        A("s_mov_b32 s70, -1")
        A("s_mov_b32 s71, 0xffff")
        A("s_mov_b64 exec, s[70:71]")
        A("buffer_store_dwordx4 v[48:51], v14, s[40:43], s58 offen offset:1024 sc1")
        A("s_mov_b64 exec, 0xffff")
        A("buffer_store_dwordx4 v[48:51], v14, s[40:43], s57 offen offset:2048 sc1")
        A("s_mov_b64 exec, -1")
    if clr == 2:
        A(f"s_mul_i32 s57, s2, {OB1S}")
        A(f"s_add_u32 s57, s57, {OB1}")
        A(f"s_mul_i32 s58, s2, {OB2S}")
        A(f"s_add_u32 s58, s58, {OB2}")
        clears()
    if NSW == 3: q_partial(5 if clr == 2 else 0)
    A("s_mul_i32 s70, s30, 896")
    A("s_add_u32 s44, s4, s70")
    A("s_addc_u32 s45, s5, 0")
    A("s_mov_b32 s46, 896")
    A(f"s_mul_i32 s57, s2, {OB1S}")
    A(f"s_add_u32 s57, s57, {OB1}")
    A(f"s_mul_i32 s58, s2, {OB2S}")
    A(f"s_add_u32 s58, s58, {OB2}")
    stamp(1)
    A("s_waitcnt lgkmcnt(0)")
    A("s_barrier")
    for w in range(4):
        A(f"ds_read_b64 v[{16+2*w}:{17+2*w}], v12 offset:{L_QP+128*w}")
    if clr != 2: A("s_waitcnt vmcnt(0)")
    A("v_add_u32 v72, 0x10000, v72")
    A("v_add_u32 v73, 0x10000, v73")
    A("v_and_b32 v72, 0xffff0000, v72")
    A("v_and_b32 v73, 0xffff0000, v73")
    A("s_waitcnt lgkmcnt(0)")
    A("v_add_f32 v16, v16, v18")
    A("v_add_f32 v17, v17, v19")
    A("v_add_f32 v20, v20, v22")
    A("v_add_f32 v21, v21, v23")
    A("v_add_f32 v16, v16, v20")
    A("v_add_f32 v17, v17, v21")
    A("v_cvt_pk_bf16_f32 v16, v16, 0")
    A("v_cvt_pk_bf16_f32 v17, v17, 0")
    A("v_or_b32 v72, v72, v16")
    A("v_or_b32 v73, v73, v17")
    A("s_mov_b64 exec, s[62:63]")
    A(f"buffer_store_dwordx2 v[72:73], v12, s[40:43], s59 offen offset:{QBOX} sc1")
    A("s_mov_b64 exec, -1")
    stamp(2)
    if clr == 1: clears()
    A("s_cmp_lg_u32 s29, 0")
    A("s_cbranch_scc1 L_notinit")
    A("s_lshl_b32 s70, s28, 12")
    A(f"s_add_u32 s70, s70, {TICK}")
    A("s_mov_b64 exec, 1")
    A("buffer_store_dword v15, v15, s[40:43], s70 offen sc1")
    A("s_mov_b64 exec, -1")
    LB("L_notinit")
    A("s_lshl_b32 s65, s30, 6")
    A("s_add_u32 s65, s65, 128")
    A("s_mov_b32 s68, 1")
    A("s_mov_b32 s59, 0")
    A("s_mov_b32 s66, 0x10000")
    A("s_waitcnt vmcnt(0)")
    A("s_atomic_add s68, s[24:25], s65")
    LB("L_pollq")
    A(f"buffer_load_dwordx4 v[76:79], v11, s[40:43], s56 offen offset:{QBOX} sc1")
    A(f"buffer_load_dwordx4 v[80:83], v11, s[40:43], s56 offen offset:{QBOX+16} sc1")
    A("s_waitcnt vmcnt(0)")
    for k in range(8):
        A(f"v_xor_b32 v{84+k}, v{64+k}, v{76+k}")
    A("v_min3_u32 v84, v84, v85, v86")
    A("v_min3_u32 v87, v87, v88, v89")
    A("v_min3_u32 v84, v84, v90, v91")
    A("v_min_u32 v84, v84, v87")
    A("v_cmp_gt_u32 vcc, s66, v84")
    A("s_cbranch_vccz L_pollq_done")
    A("s_mov_b64 exec, vcc")
    A("s_add_u32 s59, s59, 1")
    A("s_sleep 1")
    A(f"s_cmp_lt_u32 s59, {fbk}")
    A("s_cbranch_scc1 L_pollq")
    C("the snapshot may have been taken after a producer wrote: once the whole batch arrived, the next read is valid")
    A("s_mov_b32 s70, 0")
    A("s_atomic_add s70, s[24:25], s65 glc")
    A("s_waitcnt lgkmcnt(0)")
    A("s_cmp_ge_u32 s70, 128")
    A("s_cselect_b32 s66, 0, s66")
    A(f"s_cmp_lt_u32 s59, {spin_max}")
    A("s_cbranch_scc1 L_pollq")
    LB("L_pollq_done")
    A("s_mov_b64 exec, -1")
    stamp(3)
    for k in range(4):
        A(f"v_perm_b32 v{48+k}, v{77+2*k}, v{76+2*k}, s60")
    A(f"ds_write_b128 v14, v[48:51] offset:{L_Q}")
    A("s_waitcnt lgkmcnt(0)")
    A("s_barrier")
    stamp(4)
    if tmode == 1:
        A("s_not_b32 s94, s92")
        A("s_atomic_umax s94, s[24:25], 0")
        A("s_waitcnt lgkmcnt(0)")
    if tmode == 2:
        A("s_mov_b32 s94, s92")
        A("s_atomic_umax s94, s[24:25], 0")
        A("s_waitcnt lgkmcnt(0)")
    if tmode == 3:
        A("s_memrealtime s[94:95]")
        A("s_waitcnt lgkmcnt(0)")
        A("s_atomic_umax s94, s[24:25], 0")
        A("s_waitcnt lgkmcnt(0)")
    C("background: FFN hidden slice, gate, output-side weights")
    make_masks(56, 57)
    A("s_and_b32 s66, s31, 7")
    A("s_mul_i32 s66, s66, 14")
    A("s_lshr_b32 s67, s31, 3")
    A("s_add_u32 s66, s66, s67")
    A("s_cmp_lt_u32 s31, 112")
    A(f"s_cselect_b32 s59, {448*1792*2}, 0")
    srd(48, 16, 17, 0 if skip & 2 else "s59")
    srd(36, 20, 21, 896)
    A("v_lshrrev_b32 v10, 1, v1")
    A("v_and_b32 v11, 1, v1")
    A("v_mul_u32_u24 v12, 28, v10")
    A(f"v_mul_u32_u24 v13, {14*3584}, v10")
    A("v_lshl_add_u32 v13, v11, 4, v13")
    A(f"buffer_load_dwordx4 v[{XR}:{XR+3}], v12, s[44:47], 0 offen")
    A(f"buffer_load_dwordx3 v[{XR+4}:{XR+6}], v12, s[44:47], 0 offen offset:16")
    A("buffer_load_dwordx4 v[40:43], v14, s[44:47], 0 offen")
    A("buffer_load_dwordx4 v[44:47], v14, s[36:39], 0 offen")
    A("s_lshl_b32 s56, s66, 5")
    cnt = [0]
    def thr():
        cnt[0] += 1
        if cnt[0] % SB == 0: A("s_waitcnt vmcnt(0)")
    for t in range(14):
        A(f"buffer_load_dwordx4 v[{64+4*t}:{67+4*t}], v13, s[48:51], s56 offen")
        A("s_add_u32 s56, s56, 3584")
        thr()
    for k in range(8):
        A(f"v_mov_b32 v{ACC+k}, 0")
    matvec_pairs(7, 64, XR, 0)
    A("s_nop 1")
    for k in range(2):
        A(f"v_add_f32_dpp v{ACC+k}, v{ACC+k}, v{ACC+k} row_ror:2 {DPP}")
    A(f"s_mov_b32 s59, {f2u(-math.log2(math.e)):#x}")
    for k in range(2):
        A(f"v_cvt_pk_bf16_f32 v{ACC+k}, 0, v{ACC+k}")
    for k in range(2):
        A(f"v_mul_f32 v{ACC+2+k}, s59, v{ACC+k}")
    for k in range(2):
        A(f"v_exp_f32 v{ACC+2+k}, v{ACC+2+k}")
    A("s_nop 0")
    for k in range(2):
        A(f"v_add_f32 v{ACC+2+k}, 1.0, v{ACC+2+k}")
    for k in range(2):
        A(f"v_rcp_f32 v{ACC+2+k}, v{ACC+2+k}")
    A("s_nop 0")
    for k in range(2):
        A(f"v_mul_f32 v{ACC+k}, v{ACC+k}, v{ACC+2+k}       ; silu")
    for k in range(2):
        A(f"v_cvt_pk_bf16_f32 v{ACC+k}, v{ACC+k}, v{ACC+k}")
    A("v_lshlrev_b32 v12, 5, v11")
    A("v_lshl_add_u32 v12, v9, 3, v12")
    A("s_mov_b32 s62, 0x00030003")
    A("s_mov_b32 s63, 0x00030003")
    A("s_mov_b64 exec, s[62:63]")
    A(f"ds_write_b64 v12, v[{ACC}:{ACC+1}] offset:{L_H}")
    A("s_mov_b64 exec, -1")
    C("gate")
    for k in range(4):
        A(f"v_lshlrev_b32 v52, 16, v{40+k}")
        A(f"v_lshlrev_b32 v53, 16, v{44+k}")
        A(f"v_and_b32 v54, 0xffff0000, v{40+k}")
        A(f"v_and_b32 v55, 0xffff0000, v{44+k}")
        A("v_mul_f32 v52, v52, v53")
        A("v_mul_f32 v54, v54, v55")
        A("v_cvt_pk_bf16_f32 v52, 0, v52")
        A("v_cvt_pk_bf16_f32 v54, 0, v54")
        if k == 0:
            A("v_add_f32 v56, v52, v54")
        else:
            A("v_add_f32 v56, v56, v52")
            A("v_add_f32 v56, v56, v54")
    for rr in (8, 4, 2, 1):
        A("s_nop 1")
        A(f"v_add_f32_dpp v56, v56, v56 row_ror:{rr} {DPP}")
    A("v_mov_b32 v57, v56")
    A("s_nop 1")
    A("v_permlane32_swap_b32 v57, v56")
    A("s_nop 1")
    A("v_add_f32 v56, v56, v57")
    A("v_mov_b32 v57, v56")
    A("s_nop 1")
    A("v_permlane16_swap_b32 v57, v56")
    A("s_nop 1")
    A("v_add_f32 v56, v56, v57")
    A("v_cvt_pk_bf16_f32 v56, 0, v56")
    A("v_mul_f32 v56, s59, v56")
    A("v_exp_f32 v56, v56")
    A("s_nop 0")
    A("v_add_f32 v56, 1.0, v56")
    A("v_rcp_f32 v56, v56")
    A("s_nop 0")
    A("v_cvt_pk_bf16_f32 v2, 0, v56           ; g")
    A("v_sub_f32 v3, 1.0, v2")
    A("v_cvt_pk_bf16_f32 v3, 0, v3            ; 1-g")
    A("v_mov_b32 v16, 0")
    A(f"ds_write_b64 v16, v[2:3] offset:{L_G}")
    out_setup()
    A(f"ds_read_b128 v[80:83], v52 offset:{L_H}")
    A("v_lshlrev_b32 v52, 1, v52")
    A("s_waitcnt lgkmcnt(0)")
    for t in range(4):
        for k in range(4):
            A(f"v_and_b32 v{24+4*t+k}, v{80+t}, v{4+k}")
    A(f"s_mov_b32 s59, {f2u(C_SCALE):#x}")
    A("v_lshlrev_b32 v10, 5, v1")
    A("v_lshrrev_b32 v11, 5, v1")
    A("v_lshlrev_b32 v11, 3, v11")
    A("v_lshrrev_b32 v15, 2, v1")
    A("v_mul_u32_u24 v15, 144, v15")
    A("v_and_b32 v12, 3, v1")
    A("v_lshl_add_u32 v15, v12, 5, v15")
    A(f"v_mul_u32_u24 v12, {OB1S}, v8")
    A("v_lshl_add_u32 v13, v9, 5, v12")
    A(f"s_mul_i32 s60, s28, {16*OB1S}")
    A("s_mul_i32 s61, s29, 144")
    A("s_add_u32 s60, s60, s61")
    A(f"s_add_u32 s60, s60, {OB1}")
    A("v_lshlrev_b32 v14, 5, v9")
    if pp:
        for k in range(8):
            A(f"v_mov_b32 v{120+k}, -1")
    A("s_lshl_b32 s54, 0x00010001, s29")
    A("s_mov_b32 s55, s54")
    A("s_lshl_b32 s61, s29, 4")
    A("v_lshl_add_u32 v21, v9, 2, s61")
    C("whole batch arrived => every outbox read later was cleared and the ticket counters are set")
    A(f"s_mov_b32 s56, {spin_max}")
    LB("L_pollg")
    A("s_mov_b32 s70, 0")
    A("s_atomic_add s70, s[24:25], s65 glc")
    A("s_waitcnt lgkmcnt(0)")
    A("s_cmp_ge_u32 s70, 128")
    A("s_cbranch_scc1 L_pollg_done")
    A("s_sleep 16")
    A("s_sub_u32 s56, s56, 1")
    A("s_cmp_lg_u32 s56, 0")
    A("s_cbranch_scc1 L_pollg")
    LB("L_pollg_done")
    C("window-ticket server")
    A("s_lshl_b32 s74, s28, 12")
    A(f"s_add_u32 s74, s74, {TICK}")
    A("s_add_u32 s74, s26, s74")
    A("s_addc_u32 s75, s27, 0")
    A("s_mov_b32 s71, 0")
    A("s_mov_b32 s72, 0")
    A("v_mov_b32 v16, 0")
    A(f"s_mov_b32 s56, {spin_max*8}")
    LB("L_tk")
    A(f"ds_read_b32 v17, v16 offset:{L_CNT}")
    A("s_waitcnt lgkmcnt(0)")
    A("v_readfirstlane_b32 s70, v17")
    A("s_cmp_gt_u32 s70, s72")
    A("s_cbranch_scc1 L_tk_fetch")
    A("s_sleep 2")
    A("s_sub_u32 s56, s56, 1")
    A("s_cmp_lg_u32 s56, 0")
    A("s_cbranch_scc1 L_tk")
    A("s_branch L_tk_done")
    LB("L_tk_fetch")
    A("s_mov_b32 s70, 1")
    A("s_atomic_add s70, s[74:75], 0 glc")
    A("v_mov_b32 v17, s71")
    A("s_waitcnt lgkmcnt(0)")
    A("v_mov_b32 v20, s70")
    A("s_add_u32 s71, s71, 4")
    A(f"s_add_u32 s72, s72, {WT}")
    A(f"ds_write_b32 v17, v20 offset:{L_WIN}")
    A(f"s_cmp_lt_u32 s70, {NTK - RET}")
    A("s_cbranch_scc1 L_tk")
    C("one of the last tickets (or none): this WG asks for nothing more")
    A("v_mov_b32 v17, s71")
    A("v_mov_b32 v20, 0x10000")
    for k in range(-(-NSW // WT)):
        A(f"ds_write_b32 v17, v20 offset:{L_WIN + 4*k}")
    LB("L_tk_done")
    if wout:
        C("address-translation warm-up for the pages the tail touches (values unused)")
        srd(32, 22, 23, 1792)
        A("s_mov_b64 exec, 1")
        A("buffer_load_dword v17, v16, s[32:35], 0 offen")
        if wout >= 2:
            A("buffer_load_dword v20, v16, s[40:43], s64 offen sc1")
            A("buffer_load_dword v22, v16, s[40:43], s57 offen sc1")
            A("buffer_load_dword v23, v54, s[44:47], s69 offen")
            A("buffer_load_dword v19, v55, s[48:51], s67 offen")
        A("s_mov_b64 exec, -1")
    if warm:
        C("touch the pages of the output-side weights (address translation only)")
        A("s_mov_b64 exec, 1")
        A("buffer_load_dword v17, v54, s[44:47], s69 offen")
        A("buffer_load_dword v20, v55, s[48:51], s67 offen")
        A("s_mov_b64 exec, -1")
    A("s_waitcnt vmcnt(0) lgkmcnt(0)")
    A("s_barrier")
    stamp(5)
    if prof: A("s_waitcnt lgkmcnt(0)")
    C("WG combine")
    for w in range(NSW):
        A(f"ds_read_b64 v[{56+2*w}:{57+2*w}], v11 offset:{L_ML+16*w}")
    for w in range(NSW):
        A(f"ds_read_b128 v[{64+8*w}:{67+8*w}], v10 offset:{L_O+2048*w}")
        A(f"ds_read_b128 v[{68+8*w}:{71+8*w}], v10 offset:{L_O+2048*w+16}")
    A(f"s_waitcnt lgkmcnt({2*NSW})")
    A("v_max3_f32 v16, v56, v58, v60")
    if NSW == 4: A("v_max_f32 v16, v16, v62")
    for w in range(NSW):
        A(f"v_sub_f32 v{56+2*w}, v{56+2*w}, v16")
    for w in range(NSW):
        A(f"v_mul_f32 v{56+2*w}, s59, v{56+2*w}")
    for w in range(NSW):
        A(f"v_exp_f32 v{56+2*w}, v{56+2*w}")
    A("s_nop 0")
    A("v_mul_f32 v17, v56, v57")
    for w in range(1, NSW):
        A(f"v_fmac_f32 v17, v{56+2*w}, v{57+2*w}")
    A("s_waitcnt lgkmcnt(0)")
    for k in range(8):
        A(f"v_mul_f32 v{64+k}, v56, v{64+k}")
    for w in range(1, NSW):
        for k in range(8):
            A(f"v_fmac_f32 v{64+k}, v{56+2*w}, v{64+8*w+k}")
    A(f"buffer_store_dwordx4 v[64:67], v15, s[40:43], s57 offen {HS}")
    A(f"buffer_store_dwordx4 v[68:71], v15, s[40:43], s57 offen offset:16 {HS}")
    A("s_mov_b32 s62, 0x11111111")
    A("s_mov_b32 s63, 0x11111111")
    A("s_mov_b64 exec, s[62:63]")
    A(f"buffer_store_dwordx2 v[16:17], v15, s[40:43], s57 offen offset:128 {HS}")
    A("s_mov_b64 exec, -1")
    def poll1_loads():
        A(f"buffer_load_dwordx4 v[72:75], v13, s[40:43], s60 offen {HL}")
        A(f"buffer_load_dwordx4 v[76:79], v13, s[40:43], s60 offen offset:16 {HL}")
        A(f"buffer_load_dwordx2 v[80:81], v12, s[40:43], s60 offen offset:128 {HL}")
    if ob == 3: A("s_barrier")
    A(f"s_mov_b32 s56, {spin_max}")
    if pp:
        C("weights first; then overlapped polls that all land in v120..127/v86..87; a register copy is what is checked and used")
        A("s_mov_b32 s62, 0x00ff00ff")
        A("s_mov_b32 s63, 0x00ff00ff")
        A("s_mov_b64 exec, s[62:63]")
        out_loads()
        A("s_mov_b64 exec, -1")
        for k in range(8):
            A(f"ds_bpermute_b32 v{72+k}, v21, v{64+k}")
        A("ds_bpermute_b32 v80, v21, v16")
        A("ds_bpermute_b32 v81, v21, v17")
        A("v_mov_b32 v86, -1")
        A("v_mov_b32 v87, -1")
        A("s_andn2_b64 exec, -1, s[54:55]")
        LB("L_poll1")
        A(f"buffer_load_dwordx4 v[120:123], v13, s[40:43], s60 offen {HL}")
        A(f"buffer_load_dwordx4 v[124:127], v13, s[40:43], s60 offen offset:16 {HL}")
        A(f"buffer_load_dwordx2 v[86:87], v12, s[40:43], s60 offen offset:128 {HL}")
        A(f"s_sleep {pp}")
        A(f"s_waitcnt vmcnt({ppc}) lgkmcnt(0)")
        for k in range(8):
            A(f"v_mov_b32 v{72+k}, v{120+k}")
        A("v_mov_b32 v80, v86")
        A("v_mov_b32 v81, v87")
        A("v_max3_u32 v18, v72, v73, v74")
        A("v_max3_u32 v19, v75, v76, v77")
        A("v_max3_u32 v18, v18, v78, v79")
        A("v_max3_u32 v19, v19, v80, v81")
        A("v_max_u32 v18, v18, v19")
        A("v_cmp_eq_u32 vcc, -1, v18")
        A("s_cbranch_vccz L_poll1_done")
        A("s_mov_b64 exec, vcc")
        A("s_sub_u32 s56, s56, 1")
        A("s_cmp_lg_u32 s56, 0")
        A("s_cbranch_scc1 L_poll1")
        A("s_waitcnt vmcnt(0)")
    else:
        if own:
            C("own packet comes from registers; the other 15 are polled")
            A("s_andn2_b64 exec, -1, s[54:55]")
            poll1_loads()
            if m3:
                A("s_mov_b32 s62, 0x00ff00ff")
                A("s_mov_b32 s63, 0x00ff00ff")
                A("s_mov_b64 exec, s[62:63]")
            else:
                A("s_mov_b64 exec, -1")
            out_loads()
            A("s_mov_b64 exec, -1")
            for k in range(8):
                A(f"ds_bpermute_b32 v{88+k}, v21, v{64+k}")
            A("ds_bpermute_b32 v96, v21, v16")
            A("ds_bpermute_b32 v97, v21, v17")
            A("s_mov_b64 exec, s[54:55]")
            A("s_waitcnt vmcnt(12) lgkmcnt(0)")
            for k in range(10):
                A(f"v_mov_b32 v{72+k}, v{88+k}")
            A("s_mov_b64 exec, -1")
            A("s_branch L_poll1_chk")
        else:
            out_loads()
        LB("L_poll1")
        poll1_loads()
        A("s_waitcnt vmcnt(0)")
        LB("L_poll1_chk")
        A("v_max3_u32 v18, v72, v73, v74")
        A("v_max3_u32 v19, v75, v76, v77")
        A("v_max3_u32 v18, v18, v78, v79")
        A("v_max3_u32 v19, v19, v80, v81")
        A("v_max_u32 v18, v18, v19")
        A("v_cmp_eq_u32 vcc, -1, v18")
        A("s_cbranch_vccz L_poll1_done")
        A("s_mov_b64 exec, vcc")
        A("s_bcnt1_i32_b64 s61, vcc")
        A(f"s_cmp_le_u32 s61, {lt}")
        A("s_cbranch_scc1 L_poll1_fast")
        A(f"s_sleep {ls}")
        LB("L_poll1_fast")
        A("s_sleep 1")
        A("s_sub_u32 s56, s56, 1")
        A("s_cmp_lg_u32 s56, 0")
        A("s_cbranch_scc1 L_poll1")
    LB("L_poll1_done")
    A("s_mov_b64 exec, -1")
    stamp(6)
    if sprobe:
        A("s_cmp_lg_u32 s29, 0")
        A("s_cbranch_scc1 L_sp1")
        A("s_memrealtime s[94:95]")
        A("s_waitcnt lgkmcnt(0)")
        A("s_not_b32 s94, s94")
        A("s_atomic_umax s94, s[24:25], 0")
        LB("L_sp1")
    C("group combine over the 16 producers, then 32 rows of wo")
    A(f"v_max_f32_dpp v18, v80, v80 row_ror:8 {DPP}")
    for rr in (4, 2, 1):
        A("s_nop 1")
        A(f"v_max_f32_dpp v18, v18, v18 row_ror:{rr} {DPP}")
    A("v_sub_f32 v18, v80, v18")
    A("v_mul_f32 v18, s59, v18")
    A("v_exp_f32 v18, v18")
    A("s_nop 0")
    A("v_mul_f32 v80, v18, v81")
    for k in range(8):
        A(f"v_mul_f32 v{72+k}, v18, v{72+k}")
    for rr in (8, 4, 2, 1):
        for k in (8, 0, 1, 2, 3, 4, 5, 6, 7):
            A(f"v_add_f32_dpp v{72+k}, v{72+k}, v{72+k} row_ror:{rr} {DPP}")
    A("v_rcp_f32 v80, v80")
    A("s_nop 0")
    for k in range(8):
        A(f"v_mul_f32 v{72+k}, v80, v{72+k}")
    for k in range(8):
        A(f"v_cvt_pk_bf16_f32 v{72+k}, v{72+k}, v{72+k}")
    A("s_mov_b32 s62, 0x00010001")
    A("s_mov_b32 s63, 0x00010001")
    A("s_mov_b64 exec, s[62:63]")
    A(f"ds_write_b128 v14, v[72:75] offset:{L_OP}")
    A(f"ds_write_b128 v14, v[76:79] offset:{L_OP+16}")
    A("s_mov_b64 exec, -1")
    A("s_waitcnt lgkmcnt(0)")
    A("s_branch L_out")
    LB("L_svc_end")
    stamp(7)
    dump_stamps(True)
    LB("L_end")
    A("s_endpgm")
    L.append('.section .rodata,"a"')
    L.append(".p2align 6")
    L.append(f".amdhsa_kernel {NAME}_kernel")
    L.append("  .amdhsa_next_free_vgpr 256")
    L.append("  .amdhsa_next_free_sgpr 96")
    L.append("  .amdhsa_accum_offset 256")
    L.append("  .amdhsa_group_segment_fixed_size 0")
    L.append("  .amdhsa_kernarg_size 96")
    L.append("  .amdhsa_user_sgpr_count 2")
    L.append("  .amdhsa_user_sgpr_kernarg_segment_ptr 1")
    L.append("  .amdhsa_system_sgpr_workgroup_id_x 1")
    L.append(".end_amdhsa_kernel")
    return "\n".join(L) + "\n"


if __name__ == "__main__":
    out = sys.argv[1]
    kw = {}
    for a in sys.argv[2:]:
        k, v = a.split("=")
        kw[k] = int(v)
    open(out, "w").write(gen(**kw))
```

```python
import sys, math, struct

NAME = "gated_mix__gqa_block_cached__dense_activation_silu__decode"
HEADER = open("cdna_kernels/" + NAME + ".s.ref").read().split("; Override launch")[0]

QBOX = 0x0
TICK = 0x10000
OB1 = 0x40000
OB1S = 2304
OB2 = 0x200000
OB2S = 1792
STAMP = 0x20000000
C_SCALE = (1.0 / 16.0) * math.log2(math.e)
def f2u(x): return struct.unpack("<I", struct.pack("<f", x))[0]


DOC = """
One launch, 256 workgroups (group = wg>>4 = batch*8 + kv head, 16 workgroups per group), 4 waves each.
 * wave 0 (service): hands q slices round the group through d_ws (16-bit tags = stale tag + 1, arrival
   counter in d_debug as fall-back), computes a 16-unit FFN slice and the gate, serves window tickets,
   merges the wave partials, merges the 16 partials of a 32-row slice of o and multiplies it with wo.
 * waves 1-3 stream K (scores -> LDS, true max), then V, straight into MFMA operand registers:
   QK^T uses 64-byte row pieces as A rows and picks the diagonal blocks, P.V puts p on the diagonal of
   A so that row-major V is the B operand as loaded.  The last 1/16 of the keys is a shared pool handed
   out by tickets (running max with rescale) so that all workgroups finish together.
 * partial results travel through sentinel-cleared boxes in d_ws (sc1 stores / sc1 loads).
"""

def gen(prof=0, NSW=3, NS=30, NPRE=6, kip=1, vip=1, RET=8, fbk=4, SB=8, spin_max=200000, ldsx=0, dseq=0, PF2=0, WT=3, skip=0, ptile=0, early=1, eh=0, hl=0, hs=0, ls=16, lt=28, s2=2, pre=1, tfix=0, osc=1, tmode=0, ob=3, warm=0, own=1, m3=1, sprobe=0, pp=0, ppc=30, clr=1, wout=3, wkv=0):
    NT = NS*4 // NSW
    assert NS*4 % NSW == 0 and NSW in (3, 4)
    SSTR = NT*128
    L_Q = 0
    L_S = 1024
    L_O = L_S + NSW*SSTR
    L_ML = L_O + 2048*NSW
    L_H = L_ML + 64
    L_G = L_H + 64
    L_OP = L_G + 64
    L_QP = L_OP + 128
    L_CNT = L_QP + 512
    L_WIN = L_CNT + 64
    LDS_BYTES = L_WIN + 1024
    NPT = (32-NS)*64
    NTK = -(-NPT // WT)
    L = []
    A = lambda s: L.append("  " + s)
    LB = lambda s: L.append(s + ":")
    C = lambda s: L.append("  ; " + s)
    DPP = "row_mask:0xf bank_mask:0xf"
    ACC, XR = 16, 32

    svc = [False]
    HL = ['sc1', 'sc0 sc1', 'sc1 nt'][hl]
    HS = ['sc1', 'sc0 sc1', 'sc1 nt'][hs]
    def stamp(k, force=False):
        if ptile and not svc[0] and not force and k not in (0, 7):
            return
        if prof: A(f"s_memrealtime s[{80+2*k}:{81+2*k}]")
    def dump_stamps(svc):
        if not prof: return
        A("s_waitcnt lgkmcnt(0)")
        A("s_lshl_b32 s56, s2, 3")
        A(f"s_add_u32 s56, s56, {'4' if svc else 's3'}")
        A("s_lshl_b32 s56, s56, 6")
        A(f"s_add_u32 s56, s56, {STAMP}")
        A("s_mov_b64 exec, 1")
        A("v_mov_b32 v60, 0")
        for q in range(4):
            for j in range(4):
                A(f"v_mov_b32 v{56+j}, s{80+4*q+j}")
            A(f"buffer_store_dwordx4 v[56:59], v60, s[40:43], s56 offen offset:{16*q}")
            A("s_nop 1")
        A("s_mov_b64 exec, -1")
    def srd(d, lo, hi, n):
        A(f"s_mov_b32 s{d}, s{lo}")
        A(f"s_mov_b32 s{d+1}, s{hi}")
        A(f"s_mov_b32 s{d+2}, {n}")
        A(f"s_mov_b32 s{d+3}, 0x00020000")
    def matvec_pairs(npairs, wbase, xbase, tail_ops):
        for u in range(npairs):
            A(f"s_waitcnt vmcnt({2*npairs - (2*u+2) + tail_ops})")
            w0 = wbase + 8*u; w1 = w0 + 4
            for k in range(4):
                A(f"v_perm_b32 v{52+k}, v{w1+k}, v{w0+k}, s60")
                A(f"v_perm_b32 v{56+k}, v{w1+k}, v{w0+k}, s61")
            for k in range(4):
                A(f"v_dot2c_f32_bf16 v{ACC+2*k}, v{52+k}, v{xbase+u}")
                A(f"v_dot2c_f32_bf16 v{ACC+2*k+1}, v{56+k}, v{xbase+u}")
        A("s_nop 3")
        for k in range(4):
            A(f"v_permlane32_swap_b32 v{ACC+k}, v{ACC+4+k}")
        A("s_nop 1")
        for k in range(4):
            A(f"v_add_f32 v{ACC+k}, v{ACC+k}, v{ACC+4+k}")
        A("s_nop 1")
        for k in range(2):
            A(f"v_permlane16_swap_b32 v{ACC+k}, v{ACC+2+k}")
        A("s_nop 1")
        for k in range(2):
            A(f"v_add_f32 v{ACC+k}, v{ACC+k}, v{ACC+2+k}")
        for rr in (8, 4):
            A("s_nop 1")
            for k in range(2):
                A(f"v_add_f32_dpp v{ACC+k}, v{ACC+k}, v{ACC+k} row_ror:{rr} {DPP}")
    def make_masks(t0, t1):
        C("v4..v7: lane e=l&7 owns bf16 element e of an 8-element A fragment")
        A(f"v_and_b32 v{t0}, 1, v1")
        A(f"v_lshlrev_b32 v{t0}, 4, v{t0}")
        A(f"v_mov_b32 v{t1}, 0xffff")
        A(f"v_lshlrev_b32 v{t1}, v{t0}, v{t1}")
        A(f"v_bfe_u32 v{t0}, v1, 1, 2")
        for k in range(4):
            A(f"v_cmp_eq_u32 vcc, {k}, v{t0}")
            A("s_nop 1")
            A(f"v_cndmask_b32 v{4+k}, 0, v{t1}, vcc")
    SLOT0 = 64
    def slot(sl, i): return SLOT0 + 32*sl + 4*i
    WQB = slot(5, 0)
    def wq_loads():
        A(f"buffer_load_dwordx4 v[{XR}:{XR+3}], v14, s[44:47], s58 offen")
        for t in range(8):
            A(f"buffer_load_dwordx4 v[{WQB+4*t}:{WQB+4*t+3}], v13, s[48:51], s57 offen")
            if t < 7: A("s_add_u32 s57, s57, 0x2000")
    def q_partial(tail):
        for k in range(8):
            A(f"v_mov_b32 v{ACC+k}, 0")
        A("s_lshl_b32 s58, s3, 7")
        A("v_add_u32 v13, s58, v12")
        matvec_pairs(4, WQB, XR, tail)
        A("s_mov_b64 exec, s[62:63]")
        A(f"ds_write_b64 v13, v[{ACC}:{ACC+1}] offset:{L_QP}")
        A("s_mov_b64 exec, -1")

    def out_setup():
        C("output side: this wave owns column block cb = role of 32 wo rows and 16 w2 rows")
        A("s_and_b32 s69, s31, 7")
        A("s_mul_i32 s69, s69, 14")
        A("s_lshr_b32 s67, s31, 3")
        A("s_add_u32 s69, s69, s67")
        A(f"s_mul_i32 s69, s69, {16*896}")
        A("s_cmp_lt_u32 s31, 112")
        A(f"s_cselect_b32 s46, {0 if skip & 4 else 448*1792*2}, 0")
        A("s_mov_b32 s44, s18")
        A("s_mov_b32 s45, s19")
        A("s_mov_b32 s47, 0x00020000")
        srd(48, 12, 13, 0 if skip & 8 else 4096*448*2)
        A("s_lshl_b32 s64, s3, 8")
        A("s_add_u32 s69, s69, s64")
        A(f"s_mul_i32 s67, s31, {32*896}")
        A("s_add_u32 s67, s67, s64")
        A(f"s_add_u32 s68, s67, {4*896}")
        A("s_lshl_b32 s64, s64, 1")
        A(f"s_mul_i32 s52, s2, {OB2S}")
        A("s_add_u32 s64, s64, s52")
        A(f"s_add_u32 s64, s64, {OB2}")
        A("s_cmp_eq_u32 s3, 3")
        A("s_cselect_b32 s52, 0x00ff00ff, -1")
        A("s_mov_b32 s53, 0")
        A("v_mul_u32_u24 v54, 3584, v9")
        A("v_lshl_add_u32 v54, v8, 4, v54         ; w2 row 16f + 4g + t")
        A("v_mul_u32_u24 v55, 7168, v9")
        A("v_lshl_add_u32 v55, v8, 4, v55")
        A("v_lshlrev_b32 v53, 5, v8")
        A("v_lshl_add_u32 v53, v9, 4, v53")
        A("v_lshlrev_b32 v52, 4, v9")
    def ffn_mfma():
        for t in range(4):
            c = "0" if t == 0 else "v[20:23]"
            A(f"v_mfma_f32_16x16x32_bf16 v[20:23], v[{24+4*t}:{27+4*t}], v[{160+4*t}:{163+4*t}], {c}")
    def out_loads():
        for t in range(4):
            A(f"buffer_load_dwordx4 v[{160+4*t}:{163+4*t}], v54, s[44:47], s69 offen offset:{t*896}")
        for t in range(8):
            A(f"buffer_load_dwordx4 v[{128+4*t}:{131+4*t}], v55, s[48:51], s{67 + (t>>2)} offen offset:{(t&3)*896}")
    L.append(HEADER.rstrip("\n"))
    L.append(f"; @launch grid=(256,1,1) block=({64*(NSW+1)},1,1) lds={ldsx or LDS_BYTES}")
    L.append('.amdgcn_target "amdgcn-amd-amdhsa--gfx950"')
    for line in DOC.strip("\n").splitlines():
        L.append("; " + line)
    L.append(".text")
    L.append(f".globl {NAME}_kernel")
    L.append(".p2align 8")
    L.append(f".type {NAME}_kernel,@function")
    LB(f"{NAME}_kernel")
    A("s_cmp_ge_u32 s2, 256")
    A("s_cbranch_scc1 L_end")
    if prof:
        for k in range(8):
            A(f"s_mov_b64 s[{80+2*k}:{81+2*k}], 0")
        stamp(0)
        A("s_waitcnt lgkmcnt(0)")
    if tfix:
        A("s_memrealtime s[92:93]")
        A("s_waitcnt lgkmcnt(0)")
    A("s_load_dwordx2 s[44:45], s[0:1], 0     ; x  -> SRD s[44:47]")
    A("s_load_dwordx2 s[48:49], s[0:1], 24")
    A("s_load_dwordx2 s[32:33], s[0:1], 8     ; K  -> SRD s[32:35]")
    A("s_load_dwordx2 s[40:41], s[0:1], 88")
    A("s_load_dwordx2 s[36:37], s[0:1], 16    ; V  -> SRD s[36:39]")
    A("s_load_dwordx16 s[4:19], s[0:1], 0")
    A("s_load_dwordx8 s[20:27], s[0:1], 64")
    A("v_lshrrev_b32 v2, 6, v0")
    A("v_and_b32 v1, 63, v0                   ; lane")
    A("v_readfirstlane_b32 s3, v2")
    A("s_sub_u32 s3, s3, 1")
    A(f"s_min_u32 s3, s3, {NSW}")
    A("s_lshr_b32 s28, s2, 4                  ; group")
    A("s_and_b32 s29, s2, 15                  ; s")
    A("s_lshr_b32 s30, s2, 7                  ; b")
    A("s_and_b32 s31, s2, 127                 ; i")
    C("s64 = q slice produced here: (i & ~15) + (s&7)*2 + (s>>3)")
    A("s_and_b32 s64, s29, 7")
    A("s_lshl_b32 s64, s64, 1")
    A("s_lshr_b32 s65, s29, 3")
    A("s_add_u32 s64, s64, s65")
    A("s_andn2_b32 s65, s31, 15")
    A("s_add_u32 s64, s64, s65")
    A("v_and_b32 v8, 15, v1")
    A("v_lshrrev_b32 v9, 4, v1                ; g")
    A("v_and_b32 v10, 3, v1")
    A("s_mov_b32 s42, 0x40000000")
    A("s_mov_b32 s43, 0x00020000")
    C("q partial: rows (role*14+rg)*8 + t, cols slice*32 + chunk*8")
    A("s_mul_i32 s58, s30, 896")
    A("s_mov_b32 s46, 1792")
    A("s_mov_b32 s47, 0x00020000")
    A(f"s_mov_b32 s50, {0 if skip & 1 else 448*4096*2}")
    A("s_mov_b32 s51, 0x00020000")
    A("v_lshrrev_b32 v14, 2, v1")
    A("s_mul_i32 s57, s3, 14")
    A("v_cmp_gt_u32 vcc, 14, v14")
    A("v_add_u32 v14, s57, v14")
    A("v_mov_b32 v13, 0x4000")
    A("v_cndmask_b32 v14, v13, v14, vcc")
    A("v_lshlrev_b32 v13, 16, v14")
    A("v_lshl_add_u32 v13, v10, 4, v13")
    A("v_lshlrev_b32 v14, 4, v14")
    A("s_lshl_b32 s57, s64, 6")
    A("v_lshlrev_b32 v12, 5, v10")
    A("v_lshl_add_u32 v12, v9, 3, v12         ; chunk*32 + g*8")
    A("s_mov_b32 s60, 0x05040100")
    A("s_mov_b32 s61, 0x07060302")
    A("s_mov_b32 s62, 0x000f000f")
    A("s_mov_b32 s63, 0x000f000f")
    A(f"s_cmp_lg_u32 s3, {NSW}")
    A("s_cbranch_scc1 L_stream")
    C("service: snapshot of the group's q box and of this WG's own stale tags")
    A("v_lshlrev_b32 v11, 5, v1")
    A("s_lshl_b32 s56, s28, 11")
    A("s_lshl_b32 s59, s30, 7")
    A("s_add_u32 s59, s59, s64")
    A("s_lshl_b32 s59, s59, 7")
    A("s_waitcnt lgkmcnt(0)")
    A(f"buffer_load_dwordx4 v[64:67], v11, s[40:43], s56 offen offset:{QBOX} sc1")
    A(f"buffer_load_dwordx4 v[68:71], v11, s[40:43], s56 offen offset:{QBOX+16} sc1")
    A(f"buffer_load_dwordx2 v[72:73], v12, s[40:43], s59 offen offset:{QBOX} sc1")
    if NSW == 3: wq_loads()
    A("s_branch L_service")

    LB("L_stream")
    A("s_mov_b32 s34, 0x10000000")
    A("s_mov_b32 s35, 0x00020000")
    A("s_mov_b32 s38, 0x10000000")
    A("s_mov_b32 s39, 0x00020000")
    C("tile n of this WG: group<<24 | (s&7)<<21 | (n>>2)<<16 | (s>>3)<<15 | (n&3)<<13")
    A("s_lshl_b32 s56, s28, 24")
    A("s_and_b32 s66, s29, 7")
    A("s_lshl_b32 s66, s66, 21")
    A("s_or_b32 s56, s56, s66")
    A("s_lshr_b32 s66, s29, 3")
    A("s_lshl_b32 s66, s66, 15")
    A("s_or_b32 s56, s56, s66")
    A("s_lshl_b32 s67, s3, 13")
    A("s_or_b32 s56, s56, s67")
    def tstep():
        if NSW == 4:
            A("s_add_u32 s57, s57, 0x10000")
        else:
            A("s_or_b32 s57, s57, 0x8000")
            A("s_add_u32 s57, s57, 0x6000")
            A("s_andn2_b32 s57, s57, 0x8000")
            A("s_or_b32 s57, s57, s66")
    A("v_lshrrev_b32 v3, 2, v8")
    A("v_lshlrev_b32 v2, 11, v3")
    A("v_lshl_add_u32 v2, v9, 6, v2")
    A("v_lshl_add_u32 v2, v10, 4, v2")
    A("v_lshlrev_b32 v3, 11, v9")
    A("v_lshl_add_u32 v3, v8, 4, v3")
    def issue(kind, sl, sreg, which=range(8)):
        srdn = "s[32:35]" if kind == 'k' else "s[36:39]"
        va = "v2" if kind == 'k' else "v3"
        for i in which:
            b = slot(sl, i)
            A(f"buffer_load_dwordx4 v[{b}:{b+3}], {va}, {srdn}, {sreg} offen offset:{256*i} nt")
    A("s_waitcnt lgkmcnt(0)")
    wq_loads()
    A("s_mov_b32 s57, s56")
    for t in range(early):
        issue('k', t, "s57")
        tstep()
    q_partial(8*early)
    A("s_waitcnt lgkmcnt(0)")
    A("s_barrier")
    stamp(7)
    for t in range(early, NPRE):
        A(f"s_waitcnt vmcnt({eh if t == early else PF2})")
        if ptile == 1: stamp(t, True)
        issue('k', t, "s57")
        tstep()
        if t == early:
            A("v_bfe_u32 v12, v1, 3, 1")
            A("v_lshlrev_b32 v13, 2, v12")
            A("v_add_u32 v13, v13, v9")
            A("v_lshlrev_b32 v12, 9, v12")
            A("v_lshl_add_u32 v12, v9, 6, v12")
            A("v_lshl_add_u32 v12, v10, 4, v12")
            A(f"s_mul_i32 s58, s3, {SSTR}")
            A(f"s_add_u32 s58, s58, {L_S}")
            A("v_lshlrev_b32 v13, 4, v13")
            A("v_add_u32 v13, s58, v13")
            make_masks(56, 57)
            A("v_mov_b32 v14, 0xff800000")
            A("v_mov_b32 v15, 0                       ; l")
            for r in range(8):
                A(f"v_mov_b32 v{24+r}, 0")
            A(f"s_mov_b32 s59, {f2u(C_SCALE):#x}")
    A("s_barrier")
    A(f"ds_read_b128 v[16:19], v12 offset:{L_Q}")
    A(f"ds_read_b128 v[20:23], v12 offset:{L_Q+256}")
    stamp(2)
    if ptile == 1: stamp(6, True)
    if ptile == 2: stamp(1, True)
    A("s_waitcnt lgkmcnt(0)")

    def kproc(sl, soff, mid=None, dyn=False, roll=False):
        for r in range(4):
            d = 32 + 4*r
            a0 = slot(sl, 2*r); a1 = slot(sl, 2*r+1)
            A(f"v_mfma_f32_16x16x32_bf16 v[{d}:{d+3}], v[{a0}:{a0+3}], v[16:19], 0")
            A(f"v_mfma_f32_16x16x32_bf16 v[{d}:{d+3}], v[{a1}:{a1+3}], v[20:23], v[{d}:{d+3}]")
            if roll: issue('k', sl, "s57", (2*r, 2*r+1))
        if roll:
            tstep(); A("s_nop 1")
        elif mid: mid()
        else: A("s_nop 4")
        for k in range(4):
            for r in range(4):
                d = 32 + 4*r + k
                if k == 0:
                    A(f"v_mov_b32_dpp v{48+r}, v{d} quad_perm:[0,0,0,0] {DPP}")
                else:
                    A(f"v_add_f32_dpp v{48+r}, v{d}, v{48+r} quad_perm:[{k},{k},{k},{k}] {DPP}")
        for r in range(4):
            A(f"v_cvt_pk_bf16_f32 v{48+r}, 0, v{48+r}")
        if dyn: return
        A("v_max3_f32 v14, v14, v48, v49")
        A("v_max3_f32 v14, v14, v50, v51")
        A(f"ds_write_b128 v13, v[48:51] offset:{soff}")
    def nk():
        issue('k', 0, "s57"); tstep()
    def nv():
        issue('v', 0, "s57"); tstep()
    def nv0():
        A("s_mov_b32 s57, s56"); nv()
    for t in range(NPRE):
        A(f"s_waitcnt vmcnt({8*((NPRE-1-t) + min(t, 1))})")
        kproc(t, t*128, nk if t == 0 else None)
    A(f"v_add_u32 v13, {NPRE*128}, v13")
    def kstep(nxt):
        A("s_waitcnt vmcnt(0)")
        if kip == 0 and nxt is nk: kproc(0, 0, None, False, True)
        elif kip <= 1: kproc(0, 0, nxt)
        else:
            kproc(0, 0); nxt()
    extra = 0
    if ptile == 2:
        stamp(2, True)
        for q in range(3, 7):
            for rep in range(3):
                kstep(nk)
                A("v_add_u32 v13, 128, v13")
                extra += 1
            stamp(q, True)
    A(f"s_mov_b32 s58, {NT - NPRE - 1 - extra}")
    LB("L_kloop")
    kstep(nk)
    A("v_add_u32 v13, 128, v13")
    A("s_sub_u32 s58, s58, 1")
    A("s_cmp_lg_u32 s58, 0")
    A("s_cbranch_scc1 L_kloop")
    kstep(nv0)
    stamp(3)
    C("true max of this wave's keys per head")
    A(f"v_subrev_u32 v13, {(NT-1)*128}, v13")
    A("v_mov_b32 v10, v14")
    A("s_nop 1")
    A("v_permlane32_swap_b32 v10, v14")
    A("s_nop 1")
    A("v_max_f32 v14, v10, v14")
    A("v_mov_b32 v10, v14")
    A("s_nop 1")
    A("v_permlane16_swap_b32 v10, v14")
    A("s_nop 1")
    A("v_max_f32 v14, v10, v14")
    A("v_mul_f32 v11, s59, v14")
    def pprep():
        for r in range(4):
            A(f"v_fma_f32 v{48+r}, v{48+r}, s59, -v11")
        for r in range(4):
            A(f"v_exp_f32 v{48+r}, v{48+r}")
        A("s_nop 0")
        A("v_add_f32 v56, v48, v49")
        A("v_add_f32 v57, v50, v51")
        for r in range(4):
            A(f"v_cvt_pk_bf16_f32 v{48+r}, v{48+r}, v{48+r}")
        A("v_add_f32 v56, v56, v57")
        A("v_add_f32 v15, v15, v56")
        for r in range(4):
            for k in range(4):
                A(f"v_and_b32 v{32+4*r+k}, v{48+r}, v{4+k}")
    def pv(sl, roll=False):
        for r in range(4):
            a = 32 + 4*r
            b0 = slot(sl, 2*r); b1 = slot(sl, 2*r+1)
            A(f"v_mfma_f32_16x16x32_bf16 v[24:27], v[{a}:{a+3}], v[{b0}:{b0+3}], v[24:27]")
            A(f"v_mfma_f32_16x16x32_bf16 v[28:31], v[{a}:{a+3}], v[{b1}:{b1+3}], v[28:31]")
            if roll: issue('v', sl, "s57", (2*r, 2*r+1))
        if roll: tstep()
    def req_ticket():
        A("v_mov_b32 v58, 0")
        A("v_mov_b32 v59, 1")
        A("s_mov_b64 exec, 1")
        A(f"ds_add_rtn_u32 v59, v58, v59 offset:{L_CNT}")
        A("s_mov_b64 exec, -1")
    def lookup_issue(wait_v=False):
        A("s_waitcnt lgkmcnt(0)")
        A("v_readfirstlane_b32 s76, v59")
        if WT == 4:
            A("s_andn2_b32 s77, s76, 3")
            A("s_and_b32 s76, s76, 3")
        else:
            A(f"s_mul_i32 s77, s76, {-(-65536 // WT)}")
            A("s_lshr_b32 s77, s77, 16")
            A(f"s_mul_i32 s79, s77, {WT}")
            A("s_sub_u32 s76, s76, s79")
            A("s_lshl_b32 s77, s77, 2")
        A("v_mov_b32 v58, s77")
        if wait_v: A("s_waitcnt vmcnt(0)")
        A(f"ds_read_b32 v60, v58 offset:{L_WIN}")
    def vstep(off, nxt, post=None, last=False):
        A(f"ds_read_b128 v[48:51], v13 offset:{off}")
        if vip <= 1:
            A("s_waitcnt lgkmcnt(0)")
            pprep()
            if last and pre: lookup_issue(True)
            else: A("s_waitcnt vmcnt(0)")
        else:
            A("s_waitcnt vmcnt(0) lgkmcnt(0)")
            pprep()
            A("s_nop 0")
        if vip == 0 and nxt: pv(0, True)
        else:
            pv(0)
            if nxt: nxt()
        if post: post()
    A(f"s_mov_b32 s58, {NT-2}")
    LB("L_vloop")
    vstep(0, nv)
    A("v_add_u32 v13, 128, v13")
    A("s_sub_u32 s58, s58, 1")
    A("s_cmp_lg_u32 s58, 0")
    A("s_cbranch_scc1 L_vloop")
    vstep(0, nv, req_ticket)
    C("LDS addresses of this wave's partial")
    A("v_lshrrev_b32 v61, 1, v9")
    A("v_lshlrev_b32 v61, 10, v61")
    A("v_lshl_add_u32 v61, v8, 5, v61")
    A("v_and_b32 v62, 1, v9")
    A("v_lshl_add_u32 v61, v62, 4, v61")
    A("s_lshl_b32 s58, s3, 11")
    A("v_add_u32 v61, s58, v61")
    A("s_lshl_b32 s58, s3, 4")
    A("v_and_b32 v62, 8, v1")
    A("v_add_u32 v62, s58, v62")
    assert vip <= 1 and NSW == 3
    out_setup()
    vstep(128, None, None, True)
    stamp(1)
    C("shared pool: sub-ticket (LDS) -> window ticket fetched by the service wave")
    if not pre:
        LB("L_next")
        lookup_issue()
    else:
        LB("L_next")
    A(f"s_mov_b32 s79, {spin_max}")
    LB("L_win")
    A("s_waitcnt lgkmcnt(0)")
    A("v_readfirstlane_b32 s77, v60")
    A("s_cmp_lg_u32 s77, -1")
    A("s_cbranch_scc1 L_win_ok")
    A("s_sleep 1")
    A(f"ds_read_b32 v60, v58 offset:{L_WIN}")
    A("s_sub_u32 s79, s79, 1")
    A("s_cmp_lg_u32 s79, 0")
    A("s_cbranch_scc1 L_win")
    LB("L_win_ok")
    A(f"s_cmp_ge_u32 s77, {NTK}")
    A("s_cbranch_scc1 L_dyn_done")
    A(f"s_mul_i32 s77, s77, {WT}")
    A("s_add_u32 s77, s77, s76")
    if NPT % WT:
        A(f"s_cmp_ge_u32 s77, {NPT}")
        A("s_cbranch_scc1 L_dyn_done")
    A("s_lshl_b32 s78, s28, 24")
    A("s_and_b32 s79, s77, 7")
    A("s_lshl_b32 s79, s79, 13")
    A("s_or_b32 s78, s78, s79")
    A("s_bfe_u32 s79, s77, 0x30003")
    A("s_lshl_b32 s79, s79, 21")
    A("s_or_b32 s78, s78, s79")
    A("s_lshr_b32 s79, s77, 6")
    A(f"s_add_u32 s79, s79, {NS}")
    A("s_lshl_b32 s79, s79, 16")
    A("s_or_b32 s78, s78, s79")
    issue('k', 2, "s78")
    if dseq:
        A("s_waitcnt vmcnt(0)")
        req_ticket()
        kproc(2, 0, lambda: issue('v', 3, "s78"), True)
    else:
        issue('v', 3, "s78")
        A("s_waitcnt vmcnt(8)")
        req_ticket()
        kproc(2, 0, None, True)
    A("v_max3_f32 v10, v48, v49, v50")
    A("v_max_f32 v10, v10, v51")
    A("v_cmp_gt_f32 vcc, v10, v14")
    A("s_cbranch_vccnz L_rare")
    LB("L_back")
    pprep()
    if pre: lookup_issue(True)
    else: A("s_waitcnt vmcnt(0)")
    pv(3)
    A("s_branch L_next")
    LB("L_rare")
    C("running max rose: rescale l and O")
    A("v_max_f32 v10, v10, v14")
    A("v_mov_b32 v56, v10")
    A("s_nop 1")
    A("v_permlane32_swap_b32 v56, v10")
    A("s_nop 1")
    A("v_max_f32 v10, v10, v56")
    A("v_mov_b32 v56, v10")
    A("s_nop 1")
    A("v_permlane16_swap_b32 v56, v10")
    A("s_nop 1")
    A("v_max_f32 v10, v10, v56")
    A("v_sub_f32 v56, v14, v10")
    A("v_mul_f32 v56, s59, v56")
    A("v_exp_f32 v56, v56")
    A("v_mov_b32 v14, v10")
    A("v_mul_f32 v11, s59, v10")
    A("v_mul_f32 v15, v15, v56")
    A("v_readlane_b32 s60, v56, 0")
    A("v_readlane_b32 s61, v56, 8")
    A("s_mov_b32 s62, 0")
    A("s_mov_b32 s63, -1")
    A("v_mov_b32 v57, s60")
    A("s_mov_b64 exec, s[62:63]")
    A("v_mov_b32 v57, s61")
    A("s_mov_b64 exec, -1")
    for r in range(8):
        A(f"v_mul_f32 v{24+r}, v57, v{24+r}")
    A("s_branch L_back")
    LB("L_dyn_done")
    C("wave partial -> LDS")
    A("v_mov_b32 v10, v15")
    A("s_nop 1")
    A("v_permlane32_swap_b32 v10, v15")
    A("s_nop 0")
    A("v_add_f32 v15, v10, v15")
    A("v_mov_b32 v10, v15")
    A(f"ds_write_b128 v61, v[24:27] offset:{L_O}")
    A(f"ds_write_b128 v61, v[28:31] offset:{L_O+512}")
    A("v_permlane16_swap_b32 v10, v15")
    A("s_nop 0")
    A("v_add_f32 v15, v10, v15")
    A("s_mov_b64 exec, 0x101")
    A(f"ds_write_b64 v62, v[14:15] offset:{L_ML}")
    A("s_mov_b64 exec, -1")
    stamp(4)
    if ob == 0: out_loads()
    A("s_waitcnt lgkmcnt(0)")
    A("s_barrier")
    if ob == 1: out_loads()
    C("FFN part of this column block (hidden slice and gate come through LDS)")
    A("v_mov_b32 v10, 0")
    A(f"ds_read_b128 v[80:83], v52 offset:{L_H}")
    A(f"ds_read_b64 v[2:3], v10 offset:{L_G}")
    A("v_lshlrev_b32 v52, 1, v52")
    A("s_waitcnt lgkmcnt(0)")
    for t in range(4):
        for k in range(4):
            A(f"v_and_b32 v{24+4*t+k}, v{80+t}, v{4+k}")
    if ob == 3: A("s_barrier")
    if ob >= 2: out_loads()
    if pp: A("s_waitcnt vmcnt(0)")
    LB("L_out")
    A("s_barrier")
    A(f"ds_read_b128 v[72:75], v52 offset:{L_OP}")
    A(f"ds_read_b128 v[76:79], v52 offset:{L_OP+16}")
    if not pp: A("s_waitcnt vmcnt(0)")
    ffn_mfma()
    A("s_waitcnt lgkmcnt(0)")
    def wo_mfma(tt):
        c = "0" if tt == 0 else "v[16:19]"
        A(f"v_mfma_f32_16x16x32_bf16 v[16:19], v[{88+4*tt}:{91+4*tt}], v[{128+4*tt}:{131+4*tt}], {c}")
    for t in range(8):
        for k in range(4):
            A(f"v_and_b32 v{88+4*t+k}, v{72+t}, v{4+k}")
        if t >= 1: wo_mfma(t-1)
    A("s_nop 0")
    wo_mfma(7)
    A("s_mov_b64 exec, s[52:53]")
    for k in range(4):
        A(f"v_mul_f32 v{20+k}, v3, v{20+k}")
    A("s_nop 2")
    for k in range(4):
        A(f"v_fmac_f32 v{20+k}, v2, v{16+k}")
    A(f"buffer_store_dwordx4 v[20:23], v53, s[40:43], s64 offen {HS}")
    A("s_mov_b64 exec, -1")
    if prof:
        A(f"s_cmp_eq_u32 s3, {NSW}")
        A("s_cbranch_scc1 L_svc_end")
    C("role 0 of WGs with i<28: sums the 128 y partials of 16 output columns")
    A("s_cmp_lg_u32 s3, 0")
    A("s_cbranch_scc1 L_fin")
    A("s_cmp_ge_u32 s31, 28")
    A("s_cbranch_scc1 L_fin")
    srd(44, 22, 23, 1792)
    A("v_lshrrev_b32 v10, 2, v1")
    A(f"v_mul_u32_u24 v10, {OB2S}, v10")
    A("v_and_b32 v11, 3, v1")
    A("v_lshl_add_u32 v10, v11, 4, v10")
    A(f"s_mul_i32 s58, s30, {128*OB2S}")
    A("s_lshl_b32 s61, s31, 6")
    A("s_add_u32 s58, s58, s61")
    A(f"s_add_u32 s58, s58, {OB2}")
    for t in range(8):
        A(f"s_add_u32 s{48+t}, s58, {t*16*OB2S}")
    A("v_lshrrev_b32 v14, 5, v1")
    A("v_lshlrev_b32 v14, 2, v14")
    A("v_lshl_add_u32 v14, v11, 3, v14")
    A("s_mul_i32 s58, s30, 896")
    A("s_lshl_b32 s61, s31, 5")
    A("s_add_u32 s58, s58, s61")
    A(f"s_mov_b32 s60, {spin_max}")
    for t in range(8):
        A(f"s_mov_b64 s[{64+2*t}:{65+2*t}], -1")
    LB("L_poll2")
    for t in range(8):
        A(f"s_mov_b64 exec, s[{64+2*t}:{65+2*t}]")
        A(f"s_cbranch_execz L_p2s{t}")
        A(f"buffer_load_dwordx4 v[{64+4*t}:{67+4*t}], v10, s[40:43], s{48+t} offen {HL}")
        LB(f"L_p2s{t}")
    A("s_mov_b64 exec, -1")
    A("s_waitcnt vmcnt(0)")
    for t in range(8):
        A(f"v_max3_u32 v{12+(t&1)}, v{64+4*t}, v{65+4*t}, v{66+4*t}")
        A(f"v_max_u32 v{12+(t&1)}, v{12+(t&1)}, v{67+4*t}")
        A(f"v_cmp_eq_u32 s[{64+2*t}:{65+2*t}], -1, v{12+(t&1)}")
    A("s_or_b64 s[62:63], s[64:65], s[66:67]")
    for t in range(2, 8):
        A(f"s_or_b64 s[62:63], s[62:63], s[{64+2*t}:{65+2*t}]")
    A("s_cbranch_scc0 L_poll2_done")
    A(f"s_sleep {s2}")
    A("s_sub_u32 s60, s60, 1")
    A("s_cmp_lg_u32 s60, 0")
    A("s_cbranch_scc1 L_poll2")
    LB("L_poll2_done")
    stamp(5)
    for step in (16, 8, 4):
        for k in range(step):
            A(f"v_add_f32 v{64+k}, v{64+k}, v{64+step+k}")
    A("s_nop 1")
    A("v_permlane32_swap_b32 v64, v66")
    A("v_permlane32_swap_b32 v65, v67")
    A("s_nop 1")
    A("v_add_f32 v64, v64, v66")
    A("v_add_f32 v65, v65, v67")
    A("v_mov_b32 v66, v64")
    A("v_mov_b32 v67, v65")
    A("s_nop 1")
    A("v_permlane16_swap_b32 v66, v64")
    A("v_permlane16_swap_b32 v67, v65")
    A("s_nop 1")
    A("v_add_f32 v64, v64, v66")
    A("v_add_f32 v65, v65, v67")
    A("s_nop 1")
    A(f"v_add_f32_dpp v64, v64, v64 row_ror:8 {DPP}")
    A(f"v_add_f32_dpp v65, v65, v65 row_ror:8 {DPP}")
    A("s_nop 1")
    A(f"v_add_f32_dpp v64, v64, v64 row_ror:4 {DPP}")
    A(f"v_add_f32_dpp v65, v65, v65 row_ror:4 {DPP}")
    A("s_mov_b32 s60, 15")
    A("s_mov_b32 s61, 15")
    A("v_cvt_pk_bf16_f32 v64, v64, v65")
    if sprobe:
        A("s_mov_b32 s92, 0")
        A("s_atomic_add s92, s[24:25], 0 glc")
        A("s_memrealtime s[90:91]")
        A("s_waitcnt lgkmcnt(0)")
        A("s_not_b32 s92, s92")
        A("s_sub_u32 s92, s90, s92")
        A("s_min_u32 s92, s92, 5000")
        A(f"s_mul_i32 s92, s92, {sprobe}")
        LB("L_sp2")
        A("s_memrealtime s[94:95]")
        A("s_waitcnt lgkmcnt(0)")
        A("s_sub_u32 s94, s94, s90")
        A("s_cmp_lt_u32 s94, s92")
        A("s_cbranch_scc1 L_sp2")
    if tfix:
        if tmode:
            A("s_mov_b32 s92, 0")
            A("s_atomic_add s92, s[24:25], 0 glc")
            A("s_waitcnt lgkmcnt(0)")
            if tmode == 1: A("s_not_b32 s92, s92")
        LB("L_tfix")
        A("s_memrealtime s[94:95]")
        A("s_waitcnt lgkmcnt(0)")
        A("s_sub_u32 s94, s94, s92")
        A(f"s_cmp_lt_u32 s94, {tfix*100}")
        A("s_cbranch_scc1 L_tfix")
    A("s_mov_b64 exec, s[60:61]")
    A(f"buffer_store_dword v64, v14, s[44:47], s58 offen {['', 'sc1', 'sc0 sc1', 'nt'][osc]}")
    A("s_mov_b64 exec, -1")
    stamp(6)
    LB("L_fin")
    dump_stamps(False)
    A("s_endpgm")

    LB("L_service")
    svc[0] = True
    for k in range(4):
        A(f"v_mov_b32 v{48+k}, -1")
    A("v_lshlrev_b32 v14, 4, v1")
    A("v_mov_b32 v15, 0")
    A(f"ds_write_b32 v15, v15 offset:{L_CNT}")
    A(f"ds_write_b128 v14, v[48:51] offset:{L_WIN}")
    def clears():
        C("own outboxes := sentinel, ticket counter := 0")
        for k in range(2):
            A(f"buffer_store_dwordx4 v[48:51], v14, s[40:43], s57 offen offset:{1024*k} sc1")
        A("buffer_store_dwordx4 v[48:51], v14, s[40:43], s58 offen sc1")
        A("s_mov_b32 s70, -1")
        A("s_mov_b32 s71, 0xffff")
        A("s_mov_b64 exec, s[70:71]")
        A("buffer_store_dwordx4 v[48:51], v14, s[40:43], s58 offen offset:1024 sc1")
        A("s_mov_b64 exec, 0xffff")
        A("buffer_store_dwordx4 v[48:51], v14, s[40:43], s57 offen offset:2048 sc1")
        A("s_mov_b64 exec, -1")
    if clr == 2:
        A(f"s_mul_i32 s57, s2, {OB1S}")
        A(f"s_add_u32 s57, s57, {OB1}")
        A(f"s_mul_i32 s58, s2, {OB2S}")
        A(f"s_add_u32 s58, s58, {OB2}")
        clears()
    if NSW == 3: q_partial(5 if clr == 2 else 0)
    A("s_mul_i32 s70, s30, 896")
    A("s_add_u32 s44, s4, s70")
    A("s_addc_u32 s45, s5, 0")
    A("s_mov_b32 s46, 896")
    A(f"s_mul_i32 s57, s2, {OB1S}")
    A(f"s_add_u32 s57, s57, {OB1}")
    A(f"s_mul_i32 s58, s2, {OB2S}")
    A(f"s_add_u32 s58, s58, {OB2}")
    stamp(1)
    A("s_waitcnt lgkmcnt(0)")
    A("s_barrier")
    for w in range(4):
        A(f"ds_read_b64 v[{16+2*w}:{17+2*w}], v12 offset:{L_QP+128*w}")
    if clr != 2: A("s_waitcnt vmcnt(0)")
    A("v_add_u32 v72, 0x10000, v72")
    A("v_add_u32 v73, 0x10000, v73")
    A("v_and_b32 v72, 0xffff0000, v72")
    A("v_and_b32 v73, 0xffff0000, v73")
    A("s_waitcnt lgkmcnt(0)")
    A("v_add_f32 v16, v16, v18")
    A("v_add_f32 v17, v17, v19")
    A("v_add_f32 v20, v20, v22")
    A("v_add_f32 v21, v21, v23")
    A("v_add_f32 v16, v16, v20")
    A("v_add_f32 v17, v17, v21")
    A("v_cvt_pk_bf16_f32 v16, v16, 0")
    A("v_cvt_pk_bf16_f32 v17, v17, 0")
    A("v_or_b32 v72, v72, v16")
    A("v_or_b32 v73, v73, v17")
    A("s_mov_b64 exec, s[62:63]")
    A(f"buffer_store_dwordx2 v[72:73], v12, s[40:43], s59 offen offset:{QBOX} sc1")
    A("s_mov_b64 exec, -1")
    stamp(2)
    if clr == 1: clears()
    A("s_cmp_lg_u32 s29, 0")
    A("s_cbranch_scc1 L_notinit")
    A("s_lshl_b32 s70, s28, 12")
    A(f"s_add_u32 s70, s70, {TICK}")
    A("s_mov_b64 exec, 1")
    A("buffer_store_dword v15, v15, s[40:43], s70 offen sc1")
    A("s_mov_b64 exec, -1")
    LB("L_notinit")
    A("s_lshl_b32 s65, s30, 6")
    A("s_add_u32 s65, s65, 128")
    A("s_mov_b32 s68, 1")
    A("s_mov_b32 s59, 0")
    A("s_mov_b32 s66, 0x10000")
    A("s_waitcnt vmcnt(0)")
    A("s_atomic_add s68, s[24:25], s65")
    LB("L_pollq")
    A(f"buffer_load_dwordx4 v[76:79], v11, s[40:43], s56 offen offset:{QBOX} sc1")
    A(f"buffer_load_dwordx4 v[80:83], v11, s[40:43], s56 offen offset:{QBOX+16} sc1")
    A("s_waitcnt vmcnt(0)")
    for k in range(8):
        A(f"v_xor_b32 v{84+k}, v{64+k}, v{76+k}")
    A("v_min3_u32 v84, v84, v85, v86")
    A("v_min3_u32 v87, v87, v88, v89")
    A("v_min3_u32 v84, v84, v90, v91")
    A("v_min_u32 v84, v84, v87")
    A("v_cmp_gt_u32 vcc, s66, v84")
    A("s_cbranch_vccz L_pollq_done")
    A("s_mov_b64 exec, vcc")
    A("s_add_u32 s59, s59, 1")
    A("s_sleep 1")
    A(f"s_cmp_lt_u32 s59, {fbk}")
    A("s_cbranch_scc1 L_pollq")
    C("the snapshot may have been taken after a producer wrote: once the whole batch arrived, the next read is valid")
    A("s_mov_b32 s70, 0")
    A("s_atomic_add s70, s[24:25], s65 glc")
    A("s_waitcnt lgkmcnt(0)")
    A("s_cmp_ge_u32 s70, 128")
    A("s_cselect_b32 s66, 0, s66")
    A(f"s_cmp_lt_u32 s59, {spin_max}")
    A("s_cbranch_scc1 L_pollq")
    LB("L_pollq_done")
    A("s_mov_b64 exec, -1")
    stamp(3)
    for k in range(4):
        A(f"v_perm_b32 v{48+k}, v{77+2*k}, v{76+2*k}, s60")
    A(f"ds_write_b128 v14, v[48:51] offset:{L_Q}")
    A("s_waitcnt lgkmcnt(0)")
    A("s_barrier")
    stamp(4)
    if tmode == 1:
        A("s_not_b32 s94, s92")
        A("s_atomic_umax s94, s[24:25], 0")
        A("s_waitcnt lgkmcnt(0)")
    if tmode == 2:
        A("s_mov_b32 s94, s92")
        A("s_atomic_umax s94, s[24:25], 0")
        A("s_waitcnt lgkmcnt(0)")
    if tmode == 3:
        A("s_memrealtime s[94:95]")
        A("s_waitcnt lgkmcnt(0)")
        A("s_atomic_umax s94, s[24:25], 0")
        A("s_waitcnt lgkmcnt(0)")
    C("background: FFN hidden slice, gate, output-side weights")
    make_masks(56, 57)
    A("s_and_b32 s66, s31, 7")
    A("s_mul_i32 s66, s66, 14")
    A("s_lshr_b32 s67, s31, 3")
    A("s_add_u32 s66, s66, s67")
    A("s_cmp_lt_u32 s31, 112")
    A(f"s_cselect_b32 s59, {448*1792*2}, 0")
    srd(48, 16, 17, 0 if skip & 2 else "s59")
    srd(36, 20, 21, 896)
    A("v_lshrrev_b32 v10, 1, v1")
    A("v_and_b32 v11, 1, v1")
    A("v_mul_u32_u24 v12, 28, v10")
    A(f"v_mul_u32_u24 v13, {14*3584}, v10")
    A("v_lshl_add_u32 v13, v11, 4, v13")
    A(f"buffer_load_dwordx4 v[{XR}:{XR+3}], v12, s[44:47], 0 offen")
    A(f"buffer_load_dwordx3 v[{XR+4}:{XR+6}], v12, s[44:47], 0 offen offset:16")
    A("buffer_load_dwordx4 v[40:43], v14, s[44:47], 0 offen")
    A("buffer_load_dwordx4 v[44:47], v14, s[36:39], 0 offen")
    A("s_lshl_b32 s56, s66, 5")
    cnt = [0]
    def thr():
        cnt[0] += 1
        if cnt[0] % SB == 0: A("s_waitcnt vmcnt(0)")
    for t in range(14):
        A(f"buffer_load_dwordx4 v[{64+4*t}:{67+4*t}], v13, s[48:51], s56 offen")
        A("s_add_u32 s56, s56, 3584")
        thr()
    for k in range(8):
        A(f"v_mov_b32 v{ACC+k}, 0")
    matvec_pairs(7, 64, XR, 0)
    A("s_nop 1")
    for k in range(2):
        A(f"v_add_f32_dpp v{ACC+k}, v{ACC+k}, v{ACC+k} row_ror:2 {DPP}")
    A(f"s_mov_b32 s59, {f2u(-math.log2(math.e)):#x}")
    for k in range(2):
        A(f"v_cvt_pk_bf16_f32 v{ACC+k}, 0, v{ACC+k}")
    for k in range(2):
        A(f"v_mul_f32 v{ACC+2+k}, s59, v{ACC+k}")
    for k in range(2):
        A(f"v_exp_f32 v{ACC+2+k}, v{ACC+2+k}")
    A("s_nop 0")
    for k in range(2):
        A(f"v_add_f32 v{ACC+2+k}, 1.0, v{ACC+2+k}")
    for k in range(2):
        A(f"v_rcp_f32 v{ACC+2+k}, v{ACC+2+k}")
    A("s_nop 0")
    for k in range(2):
        A(f"v_mul_f32 v{ACC+k}, v{ACC+k}, v{ACC+2+k}       ; silu")
    for k in range(2):
        A(f"v_cvt_pk_bf16_f32 v{ACC+k}, v{ACC+k}, v{ACC+k}")
    A("v_lshlrev_b32 v12, 5, v11")
    A("v_lshl_add_u32 v12, v9, 3, v12")
    A("s_mov_b32 s62, 0x00030003")
    A("s_mov_b32 s63, 0x00030003")
    A("s_mov_b64 exec, s[62:63]")
    A(f"ds_write_b64 v12, v[{ACC}:{ACC+1}] offset:{L_H}")
    A("s_mov_b64 exec, -1")
    C("gate")
    for k in range(4):
        A(f"v_lshlrev_b32 v52, 16, v{40+k}")
        A(f"v_lshlrev_b32 v53, 16, v{44+k}")
        A(f"v_and_b32 v54, 0xffff0000, v{40+k}")
        A(f"v_and_b32 v55, 0xffff0000, v{44+k}")
        A("v_mul_f32 v52, v52, v53")
        A("v_mul_f32 v54, v54, v55")
        A("v_cvt_pk_bf16_f32 v52, 0, v52")
        A("v_cvt_pk_bf16_f32 v54, 0, v54")
        if k == 0:
            A("v_add_f32 v56, v52, v54")
        else:
            A("v_add_f32 v56, v56, v52")
            A("v_add_f32 v56, v56, v54")
    for rr in (8, 4, 2, 1):
        A("s_nop 1")
        A(f"v_add_f32_dpp v56, v56, v56 row_ror:{rr} {DPP}")
    A("v_mov_b32 v57, v56")
    A("s_nop 1")
    A("v_permlane32_swap_b32 v57, v56")
    A("s_nop 1")
    A("v_add_f32 v56, v56, v57")
    A("v_mov_b32 v57, v56")
    A("s_nop 1")
    A("v_permlane16_swap_b32 v57, v56")
    A("s_nop 1")
    A("v_add_f32 v56, v56, v57")
    A("v_cvt_pk_bf16_f32 v56, 0, v56")
    A("v_mul_f32 v56, s59, v56")
    A("v_exp_f32 v56, v56")
    A("s_nop 0")
    A("v_add_f32 v56, 1.0, v56")
    A("v_rcp_f32 v56, v56")
    A("s_nop 0")
    A("v_cvt_pk_bf16_f32 v2, 0, v56           ; g")
    A("v_sub_f32 v3, 1.0, v2")
    A("v_cvt_pk_bf16_f32 v3, 0, v3            ; 1-g")
    A("v_mov_b32 v16, 0")
    A(f"ds_write_b64 v16, v[2:3] offset:{L_G}")
    out_setup()
    A(f"ds_read_b128 v[80:83], v52 offset:{L_H}")
    A("v_lshlrev_b32 v52, 1, v52")
    A("s_waitcnt lgkmcnt(0)")
    for t in range(4):
        for k in range(4):
            A(f"v_and_b32 v{24+4*t+k}, v{80+t}, v{4+k}")
    A(f"s_mov_b32 s59, {f2u(C_SCALE):#x}")
    A("v_lshlrev_b32 v10, 5, v1")
    A("v_lshrrev_b32 v11, 5, v1")
    A("v_lshlrev_b32 v11, 3, v11")
    A("v_lshrrev_b32 v15, 2, v1")
    A("v_mul_u32_u24 v15, 144, v15")
    A("v_and_b32 v12, 3, v1")
    A("v_lshl_add_u32 v15, v12, 5, v15")
    A(f"v_mul_u32_u24 v12, {OB1S}, v8")
    A("v_lshl_add_u32 v13, v9, 5, v12")
    A(f"s_mul_i32 s60, s28, {16*OB1S}")
    A("s_mul_i32 s61, s29, 144")
    A("s_add_u32 s60, s60, s61")
    A(f"s_add_u32 s60, s60, {OB1}")
    A("v_lshlrev_b32 v14, 5, v9")
    if pp:
        for k in range(8):
            A(f"v_mov_b32 v{120+k}, -1")
    A("s_lshl_b32 s54, 0x00010001, s29")
    A("s_mov_b32 s55, s54")
    A("s_lshl_b32 s61, s29, 4")
    A("v_lshl_add_u32 v21, v9, 2, s61")
    def warm_tail():
        C("address-translation warm-up for the pages the tail touches (values unused)")
        A("s_mov_b64 exec, 1")
        A("buffer_load_dword v200, v16, s[32:35], 0 offen")
        A("buffer_load_dword v201, v16, s[40:43], s64 offen sc1")
        A("buffer_load_dword v202, v16, s[40:43], s57 offen sc1")
        A("buffer_load_dword v203, v54, s[44:47], s69 offen")
        A("buffer_load_dword v204, v55, s[48:51], s67 offen")
        A("s_mov_b64 exec, -1")
    if wkv:
        C("translations of the group's K/V pages (pool tiles, first V tile)")
        srd(32, 6, 7, "0x10000000")
        srd(36, 8, 9, "0x10000000")
        A("v_lshlrev_b32 v17, 21, v1")
        A("s_lshl_b32 s70, s28, 24")
        A(f"s_add_u32 s70, s70, {NS << 16}")
        A("s_mov_b64 exec, 0xff")
        A("buffer_load_dword v205, v17, s[32:35], s70 offen nt")
        A("buffer_load_dword v206, v17, s[36:39], s70 offen nt")
        A("s_mov_b64 exec, -1")
    srd(32, 22, 23, 1792)
    if wout >= 3: warm_tail()
    C("whole batch arrived => every outbox read later was cleared and the ticket counters are set")
    A(f"s_mov_b32 s56, {spin_max}")
    LB("L_pollg")
    A("s_mov_b32 s70, 0")
    A("s_atomic_add s70, s[24:25], s65 glc")
    A("s_waitcnt lgkmcnt(0)")
    A("s_cmp_ge_u32 s70, 128")
    A("s_cbranch_scc1 L_pollg_done")
    A("s_sleep 16")
    A("s_sub_u32 s56, s56, 1")
    A("s_cmp_lg_u32 s56, 0")
    A("s_cbranch_scc1 L_pollg")
    LB("L_pollg_done")
    C("window-ticket server")
    A("s_lshl_b32 s74, s28, 12")
    A(f"s_add_u32 s74, s74, {TICK}")
    A("s_add_u32 s74, s26, s74")
    A("s_addc_u32 s75, s27, 0")
    A("s_mov_b32 s71, 0")
    A("s_mov_b32 s72, 0")
    A("v_mov_b32 v16, 0")
    A(f"s_mov_b32 s56, {spin_max*8}")
    LB("L_tk")
    A(f"ds_read_b32 v17, v16 offset:{L_CNT}")
    A("s_waitcnt lgkmcnt(0)")
    A("v_readfirstlane_b32 s70, v17")
    A("s_cmp_gt_u32 s70, s72")
    A("s_cbranch_scc1 L_tk_fetch")
    A("s_sleep 2")
    A("s_sub_u32 s56, s56, 1")
    A("s_cmp_lg_u32 s56, 0")
    A("s_cbranch_scc1 L_tk")
    A("s_branch L_tk_done")
    LB("L_tk_fetch")
    A("s_mov_b32 s70, 1")
    A("s_atomic_add s70, s[74:75], 0 glc")
    A("v_mov_b32 v17, s71")
    A("s_waitcnt lgkmcnt(0)")
    A("v_mov_b32 v20, s70")
    A("s_add_u32 s71, s71, 4")
    A(f"s_add_u32 s72, s72, {WT}")
    A(f"ds_write_b32 v17, v20 offset:{L_WIN}")
    A(f"s_cmp_lt_u32 s70, {NTK - RET}")
    A("s_cbranch_scc1 L_tk")
    C("one of the last tickets (or none): this WG asks for nothing more")
    A("v_mov_b32 v17, s71")
    A("v_mov_b32 v20, 0x10000")
    for k in range(-(-NSW // WT)):
        A(f"ds_write_b32 v17, v20 offset:{L_WIN + 4*k}")
    LB("L_tk_done")
    if wout: warm_tail()
    if warm:
        C("touch the pages of the output-side weights (address translation only)")
        A("s_mov_b64 exec, 1")
        A("buffer_load_dword v17, v54, s[44:47], s69 offen")
        A("buffer_load_dword v20, v55, s[48:51], s67 offen")
        A("s_mov_b64 exec, -1")
    A("s_waitcnt lgkmcnt(0)")
    A("s_barrier")
    stamp(5)
    if prof: A("s_waitcnt lgkmcnt(0)")
    C("WG combine")
    for w in range(NSW):
        A(f"ds_read_b64 v[{56+2*w}:{57+2*w}], v11 offset:{L_ML+16*w}")
    for w in range(NSW):
        A(f"ds_read_b128 v[{64+8*w}:{67+8*w}], v10 offset:{L_O+2048*w}")
        A(f"ds_read_b128 v[{68+8*w}:{71+8*w}], v10 offset:{L_O+2048*w+16}")
    A(f"s_waitcnt lgkmcnt({2*NSW})")
    A("v_max3_f32 v16, v56, v58, v60")
    if NSW == 4: A("v_max_f32 v16, v16, v62")
    for w in range(NSW):
        A(f"v_sub_f32 v{56+2*w}, v{56+2*w}, v16")
    for w in range(NSW):
        A(f"v_mul_f32 v{56+2*w}, s59, v{56+2*w}")
    for w in range(NSW):
        A(f"v_exp_f32 v{56+2*w}, v{56+2*w}")
    A("s_nop 0")
    A("v_mul_f32 v17, v56, v57")
    for w in range(1, NSW):
        A(f"v_fmac_f32 v17, v{56+2*w}, v{57+2*w}")
    A("s_waitcnt lgkmcnt(0)")
    for k in range(8):
        A(f"v_mul_f32 v{64+k}, v56, v{64+k}")
    for w in range(1, NSW):
        for k in range(8):
            A(f"v_fmac_f32 v{64+k}, v{56+2*w}, v{64+8*w+k}")
    A(f"buffer_store_dwordx4 v[64:67], v15, s[40:43], s57 offen {HS}")
    A(f"buffer_store_dwordx4 v[68:71], v15, s[40:43], s57 offen offset:16 {HS}")
    A("s_mov_b32 s62, 0x11111111")
    A("s_mov_b32 s63, 0x11111111")
    A("s_mov_b64 exec, s[62:63]")
    A(f"buffer_store_dwordx2 v[16:17], v15, s[40:43], s57 offen offset:128 {HS}")
    A("s_mov_b64 exec, -1")
    def poll1_loads():
        A(f"buffer_load_dwordx4 v[72:75], v13, s[40:43], s60 offen {HL}")
        A(f"buffer_load_dwordx4 v[76:79], v13, s[40:43], s60 offen offset:16 {HL}")
        A(f"buffer_load_dwordx2 v[80:81], v12, s[40:43], s60 offen offset:128 {HL}")
    if ob == 3: A("s_barrier")
    A(f"s_mov_b32 s56, {spin_max}")
    if pp:
        C("weights first; then overlapped polls that all land in v120..127/v86..87; a register copy is what is checked and used")
        A("s_mov_b32 s62, 0x00ff00ff")
        A("s_mov_b32 s63, 0x00ff00ff")
        A("s_mov_b64 exec, s[62:63]")
        out_loads()
        A("s_mov_b64 exec, -1")
        for k in range(8):
            A(f"ds_bpermute_b32 v{72+k}, v21, v{64+k}")
        A("ds_bpermute_b32 v80, v21, v16")
        A("ds_bpermute_b32 v81, v21, v17")
        A("v_mov_b32 v86, -1")
        A("v_mov_b32 v87, -1")
        A("s_andn2_b64 exec, -1, s[54:55]")
        LB("L_poll1")
        A(f"buffer_load_dwordx4 v[120:123], v13, s[40:43], s60 offen {HL}")
        A(f"buffer_load_dwordx4 v[124:127], v13, s[40:43], s60 offen offset:16 {HL}")
        A(f"buffer_load_dwordx2 v[86:87], v12, s[40:43], s60 offen offset:128 {HL}")
        A(f"s_sleep {pp}")
        A(f"s_waitcnt vmcnt({ppc}) lgkmcnt(0)")
        for k in range(8):
            A(f"v_mov_b32 v{72+k}, v{120+k}")
        A("v_mov_b32 v80, v86")
        A("v_mov_b32 v81, v87")
        A("v_max3_u32 v18, v72, v73, v74")
        A("v_max3_u32 v19, v75, v76, v77")
        A("v_max3_u32 v18, v18, v78, v79")
        A("v_max3_u32 v19, v19, v80, v81")
        A("v_max_u32 v18, v18, v19")
        A("v_cmp_eq_u32 vcc, -1, v18")
        A("s_cbranch_vccz L_poll1_done")
        A("s_mov_b64 exec, vcc")
        A("s_sub_u32 s56, s56, 1")
        A("s_cmp_lg_u32 s56, 0")
        A("s_cbranch_scc1 L_poll1")
        A("s_waitcnt vmcnt(0)")
    else:
        if own:
            C("own packet comes from registers; the other 15 are polled")
            A("s_andn2_b64 exec, -1, s[54:55]")
            poll1_loads()
            if m3:
                A("s_mov_b32 s62, 0x00ff00ff")
                A("s_mov_b32 s63, 0x00ff00ff")
                A("s_mov_b64 exec, s[62:63]")
            else:
                A("s_mov_b64 exec, -1")
            out_loads()
            A("s_mov_b64 exec, -1")
            for k in range(8):
                A(f"ds_bpermute_b32 v{88+k}, v21, v{64+k}")
            A("ds_bpermute_b32 v96, v21, v16")
            A("ds_bpermute_b32 v97, v21, v17")
            A("s_mov_b64 exec, s[54:55]")
            A("s_waitcnt vmcnt(12) lgkmcnt(0)")
            for k in range(10):
                A(f"v_mov_b32 v{72+k}, v{88+k}")
            A("s_mov_b64 exec, -1")
            A("s_branch L_poll1_chk")
        else:
            out_loads()
        LB("L_poll1")
        poll1_loads()
        A("s_waitcnt vmcnt(0)")
        LB("L_poll1_chk")
        A("v_max3_u32 v18, v72, v73, v74")
        A("v_max3_u32 v19, v75, v76, v77")
        A("v_max3_u32 v18, v18, v78, v79")
        A("v_max3_u32 v19, v19, v80, v81")
        A("v_max_u32 v18, v18, v19")
        A("v_cmp_eq_u32 vcc, -1, v18")
        A("s_cbranch_vccz L_poll1_done")
        A("s_mov_b64 exec, vcc")
        A("s_bcnt1_i32_b64 s61, vcc")
        A(f"s_cmp_le_u32 s61, {lt}")
        A("s_cbranch_scc1 L_poll1_fast")
        A(f"s_sleep {ls}")
        LB("L_poll1_fast")
        A("s_sleep 1")
        A("s_sub_u32 s56, s56, 1")
        A("s_cmp_lg_u32 s56, 0")
        A("s_cbranch_scc1 L_poll1")
    LB("L_poll1_done")
    A("s_mov_b64 exec, -1")
    stamp(6)
    if sprobe:
        A("s_cmp_lg_u32 s29, 0")
        A("s_cbranch_scc1 L_sp1")
        A("s_memrealtime s[94:95]")
        A("s_waitcnt lgkmcnt(0)")
        A("s_not_b32 s94, s94")
        A("s_atomic_umax s94, s[24:25], 0")
        LB("L_sp1")
    C("group combine over the 16 producers, then 32 rows of wo")
    A(f"v_max_f32_dpp v18, v80, v80 row_ror:8 {DPP}")
    for rr in (4, 2, 1):
        A("s_nop 1")
        A(f"v_max_f32_dpp v18, v18, v18 row_ror:{rr} {DPP}")
    A("v_sub_f32 v18, v80, v18")
    A("v_mul_f32 v18, s59, v18")
    A("v_exp_f32 v18, v18")
    A("s_nop 0")
    A("v_mul_f32 v80, v18, v81")
    for k in range(8):
        A(f"v_mul_f32 v{72+k}, v18, v{72+k}")
    for rr in (8, 4, 2, 1):
        for k in (8, 0, 1, 2, 3, 4, 5, 6, 7):
            A(f"v_add_f32_dpp v{72+k}, v{72+k}, v{72+k} row_ror:{rr} {DPP}")
    A("v_rcp_f32 v80, v80")
    A("s_nop 0")
    for k in range(8):
        A(f"v_mul_f32 v{72+k}, v80, v{72+k}")
    for k in range(8):
        A(f"v_cvt_pk_bf16_f32 v{72+k}, v{72+k}, v{72+k}")
    A("s_mov_b32 s62, 0x00010001")
    A("s_mov_b32 s63, 0x00010001")
    A("s_mov_b64 exec, s[62:63]")
    A(f"ds_write_b128 v14, v[72:75] offset:{L_OP}")
    A(f"ds_write_b128 v14, v[76:79] offset:{L_OP+16}")
    A("s_mov_b64 exec, -1")
    A("s_waitcnt lgkmcnt(0)")
    A("s_branch L_out")
    LB("L_svc_end")
    stamp(7)
    dump_stamps(True)
    LB("L_end")
    A("s_endpgm")
    L.append('.section .rodata,"a"')
    L.append(".p2align 6")
    L.append(f".amdhsa_kernel {NAME}_kernel")
    L.append("  .amdhsa_next_free_vgpr 256")
    L.append("  .amdhsa_next_free_sgpr 96")
    L.append("  .amdhsa_accum_offset 256")
    L.append("  .amdhsa_group_segment_fixed_size 0")
    L.append("  .amdhsa_kernarg_size 96")
    L.append("  .amdhsa_user_sgpr_count 2")
    L.append("  .amdhsa_user_sgpr_kernarg_segment_ptr 1")
    L.append("  .amdhsa_system_sgpr_workgroup_id_x 1")
    L.append(".end_amdhsa_kernel")
    return "\n".join(L) + "\n"


if __name__ == "__main__":
    out = sys.argv[1]
    kw = {}
    for a in sys.argv[2:]:
        k, v = a.split("=")
        kw[k] = int(v)
    open(out, "w").write(gen(**kw))
```

```python
import sys, math, struct

NAME = "gated_mix__gqa_block_cached__dense_activation_silu__decode"
HEADER = open("cdna_kernels/" + NAME + ".s.ref").read().split("; Override launch")[0]

QBOX = 0x0
TICK = 0x10000
OB1 = 0x40000
OB1S = 2304
OB2 = 0x200000
OB2S = 1792
STAMP = 0x20000000
C_SCALE = (1.0 / 16.0) * math.log2(math.e)
def f2u(x): return struct.unpack("<I", struct.pack("<f", x))[0]


DOC = """
One launch, 256 workgroups (group = wg>>4 = batch*8 + kv head, 16 workgroups per group), 4 waves each.
 * wave 0 (service): hands q slices round the group through d_ws (16-bit tags = stale tag + 1, arrival
   counter in d_debug as fall-back), computes a 16-unit FFN slice and the gate, serves window tickets,
   merges the wave partials, merges the 16 partials of a 32-row slice of o and multiplies it with wo.
 * waves 1-3 stream K (scores -> LDS, true max), then V, straight into MFMA operand registers:
   QK^T uses 64-byte row pieces as A rows and picks the diagonal blocks, P.V puts p on the diagonal of
   A so that row-major V is the B operand as loaded.  The last 1/16 of the keys is a shared pool handed
   out by tickets (running max with rescale) so that all workgroups finish together.
 * partial results travel through sentinel-cleared boxes in d_ws (sc1 stores / sc1 loads).
"""

def gen(prof=0, NSW=3, NS=30, NPRE=6, kip=1, vip=1, RET=8, fbk=4, SB=8, spin_max=200000, ldsx=0, dseq=0, PF2=0, WT=3, skip=0, ptile=0, early=1, eh=0, hl=0, hs=0, ls=16, lt=28, s2=2, pre=1, tfix=0, osc=1, tmode=0, ob=3, warm=0, own=1, m3=1, sprobe=0, pp=0, ppc=30, clr=1, wout=3, wkv=0, wsel=1):
    NT = NS*4 // NSW
    assert NS*4 % NSW == 0 and NSW in (3, 4)
    SSTR = NT*128
    L_Q = 0
    L_S = 1024
    L_O = L_S + NSW*SSTR
    L_ML = L_O + 2048*NSW
    L_H = L_ML + 64
    L_G = L_H + 64
    L_OP = L_G + 64
    L_QP = L_OP + 128
    L_CNT = L_QP + 512
    L_WIN = L_CNT + 64
    LDS_BYTES = L_WIN + 1024
    NPT = (32-NS)*64
    NTK = -(-NPT // WT)
    L = []
    A = lambda s: L.append("  " + s)
    LB = lambda s: L.append(s + ":")
    C = lambda s: L.append("  ; " + s)
    DPP = "row_mask:0xf bank_mask:0xf"
    ACC, XR = 16, 32

    svc = [False]
    HL = ['sc1', 'sc0 sc1', 'sc1 nt'][hl]
    HS = ['sc1', 'sc0 sc1', 'sc1 nt'][hs]
    def stamp(k, force=False):
        if ptile and not svc[0] and not force and k not in (0, 7):
            return
        if prof: A(f"s_memrealtime s[{80+2*k}:{81+2*k}]")
    def dump_stamps(svc):
        if not prof: return
        A("s_waitcnt lgkmcnt(0)")
        A("s_lshl_b32 s56, s2, 3")
        A(f"s_add_u32 s56, s56, {'4' if svc else 's3'}")
        A("s_lshl_b32 s56, s56, 6")
        A(f"s_add_u32 s56, s56, {STAMP}")
        A("s_mov_b64 exec, 1")
        A("v_mov_b32 v60, 0")
        for q in range(4):
            for j in range(4):
                A(f"v_mov_b32 v{56+j}, s{80+4*q+j}")
            A(f"buffer_store_dwordx4 v[56:59], v60, s[40:43], s56 offen offset:{16*q}")
            A("s_nop 1")
        A("s_mov_b64 exec, -1")
    def srd(d, lo, hi, n):
        A(f"s_mov_b32 s{d}, s{lo}")
        A(f"s_mov_b32 s{d+1}, s{hi}")
        A(f"s_mov_b32 s{d+2}, {n}")
        A(f"s_mov_b32 s{d+3}, 0x00020000")
    def matvec_pairs(npairs, wbase, xbase, tail_ops):
        for u in range(npairs):
            A(f"s_waitcnt vmcnt({2*npairs - (2*u+2) + tail_ops})")
            w0 = wbase + 8*u; w1 = w0 + 4
            for k in range(4):
                A(f"v_perm_b32 v{52+k}, v{w1+k}, v{w0+k}, s60")
                A(f"v_perm_b32 v{56+k}, v{w1+k}, v{w0+k}, s61")
            for k in range(4):
                A(f"v_dot2c_f32_bf16 v{ACC+2*k}, v{52+k}, v{xbase+u}")
                A(f"v_dot2c_f32_bf16 v{ACC+2*k+1}, v{56+k}, v{xbase+u}")
        A("s_nop 3")
        for k in range(4):
            A(f"v_permlane32_swap_b32 v{ACC+k}, v{ACC+4+k}")
        A("s_nop 1")
        for k in range(4):
            A(f"v_add_f32 v{ACC+k}, v{ACC+k}, v{ACC+4+k}")
        A("s_nop 1")
        for k in range(2):
            A(f"v_permlane16_swap_b32 v{ACC+k}, v{ACC+2+k}")
        A("s_nop 1")
        for k in range(2):
            A(f"v_add_f32 v{ACC+k}, v{ACC+k}, v{ACC+2+k}")
        for rr in (8, 4):
            A("s_nop 1")
            for k in range(2):
                A(f"v_add_f32_dpp v{ACC+k}, v{ACC+k}, v{ACC+k} row_ror:{rr} {DPP}")
    def make_masks(t0, t1):
        C("v4..v7: lane e=l&7 owns bf16 element e of an 8-element A fragment")
        A(f"v_and_b32 v{t0}, 1, v1")
        A(f"v_lshlrev_b32 v{t0}, 4, v{t0}")
        A(f"v_mov_b32 v{t1}, 0xffff")
        A(f"v_lshlrev_b32 v{t1}, v{t0}, v{t1}")
        A(f"v_bfe_u32 v{t0}, v1, 1, 2")
        for k in range(4):
            A(f"v_cmp_eq_u32 vcc, {k}, v{t0}")
            A("s_nop 1")
            A(f"v_cndmask_b32 v{4+k}, 0, v{t1}, vcc")
    SLOT0 = 64
    def slot(sl, i): return SLOT0 + 32*sl + 4*i
    WQB = slot(5, 0)
    def wq_loads():
        A(f"buffer_load_dwordx4 v[{XR}:{XR+3}], v14, s[44:47], s58 offen")
        for t in range(8):
            A(f"buffer_load_dwordx4 v[{WQB+4*t}:{WQB+4*t+3}], v13, s[48:51], s57 offen")
            if t < 7: A("s_add_u32 s57, s57, 0x2000")
    def q_partial(tail):
        for k in range(8):
            A(f"v_mov_b32 v{ACC+k}, 0")
        A("s_lshl_b32 s58, s3, 7")
        A("v_add_u32 v13, s58, v12")
        matvec_pairs(4, WQB, XR, tail)
        A("s_mov_b64 exec, s[62:63]")
        A(f"ds_write_b64 v13, v[{ACC}:{ACC+1}] offset:{L_QP}")
        A("s_mov_b64 exec, -1")

    def out_setup():
        C("output side: this wave owns column block cb = role of 32 wo rows and 16 w2 rows")
        A("s_and_b32 s69, s31, 7")
        A("s_mul_i32 s69, s69, 14")
        A("s_lshr_b32 s67, s31, 3")
        A("s_add_u32 s69, s69, s67")
        A(f"s_mul_i32 s69, s69, {16*896}")
        A("s_cmp_lt_u32 s31, 112")
        A(f"s_cselect_b32 s46, {0 if skip & 4 else 448*1792*2}, 0")
        A("s_mov_b32 s44, s18")
        A("s_mov_b32 s45, s19")
        A("s_mov_b32 s47, 0x00020000")
        srd(48, 12, 13, 0 if skip & 8 else 4096*448*2)
        A("s_lshl_b32 s64, s3, 8")
        A("s_add_u32 s69, s69, s64")
        A(f"s_mul_i32 s67, s31, {32*896}")
        A("s_add_u32 s67, s67, s64")
        A(f"s_add_u32 s68, s67, {4*896}")
        A("s_lshl_b32 s64, s64, 1")
        A(f"s_mul_i32 s52, s2, {OB2S}")
        A("s_add_u32 s64, s64, s52")
        A(f"s_add_u32 s64, s64, {OB2}")
        A("s_cmp_eq_u32 s3, 3")
        A("s_cselect_b32 s52, 0x00ff00ff, -1")
        A("s_mov_b32 s53, 0")
        A("v_mul_u32_u24 v54, 3584, v9")
        A("v_lshl_add_u32 v54, v8, 4, v54         ; w2 row 16f + 4g + t")
        A("v_mul_u32_u24 v55, 7168, v9")
        A("v_lshl_add_u32 v55, v8, 4, v55")
        A("v_lshlrev_b32 v53, 5, v8")
        A("v_lshl_add_u32 v53, v9, 4, v53")
        A("v_lshlrev_b32 v52, 4, v9")
    def ffn_mfma():
        for t in range(4):
            c = "0" if t == 0 else "v[20:23]"
            A(f"v_mfma_f32_16x16x32_bf16 v[20:23], v[{24+4*t}:{27+4*t}], v[{160+4*t}:{163+4*t}], {c}")
    def out_loads():
        for t in range(4):
            A(f"buffer_load_dwordx4 v[{160+4*t}:{163+4*t}], v54, s[44:47], s69 offen offset:{t*896}")
        for t in range(8):
            A(f"buffer_load_dwordx4 v[{128+4*t}:{131+4*t}], v55, s[48:51], s{67 + (t>>2)} offen offset:{(t&3)*896}")
    L.append(HEADER.rstrip("\n"))
    L.append(f"; @launch grid=(256,1,1) block=({64*(NSW+1)},1,1) lds={ldsx or LDS_BYTES}")
    L.append('.amdgcn_target "amdgcn-amd-amdhsa--gfx950"')
    for line in DOC.strip("\n").splitlines():
        L.append("; " + line)
    L.append(".text")
    L.append(f".globl {NAME}_kernel")
    L.append(".p2align 8")
    L.append(f".type {NAME}_kernel,@function")
    LB(f"{NAME}_kernel")
    A("s_cmp_ge_u32 s2, 256")
    A("s_cbranch_scc1 L_end")
    if prof:
        for k in range(8):
            A(f"s_mov_b64 s[{80+2*k}:{81+2*k}], 0")
        stamp(0)
        A("s_waitcnt lgkmcnt(0)")
    if tfix:
        A("s_memrealtime s[92:93]")
        A("s_waitcnt lgkmcnt(0)")
    A("s_load_dwordx2 s[44:45], s[0:1], 0     ; x  -> SRD s[44:47]")
    A("s_load_dwordx2 s[48:49], s[0:1], 24")
    A("s_load_dwordx2 s[32:33], s[0:1], 8     ; K  -> SRD s[32:35]")
    A("s_load_dwordx2 s[40:41], s[0:1], 88")
    A("s_load_dwordx2 s[36:37], s[0:1], 16    ; V  -> SRD s[36:39]")
    A("s_load_dwordx16 s[4:19], s[0:1], 0")
    A("s_load_dwordx8 s[20:27], s[0:1], 64")
    A("v_lshrrev_b32 v2, 6, v0")
    A("v_and_b32 v1, 63, v0                   ; lane")
    A("v_readfirstlane_b32 s3, v2")
    A("s_sub_u32 s3, s3, 1")
    A(f"s_min_u32 s3, s3, {NSW}")
    A("s_lshr_b32 s28, s2, 4                  ; group")
    A("s_and_b32 s29, s2, 15                  ; s")
    A("s_lshr_b32 s30, s2, 7                  ; b")
    A("s_and_b32 s31, s2, 127                 ; i")
    C("s64 = q slice produced here: (i & ~15) + (s&7)*2 + (s>>3)")
    A("s_and_b32 s64, s29, 7")
    A("s_lshl_b32 s64, s64, 1")
    A("s_lshr_b32 s65, s29, 3")
    A("s_add_u32 s64, s64, s65")
    A("s_andn2_b32 s65, s31, 15")
    A("s_add_u32 s64, s64, s65")
    A("v_and_b32 v8, 15, v1")
    A("v_lshrrev_b32 v9, 4, v1                ; g")
    A("v_and_b32 v10, 3, v1")
    A("s_mov_b32 s42, 0x40000000")
    A("s_mov_b32 s43, 0x00020000")
    C("q partial: rows (role*14+rg)*8 + t, cols slice*32 + chunk*8")
    A("s_mul_i32 s58, s30, 896")
    A("s_mov_b32 s46, 1792")
    A("s_mov_b32 s47, 0x00020000")
    A(f"s_mov_b32 s50, {0 if skip & 1 else 448*4096*2}")
    A("s_mov_b32 s51, 0x00020000")
    A("v_lshrrev_b32 v14, 2, v1")
    A("s_mul_i32 s57, s3, 14")
    A("v_cmp_gt_u32 vcc, 14, v14")
    A("v_add_u32 v14, s57, v14")
    A("v_mov_b32 v13, 0x4000")
    A("v_cndmask_b32 v14, v13, v14, vcc")
    A("v_lshlrev_b32 v13, 16, v14")
    A("v_lshl_add_u32 v13, v10, 4, v13")
    A("v_lshlrev_b32 v14, 4, v14")
    A("s_lshl_b32 s57, s64, 6")
    A("v_lshlrev_b32 v12, 5, v10")
    A("v_lshl_add_u32 v12, v9, 3, v12         ; chunk*32 + g*8")
    A("s_mov_b32 s60, 0x05040100")
    A("s_mov_b32 s61, 0x07060302")
    A("s_mov_b32 s62, 0x000f000f")
    A("s_mov_b32 s63, 0x000f000f")
    A(f"s_cmp_lg_u32 s3, {NSW}")
    A("s_cbranch_scc1 L_stream")
    C("service: snapshot of the group's q box and of this WG's own stale tags")
    A("v_lshlrev_b32 v11, 5, v1")
    A("s_lshl_b32 s56, s28, 11")
    A("s_lshl_b32 s59, s30, 7")
    A("s_add_u32 s59, s59, s64")
    A("s_lshl_b32 s59, s59, 7")
    A("s_waitcnt lgkmcnt(0)")
    A(f"buffer_load_dwordx4 v[64:67], v11, s[40:43], s56 offen offset:{QBOX} sc1")
    A(f"buffer_load_dwordx4 v[68:71], v11, s[40:43], s56 offen offset:{QBOX+16} sc1")
    A(f"buffer_load_dwordx2 v[72:73], v12, s[40:43], s59 offen offset:{QBOX} sc1")
    if NSW == 3: wq_loads()
    A("s_branch L_service")

    LB("L_stream")
    A("s_mov_b32 s34, 0x10000000")
    A("s_mov_b32 s35, 0x00020000")
    A("s_mov_b32 s38, 0x10000000")
    A("s_mov_b32 s39, 0x00020000")
    C("tile n of this WG: group<<24 | (s&7)<<21 | (n>>2)<<16 | (s>>3)<<15 | (n&3)<<13")
    A("s_lshl_b32 s56, s28, 24")
    A("s_and_b32 s66, s29, 7")
    A("s_lshl_b32 s66, s66, 21")
    A("s_or_b32 s56, s56, s66")
    A("s_lshr_b32 s66, s29, 3")
    A("s_lshl_b32 s66, s66, 15")
    A("s_or_b32 s56, s56, s66")
    A("s_lshl_b32 s67, s3, 13")
    A("s_or_b32 s56, s56, s67")
    def tstep():
        if NSW == 4:
            A("s_add_u32 s57, s57, 0x10000")
        else:
            A("s_or_b32 s57, s57, 0x8000")
            A("s_add_u32 s57, s57, 0x6000")
            A("s_andn2_b32 s57, s57, 0x8000")
            A("s_or_b32 s57, s57, s66")
    A("v_lshrrev_b32 v3, 2, v8")
    A("v_lshlrev_b32 v2, 11, v3")
    A("v_lshl_add_u32 v2, v9, 6, v2")
    A("v_lshl_add_u32 v2, v10, 4, v2")
    A("v_lshlrev_b32 v3, 11, v9")
    A("v_lshl_add_u32 v3, v8, 4, v3")
    def issue(kind, sl, sreg, which=range(8)):
        srdn = "s[32:35]" if kind == 'k' else "s[36:39]"
        va = "v2" if kind == 'k' else "v3"
        for i in which:
            b = slot(sl, i)
            A(f"buffer_load_dwordx4 v[{b}:{b+3}], {va}, {srdn}, {sreg} offen offset:{256*i} nt")
    A("s_waitcnt lgkmcnt(0)")
    wq_loads()
    A("s_mov_b32 s57, s56")
    for t in range(early):
        issue('k', t, "s57")
        tstep()
    q_partial(8*early)
    A("s_waitcnt lgkmcnt(0)")
    A("s_barrier")
    stamp(7)
    for t in range(early, NPRE):
        A(f"s_waitcnt vmcnt({eh if t == early else PF2})")
        if ptile == 1: stamp(t, True)
        issue('k', t, "s57")
        tstep()
        if t == early:
            A("v_bfe_u32 v12, v1, 3, 1")
            A("v_lshlrev_b32 v13, 2, v12")
            A("v_add_u32 v13, v13, v9")
            A("v_lshlrev_b32 v12, 9, v12")
            A("v_lshl_add_u32 v12, v9, 6, v12")
            A("v_lshl_add_u32 v12, v10, 4, v12")
            A(f"s_mul_i32 s58, s3, {SSTR}")
            A(f"s_add_u32 s58, s58, {L_S}")
            A("v_lshlrev_b32 v13, 4, v13")
            A("v_add_u32 v13, s58, v13")
            make_masks(56, 57)
            A("v_mov_b32 v14, 0xff800000")
            A("v_mov_b32 v15, 0                       ; l")
            for r in range(8):
                A(f"v_mov_b32 v{24+r}, 0")
            A(f"s_mov_b32 s59, {f2u(C_SCALE):#x}")
    A("s_barrier")
    A(f"ds_read_b128 v[16:19], v12 offset:{L_Q}")
    A(f"ds_read_b128 v[20:23], v12 offset:{L_Q+256}")
    stamp(2)
    if ptile == 1: stamp(6, True)
    if ptile == 2: stamp(1, True)
    A("s_waitcnt lgkmcnt(0)")

    def kproc(sl, soff, mid=None, dyn=False, roll=False):
        for r in range(4):
            d = 32 + 4*r
            a0 = slot(sl, 2*r); a1 = slot(sl, 2*r+1)
            A(f"v_mfma_f32_16x16x32_bf16 v[{d}:{d+3}], v[{a0}:{a0+3}], v[16:19], 0")
            A(f"v_mfma_f32_16x16x32_bf16 v[{d}:{d+3}], v[{a1}:{a1+3}], v[20:23], v[{d}:{d+3}]")
            if roll: issue('k', sl, "s57", (2*r, 2*r+1))
        if roll:
            tstep(); A("s_nop 1")
        elif mid: mid()
        else: A("s_nop 4")
        for k in range(4):
            for r in range(4):
                d = 32 + 4*r + k
                if k == 0:
                    A(f"v_mov_b32_dpp v{48+r}, v{d} quad_perm:[0,0,0,0] {DPP}")
                else:
                    A(f"v_add_f32_dpp v{48+r}, v{d}, v{48+r} quad_perm:[{k},{k},{k},{k}] {DPP}")
        for r in range(4):
            A(f"v_cvt_pk_bf16_f32 v{48+r}, 0, v{48+r}")
        if dyn: return
        A("v_max3_f32 v14, v14, v48, v49")
        A("v_max3_f32 v14, v14, v50, v51")
        A(f"ds_write_b128 v13, v[48:51] offset:{soff}")
    def nk():
        issue('k', 0, "s57"); tstep()
    def nv():
        issue('v', 0, "s57"); tstep()
    def nv0():
        A("s_mov_b32 s57, s56"); nv()
    for t in range(NPRE):
        A(f"s_waitcnt vmcnt({8*((NPRE-1-t) + min(t, 1))})")
        kproc(t, t*128, nk if t == 0 else None)
    A(f"v_add_u32 v13, {NPRE*128}, v13")
    def kstep(nxt):
        A("s_waitcnt vmcnt(0)")
        if kip == 0 and nxt is nk: kproc(0, 0, None, False, True)
        elif kip <= 1: kproc(0, 0, nxt)
        else:
            kproc(0, 0); nxt()
    extra = 0
    if ptile == 2:
        stamp(2, True)
        for q in range(3, 7):
            for rep in range(3):
                kstep(nk)
                A("v_add_u32 v13, 128, v13")
                extra += 1
            stamp(q, True)
    A(f"s_mov_b32 s58, {NT - NPRE - 1 - extra}")
    LB("L_kloop")
    kstep(nk)
    A("v_add_u32 v13, 128, v13")
    A("s_sub_u32 s58, s58, 1")
    A("s_cmp_lg_u32 s58, 0")
    A("s_cbranch_scc1 L_kloop")
    kstep(nv0)
    stamp(3)
    C("true max of this wave's keys per head")
    A(f"v_subrev_u32 v13, {(NT-1)*128}, v13")
    A("v_mov_b32 v10, v14")
    A("s_nop 1")
    A("v_permlane32_swap_b32 v10, v14")
    A("s_nop 1")
    A("v_max_f32 v14, v10, v14")
    A("v_mov_b32 v10, v14")
    A("s_nop 1")
    A("v_permlane16_swap_b32 v10, v14")
    A("s_nop 1")
    A("v_max_f32 v14, v10, v14")
    A("v_mul_f32 v11, s59, v14")
    def pprep():
        for r in range(4):
            A(f"v_fma_f32 v{48+r}, v{48+r}, s59, -v11")
        for r in range(4):
            A(f"v_exp_f32 v{48+r}, v{48+r}")
        A("s_nop 0")
        A("v_add_f32 v56, v48, v49")
        A("v_add_f32 v57, v50, v51")
        for r in range(4):
            A(f"v_cvt_pk_bf16_f32 v{48+r}, v{48+r}, v{48+r}")
        A("v_add_f32 v56, v56, v57")
        A("v_add_f32 v15, v15, v56")
        for r in range(4):
            for k in range(4):
                A(f"v_and_b32 v{32+4*r+k}, v{48+r}, v{4+k}")
    def pv(sl, roll=False):
        for r in range(4):
            a = 32 + 4*r
            b0 = slot(sl, 2*r); b1 = slot(sl, 2*r+1)
            A(f"v_mfma_f32_16x16x32_bf16 v[24:27], v[{a}:{a+3}], v[{b0}:{b0+3}], v[24:27]")
            A(f"v_mfma_f32_16x16x32_bf16 v[28:31], v[{a}:{a+3}], v[{b1}:{b1+3}], v[28:31]")
            if roll: issue('v', sl, "s57", (2*r, 2*r+1))
        if roll: tstep()
    def req_ticket():
        A("v_mov_b32 v58, 0")
        A("v_mov_b32 v59, 1")
        A("s_mov_b64 exec, 1")
        A(f"ds_add_rtn_u32 v59, v58, v59 offset:{L_CNT}")
        A("s_mov_b64 exec, -1")
    def lookup_issue(wait_v=False):
        A("s_waitcnt lgkmcnt(0)")
        A("v_readfirstlane_b32 s76, v59")
        if WT == 4:
            A("s_andn2_b32 s77, s76, 3")
            A("s_and_b32 s76, s76, 3")
        else:
            A(f"s_mul_i32 s77, s76, {-(-65536 // WT)}")
            A("s_lshr_b32 s77, s77, 16")
            A(f"s_mul_i32 s79, s77, {WT}")
            A("s_sub_u32 s76, s76, s79")
            A("s_lshl_b32 s77, s77, 2")
        A("v_mov_b32 v58, s77")
        if wait_v: A("s_waitcnt vmcnt(0)")
        A(f"ds_read_b32 v60, v58 offset:{L_WIN}")
    def vstep(off, nxt, post=None, last=False):
        A(f"ds_read_b128 v[48:51], v13 offset:{off}")
        if vip <= 1:
            A("s_waitcnt lgkmcnt(0)")
            pprep()
            if last and pre: lookup_issue(True)
            else: A("s_waitcnt vmcnt(0)")
        else:
            A("s_waitcnt vmcnt(0) lgkmcnt(0)")
            pprep()
            A("s_nop 0")
        if vip == 0 and nxt: pv(0, True)
        else:
            pv(0)
            if nxt: nxt()
        if post: post()
    A(f"s_mov_b32 s58, {NT-2}")
    LB("L_vloop")
    vstep(0, nv)
    A("v_add_u32 v13, 128, v13")
    A("s_sub_u32 s58, s58, 1")
    A("s_cmp_lg_u32 s58, 0")
    A("s_cbranch_scc1 L_vloop")
    vstep(0, nv, req_ticket)
    C("LDS addresses of this wave's partial")
    A("v_lshrrev_b32 v61, 1, v9")
    A("v_lshlrev_b32 v61, 10, v61")
    A("v_lshl_add_u32 v61, v8, 5, v61")
    A("v_and_b32 v62, 1, v9")
    A("v_lshl_add_u32 v61, v62, 4, v61")
    A("s_lshl_b32 s58, s3, 11")
    A("v_add_u32 v61, s58, v61")
    A("s_lshl_b32 s58, s3, 4")
    A("v_and_b32 v62, 8, v1")
    A("v_add_u32 v62, s58, v62")
    assert vip <= 1 and NSW == 3
    out_setup()
    vstep(128, None, None, True)
    stamp(1)
    C("shared pool: sub-ticket (LDS) -> window ticket fetched by the service wave")
    if not pre:
        LB("L_next")
        lookup_issue()
    else:
        LB("L_next")
    A(f"s_mov_b32 s79, {spin_max}")
    LB("L_win")
    A("s_waitcnt lgkmcnt(0)")
    A("v_readfirstlane_b32 s77, v60")
    A("s_cmp_lg_u32 s77, -1")
    A("s_cbranch_scc1 L_win_ok")
    A("s_sleep 1")
    A(f"ds_read_b32 v60, v58 offset:{L_WIN}")
    A("s_sub_u32 s79, s79, 1")
    A("s_cmp_lg_u32 s79, 0")
    A("s_cbranch_scc1 L_win")
    LB("L_win_ok")
    A(f"s_cmp_ge_u32 s77, {NTK}")
    A("s_cbranch_scc1 L_dyn_done")
    A(f"s_mul_i32 s77, s77, {WT}")
    A("s_add_u32 s77, s77, s76")
    if NPT % WT:
        A(f"s_cmp_ge_u32 s77, {NPT}")
        A("s_cbranch_scc1 L_dyn_done")
    A("s_lshl_b32 s78, s28, 24")
    A("s_and_b32 s79, s77, 7")
    A("s_lshl_b32 s79, s79, 13")
    A("s_or_b32 s78, s78, s79")
    A("s_bfe_u32 s79, s77, 0x30003")
    A("s_lshl_b32 s79, s79, 21")
    A("s_or_b32 s78, s78, s79")
    A("s_lshr_b32 s79, s77, 6")
    A(f"s_add_u32 s79, s79, {NS}")
    A("s_lshl_b32 s79, s79, 16")
    A("s_or_b32 s78, s78, s79")
    issue('k', 2, "s78")
    if dseq:
        A("s_waitcnt vmcnt(0)")
        req_ticket()
        kproc(2, 0, lambda: issue('v', 3, "s78"), True)
    else:
        issue('v', 3, "s78")
        A("s_waitcnt vmcnt(8)")
        req_ticket()
        kproc(2, 0, None, True)
    A("v_max3_f32 v10, v48, v49, v50")
    A("v_max_f32 v10, v10, v51")
    A("v_cmp_gt_f32 vcc, v10, v14")
    A("s_cbranch_vccnz L_rare")
    LB("L_back")
    pprep()
    if pre: lookup_issue(True)
    else: A("s_waitcnt vmcnt(0)")
    pv(3)
    A("s_branch L_next")
    LB("L_rare")
    C("running max rose: rescale l and O")
    A("v_max_f32 v10, v10, v14")
    A("v_mov_b32 v56, v10")
    A("s_nop 1")
    A("v_permlane32_swap_b32 v56, v10")
    A("s_nop 1")
    A("v_max_f32 v10, v10, v56")
    A("v_mov_b32 v56, v10")
    A("s_nop 1")
    A("v_permlane16_swap_b32 v56, v10")
    A("s_nop 1")
    A("v_max_f32 v10, v10, v56")
    A("v_sub_f32 v56, v14, v10")
    A("v_mul_f32 v56, s59, v56")
    A("v_exp_f32 v56, v56")
    A("v_mov_b32 v14, v10")
    A("v_mul_f32 v11, s59, v10")
    A("v_mul_f32 v15, v15, v56")
    A("v_readlane_b32 s60, v56, 0")
    A("v_readlane_b32 s61, v56, 8")
    A("s_mov_b32 s62, 0")
    A("s_mov_b32 s63, -1")
    A("v_mov_b32 v57, s60")
    A("s_mov_b64 exec, s[62:63]")
    A("v_mov_b32 v57, s61")
    A("s_mov_b64 exec, -1")
    for r in range(8):
        A(f"v_mul_f32 v{24+r}, v57, v{24+r}")
    A("s_branch L_back")
    LB("L_dyn_done")
    C("wave partial -> LDS")
    A("v_mov_b32 v10, v15")
    A("s_nop 1")
    A("v_permlane32_swap_b32 v10, v15")
    A("s_nop 0")
    A("v_add_f32 v15, v10, v15")
    A("v_mov_b32 v10, v15")
    A(f"ds_write_b128 v61, v[24:27] offset:{L_O}")
    A(f"ds_write_b128 v61, v[28:31] offset:{L_O+512}")
    A("v_permlane16_swap_b32 v10, v15")
    A("s_nop 0")
    A("v_add_f32 v15, v10, v15")
    A("s_mov_b64 exec, 0x101")
    A(f"ds_write_b64 v62, v[14:15] offset:{L_ML}")
    A("s_mov_b64 exec, -1")
    stamp(4)
    if ob == 0: out_loads()
    A("s_waitcnt lgkmcnt(0)")
    A("s_barrier")
    if ob == 1: out_loads()
    C("FFN part of this column block (hidden slice and gate come through LDS)")
    A("v_mov_b32 v10, 0")
    A(f"ds_read_b128 v[80:83], v52 offset:{L_H}")
    A(f"ds_read_b64 v[2:3], v10 offset:{L_G}")
    A("v_lshlrev_b32 v52, 1, v52")
    A("s_waitcnt lgkmcnt(0)")
    for t in range(4):
        for k in range(4):
            A(f"v_and_b32 v{24+4*t+k}, v{80+t}, v{4+k}")
    if ob == 3: A("s_barrier")
    if ob >= 2: out_loads()
    if pp: A("s_waitcnt vmcnt(0)")
    LB("L_out")
    A("s_barrier")
    A(f"ds_read_b128 v[72:75], v52 offset:{L_OP}")
    A(f"ds_read_b128 v[76:79], v52 offset:{L_OP+16}")
    if not pp: A("s_waitcnt vmcnt(0)")
    ffn_mfma()
    A("s_waitcnt lgkmcnt(0)")
    def wo_mfma(tt):
        c = "0" if tt == 0 else "v[16:19]"
        A(f"v_mfma_f32_16x16x32_bf16 v[16:19], v[{88+4*tt}:{91+4*tt}], v[{128+4*tt}:{131+4*tt}], {c}")
    for t in range(8):
        for k in range(4):
            A(f"v_and_b32 v{88+4*t+k}, v{72+t}, v{4+k}")
        if t >= 1: wo_mfma(t-1)
    A("s_nop 0")
    wo_mfma(7)
    A("s_mov_b64 exec, s[52:53]")
    for k in range(4):
        A(f"v_mul_f32 v{20+k}, v3, v{20+k}")
    A("s_nop 2")
    for k in range(4):
        A(f"v_fmac_f32 v{20+k}, v2, v{16+k}")
    A(f"buffer_store_dwordx4 v[20:23], v53, s[40:43], s64 offen {HS}")
    A("s_mov_b64 exec, -1")
    if prof:
        A(f"s_cmp_eq_u32 s3, {NSW}")
        A("s_cbranch_scc1 L_svc_end")
    C("role 0 of WGs with i<28: sums the 128 y partials of 16 output columns")
    A("s_cmp_lg_u32 s3, 0")
    A("s_cbranch_scc1 L_fin")
    A("s_cmp_ge_u32 s31, 28")
    A("s_cbranch_scc1 L_fin")
    srd(44, 22, 23, 1792)
    A("v_lshrrev_b32 v10, 2, v1")
    A(f"v_mul_u32_u24 v10, {OB2S}, v10")
    A("v_and_b32 v11, 3, v1")
    A("v_lshl_add_u32 v10, v11, 4, v10")
    A(f"s_mul_i32 s58, s30, {128*OB2S}")
    A("s_lshl_b32 s61, s31, 6")
    A("s_add_u32 s58, s58, s61")
    A(f"s_add_u32 s58, s58, {OB2}")
    for t in range(8):
        A(f"s_add_u32 s{48+t}, s58, {t*16*OB2S}")
    A("v_lshrrev_b32 v14, 5, v1")
    A("v_lshlrev_b32 v14, 2, v14")
    A("v_lshl_add_u32 v14, v11, 3, v14")
    A("s_mul_i32 s58, s30, 896")
    A("s_lshl_b32 s61, s31, 5")
    A("s_add_u32 s58, s58, s61")
    A(f"s_mov_b32 s60, {spin_max}")
    for t in range(8):
        A(f"s_mov_b64 s[{64+2*t}:{65+2*t}], -1")
    LB("L_poll2")
    for t in range(8):
        A(f"s_mov_b64 exec, s[{64+2*t}:{65+2*t}]")
        A(f"s_cbranch_execz L_p2s{t}")
        A(f"buffer_load_dwordx4 v[{64+4*t}:{67+4*t}], v10, s[40:43], s{48+t} offen {HL}")
        LB(f"L_p2s{t}")
    A("s_mov_b64 exec, -1")
    A("s_waitcnt vmcnt(0)")
    for t in range(8):
        A(f"v_max3_u32 v{12+(t&1)}, v{64+4*t}, v{65+4*t}, v{66+4*t}")
        A(f"v_max_u32 v{12+(t&1)}, v{12+(t&1)}, v{67+4*t}")
        A(f"v_cmp_eq_u32 s[{64+2*t}:{65+2*t}], -1, v{12+(t&1)}")
    A("s_or_b64 s[62:63], s[64:65], s[66:67]")
    for t in range(2, 8):
        A(f"s_or_b64 s[62:63], s[62:63], s[{64+2*t}:{65+2*t}]")
    A("s_cbranch_scc0 L_poll2_done")
    A(f"s_sleep {s2}")
    A("s_sub_u32 s60, s60, 1")
    A("s_cmp_lg_u32 s60, 0")
    A("s_cbranch_scc1 L_poll2")
    LB("L_poll2_done")
    stamp(5)
    for step in (16, 8, 4):
        for k in range(step):
            A(f"v_add_f32 v{64+k}, v{64+k}, v{64+step+k}")
    A("s_nop 1")
    A("v_permlane32_swap_b32 v64, v66")
    A("v_permlane32_swap_b32 v65, v67")
    A("s_nop 1")
    A("v_add_f32 v64, v64, v66")
    A("v_add_f32 v65, v65, v67")
    A("v_mov_b32 v66, v64")
    A("v_mov_b32 v67, v65")
    A("s_nop 1")
    A("v_permlane16_swap_b32 v66, v64")
    A("v_permlane16_swap_b32 v67, v65")
    A("s_nop 1")
    A("v_add_f32 v64, v64, v66")
    A("v_add_f32 v65, v65, v67")
    A("s_nop 1")
    A(f"v_add_f32_dpp v64, v64, v64 row_ror:8 {DPP}")
    A(f"v_add_f32_dpp v65, v65, v65 row_ror:8 {DPP}")
    A("s_nop 1")
    A(f"v_add_f32_dpp v64, v64, v64 row_ror:4 {DPP}")
    A(f"v_add_f32_dpp v65, v65, v65 row_ror:4 {DPP}")
    A("s_mov_b32 s60, 15")
    A("s_mov_b32 s61, 15")
    A("v_cvt_pk_bf16_f32 v64, v64, v65")
    if sprobe:
        A("s_mov_b32 s92, 0")
        A("s_atomic_add s92, s[24:25], 0 glc")
        A("s_memrealtime s[90:91]")
        A("s_waitcnt lgkmcnt(0)")
        A("s_not_b32 s92, s92")
        A("s_sub_u32 s92, s90, s92")
        A("s_min_u32 s92, s92, 5000")
        A(f"s_mul_i32 s92, s92, {sprobe}")
        LB("L_sp2")
        A("s_memrealtime s[94:95]")
        A("s_waitcnt lgkmcnt(0)")
        A("s_sub_u32 s94, s94, s90")
        A("s_cmp_lt_u32 s94, s92")
        A("s_cbranch_scc1 L_sp2")
    if tfix:
        if tmode:
            A("s_mov_b32 s92, 0")
            A("s_atomic_add s92, s[24:25], 0 glc")
            A("s_waitcnt lgkmcnt(0)")
            if tmode == 1: A("s_not_b32 s92, s92")
        LB("L_tfix")
        A("s_memrealtime s[94:95]")
        A("s_waitcnt lgkmcnt(0)")
        A("s_sub_u32 s94, s94, s92")
        A(f"s_cmp_lt_u32 s94, {tfix*100}")
        A("s_cbranch_scc1 L_tfix")
    A("s_mov_b64 exec, s[60:61]")
    A(f"buffer_store_dword v64, v14, s[44:47], s58 offen {['', 'sc1', 'sc0 sc1', 'nt'][osc]}")
    A("s_mov_b64 exec, -1")
    stamp(6)
    LB("L_fin")
    dump_stamps(False)
    A("s_endpgm")

    LB("L_service")
    svc[0] = True
    for k in range(4):
        A(f"v_mov_b32 v{48+k}, -1")
    A("v_lshlrev_b32 v14, 4, v1")
    A("v_mov_b32 v15, 0")
    A(f"ds_write_b32 v15, v15 offset:{L_CNT}")
    A(f"ds_write_b128 v14, v[48:51] offset:{L_WIN}")
    def clears():
        C("own outboxes := sentinel, ticket counter := 0")
        for k in range(2):
            A(f"buffer_store_dwordx4 v[48:51], v14, s[40:43], s57 offen offset:{1024*k} sc1")
        A("buffer_store_dwordx4 v[48:51], v14, s[40:43], s58 offen sc1")
        A("s_mov_b32 s70, -1")
        A("s_mov_b32 s71, 0xffff")
        A("s_mov_b64 exec, s[70:71]")
        A("buffer_store_dwordx4 v[48:51], v14, s[40:43], s58 offen offset:1024 sc1")
        A("s_mov_b64 exec, 0xffff")
        A("buffer_store_dwordx4 v[48:51], v14, s[40:43], s57 offen offset:2048 sc1")
        A("s_mov_b64 exec, -1")
    if clr == 2:
        A(f"s_mul_i32 s57, s2, {OB1S}")
        A(f"s_add_u32 s57, s57, {OB1}")
        A(f"s_mul_i32 s58, s2, {OB2S}")
        A(f"s_add_u32 s58, s58, {OB2}")
        clears()
    if NSW == 3: q_partial(5 if clr == 2 else 0)
    A("s_mul_i32 s70, s30, 896")
    A("s_add_u32 s44, s4, s70")
    A("s_addc_u32 s45, s5, 0")
    A("s_mov_b32 s46, 896")
    A(f"s_mul_i32 s57, s2, {OB1S}")
    A(f"s_add_u32 s57, s57, {OB1}")
    A(f"s_mul_i32 s58, s2, {OB2S}")
    A(f"s_add_u32 s58, s58, {OB2}")
    stamp(1)
    A("s_waitcnt lgkmcnt(0)")
    A("s_barrier")
    for w in range(4):
        A(f"ds_read_b64 v[{16+2*w}:{17+2*w}], v12 offset:{L_QP+128*w}")
    if clr != 2: A("s_waitcnt vmcnt(0)")
    A("v_add_u32 v72, 0x10000, v72")
    A("v_add_u32 v73, 0x10000, v73")
    A("v_and_b32 v72, 0xffff0000, v72")
    A("v_and_b32 v73, 0xffff0000, v73")
    A("s_waitcnt lgkmcnt(0)")
    A("v_add_f32 v16, v16, v18")
    A("v_add_f32 v17, v17, v19")
    A("v_add_f32 v20, v20, v22")
    A("v_add_f32 v21, v21, v23")
    A("v_add_f32 v16, v16, v20")
    A("v_add_f32 v17, v17, v21")
    A("v_cvt_pk_bf16_f32 v16, v16, 0")
    A("v_cvt_pk_bf16_f32 v17, v17, 0")
    A("v_or_b32 v72, v72, v16")
    A("v_or_b32 v73, v73, v17")
    A("s_mov_b64 exec, s[62:63]")
    A(f"buffer_store_dwordx2 v[72:73], v12, s[40:43], s59 offen offset:{QBOX} sc1")
    A("s_mov_b64 exec, -1")
    stamp(2)
    if clr == 1: clears()
    A("s_cmp_lg_u32 s29, 0")
    A("s_cbranch_scc1 L_notinit")
    A("s_lshl_b32 s70, s28, 12")
    A(f"s_add_u32 s70, s70, {TICK}")
    A("s_mov_b64 exec, 1")
    A("buffer_store_dword v15, v15, s[40:43], s70 offen sc1")
    A("s_mov_b64 exec, -1")
    LB("L_notinit")
    A("s_lshl_b32 s65, s30, 6")
    A("s_add_u32 s65, s65, 128")
    A("s_mov_b32 s68, 1")
    A("s_mov_b32 s59, 0")
    A("s_mov_b32 s66, 0x10000")
    A("s_waitcnt vmcnt(0)")
    A("s_atomic_add s68, s[24:25], s65")
    LB("L_pollq")
    A(f"buffer_load_dwordx4 v[76:79], v11, s[40:43], s56 offen offset:{QBOX} sc1")
    A(f"buffer_load_dwordx4 v[80:83], v11, s[40:43], s56 offen offset:{QBOX+16} sc1")
    A("s_waitcnt vmcnt(0)")
    for k in range(8):
        A(f"v_xor_b32 v{84+k}, v{64+k}, v{76+k}")
    A("v_min3_u32 v84, v84, v85, v86")
    A("v_min3_u32 v87, v87, v88, v89")
    A("v_min3_u32 v84, v84, v90, v91")
    A("v_min_u32 v84, v84, v87")
    A("v_cmp_gt_u32 vcc, s66, v84")
    A("s_cbranch_vccz L_pollq_done")
    A("s_mov_b64 exec, vcc")
    A("s_add_u32 s59, s59, 1")
    A("s_sleep 1")
    A(f"s_cmp_lt_u32 s59, {fbk}")
    A("s_cbranch_scc1 L_pollq")
    C("the snapshot may have been taken after a producer wrote: once the whole batch arrived, the next read is valid")
    A("s_mov_b32 s70, 0")
    A("s_atomic_add s70, s[24:25], s65 glc")
    A("s_waitcnt lgkmcnt(0)")
    A("s_cmp_ge_u32 s70, 128")
    A("s_cselect_b32 s66, 0, s66")
    A(f"s_cmp_lt_u32 s59, {spin_max}")
    A("s_cbranch_scc1 L_pollq")
    LB("L_pollq_done")
    A("s_mov_b64 exec, -1")
    stamp(3)
    for k in range(4):
        A(f"v_perm_b32 v{48+k}, v{77+2*k}, v{76+2*k}, s60")
    A(f"ds_write_b128 v14, v[48:51] offset:{L_Q}")
    A("s_waitcnt lgkmcnt(0)")
    A("s_barrier")
    stamp(4)
    if tmode == 1:
        A("s_not_b32 s94, s92")
        A("s_atomic_umax s94, s[24:25], 0")
        A("s_waitcnt lgkmcnt(0)")
    if tmode == 2:
        A("s_mov_b32 s94, s92")
        A("s_atomic_umax s94, s[24:25], 0")
        A("s_waitcnt lgkmcnt(0)")
    if tmode == 3:
        A("s_memrealtime s[94:95]")
        A("s_waitcnt lgkmcnt(0)")
        A("s_atomic_umax s94, s[24:25], 0")
        A("s_waitcnt lgkmcnt(0)")
    C("background: FFN hidden slice, gate, output-side weights")
    make_masks(56, 57)
    A("s_and_b32 s66, s31, 7")
    A("s_mul_i32 s66, s66, 14")
    A("s_lshr_b32 s67, s31, 3")
    A("s_add_u32 s66, s66, s67")
    A("s_cmp_lt_u32 s31, 112")
    A(f"s_cselect_b32 s59, {448*1792*2}, 0")
    srd(48, 16, 17, 0 if skip & 2 else "s59")
    srd(36, 20, 21, 896)
    A("v_lshrrev_b32 v10, 1, v1")
    A("v_and_b32 v11, 1, v1")
    A("v_mul_u32_u24 v12, 28, v10")
    A(f"v_mul_u32_u24 v13, {14*3584}, v10")
    A("v_lshl_add_u32 v13, v11, 4, v13")
    A(f"buffer_load_dwordx4 v[{XR}:{XR+3}], v12, s[44:47], 0 offen")
    A(f"buffer_load_dwordx3 v[{XR+4}:{XR+6}], v12, s[44:47], 0 offen offset:16")
    A("buffer_load_dwordx4 v[40:43], v14, s[44:47], 0 offen")
    A("buffer_load_dwordx4 v[44:47], v14, s[36:39], 0 offen")
    A("s_lshl_b32 s56, s66, 5")
    cnt = [0]
    def thr():
        cnt[0] += 1
        if cnt[0] % SB == 0: A("s_waitcnt vmcnt(0)")
    for t in range(14):
        A(f"buffer_load_dwordx4 v[{64+4*t}:{67+4*t}], v13, s[48:51], s56 offen")
        A("s_add_u32 s56, s56, 3584")
        thr()
    for k in range(8):
        A(f"v_mov_b32 v{ACC+k}, 0")
    matvec_pairs(7, 64, XR, 0)
    A("s_nop 1")
    for k in range(2):
        A(f"v_add_f32_dpp v{ACC+k}, v{ACC+k}, v{ACC+k} row_ror:2 {DPP}")
    A(f"s_mov_b32 s59, {f2u(-math.log2(math.e)):#x}")
    for k in range(2):
        A(f"v_cvt_pk_bf16_f32 v{ACC+k}, 0, v{ACC+k}")
    for k in range(2):
        A(f"v_mul_f32 v{ACC+2+k}, s59, v{ACC+k}")
    for k in range(2):
        A(f"v_exp_f32 v{ACC+2+k}, v{ACC+2+k}")
    A("s_nop 0")
    for k in range(2):
        A(f"v_add_f32 v{ACC+2+k}, 1.0, v{ACC+2+k}")
    for k in range(2):
        A(f"v_rcp_f32 v{ACC+2+k}, v{ACC+2+k}")
    A("s_nop 0")
    for k in range(2):
        A(f"v_mul_f32 v{ACC+k}, v{ACC+k}, v{ACC+2+k}       ; silu")
    for k in range(2):
        A(f"v_cvt_pk_bf16_f32 v{ACC+k}, v{ACC+k}, v{ACC+k}")
    A("v_lshlrev_b32 v12, 5, v11")
    A("v_lshl_add_u32 v12, v9, 3, v12")
    A("s_mov_b32 s62, 0x00030003")
    A("s_mov_b32 s63, 0x00030003")
    A("s_mov_b64 exec, s[62:63]")
    A(f"ds_write_b64 v12, v[{ACC}:{ACC+1}] offset:{L_H}")
    A("s_mov_b64 exec, -1")
    C("gate")
    for k in range(4):
        A(f"v_lshlrev_b32 v52, 16, v{40+k}")
        A(f"v_lshlrev_b32 v53, 16, v{44+k}")
        A(f"v_and_b32 v54, 0xffff0000, v{40+k}")
        A(f"v_and_b32 v55, 0xffff0000, v{44+k}")
        A("v_mul_f32 v52, v52, v53")
        A("v_mul_f32 v54, v54, v55")
        A("v_cvt_pk_bf16_f32 v52, 0, v52")
        A("v_cvt_pk_bf16_f32 v54, 0, v54")
        if k == 0:
            A("v_add_f32 v56, v52, v54")
        else:
            A("v_add_f32 v56, v56, v52")
            A("v_add_f32 v56, v56, v54")
    for rr in (8, 4, 2, 1):
        A("s_nop 1")
        A(f"v_add_f32_dpp v56, v56, v56 row_ror:{rr} {DPP}")
    A("v_mov_b32 v57, v56")
    A("s_nop 1")
    A("v_permlane32_swap_b32 v57, v56")
    A("s_nop 1")
    A("v_add_f32 v56, v56, v57")
    A("v_mov_b32 v57, v56")
    A("s_nop 1")
    A("v_permlane16_swap_b32 v57, v56")
    A("s_nop 1")
    A("v_add_f32 v56, v56, v57")
    A("v_cvt_pk_bf16_f32 v56, 0, v56")
    A("v_mul_f32 v56, s59, v56")
    A("v_exp_f32 v56, v56")
    A("s_nop 0")
    A("v_add_f32 v56, 1.0, v56")
    A("v_rcp_f32 v56, v56")
    A("s_nop 0")
    A("v_cvt_pk_bf16_f32 v2, 0, v56           ; g")
    A("v_sub_f32 v3, 1.0, v2")
    A("v_cvt_pk_bf16_f32 v3, 0, v3            ; 1-g")
    A("v_mov_b32 v16, 0")
    A(f"ds_write_b64 v16, v[2:3] offset:{L_G}")
    out_setup()
    A(f"ds_read_b128 v[80:83], v52 offset:{L_H}")
    A("v_lshlrev_b32 v52, 1, v52")
    A("s_waitcnt lgkmcnt(0)")
    for t in range(4):
        for k in range(4):
            A(f"v_and_b32 v{24+4*t+k}, v{80+t}, v{4+k}")
    A(f"s_mov_b32 s59, {f2u(C_SCALE):#x}")
    A("v_lshlrev_b32 v10, 5, v1")
    A("v_lshrrev_b32 v11, 5, v1")
    A("v_lshlrev_b32 v11, 3, v11")
    A("v_lshrrev_b32 v15, 2, v1")
    A("v_mul_u32_u24 v15, 144, v15")
    A("v_and_b32 v12, 3, v1")
    A("v_lshl_add_u32 v15, v12, 5, v15")
    A(f"v_mul_u32_u24 v12, {OB1S}, v8")
    A("v_lshl_add_u32 v13, v9, 5, v12")
    A(f"s_mul_i32 s60, s28, {16*OB1S}")
    A("s_mul_i32 s61, s29, 144")
    A("s_add_u32 s60, s60, s61")
    A(f"s_add_u32 s60, s60, {OB1}")
    A("v_lshlrev_b32 v14, 5, v9")
    if pp:
        for k in range(8):
            A(f"v_mov_b32 v{120+k}, -1")
    A("s_lshl_b32 s54, 0x00010001, s29")
    A("s_mov_b32 s55, s54")
    A("s_lshl_b32 s61, s29, 4")
    A("v_lshl_add_u32 v21, v9, 2, s61")
    def warm_tail():
        C("address-translation warm-up for the pages the tail touches (values unused)")
        A("s_mov_b64 exec, 1")
        A(f"buffer_load_dword v200, v16, s[32:35], {'s73' if wsel else '0'} offen {['', '', 'sc1', 'nt'][wsel]}")
        A("buffer_load_dword v201, v16, s[40:43], s64 offen sc1")
        A("buffer_load_dword v202, v16, s[40:43], s57 offen sc1")
        A("buffer_load_dword v203, v54, s[44:47], s69 offen")
        A("buffer_load_dword v204, v55, s[48:51], s67 offen")
        A("s_mov_b64 exec, -1")
    if wkv:
        C("translations of the group's K/V pages (pool tiles, first V tile)")
        srd(32, 6, 7, "0x10000000")
        srd(36, 8, 9, "0x10000000")
        A("v_lshlrev_b32 v17, 21, v1")
        A("s_lshl_b32 s70, s28, 24")
        A(f"s_add_u32 s70, s70, {NS << 16}")
        A("s_mov_b64 exec, 0xff")
        A("buffer_load_dword v205, v17, s[32:35], s70 offen nt")
        A("buffer_load_dword v206, v17, s[36:39], s70 offen nt")
        A("s_mov_b64 exec, -1")
    srd(32, 22, 23, 1792)
    if wsel:
        A("s_mul_i32 s73, s30, 896")
        A("s_lshl_b32 s70, s31, 5")
        A("s_add_u32 s73, s73, s70")
        A("s_cmp_lt_u32 s31, 28")
        A("s_cselect_b32 s34, 1792, 0")
        A("s_cselect_b32 s73, s73, 0")
    if wout >= 3: warm_tail()
    C("whole batch arrived => every outbox read later was cleared and the ticket counters are set")
    A(f"s_mov_b32 s56, {spin_max}")
    LB("L_pollg")
    A("s_mov_b32 s70, 0")
    A("s_atomic_add s70, s[24:25], s65 glc")
    A("s_waitcnt lgkmcnt(0)")
    A("s_cmp_ge_u32 s70, 128")
    A("s_cbranch_scc1 L_pollg_done")
    A("s_sleep 16")
    A("s_sub_u32 s56, s56, 1")
    A("s_cmp_lg_u32 s56, 0")
    A("s_cbranch_scc1 L_pollg")
    LB("L_pollg_done")
    C("window-ticket server")
    A("s_lshl_b32 s74, s28, 12")
    A(f"s_add_u32 s74, s74, {TICK}")
    A("s_add_u32 s74, s26, s74")
    A("s_addc_u32 s75, s27, 0")
    A("s_mov_b32 s71, 0")
    A("s_mov_b32 s72, 0")
    A("v_mov_b32 v16, 0")
    A(f"s_mov_b32 s56, {spin_max*8}")
    LB("L_tk")
    A(f"ds_read_b32 v17, v16 offset:{L_CNT}")
    A("s_waitcnt lgkmcnt(0)")
    A("v_readfirstlane_b32 s70, v17")
    A("s_cmp_gt_u32 s70, s72")
    A("s_cbranch_scc1 L_tk_fetch")
    A("s_sleep 2")
    A("s_sub_u32 s56, s56, 1")
    A("s_cmp_lg_u32 s56, 0")
    A("s_cbranch_scc1 L_tk")
    A("s_branch L_tk_done")
    LB("L_tk_fetch")
    A("s_mov_b32 s70, 1")
    A("s_atomic_add s70, s[74:75], 0 glc")
    A("v_mov_b32 v17, s71")
    A("s_waitcnt lgkmcnt(0)")
    A("v_mov_b32 v20, s70")
    A("s_add_u32 s71, s71, 4")
    A(f"s_add_u32 s72, s72, {WT}")
    A(f"ds_write_b32 v17, v20 offset:{L_WIN}")
    A(f"s_cmp_lt_u32 s70, {NTK - RET}")
    A("s_cbranch_scc1 L_tk")
    C("one of the last tickets (or none): this WG asks for nothing more")
    A("v_mov_b32 v17, s71")
    A("v_mov_b32 v20, 0x10000")
    for k in range(-(-NSW // WT)):
        A(f"ds_write_b32 v17, v20 offset:{L_WIN + 4*k}")
    LB("L_tk_done")
    if wout: warm_tail()
    if warm:
        C("touch the pages of the output-side weights (address translation only)")
        A("s_mov_b64 exec, 1")
        A("buffer_load_dword v17, v54, s[44:47], s69 offen")
        A("buffer_load_dword v20, v55, s[48:51], s67 offen")
        A("s_mov_b64 exec, -1")
    A("s_waitcnt lgkmcnt(0)")
    A("s_barrier")
    stamp(5)
    if prof: A("s_waitcnt lgkmcnt(0)")
    C("WG combine")
    for w in range(NSW):
        A(f"ds_read_b64 v[{56+2*w}:{57+2*w}], v11 offset:{L_ML+16*w}")
    for w in range(NSW):
        A(f"ds_read_b128 v[{64+8*w}:{67+8*w}], v10 offset:{L_O+2048*w}")
        A(f"ds_read_b128 v[{68+8*w}:{71+8*w}], v10 offset:{L_O+2048*w+16}")
    A(f"s_waitcnt lgkmcnt({2*NSW})")
    A("v_max3_f32 v16, v56, v58, v60")
    if NSW == 4: A("v_max_f32 v16, v16, v62")
    for w in range(NSW):
        A(f"v_sub_f32 v{56+2*w}, v{56+2*w}, v16")
    for w in range(NSW):
        A(f"v_mul_f32 v{56+2*w}, s59, v{56+2*w}")
    for w in range(NSW):
        A(f"v_exp_f32 v{56+2*w}, v{56+2*w}")
    A("s_nop 0")
    A("v_mul_f32 v17, v56, v57")
    for w in range(1, NSW):
        A(f"v_fmac_f32 v17, v{56+2*w}, v{57+2*w}")
    A("s_waitcnt lgkmcnt(0)")
    for k in range(8):
        A(f"v_mul_f32 v{64+k}, v56, v{64+k}")
    for w in range(1, NSW):
        for k in range(8):
            A(f"v_fmac_f32 v{64+k}, v{56+2*w}, v{64+8*w+k}")
    A(f"buffer_store_dwordx4 v[64:67], v15, s[40:43], s57 offen {HS}")
    A(f"buffer_store_dwordx4 v[68:71], v15, s[40:43], s57 offen offset:16 {HS}")
    A("s_mov_b32 s62, 0x11111111")
    A("s_mov_b32 s63, 0x11111111")
    A("s_mov_b64 exec, s[62:63]")
    A(f"buffer_store_dwordx2 v[16:17], v15, s[40:43], s57 offen offset:128 {HS}")
    A("s_mov_b64 exec, -1")
    def poll1_loads():
        A(f"buffer_load_dwordx4 v[72:75], v13, s[40:43], s60 offen {HL}")
        A(f"buffer_load_dwordx4 v[76:79], v13, s[40:43], s60 offen offset:16 {HL}")
        A(f"buffer_load_dwordx2 v[80:81], v12, s[40:43], s60 offen offset:128 {HL}")
    if ob == 3: A("s_barrier")
    A(f"s_mov_b32 s56, {spin_max}")
    if pp:
        C("weights first; then overlapped polls that all land in v120..127/v86..87; a register copy is what is checked and used")
        A("s_mov_b32 s62, 0x00ff00ff")
        A("s_mov_b32 s63, 0x00ff00ff")
        A("s_mov_b64 exec, s[62:63]")
        out_loads()
        A("s_mov_b64 exec, -1")
        for k in range(8):
            A(f"ds_bpermute_b32 v{72+k}, v21, v{64+k}")
        A("ds_bpermute_b32 v80, v21, v16")
        A("ds_bpermute_b32 v81, v21, v17")
        A("v_mov_b32 v86, -1")
        A("v_mov_b32 v87, -1")
        A("s_andn2_b64 exec, -1, s[54:55]")
        LB("L_poll1")
        A(f"buffer_load_dwordx4 v[120:123], v13, s[40:43], s60 offen {HL}")
        A(f"buffer_load_dwordx4 v[124:127], v13, s[40:43], s60 offen offset:16 {HL}")
        A(f"buffer_load_dwordx2 v[86:87], v12, s[40:43], s60 offen offset:128 {HL}")
        A(f"s_sleep {pp}")
        A(f"s_waitcnt vmcnt({ppc}) lgkmcnt(0)")
        for k in range(8):
            A(f"v_mov_b32 v{72+k}, v{120+k}")
        A("v_mov_b32 v80, v86")
        A("v_mov_b32 v81, v87")
        A("v_max3_u32 v18, v72, v73, v74")
        A("v_max3_u32 v19, v75, v76, v77")
        A("v_max3_u32 v18, v18, v78, v79")
        A("v_max3_u32 v19, v19, v80, v81")
        A("v_max_u32 v18, v18, v19")
        A("v_cmp_eq_u32 vcc, -1, v18")
        A("s_cbranch_vccz L_poll1_done")
        A("s_mov_b64 exec, vcc")
        A("s_sub_u32 s56, s56, 1")
        A("s_cmp_lg_u32 s56, 0")
        A("s_cbranch_scc1 L_poll1")
        A("s_waitcnt vmcnt(0)")
    else:
        if own:
            C("own packet comes from registers; the other 15 are polled")
            A("s_andn2_b64 exec, -1, s[54:55]")
            poll1_loads()
            if m3:
                A("s_mov_b32 s62, 0x00ff00ff")
                A("s_mov_b32 s63, 0x00ff00ff")
                A("s_mov_b64 exec, s[62:63]")
            else:
                A("s_mov_b64 exec, -1")
            out_loads()
            A("s_mov_b64 exec, -1")
            for k in range(8):
                A(f"ds_bpermute_b32 v{88+k}, v21, v{64+k}")
            A("ds_bpermute_b32 v96, v21, v16")
            A("ds_bpermute_b32 v97, v21, v17")
            A("s_mov_b64 exec, s[54:55]")
            A("s_waitcnt vmcnt(12) lgkmcnt(0)")
            for k in range(10):
                A(f"v_mov_b32 v{72+k}, v{88+k}")
            A("s_mov_b64 exec, -1")
            A("s_branch L_poll1_chk")
        else:
            out_loads()
        LB("L_poll1")
        poll1_loads()
        A("s_waitcnt vmcnt(0)")
        LB("L_poll1_chk")
        A("v_max3_u32 v18, v72, v73, v74")
        A("v_max3_u32 v19, v75, v76, v77")
        A("v_max3_u32 v18, v18, v78, v79")
        A("v_max3_u32 v19, v19, v80, v81")
        A("v_max_u32 v18, v18, v19")
        A("v_cmp_eq_u32 vcc, -1, v18")
        A("s_cbranch_vccz L_poll1_done")
        A("s_mov_b64 exec, vcc")
        A("s_bcnt1_i32_b64 s61, vcc")
        A(f"s_cmp_le_u32 s61, {lt}")
        A("s_cbranch_scc1 L_poll1_fast")
        A(f"s_sleep {ls}")
        LB("L_poll1_fast")
        A("s_sleep 1")
        A("s_sub_u32 s56, s56, 1")
        A("s_cmp_lg_u32 s56, 0")
        A("s_cbranch_scc1 L_poll1")
    LB("L_poll1_done")
    A("s_mov_b64 exec, -1")
    stamp(6)
    if sprobe:
        A("s_cmp_lg_u32 s29, 0")
        A("s_cbranch_scc1 L_sp1")
        A("s_memrealtime s[94:95]")
        A("s_waitcnt lgkmcnt(0)")
        A("s_not_b32 s94, s94")
        A("s_atomic_umax s94, s[24:25], 0")
        LB("L_sp1")
    C("group combine over the 16 producers, then 32 rows of wo")
    A(f"v_max_f32_dpp v18, v80, v80 row_ror:8 {DPP}")
    for rr in (4, 2, 1):
        A("s_nop 1")
        A(f"v_max_f32_dpp v18, v18, v18 row_ror:{rr} {DPP}")
    A("v_sub_f32 v18, v80, v18")
    A("v_mul_f32 v18, s59, v18")
    A("v_exp_f32 v18, v18")
    A("s_nop 0")
    A("v_mul_f32 v80, v18, v81")
    for k in range(8):
        A(f"v_mul_f32 v{72+k}, v18, v{72+k}")
    for rr in (8, 4, 2, 1):
        for k in (8, 0, 1, 2, 3, 4, 5, 6, 7):
            A(f"v_add_f32_dpp v{72+k}, v{72+k}, v{72+k} row_ror:{rr} {DPP}")
    A("v_rcp_f32 v80, v80")
    A("s_nop 0")
    for k in range(8):
        A(f"v_mul_f32 v{72+k}, v80, v{72+k}")
    for k in range(8):
        A(f"v_cvt_pk_bf16_f32 v{72+k}, v{72+k}, v{72+k}")
    A("s_mov_b32 s62, 0x00010001")
    A("s_mov_b32 s63, 0x00010001")
    A("s_mov_b64 exec, s[62:63]")
    A(f"ds_write_b128 v14, v[72:75] offset:{L_OP}")
    A(f"ds_write_b128 v14, v[76:79] offset:{L_OP+16}")
    A("s_mov_b64 exec, -1")
    A("s_waitcnt lgkmcnt(0)")
    A("s_branch L_out")
    LB("L_svc_end")
    stamp(7)
    dump_stamps(True)
    LB("L_end")
    A("s_endpgm")
    L.append('.section .rodata,"a"')
    L.append(".p2align 6")
    L.append(f".amdhsa_kernel {NAME}_kernel")
    L.append("  .amdhsa_next_free_vgpr 256")
    L.append("  .amdhsa_next_free_sgpr 96")
    L.append("  .amdhsa_accum_offset 256")
    L.append("  .amdhsa_group_segment_fixed_size 0")
    L.append("  .amdhsa_kernarg_size 96")
    L.append("  .amdhsa_user_sgpr_count 2")
    L.append("  .amdhsa_user_sgpr_kernarg_segment_ptr 1")
    L.append("  .amdhsa_system_sgpr_workgroup_id_x 1")
    L.append(".end_amdhsa_kernel")
    return "\n".join(L) + "\n"


if __name__ == "__main__":
    out = sys.argv[1]
    kw = {}
    for a in sys.argv[2:]:
        k, v = a.split("=")
        kw[k] = int(v)
    open(out, "w").write(gen(**kw))
```

```python
import sys, math, struct

NAME = "gated_mix__gqa_block_cached__dense_activation_silu__decode"
HEADER = open("cdna_kernels/" + NAME + ".s.ref").read().split("; Override launch")[0]

QBOX = 0x0
TICK = 0x10000
OB1 = 0x40000
OB1S = 2304
OB2 = 0x200000
OB2S = 1792
STAMP = 0x20000000
C_SCALE = (1.0 / 16.0) * math.log2(math.e)
def f2u(x): return struct.unpack("<I", struct.pack("<f", x))[0]


DOC = """
One launch, 256 workgroups (group = wg>>4 = batch*8 + kv head, 16 workgroups per group), 4 waves each.
 * wave 0 (service): hands q slices round the group through d_ws (16-bit tags = stale tag + 1, arrival
   counter in d_debug as fall-back), computes a 16-unit FFN slice and the gate, serves window tickets,
   merges the wave partials, merges the 16 partials of a 32-row slice of o and multiplies it with wo.
 * waves 1-3 stream K (scores -> LDS, true max), then V, straight into MFMA operand registers:
   QK^T uses 64-byte row pieces as A rows and picks the diagonal blocks, P.V puts p on the diagonal of
   A so that row-major V is the B operand as loaded.  The last 1/16 of the keys is a shared pool handed
   out by tickets (running max with rescale) so that all workgroups finish together.
 * partial results travel through sentinel-cleared boxes in d_ws (sc1 stores / sc1 loads).
"""

def gen(prof=0, NSW=3, NS=30, NPRE=6, kip=1, vip=1, RET=8, fbk=4, SB=8, spin_max=200000, ldsx=0, dseq=0, PF2=0, WT=3, skip=0, ptile=0, early=1, eh=0, hl=0, hs=0, ls=16, lt=28, s2=2, pre=1, tfix=0, osc=1, tmode=0, ob=3, warm=0, own=0, m3=1, sprobe=0, pp=0, ppc=30, clr=1, wout=3, wkv=0, wsel=1, halfw=0, rep=0, al=1, lin=0):
    OB1S = 2176 if al else 2304
    NT = NS*4 // NSW
    assert NS*4 % NSW == 0 and NSW in (3, 4)
    SSTR = NT*128
    L_Q = 0
    L_S = 1024
    L_O = L_S + NSW*SSTR
    L_ML = L_O + 2048*NSW
    L_H = L_ML + 64
    L_G = L_H + 64
    L_OP = L_G + 64
    L_QP = L_OP + 128
    L_CNT = L_QP + 512
    L_WIN = L_CNT + 64
    LDS_BYTES = L_WIN + 1024
    NPT = (32-NS)*64
    NTK = -(-NPT // WT)
    L = []
    A = lambda s: L.append("  " + s)
    LB = lambda s: L.append(s + ":")
    C = lambda s: L.append("  ; " + s)
    DPP = "row_mask:0xf bank_mask:0xf"
    ACC, XR = 16, 32

    svc = [False]
    HL = ['sc1', 'sc0 sc1', 'sc1 nt'][hl]
    HS = ['sc1', 'sc0 sc1', 'sc1 nt'][hs]
    def stamp(k, force=False):
        if ptile and not svc[0] and not force and k not in (0, 7):
            return
        if prof: A(f"s_memrealtime s[{80+2*k}:{81+2*k}]")
    def dump_stamps(svc):
        if not prof: return
        A("s_waitcnt lgkmcnt(0)")
        A("s_lshl_b32 s56, s2, 3")
        A(f"s_add_u32 s56, s56, {'4' if svc else 's3'}")
        A("s_lshl_b32 s56, s56, 6")
        A(f"s_add_u32 s56, s56, {STAMP}")
        A("s_mov_b64 exec, 1")
        A("v_mov_b32 v60, 0")
        for q in range(4):
            for j in range(4):
                A(f"v_mov_b32 v{56+j}, s{80+4*q+j}")
            A(f"buffer_store_dwordx4 v[56:59], v60, s[40:43], s56 offen offset:{16*q}")
            A("s_nop 1")
        A("s_mov_b64 exec, -1")
    def srd(d, lo, hi, n):
        A(f"s_mov_b32 s{d}, s{lo}")
        A(f"s_mov_b32 s{d+1}, s{hi}")
        A(f"s_mov_b32 s{d+2}, {n}")
        A(f"s_mov_b32 s{d+3}, 0x00020000")
    def matvec_pairs(npairs, wbase, xbase, tail_ops):
        for u in range(npairs):
            A(f"s_waitcnt vmcnt({2*npairs - (2*u+2) + tail_ops})")
            w0 = wbase + 8*u; w1 = w0 + 4
            for k in range(4):
                A(f"v_perm_b32 v{52+k}, v{w1+k}, v{w0+k}, s60")
                A(f"v_perm_b32 v{56+k}, v{w1+k}, v{w0+k}, s61")
            for k in range(4):
                A(f"v_dot2c_f32_bf16 v{ACC+2*k}, v{52+k}, v{xbase+u}")
                A(f"v_dot2c_f32_bf16 v{ACC+2*k+1}, v{56+k}, v{xbase+u}")
        A("s_nop 3")
        for k in range(4):
            A(f"v_permlane32_swap_b32 v{ACC+k}, v{ACC+4+k}")
        A("s_nop 1")
        for k in range(4):
            A(f"v_add_f32 v{ACC+k}, v{ACC+k}, v{ACC+4+k}")
        A("s_nop 1")
        for k in range(2):
            A(f"v_permlane16_swap_b32 v{ACC+k}, v{ACC+2+k}")
        A("s_nop 1")
        for k in range(2):
            A(f"v_add_f32 v{ACC+k}, v{ACC+k}, v{ACC+2+k}")
        for rr in (8, 4):
            A("s_nop 1")
            for k in range(2):
                A(f"v_add_f32_dpp v{ACC+k}, v{ACC+k}, v{ACC+k} row_ror:{rr} {DPP}")
    def make_masks(t0, t1):
        C("v4..v7: lane e=l&7 owns bf16 element e of an 8-element A fragment")
        A(f"v_and_b32 v{t0}, 1, v1")
        A(f"v_lshlrev_b32 v{t0}, 4, v{t0}")
        A(f"v_mov_b32 v{t1}, 0xffff")
        A(f"v_lshlrev_b32 v{t1}, v{t0}, v{t1}")
        A(f"v_bfe_u32 v{t0}, v1, 1, 2")
        for k in range(4):
            A(f"v_cmp_eq_u32 vcc, {k}, v{t0}")
            A("s_nop 1")
            A(f"v_cndmask_b32 v{4+k}, 0, v{t1}, vcc")
    SLOT0 = 64
    def slot(sl, i): return SLOT0 + 32*sl + 4*i
    WQB = slot(5, 0)
    def wq_loads():
        A(f"buffer_load_dwordx4 v[{XR}:{XR+3}], v14, s[44:47], s58 offen")
        for t in range(8):
            A(f"buffer_load_dwordx4 v[{WQB+4*t}:{WQB+4*t+3}], v13, s[48:51], s57 offen")
            if t < 7: A("s_add_u32 s57, s57, 0x2000")
    def q_partial(tail):
        for k in range(8):
            A(f"v_mov_b32 v{ACC+k}, 0")
        A("s_lshl_b32 s58, s3, 7")
        A("v_add_u32 v13, s58, v12")
        matvec_pairs(4, WQB, XR, tail)
        A("s_mov_b64 exec, s[62:63]")
        A(f"ds_write_b64 v13, v[{ACC}:{ACC+1}] offset:{L_QP}")
        A("s_mov_b64 exec, -1")

    def out_setup():
        C("output side: this wave owns column block cb = role of 32 wo rows and 16 w2 rows")
        A("s_and_b32 s69, s31, 7")
        A("s_mul_i32 s69, s69, 14")
        A("s_lshr_b32 s67, s31, 3")
        A("s_add_u32 s69, s69, s67")
        A(f"s_mul_i32 s69, s69, {16*896}")
        A("s_cmp_lt_u32 s31, 112")
        A(f"s_cselect_b32 s46, {0 if skip & 4 else 448*1792*2}, 0")
        A("s_mov_b32 s44, s18")
        A("s_mov_b32 s45, s19")
        A("s_mov_b32 s47, 0x00020000")
        srd(48, 12, 13, 0 if skip & 8 else 4096*448*2)
        A("s_lshl_b32 s64, s3, 8")
        A("s_add_u32 s69, s69, s64")
        A(f"s_mul_i32 s67, s31, {32*896}")
        A("s_add_u32 s67, s67, s64")
        A(f"s_add_u32 s68, s67, {0 if halfw else 4*896}")
        A("s_lshl_b32 s64, s64, 1")
        A(f"s_mul_i32 s52, s2, {OB2S}")
        A("s_add_u32 s64, s64, s52")
        A(f"s_add_u32 s64, s64, {OB2}")
        A("s_cmp_eq_u32 s3, 3")
        A("s_cselect_b32 s52, 0x00ff00ff, -1")
        A("s_mov_b32 s53, 0")
        A("v_mul_u32_u24 v54, 3584, v9")
        A("v_lshl_add_u32 v54, v8, 4, v54         ; w2 row 16f + 4g + t")
        A("v_mul_u32_u24 v55, 7168, v9")
        A("v_lshl_add_u32 v55, v8, 4, v55")
        if lin:
            A("s_cselect_b32 s70, 7, 8")
            A("v_lshlrev_b32 v53, s70, v9")
            A("v_lshl_add_u32 v53, v8, 4, v53")
        else:
            A("v_lshlrev_b32 v53, 5, v8")
            A("v_lshl_add_u32 v53, v9, 4, v53")
        A("v_lshlrev_b32 v52, 4, v9")
    def ffn_mfma():
        for t in range(4):
            c = "0" if t == 0 else "v[20:23]"
            A(f"v_mfma_f32_16x16x32_bf16 v[20:23], v[{24+4*t}:{27+4*t}], v[{160+4*t}:{163+4*t}], {c}")
    def out_off(dst, t0, t1):
        A(f"s_mul_i32 s{dst}, s30, 896")
        if not lin:
            A(f"s_lshl_b32 s{t0}, s31, 5")
            A(f"s_add_u32 s{dst}, s{dst}, s{t0}")
            return
        A(f"s_lshr_b32 s{t0}, s31, 3")
        A(f"s_lshl_b32 s{t0}, s{t0}, 8")
        A(f"s_add_u32 s{dst}, s{dst}, s{t0}")
        A("s_cmp_lt_u32 s31, 24")
        A(f"s_cselect_b32 s{t0}, 3, 1")
        A(f"s_cselect_b32 s{t1}, 2, 1")
        A(f"s_and_b32 s{t0}, s31, s{t0}")
        A(f"s_lshl_b32 s{t0}, s{t0}, 6")
        A(f"s_add_u32 s{dst}, s{dst}, s{t0}")
        A(f"s_lshr_b32 s{t0}, s31, s{t1}")
        A(f"s_and_b32 s{t0}, s{t0}, 1")
        A(f"s_lshl_b32 s{t0}, s{t0}, 3")
        A(f"s_add_u32 s{dst}, s{dst}, s{t0}")
    def out_loads():
        for t in range(4):
            A(f"buffer_load_dwordx4 v[{160+4*t}:{163+4*t}], v54, s[44:47], s69 offen offset:{t*896}")
        for t in range(8):
            A(f"buffer_load_dwordx4 v[{128+4*t}:{131+4*t}], v55, s[48:51], s{67 + (t>>2)} offen offset:{(t&3)*896}")
    L.append(HEADER.rstrip("\n"))
    L.append(f"; @launch grid=(256,1,1) block=({64*(NSW+1)},1,1) lds={ldsx or LDS_BYTES}")
    L.append('.amdgcn_target "amdgcn-amd-amdhsa--gfx950"')
    for line in DOC.strip("\n").splitlines():
        L.append("; " + line)
    L.append(".text")
    L.append(f".globl {NAME}_kernel")
    L.append(".p2align 8")
    L.append(f".type {NAME}_kernel,@function")
    LB(f"{NAME}_kernel")
    A("s_cmp_ge_u32 s2, 256")
    A("s_cbranch_scc1 L_end")
    if prof:
        for k in range(8):
            A(f"s_mov_b64 s[{80+2*k}:{81+2*k}], 0")
        stamp(0)
        A("s_waitcnt lgkmcnt(0)")
    if tfix:
        A("s_memrealtime s[92:93]")
        A("s_waitcnt lgkmcnt(0)")
    A("s_load_dwordx2 s[44:45], s[0:1], 0     ; x  -> SRD s[44:47]")
    A("s_load_dwordx2 s[48:49], s[0:1], 24")
    A("s_load_dwordx2 s[32:33], s[0:1], 8     ; K  -> SRD s[32:35]")
    A("s_load_dwordx2 s[40:41], s[0:1], 88")
    A("s_load_dwordx2 s[36:37], s[0:1], 16    ; V  -> SRD s[36:39]")
    A("s_load_dwordx16 s[4:19], s[0:1], 0")
    A("s_load_dwordx8 s[20:27], s[0:1], 64")
    A("v_lshrrev_b32 v2, 6, v0")
    A("v_and_b32 v1, 63, v0                   ; lane")
    A("v_readfirstlane_b32 s3, v2")
    A("s_sub_u32 s3, s3, 1")
    A(f"s_min_u32 s3, s3, {NSW}")
    A("s_lshr_b32 s28, s2, 4                  ; group")
    A("s_and_b32 s29, s2, 15                  ; s")
    A("s_lshr_b32 s30, s2, 7                  ; b")
    A("s_and_b32 s31, s2, 127                 ; i")
    C("s64 = q slice produced here: (i & ~15) + (s&7)*2 + (s>>3)")
    A("s_and_b32 s64, s29, 7")
    A("s_lshl_b32 s64, s64, 1")
    A("s_lshr_b32 s65, s29, 3")
    A("s_add_u32 s64, s64, s65")
    A("s_andn2_b32 s65, s31, 15")
    A("s_add_u32 s64, s64, s65")
    A("v_and_b32 v8, 15, v1")
    A("v_lshrrev_b32 v9, 4, v1                ; g")
    A("v_and_b32 v10, 3, v1")
    A("s_mov_b32 s42, 0x40000000")
    A("s_mov_b32 s43, 0x00020000")
    C("q partial: rows (role*14+rg)*8 + t, cols slice*32 + chunk*8")
    A("s_mul_i32 s58, s30, 896")
    A("s_mov_b32 s46, 1792")
    A("s_mov_b32 s47, 0x00020000")
    A(f"s_mov_b32 s50, {0 if skip & 1 else 448*4096*2}")
    A("s_mov_b32 s51, 0x00020000")
    A("v_lshrrev_b32 v14, 2, v1")
    A("s_mul_i32 s57, s3, 14")
    A("v_cmp_gt_u32 vcc, 14, v14")
    A("v_add_u32 v14, s57, v14")
    A("v_mov_b32 v13, 0x4000")
    A("v_cndmask_b32 v14, v13, v14, vcc")
    A("v_lshlrev_b32 v13, 16, v14")
    A("v_lshl_add_u32 v13, v10, 4, v13")
    A("v_lshlrev_b32 v14, 4, v14")
    A("s_lshl_b32 s57, s64, 6")
    A("v_lshlrev_b32 v12, 5, v10")
    A("v_lshl_add_u32 v12, v9, 3, v12         ; chunk*32 + g*8")
    A("s_mov_b32 s60, 0x05040100")
    A("s_mov_b32 s61, 0x07060302")
    A("s_mov_b32 s62, 0x000f000f")
    A("s_mov_b32 s63, 0x000f000f")
    A(f"s_cmp_lg_u32 s3, {NSW}")
    A("s_cbranch_scc1 L_stream")
    C("service: snapshot of the group's q box and of this WG's own stale tags")
    A("v_lshlrev_b32 v11, 5, v1")
    A("s_lshl_b32 s56, s28, 11")
    A("s_lshl_b32 s59, s30, 7")
    A("s_add_u32 s59, s59, s64")
    A("s_lshl_b32 s59, s59, 7")
    A("s_waitcnt lgkmcnt(0)")
    A(f"buffer_load_dwordx4 v[64:67], v11, s[40:43], s56 offen offset:{QBOX} sc1")
    A(f"buffer_load_dwordx4 v[68:71], v11, s[40:43], s56 offen offset:{QBOX+16} sc1")
    A(f"buffer_load_dwordx2 v[72:73], v12, s[40:43], s59 offen offset:{QBOX} sc1")
    if NSW == 3: wq_loads()
    A("s_branch L_service")

    LB("L_stream")
    A("s_mov_b32 s34, 0x10000000")
    A("s_mov_b32 s35, 0x00020000")
    A("s_mov_b32 s38, 0x10000000")
    A("s_mov_b32 s39, 0x00020000")
    C("tile n of this WG: group<<24 | (s&7)<<21 | (n>>2)<<16 | (s>>3)<<15 | (n&3)<<13")
    A("s_lshl_b32 s56, s28, 24")
    A("s_and_b32 s66, s29, 7")
    A("s_lshl_b32 s66, s66, 21")
    A("s_or_b32 s56, s56, s66")
    A("s_lshr_b32 s66, s29, 3")
    A("s_lshl_b32 s66, s66, 15")
    A("s_or_b32 s56, s56, s66")
    A("s_lshl_b32 s67, s3, 13")
    A("s_or_b32 s56, s56, s67")
    def tstep():
        if NSW == 4:
            A("s_add_u32 s57, s57, 0x10000")
        else:
            A("s_or_b32 s57, s57, 0x8000")
            A("s_add_u32 s57, s57, 0x6000")
            A("s_andn2_b32 s57, s57, 0x8000")
            A("s_or_b32 s57, s57, s66")
    A("v_lshrrev_b32 v3, 2, v8")
    A("v_lshlrev_b32 v2, 11, v3")
    A("v_lshl_add_u32 v2, v9, 6, v2")
    A("v_lshl_add_u32 v2, v10, 4, v2")
    A("v_lshlrev_b32 v3, 11, v9")
    A("v_lshl_add_u32 v3, v8, 4, v3")
    def issue(kind, sl, sreg, which=range(8)):
        srdn = "s[32:35]" if kind == 'k' else "s[36:39]"
        va = "v2" if kind == 'k' else "v3"
        for i in which:
            b = slot(sl, i)
            A(f"buffer_load_dwordx4 v[{b}:{b+3}], {va}, {srdn}, {sreg} offen offset:{256*i} nt")
    A("s_waitcnt lgkmcnt(0)")
    wq_loads()
    A("s_mov_b32 s57, s56")
    for t in range(early):
        issue('k', t, "s57")
        tstep()
    q_partial(8*early)
    A("s_waitcnt lgkmcnt(0)")
    A("s_barrier")
    stamp(7)
    for t in range(early, NPRE):
        A(f"s_waitcnt vmcnt({eh if t == early else PF2})")
        if ptile == 1: stamp(t, True)
        issue('k', t, "s57")
        tstep()
        if t == early:
            A("v_bfe_u32 v12, v1, 3, 1")
            A("v_lshlrev_b32 v13, 2, v12")
            A("v_add_u32 v13, v13, v9")
            A("v_lshlrev_b32 v12, 9, v12")
            A("v_lshl_add_u32 v12, v9, 6, v12")
            A("v_lshl_add_u32 v12, v10, 4, v12")
            A(f"s_mul_i32 s58, s3, {SSTR}")
            A(f"s_add_u32 s58, s58, {L_S}")
            A("v_lshlrev_b32 v13, 4, v13")
            A("v_add_u32 v13, s58, v13")
            make_masks(56, 57)
            A("v_mov_b32 v14, 0xff800000")
            A("v_mov_b32 v15, 0                       ; l")
            for r in range(8):
                A(f"v_mov_b32 v{24+r}, 0")
            A(f"s_mov_b32 s59, {f2u(C_SCALE):#x}")
    A("s_barrier")
    A(f"ds_read_b128 v[16:19], v12 offset:{L_Q}")
    A(f"ds_read_b128 v[20:23], v12 offset:{L_Q+256}")
    stamp(2)
    if ptile == 1: stamp(6, True)
    if ptile == 2: stamp(1, True)
    A("s_waitcnt lgkmcnt(0)")

    def kproc(sl, soff, mid=None, dyn=False, roll=False):
        for r in range(4):
            d = 32 + 4*r
            a0 = slot(sl, 2*r); a1 = slot(sl, 2*r+1)
            A(f"v_mfma_f32_16x16x32_bf16 v[{d}:{d+3}], v[{a0}:{a0+3}], v[16:19], 0")
            A(f"v_mfma_f32_16x16x32_bf16 v[{d}:{d+3}], v[{a1}:{a1+3}], v[20:23], v[{d}:{d+3}]")
            if roll: issue('k', sl, "s57", (2*r, 2*r+1))
        if roll:
            tstep(); A("s_nop 1")
        elif mid: mid()
        else: A("s_nop 4")
        for k in range(4):
            for r in range(4):
                d = 32 + 4*r + k
                if k == 0:
                    A(f"v_mov_b32_dpp v{48+r}, v{d} quad_perm:[0,0,0,0] {DPP}")
                else:
                    A(f"v_add_f32_dpp v{48+r}, v{d}, v{48+r} quad_perm:[{k},{k},{k},{k}] {DPP}")
        for r in range(4):
            A(f"v_cvt_pk_bf16_f32 v{48+r}, 0, v{48+r}")
        if dyn: return
        A("v_max3_f32 v14, v14, v48, v49")
        A("v_max3_f32 v14, v14, v50, v51")
        A(f"ds_write_b128 v13, v[48:51] offset:{soff}")
    def nk():
        issue('k', 0, "s57"); tstep()
    def nv():
        issue('v', 0, "s57"); tstep()
    def nv0():
        A("s_mov_b32 s57, s56"); nv()
    for t in range(NPRE):
        A(f"s_waitcnt vmcnt({8*((NPRE-1-t) + min(t, 1))})")
        kproc(t, t*128, nk if t == 0 else None)
    A(f"v_add_u32 v13, {NPRE*128}, v13")
    def kstep(nxt):
        A("s_waitcnt vmcnt(0)")
        if kip == 0 and nxt is nk: kproc(0, 0, None, False, True)
        elif kip <= 1: kproc(0, 0, nxt)
        else:
            kproc(0, 0); nxt()
    extra = 0
    if ptile == 2:
        stamp(2, True)
        for q in range(3, 7):
            for rep in range(3):
                kstep(nk)
                A("v_add_u32 v13, 128, v13")
                extra += 1
            stamp(q, True)
    A(f"s_mov_b32 s58, {NT - NPRE - 1 - extra}")
    LB("L_kloop")
    kstep(nk)
    A("v_add_u32 v13, 128, v13")
    A("s_sub_u32 s58, s58, 1")
    A("s_cmp_lg_u32 s58, 0")
    A("s_cbranch_scc1 L_kloop")
    kstep(nv0)
    stamp(3)
    C("true max of this wave's keys per head")
    A(f"v_subrev_u32 v13, {(NT-1)*128}, v13")
    A("v_mov_b32 v10, v14")
    A("s_nop 1")
    A("v_permlane32_swap_b32 v10, v14")
    A("s_nop 1")
    A("v_max_f32 v14, v10, v14")
    A("v_mov_b32 v10, v14")
    A("s_nop 1")
    A("v_permlane16_swap_b32 v10, v14")
    A("s_nop 1")
    A("v_max_f32 v14, v10, v14")
    A("v_mul_f32 v11, s59, v14")
    def pprep():
        for r in range(4):
            A(f"v_fma_f32 v{48+r}, v{48+r}, s59, -v11")
        for r in range(4):
            A(f"v_exp_f32 v{48+r}, v{48+r}")
        A("s_nop 0")
        A("v_add_f32 v56, v48, v49")
        A("v_add_f32 v57, v50, v51")
        for r in range(4):
            A(f"v_cvt_pk_bf16_f32 v{48+r}, v{48+r}, v{48+r}")
        A("v_add_f32 v56, v56, v57")
        A("v_add_f32 v15, v15, v56")
        for r in range(4):
            for k in range(4):
                A(f"v_and_b32 v{32+4*r+k}, v{48+r}, v{4+k}")
    def pv(sl, roll=False):
        for r in range(4):
            a = 32 + 4*r
            b0 = slot(sl, 2*r); b1 = slot(sl, 2*r+1)
            A(f"v_mfma_f32_16x16x32_bf16 v[24:27], v[{a}:{a+3}], v[{b0}:{b0+3}], v[24:27]")
            A(f"v_mfma_f32_16x16x32_bf16 v[28:31], v[{a}:{a+3}], v[{b1}:{b1+3}], v[28:31]")
            if roll: issue('v', sl, "s57", (2*r, 2*r+1))
        if roll: tstep()
    def req_ticket():
        A("v_mov_b32 v58, 0")
        A("v_mov_b32 v59, 1")
        A("s_mov_b64 exec, 1")
        A(f"ds_add_rtn_u32 v59, v58, v59 offset:{L_CNT}")
        A("s_mov_b64 exec, -1")
    def lookup_issue(wait_v=False):
        A("s_waitcnt lgkmcnt(0)")
        A("v_readfirstlane_b32 s76, v59")
        if WT == 4:
            A("s_andn2_b32 s77, s76, 3")
            A("s_and_b32 s76, s76, 3")
        else:
            A(f"s_mul_i32 s77, s76, {-(-65536 // WT)}")
            A("s_lshr_b32 s77, s77, 16")
            A(f"s_mul_i32 s79, s77, {WT}")
            A("s_sub_u32 s76, s76, s79")
            A("s_lshl_b32 s77, s77, 2")
        A("v_mov_b32 v58, s77")
        if wait_v: A("s_waitcnt vmcnt(0)")
        A(f"ds_read_b32 v60, v58 offset:{L_WIN}")
    def vstep(off, nxt, post=None, last=False):
        A(f"ds_read_b128 v[48:51], v13 offset:{off}")
        if vip <= 1:
            A("s_waitcnt lgkmcnt(0)")
            pprep()
            if last and pre: lookup_issue(True)
            else: A("s_waitcnt vmcnt(0)")
        else:
            A("s_waitcnt vmcnt(0) lgkmcnt(0)")
            pprep()
            A("s_nop 0")
        if vip == 0 and nxt: pv(0, True)
        else:
            pv(0)
            if nxt: nxt()
        if post: post()
    A(f"s_mov_b32 s58, {NT-2}")
    LB("L_vloop")
    vstep(0, nv)
    A("v_add_u32 v13, 128, v13")
    A("s_sub_u32 s58, s58, 1")
    A("s_cmp_lg_u32 s58, 0")
    A("s_cbranch_scc1 L_vloop")
    vstep(0, nv, req_ticket)
    C("LDS addresses of this wave's partial")
    A("v_lshrrev_b32 v61, 1, v9")
    A("v_lshlrev_b32 v61, 10, v61")
    A("v_lshl_add_u32 v61, v8, 5, v61")
    A("v_and_b32 v62, 1, v9")
    A("v_lshl_add_u32 v61, v62, 4, v61")
    A("s_lshl_b32 s58, s3, 11")
    A("v_add_u32 v61, s58, v61")
    A("s_lshl_b32 s58, s3, 4")
    A("v_and_b32 v62, 8, v1")
    A("v_add_u32 v62, s58, v62")
    assert vip <= 1 and NSW == 3
    out_setup()
    vstep(128, None, None, True)
    stamp(1)
    C("shared pool: sub-ticket (LDS) -> window ticket fetched by the service wave")
    if not pre:
        LB("L_next")
        lookup_issue()
    else:
        LB("L_next")
    A(f"s_mov_b32 s79, {spin_max*32}")
    LB("L_win")
    A("s_waitcnt lgkmcnt(0)")
    A("v_readfirstlane_b32 s77, v60")
    A("s_cmp_lg_u32 s77, -1")
    A("s_cbranch_scc1 L_win_ok")
    A("s_sleep 1")
    A(f"ds_read_b32 v60, v58 offset:{L_WIN}")
    A("s_sub_u32 s79, s79, 1")
    A("s_cmp_lg_u32 s79, 0")
    A("s_cbranch_scc1 L_win")
    LB("L_win_ok")
    A(f"s_cmp_ge_u32 s77, {NTK}")
    A("s_cbranch_scc1 L_dyn_done")
    A(f"s_mul_i32 s77, s77, {WT}")
    A("s_add_u32 s77, s77, s76")
    if NPT % WT:
        A(f"s_cmp_ge_u32 s77, {NPT}")
        A("s_cbranch_scc1 L_dyn_done")
    A("s_lshl_b32 s78, s28, 24")
    A("s_and_b32 s79, s77, 7")
    A("s_lshl_b32 s79, s79, 13")
    A("s_or_b32 s78, s78, s79")
    A("s_bfe_u32 s79, s77, 0x30003")
    A("s_lshl_b32 s79, s79, 21")
    A("s_or_b32 s78, s78, s79")
    A("s_lshr_b32 s79, s77, 6")
    A(f"s_add_u32 s79, s79, {NS}")
    A("s_lshl_b32 s79, s79, 16")
    A("s_or_b32 s78, s78, s79")
    issue('k', 2, "s78")
    if dseq:
        A("s_waitcnt vmcnt(0)")
        req_ticket()
        kproc(2, 0, lambda: issue('v', 3, "s78"), True)
    else:
        issue('v', 3, "s78")
        A("s_waitcnt vmcnt(8)")
        req_ticket()
        kproc(2, 0, None, True)
    A("v_max3_f32 v10, v48, v49, v50")
    A("v_max_f32 v10, v10, v51")
    A("v_cmp_gt_f32 vcc, v10, v14")
    A("s_cbranch_vccnz L_rare")
    LB("L_back")
    pprep()
    if pre: lookup_issue(True)
    else: A("s_waitcnt vmcnt(0)")
    pv(3)
    A("s_branch L_next")
    LB("L_rare")
    C("running max rose: rescale l and O")
    A("v_max_f32 v10, v10, v14")
    A("v_mov_b32 v56, v10")
    A("s_nop 1")
    A("v_permlane32_swap_b32 v56, v10")
    A("s_nop 1")
    A("v_max_f32 v10, v10, v56")
    A("v_mov_b32 v56, v10")
    A("s_nop 1")
    A("v_permlane16_swap_b32 v56, v10")
    A("s_nop 1")
    A("v_max_f32 v10, v10, v56")
    A("v_sub_f32 v56, v14, v10")
    A("v_mul_f32 v56, s59, v56")
    A("v_exp_f32 v56, v56")
    A("v_mov_b32 v14, v10")
    A("v_mul_f32 v11, s59, v10")
    A("v_mul_f32 v15, v15, v56")
    A("v_readlane_b32 s60, v56, 0")
    A("v_readlane_b32 s61, v56, 8")
    A("s_mov_b32 s62, 0")
    A("s_mov_b32 s63, -1")
    A("v_mov_b32 v57, s60")
    A("s_mov_b64 exec, s[62:63]")
    A("v_mov_b32 v57, s61")
    A("s_mov_b64 exec, -1")
    for r in range(8):
        A(f"v_mul_f32 v{24+r}, v57, v{24+r}")
    A("s_branch L_back")
    LB("L_dyn_done")
    C("wave partial -> LDS")
    A("v_mov_b32 v10, v15")
    A("s_nop 1")
    A("v_permlane32_swap_b32 v10, v15")
    A("s_nop 0")
    A("v_add_f32 v15, v10, v15")
    A("v_mov_b32 v10, v15")
    A(f"ds_write_b128 v61, v[24:27] offset:{L_O}")
    A(f"ds_write_b128 v61, v[28:31] offset:{L_O+512}")
    A("v_permlane16_swap_b32 v10, v15")
    A("s_nop 0")
    A("v_add_f32 v15, v10, v15")
    A("s_mov_b64 exec, 0x101")
    A(f"ds_write_b64 v62, v[14:15] offset:{L_ML}")
    A("s_mov_b64 exec, -1")
    stamp(4)
    if ob == 0: out_loads()
    A("s_waitcnt lgkmcnt(0)")
    A("s_barrier")
    if ob == 1: out_loads()
    C("FFN part of this column block (hidden slice and gate come through LDS)")
    A("v_mov_b32 v10, 0")
    A(f"ds_read_b128 v[80:83], v52 offset:{L_H}")
    A(f"ds_read_b64 v[2:3], v10 offset:{L_G}")
    A("v_lshlrev_b32 v52, 1, v52")
    A("s_waitcnt lgkmcnt(0)")
    for t in range(4):
        for k in range(4):
            A(f"v_and_b32 v{24+4*t+k}, v{80+t}, v{4+k}")
    if ob == 3: A("s_barrier")
    if ob >= 2: out_loads()
    if pp: A("s_waitcnt vmcnt(0)")
    LB("L_out")
    A("s_barrier")
    A(f"ds_read_b128 v[72:75], v52 offset:{L_OP}")
    A(f"ds_read_b128 v[76:79], v52 offset:{L_OP+16}")
    if not pp: A("s_waitcnt vmcnt(0)")
    ffn_mfma()
    A("s_waitcnt lgkmcnt(0)")
    def wo_mfma(tt):
        c = "0" if tt == 0 else "v[16:19]"
        A(f"v_mfma_f32_16x16x32_bf16 v[16:19], v[{88+4*tt}:{91+4*tt}], v[{128+4*tt}:{131+4*tt}], {c}")
    for t in range(8):
        for k in range(4):
            A(f"v_and_b32 v{88+4*t+k}, v{72+t}, v{4+k}")
        if t >= 1: wo_mfma(t-1)
    A("s_nop 0")
    wo_mfma(7)
    A("s_mov_b64 exec, s[52:53]")
    for k in range(4):
        A(f"v_mul_f32 v{20+k}, v3, v{20+k}")
    A("s_nop 2")
    for k in range(4):
        A(f"v_fmac_f32 v{20+k}, v2, v{16+k}")
    A(f"buffer_store_dwordx4 v[20:23], v53, s[40:43], s64 offen {HS}")
    A("s_mov_b64 exec, -1")
    if prof:
        A(f"s_cmp_eq_u32 s3, {NSW}")
        A("s_cbranch_scc1 L_svc_end")
    C("role 0 of WGs with i<28: sums the 128 y partials of 16 output columns")
    A("s_cmp_lg_u32 s3, 0")
    A("s_cbranch_scc1 L_fin")
    A("s_cmp_ge_u32 s31, 28")
    A("s_cbranch_scc1 L_fin")
    srd(44, 22, 23, 1792)
    A("v_lshrrev_b32 v10, 2, v1")
    A(f"v_mul_u32_u24 v10, {OB2S}, v10")
    A("v_and_b32 v11, 3, v1")
    A("v_lshl_add_u32 v10, v11, 4, v10")
    A(f"s_mul_i32 s58, s30, {128*OB2S}")
    A("s_lshl_b32 s61, s31, 6")
    A("s_add_u32 s58, s58, s61")
    A(f"s_add_u32 s58, s58, {OB2}")
    for t in range(8):
        A(f"s_add_u32 s{48+t}, s58, {t*16*OB2S}")
    A("v_lshrrev_b32 v14, 5, v1")
    A("v_lshlrev_b32 v14, 2, v14")
    A(f"v_lshl_add_u32 v14, v11, {4 if lin else 3}, v14")
    out_off(58, 61, 60)
    A(f"s_mov_b32 s60, {spin_max}")
    for t in range(8):
        A(f"s_mov_b64 s[{64+2*t}:{65+2*t}], -1")
    LB("L_poll2")
    for t in range(8):
        A(f"s_mov_b64 exec, s[{64+2*t}:{65+2*t}]")
        A(f"s_cbranch_execz L_p2s{t}")
        A(f"buffer_load_dwordx4 v[{64+4*t}:{67+4*t}], v10, s[40:43], s{48+t} offen {HL}")
        LB(f"L_p2s{t}")
    A("s_mov_b64 exec, -1")
    A("s_waitcnt vmcnt(0)")
    for t in range(8):
        A(f"v_max3_u32 v{12+(t&1)}, v{64+4*t}, v{65+4*t}, v{66+4*t}")
        A(f"v_max_u32 v{12+(t&1)}, v{12+(t&1)}, v{67+4*t}")
        A(f"v_cmp_eq_u32 s[{64+2*t}:{65+2*t}], -1, v{12+(t&1)}")
    A("s_or_b64 s[62:63], s[64:65], s[66:67]")
    for t in range(2, 8):
        A(f"s_or_b64 s[62:63], s[62:63], s[{64+2*t}:{65+2*t}]")
    A("s_cbranch_scc0 L_poll2_done")
    A(f"s_sleep {s2}")
    A("s_sub_u32 s60, s60, 1")
    A("s_cmp_lg_u32 s60, 0")
    A("s_cbranch_scc1 L_poll2")
    LB("L_poll2_done")
    stamp(5)
    for step in (16, 8, 4):
        for k in range(step):
            A(f"v_add_f32 v{64+k}, v{64+k}, v{64+step+k}")
    A("s_nop 1")
    A("v_permlane32_swap_b32 v64, v66")
    A("v_permlane32_swap_b32 v65, v67")
    A("s_nop 1")
    A("v_add_f32 v64, v64, v66")
    A("v_add_f32 v65, v65, v67")
    A("v_mov_b32 v66, v64")
    A("v_mov_b32 v67, v65")
    A("s_nop 1")
    A("v_permlane16_swap_b32 v66, v64")
    A("v_permlane16_swap_b32 v67, v65")
    A("s_nop 1")
    A("v_add_f32 v64, v64, v66")
    A("v_add_f32 v65, v65, v67")
    A("s_nop 1")
    A(f"v_add_f32_dpp v64, v64, v64 row_ror:8 {DPP}")
    A(f"v_add_f32_dpp v65, v65, v65 row_ror:8 {DPP}")
    A("s_nop 1")
    A(f"v_add_f32_dpp v64, v64, v64 row_ror:4 {DPP}")
    A(f"v_add_f32_dpp v65, v65, v65 row_ror:4 {DPP}")
    A("s_mov_b32 s60, 15")
    A("s_mov_b32 s61, 15")
    A("v_cvt_pk_bf16_f32 v64, v64, v65")
    if sprobe:
        A("s_mov_b32 s92, 0")
        A("s_atomic_add s92, s[24:25], 0 glc")
        A("s_memrealtime s[90:91]")
        A("s_waitcnt lgkmcnt(0)")
        A("s_not_b32 s92, s92")
        A("s_sub_u32 s92, s90, s92")
        A("s_min_u32 s92, s92, 5000")
        A(f"s_mul_i32 s92, s92, {sprobe}")
        LB("L_sp2")
        A("s_memrealtime s[94:95]")
        A("s_waitcnt lgkmcnt(0)")
        A("s_sub_u32 s94, s94, s90")
        A("s_cmp_lt_u32 s94, s92")
        A("s_cbranch_scc1 L_sp2")
    if tfix:
        if tmode:
            A("s_mov_b32 s92, 0")
            A("s_atomic_add s92, s[24:25], 0 glc")
            A("s_waitcnt lgkmcnt(0)")
            if tmode == 1: A("s_not_b32 s92, s92")
        LB("L_tfix")
        A("s_memrealtime s[94:95]")
        A("s_waitcnt lgkmcnt(0)")
        A("s_sub_u32 s94, s94, s92")
        A(f"s_cmp_lt_u32 s94, {tfix*100}")
        A("s_cbranch_scc1 L_tfix")
    A("s_mov_b64 exec, s[60:61]")
    A(f"buffer_store_dword v64, v14, s[44:47], s58 offen {['', 'sc1', 'sc0 sc1', 'nt'][osc]}")
    A("s_mov_b64 exec, -1")
    stamp(6)
    LB("L_fin")
    dump_stamps(False)
    A("s_endpgm")

    LB("L_service")
    svc[0] = True
    for k in range(4):
        A(f"v_mov_b32 v{48+k}, -1")
    A("v_lshlrev_b32 v14, 4, v1")
    A("v_mov_b32 v15, 0")
    A(f"ds_write_b32 v15, v15 offset:{L_CNT}")
    A(f"ds_write_b128 v14, v[48:51] offset:{L_WIN}")
    def clears():
        C("own outboxes := sentinel, ticket counter := 0")
        for k in range(2):
            A(f"buffer_store_dwordx4 v[48:51], v14, s[40:43], s57 offen offset:{1024*k} sc1")
        A("buffer_store_dwordx4 v[48:51], v14, s[40:43], s58 offen sc1")
        A("s_mov_b32 s70, -1")
        A("s_mov_b32 s71, 0xffff")
        A("s_mov_b64 exec, s[70:71]")
        A("buffer_store_dwordx4 v[48:51], v14, s[40:43], s58 offen offset:1024 sc1")
        A(f"s_mov_b64 exec, {'0xff' if al else '0xffff'}")
        A("buffer_store_dwordx4 v[48:51], v14, s[40:43], s57 offen offset:2048 sc1")
        if rep:
            A("s_add_u32 s70, s57, 0xA0000")
            A("buffer_store_dwordx4 v[48:51], v14, s[40:43], s70 offen offset:2048 sc1")
            A("s_mov_b64 exec, -1")
            A("buffer_store_dwordx4 v[48:51], v14, s[40:43], s70 offen sc1")
            A("buffer_store_dwordx4 v[48:51], v14, s[40:43], s70 offen offset:1024 sc1")
        A("s_mov_b64 exec, -1")
    if clr == 2:
        A(f"s_mul_i32 s57, s2, {OB1S}")
        A(f"s_add_u32 s57, s57, {OB1}")
        A(f"s_mul_i32 s58, s2, {OB2S}")
        A(f"s_add_u32 s58, s58, {OB2}")
        clears()
    if NSW == 3: q_partial(5 if clr == 2 else 0)
    A("s_mul_i32 s70, s30, 896")
    A("s_add_u32 s44, s4, s70")
    A("s_addc_u32 s45, s5, 0")
    A("s_mov_b32 s46, 896")
    A(f"s_mul_i32 s57, s2, {OB1S}")
    A(f"s_add_u32 s57, s57, {OB1}")
    A(f"s_mul_i32 s58, s2, {OB2S}")
    A(f"s_add_u32 s58, s58, {OB2}")
    stamp(1)
    A("s_waitcnt lgkmcnt(0)")
    A("s_barrier")
    for w in range(4):
        A(f"ds_read_b64 v[{16+2*w}:{17+2*w}], v12 offset:{L_QP+128*w}")
    if clr != 2: A("s_waitcnt vmcnt(0)")
    A("v_add_u32 v72, 0x10000, v72")
    A("v_add_u32 v73, 0x10000, v73")
    A("v_and_b32 v72, 0xffff0000, v72")
    A("v_and_b32 v73, 0xffff0000, v73")
    A("s_waitcnt lgkmcnt(0)")
    A("v_add_f32 v16, v16, v18")
    A("v_add_f32 v17, v17, v19")
    A("v_add_f32 v20, v20, v22")
    A("v_add_f32 v21, v21, v23")
    A("v_add_f32 v16, v16, v20")
    A("v_add_f32 v17, v17, v21")
    A("v_cvt_pk_bf16_f32 v16, v16, 0")
    A("v_cvt_pk_bf16_f32 v17, v17, 0")
    A("v_or_b32 v72, v72, v16")
    A("v_or_b32 v73, v73, v17")
    A("s_mov_b64 exec, s[62:63]")
    A(f"buffer_store_dwordx2 v[72:73], v12, s[40:43], s59 offen offset:{QBOX} sc1")
    A("s_mov_b64 exec, -1")
    stamp(2)
    if clr == 1: clears()
    A("s_cmp_lg_u32 s29, 0")
    A("s_cbranch_scc1 L_notinit")
    A("s_lshl_b32 s70, s28, 12")
    A(f"s_add_u32 s70, s70, {TICK}")
    A("s_mov_b64 exec, 1")
    A("buffer_store_dword v15, v15, s[40:43], s70 offen sc1")
    A("s_mov_b64 exec, -1")
    LB("L_notinit")
    A("s_lshl_b32 s65, s30, 6")
    A("s_add_u32 s65, s65, 128")
    A("s_mov_b32 s68, 1")
    A("s_mov_b32 s59, 0")
    A("s_mov_b32 s66, 0x10000")
    A("s_waitcnt vmcnt(0)")
    A("s_atomic_add s68, s[24:25], s65")
    LB("L_pollq")
    A(f"buffer_load_dwordx4 v[76:79], v11, s[40:43], s56 offen offset:{QBOX} sc1")
    A(f"buffer_load_dwordx4 v[80:83], v11, s[40:43], s56 offen offset:{QBOX+16} sc1")
    A("s_waitcnt vmcnt(0)")
    for k in range(8):
        A(f"v_xor_b32 v{84+k}, v{64+k}, v{76+k}")
    A("v_min3_u32 v84, v84, v85, v86")
    A("v_min3_u32 v87, v87, v88, v89")
    A("v_min3_u32 v84, v84, v90, v91")
    A("v_min_u32 v84, v84, v87")
    A("v_cmp_gt_u32 vcc, s66, v84")
    A("s_cbranch_vccz L_pollq_done")
    A("s_mov_b64 exec, vcc")
    A("s_add_u32 s59, s59, 1")
    A("s_sleep 1")
    A(f"s_cmp_lt_u32 s59, {fbk}")
    A("s_cbranch_scc1 L_pollq")
    C("the snapshot may have been taken after a producer wrote: once the whole batch arrived, the next read is valid")
    A("s_mov_b32 s70, 0")
    A("s_atomic_add s70, s[24:25], s65 glc")
    A("s_waitcnt lgkmcnt(0)")
    A("s_cmp_ge_u32 s70, 128")
    A("s_cselect_b32 s66, 0, s66")
    A(f"s_cmp_lt_u32 s59, {spin_max}")
    A("s_cbranch_scc1 L_pollq")
    LB("L_pollq_done")
    A("s_mov_b64 exec, -1")
    stamp(3)
    for k in range(4):
        A(f"v_perm_b32 v{48+k}, v{77+2*k}, v{76+2*k}, s60")
    A(f"ds_write_b128 v14, v[48:51] offset:{L_Q}")
    A("s_waitcnt lgkmcnt(0)")
    A("s_barrier")
    stamp(4)
    if tmode == 1:
        A("s_not_b32 s94, s92")
        A("s_atomic_umax s94, s[24:25], 0")
        A("s_waitcnt lgkmcnt(0)")
    if tmode == 2:
        A("s_mov_b32 s94, s92")
        A("s_atomic_umax s94, s[24:25], 0")
        A("s_waitcnt lgkmcnt(0)")
    if tmode == 3:
        A("s_memrealtime s[94:95]")
        A("s_waitcnt lgkmcnt(0)")
        A("s_atomic_umax s94, s[24:25], 0")
        A("s_waitcnt lgkmcnt(0)")
    C("background: FFN hidden slice, gate, output-side weights")
    make_masks(56, 57)
    A("s_and_b32 s66, s31, 7")
    A("s_mul_i32 s66, s66, 14")
    A("s_lshr_b32 s67, s31, 3")
    A("s_add_u32 s66, s66, s67")
    A("s_cmp_lt_u32 s31, 112")
    A(f"s_cselect_b32 s59, {448*1792*2}, 0")
    srd(48, 16, 17, 0 if skip & 2 else "s59")
    srd(36, 20, 21, 896)
    A("v_lshrrev_b32 v10, 1, v1")
    A("v_and_b32 v11, 1, v1")
    A("v_mul_u32_u24 v12, 28, v10")
    A(f"v_mul_u32_u24 v13, {14*3584}, v10")
    A("v_lshl_add_u32 v13, v11, 4, v13")
    A(f"buffer_load_dwordx4 v[{XR}:{XR+3}], v12, s[44:47], 0 offen")
    A(f"buffer_load_dwordx3 v[{XR+4}:{XR+6}], v12, s[44:47], 0 offen offset:16")
    A("buffer_load_dwordx4 v[40:43], v14, s[44:47], 0 offen")
    A("buffer_load_dwordx4 v[44:47], v14, s[36:39], 0 offen")
    A("s_lshl_b32 s56, s66, 5")
    cnt = [0]
    def thr():
        cnt[0] += 1
        if cnt[0] % SB == 0: A("s_waitcnt vmcnt(0)")
    for t in range(14):
        A(f"buffer_load_dwordx4 v[{64+4*t}:{67+4*t}], v13, s[48:51], s56 offen")
        A("s_add_u32 s56, s56, 3584")
        thr()
    for k in range(8):
        A(f"v_mov_b32 v{ACC+k}, 0")
    matvec_pairs(7, 64, XR, 0)
    A("s_nop 1")
    for k in range(2):
        A(f"v_add_f32_dpp v{ACC+k}, v{ACC+k}, v{ACC+k} row_ror:2 {DPP}")
    A(f"s_mov_b32 s59, {f2u(-math.log2(math.e)):#x}")
    for k in range(2):
        A(f"v_cvt_pk_bf16_f32 v{ACC+k}, 0, v{ACC+k}")
    for k in range(2):
        A(f"v_mul_f32 v{ACC+2+k}, s59, v{ACC+k}")
    for k in range(2):
        A(f"v_exp_f32 v{ACC+2+k}, v{ACC+2+k}")
    A("s_nop 0")
    for k in range(2):
        A(f"v_add_f32 v{ACC+2+k}, 1.0, v{ACC+2+k}")
    for k in range(2):
        A(f"v_rcp_f32 v{ACC+2+k}, v{ACC+2+k}")
    A("s_nop 0")
    for k in range(2):
        A(f"v_mul_f32 v{ACC+k}, v{ACC+k}, v{ACC+2+k}       ; silu")
    for k in range(2):
        A(f"v_cvt_pk_bf16_f32 v{ACC+k}, v{ACC+k}, v{ACC+k}")
    A("v_lshlrev_b32 v12, 5, v11")
    A("v_lshl_add_u32 v12, v9, 3, v12")
    A("s_mov_b32 s62, 0x00030003")
    A("s_mov_b32 s63, 0x00030003")
    A("s_mov_b64 exec, s[62:63]")
    A(f"ds_write_b64 v12, v[{ACC}:{ACC+1}] offset:{L_H}")
    A("s_mov_b64 exec, -1")
    C("gate")
    for k in range(4):
        A(f"v_lshlrev_b32 v52, 16, v{40+k}")
        A(f"v_lshlrev_b32 v53, 16, v{44+k}")
        A(f"v_and_b32 v54, 0xffff0000, v{40+k}")
        A(f"v_and_b32 v55, 0xffff0000, v{44+k}")
        A("v_mul_f32 v52, v52, v53")
        A("v_mul_f32 v54, v54, v55")
        A("v_cvt_pk_bf16_f32 v52, 0, v52")
        A("v_cvt_pk_bf16_f32 v54, 0, v54")
        if k == 0:
            A("v_add_f32 v56, v52, v54")
        else:
            A("v_add_f32 v56, v56, v52")
            A("v_add_f32 v56, v56, v54")
    for rr in (8, 4, 2, 1):
        A("s_nop 1")
        A(f"v_add_f32_dpp v56, v56, v56 row_ror:{rr} {DPP}")
    A("v_mov_b32 v57, v56")
    A("s_nop 1")
    A("v_permlane32_swap_b32 v57, v56")
    A("s_nop 1")
    A("v_add_f32 v56, v56, v57")
    A("v_mov_b32 v57, v56")
    A("s_nop 1")
    A("v_permlane16_swap_b32 v57, v56")
    A("s_nop 1")
    A("v_add_f32 v56, v56, v57")
    A("v_cvt_pk_bf16_f32 v56, 0, v56")
    A("v_mul_f32 v56, s59, v56")
    A("v_exp_f32 v56, v56")
    A("s_nop 0")
    A("v_add_f32 v56, 1.0, v56")
    A("v_rcp_f32 v56, v56")
    A("s_nop 0")
    A("v_cvt_pk_bf16_f32 v2, 0, v56           ; g")
    A("v_sub_f32 v3, 1.0, v2")
    A("v_cvt_pk_bf16_f32 v3, 0, v3            ; 1-g")
    A("v_mov_b32 v16, 0")
    A(f"ds_write_b64 v16, v[2:3] offset:{L_G}")
    out_setup()
    A(f"ds_read_b128 v[80:83], v52 offset:{L_H}")
    A("v_lshlrev_b32 v52, 1, v52")
    A("s_waitcnt lgkmcnt(0)")
    for t in range(4):
        for k in range(4):
            A(f"v_and_b32 v{24+4*t+k}, v{80+t}, v{4+k}")
    A(f"s_mov_b32 s59, {f2u(C_SCALE):#x}")
    A("v_lshlrev_b32 v10, 5, v1")
    A("v_lshrrev_b32 v11, 5, v1")
    A("v_lshlrev_b32 v11, 3, v11")
    A("v_lshrrev_b32 v15, 2, v1")
    A("v_mul_u32_u24 v15, 144, v15")
    A("v_and_b32 v12, 3, v1")
    A("v_lshl_add_u32 v15, v12, 5, v15")
    A(f"v_mul_u32_u24 v12, {OB1S}, v8")
    A("v_lshl_add_u32 v13, v9, 5, v12")
    A(f"s_mul_i32 s60, s28, {16*OB1S}")
    A(f"s_add_u32 s60, s60, {OB1}")
    if al:
        A("s_lshr_b32 s66, s29, 3")
        A("s_lshl_b32 s66, s66, 3")
        A("s_add_u32 s66, s66, s60")
        A("v_lshlrev_b32 v10, 4, v1")
        A("v_mov_b32 v11, 0")
    A(f"s_mul_i32 s61, s29, {128 if al else 144}")
    A("s_add_u32 s60, s60, s61")
    A("v_lshlrev_b32 v14, 5, v9")
    if pp:
        for k in range(8):
            A(f"v_mov_b32 v{120+k}, -1")
    A("s_lshl_b32 s54, 0x00010001, s29")
    A("s_mov_b32 s55, s54")
    A("s_lshl_b32 s61, s29, 4")
    A("v_lshl_add_u32 v21, v9, 2, s61")
    def warm_tail():
        C("address-translation warm-up for the pages the tail touches (values unused)")
        A("s_mov_b64 exec, 1")
        A(f"buffer_load_dword v200, v16, s[32:35], {'s73' if wsel else '0'} offen {['', '', 'sc1', 'nt'][wsel]}")
        A("buffer_load_dword v201, v16, s[40:43], s64 offen sc1")
        A("buffer_load_dword v202, v16, s[40:43], s57 offen sc1")
        A("buffer_load_dword v203, v54, s[44:47], s69 offen")
        A("buffer_load_dword v204, v55, s[48:51], s67 offen")
        A("s_mov_b64 exec, -1")
    if wkv:
        C("translations of the group's K/V pages (pool tiles, first V tile)")
        srd(32, 6, 7, "0x10000000")
        srd(36, 8, 9, "0x10000000")
        A("v_lshlrev_b32 v17, 21, v1")
        A("s_lshl_b32 s70, s28, 24")
        A(f"s_add_u32 s70, s70, {NS << 16}")
        A("s_mov_b64 exec, 0xff")
        A("buffer_load_dword v205, v17, s[32:35], s70 offen nt")
        A("buffer_load_dword v206, v17, s[36:39], s70 offen nt")
        A("s_mov_b64 exec, -1")
    srd(32, 22, 23, 1792)
    if wsel:
        out_off(73, 70, 71)
        A("s_cmp_lt_u32 s31, 28")
        A("s_cselect_b32 s34, 1792, 0")
        A("s_cselect_b32 s73, s73, 0")
    if wout >= 3: warm_tail()
    C("whole batch arrived => every outbox read later was cleared and the ticket counters are set")
    A(f"s_mov_b32 s56, {spin_max}")
    LB("L_pollg")
    A("s_mov_b32 s70, 0")
    A("s_atomic_add s70, s[24:25], s65 glc")
    A("s_waitcnt lgkmcnt(0)")
    A("s_cmp_ge_u32 s70, 128")
    A("s_cbranch_scc1 L_pollg_done")
    A("s_sleep 16")
    A("s_sub_u32 s56, s56, 1")
    A("s_cmp_lg_u32 s56, 0")
    A("s_cbranch_scc1 L_pollg")
    LB("L_pollg_done")
    C("window-ticket server")
    A("s_lshl_b32 s74, s28, 12")
    A(f"s_add_u32 s74, s74, {TICK}")
    A("s_add_u32 s74, s26, s74")
    A("s_addc_u32 s75, s27, 0")
    A("s_mov_b32 s71, 0")
    A("s_mov_b32 s72, 0")
    A("v_mov_b32 v16, 0")
    A(f"s_mov_b32 s56, {spin_max*32}")
    LB("L_tk")
    A(f"ds_read_b32 v17, v16 offset:{L_CNT}")
    A("s_waitcnt lgkmcnt(0)")
    A("v_readfirstlane_b32 s70, v17")
    A("s_cmp_gt_u32 s70, s72")
    A("s_cbranch_scc1 L_tk_fetch")
    A("s_sleep 2")
    A("s_sub_u32 s56, s56, 1")
    A("s_cmp_lg_u32 s56, 0")
    A("s_cbranch_scc1 L_tk")
    A("s_branch L_tk_done")
    LB("L_tk_fetch")
    A("s_mov_b32 s70, 1")
    A("s_atomic_add s70, s[74:75], 0 glc")
    A("v_mov_b32 v17, s71")
    A("s_waitcnt lgkmcnt(0)")
    A("v_mov_b32 v20, s70")
    A("s_add_u32 s71, s71, 4")
    A(f"s_add_u32 s72, s72, {WT}")
    A(f"ds_write_b32 v17, v20 offset:{L_WIN}")
    A(f"s_cmp_lt_u32 s70, {NTK - RET}")
    A("s_cbranch_scc1 L_tk")
    C("one of the last tickets (or none): this WG asks for nothing more")
    A("v_mov_b32 v17, s71")
    A("v_mov_b32 v20, 0x10000")
    for k in range(-(-NSW // WT)):
        A(f"ds_write_b32 v17, v20 offset:{L_WIN + 4*k}")
    LB("L_tk_done")
    if wout: warm_tail()
    if warm:
        C("touch the pages of the output-side weights (address translation only)")
        A("s_mov_b64 exec, 1")
        A("buffer_load_dword v17, v54, s[44:47], s69 offen")
        A("buffer_load_dword v20, v55, s[48:51], s67 offen")
        A("s_mov_b64 exec, -1")
    A("s_waitcnt lgkmcnt(0)")
    A("s_barrier")
    stamp(5)
    if prof: A("s_waitcnt lgkmcnt(0)")
    if al:
        C("WG combine: lane l owns floats 4l..4l+3 of both heads")
        for w in range(3):
            A(f"ds_read_b128 v[{40+4*w}:{43+4*w}], v11 offset:{L_ML+16*w}")
        for w in range(3):
            A(f"ds_read_b128 v[{64+8*w}:{67+8*w}], v10 offset:{L_O+2048*w}")
            A(f"ds_read_b128 v[{68+8*w}:{71+8*w}], v10 offset:{L_O+2048*w+1024}")
        A("s_waitcnt lgkmcnt(6)")
        A("v_max3_f32 v16, v40, v44, v48")
        A("v_max3_f32 v18, v42, v46, v50")
        for w in range(3):
            A(f"v_sub_f32 v{40+4*w}, v{40+4*w}, v16")
            A(f"v_sub_f32 v{42+4*w}, v{42+4*w}, v18")
        for w in range(6):
            A(f"v_mul_f32 v{40+2*w}, s59, v{40+2*w}")
        for w in range(6):
            A(f"v_exp_f32 v{40+2*w}, v{40+2*w}")
        A("s_waitcnt lgkmcnt(0)")
        for h in range(2):
            for k in range(4):
                A(f"v_mul_f32 v{64+4*h+k}, v{40+2*h}, v{64+4*h+k}")
            for w in range(1, 3):
                for k in range(4):
                    A(f"v_fmac_f32 v{64+4*h+k}, v{40+4*w+2*h}, v{64+8*w+4*h+k}")
            A(f"buffer_store_dwordx4 v[{64+4*h}:{67+4*h}], v10, s[40:43], s57 offen offset:{1024*h} {HS}")
        A("v_mul_f32 v17, v40, v41")
        A("v_mul_f32 v19, v42, v43")
        for w in range(1, 3):
            A(f"v_fmac_f32 v17, v{40+4*w}, v{41+4*w}")
            A(f"v_fmac_f32 v19, v{42+4*w}, v{43+4*w}")
        A("s_mov_b64 exec, 1")
        A(f"buffer_store_dwordx4 v[16:19], v11, s[40:43], s57 offen offset:2048 {HS}")
        A("s_nop 0")
    else:
        C("WG combine")
        for w in range(NSW):
            A(f"ds_read_b64 v[{56+2*w}:{57+2*w}], v11 offset:{L_ML+16*w}")
        for w in range(NSW):
            A(f"ds_read_b128 v[{64+8*w}:{67+8*w}], v10 offset:{L_O+2048*w}")
            A(f"ds_read_b128 v[{68+8*w}:{71+8*w}], v10 offset:{L_O+2048*w+16}")
        A(f"s_waitcnt lgkmcnt({2*NSW})")
        A("v_max3_f32 v16, v56, v58, v60")
        if NSW == 4: A("v_max_f32 v16, v16, v62")
        for w in range(NSW):
            A(f"v_sub_f32 v{56+2*w}, v{56+2*w}, v16")
        for w in range(NSW):
            A(f"v_mul_f32 v{56+2*w}, s59, v{56+2*w}")
        for w in range(NSW):
            A(f"v_exp_f32 v{56+2*w}, v{56+2*w}")
        A("s_nop 0")
        A("v_mul_f32 v17, v56, v57")
        for w in range(1, NSW):
            A(f"v_fmac_f32 v17, v{56+2*w}, v{57+2*w}")
        A("s_waitcnt lgkmcnt(0)")
        for k in range(8):
            A(f"v_mul_f32 v{64+k}, v56, v{64+k}")
        for w in range(1, NSW):
            for k in range(8):
                A(f"v_fmac_f32 v{64+k}, v{56+2*w}, v{64+8*w+k}")
        A(f"buffer_store_dwordx4 v[64:67], v15, s[40:43], s57 offen {HS}")
        A(f"buffer_store_dwordx4 v[68:71], v15, s[40:43], s57 offen offset:16 {HS}")
        A("s_mov_b32 s62, 0x11111111")
        A("s_mov_b32 s63, 0x11111111")
        A("s_mov_b64 exec, s[62:63]")
        A(f"buffer_store_dwordx2 v[16:17], v15, s[40:43], s57 offen offset:128 {HS}")
    if rep:
        A("s_add_u32 s70, s57, 0xA0000")
        A(f"buffer_store_dwordx2 v[16:17], v15, s[40:43], s70 offen offset:128 {HS}")
        A("s_mov_b64 exec, -1")
        A(f"buffer_store_dwordx4 v[64:67], v15, s[40:43], s70 offen {HS}")
        A(f"buffer_store_dwordx4 v[68:71], v15, s[40:43], s70 offen offset:16 {HS}")
        A("s_add_u32 s71, s60, 0xA0000")
    A("s_mov_b64 exec, -1")
    def poll1_loads():
        A(f"buffer_load_dwordx4 v[72:75], v13, s[40:43], s60 offen {HL}")
        A(f"buffer_load_dwordx4 v[76:79], v13, s[40:43], s60 offen offset:16 {HL}")
        if al: A(f"buffer_load_dwordx2 v[80:81], v12, s[40:43], s66 offen offset:2048 {HL}")
        else: A(f"buffer_load_dwordx2 v[80:81], v12, s[40:43], s60 offen offset:128 {HL}")
    stamp(1)
    if ob == 3: A("s_barrier")
    A(f"s_mov_b32 s56, {spin_max}")
    if pp:
        C("weights first; then overlapped polls that all land in v120..127/v86..87; a register copy is what is checked and used")
        A("s_mov_b32 s62, 0x00ff00ff")
        A("s_mov_b32 s63, 0x00ff00ff")
        A("s_mov_b64 exec, s[62:63]")
        out_loads()
        A("s_mov_b64 exec, -1")
        for k in range(8):
            A(f"ds_bpermute_b32 v{72+k}, v21, v{64+k}")
        A("ds_bpermute_b32 v80, v21, v16")
        A("ds_bpermute_b32 v81, v21, v17")
        A("v_mov_b32 v86, -1")
        A("v_mov_b32 v87, -1")
        A("s_andn2_b64 exec, -1, s[54:55]")
        LB("L_poll1")
        A(f"buffer_load_dwordx4 v[120:123], v13, s[40:43], s60 offen {HL}")
        A(f"buffer_load_dwordx4 v[124:127], v13, s[40:43], s60 offen offset:16 {HL}")
        A(f"buffer_load_dwordx2 v[86:87], v12, s[40:43], s60 offen offset:128 {HL}")
        if rep:
            A("s_mov_b32 s70, s60")
            A("s_mov_b32 s60, s71")
            A("s_mov_b32 s71, s70")
        A(f"s_sleep {pp}")
        A(f"s_waitcnt vmcnt({ppc}) lgkmcnt(0)")
        for k in range(8):
            A(f"v_mov_b32 v{72+k}, v{120+k}")
        A("v_mov_b32 v80, v86")
        A("v_mov_b32 v81, v87")
        A("v_max3_u32 v18, v72, v73, v74")
        A("v_max3_u32 v19, v75, v76, v77")
        A("v_max3_u32 v18, v18, v78, v79")
        A("v_max3_u32 v19, v19, v80, v81")
        A("v_max_u32 v18, v18, v19")
        A("v_cmp_eq_u32 vcc, -1, v18")
        A("s_cbranch_vccz L_poll1_done")
        A("s_mov_b64 exec, vcc")
        A("s_sub_u32 s56, s56, 1")
        A("s_cmp_lg_u32 s56, 0")
        A("s_cbranch_scc1 L_poll1")
        A("s_waitcnt vmcnt(0)")
    else:
        if own:
            C("own packet comes from registers; the other 15 are polled")
            A("s_andn2_b64 exec, -1, s[54:55]")
            poll1_loads()
            if m3:
                A("s_mov_b32 s62, 0x00ff00ff")
                A("s_mov_b32 s63, 0x00ff00ff")
                A("s_mov_b64 exec, s[62:63]")
            else:
                A("s_mov_b64 exec, -1")
            out_loads()
            A("s_mov_b64 exec, -1")
            for k in range(8):
                A(f"ds_bpermute_b32 v{88+k}, v21, v{64+k}")
            A("ds_bpermute_b32 v96, v21, v16")
            A("ds_bpermute_b32 v97, v21, v17")
            A("s_mov_b64 exec, s[54:55]")
            A("s_waitcnt vmcnt(12) lgkmcnt(0)")
            for k in range(10):
                A(f"v_mov_b32 v{72+k}, v{88+k}")
            A("s_mov_b64 exec, -1")
            A("s_branch L_poll1_chk")
        else:
            A("s_mov_b32 s62, 0x00ff00ff")
            A("s_mov_b32 s63, 0x00ff00ff")
            A("s_mov_b64 exec, s[62:63]")
            out_loads()
            A("s_mov_b64 exec, -1")
        LB("L_poll1")
        poll1_loads()
        A("s_waitcnt vmcnt(0)")
        LB("L_poll1_chk")
        A("v_max3_u32 v18, v72, v73, v74")
        A("v_max3_u32 v19, v75, v76, v77")
        A("v_max3_u32 v18, v18, v78, v79")
        A("v_max3_u32 v19, v19, v80, v81")
        A("v_max_u32 v18, v18, v19")
        A("v_cmp_eq_u32 vcc, -1, v18")
        A("s_cbranch_vccz L_poll1_done")
        A("s_mov_b64 exec, vcc")
        A("s_bcnt1_i32_b64 s61, vcc")
        A(f"s_cmp_le_u32 s61, {lt}")
        A("s_cbranch_scc1 L_poll1_fast")
        A(f"s_sleep {ls}")
        LB("L_poll1_fast")
        A("s_sleep 1")
        A("s_sub_u32 s56, s56, 1")
        A("s_cmp_lg_u32 s56, 0")
        A("s_cbranch_scc1 L_poll1")
    LB("L_poll1_done")
    A("s_mov_b64 exec, -1")
    stamp(6)
    if sprobe:
        A("s_cmp_lg_u32 s29, 0")
        A("s_cbranch_scc1 L_sp1")
        A("s_memrealtime s[94:95]")
        A("s_waitcnt lgkmcnt(0)")
        A("s_not_b32 s94, s94")
        A("s_atomic_umax s94, s[24:25], 0")
        LB("L_sp1")
    C("group combine over the 16 producers, then 32 rows of wo")
    A(f"v_max_f32_dpp v18, v80, v80 row_ror:8 {DPP}")
    for rr in (4, 2, 1):
        A("s_nop 1")
        A(f"v_max_f32_dpp v18, v18, v18 row_ror:{rr} {DPP}")
    A("v_sub_f32 v18, v80, v18")
    A("v_mul_f32 v18, s59, v18")
    A("v_exp_f32 v18, v18")
    A("s_nop 0")
    A("v_mul_f32 v80, v18, v81")
    for k in range(8):
        A(f"v_mul_f32 v{72+k}, v18, v{72+k}")
    for rr in (8, 4, 2, 1):
        for k in (8, 0, 1, 2, 3, 4, 5, 6, 7):
            A(f"v_add_f32_dpp v{72+k}, v{72+k}, v{72+k} row_ror:{rr} {DPP}")
    A("v_rcp_f32 v80, v80")
    A("s_nop 0")
    for k in range(8):
        A(f"v_mul_f32 v{72+k}, v80, v{72+k}")
    for k in range(8):
        A(f"v_cvt_pk_bf16_f32 v{72+k}, v{72+k}, v{72+k}")
    A("s_mov_b32 s62, 0x00010001")
    A("s_mov_b32 s63, 0x00010001")
    A("s_mov_b64 exec, s[62:63]")
    A(f"ds_write_b128 v14, v[72:75] offset:{L_OP}")
    A(f"ds_write_b128 v14, v[76:79] offset:{L_OP+16}")
    A("s_mov_b64 exec, -1")
    A("s_waitcnt lgkmcnt(0)")
    A("s_branch L_out")
    LB("L_svc_end")
    stamp(7)
    dump_stamps(True)
    LB("L_end")
    A("s_endpgm")
    L.append('.section .rodata,"a"')
    L.append(".p2align 6")
    L.append(f".amdhsa_kernel {NAME}_kernel")
    L.append("  .amdhsa_next_free_vgpr 256")
    L.append("  .amdhsa_next_free_sgpr 96")
    L.append("  .amdhsa_accum_offset 256")
    L.append("  .amdhsa_group_segment_fixed_size 0")
    L.append("  .amdhsa_kernarg_size 96")
    L.append("  .amdhsa_user_sgpr_count 2")
    L.append("  .amdhsa_user_sgpr_kernarg_segment_ptr 1")
    L.append("  .amdhsa_system_sgpr_workgroup_id_x 1")
    L.append(".end_amdhsa_kernel")
    return "\n".join(L) + "\n"


if __name__ == "__main__":
    out = sys.argv[1]
    kw = {}
    for a in sys.argv[2:]:
        k, v = a.split("=")
        kw[k] = int(v)
    open(out, "w").write(gen(**kw))
```

```python
import sys, math, struct

NAME = "gated_mix__gqa_block_cached__dense_activation_silu__decode"
HEADER = open("cdna_kernels/" + NAME + ".s.ref").read().split("; Override launch")[0]

QBOX = 0x0
TICK = 0x10000
OB1 = 0x40000
OB1S = 2304
OB2 = 0x200000
OB2S = 1792
STAMP = 0x20000000
C_SCALE = (1.0 / 16.0) * math.log2(math.e)
def f2u(x): return struct.unpack("<I", struct.pack("<f", x))[0]


DOC = """
One launch, 256 workgroups (group = wg>>4 = batch*8 + kv head, 16 workgroups per group), 4 waves each.
 * wave 0 (service): hands q slices round the group through d_ws (16-bit tags = stale tag + 1, arrival
   counter in d_debug as fall-back), computes a 16-unit FFN slice and the gate, serves window tickets,
   merges the wave partials, merges the 16 partials of a 32-row slice of o and multiplies it with wo.
 * waves 1-3 stream K (scores -> LDS, true max), then V, straight into MFMA operand registers:
   QK^T uses 64-byte row pieces as A rows and picks the diagonal blocks, P.V puts p on the diagonal of
   A so that row-major V is the B operand as loaded.  The last 1/16 of the keys is a shared pool handed
   out by tickets (running max with rescale) so that all workgroups finish together.
 * partial results travel through sentinel-cleared boxes in d_ws (sc1 stores / sc1 loads).
"""

def gen(prof=0, NSW=3, NS=30, NPRE=6, kip=1, vip=1, RET=8, fbk=4, SB=8, spin_max=200000, ldsx=0, dseq=0, PF2=0, WT=3, skip=0, ptile=0, early=1, eh=0, hl=0, hs=0, ls=16, lt=28, s2=2, pre=1, tfix=0, osc=1, tmode=0, ob=3, warm=0, own=1, m3=1, sprobe=0, pp=0, ppc=30, clr=1, wout=3, wkv=0, wsel=1):
    NT = NS*4 // NSW
    assert NS*4 % NSW == 0 and NSW in (3, 4)
    SSTR = NT*128
    L_Q = 0
    L_S = 1024
    L_O = L_S + NSW*SSTR
    L_ML = L_O + 2048*NSW
    L_H = L_ML + 64
    L_G = L_H + 64
    L_OP = L_G + 64
    L_QP = L_OP + 128
    L_CNT = L_QP + 512
    L_WIN = L_CNT + 64
    LDS_BYTES = L_WIN + 1024
    NPT = (32-NS)*64
    NTK = -(-NPT // WT)
    L = []
    A = lambda s: L.append("  " + s)
    LB = lambda s: L.append(s + ":")
    C = lambda s: L.append("  ; " + s)
    DPP = "row_mask:0xf bank_mask:0xf"
    ACC, XR = 16, 32

    svc = [False]
    HL = ['sc1', 'sc0 sc1', 'sc1 nt'][hl]
    HS = ['sc1', 'sc0 sc1', 'sc1 nt'][hs]
    def stamp(k, force=False):
        if ptile and not svc[0] and not force and k not in (0, 7):
            return
        if prof: A(f"s_memrealtime s[{80+2*k}:{81+2*k}]")
    def dump_stamps(svc):
        if not prof: return
        A("s_waitcnt lgkmcnt(0)")
        A("s_lshl_b32 s56, s2, 3")
        A(f"s_add_u32 s56, s56, {'4' if svc else 's3'}")
        A("s_lshl_b32 s56, s56, 6")
        A(f"s_add_u32 s56, s56, {STAMP}")
        A("s_mov_b64 exec, 1")
        A("v_mov_b32 v60, 0")
        for q in range(4):
            for j in range(4):
                A(f"v_mov_b32 v{56+j}, s{80+4*q+j}")
            A(f"buffer_store_dwordx4 v[56:59], v60, s[40:43], s56 offen offset:{16*q}")
            A("s_nop 1")
        A("s_mov_b64 exec, -1")
    def srd(d, lo, hi, n):
        A(f"s_mov_b32 s{d}, s{lo}")
        A(f"s_mov_b32 s{d+1}, s{hi}")
        A(f"s_mov_b32 s{d+2}, {n}")
        A(f"s_mov_b32 s{d+3}, 0x00020000")
    def matvec_pairs(npairs, wbase, xbase, tail_ops):
        for u in range(npairs):
            A(f"s_waitcnt vmcnt({2*npairs - (2*u+2) + tail_ops})")
            w0 = wbase + 8*u; w1 = w0 + 4
            for k in range(4):
                A(f"v_perm_b32 v{52+k}, v{w1+k}, v{w0+k}, s60")
                A(f"v_perm_b32 v{56+k}, v{w1+k}, v{w0+k}, s61")
            for k in range(4):
                A(f"v_dot2c_f32_bf16 v{ACC+2*k}, v{52+k}, v{xbase+u}")
                A(f"v_dot2c_f32_bf16 v{ACC+2*k+1}, v{56+k}, v{xbase+u}")
        A("s_nop 3")
        for k in range(4):
            A(f"v_permlane32_swap_b32 v{ACC+k}, v{ACC+4+k}")
        A("s_nop 1")
        for k in range(4):
            A(f"v_add_f32 v{ACC+k}, v{ACC+k}, v{ACC+4+k}")
        A("s_nop 1")
        for k in range(2):
            A(f"v_permlane16_swap_b32 v{ACC+k}, v{ACC+2+k}")
        A("s_nop 1")
        for k in range(2):
            A(f"v_add_f32 v{ACC+k}, v{ACC+k}, v{ACC+2+k}")
        for rr in (8, 4):
            A("s_nop 1")
            for k in range(2):
                A(f"v_add_f32_dpp v{ACC+k}, v{ACC+k}, v{ACC+k} row_ror:{rr} {DPP}")
    def make_masks(t0, t1):
        C("v4..v7: lane e=l&7 owns bf16 element e of an 8-element A fragment")
        A(f"v_and_b32 v{t0}, 1, v1")
        A(f"v_lshlrev_b32 v{t0}, 4, v{t0}")
        A(f"v_mov_b32 v{t1}, 0xffff")
        A(f"v_lshlrev_b32 v{t1}, v{t0}, v{t1}")
        A(f"v_bfe_u32 v{t0}, v1, 1, 2")
        for k in range(4):
            A(f"v_cmp_eq_u32 vcc, {k}, v{t0}")
            A("s_nop 1")
            A(f"v_cndmask_b32 v{4+k}, 0, v{t1}, vcc")
    SLOT0 = 64
    def slot(sl, i): return SLOT0 + 32*sl + 4*i
    WQB = slot(5, 0)
    def wq_loads():
        A(f"buffer_load_dwordx4 v[{XR}:{XR+3}], v14, s[44:47], s58 offen")
        for t in range(8):
            A(f"buffer_load_dwordx4 v[{WQB+4*t}:{WQB+4*t+3}], v13, s[48:51], s57 offen")
            if t < 7: A("s_add_u32 s57, s57, 0x2000")
    def q_partial(tail):
        for k in range(8):
            A(f"v_mov_b32 v{ACC+k}, 0")
        A("s_lshl_b32 s58, s3, 7")
        A("v_add_u32 v13, s58, v12")
        matvec_pairs(4, WQB, XR, tail)
        A("s_mov_b64 exec, s[62:63]")
        A(f"ds_write_b64 v13, v[{ACC}:{ACC+1}] offset:{L_QP}")
        A("s_mov_b64 exec, -1")

    def out_setup():
        C("output side: this wave owns column block cb = role of 32 wo rows and 16 w2 rows")
        A("s_and_b32 s69, s31, 7")
        A("s_mul_i32 s69, s69, 14")
        A("s_lshr_b32 s67, s31, 3")
        A("s_add_u32 s69, s69, s67")
        A(f"s_mul_i32 s69, s69, {16*896}")
        A("s_cmp_lt_u32 s31, 112")
        A(f"s_cselect_b32 s46, {0 if skip & 4 else 448*1792*2}, 0")
        A("s_mov_b32 s44, s18")
        A("s_mov_b32 s45, s19")
        A("s_mov_b32 s47, 0x00020000")
        srd(48, 12, 13, 0 if skip & 8 else 4096*448*2)
        A("s_lshl_b32 s64, s3, 8")
        A("s_add_u32 s69, s69, s64")
        A(f"s_mul_i32 s67, s31, {32*896}")
        A("s_add_u32 s67, s67, s64")
        A(f"s_add_u32 s68, s67, {4*896}")
        A("s_lshl_b32 s64, s64, 1")
        A(f"s_mul_i32 s52, s2, {OB2S}")
        A("s_add_u32 s64, s64, s52")
        A(f"s_add_u32 s64, s64, {OB2}")
        A("s_cmp_eq_u32 s3, 3")
        A("s_cselect_b32 s52, 0x00ff00ff, -1")
        A("s_mov_b32 s53, 0")
        A("v_mul_u32_u24 v54, 3584, v9")
        A("v_lshl_add_u32 v54, v8, 4, v54         ; w2 row 16f + 4g + t")
        A("v_mul_u32_u24 v55, 7168, v9")
        A("v_lshl_add_u32 v55, v8, 4, v55")
        A("v_lshlrev_b32 v53, 5, v8")
        A("v_lshl_add_u32 v53, v9, 4, v53")
        A("v_lshlrev_b32 v52, 4, v9")
    def ffn_mfma():
        for t in range(4):
            c = "0" if t == 0 else "v[20:23]"
            A(f"v_mfma_f32_16x16x32_bf16 v[20:23], v[{24+4*t}:{27+4*t}], v[{160+4*t}:{163+4*t}], {c}")
    def out_loads():
        for t in range(4):
            A(f"buffer_load_dwordx4 v[{160+4*t}:{163+4*t}], v54, s[44:47], s69 offen offset:{t*896}")
        for t in range(8):
            A(f"buffer_load_dwordx4 v[{128+4*t}:{131+4*t}], v55, s[48:51], s{67 + (t>>2)} offen offset:{(t&3)*896}")
    L.append(HEADER.rstrip("\n"))
    L.append(f"; @launch grid=(256,1,1) block=({64*(NSW+1)},1,1) lds={ldsx or LDS_BYTES}")
    L.append('.amdgcn_target "amdgcn-amd-amdhsa--gfx950"')
    for line in DOC.strip("\n").splitlines():
        L.append("; " + line)
    L.append(".text")
    L.append(f".globl {NAME}_kernel")
    L.append(".p2align 8")
    L.append(f".type {NAME}_kernel,@function")
    LB(f"{NAME}_kernel")
    A("s_cmp_ge_u32 s2, 256")
    A("s_cbranch_scc1 L_end")
    if prof:
        for k in range(8):
            A(f"s_mov_b64 s[{80+2*k}:{81+2*k}], 0")
        stamp(0)
        A("s_waitcnt lgkmcnt(0)")
    if tfix:
        A("s_memrealtime s[92:93]")
        A("s_waitcnt lgkmcnt(0)")
    A("s_load_dwordx2 s[44:45], s[0:1], 0     ; x  -> SRD s[44:47]")
    A("s_load_dwordx2 s[48:49], s[0:1], 24")
    A("s_load_dwordx2 s[32:33], s[0:1], 8     ; K  -> SRD s[32:35]")
    A("s_load_dwordx2 s[40:41], s[0:1], 88")
    A("s_load_dwordx2 s[36:37], s[0:1], 16    ; V  -> SRD s[36:39]")
    A("s_load_dwordx16 s[4:19], s[0:1], 0")
    A("s_load_dwordx8 s[20:27], s[0:1], 64")
    A("v_lshrrev_b32 v2, 6, v0")
    A("v_and_b32 v1, 63, v0                   ; lane")
    A("v_readfirstlane_b32 s3, v2")
    A("s_sub_u32 s3, s3, 1")
    A(f"s_min_u32 s3, s3, {NSW}")
    A("s_lshr_b32 s28, s2, 4                  ; group")
    A("s_and_b32 s29, s2, 15                  ; s")
    A("s_lshr_b32 s30, s2, 7                  ; b")
    A("s_and_b32 s31, s2, 127                 ; i")
    C("s64 = q slice produced here: (i & ~15) + (s&7)*2 + (s>>3)")
    A("s_and_b32 s64, s29, 7")
    A("s_lshl_b32 s64, s64, 1")
    A("s_lshr_b32 s65, s29, 3")
    A("s_add_u32 s64, s64, s65")
    A("s_andn2_b32 s65, s31, 15")
    A("s_add_u32 s64, s64, s65")
    A("v_and_b32 v8, 15, v1")
    A("v_lshrrev_b32 v9, 4, v1                ; g")
    A("v_and_b32 v10, 3, v1")
    A("s_mov_b32 s42, 0x40000000")
    A("s_mov_b32 s43, 0x00020000")
    C("q partial: rows (role*14+rg)*8 + t, cols slice*32 + chunk*8")
    A("s_mul_i32 s58, s30, 896")
    A("s_mov_b32 s46, 1792")
    A("s_mov_b32 s47, 0x00020000")
    A(f"s_mov_b32 s50, {0 if skip & 1 else 448*4096*2}")
    A("s_mov_b32 s51, 0x00020000")
    A("v_lshrrev_b32 v14, 2, v1")
    A("s_mul_i32 s57, s3, 14")
    A("v_cmp_gt_u32 vcc, 14, v14")
    A("v_add_u32 v14, s57, v14")
    A("v_mov_b32 v13, 0x4000")
    A("v_cndmask_b32 v14, v13, v14, vcc")
    A("v_lshlrev_b32 v13, 16, v14")
    A("v_lshl_add_u32 v13, v10, 4, v13")
    A("v_lshlrev_b32 v14, 4, v14")
    A("s_lshl_b32 s57, s64, 6")
    A("v_lshlrev_b32 v12, 5, v10")
    A("v_lshl_add_u32 v12, v9, 3, v12         ; chunk*32 + g*8")
    A("s_mov_b32 s60, 0x05040100")
    A("s_mov_b32 s61, 0x07060302")
    A("s_mov_b32 s62, 0x000f000f")
    A("s_mov_b32 s63, 0x000f000f")
    A(f"s_cmp_lg_u32 s3, {NSW}")
    A("s_cbranch_scc1 L_stream")
    C("service: snapshot of the group's q box and of this WG's own stale tags")
    A("v_lshlrev_b32 v11, 5, v1")
    A("s_lshl_b32 s56, s28, 11")
    A("s_lshl_b32 s59, s30, 7")
    A("s_add_u32 s59, s59, s64")
    A("s_lshl_b32 s59, s59, 7")
    A("s_waitcnt lgkmcnt(0)")
    A(f"buffer_load_dwordx4 v[64:67], v11, s[40:43], s56 offen offset:{QBOX} sc1")
    A(f"buffer_load_dwordx4 v[68:71], v11, s[40:43], s56 offen offset:{QBOX+16} sc1")
    A(f"buffer_load_dwordx2 v[72:73], v12, s[40:43], s59 offen offset:{QBOX} sc1")
    if NSW == 3: wq_loads()
    A("s_branch L_service")

    LB("L_stream")
    A("s_mov_b32 s34, 0x10000000")
    A("s_mov_b32 s35, 0x00020000")
    A("s_mov_b32 s38, 0x10000000")
    A("s_mov_b32 s39, 0x00020000")
    C("tile n of this WG: group<<24 | (s&7)<<21 | (n>>2)<<16 | (s>>3)<<15 | (n&3)<<13")
    A("s_lshl_b32 s56, s28, 24")
    A("s_and_b32 s66, s29, 7")
    A("s_lshl_b32 s66, s66, 21")
    A("s_or_b32 s56, s56, s66")
    A("s_lshr_b32 s66, s29, 3")
    A("s_lshl_b32 s66, s66, 15")
    A("s_or_b32 s56, s56, s66")
    A("s_lshl_b32 s67, s3, 13")
    A("s_or_b32 s56, s56, s67")
    def tstep():
        if NSW == 4:
            A("s_add_u32 s57, s57, 0x10000")
        else:
            A("s_or_b32 s57, s57, 0x8000")
            A("s_add_u32 s57, s57, 0x6000")
            A("s_andn2_b32 s57, s57, 0x8000")
            A("s_or_b32 s57, s57, s66")
    A("v_lshrrev_b32 v3, 2, v8")
    A("v_lshlrev_b32 v2, 11, v3")
    A("v_lshl_add_u32 v2, v9, 6, v2")
    A("v_lshl_add_u32 v2, v10, 4, v2")
    A("v_lshlrev_b32 v3, 11, v9")
    A("v_lshl_add_u32 v3, v8, 4, v3")
    def issue(kind, sl, sreg, which=range(8)):
        srdn = "s[32:35]" if kind == 'k' else "s[36:39]"
        va = "v2" if kind == 'k' else "v3"
        for i in which:
            b = slot(sl, i)
            A(f"buffer_load_dwordx4 v[{b}:{b+3}], {va}, {srdn}, {sreg} offen offset:{256*i} nt")
    A("s_waitcnt lgkmcnt(0)")
    wq_loads()
    A("s_mov_b32 s57, s56")
    for t in range(early):
        issue('k', t, "s57")
        tstep()
    q_partial(8*early)
    A("s_waitcnt lgkmcnt(0)")
    A("s_barrier")
    stamp(7)
    for t in range(early, NPRE):
        A(f"s_waitcnt vmcnt({eh if t == early else PF2})")
        if ptile == 1: stamp(t, True)
        issue('k', t, "s57")
        tstep()
        if t == early:
            A("v_bfe_u32 v12, v1, 3, 1")
            A("v_lshlrev_b32 v13, 2, v12")
            A("v_add_u32 v13, v13, v9")
            A("v_lshlrev_b32 v12, 9, v12")
            A("v_lshl_add_u32 v12, v9, 6, v12")
            A("v_lshl_add_u32 v12, v10, 4, v12")
            A(f"s_mul_i32 s58, s3, {SSTR}")
            A(f"s_add_u32 s58, s58, {L_S}")
            A("v_lshlrev_b32 v13, 4, v13")
            A("v_add_u32 v13, s58, v13")
            make_masks(56, 57)
            A("v_mov_b32 v14, 0xff800000")
            A("v_mov_b32 v15, 0                       ; l")
            for r in range(8):
                A(f"v_mov_b32 v{24+r}, 0")
            A(f"s_mov_b32 s59, {f2u(C_SCALE):#x}")
    A("s_barrier")
    A(f"ds_read_b128 v[16:19], v12 offset:{L_Q}")
    A(f"ds_read_b128 v[20:23], v12 offset:{L_Q+256}")
    stamp(2)
    if ptile == 1: stamp(6, True)
    if ptile == 2: stamp(1, True)
    A("s_waitcnt lgkmcnt(0)")

    def kproc(sl, soff, mid=None, dyn=False, roll=False):
        for r in range(4):
            d = 32 + 4*r
            a0 = slot(sl, 2*r); a1 = slot(sl, 2*r+1)
            A(f"v_mfma_f32_16x16x32_bf16 v[{d}:{d+3}], v[{a0}:{a0+3}], v[16:19], 0")
            A(f"v_mfma_f32_16x16x32_bf16 v[{d}:{d+3}], v[{a1}:{a1+3}], v[20:23], v[{d}:{d+3}]")
            if roll: issue('k', sl, "s57", (2*r, 2*r+1))
        if roll:
            tstep(); A("s_nop 1")
        elif mid: mid()
        else: A("s_nop 4")
        for k in range(4):
            for r in range(4):
                d = 32 + 4*r + k
                if k == 0:
                    A(f"v_mov_b32_dpp v{48+r}, v{d} quad_perm:[0,0,0,0] {DPP}")
                else:
                    A(f"v_add_f32_dpp v{48+r}, v{d}, v{48+r} quad_perm:[{k},{k},{k},{k}] {DPP}")
        for r in range(4):
            A(f"v_cvt_pk_bf16_f32 v{48+r}, 0, v{48+r}")
        if dyn: return
        A("v_max3_f32 v14, v14, v48, v49")
        A("v_max3_f32 v14, v14, v50, v51")
        A(f"ds_write_b128 v13, v[48:51] offset:{soff}")
    def nk():
        issue('k', 0, "s57"); tstep()
    def nv():
        issue('v', 0, "s57"); tstep()
    def nv0():
        A("s_mov_b32 s57, s56"); nv()
    for t in range(NPRE):
        A(f"s_waitcnt vmcnt({8*((NPRE-1-t) + min(t, 1))})")
        kproc(t, t*128, nk if t == 0 else None)
    A(f"v_add_u32 v13, {NPRE*128}, v13")
    def kstep(nxt):
        A("s_waitcnt vmcnt(0)")
        if kip == 0 and nxt is nk: kproc(0, 0, None, False, True)
        elif kip <= 1: kproc(0, 0, nxt)
        else:
            kproc(0, 0); nxt()
    extra = 0
    if ptile == 2:
        stamp(2, True)
        for q in range(3, 7):
            for rep in range(3):
                kstep(nk)
                A("v_add_u32 v13, 128, v13")
                extra += 1
            stamp(q, True)
    A(f"s_mov_b32 s58, {NT - NPRE - 1 - extra}")
    LB("L_kloop")
    kstep(nk)
    A("v_add_u32 v13, 128, v13")
    A("s_sub_u32 s58, s58, 1")
    A("s_cmp_lg_u32 s58, 0")
    A("s_cbranch_scc1 L_kloop")
    kstep(nv0)
    stamp(3)
    C("true max of this wave's keys per head")
    A(f"v_subrev_u32 v13, {(NT-1)*128}, v13")
    A("v_mov_b32 v10, v14")
    A("s_nop 1")
    A("v_permlane32_swap_b32 v10, v14")
    A("s_nop 1")
    A("v_max_f32 v14, v10, v14")
    A("v_mov_b32 v10, v14")
    A("s_nop 1")
    A("v_permlane16_swap_b32 v10, v14")
    A("s_nop 1")
    A("v_max_f32 v14, v10, v14")
    A("v_mul_f32 v11, s59, v14")
    def pprep():
        for r in range(4):
            A(f"v_fma_f32 v{48+r}, v{48+r}, s59, -v11")
        for r in range(4):
            A(f"v_exp_f32 v{48+r}, v{48+r}")
        A("s_nop 0")
        A("v_add_f32 v56, v48, v49")
        A("v_add_f32 v57, v50, v51")
        for r in range(4):
            A(f"v_cvt_pk_bf16_f32 v{48+r}, v{48+r}, v{48+r}")
        A("v_add_f32 v56, v56, v57")
        A("v_add_f32 v15, v15, v56")
        for r in range(4):
            for k in range(4):
                A(f"v_and_b32 v{32+4*r+k}, v{48+r}, v{4+k}")
    def pv(sl, roll=False):
        for r in range(4):
            a = 32 + 4*r
            b0 = slot(sl, 2*r); b1 = slot(sl, 2*r+1)
            A(f"v_mfma_f32_16x16x32_bf16 v[24:27], v[{a}:{a+3}], v[{b0}:{b0+3}], v[24:27]")
            A(f"v_mfma_f32_16x16x32_bf16 v[28:31], v[{a}:{a+3}], v[{b1}:{b1+3}], v[28:31]")
            if roll: issue('v', sl, "s57", (2*r, 2*r+1))
        if roll: tstep()
    def req_ticket():
        A("v_mov_b32 v58, 0")
        A("v_mov_b32 v59, 1")
        A("s_mov_b64 exec, 1")
        A(f"ds_add_rtn_u32 v59, v58, v59 offset:{L_CNT}")
        A("s_mov_b64 exec, -1")
    def lookup_issue(wait_v=False):
        A("s_waitcnt lgkmcnt(0)")
        A("v_readfirstlane_b32 s76, v59")
        if WT == 4:
            A("s_andn2_b32 s77, s76, 3")
            A("s_and_b32 s76, s76, 3")
        else:
            A(f"s_mul_i32 s77, s76, {-(-65536 // WT)}")
            A("s_lshr_b32 s77, s77, 16")
            A(f"s_mul_i32 s79, s77, {WT}")
            A("s_sub_u32 s76, s76, s79")
            A("s_lshl_b32 s77, s77, 2")
        A("v_mov_b32 v58, s77")
        if wait_v: A("s_waitcnt vmcnt(0)")
        A(f"ds_read_b32 v60, v58 offset:{L_WIN}")
    def vstep(off, nxt, post=None, last=False):
        A(f"ds_read_b128 v[48:51], v13 offset:{off}")
        if vip <= 1:
            A("s_waitcnt lgkmcnt(0)")
            pprep()
            if last and pre: lookup_issue(True)
            else: A("s_waitcnt vmcnt(0)")
        else:
            A("s_waitcnt vmcnt(0) lgkmcnt(0)")
            pprep()
            A("s_nop 0")
        if vip == 0 and nxt: pv(0, True)
        else:
            pv(0)
            if nxt: nxt()
        if post: post()
    A(f"s_mov_b32 s58, {NT-2}")
    LB("L_vloop")
    vstep(0, nv)
    A("v_add_u32 v13, 128, v13")
    A("s_sub_u32 s58, s58, 1")
    A("s_cmp_lg_u32 s58, 0")
    A("s_cbranch_scc1 L_vloop")
    vstep(0, nv, req_ticket)
    C("LDS addresses of this wave's partial")
    A("v_lshrrev_b32 v61, 1, v9")
    A("v_lshlrev_b32 v61, 10, v61")
    A("v_lshl_add_u32 v61, v8, 5, v61")
    A("v_and_b32 v62, 1, v9")
    A("v_lshl_add_u32 v61, v62, 4, v61")
    A("s_lshl_b32 s58, s3, 11")
    A("v_add_u32 v61, s58, v61")
    A("s_lshl_b32 s58, s3, 4")
    A("v_and_b32 v62, 8, v1")
    A("v_add_u32 v62, s58, v62")
    assert vip <= 1 and NSW == 3
    out_setup()
    vstep(128, None, None, True)
    stamp(1)
    C("shared pool: sub-ticket (LDS) -> window ticket fetched by the service wave")
    if not pre:
        LB("L_next")
        lookup_issue()
    else:
        LB("L_next")
    A(f"s_mov_b32 s79, {spin_max*32}")
    LB("L_win")
    A("s_waitcnt lgkmcnt(0)")
    A("v_readfirstlane_b32 s77, v60")
    A("s_cmp_lg_u32 s77, -1")
    A("s_cbranch_scc1 L_win_ok")
    A("s_sleep 1")
    A(f"ds_read_b32 v60, v58 offset:{L_WIN}")
    A("s_sub_u32 s79, s79, 1")
    A("s_cmp_lg_u32 s79, 0")
    A("s_cbranch_scc1 L_win")
    LB("L_win_ok")
    A(f"s_cmp_ge_u32 s77, {NTK}")
    A("s_cbranch_scc1 L_dyn_done")
    A(f"s_mul_i32 s77, s77, {WT}")
    A("s_add_u32 s77, s77, s76")
    if NPT % WT:
        A(f"s_cmp_ge_u32 s77, {NPT}")
        A("s_cbranch_scc1 L_dyn_done")
    A("s_lshl_b32 s78, s28, 24")
    A("s_and_b32 s79, s77, 7")
    A("s_lshl_b32 s79, s79, 13")
    A("s_or_b32 s78, s78, s79")
    A("s_bfe_u32 s79, s77, 0x30003")
    A("s_lshl_b32 s79, s79, 21")
    A("s_or_b32 s78, s78, s79")
    A("s_lshr_b32 s79, s77, 6")
    A(f"s_add_u32 s79, s79, {NS}")
    A("s_lshl_b32 s79, s79, 16")
    A("s_or_b32 s78, s78, s79")
    issue('k', 2, "s78")
    if dseq:
        A("s_waitcnt vmcnt(0)")
        req_ticket()
        kproc(2, 0, lambda: issue('v', 3, "s78"), True)
    else:
        issue('v', 3, "s78")
        A("s_waitcnt vmcnt(8)")
        req_ticket()
        kproc(2, 0, None, True)
    A("v_max3_f32 v10, v48, v49, v50")
    A("v_max_f32 v10, v10, v51")
    A("v_cmp_gt_f32 vcc, v10, v14")
    A("s_cbranch_vccnz L_rare")
    LB("L_back")
    pprep()
    if pre: lookup_issue(True)
    else: A("s_waitcnt vmcnt(0)")
    pv(3)
    A("s_branch L_next")
    LB("L_rare")
    C("running max rose: rescale l and O")
    A("v_max_f32 v10, v10, v14")
    A("v_mov_b32 v56, v10")
    A("s_nop 1")
    A("v_permlane32_swap_b32 v56, v10")
    A("s_nop 1")
    A("v_max_f32 v10, v10, v56")
    A("v_mov_b32 v56, v10")
    A("s_nop 1")
    A("v_permlane16_swap_b32 v56, v10")
    A("s_nop 1")
    A("v_max_f32 v10, v10, v56")
    A("v_sub_f32 v56, v14, v10")
    A("v_mul_f32 v56, s59, v56")
    A("v_exp_f32 v56, v56")
    A("v_mov_b32 v14, v10")
    A("v_mul_f32 v11, s59, v10")
    A("v_mul_f32 v15, v15, v56")
    A("v_readlane_b32 s60, v56, 0")
    A("v_readlane_b32 s61, v56, 8")
    A("s_mov_b32 s62, 0")
    A("s_mov_b32 s63, -1")
    A("v_mov_b32 v57, s60")
    A("s_mov_b64 exec, s[62:63]")
    A("v_mov_b32 v57, s61")
    A("s_mov_b64 exec, -1")
    for r in range(8):
        A(f"v_mul_f32 v{24+r}, v57, v{24+r}")
    A("s_branch L_back")
    LB("L_dyn_done")
    C("wave partial -> LDS")
    A("v_mov_b32 v10, v15")
    A("s_nop 1")
    A("v_permlane32_swap_b32 v10, v15")
    A("s_nop 0")
    A("v_add_f32 v15, v10, v15")
    A("v_mov_b32 v10, v15")
    A(f"ds_write_b128 v61, v[24:27] offset:{L_O}")
    A(f"ds_write_b128 v61, v[28:31] offset:{L_O+512}")
    A("v_permlane16_swap_b32 v10, v15")
    A("s_nop 0")
    A("v_add_f32 v15, v10, v15")
    A("s_mov_b64 exec, 0x101")
    A(f"ds_write_b64 v62, v[14:15] offset:{L_ML}")
    A("s_mov_b64 exec, -1")
    stamp(4)
    if ob == 0: out_loads()
    A("s_waitcnt lgkmcnt(0)")
    A("s_barrier")
    if ob == 1: out_loads()
    C("FFN part of this column block (hidden slice and gate come through LDS)")
    A("v_mov_b32 v10, 0")
    A(f"ds_read_b128 v[80:83], v52 offset:{L_H}")
    A(f"ds_read_b64 v[2:3], v10 offset:{L_G}")
    A("v_lshlrev_b32 v52, 1, v52")
    A("s_waitcnt lgkmcnt(0)")
    for t in range(4):
        for k in range(4):
            A(f"v_and_b32 v{24+4*t+k}, v{80+t}, v{4+k}")
    if ob == 3: A("s_barrier")
    if ob >= 2: out_loads()
    if pp: A("s_waitcnt vmcnt(0)")
    LB("L_out")
    A("s_barrier")
    A(f"ds_read_b128 v[72:75], v52 offset:{L_OP}")
    A(f"ds_read_b128 v[76:79], v52 offset:{L_OP+16}")
    if not pp: A("s_waitcnt vmcnt(0)")
    ffn_mfma()
    A("s_waitcnt lgkmcnt(0)")
    def wo_mfma(tt):
        c = "0" if tt == 0 else "v[16:19]"
        A(f"v_mfma_f32_16x16x32_bf16 v[16:19], v[{88+4*tt}:{91+4*tt}], v[{128+4*tt}:{131+4*tt}], {c}")
    for t in range(8):
        for k in range(4):
            A(f"v_and_b32 v{88+4*t+k}, v{72+t}, v{4+k}")
        if t >= 1: wo_mfma(t-1)
    A("s_nop 0")
    wo_mfma(7)
    A("s_mov_b64 exec, s[52:53]")
    for k in range(4):
        A(f"v_mul_f32 v{20+k}, v3, v{20+k}")
    A("s_nop 2")
    for k in range(4):
        A(f"v_fmac_f32 v{20+k}, v2, v{16+k}")
    A(f"buffer_store_dwordx4 v[20:23], v53, s[40:43], s64 offen {HS}")
    A("s_mov_b64 exec, -1")
    if prof:
        A(f"s_cmp_eq_u32 s3, {NSW}")
        A("s_cbranch_scc1 L_svc_end")
    C("role 0 of WGs with i<28: sums the 128 y partials of 16 output columns")
    A("s_cmp_lg_u32 s3, 0")
    A("s_cbranch_scc1 L_fin")
    A("s_cmp_ge_u32 s31, 28")
    A("s_cbranch_scc1 L_fin")
    srd(44, 22, 23, 1792)
    A("v_lshrrev_b32 v10, 2, v1")
    A(f"v_mul_u32_u24 v10, {OB2S}, v10")
    A("v_and_b32 v11, 3, v1")
    A("v_lshl_add_u32 v10, v11, 4, v10")
    A(f"s_mul_i32 s58, s30, {128*OB2S}")
    A("s_lshl_b32 s61, s31, 6")
    A("s_add_u32 s58, s58, s61")
    A(f"s_add_u32 s58, s58, {OB2}")
    for t in range(8):
        A(f"s_add_u32 s{48+t}, s58, {t*16*OB2S}")
    A("v_lshrrev_b32 v14, 5, v1")
    A("v_lshlrev_b32 v14, 2, v14")
    A("v_lshl_add_u32 v14, v11, 3, v14")
    A("s_mul_i32 s58, s30, 896")
    A("s_lshl_b32 s61, s31, 5")
    A("s_add_u32 s58, s58, s61")
    A(f"s_mov_b32 s60, {spin_max}")
    for t in range(8):
        A(f"s_mov_b64 s[{64+2*t}:{65+2*t}], -1")
    LB("L_poll2")
    for t in range(8):
        A(f"s_mov_b64 exec, s[{64+2*t}:{65+2*t}]")
        A(f"s_cbranch_execz L_p2s{t}")
        A(f"buffer_load_dwordx4 v[{64+4*t}:{67+4*t}], v10, s[40:43], s{48+t} offen {HL}")
        LB(f"L_p2s{t}")
    A("s_mov_b64 exec, -1")
    A("s_waitcnt vmcnt(0)")
    for t in range(8):
        A(f"v_max3_u32 v{12+(t&1)}, v{64+4*t}, v{65+4*t}, v{66+4*t}")
        A(f"v_max_u32 v{12+(t&1)}, v{12+(t&1)}, v{67+4*t}")
        A(f"v_cmp_eq_u32 s[{64+2*t}:{65+2*t}], -1, v{12+(t&1)}")
    A("s_or_b64 s[62:63], s[64:65], s[66:67]")
    for t in range(2, 8):
        A(f"s_or_b64 s[62:63], s[62:63], s[{64+2*t}:{65+2*t}]")
    A("s_cbranch_scc0 L_poll2_done")
    A(f"s_sleep {s2}")
    A("s_sub_u32 s60, s60, 1")
    A("s_cmp_lg_u32 s60, 0")
    A("s_cbranch_scc1 L_poll2")
    LB("L_poll2_done")
    stamp(5)
    for step in (16, 8, 4):
        for k in range(step):
            A(f"v_add_f32 v{64+k}, v{64+k}, v{64+step+k}")
    A("s_nop 1")
    A("v_permlane32_swap_b32 v64, v66")
    A("v_permlane32_swap_b32 v65, v67")
    A("s_nop 1")
    A("v_add_f32 v64, v64, v66")
    A("v_add_f32 v65, v65, v67")
    A("v_mov_b32 v66, v64")
    A("v_mov_b32 v67, v65")
    A("s_nop 1")
    A("v_permlane16_swap_b32 v66, v64")
    A("v_permlane16_swap_b32 v67, v65")
    A("s_nop 1")
    A("v_add_f32 v64, v64, v66")
    A("v_add_f32 v65, v65, v67")
    A("s_nop 1")
    A(f"v_add_f32_dpp v64, v64, v64 row_ror:8 {DPP}")
    A(f"v_add_f32_dpp v65, v65, v65 row_ror:8 {DPP}")
    A("s_nop 1")
    A(f"v_add_f32_dpp v64, v64, v64 row_ror:4 {DPP}")
    A(f"v_add_f32_dpp v65, v65, v65 row_ror:4 {DPP}")
    A("s_mov_b32 s60, 15")
    A("s_mov_b32 s61, 15")
    A("v_cvt_pk_bf16_f32 v64, v64, v65")
    if sprobe:
        A("s_mov_b32 s92, 0")
        A("s_atomic_add s92, s[24:25], 0 glc")
        A("s_memrealtime s[90:91]")
        A("s_waitcnt lgkmcnt(0)")
        A("s_not_b32 s92, s92")
        A("s_sub_u32 s92, s90, s92")
        A("s_min_u32 s92, s92, 5000")
        A(f"s_mul_i32 s92, s92, {sprobe}")
        LB("L_sp2")
        A("s_memrealtime s[94:95]")
        A("s_waitcnt lgkmcnt(0)")
        A("s_sub_u32 s94, s94, s90")
        A("s_cmp_lt_u32 s94, s92")
        A("s_cbranch_scc1 L_sp2")
    if tfix:
        if tmode:
            A("s_mov_b32 s92, 0")
            A("s_atomic_add s92, s[24:25], 0 glc")
            A("s_waitcnt lgkmcnt(0)")
            if tmode == 1: A("s_not_b32 s92, s92")
        LB("L_tfix")
        A("s_memrealtime s[94:95]")
        A("s_waitcnt lgkmcnt(0)")
        A("s_sub_u32 s94, s94, s92")
        A(f"s_cmp_lt_u32 s94, {tfix*100}")
        A("s_cbranch_scc1 L_tfix")
    A("s_mov_b64 exec, s[60:61]")
    A(f"buffer_store_dword v64, v14, s[44:47], s58 offen {['', 'sc1', 'sc0 sc1', 'nt'][osc]}")
    A("s_mov_b64 exec, -1")
    stamp(6)
    LB("L_fin")
    dump_stamps(False)
    A("s_endpgm")

    LB("L_service")
    svc[0] = True
    for k in range(4):
        A(f"v_mov_b32 v{48+k}, -1")
    A("v_lshlrev_b32 v14, 4, v1")
    A("v_mov_b32 v15, 0")
    A(f"ds_write_b32 v15, v15 offset:{L_CNT}")
    A(f"ds_write_b128 v14, v[48:51] offset:{L_WIN}")
    def clears():
        C("own outboxes := sentinel, ticket counter := 0")
        for k in range(2):
            A(f"buffer_store_dwordx4 v[48:51], v14, s[40:43], s57 offen offset:{1024*k} sc1")
        A("buffer_store_dwordx4 v[48:51], v14, s[40:43], s58 offen sc1")
        A("s_mov_b32 s70, -1")
        A("s_mov_b32 s71, 0xffff")
        A("s_mov_b64 exec, s[70:71]")
        A("buffer_store_dwordx4 v[48:51], v14, s[40:43], s58 offen offset:1024 sc1")
        A("s_mov_b64 exec, 0xffff")
        A("buffer_store_dwordx4 v[48:51], v14, s[40:43], s57 offen offset:2048 sc1")
        A("s_mov_b64 exec, -1")
    if clr == 2:
        A(f"s_mul_i32 s57, s2, {OB1S}")
        A(f"s_add_u32 s57, s57, {OB1}")
        A(f"s_mul_i32 s58, s2, {OB2S}")
        A(f"s_add_u32 s58, s58, {OB2}")
        clears()
    if NSW == 3: q_partial(5 if clr == 2 else 0)
    A("s_mul_i32 s70, s30, 896")
    A("s_add_u32 s44, s4, s70")
    A("s_addc_u32 s45, s5, 0")
    A("s_mov_b32 s46, 896")
    A(f"s_mul_i32 s57, s2, {OB1S}")
    A(f"s_add_u32 s57, s57, {OB1}")
    A(f"s_mul_i32 s58, s2, {OB2S}")
    A(f"s_add_u32 s58, s58, {OB2}")
    stamp(1)
    A("s_waitcnt lgkmcnt(0)")
    A("s_barrier")
    for w in range(4):
        A(f"ds_read_b64 v[{16+2*w}:{17+2*w}], v12 offset:{L_QP+128*w}")
    if clr != 2: A("s_waitcnt vmcnt(0)")
    A("v_add_u32 v72, 0x10000, v72")
    A("v_add_u32 v73, 0x10000, v73")
    A("v_and_b32 v72, 0xffff0000, v72")
    A("v_and_b32 v73, 0xffff0000, v73")
    A("s_waitcnt lgkmcnt(0)")
    A("v_add_f32 v16, v16, v18")
    A("v_add_f32 v17, v17, v19")
    A("v_add_f32 v20, v20, v22")
    A("v_add_f32 v21, v21, v23")
    A("v_add_f32 v16, v16, v20")
    A("v_add_f32 v17, v17, v21")
    A("v_cvt_pk_bf16_f32 v16, v16, 0")
    A("v_cvt_pk_bf16_f32 v17, v17, 0")
    A("v_or_b32 v72, v72, v16")
    A("v_or_b32 v73, v73, v17")
    A("s_mov_b64 exec, s[62:63]")
    A(f"buffer_store_dwordx2 v[72:73], v12, s[40:43], s59 offen offset:{QBOX} sc1")
    A("s_mov_b64 exec, -1")
    stamp(2)
    if clr == 1: clears()
    A("s_cmp_lg_u32 s29, 0")
    A("s_cbranch_scc1 L_notinit")
    A("s_lshl_b32 s70, s28, 12")
    A(f"s_add_u32 s70, s70, {TICK}")
    A("s_mov_b64 exec, 1")
    A("buffer_store_dword v15, v15, s[40:43], s70 offen sc1")
    A("s_mov_b64 exec, -1")
    LB("L_notinit")
    A("s_lshl_b32 s65, s30, 6")
    A("s_add_u32 s65, s65, 128")
    A("s_mov_b32 s68, 1")
    A("s_mov_b32 s59, 0")
    A("s_mov_b32 s66, 0x10000")
    A("s_waitcnt vmcnt(0)")
    A("s_atomic_add s68, s[24:25], s65")
    LB("L_pollq")
    A(f"buffer_load_dwordx4 v[76:79], v11, s[40:43], s56 offen offset:{QBOX} sc1")
    A(f"buffer_load_dwordx4 v[80:83], v11, s[40:43], s56 offen offset:{QBOX+16} sc1")
    A("s_waitcnt vmcnt(0)")
    for k in range(8):
        A(f"v_xor_b32 v{84+k}, v{64+k}, v{76+k}")
    A("v_min3_u32 v84, v84, v85, v86")
    A("v_min3_u32 v87, v87, v88, v89")
    A("v_min3_u32 v84, v84, v90, v91")
    A("v_min_u32 v84, v84, v87")
    A("v_cmp_gt_u32 vcc, s66, v84")
    A("s_cbranch_vccz L_pollq_done")
    A("s_mov_b64 exec, vcc")
    A("s_add_u32 s59, s59, 1")
    A("s_sleep 1")
    A(f"s_cmp_lt_u32 s59, {fbk}")
    A("s_cbranch_scc1 L_pollq")
    C("the snapshot may have been taken after a producer wrote: once the whole batch arrived, the next read is valid")
    A("s_mov_b32 s70, 0")
    A("s_atomic_add s70, s[24:25], s65 glc")
    A("s_waitcnt lgkmcnt(0)")
    A("s_cmp_ge_u32 s70, 128")
    A("s_cselect_b32 s66, 0, s66")
    A(f"s_cmp_lt_u32 s59, {spin_max}")
    A("s_cbranch_scc1 L_pollq")
    LB("L_pollq_done")
    A("s_mov_b64 exec, -1")
    stamp(3)
    for k in range(4):
        A(f"v_perm_b32 v{48+k}, v{77+2*k}, v{76+2*k}, s60")
    A(f"ds_write_b128 v14, v[48:51] offset:{L_Q}")
    A("s_waitcnt lgkmcnt(0)")
    A("s_barrier")
    stamp(4)
    if tmode == 1:
        A("s_not_b32 s94, s92")
        A("s_atomic_umax s94, s[24:25], 0")
        A("s_waitcnt lgkmcnt(0)")
    if tmode == 2:
        A("s_mov_b32 s94, s92")
        A("s_atomic_umax s94, s[24:25], 0")
        A("s_waitcnt lgkmcnt(0)")
    if tmode == 3:
        A("s_memrealtime s[94:95]")
        A("s_waitcnt lgkmcnt(0)")
        A("s_atomic_umax s94, s[24:25], 0")
        A("s_waitcnt lgkmcnt(0)")
    C("background: FFN hidden slice, gate, output-side weights")
    make_masks(56, 57)
    A("s_and_b32 s66, s31, 7")
    A("s_mul_i32 s66, s66, 14")
    A("s_lshr_b32 s67, s31, 3")
    A("s_add_u32 s66, s66, s67")
    A("s_cmp_lt_u32 s31, 112")
    A(f"s_cselect_b32 s59, {448*1792*2}, 0")
    srd(48, 16, 17, 0 if skip & 2 else "s59")
    srd(36, 20, 21, 896)
    A("v_lshrrev_b32 v10, 1, v1")
    A("v_and_b32 v11, 1, v1")
    A("v_mul_u32_u24 v12, 28, v10")
    A(f"v_mul_u32_u24 v13, {14*3584}, v10")
    A("v_lshl_add_u32 v13, v11, 4, v13")
    A(f"buffer_load_dwordx4 v[{XR}:{XR+3}], v12, s[44:47], 0 offen")
    A(f"buffer_load_dwordx3 v[{XR+4}:{XR+6}], v12, s[44:47], 0 offen offset:16")
    A("buffer_load_dwordx4 v[40:43], v14, s[44:47], 0 offen")
    A("buffer_load_dwordx4 v[44:47], v14, s[36:39], 0 offen")
    A("s_lshl_b32 s56, s66, 5")
    cnt = [0]
    def thr():
        cnt[0] += 1
        if cnt[0] % SB == 0: A("s_waitcnt vmcnt(0)")
    for t in range(14):
        A(f"buffer_load_dwordx4 v[{64+4*t}:{67+4*t}], v13, s[48:51], s56 offen")
        A("s_add_u32 s56, s56, 3584")
        thr()
    for k in range(8):
        A(f"v_mov_b32 v{ACC+k}, 0")
    matvec_pairs(7, 64, XR, 0)
    A("s_nop 1")
    for k in range(2):
        A(f"v_add_f32_dpp v{ACC+k}, v{ACC+k}, v{ACC+k} row_ror:2 {DPP}")
    A(f"s_mov_b32 s59, {f2u(-math.log2(math.e)):#x}")
    for k in range(2):
        A(f"v_cvt_pk_bf16_f32 v{ACC+k}, 0, v{ACC+k}")
    for k in range(2):
        A(f"v_mul_f32 v{ACC+2+k}, s59, v{ACC+k}")
    for k in range(2):
        A(f"v_exp_f32 v{ACC+2+k}, v{ACC+2+k}")
    A("s_nop 0")
    for k in range(2):
        A(f"v_add_f32 v{ACC+2+k}, 1.0, v{ACC+2+k}")
    for k in range(2):
        A(f"v_rcp_f32 v{ACC+2+k}, v{ACC+2+k}")
    A("s_nop 0")
    for k in range(2):
        A(f"v_mul_f32 v{ACC+k}, v{ACC+k}, v{ACC+2+k}       ; silu")
    for k in range(2):
        A(f"v_cvt_pk_bf16_f32 v{ACC+k}, v{ACC+k}, v{ACC+k}")
    A("v_lshlrev_b32 v12, 5, v11")
    A("v_lshl_add_u32 v12, v9, 3, v12")
    A("s_mov_b32 s62, 0x00030003")
    A("s_mov_b32 s63, 0x00030003")
    A("s_mov_b64 exec, s[62:63]")
    A(f"ds_write_b64 v12, v[{ACC}:{ACC+1}] offset:{L_H}")
    A("s_mov_b64 exec, -1")
    C("gate")
    for k in range(4):
        A(f"v_lshlrev_b32 v52, 16, v{40+k}")
        A(f"v_lshlrev_b32 v53, 16, v{44+k}")
        A(f"v_and_b32 v54, 0xffff0000, v{40+k}")
        A(f"v_and_b32 v55, 0xffff0000, v{44+k}")
        A("v_mul_f32 v52, v52, v53")
        A("v_mul_f32 v54, v54, v55")
        A("v_cvt_pk_bf16_f32 v52, 0, v52")
        A("v_cvt_pk_bf16_f32 v54, 0, v54")
        if k == 0:
            A("v_add_f32 v56, v52, v54")
        else:
            A("v_add_f32 v56, v56, v52")
            A("v_add_f32 v56, v56, v54")
    for rr in (8, 4, 2, 1):
        A("s_nop 1")
        A(f"v_add_f32_dpp v56, v56, v56 row_ror:{rr} {DPP}")
    A("v_mov_b32 v57, v56")
    A("s_nop 1")
    A("v_permlane32_swap_b32 v57, v56")
    A("s_nop 1")
    A("v_add_f32 v56, v56, v57")
    A("v_mov_b32 v57, v56")
    A("s_nop 1")
    A("v_permlane16_swap_b32 v57, v56")
    A("s_nop 1")
    A("v_add_f32 v56, v56, v57")
    A("v_cvt_pk_bf16_f32 v56, 0, v56")
    A("v_mul_f32 v56, s59, v56")
    A("v_exp_f32 v56, v56")
    A("s_nop 0")
    A("v_add_f32 v56, 1.0, v56")
    A("v_rcp_f32 v56, v56")
    A("s_nop 0")
    A("v_cvt_pk_bf16_f32 v2, 0, v56           ; g")
    A("v_sub_f32 v3, 1.0, v2")
    A("v_cvt_pk_bf16_f32 v3, 0, v3            ; 1-g")
    A("v_mov_b32 v16, 0")
    A(f"ds_write_b64 v16, v[2:3] offset:{L_G}")
    out_setup()
    A(f"ds_read_b128 v[80:83], v52 offset:{L_H}")
    A("v_lshlrev_b32 v52, 1, v52")
    A("s_waitcnt lgkmcnt(0)")
    for t in range(4):
        for k in range(4):
            A(f"v_and_b32 v{24+4*t+k}, v{80+t}, v{4+k}")
    A(f"s_mov_b32 s59, {f2u(C_SCALE):#x}")
    A("v_lshlrev_b32 v10, 5, v1")
    A("v_lshrrev_b32 v11, 5, v1")
    A("v_lshlrev_b32 v11, 3, v11")
    A("v_lshrrev_b32 v15, 2, v1")
    A("v_mul_u32_u24 v15, 144, v15")
    A("v_and_b32 v12, 3, v1")
    A("v_lshl_add_u32 v15, v12, 5, v15")
    A(f"v_mul_u32_u24 v12, {OB1S}, v8")
    A("v_lshl_add_u32 v13, v9, 5, v12")
    A(f"s_mul_i32 s60, s28, {16*OB1S}")
    A("s_mul_i32 s61, s29, 144")
    A("s_add_u32 s60, s60, s61")
    A(f"s_add_u32 s60, s60, {OB1}")
    A("v_lshlrev_b32 v14, 5, v9")
    if pp:
        for k in range(8):
            A(f"v_mov_b32 v{120+k}, -1")
    A("s_lshl_b32 s54, 0x00010001, s29")
    A("s_mov_b32 s55, s54")
    A("s_lshl_b32 s61, s29, 4")
    A("v_lshl_add_u32 v21, v9, 2, s61")
    def warm_tail():
        C("address-translation warm-up for the pages the tail touches (values unused)")
        A("s_mov_b64 exec, 1")
        A(f"buffer_load_dword v200, v16, s[32:35], {'s73' if wsel else '0'} offen {['', '', 'sc1', 'nt'][wsel]}")
        A("buffer_load_dword v201, v16, s[40:43], s64 offen sc1")
        A("buffer_load_dword v202, v16, s[40:43], s57 offen sc1")
        A("buffer_load_dword v203, v54, s[44:47], s69 offen")
        A("buffer_load_dword v204, v55, s[48:51], s67 offen")
        A("s_mov_b64 exec, -1")
    if wkv:
        C("translations of the group's K/V pages (pool tiles, first V tile)")
        srd(32, 6, 7, "0x10000000")
        srd(36, 8, 9, "0x10000000")
        A("v_lshlrev_b32 v17, 21, v1")
        A("s_lshl_b32 s70, s28, 24")
        A(f"s_add_u32 s70, s70, {NS << 16}")
        A("s_mov_b64 exec, 0xff")
        A("buffer_load_dword v205, v17, s[32:35], s70 offen nt")
        A("buffer_load_dword v206, v17, s[36:39], s70 offen nt")
        A("s_mov_b64 exec, -1")
    srd(32, 22, 23, 1792)
    if wsel:
        A("s_mul_i32 s73, s30, 896")
        A("s_lshl_b32 s70, s31, 5")
        A("s_add_u32 s73, s73, s70")
        A("s_cmp_lt_u32 s31, 28")
        A("s_cselect_b32 s34, 1792, 0")
        A("s_cselect_b32 s73, s73, 0")
    if wout >= 3: warm_tail()
    C("whole batch arrived => every outbox read later was cleared and the ticket counters are set")
    A(f"s_mov_b32 s56, {spin_max}")
    LB("L_pollg")
    A("s_mov_b32 s70, 0")
    A("s_atomic_add s70, s[24:25], s65 glc")
    A("s_waitcnt lgkmcnt(0)")
    A("s_cmp_ge_u32 s70, 128")
    A("s_cbranch_scc1 L_pollg_done")
    A("s_sleep 16")
    A("s_sub_u32 s56, s56, 1")
    A("s_cmp_lg_u32 s56, 0")
    A("s_cbranch_scc1 L_pollg")
    LB("L_pollg_done")
    C("window-ticket server")
    A("s_lshl_b32 s74, s28, 12")
    A(f"s_add_u32 s74, s74, {TICK}")
    A("s_add_u32 s74, s26, s74")
    A("s_addc_u32 s75, s27, 0")
    A("s_mov_b32 s71, 0")
    A("s_mov_b32 s72, 0")
    A("v_mov_b32 v16, 0")
    A(f"s_mov_b32 s56, {spin_max*32}")
    LB("L_tk")
    A(f"ds_read_b32 v17, v16 offset:{L_CNT}")
    A("s_waitcnt lgkmcnt(0)")
    A("v_readfirstlane_b32 s70, v17")
    A("s_cmp_gt_u32 s70, s72")
    A("s_cbranch_scc1 L_tk_fetch")
    A("s_sleep 2")
    A("s_sub_u32 s56, s56, 1")
    A("s_cmp_lg_u32 s56, 0")
    A("s_cbranch_scc1 L_tk")
    A("s_branch L_tk_done")
    LB("L_tk_fetch")
    A("s_mov_b32 s70, 1")
    A("s_atomic_add s70, s[74:75], 0 glc")
    A("v_mov_b32 v17, s71")
    A("s_waitcnt lgkmcnt(0)")
    A("v_mov_b32 v20, s70")
    A("s_add_u32 s71, s71, 4")
    A(f"s_add_u32 s72, s72, {WT}")
    A(f"ds_write_b32 v17, v20 offset:{L_WIN}")
    A(f"s_cmp_lt_u32 s70, {NTK - RET}")
    A("s_cbranch_scc1 L_tk")
    C("one of the last tickets (or none): this WG asks for nothing more")
    A("v_mov_b32 v17, s71")
    A("v_mov_b32 v20, 0x10000")
    for k in range(-(-NSW // WT)):
        A(f"ds_write_b32 v17, v20 offset:{L_WIN + 4*k}")
    LB("L_tk_done")
    if wout: warm_tail()
    if warm:
        C("touch the pages of the output-side weights (address translation only)")
        A("s_mov_b64 exec, 1")
        A("buffer_load_dword v17, v54, s[44:47], s69 offen")
        A("buffer_load_dword v20, v55, s[48:51], s67 offen")
        A("s_mov_b64 exec, -1")
    A("s_waitcnt lgkmcnt(0)")
    A("s_barrier")
    stamp(5)
    if prof: A("s_waitcnt lgkmcnt(0)")
    C("WG combine")
    for w in range(NSW):
        A(f"ds_read_b64 v[{56+2*w}:{57+2*w}], v11 offset:{L_ML+16*w}")
    for w in range(NSW):
        A(f"ds_read_b128 v[{64+8*w}:{67+8*w}], v10 offset:{L_O+2048*w}")
        A(f"ds_read_b128 v[{68+8*w}:{71+8*w}], v10 offset:{L_O+2048*w+16}")
    A(f"s_waitcnt lgkmcnt({2*NSW})")
    A("v_max3_f32 v16, v56, v58, v60")
    if NSW == 4: A("v_max_f32 v16, v16, v62")
    for w in range(NSW):
        A(f"v_sub_f32 v{56+2*w}, v{56+2*w}, v16")
    for w in range(NSW):
        A(f"v_mul_f32 v{56+2*w}, s59, v{56+2*w}")
    for w in range(NSW):
        A(f"v_exp_f32 v{56+2*w}, v{56+2*w}")
    A("s_nop 0")
    A("v_mul_f32 v17, v56, v57")
    for w in range(1, NSW):
        A(f"v_fmac_f32 v17, v{56+2*w}, v{57+2*w}")
    A("s_waitcnt lgkmcnt(0)")
    for k in range(8):
        A(f"v_mul_f32 v{64+k}, v56, v{64+k}")
    for w in range(1, NSW):
        for k in range(8):
            A(f"v_fmac_f32 v{64+k}, v{56+2*w}, v{64+8*w+k}")
    A(f"buffer_store_dwordx4 v[64:67], v15, s[40:43], s57 offen {HS}")
    A(f"buffer_store_dwordx4 v[68:71], v15, s[40:43], s57 offen offset:16 {HS}")
    A("s_mov_b32 s62, 0x11111111")
    A("s_mov_b32 s63, 0x11111111")
    A("s_mov_b64 exec, s[62:63]")
    A(f"buffer_store_dwordx2 v[16:17], v15, s[40:43], s57 offen offset:128 {HS}")
    A("s_mov_b64 exec, -1")
    def poll1_loads():
        A(f"buffer_load_dwordx4 v[72:75], v13, s[40:43], s60 offen {HL}")
        A(f"buffer_load_dwordx4 v[76:79], v13, s[40:43], s60 offen offset:16 {HL}")
        A(f"buffer_load_dwordx2 v[80:81], v12, s[40:43], s60 offen offset:128 {HL}")
    if ob == 3: A("s_barrier")
    A(f"s_mov_b32 s56, {spin_max}")
    if pp:
        C("weights first; then overlapped polls that all land in v120..127/v86..87; a register copy is what is checked and used")
        A("s_mov_b32 s62, 0x00ff00ff")
        A("s_mov_b32 s63, 0x00ff00ff")
        A("s_mov_b64 exec, s[62:63]")
        out_loads()
        A("s_mov_b64 exec, -1")
        for k in range(8):
            A(f"ds_bpermute_b32 v{72+k}, v21, v{64+k}")
        A("ds_bpermute_b32 v80, v21, v16")
        A("ds_bpermute_b32 v81, v21, v17")
        A("v_mov_b32 v86, -1")
        A("v_mov_b32 v87, -1")
        A("s_andn2_b64 exec, -1, s[54:55]")
        LB("L_poll1")
        A(f"buffer_load_dwordx4 v[120:123], v13, s[40:43], s60 offen {HL}")
        A(f"buffer_load_dwordx4 v[124:127], v13, s[40:43], s60 offen offset:16 {HL}")
        A(f"buffer_load_dwordx2 v[86:87], v12, s[40:43], s60 offen offset:128 {HL}")
        A(f"s_sleep {pp}")
        A(f"s_waitcnt vmcnt({ppc}) lgkmcnt(0)")
        for k in range(8):
            A(f"v_mov_b32 v{72+k}, v{120+k}")
        A("v_mov_b32 v80, v86")
        A("v_mov_b32 v81, v87")
        A("v_max3_u32 v18, v72, v73, v74")
        A("v_max3_u32 v19, v75, v76, v77")
        A("v_max3_u32 v18, v18, v78, v79")
        A("v_max3_u32 v19, v19, v80, v81")
        A("v_max_u32 v18, v18, v19")
        A("v_cmp_eq_u32 vcc, -1, v18")
        A("s_cbranch_vccz L_poll1_done")
        A("s_mov_b64 exec, vcc")
        A("s_sub_u32 s56, s56, 1")
        A("s_cmp_lg_u32 s56, 0")
        A("s_cbranch_scc1 L_poll1")
        A("s_waitcnt vmcnt(0)")
    else:
        if own:
            C("own packet comes from registers; the other 15 are polled")
            A("s_andn2_b64 exec, -1, s[54:55]")
            poll1_loads()
            if m3:
                A("s_mov_b32 s62, 0x00ff00ff")
                A("s_mov_b32 s63, 0x00ff00ff")
                A("s_mov_b64 exec, s[62:63]")
            else:
                A("s_mov_b64 exec, -1")
            out_loads()
            A("s_mov_b64 exec, -1")
            for k in range(8):
                A(f"ds_bpermute_b32 v{88+k}, v21, v{64+k}")
            A("ds_bpermute_b32 v96, v21, v16")
            A("ds_bpermute_b32 v97, v21, v17")
            A("s_mov_b64 exec, s[54:55]")
            A("s_waitcnt vmcnt(12) lgkmcnt(0)")
            for k in range(10):
                A(f"v_mov_b32 v{72+k}, v{88+k}")
            A("s_mov_b64 exec, -1")
            A("s_branch L_poll1_chk")
        else:
            out_loads()
        LB("L_poll1")
        poll1_loads()
        A("s_waitcnt vmcnt(0)")
        LB("L_poll1_chk")
        A("v_max3_u32 v18, v72, v73, v74")
        A("v_max3_u32 v19, v75, v76, v77")
        A("v_max3_u32 v18, v18, v78, v79")
        A("v_max3_u32 v19, v19, v80, v81")
        A("v_max_u32 v18, v18, v19")
        A("v_cmp_eq_u32 vcc, -1, v18")
        A("s_cbranch_vccz L_poll1_done")
        A("s_mov_b64 exec, vcc")
        A("s_bcnt1_i32_b64 s61, vcc")
        A(f"s_cmp_le_u32 s61, {lt}")
        A("s_cbranch_scc1 L_poll1_fast")
        A(f"s_sleep {ls}")
        LB("L_poll1_fast")
        A("s_sleep 1")
        A("s_sub_u32 s56, s56, 1")
        A("s_cmp_lg_u32 s56, 0")
        A("s_cbranch_scc1 L_poll1")
    LB("L_poll1_done")
    A("s_mov_b64 exec, -1")
    stamp(6)
    if sprobe:
        A("s_cmp_lg_u32 s29, 0")
        A("s_cbranch_scc1 L_sp1")
        A("s_memrealtime s[94:95]")
        A("s_waitcnt lgkmcnt(0)")
        A("s_not_b32 s94, s94")
        A("s_atomic_umax s94, s[24:25], 0")
        LB("L_sp1")
    C("group combine over the 16 producers, then 32 rows of wo")
    A(f"v_max_f32_dpp v18, v80, v80 row_ror:8 {DPP}")
    for rr in (4, 2, 1):
        A("s_nop 1")
        A(f"v_max_f32_dpp v18, v18, v18 row_ror:{rr} {DPP}")
    A("v_sub_f32 v18, v80, v18")
    A("v_mul_f32 v18, s59, v18")
    A("v_exp_f32 v18, v18")
    A("s_nop 0")
    A("v_mul_f32 v80, v18, v81")
    for k in range(8):
        A(f"v_mul_f32 v{72+k}, v18, v{72+k}")
    for rr in (8, 4, 2, 1):
        for k in (8, 0, 1, 2, 3, 4, 5, 6, 7):
            A(f"v_add_f32_dpp v{72+k}, v{72+k}, v{72+k} row_ror:{rr} {DPP}")
    A("v_rcp_f32 v80, v80")
    A("s_nop 0")
    for k in range(8):
        A(f"v_mul_f32 v{72+k}, v80, v{72+k}")
    for k in range(8):
        A(f"v_cvt_pk_bf16_f32 v{72+k}, v{72+k}, v{72+k}")
    A("s_mov_b32 s62, 0x00010001")
    A("s_mov_b32 s63, 0x00010001")
    A("s_mov_b64 exec, s[62:63]")
    A(f"ds_write_b128 v14, v[72:75] offset:{L_OP}")
    A(f"ds_write_b128 v14, v[76:79] offset:{L_OP+16}")
    A("s_mov_b64 exec, -1")
    A("s_waitcnt lgkmcnt(0)")
    A("s_branch L_out")
    LB("L_svc_end")
    stamp(7)
    dump_stamps(True)
    LB("L_end")
    A("s_endpgm")
    L.append('.section .rodata,"a"')
    L.append(".p2align 6")
    L.append(f".amdhsa_kernel {NAME}_kernel")
    L.append("  .amdhsa_next_free_vgpr 256")
    L.append("  .amdhsa_next_free_sgpr 96")
    L.append("  .amdhsa_accum_offset 256")
    L.append("  .amdhsa_group_segment_fixed_size 0")
    L.append("  .amdhsa_kernarg_size 96")
    L.append("  .amdhsa_user_sgpr_count 2")
    L.append("  .amdhsa_user_sgpr_kernarg_segment_ptr 1")
    L.append("  .amdhsa_system_sgpr_workgroup_id_x 1")
    L.append(".end_amdhsa_kernel")
    return "\n".join(L) + "\n"


if __name__ == "__main__":
    out = sys.argv[1]
    kw = {}
    for a in sys.argv[2:]:
        k, v = a.split("=")
        kw[k] = int(v)
    open(out, "w").write(gen(**kw))
```

```python
import sys, math, struct

NAME = "gated_mix__gqa_block_cached__dense_activation_silu__decode"
HEADER = open("cdna_kernels/" + NAME + ".s.ref").read().split("; Override launch")[0]

QBOX = 0x0
TICK = 0x10000
OB1 = 0x40000
OB1S = 2304
OB2 = 0x200000
OB2S = 1792
STAMP = 0x20000000
C_SCALE = (1.0 / 16.0) * math.log2(math.e)
def f2u(x): return struct.unpack("<I", struct.pack("<f", x))[0]


DOC = """
One launch, 256 workgroups (group = wg>>4 = batch*8 + kv head, 16 workgroups per group), 4 waves each.
 * wave 0 (service): hands q slices round the group through d_ws (16-bit tags = stale tag + 1, arrival
   counter in d_debug as fall-back), computes a 16-unit FFN slice and the gate, serves window tickets,
   merges the wave partials, merges the 16 partials of a 32-row slice of o and multiplies it with wo.
 * waves 1-3 stream K (scores -> LDS, true max), then V, straight into MFMA operand registers:
   QK^T uses 64-byte row pieces as A rows and picks the diagonal blocks, P.V puts p on the diagonal of
   A so that row-major V is the B operand as loaded.  The last 1/16 of the keys is a shared pool handed
   out by tickets (running max with rescale) so that all workgroups finish together.
 * partial results travel through sentinel-cleared boxes in d_ws (sc1 stores / sc1 loads).
"""

def gen(prof=0, NSW=3, NS=30, NPRE=6, kip=1, vip=1, RET=8, fbk=4, SB=8, spin_max=200000, ldsx=0, dseq=0, PF2=0, WT=3, skip=0, ptile=0, early=1, eh=0, hl=0, hs=0, ls=16, lt=28, s2=2, pre=1, tfix=0, osc=1, tmode=0, ob=3, warm=0, own=0, m3=1, sprobe=0, pp=0, ppc=30, clr=1, wout=3, wkv=0, wsel=1, halfw=0, rep=0, al=1, lin=0):
    OB1S = 2176 if al else 2304
    NT = NS*4 // NSW
    assert NS*4 % NSW == 0 and NSW in (3, 4)
    SSTR = NT*128
    L_Q = 0
    L_S = 1024
    L_O = L_S + NSW*SSTR
    L_ML = L_O + 2048*NSW
    L_H = L_ML + 64
    L_G = L_H + 64
    L_OP = L_G + 64
    L_QP = L_OP + 128
    L_CNT = L_QP + 512
    L_WIN = L_CNT + 64
    LDS_BYTES = L_WIN + 1024
    NPT = (32-NS)*64
    NTK = -(-NPT // WT)
    L = []
    A = lambda s: L.append("  " + s)
    LB = lambda s: L.append(s + ":")
    C = lambda s: L.append("  ; " + s)
    DPP = "row_mask:0xf bank_mask:0xf"
    ACC, XR = 16, 32

    svc = [False]
    HL = ['sc1', 'sc0 sc1', 'sc1 nt'][hl]
    HS = ['sc1', 'sc0 sc1', 'sc1 nt'][hs]
    def stamp(k, force=False):
        if ptile and not svc[0] and not force and k not in (0, 7):
            return
        if prof: A(f"s_memrealtime s[{80+2*k}:{81+2*k}]")
    def dump_stamps(svc):
        if not prof: return
        A("s_waitcnt lgkmcnt(0)")
        A("s_lshl_b32 s56, s2, 3")
        A(f"s_add_u32 s56, s56, {'4' if svc else 's3'}")
        A("s_lshl_b32 s56, s56, 6")
        A(f"s_add_u32 s56, s56, {STAMP}")
        A("s_mov_b64 exec, 1")
        A("v_mov_b32 v60, 0")
        for q in range(4):
            for j in range(4):
                A(f"v_mov_b32 v{56+j}, s{80+4*q+j}")
            A(f"buffer_store_dwordx4 v[56:59], v60, s[40:43], s56 offen offset:{16*q}")
            A("s_nop 1")
        A("s_mov_b64 exec, -1")
    def srd(d, lo, hi, n):
        A(f"s_mov_b32 s{d}, s{lo}")
        A(f"s_mov_b32 s{d+1}, s{hi}")
        A(f"s_mov_b32 s{d+2}, {n}")
        A(f"s_mov_b32 s{d+3}, 0x00020000")
    def matvec_pairs(npairs, wbase, xbase, tail_ops):
        for u in range(npairs):
            A(f"s_waitcnt vmcnt({2*npairs - (2*u+2) + tail_ops})")
            w0 = wbase + 8*u; w1 = w0 + 4
            for k in range(4):
                A(f"v_perm_b32 v{52+k}, v{w1+k}, v{w0+k}, s60")
                A(f"v_perm_b32 v{56+k}, v{w1+k}, v{w0+k}, s61")
            for k in range(4):
                A(f"v_dot2c_f32_bf16 v{ACC+2*k}, v{52+k}, v{xbase+u}")
                A(f"v_dot2c_f32_bf16 v{ACC+2*k+1}, v{56+k}, v{xbase+u}")
        A("s_nop 3")
        for k in range(4):
            A(f"v_permlane32_swap_b32 v{ACC+k}, v{ACC+4+k}")
        A("s_nop 1")
        for k in range(4):
            A(f"v_add_f32 v{ACC+k}, v{ACC+k}, v{ACC+4+k}")
        A("s_nop 1")
        for k in range(2):
            A(f"v_permlane16_swap_b32 v{ACC+k}, v{ACC+2+k}")
        A("s_nop 1")
        for k in range(2):
            A(f"v_add_f32 v{ACC+k}, v{ACC+k}, v{ACC+2+k}")
        for rr in (8, 4):
            A("s_nop 1")
            for k in range(2):
                A(f"v_add_f32_dpp v{ACC+k}, v{ACC+k}, v{ACC+k} row_ror:{rr} {DPP}")
    def make_masks(t0, t1):
        C("v4..v7: lane e=l&7 owns bf16 element e of an 8-element A fragment")
        A(f"v_and_b32 v{t0}, 1, v1")
        A(f"v_lshlrev_b32 v{t0}, 4, v{t0}")
        A(f"v_mov_b32 v{t1}, 0xffff")
        A(f"v_lshlrev_b32 v{t1}, v{t0}, v{t1}")
        A(f"v_bfe_u32 v{t0}, v1, 1, 2")
        for k in range(4):
            A(f"v_cmp_eq_u32 vcc, {k}, v{t0}")
            A("s_nop 1")
            A(f"v_cndmask_b32 v{4+k}, 0, v{t1}, vcc")
    SLOT0 = 64
    def slot(sl, i): return SLOT0 + 32*sl + 4*i
    WQB = slot(5, 0)
    def wq_loads():
        A(f"buffer_load_dwordx4 v[{XR}:{XR+3}], v14, s[44:47], s58 offen")
        for t in range(8):
            A(f"buffer_load_dwordx4 v[{WQB+4*t}:{WQB+4*t+3}], v13, s[48:51], s57 offen")
            if t < 7: A("s_add_u32 s57, s57, 0x2000")
    def q_partial(tail):
        for k in range(8):
            A(f"v_mov_b32 v{ACC+k}, 0")
        A("s_lshl_b32 s58, s3, 7")
        A("v_add_u32 v13, s58, v12")
        matvec_pairs(4, WQB, XR, tail)
        A("s_mov_b64 exec, s[62:63]")
        A(f"ds_write_b64 v13, v[{ACC}:{ACC+1}] offset:{L_QP}")
        A("s_mov_b64 exec, -1")

    def out_setup():
        C("output side: this wave owns column block cb = role of 32 wo rows and 16 w2 rows")
        A("s_and_b32 s69, s31, 7")
        A("s_mul_i32 s69, s69, 14")
        A("s_lshr_b32 s67, s31, 3")
        A("s_add_u32 s69, s69, s67")
        A(f"s_mul_i32 s69, s69, {16*896}")
        A("s_cmp_lt_u32 s31, 112")
        A(f"s_cselect_b32 s46, {0 if skip & 4 else 448*1792*2}, 0")
        A("s_mov_b32 s44, s18")
        A("s_mov_b32 s45, s19")
        A("s_mov_b32 s47, 0x00020000")
        srd(48, 12, 13, 0 if skip & 8 else 4096*448*2)
        A("s_lshl_b32 s64, s3, 8")
        A("s_add_u32 s69, s69, s64")
        A(f"s_mul_i32 s67, s31, {32*896}")
        A("s_add_u32 s67, s67, s64")
        A(f"s_add_u32 s68, s67, {0 if halfw else 4*896}")
        A("s_lshl_b32 s64, s64, 1")
        A(f"s_mul_i32 s52, s2, {OB2S}")
        A("s_add_u32 s64, s64, s52")
        A(f"s_add_u32 s64, s64, {OB2}")
        A("s_cmp_eq_u32 s3, 3")
        A("s_cselect_b32 s52, 0x00ff00ff, -1")
        A("s_mov_b32 s53, 0")
        A("v_mul_u32_u24 v54, 3584, v9")
        A("v_lshl_add_u32 v54, v8, 4, v54         ; w2 row 16f + 4g + t")
        A("v_mul_u32_u24 v55, 7168, v9")
        A("v_lshl_add_u32 v55, v8, 4, v55")
        if lin:
            A("s_cselect_b32 s70, 7, 8")
            A("v_lshlrev_b32 v53, s70, v9")
            A("v_lshl_add_u32 v53, v8, 4, v53")
        else:
            A("v_lshlrev_b32 v53, 5, v8")
            A("v_lshl_add_u32 v53, v9, 4, v53")
        A("v_lshlrev_b32 v52, 4, v9")
    def ffn_mfma():
        for t in range(4):
            c = "0" if t == 0 else "v[20:23]"
            A(f"v_mfma_f32_16x16x32_bf16 v[20:23], v[{24+4*t}:{27+4*t}], v[{160+4*t}:{163+4*t}], {c}")
    def out_off(dst, t0, t1):
        A(f"s_mul_i32 s{dst}, s30, 896")
        if not lin:
            A(f"s_lshl_b32 s{t0}, s31, 5")
            A(f"s_add_u32 s{dst}, s{dst}, s{t0}")
            return
        A(f"s_lshr_b32 s{t0}, s31, 3")
        A(f"s_lshl_b32 s{t0}, s{t0}, 8")
        A(f"s_add_u32 s{dst}, s{dst}, s{t0}")
        A("s_cmp_lt_u32 s31, 24")
        A(f"s_cselect_b32 s{t0}, 3, 1")
        A(f"s_cselect_b32 s{t1}, 2, 1")
        A(f"s_and_b32 s{t0}, s31, s{t0}")
        A(f"s_lshl_b32 s{t0}, s{t0}, 6")
        A(f"s_add_u32 s{dst}, s{dst}, s{t0}")
        A(f"s_lshr_b32 s{t0}, s31, s{t1}")
        A(f"s_and_b32 s{t0}, s{t0}, 1")
        A(f"s_lshl_b32 s{t0}, s{t0}, 3")
        A(f"s_add_u32 s{dst}, s{dst}, s{t0}")
    def out_loads():
        for t in range(4):
            A(f"buffer_load_dwordx4 v[{160+4*t}:{163+4*t}], v54, s[44:47], s69 offen offset:{t*896}")
        for t in range(8):
            A(f"buffer_load_dwordx4 v[{128+4*t}:{131+4*t}], v55, s[48:51], s{67 + (t>>2)} offen offset:{(t&3)*896}")
    L.append(HEADER.rstrip("\n"))
    L.append(f"; @launch grid=(256,1,1) block=({64*(NSW+1)},1,1) lds={ldsx or LDS_BYTES}")
    L.append('.amdgcn_target "amdgcn-amd-amdhsa--gfx950"')
    for line in DOC.strip("\n").splitlines():
        L.append("; " + line)
    L.append(".text")
    L.append(f".globl {NAME}_kernel")
    L.append(".p2align 8")
    L.append(f".type {NAME}_kernel,@function")
    LB(f"{NAME}_kernel")
    A("s_cmp_ge_u32 s2, 256")
    A("s_cbranch_scc1 L_end")
    if prof:
        for k in range(8):
            A(f"s_mov_b64 s[{80+2*k}:{81+2*k}], 0")
        stamp(0)
        A("s_waitcnt lgkmcnt(0)")
    if tfix:
        A("s_memrealtime s[92:93]")
        A("s_waitcnt lgkmcnt(0)")
    A("s_load_dwordx2 s[44:45], s[0:1], 0     ; x  -> SRD s[44:47]")
    A("s_load_dwordx2 s[48:49], s[0:1], 24")
    A("s_load_dwordx2 s[32:33], s[0:1], 8     ; K  -> SRD s[32:35]")
    A("s_load_dwordx2 s[40:41], s[0:1], 88")
    A("s_load_dwordx2 s[36:37], s[0:1], 16    ; V  -> SRD s[36:39]")
    A("s_load_dwordx16 s[4:19], s[0:1], 0")
    A("s_load_dwordx8 s[20:27], s[0:1], 64")
    A("v_lshrrev_b32 v2, 6, v0")
    A("v_and_b32 v1, 63, v0                   ; lane")
    A("v_readfirstlane_b32 s3, v2")
    A("s_sub_u32 s3, s3, 1")
    A(f"s_min_u32 s3, s3, {NSW}")
    A("s_lshr_b32 s28, s2, 4                  ; group")
    A("s_and_b32 s29, s2, 15                  ; s")
    A("s_lshr_b32 s30, s2, 7                  ; b")
    A("s_and_b32 s31, s2, 127                 ; i")
    C("s64 = q slice produced here: (i & ~15) + (s&7)*2 + (s>>3)")
    A("s_and_b32 s64, s29, 7")
    A("s_lshl_b32 s64, s64, 1")
    A("s_lshr_b32 s65, s29, 3")
    A("s_add_u32 s64, s64, s65")
    A("s_andn2_b32 s65, s31, 15")
    A("s_add_u32 s64, s64, s65")
    A("v_and_b32 v8, 15, v1")
    A("v_lshrrev_b32 v9, 4, v1                ; g")
    A("v_and_b32 v10, 3, v1")
    A("s_mov_b32 s42, 0x40000000")
    A("s_mov_b32 s43, 0x00020000")
    C("q partial: rows (role*14+rg)*8 + t, cols slice*32 + chunk*8")
    A("s_mul_i32 s58, s30, 896")
    A("s_mov_b32 s46, 1792")
    A("s_mov_b32 s47, 0x00020000")
    A(f"s_mov_b32 s50, {0 if skip & 1 else 448*4096*2}")
    A("s_mov_b32 s51, 0x00020000")
    A("v_lshrrev_b32 v14, 2, v1")
    A("s_mul_i32 s57, s3, 14")
    A("v_cmp_gt_u32 vcc, 14, v14")
    A("v_add_u32 v14, s57, v14")
    A("v_mov_b32 v13, 0x4000")
    A("v_cndmask_b32 v14, v13, v14, vcc")
    A("v_lshlrev_b32 v13, 16, v14")
    A("v_lshl_add_u32 v13, v10, 4, v13")
    A("v_lshlrev_b32 v14, 4, v14")
    A("s_lshl_b32 s57, s64, 6")
    A("v_lshlrev_b32 v12, 5, v10")
    A("v_lshl_add_u32 v12, v9, 3, v12         ; chunk*32 + g*8")
    A("s_mov_b32 s60, 0x05040100")
    A("s_mov_b32 s61, 0x07060302")
    A("s_mov_b32 s62, 0x000f000f")
    A("s_mov_b32 s63, 0x000f000f")
    A(f"s_cmp_lg_u32 s3, {NSW}")
    A("s_cbranch_scc1 L_stream")
    C("service: snapshot of the group's q box and of this WG's own stale tags")
    A("v_lshlrev_b32 v11, 5, v1")
    A("s_lshl_b32 s56, s28, 11")
    A("s_lshl_b32 s59, s30, 7")
    A("s_add_u32 s59, s59, s64")
    A("s_lshl_b32 s59, s59, 7")
    A("s_waitcnt lgkmcnt(0)")
    A(f"buffer_load_dwordx4 v[64:67], v11, s[40:43], s56 offen offset:{QBOX} sc1")
    A(f"buffer_load_dwordx4 v[68:71], v11, s[40:43], s56 offen offset:{QBOX+16} sc1")
    A(f"buffer_load_dwordx2 v[72:73], v12, s[40:43], s59 offen offset:{QBOX} sc1")
    if NSW == 3: wq_loads()
    A("s_branch L_service")

    LB("L_stream")
    A("s_mov_b32 s34, 0x10000000")
    A("s_mov_b32 s35, 0x00020000")
    A("s_mov_b32 s38, 0x10000000")
    A("s_mov_b32 s39, 0x00020000")
    C("tile n of this WG: group<<24 | (s&7)<<21 | (n>>2)<<16 | (s>>3)<<15 | (n&3)<<13")
    A("s_lshl_b32 s56, s28, 24")
    A("s_and_b32 s66, s29, 7")
    A("s_lshl_b32 s66, s66, 21")
    A("s_or_b32 s56, s56, s66")
    A("s_lshr_b32 s66, s29, 3")
    A("s_lshl_b32 s66, s66, 15")
    A("s_or_b32 s56, s56, s66")
    A("s_lshl_b32 s67, s3, 13")
    A("s_or_b32 s56, s56, s67")
    def tstep():
        if NSW == 4:
            A("s_add_u32 s57, s57, 0x10000")
        else:
            A("s_or_b32 s57, s57, 0x8000")
            A("s_add_u32 s57, s57, 0x6000")
            A("s_andn2_b32 s57, s57, 0x8000")
            A("s_or_b32 s57, s57, s66")
    A("v_lshrrev_b32 v3, 2, v8")
    A("v_lshlrev_b32 v2, 11, v3")
    A("v_lshl_add_u32 v2, v9, 6, v2")
    A("v_lshl_add_u32 v2, v10, 4, v2")
    A("v_lshlrev_b32 v3, 11, v9")
    A("v_lshl_add_u32 v3, v8, 4, v3")
    def issue(kind, sl, sreg, which=range(8)):
        srdn = "s[32:35]" if kind == 'k' else "s[36:39]"
        va = "v2" if kind == 'k' else "v3"
        for i in which:
            b = slot(sl, i)
            A(f"buffer_load_dwordx4 v[{b}:{b+3}], {va}, {srdn}, {sreg} offen offset:{256*i} nt")
    A("s_waitcnt lgkmcnt(0)")
    wq_loads()
    A("s_mov_b32 s57, s56")
    for t in range(early):
        issue('k', t, "s57")
        tstep()
    q_partial(8*early)
    A("s_waitcnt lgkmcnt(0)")
    A("s_barrier")
    stamp(7)
    for t in range(early, NPRE):
        A(f"s_waitcnt vmcnt({eh if t == early else PF2})")
        if ptile == 1: stamp(t, True)
        issue('k', t, "s57")
        tstep()
        if t == early:
            A("v_bfe_u32 v12, v1, 3, 1")
            A("v_lshlrev_b32 v13, 2, v12")
            A("v_add_u32 v13, v13, v9")
            A("v_lshlrev_b32 v12, 9, v12")
            A("v_lshl_add_u32 v12, v9, 6, v12")
            A("v_lshl_add_u32 v12, v10, 4, v12")
            A(f"s_mul_i32 s58, s3, {SSTR}")
            A(f"s_add_u32 s58, s58, {L_S}")
            A("v_lshlrev_b32 v13, 4, v13")
            A("v_add_u32 v13, s58, v13")
            make_masks(56, 57)
            A("v_mov_b32 v14, 0xff800000")
            A("v_mov_b32 v15, 0                       ; l")
            for r in range(8):
                A(f"v_mov_b32 v{24+r}, 0")
            A(f"s_mov_b32 s59, {f2u(C_SCALE):#x}")
    A("s_barrier")
    A(f"ds_read_b128 v[16:19], v12 offset:{L_Q}")
    A(f"ds_read_b128 v[20:23], v12 offset:{L_Q+256}")
    stamp(2)
    if ptile == 1: stamp(6, True)
    if ptile == 2: stamp(1, True)
    A("s_waitcnt lgkmcnt(0)")

    def kproc(sl, soff, mid=None, dyn=False, roll=False):
        for r in range(4):
            d = 32 + 4*r
            a0 = slot(sl, 2*r); a1 = slot(sl, 2*r+1)
            A(f"v_mfma_f32_16x16x32_bf16 v[{d}:{d+3}], v[{a0}:{a0+3}], v[16:19], 0")
            A(f"v_mfma_f32_16x16x32_bf16 v[{d}:{d+3}], v[{a1}:{a1+3}], v[20:23], v[{d}:{d+3}]")
            if roll: issue('k', sl, "s57", (2*r, 2*r+1))
        if roll:
            tstep(); A("s_nop 1")
        elif mid: mid()
        else: A("s_nop 4")
        for k in range(4):
            for r in range(4):
                d = 32 + 4*r + k
                if k == 0:
                    A(f"v_mov_b32_dpp v{48+r}, v{d} quad_perm:[0,0,0,0] {DPP}")
                else:
                    A(f"v_add_f32_dpp v{48+r}, v{d}, v{48+r} quad_perm:[{k},{k},{k},{k}] {DPP}")
        for r in range(4):
            A(f"v_cvt_pk_bf16_f32 v{48+r}, 0, v{48+r}")
        if dyn: return
        A("v_max3_f32 v14, v14, v48, v49")
        A("v_max3_f32 v14, v14, v50, v51")
        A(f"ds_write_b128 v13, v[48:51] offset:{soff}")
    def nk():
        issue('k', 0, "s57"); tstep()
    def nv():
        issue('v', 0, "s57"); tstep()
    def nv0():
        A("s_mov_b32 s57, s56"); nv()
    for t in range(NPRE):
        A(f"s_waitcnt vmcnt({8*((NPRE-1-t) + min(t, 1))})")
        kproc(t, t*128, nk if t == 0 else None)
    A(f"v_add_u32 v13, {NPRE*128}, v13")
    def kstep(nxt):
        A("s_waitcnt vmcnt(0)")
        if kip == 0 and nxt is nk: kproc(0, 0, None, False, True)
        elif kip <= 1: kproc(0, 0, nxt)
        else:
            kproc(0, 0); nxt()
    extra = 0
    if ptile == 2:
        stamp(2, True)
        for q in range(3, 7):
            for rep in range(3):
                kstep(nk)
                A("v_add_u32 v13, 128, v13")
                extra += 1
            stamp(q, True)
    A(f"s_mov_b32 s58, {NT - NPRE - 1 - extra}")
    LB("L_kloop")
    kstep(nk)
    A("v_add_u32 v13, 128, v13")
    A("s_sub_u32 s58, s58, 1")
    A("s_cmp_lg_u32 s58, 0")
    A("s_cbranch_scc1 L_kloop")
    kstep(nv0)
    stamp(3)
    C("true max of this wave's keys per head")
    A(f"v_subrev_u32 v13, {(NT-1)*128}, v13")
    A("v_mov_b32 v10, v14")
    A("s_nop 1")
    A("v_permlane32_swap_b32 v10, v14")
    A("s_nop 1")
    A("v_max_f32 v14, v10, v14")
    A("v_mov_b32 v10, v14")
    A("s_nop 1")
    A("v_permlane16_swap_b32 v10, v14")
    A("s_nop 1")
    A("v_max_f32 v14, v10, v14")
    A("v_mul_f32 v11, s59, v14")
    def pprep():
        for r in range(4):
            A(f"v_fma_f32 v{48+r}, v{48+r}, s59, -v11")
        for r in range(4):
            A(f"v_exp_f32 v{48+r}, v{48+r}")
        A("s_nop 0")
        A("v_add_f32 v56, v48, v49")
        A("v_add_f32 v57, v50, v51")
        for r in range(4):
            A(f"v_cvt_pk_bf16_f32 v{48+r}, v{48+r}, v{48+r}")
        A("v_add_f32 v56, v56, v57")
        A("v_add_f32 v15, v15, v56")
        for r in range(4):
            for k in range(4):
                A(f"v_and_b32 v{32+4*r+k}, v{48+r}, v{4+k}")
    def pv(sl, roll=False):
        for r in range(4):
            a = 32 + 4*r
            b0 = slot(sl, 2*r); b1 = slot(sl, 2*r+1)
            A(f"v_mfma_f32_16x16x32_bf16 v[24:27], v[{a}:{a+3}], v[{b0}:{b0+3}], v[24:27]")
            A(f"v_mfma_f32_16x16x32_bf16 v[28:31], v[{a}:{a+3}], v[{b1}:{b1+3}], v[28:31]")
            if roll: issue('v', sl, "s57", (2*r, 2*r+1))
        if roll: tstep()
    def req_ticket():
        A("v_mov_b32 v58, 0")
        A("v_mov_b32 v59, 1")
        A("s_mov_b64 exec, 1")
        A(f"ds_add_rtn_u32 v59, v58, v59 offset:{L_CNT}")
        A("s_mov_b64 exec, -1")
    def lookup_issue(wait_v=False):
        A("s_waitcnt lgkmcnt(0)")
        A("v_readfirstlane_b32 s76, v59")
        if WT == 4:
            A("s_andn2_b32 s77, s76, 3")
            A("s_and_b32 s76, s76, 3")
        else:
            A(f"s_mul_i32 s77, s76, {-(-65536 // WT)}")
            A("s_lshr_b32 s77, s77, 16")
            A(f"s_mul_i32 s79, s77, {WT}")
            A("s_sub_u32 s76, s76, s79")
            A("s_lshl_b32 s77, s77, 2")
        A("v_mov_b32 v58, s77")
        if wait_v: A("s_waitcnt vmcnt(0)")
        A(f"ds_read_b32 v60, v58 offset:{L_WIN}")
    def vstep(off, nxt, post=None, last=False):
        A(f"ds_read_b128 v[48:51], v13 offset:{off}")
        if vip <= 1:
            A("s_waitcnt lgkmcnt(0)")
            pprep()
            if last and pre: lookup_issue(True)
            else: A("s_waitcnt vmcnt(0)")
        else:
            A("s_waitcnt vmcnt(0) lgkmcnt(0)")
            pprep()
            A("s_nop 0")
        if vip == 0 and nxt: pv(0, True)
        else:
            pv(0)
            if nxt: nxt()
        if post: post()
    A(f"s_mov_b32 s58, {NT-2}")
    LB("L_vloop")
    vstep(0, nv)
    A("v_add_u32 v13, 128, v13")
    A("s_sub_u32 s58, s58, 1")
    A("s_cmp_lg_u32 s58, 0")
    A("s_cbranch_scc1 L_vloop")
    vstep(0, nv, req_ticket)
    C("LDS addresses of this wave's partial")
    A("v_lshrrev_b32 v61, 1, v9")
    A("v_lshlrev_b32 v61, 10, v61")
    A("v_lshl_add_u32 v61, v8, 5, v61")
    A("v_and_b32 v62, 1, v9")
    A("v_lshl_add_u32 v61, v62, 4, v61")
    A("s_lshl_b32 s58, s3, 11")
    A("v_add_u32 v61, s58, v61")
    A("s_lshl_b32 s58, s3, 4")
    A("v_and_b32 v62, 8, v1")
    A("v_add_u32 v62, s58, v62")
    assert vip <= 1 and NSW == 3
    out_setup()
    vstep(128, None, None, True)
    stamp(1)
    C("shared pool: sub-ticket (LDS) -> window ticket fetched by the service wave")
    if not pre:
        LB("L_next")
        lookup_issue()
    else:
        LB("L_next")
    A(f"s_mov_b32 s79, {spin_max*32}")
    LB("L_win")
    A("s_waitcnt lgkmcnt(0)")
    A("v_readfirstlane_b32 s77, v60")
    A("s_cmp_lg_u32 s77, -1")
    A("s_cbranch_scc1 L_win_ok")
    A("s_sleep 1")
    A(f"ds_read_b32 v60, v58 offset:{L_WIN}")
    A("s_sub_u32 s79, s79, 1")
    A("s_cmp_lg_u32 s79, 0")
    A("s_cbranch_scc1 L_win")
    LB("L_win_ok")
    A(f"s_cmp_ge_u32 s77, {NTK}")
    A("s_cbranch_scc1 L_dyn_done")
    A(f"s_mul_i32 s77, s77, {WT}")
    A("s_add_u32 s77, s77, s76")
    if NPT % WT:
        A(f"s_cmp_ge_u32 s77, {NPT}")
        A("s_cbranch_scc1 L_dyn_done")
    A("s_lshl_b32 s78, s28, 24")
    A("s_and_b32 s79, s77, 7")
    A("s_lshl_b32 s79, s79, 13")
    A("s_or_b32 s78, s78, s79")
    A("s_bfe_u32 s79, s77, 0x30003")
    A("s_lshl_b32 s79, s79, 21")
    A("s_or_b32 s78, s78, s79")
    A("s_lshr_b32 s79, s77, 6")
    A(f"s_add_u32 s79, s79, {NS}")
    A("s_lshl_b32 s79, s79, 16")
    A("s_or_b32 s78, s78, s79")
    issue('k', 2, "s78")
    if dseq:
        A("s_waitcnt vmcnt(0)")
        req_ticket()
        kproc(2, 0, lambda: issue('v', 3, "s78"), True)
    else:
        issue('v', 3, "s78")
        A("s_waitcnt vmcnt(8)")
        req_ticket()
        kproc(2, 0, None, True)
    A("v_max3_f32 v10, v48, v49, v50")
    A("v_max_f32 v10, v10, v51")
    A("v_cmp_gt_f32 vcc, v10, v14")
    A("s_cbranch_vccnz L_rare")
    LB("L_back")
    pprep()
    if pre: lookup_issue(True)
    else: A("s_waitcnt vmcnt(0)")
    pv(3)
    A("s_branch L_next")
    LB("L_rare")
    C("running max rose: rescale l and O")
    A("v_max_f32 v10, v10, v14")
    A("v_mov_b32 v56, v10")
    A("s_nop 1")
    A("v_permlane32_swap_b32 v56, v10")
    A("s_nop 1")
    A("v_max_f32 v10, v10, v56")
    A("v_mov_b32 v56, v10")
    A("s_nop 1")
    A("v_permlane16_swap_b32 v56, v10")
    A("s_nop 1")
    A("v_max_f32 v10, v10, v56")
    A("v_sub_f32 v56, v14, v10")
    A("v_mul_f32 v56, s59, v56")
    A("v_exp_f32 v56, v56")
    A("v_mov_b32 v14, v10")
    A("v_mul_f32 v11, s59, v10")
    A("v_mul_f32 v15, v15, v56")
    A("v_readlane_b32 s60, v56, 0")
    A("v_readlane_b32 s61, v56, 8")
    A("s_mov_b32 s62, 0")
    A("s_mov_b32 s63, -1")
    A("v_mov_b32 v57, s60")
    A("s_mov_b64 exec, s[62:63]")
    A("v_mov_b32 v57, s61")
    A("s_mov_b64 exec, -1")
    for r in range(8):
        A(f"v_mul_f32 v{24+r}, v57, v{24+r}")
    A("s_branch L_back")
    LB("L_dyn_done")
    C("wave partial -> LDS")
    A("v_mov_b32 v10, v15")
    A("s_nop 1")
    A("v_permlane32_swap_b32 v10, v15")
    A("s_nop 0")
    A("v_add_f32 v15, v10, v15")
    A("v_mov_b32 v10, v15")
    A(f"ds_write_b128 v61, v[24:27] offset:{L_O}")
    A(f"ds_write_b128 v61, v[28:31] offset:{L_O+512}")
    A("v_permlane16_swap_b32 v10, v15")
    A("s_nop 0")
    A("v_add_f32 v15, v10, v15")
    A("s_mov_b64 exec, 0x101")
    A(f"ds_write_b64 v62, v[14:15] offset:{L_ML}")
    A("s_mov_b64 exec, -1")
    stamp(4)
    if ob == 0: out_loads()
    A("s_waitcnt lgkmcnt(0)")
    A("s_barrier")
    if ob == 1: out_loads()
    C("FFN part of this column block (hidden slice and gate come through LDS)")
    A("v_mov_b32 v10, 0")
    A(f"ds_read_b128 v[80:83], v52 offset:{L_H}")
    A(f"ds_read_b64 v[2:3], v10 offset:{L_G}")
    A("v_lshlrev_b32 v52, 1, v52")
    A("s_waitcnt lgkmcnt(0)")
    for t in range(4):
        for k in range(4):
            A(f"v_and_b32 v{24+4*t+k}, v{80+t}, v{4+k}")
    if ob == 3: A("s_barrier")
    if ob >= 2: out_loads()
    if pp: A("s_waitcnt vmcnt(0)")
    LB("L_out")
    A("s_barrier")
    A(f"ds_read_b128 v[72:75], v52 offset:{L_OP}")
    A(f"ds_read_b128 v[76:79], v52 offset:{L_OP+16}")
    if not pp: A("s_waitcnt vmcnt(0)")
    ffn_mfma()
    A("s_waitcnt lgkmcnt(0)")
    def wo_mfma(tt):
        c = "0" if tt == 0 else "v[16:19]"
        A(f"v_mfma_f32_16x16x32_bf16 v[16:19], v[{88+4*tt}:{91+4*tt}], v[{128+4*tt}:{131+4*tt}], {c}")
    for t in range(8):
        for k in range(4):
            A(f"v_and_b32 v{88+4*t+k}, v{72+t}, v{4+k}")
        if t >= 1: wo_mfma(t-1)
    A("s_nop 0")
    wo_mfma(7)
    A("s_mov_b64 exec, s[52:53]")
    for k in range(4):
        A(f"v_mul_f32 v{20+k}, v3, v{20+k}")
    A("s_nop 2")
    for k in range(4):
        A(f"v_fmac_f32 v{20+k}, v2, v{16+k}")
    A(f"buffer_store_dwordx4 v[20:23], v53, s[40:43], s64 offen {HS}")
    A("s_mov_b64 exec, -1")
    if prof:
        A(f"s_cmp_eq_u32 s3, {NSW}")
        A("s_cbranch_scc1 L_svc_end")
    C("role 0 of WGs with i<28: sums the 128 y partials of 16 output columns")
    A("s_cmp_lg_u32 s3, 0")
    A("s_cbranch_scc1 L_fin")
    A("s_cmp_ge_u32 s31, 28")
    A("s_cbranch_scc1 L_fin")
    srd(44, 22, 23, 1792)
    A("v_lshrrev_b32 v10, 2, v1")
    A(f"v_mul_u32_u24 v10, {OB2S}, v10")
    A("v_and_b32 v11, 3, v1")
    A("v_lshl_add_u32 v10, v11, 4, v10")
    A(f"s_mul_i32 s58, s30, {128*OB2S}")
    A("s_lshl_b32 s61, s31, 6")
    A("s_add_u32 s58, s58, s61")
    A(f"s_add_u32 s58, s58, {OB2}")
    for t in range(8):
        A(f"s_add_u32 s{48+t}, s58, {t*16*OB2S}")
    A("v_lshrrev_b32 v14, 5, v1")
    A("v_lshlrev_b32 v14, 2, v14")
    A(f"v_lshl_add_u32 v14, v11, {4 if lin else 3}, v14")
    out_off(58, 61, 60)
    A(f"s_mov_b32 s60, {spin_max}")
    for t in range(8):
        A(f"s_mov_b64 s[{64+2*t}:{65+2*t}], -1")
    LB("L_poll2")
    for t in range(8):
        A(f"s_mov_b64 exec, s[{64+2*t}:{65+2*t}]")
        A(f"s_cbranch_execz L_p2s{t}")
        A(f"buffer_load_dwordx4 v[{64+4*t}:{67+4*t}], v10, s[40:43], s{48+t} offen {HL}")
        LB(f"L_p2s{t}")
    A("s_mov_b64 exec, -1")
    A("s_waitcnt vmcnt(0)")
    for t in range(8):
        A(f"v_max3_u32 v{12+(t&1)}, v{64+4*t}, v{65+4*t}, v{66+4*t}")
        A(f"v_max_u32 v{12+(t&1)}, v{12+(t&1)}, v{67+4*t}")
        A(f"v_cmp_eq_u32 s[{64+2*t}:{65+2*t}], -1, v{12+(t&1)}")
    A("s_or_b64 s[62:63], s[64:65], s[66:67]")
    for t in range(2, 8):
        A(f"s_or_b64 s[62:63], s[62:63], s[{64+2*t}:{65+2*t}]")
    A("s_cbranch_scc0 L_poll2_done")
    A(f"s_sleep {s2}")
    A("s_sub_u32 s60, s60, 1")
    A("s_cmp_lg_u32 s60, 0")
    A("s_cbranch_scc1 L_poll2")
    LB("L_poll2_done")
    stamp(5)
    for step in (16, 8, 4):
        for k in range(step):
            A(f"v_add_f32 v{64+k}, v{64+k}, v{64+step+k}")
    A("s_nop 1")
    A("v_permlane32_swap_b32 v64, v66")
    A("v_permlane32_swap_b32 v65, v67")
    A("s_nop 1")
    A("v_add_f32 v64, v64, v66")
    A("v_add_f32 v65, v65, v67")
    A("v_mov_b32 v66, v64")
    A("v_mov_b32 v67, v65")
    A("s_nop 1")
    A("v_permlane16_swap_b32 v66, v64")
    A("v_permlane16_swap_b32 v67, v65")
    A("s_nop 1")
    A("v_add_f32 v64, v64, v66")
    A("v_add_f32 v65, v65, v67")
    A("s_nop 1")
    A(f"v_add_f32_dpp v64, v64, v64 row_ror:8 {DPP}")
    A(f"v_add_f32_dpp v65, v65, v65 row_ror:8 {DPP}")
    A("s_nop 1")
    A(f"v_add_f32_dpp v64, v64, v64 row_ror:4 {DPP}")
    A(f"v_add_f32_dpp v65, v65, v65 row_ror:4 {DPP}")
    A("s_mov_b32 s60, 15")
    A("s_mov_b32 s61, 15")
    A("v_cvt_pk_bf16_f32 v64, v64, v65")
    if sprobe:
        A("s_mov_b32 s92, 0")
        A("s_atomic_add s92, s[24:25], 0 glc")
        A("s_memrealtime s[90:91]")
        A("s_waitcnt lgkmcnt(0)")
        A("s_not_b32 s92, s92")
        A("s_sub_u32 s92, s90, s92")
        A("s_min_u32 s92, s92, 5000")
        A(f"s_mul_i32 s92, s92, {sprobe}")
        LB("L_sp2")
        A("s_memrealtime s[94:95]")
        A("s_waitcnt lgkmcnt(0)")
        A("s_sub_u32 s94, s94, s90")
        A("s_cmp_lt_u32 s94, s92")
        A("s_cbranch_scc1 L_sp2")
    if tfix:
        if tmode:
            A("s_mov_b32 s92, 0")
            A("s_atomic_add s92, s[24:25], 0 glc")
            A("s_waitcnt lgkmcnt(0)")
            if tmode == 1: A("s_not_b32 s92, s92")
        LB("L_tfix")
        A("s_memrealtime s[94:95]")
        A("s_waitcnt lgkmcnt(0)")
        A("s_sub_u32 s94, s94, s92")
        A(f"s_cmp_lt_u32 s94, {tfix*100}")
        A("s_cbranch_scc1 L_tfix")
    A("s_mov_b64 exec, s[60:61]")
    A(f"buffer_store_dword v64, v14, s[44:47], s58 offen {['', 'sc1', 'sc0 sc1', 'nt'][osc]}")
    A("s_mov_b64 exec, -1")
    stamp(6)
    LB("L_fin")
    dump_stamps(False)
    A("s_endpgm")

    LB("L_service")
    svc[0] = True
    for k in range(4):
        A(f"v_mov_b32 v{48+k}, -1")
    A("v_lshlrev_b32 v14, 4, v1")
    A("v_mov_b32 v15, 0")
    A(f"ds_write_b32 v15, v15 offset:{L_CNT}")
    A(f"ds_write_b128 v14, v[48:51] offset:{L_WIN}")
    def clears():
        C("own outboxes := sentinel, ticket counter := 0")
        for k in range(2):
            A(f"buffer_store_dwordx4 v[48:51], v14, s[40:43], s57 offen offset:{1024*k} sc1")
        A("buffer_store_dwordx4 v[48:51], v14, s[40:43], s58 offen sc1")
        A("s_mov_b32 s70, -1")
        A("s_mov_b32 s71, 0xffff")
        A("s_mov_b64 exec, s[70:71]")
        A("buffer_store_dwordx4 v[48:51], v14, s[40:43], s58 offen offset:1024 sc1")
        A(f"s_mov_b64 exec, {'0xff' if al else '0xffff'}")
        A("buffer_store_dwordx4 v[48:51], v14, s[40:43], s57 offen offset:2048 sc1")
        if rep:
            A("s_add_u32 s70, s57, 0xA0000")
            A("buffer_store_dwordx4 v[48:51], v14, s[40:43], s70 offen offset:2048 sc1")
            A("s_mov_b64 exec, -1")
            A("buffer_store_dwordx4 v[48:51], v14, s[40:43], s70 offen sc1")
            A("buffer_store_dwordx4 v[48:51], v14, s[40:43], s70 offen offset:1024 sc1")
        A("s_mov_b64 exec, -1")
    if clr == 2:
        A(f"s_mul_i32 s57, s2, {OB1S}")
        A(f"s_add_u32 s57, s57, {OB1}")
        A(f"s_mul_i32 s58, s2, {OB2S}")
        A(f"s_add_u32 s58, s58, {OB2}")
        clears()
    if NSW == 3: q_partial(5 if clr == 2 else 0)
    A("s_mul_i32 s70, s30, 896")
    A("s_add_u32 s44, s4, s70")
    A("s_addc_u32 s45, s5, 0")
    A("s_mov_b32 s46, 896")
    A(f"s_mul_i32 s57, s2, {OB1S}")
    A(f"s_add_u32 s57, s57, {OB1}")
    A(f"s_mul_i32 s58, s2, {OB2S}")
    A(f"s_add_u32 s58, s58, {OB2}")
    stamp(1)
    A("s_waitcnt lgkmcnt(0)")
    A("s_barrier")
    for w in range(4):
        A(f"ds_read_b64 v[{16+2*w}:{17+2*w}], v12 offset:{L_QP+128*w}")
    if clr != 2: A("s_waitcnt vmcnt(0)")
    A("v_add_u32 v72, 0x10000, v72")
    A("v_add_u32 v73, 0x10000, v73")
    A("v_and_b32 v72, 0xffff0000, v72")
    A("v_and_b32 v73, 0xffff0000, v73")
    A("s_waitcnt lgkmcnt(0)")
    A("v_add_f32 v16, v16, v18")
    A("v_add_f32 v17, v17, v19")
    A("v_add_f32 v20, v20, v22")
    A("v_add_f32 v21, v21, v23")
    A("v_add_f32 v16, v16, v20")
    A("v_add_f32 v17, v17, v21")
    A("v_cvt_pk_bf16_f32 v16, v16, 0")
    A("v_cvt_pk_bf16_f32 v17, v17, 0")
    A("v_or_b32 v72, v72, v16")
    A("v_or_b32 v73, v73, v17")
    A("s_mov_b64 exec, s[62:63]")
    A(f"buffer_store_dwordx2 v[72:73], v12, s[40:43], s59 offen offset:{QBOX} sc1")
    A("s_mov_b64 exec, -1")
    stamp(2)
    if clr == 1: clears()
    A("s_cmp_lg_u32 s29, 0")
    A("s_cbranch_scc1 L_notinit")
    A("s_lshl_b32 s70, s28, 12")
    A(f"s_add_u32 s70, s70, {TICK}")
    A("s_mov_b64 exec, 1")
    A("buffer_store_dword v15, v15, s[40:43], s70 offen sc1")
    A("s_mov_b64 exec, -1")
    LB("L_notinit")
    A("s_lshl_b32 s65, s30, 6")
    A("s_add_u32 s65, s65, 128")
    A("s_mov_b32 s68, 1")
    A("s_mov_b32 s59, 0")
    A("s_mov_b32 s66, 0x10000")
    A("s_waitcnt vmcnt(0)")
    A("s_atomic_add s68, s[24:25], s65")
    LB("L_pollq")
    A(f"buffer_load_dwordx4 v[76:79], v11, s[40:43], s56 offen offset:{QBOX} sc1")
    A(f"buffer_load_dwordx4 v[80:83], v11, s[40:43], s56 offen offset:{QBOX+16} sc1")
    A("s_waitcnt vmcnt(0)")
    for k in range(8):
        A(f"v_xor_b32 v{84+k}, v{64+k}, v{76+k}")
    A("v_min3_u32 v84, v84, v85, v86")
    A("v_min3_u32 v87, v87, v88, v89")
    A("v_min3_u32 v84, v84, v90, v91")
    A("v_min_u32 v84, v84, v87")
    A("v_cmp_gt_u32 vcc, s66, v84")
    A("s_cbranch_vccz L_pollq_done")
    A("s_mov_b64 exec, vcc")
    A("s_add_u32 s59, s59, 1")
    A("s_sleep 1")
    A(f"s_cmp_lt_u32 s59, {fbk}")
    A("s_cbranch_scc1 L_pollq")
    C("the snapshot may have been taken after a producer wrote: once the whole batch arrived, the next read is valid")
    A("s_mov_b32 s70, 0")
    A("s_atomic_add s70, s[24:25], s65 glc")
    A("s_waitcnt lgkmcnt(0)")
    A("s_cmp_ge_u32 s70, 128")
    A("s_cselect_b32 s66, 0, s66")
    A(f"s_cmp_lt_u32 s59, {spin_max}")
    A("s_cbranch_scc1 L_pollq")
    LB("L_pollq_done")
    A("s_mov_b64 exec, -1")
    stamp(3)
    for k in range(4):
        A(f"v_perm_b32 v{48+k}, v{77+2*k}, v{76+2*k}, s60")
    A(f"ds_write_b128 v14, v[48:51] offset:{L_Q}")
    A("s_waitcnt lgkmcnt(0)")
    A("s_barrier")
    stamp(4)
    if tmode == 1:
        A("s_not_b32 s94, s92")
        A("s_atomic_umax s94, s[24:25], 0")
        A("s_waitcnt lgkmcnt(0)")
    if tmode == 2:
        A("s_mov_b32 s94, s92")
        A("s_atomic_umax s94, s[24:25], 0")
        A("s_waitcnt lgkmcnt(0)")
    if tmode == 3:
        A("s_memrealtime s[94:95]")
        A("s_waitcnt lgkmcnt(0)")
        A("s_atomic_umax s94, s[24:25], 0")
        A("s_waitcnt lgkmcnt(0)")
    C("background: FFN hidden slice, gate, output-side weights")
    make_masks(56, 57)
    A("s_and_b32 s66, s31, 7")
    A("s_mul_i32 s66, s66, 14")
    A("s_lshr_b32 s67, s31, 3")
    A("s_add_u32 s66, s66, s67")
    A("s_cmp_lt_u32 s31, 112")
    A(f"s_cselect_b32 s59, {448*1792*2}, 0")
    srd(48, 16, 17, 0 if skip & 2 else "s59")
    srd(36, 20, 21, 896)
    A("v_lshrrev_b32 v10, 1, v1")
    A("v_and_b32 v11, 1, v1")
    A("v_mul_u32_u24 v12, 28, v10")
    A(f"v_mul_u32_u24 v13, {14*3584}, v10")
    A("v_lshl_add_u32 v13, v11, 4, v13")
    A(f"buffer_load_dwordx4 v[{XR}:{XR+3}], v12, s[44:47], 0 offen")
    A(f"buffer_load_dwordx3 v[{XR+4}:{XR+6}], v12, s[44:47], 0 offen offset:16")
    A("buffer_load_dwordx4 v[40:43], v14, s[44:47], 0 offen")
    A("buffer_load_dwordx4 v[44:47], v14, s[36:39], 0 offen")
    A("s_lshl_b32 s56, s66, 5")
    cnt = [0]
    def thr():
        cnt[0] += 1
        if cnt[0] % SB == 0: A("s_waitcnt vmcnt(0)")
    for t in range(14):
        A(f"buffer_load_dwordx4 v[{64+4*t}:{67+4*t}], v13, s[48:51], s56 offen")
        A("s_add_u32 s56, s56, 3584")
        thr()
    for k in range(8):
        A(f"v_mov_b32 v{ACC+k}, 0")
    matvec_pairs(7, 64, XR, 0)
    A("s_nop 1")
    for k in range(2):
        A(f"v_add_f32_dpp v{ACC+k}, v{ACC+k}, v{ACC+k} row_ror:2 {DPP}")
    A(f"s_mov_b32 s59, {f2u(-math.log2(math.e)):#x}")
    for k in range(2):
        A(f"v_cvt_pk_bf16_f32 v{ACC+k}, 0, v{ACC+k}")
    for k in range(2):
        A(f"v_mul_f32 v{ACC+2+k}, s59, v{ACC+k}")
    for k in range(2):
        A(f"v_exp_f32 v{ACC+2+k}, v{ACC+2+k}")
    A("s_nop 0")
    for k in range(2):
        A(f"v_add_f32 v{ACC+2+k}, 1.0, v{ACC+2+k}")
    for k in range(2):
        A(f"v_rcp_f32 v{ACC+2+k}, v{ACC+2+k}")
    A("s_nop 0")
    for k in range(2):
        A(f"v_mul_f32 v{ACC+k}, v{ACC+k}, v{ACC+2+k}       ; silu")
    for k in range(2):
        A(f"v_cvt_pk_bf16_f32 v{ACC+k}, v{ACC+k}, v{ACC+k}")
    A("v_lshlrev_b32 v12, 5, v11")
    A("v_lshl_add_u32 v12, v9, 3, v12")
    A("s_mov_b32 s62, 0x00030003")
    A("s_mov_b32 s63, 0x00030003")
    A("s_mov_b64 exec, s[62:63]")
    A(f"ds_write_b64 v12, v[{ACC}:{ACC+1}] offset:{L_H}")
    A("s_mov_b64 exec, -1")
    C("gate")
    for k in range(4):
        A(f"v_lshlrev_b32 v52, 16, v{40+k}")
        A(f"v_lshlrev_b32 v53, 16, v{44+k}")
        A(f"v_and_b32 v54, 0xffff0000, v{40+k}")
        A(f"v_and_b32 v55, 0xffff0000, v{44+k}")
        A("v_mul_f32 v52, v52, v53")
        A("v_mul_f32 v54, v54, v55")
        A("v_cvt_pk_bf16_f32 v52, 0, v52")
        A("v_cvt_pk_bf16_f32 v54, 0, v54")
        if k == 0:
            A("v_add_f32 v56, v52, v54")
        else:
            A("v_add_f32 v56, v56, v52")
            A("v_add_f32 v56, v56, v54")
    for rr in (8, 4, 2, 1):
        A("s_nop 1")
        A(f"v_add_f32_dpp v56, v56, v56 row_ror:{rr} {DPP}")
    A("v_mov_b32 v57, v56")
    A("s_nop 1")
    A("v_permlane32_swap_b32 v57, v56")
    A("s_nop 1")
    A("v_add_f32 v56, v56, v57")
    A("v_mov_b32 v57, v56")
    A("s_nop 1")
    A("v_permlane16_swap_b32 v57, v56")
    A("s_nop 1")
    A("v_add_f32 v56, v56, v57")
    A("v_cvt_pk_bf16_f32 v56, 0, v56")
    A("v_mul_f32 v56, s59, v56")
    A("v_exp_f32 v56, v56")
    A("s_nop 0")
    A("v_add_f32 v56, 1.0, v56")
    A("v_rcp_f32 v56, v56")
    A("s_nop 0")
    A("v_cvt_pk_bf16_f32 v2, 0, v56           ; g")
    A("v_sub_f32 v3, 1.0, v2")
    A("v_cvt_pk_bf16_f32 v3, 0, v3            ; 1-g")
    A("v_mov_b32 v16, 0")
    A(f"ds_write_b64 v16, v[2:3] offset:{L_G}")
    out_setup()
    A(f"ds_read_b128 v[80:83], v52 offset:{L_H}")
    A("v_lshlrev_b32 v52, 1, v52")
    A("s_waitcnt lgkmcnt(0)")
    for t in range(4):
        for k in range(4):
            A(f"v_and_b32 v{24+4*t+k}, v{80+t}, v{4+k}")
    A(f"s_mov_b32 s59, {f2u(C_SCALE):#x}")
    A("v_lshlrev_b32 v10, 5, v1")
    A("v_lshrrev_b32 v11, 5, v1")
    A("v_lshlrev_b32 v11, 3, v11")
    A("v_lshrrev_b32 v15, 2, v1")
    A("v_mul_u32_u24 v15, 144, v15")
    A("v_and_b32 v12, 3, v1")
    A("v_lshl_add_u32 v15, v12, 5, v15")
    A(f"v_mul_u32_u24 v12, {OB1S}, v8")
    A("v_lshl_add_u32 v13, v9, 5, v12")
    A(f"s_mul_i32 s60, s28, {16*OB1S}")
    A(f"s_add_u32 s60, s60, {OB1}")
    if al:
        A("s_lshr_b32 s66, s29, 3")
        A("s_lshl_b32 s66, s66, 3")
        A("s_add_u32 s66, s66, s60")
        A("v_lshlrev_b32 v10, 4, v1")
        A("v_mov_b32 v11, 0")
    A(f"s_mul_i32 s61, s29, {128 if al else 144}")
    A("s_add_u32 s60, s60, s61")
    A("v_lshlrev_b32 v14, 5, v9")
    if pp:
        for k in range(8):
            A(f"v_mov_b32 v{120+k}, -1")
    A("s_lshl_b32 s54, 0x00010001, s29")
    A("s_mov_b32 s55, s54")
    if al:
        A("s_and_b32 s61, s29, 7")
        A("s_lshl_b32 s61, s61, 5")
        A("v_lshl_add_u32 v21, v9, 3, s61")
    else:
        A("s_lshl_b32 s61, s29, 4")
        A("v_lshl_add_u32 v21, v9, 2, s61")
    def warm_tail():
        C("address-translation warm-up for the pages the tail touches (values unused)")
        A("s_mov_b64 exec, 1")
        A(f"buffer_load_dword v200, v16, s[32:35], {'s73' if wsel else '0'} offen {['', '', 'sc1', 'nt'][wsel]}")
        A("buffer_load_dword v201, v16, s[40:43], s64 offen sc1")
        A("buffer_load_dword v202, v16, s[40:43], s57 offen sc1")
        A("buffer_load_dword v203, v54, s[44:47], s69 offen")
        A("buffer_load_dword v204, v55, s[48:51], s67 offen")
        A("s_mov_b64 exec, -1")
    if wkv:
        C("translations of the group's K/V pages (pool tiles, first V tile)")
        srd(32, 6, 7, "0x10000000")
        srd(36, 8, 9, "0x10000000")
        A("v_lshlrev_b32 v17, 21, v1")
        A("s_lshl_b32 s70, s28, 24")
        A(f"s_add_u32 s70, s70, {NS << 16}")
        A("s_mov_b64 exec, 0xff")
        A("buffer_load_dword v205, v17, s[32:35], s70 offen nt")
        A("buffer_load_dword v206, v17, s[36:39], s70 offen nt")
        A("s_mov_b64 exec, -1")
    srd(32, 22, 23, 1792)
    if wsel:
        out_off(73, 70, 71)
        A("s_cmp_lt_u32 s31, 28")
        A("s_cselect_b32 s34, 1792, 0")
        A("s_cselect_b32 s73, s73, 0")
    if wout >= 3: warm_tail()
    C("whole batch arrived => every outbox read later was cleared and the ticket counters are set")
    A(f"s_mov_b32 s56, {spin_max}")
    LB("L_pollg")
    A("s_mov_b32 s70, 0")
    A("s_atomic_add s70, s[24:25], s65 glc")
    A("s_waitcnt lgkmcnt(0)")
    A("s_cmp_ge_u32 s70, 128")
    A("s_cbranch_scc1 L_pollg_done")
    A("s_sleep 16")
    A("s_sub_u32 s56, s56, 1")
    A("s_cmp_lg_u32 s56, 0")
    A("s_cbranch_scc1 L_pollg")
    LB("L_pollg_done")
    C("window-ticket server")
    A("s_lshl_b32 s74, s28, 12")
    A(f"s_add_u32 s74, s74, {TICK}")
    A("s_add_u32 s74, s26, s74")
    A("s_addc_u32 s75, s27, 0")
    A("s_mov_b32 s71, 0")
    A("s_mov_b32 s72, 0")
    A("v_mov_b32 v16, 0")
    A(f"s_mov_b32 s56, {spin_max*32}")
    LB("L_tk")
    A(f"ds_read_b32 v17, v16 offset:{L_CNT}")
    A("s_waitcnt lgkmcnt(0)")
    A("v_readfirstlane_b32 s70, v17")
    A("s_cmp_gt_u32 s70, s72")
    A("s_cbranch_scc1 L_tk_fetch")
    A("s_sleep 2")
    A("s_sub_u32 s56, s56, 1")
    A("s_cmp_lg_u32 s56, 0")
    A("s_cbranch_scc1 L_tk")
    A("s_branch L_tk_done")
    LB("L_tk_fetch")
    A("s_mov_b32 s70, 1")
    A("s_atomic_add s70, s[74:75], 0 glc")
    A("v_mov_b32 v17, s71")
    A("s_waitcnt lgkmcnt(0)")
    A("v_mov_b32 v20, s70")
    A("s_add_u32 s71, s71, 4")
    A(f"s_add_u32 s72, s72, {WT}")
    A(f"ds_write_b32 v17, v20 offset:{L_WIN}")
    A(f"s_cmp_lt_u32 s70, {NTK - RET}")
    A("s_cbranch_scc1 L_tk")
    C("one of the last tickets (or none): this WG asks for nothing more")
    A("v_mov_b32 v17, s71")
    A("v_mov_b32 v20, 0x10000")
    for k in range(-(-NSW // WT)):
        A(f"ds_write_b32 v17, v20 offset:{L_WIN + 4*k}")
    LB("L_tk_done")
    if wout: warm_tail()
    if warm:
        C("touch the pages of the output-side weights (address translation only)")
        A("s_mov_b64 exec, 1")
        A("buffer_load_dword v17, v54, s[44:47], s69 offen")
        A("buffer_load_dword v20, v55, s[48:51], s67 offen")
        A("s_mov_b64 exec, -1")
    A("s_waitcnt lgkmcnt(0)")
    A("s_barrier")
    stamp(5)
    if prof: A("s_waitcnt lgkmcnt(0)")
    if al:
        C("WG combine: lane l owns floats 4l..4l+3 of both heads")
        for w in range(3):
            A(f"ds_read_b128 v[{40+4*w}:{43+4*w}], v11 offset:{L_ML+16*w}")
        for w in range(3):
            A(f"ds_read_b128 v[{64+8*w}:{67+8*w}], v10 offset:{L_O+2048*w}")
            A(f"ds_read_b128 v[{68+8*w}:{71+8*w}], v10 offset:{L_O+2048*w+1024}")
        A("s_waitcnt lgkmcnt(6)")
        A("v_max3_f32 v16, v40, v44, v48")
        A("v_max3_f32 v18, v42, v46, v50")
        for w in range(3):
            A(f"v_sub_f32 v{40+4*w}, v{40+4*w}, v16")
            A(f"v_sub_f32 v{42+4*w}, v{42+4*w}, v18")
        for w in range(6):
            A(f"v_mul_f32 v{40+2*w}, s59, v{40+2*w}")
        for w in range(6):
            A(f"v_exp_f32 v{40+2*w}, v{40+2*w}")
        A("s_waitcnt lgkmcnt(0)")
        for h in range(2):
            for k in range(4):
                A(f"v_mul_f32 v{64+4*h+k}, v{40+2*h}, v{64+4*h+k}")
            for w in range(1, 3):
                for k in range(4):
                    A(f"v_fmac_f32 v{64+4*h+k}, v{40+4*w+2*h}, v{64+8*w+4*h+k}")
            A(f"buffer_store_dwordx4 v[{64+4*h}:{67+4*h}], v10, s[40:43], s57 offen offset:{1024*h} {HS}")
        A("v_mul_f32 v17, v40, v41")
        A("v_mul_f32 v19, v42, v43")
        for w in range(1, 3):
            A(f"v_fmac_f32 v17, v{40+4*w}, v{41+4*w}")
            A(f"v_fmac_f32 v19, v{42+4*w}, v{43+4*w}")
        A("s_mov_b64 exec, 1")
        A(f"buffer_store_dwordx4 v[16:19], v11, s[40:43], s57 offen offset:2048 {HS}")
        A("s_nop 0")
    else:
        C("WG combine")
        for w in range(NSW):
            A(f"ds_read_b64 v[{56+2*w}:{57+2*w}], v11 offset:{L_ML+16*w}")
        for w in range(NSW):
            A(f"ds_read_b128 v[{64+8*w}:{67+8*w}], v10 offset:{L_O+2048*w}")
            A(f"ds_read_b128 v[{68+8*w}:{71+8*w}], v10 offset:{L_O+2048*w+16}")
        A(f"s_waitcnt lgkmcnt({2*NSW})")
        A("v_max3_f32 v16, v56, v58, v60")
        if NSW == 4: A("v_max_f32 v16, v16, v62")
        for w in range(NSW):
            A(f"v_sub_f32 v{56+2*w}, v{56+2*w}, v16")
        for w in range(NSW):
            A(f"v_mul_f32 v{56+2*w}, s59, v{56+2*w}")
        for w in range(NSW):
            A(f"v_exp_f32 v{56+2*w}, v{56+2*w}")
        A("s_nop 0")
        A("v_mul_f32 v17, v56, v57")
        for w in range(1, NSW):
            A(f"v_fmac_f32 v17, v{56+2*w}, v{57+2*w}")
        A("s_waitcnt lgkmcnt(0)")
        for k in range(8):
            A(f"v_mul_f32 v{64+k}, v56, v{64+k}")
        for w in range(1, NSW):
            for k in range(8):
                A(f"v_fmac_f32 v{64+k}, v{56+2*w}, v{64+8*w+k}")
        A(f"buffer_store_dwordx4 v[64:67], v15, s[40:43], s57 offen {HS}")
        A(f"buffer_store_dwordx4 v[68:71], v15, s[40:43], s57 offen offset:16 {HS}")
        A("s_mov_b32 s62, 0x11111111")
        A("s_mov_b32 s63, 0x11111111")
        A("s_mov_b64 exec, s[62:63]")
        A(f"buffer_store_dwordx2 v[16:17], v15, s[40:43], s57 offen offset:128 {HS}")
    if rep:
        A("s_add_u32 s70, s57, 0xA0000")
        A(f"buffer_store_dwordx2 v[16:17], v15, s[40:43], s70 offen offset:128 {HS}")
        A("s_mov_b64 exec, -1")
        A(f"buffer_store_dwordx4 v[64:67], v15, s[40:43], s70 offen {HS}")
        A(f"buffer_store_dwordx4 v[68:71], v15, s[40:43], s70 offen offset:16 {HS}")
        A("s_add_u32 s71, s60, 0xA0000")
    A("s_mov_b64 exec, -1")
    def poll1_loads():
        A(f"buffer_load_dwordx4 v[72:75], v13, s[40:43], s60 offen {HL}")
        A(f"buffer_load_dwordx4 v[76:79], v13, s[40:43], s60 offen offset:16 {HL}")
        if al: A(f"buffer_load_dwordx2 v[80:81], v12, s[40:43], s66 offen offset:2048 {HL}")
        else: A(f"buffer_load_dwordx2 v[80:81], v12, s[40:43], s60 offen offset:128 {HL}")
    stamp(1)
    if ob == 3: A("s_barrier")
    A(f"s_mov_b32 s56, {spin_max}")
    if pp:
        C("weights first; then overlapped polls that all land in v120..127/v86..87; a register copy is what is checked and used")
        A("s_mov_b32 s62, 0x00ff00ff")
        A("s_mov_b32 s63, 0x00ff00ff")
        A("s_mov_b64 exec, s[62:63]")
        out_loads()
        A("s_mov_b64 exec, -1")
        for k in range(8):
            A(f"ds_bpermute_b32 v{72+k}, v21, v{64+k}")
        A("ds_bpermute_b32 v80, v21, v16")
        A("ds_bpermute_b32 v81, v21, v17")
        A("v_mov_b32 v86, -1")
        A("v_mov_b32 v87, -1")
        A("s_andn2_b64 exec, -1, s[54:55]")
        LB("L_poll1")
        A(f"buffer_load_dwordx4 v[120:123], v13, s[40:43], s60 offen {HL}")
        A(f"buffer_load_dwordx4 v[124:127], v13, s[40:43], s60 offen offset:16 {HL}")
        A(f"buffer_load_dwordx2 v[86:87], v12, s[40:43], s60 offen offset:128 {HL}")
        if rep:
            A("s_mov_b32 s70, s60")
            A("s_mov_b32 s60, s71")
            A("s_mov_b32 s71, s70")
        A(f"s_sleep {pp}")
        A(f"s_waitcnt vmcnt({ppc}) lgkmcnt(0)")
        for k in range(8):
            A(f"v_mov_b32 v{72+k}, v{120+k}")
        A("v_mov_b32 v80, v86")
        A("v_mov_b32 v81, v87")
        A("v_max3_u32 v18, v72, v73, v74")
        A("v_max3_u32 v19, v75, v76, v77")
        A("v_max3_u32 v18, v18, v78, v79")
        A("v_max3_u32 v19, v19, v80, v81")
        A("v_max_u32 v18, v18, v19")
        A("v_cmp_eq_u32 vcc, -1, v18")
        A("s_cbranch_vccz L_poll1_done")
        A("s_mov_b64 exec, vcc")
        A("s_sub_u32 s56, s56, 1")
        A("s_cmp_lg_u32 s56, 0")
        A("s_cbranch_scc1 L_poll1")
        A("s_waitcnt vmcnt(0)")
    else:
        if own:
            C("own packet comes from registers; the other 15 are polled")
            A("s_andn2_b64 exec, -1, s[54:55]")
            poll1_loads()
            if m3:
                A("s_mov_b32 s62, 0x00ff00ff")
                A("s_mov_b32 s63, 0x00ff00ff")
                A("s_mov_b64 exec, s[62:63]")
            else:
                A("s_mov_b64 exec, -1")
            out_loads()
            A("s_mov_b64 exec, -1")
            if al:
                A("s_cmp_lt_u32 s29, 8")
                A("s_cbranch_scc1 L_ownh0")
                for k in range(4):
                    A(f"v_mov_b32 v{64+k}, v{68+k}")
                A("v_mov_b32 v16, v18")
                A("v_mov_b32 v17, v19")
                LB("L_ownh0")
                for k in range(4):
                    A(f"ds_bpermute_b32 v{88+k}, v21, v{64+k}")
                    A(f"ds_bpermute_b32 v{92+k}, v21, v{64+k} offset:4")
                A("v_mov_b32 v96, v16")
                A("v_mov_b32 v97, v17")
            else:
                for k in range(8):
                    A(f"ds_bpermute_b32 v{88+k}, v21, v{64+k}")
                A("ds_bpermute_b32 v96, v21, v16")
                A("ds_bpermute_b32 v97, v21, v17")
            A("s_mov_b64 exec, s[54:55]")
            A("s_waitcnt vmcnt(12) lgkmcnt(0)")
            for k in range(10):
                A(f"v_mov_b32 v{72+k}, v{88+k}")
            A("s_mov_b64 exec, -1")
            A("s_branch L_poll1_chk")
        else:
            A("s_mov_b32 s62, 0x00ff00ff")
            A("s_mov_b32 s63, 0x00ff00ff")
            A("s_mov_b64 exec, s[62:63]")
            out_loads()
            A("s_mov_b64 exec, -1")
        LB("L_poll1")
        poll1_loads()
        A("s_waitcnt vmcnt(0)")
        LB("L_poll1_chk")
        A("v_max3_u32 v18, v72, v73, v74")
        A("v_max3_u32 v19, v75, v76, v77")
        A("v_max3_u32 v18, v18, v78, v79")
        A("v_max3_u32 v19, v19, v80, v81")
        A("v_max_u32 v18, v18, v19")
        A("v_cmp_eq_u32 vcc, -1, v18")
        A("s_cbranch_vccz L_poll1_done")
        A("s_mov_b64 exec, vcc")
        A("s_bcnt1_i32_b64 s61, vcc")
        A(f"s_cmp_le_u32 s61, {lt}")
        A("s_cbranch_scc1 L_poll1_fast")
        A(f"s_sleep {ls}")
        LB("L_poll1_fast")
        A("s_sleep 1")
        A("s_sub_u32 s56, s56, 1")
        A("s_cmp_lg_u32 s56, 0")
        A("s_cbranch_scc1 L_poll1")
    LB("L_poll1_done")
    A("s_mov_b64 exec, -1")
    stamp(6)
    if sprobe:
        A("s_cmp_lg_u32 s29, 0")
        A("s_cbranch_scc1 L_sp1")
        A("s_memrealtime s[94:95]")
        A("s_waitcnt lgkmcnt(0)")
        A("s_not_b32 s94, s94")
        A("s_atomic_umax s94, s[24:25], 0")
        LB("L_sp1")
    C("group combine over the 16 producers, then 32 rows of wo")
    A(f"v_max_f32_dpp v18, v80, v80 row_ror:8 {DPP}")
    for rr in (4, 2, 1):
        A("s_nop 1")
        A(f"v_max_f32_dpp v18, v18, v18 row_ror:{rr} {DPP}")
    A("v_sub_f32 v18, v80, v18")
    A("v_mul_f32 v18, s59, v18")
    A("v_exp_f32 v18, v18")
    A("s_nop 0")
    A("v_mul_f32 v80, v18, v81")
    for k in range(8):
        A(f"v_mul_f32 v{72+k}, v18, v{72+k}")
    for rr in (8, 4, 2, 1):
        for k in (8, 0, 1, 2, 3, 4, 5, 6, 7):
            A(f"v_add_f32_dpp v{72+k}, v{72+k}, v{72+k} row_ror:{rr} {DPP}")
    A("v_rcp_f32 v80, v80")
    A("s_nop 0")
    for k in range(8):
        A(f"v_mul_f32 v{72+k}, v80, v{72+k}")
    for k in range(8):
        A(f"v_cvt_pk_bf16_f32 v{72+k}, v{72+k}, v{72+k}")
    A("s_mov_b32 s62, 0x00010001")
    A("s_mov_b32 s63, 0x00010001")
    A("s_mov_b64 exec, s[62:63]")
    A(f"ds_write_b128 v14, v[72:75] offset:{L_OP}")
    A(f"ds_write_b128 v14, v[76:79] offset:{L_OP+16}")
    A("s_mov_b64 exec, -1")
    A("s_waitcnt lgkmcnt(0)")
    A("s_branch L_out")
    LB("L_svc_end")
    stamp(7)
    dump_stamps(True)
    LB("L_end")
    A("s_endpgm")
    L.append('.section .rodata,"a"')
    L.append(".p2align 6")
    L.append(f".amdhsa_kernel {NAME}_kernel")
    L.append("  .amdhsa_next_free_vgpr 256")
    L.append("  .amdhsa_next_free_sgpr 96")
    L.append("  .amdhsa_accum_offset 256")
    L.append("  .amdhsa_group_segment_fixed_size 0")
    L.append("  .amdhsa_kernarg_size 96")
    L.append("  .amdhsa_user_sgpr_count 2")
    L.append("  .amdhsa_user_sgpr_kernarg_segment_ptr 1")
    L.append("  .amdhsa_system_sgpr_workgroup_id_x 1")
    L.append(".end_amdhsa_kernel")
    return "\n".join(L) + "\n"


if __name__ == "__main__":
    out = sys.argv[1]
    kw = {}
    for a in sys.argv[2:]:
        k, v = a.split("=")
        kw[k] = int(v)
    open(out, "w").write(gen(**kw))
```
